```python
import torch

def _softmax(x, axis=-1):
    return torch.softmax(x, dim=axis)
def _gelu(x):
    return torch.nn.functional.gelu(x, approximate="tanh")
def _silu(x):
    return torch.nn.functional.silu(x)
def _sigmoid(x):
    return torch.sigmoid(x)
def _layernorm(x, axis=-1, eps=1e-5):
    m = x.mean(dim=axis, keepdim=True)
    v = x.var(dim=axis, keepdim=True, unbiased=False)
    return (x - m) / torch.sqrt(v + eps)
def _scatter_add(tgt, idx, src, axis=0):
    return tgt.clone().index_add_(axis, idx, src)
def _segment_sum(src, seg, n):
    out = torch.zeros((n,) + src.shape[1:], dtype=src.dtype)
    return out.index_add_(0, seg, src)
def _pad(x, pw):
    flat = tuple(v for pair in reversed(pw) for v in pair)
    return torch.nn.functional.pad(x, flat)

kernel_name = 'interleave_layers__linear_kernel_hedgehog__sliding_block__prompt'

def setup_inputs():

    _w = (lambda a: (lambda t: t.to(torch.bfloat16) if t.is_floating_point() else t)(torch.as_tensor(a)))
    def _A_setup():
        B, S, D, H = 1, 2048, 576, 32
        Dh = D // H
        return {
            "x": _w((lambda *s: torch.randn(*s, dtype=torch.bfloat16) * 0.05)(B, S, D)),
            "wqkv": _w((lambda *s: torch.randn(*s, dtype=torch.bfloat16) * 0.2)(D, 3 * D)),
            "w_phi": _w((lambda *s: torch.randn(*s, dtype=torch.bfloat16) * 0.2)(H, Dh, Dh) * (Dh ** -0.5)),
            "wo": _w((lambda *s: torch.randn(*s, dtype=torch.bfloat16) * 0.05)(D, D)),
        }
    _A_in = _A_setup()

    def _B_setup():
        B, S, D = 1, 2048, 576
        return {
            "x": _w((lambda *s: torch.randn(*s, dtype=torch.bfloat16) * 0.05)(B, S, D)),
            "wqkv": _w((lambda *s: torch.randn(*s, dtype=torch.bfloat16) * 0.1)(D, 3 * D)),
            "wo": _w((lambda *s: torch.randn(*s, dtype=torch.bfloat16) * 0.05)(D, D)),
        }
    _B_in = _B_setup()

    return {
        "A_x": _A_in["x"],
        "A_wqkv": _A_in["wqkv"],
        "A_w_phi": _A_in["w_phi"],
        "A_wo": _A_in["wo"],
        "B_x": _B_in["x"],
        "B_wqkv": _B_in["wqkv"],
        "B_wo": _B_in["wo"],
    }

def reference(A_x, A_wqkv, A_w_phi, A_wo, B_x, B_wqkv, B_wo):
    def _A_ref(x, wqkv, w_phi, wo):
        B, S, D = x.shape
        H = 32; Dh = D // H
        qkv = (lambda x, *d: x.permute(*d))((x @ wqkv).reshape(B, S, 3, H, Dh), 2, 0, 3, 1, 4)
        q, k, v = qkv[0], qkv[1], qkv[2]
        pq = torch.einsum("bhsd,hdf->bhsf", q, w_phi)
        pk = torch.einsum("bhsd,hdf->bhsf", k, w_phi)
        phi_q = torch.concatenate([_softmax(pq, axis=-1), _softmax(-pq, axis=-1)], axis=-1)
        phi_k = torch.concatenate([_softmax(pk, axis=-1), _softmax(-pk, axis=-1)], axis=-1)
        kv = torch.einsum("bhsf,bhsd->bhfd", phi_k, v)
        z  = torch.einsum("bhsf->bhf", phi_k)
        num = torch.einsum("bhqf,bhfd->bhqd", phi_q, kv)
        den = torch.einsum("bhqf,bhf->bhq", phi_q, z)[..., None] + 1e-6
        o = num / den
        return (lambda x, *d: x.permute(*d))(o, 0, 2, 1, 3).reshape(B, S, D) @ wo

    def _B_ref(x, wqkv, wo):
        B, S, D = x.shape
        H = 32; Dh = D // H; W = 256
        qkv = (lambda x, *d: x.permute(*d))((x @ wqkv).reshape(B, S, 3, H, Dh), 2, 0, 3, 1, 4)
        q, k, v = qkv[0], qkv[1], qkv[2]
        scores = torch.einsum("bhqd,bhkd->bhqk", q, k) * (Dh ** -0.5)
        idx = torch.arange(S)
        mask = (idx[:, None] - idx[None, :] >= 0) & (idx[:, None] - idx[None, :] < W)
        scores = torch.where(mask[None, None], scores, -1e9)
        p = _softmax(scores, axis=-1)
        o = torch.einsum("bhqk,bhkd->bhqd", p, v)
        return (lambda x, *d: x.permute(*d))(o, 0, 2, 1, 3).reshape(B, S, D) @ wo

    x = A_x
    x = x + _A_ref(_layernorm(x, axis=-1), A_wqkv, A_w_phi, A_wo)
    x = x + _B_ref(_layernorm(x, axis=-1), B_wqkv, B_wo)
    x = x + _A_ref(_layernorm(x, axis=-1), A_wqkv, A_w_phi, A_wo)
    x = x + _B_ref(_layernorm(x, axis=-1), B_wqkv, B_wo)
    return x
```

```python
import sys, struct

NAME = 'interleave_layers__linear_kernel_hedgehog__sliding_block__prompt'

WQA = 0x000000
WQB = 0x200000
WQ_SZ = 16 * 18 * 7 * 1024
WOA = 0x400000
WOB = 0x500000
WO_SZ = 4 * 9 * 18 * 1024
CSA = 0x600000
CSB = 0x602000
CS_SZ = 16 * 112 * 4
TPHI = 0x610000
TPHI_SZ = 16 * 15 * 1024
KV1 = 0x660000
KV3 = 0x680000
KV_SZ = 32 * 19 * 144
X1 = 0x700000
X2 = 0x940000
X3 = 0xB80000
X_SZ = 2048 * 1152
PHIQ = 0xE00000
PHIQ_SZ = 64 * 32 * 2304
REC = 0x1300000
REC_HEAD = 2048 * 48
REC_SZ = 3 * 32 * REC_HEAD
OIMG = 0x1C00000
OIMG_SZ = 64 * 36864

LOG2E = 1.4426950408889634


def f32bits(x):
    return struct.unpack('<I', struct.pack('<f', x))[0]


class Asm:
    def __init__(self):
        self.L = []

    def __call__(self, s):
        self.L.append('    ' + s)

    def label(self, l):
        self.L.append(l + ':')

    def c(self, s):
        self.L.append('    ; ' + s)

    def raw(self, s):
        self.L.append(s)


class VM:
    def __init__(self, a):
        self.a = a
        self.n = 0
        self.tags = {}

    def issue(self, tag=None):
        self.n += 1
        if tag is not None:
            self.tags[tag] = self.n

    def cnt(self, tag):
        return self.n - self.tags[tag]

    def wait(self, tag):
        self.a('s_waitcnt vmcnt(%d)' % self.cnt(tag))


def vr(b, n=1):
    return 'v%d' % b if n == 1 else 'v[%d:%d]' % (b, b + n - 1)


def sr(b, n=1):
    return 's%d' % b if n == 1 else 's[%d:%d]' % (b, b + n - 1)


P_AX, P_AWQKV, P_AWPHI, P_AWO, P_BX, P_BWQKV, P_BWO, P_OUT, P_DBG, P_WS = 4, 6, 8, 10, 12, 14, 16, 18, 20, 22


def load_kernargs(a):
    a('s_load_dwordx16 s[4:19], s[0:1], 0')
    a('s_load_dwordx4 s[20:23], s[0:1], 64')


def srd(a, d, base, off, size):
    if off == 0:
        a('s_mov_b32 s%d, s%d' % (d, base))
        a('s_mov_b32 s%d, s%d' % (d + 1, base + 1))
    else:
        o = off if isinstance(off, str) else '0x%x' % off
        a('s_add_u32 s%d, s%d, %s' % (d, base, o))
        a('s_addc_u32 s%d, s%d, 0' % (d + 1, base + 1))
    a('s_mov_b32 s%d, 0x%x' % (d + 2, size))
    a('s_mov_b32 s%d, 0x00020000' % (d + 3))


def kdesc(name, vgpr, sgpr=96):
    acc = (vgpr + 3) // 4 * 4
    return '''.amdhsa_kernel %s
  .amdhsa_next_free_vgpr %d
  .amdhsa_next_free_sgpr %d
  .amdhsa_accum_offset %d
  .amdhsa_group_segment_fixed_size 0
  .amdhsa_kernarg_size 80
  .amdhsa_user_sgpr_count 2
  .amdhsa_user_sgpr_kernarg_segment_ptr 1
  .amdhsa_system_sgpr_workgroup_id_x 1
.end_amdhsa_kernel
''' % (name, vgpr, sgpr, acc)


def entry(a, name):
    a.raw('.p2align 8')
    a.raw('.globl %s' % name)
    a.raw('.type %s,@function' % name)
    a.label(name)


def bf16r(a, v, tmp):
    a('v_cvt_pk_bf16_f32 %s, %s, %s' % (vr(tmp), vr(v), vr(v)))
    a('v_lshlrev_b32 %s, 16, %s' % (vr(v), vr(tmp)))


def gen_prep(a):
    entry(a, 'prep_kernel')
    a('s_cmp_ge_u32 s2, 320')
    a('s_cbranch_scc1 prep_end')
    load_kernargs(a)
    a('v_and_b32 v1, 63, v0')
    a('v_lshrrev_b32 v2, 6, v0')
    a('v_and_b32 v3, 7, v1')
    a('v_readfirstlane_b32 s24, v2')
    a('v_bfe_u32 v4, v1, 3, 2')
    a('v_lshrrev_b32 v5, 5, v1')
    a('v_lshl_add_u32 v6, v2, 1, v5')
    a('s_waitcnt lgkmcnt(0)')
    a('s_cmp_ge_u32 s2, 312')
    a('s_cbranch_scc1 prep_zero')
    a('s_cmp_ge_u32 s2, 296')
    a('s_cbranch_scc1 prep_phi')
    a('s_cmp_ge_u32 s2, 224')
    a('s_cbranch_scc1 prep_wo')
    a('s_cmp_ge_u32 s2, 112')
    a('s_cselect_b32 s32, s%d, s%d' % (P_BWQKV, P_AWQKV))
    a('s_cselect_b32 s33, s%d, s%d' % (P_BWQKV + 1, P_AWQKV + 1))
    a('s_cselect_b32 s25, 0x%x, 0x%x' % (WQB, WQA))
    a('s_cselect_b32 s29, 0x%x, 0' % (CSB - CSA))
    a('s_cselect_b32 s26, 112, 0')
    a('s_add_u32 s29, s29, 0x%x' % CSA)
    a('s_mov_b32 s34, %d' % (576 * 3456))
    a('s_mov_b32 s35, 0x00020000')
    srd(a, 36, P_WS, 's25', WQ_SZ)
    srd(a, 52, P_WS, 's29', CS_SZ)
    a('s_sub_u32 s26, s2, s26')
    a('s_mul_i32 s27, s26, 147')
    a('s_lshr_b32 s27, s27, 10')
    a('s_mul_i32 s28, s27, 7')
    a('s_sub_u32 s28, s26, s28')
    for e in range(8):
        a('s_mov_b32 s%d, %d' % (40 + e, e * 3456))
    a('v_lshlrev_b32 v7, 5, v6')
    a('v_lshl_add_u32 v7, v4, 3, v7')
    a('v_mul_u32_u24 v7, 3456, v7')
    a('s_cmp_eq_u32 s28, 6')
    a('s_cselect_b32 s48, 1, 0')
    a('s_mov_b32 s49, 1')
    a('s_cbranch_scc1 prep_a_tail')
    a('s_lshr_b32 s30, s28, 1')
    a('s_mul_i32 s30, s30, 576')
    a('s_and_b32 s31, s28, 1')
    a('s_lshl_b32 s50, s27, 1')
    a('s_add_u32 s31, s31, s50')
    a('s_mul_i32 s31, s31, 18')
    a('s_add_u32 s30, s30, s31')
    a('v_lshl_add_u32 v8, v3, 1, s30')
    a('s_branch prep_a_col')
    a.label('prep_a_tail')
    a('v_lshrrev_b32 v8, 1, v3')
    a('v_mul_u32_u24 v8, 576, v8')
    a('v_and_b32 v9, 1, v3')
    a('v_mul_u32_u24 v9, 18, v9')
    a('s_mul_i32 s30, s27, 36')
    a('s_add_u32 s30, s30, 16')
    a('v_add3_u32 v8, v8, v9, s30')
    a.label('prep_a_col')
    a('v_lshl_add_u32 v7, v8, 1, v7')
    a('v_mul_u32_u24 v9, 7, v6')
    a('v_add_u32 v9, s28, v9')
    a('v_lshlrev_b32 v9, 10, v9')
    a('v_lshl_add_u32 v9, v4, 8, v9')
    a('v_lshl_add_u32 v9, v3, 5, v9')
    a('s_mul_i32 s30, s27, 129024')
    a('v_add_u32 v9, s30, v9')
    a('s_branch prep_common')
    a.label('prep_wo')
    a('s_cmp_ge_u32 s2, 260')
    a('s_cselect_b32 s32, s%d, s%d' % (P_BWO, P_AWO))
    a('s_cselect_b32 s33, s%d, s%d' % (P_BWO + 1, P_AWO + 1))
    a('s_cselect_b32 s25, 0x%x, 0' % (WOB - WOA))
    a('s_cselect_b32 s26, 36, 0')
    a('s_add_u32 s25, s25, 0x%x' % WOA)
    a('s_add_u32 s26, s26, 224')
    a('s_mov_b32 s34, %d' % (576 * 1152))
    a('s_mov_b32 s35, 0x00020000')
    srd(a, 36, P_WS, 's25', WO_SZ)
    srd(a, 52, P_WS, CSA, CS_SZ)
    a('s_sub_u32 s26, s2, s26')
    a('s_mov_b32 s48, 0')
    a('s_mov_b32 s49, 0')
    a('s_cmp_eq_u32 s24, 8')
    a('s_cbranch_scc1 prep_b_tail')
    for e, o in enumerate([0, 1, 2, 3, 8, 9, 10, 11]):
        a('s_mov_b32 s%d, %d' % (40 + e, o * 1152))
    a('v_lshrrev_b32 v7, 1, v4')
    a('v_lshl_add_u32 v7, v6, 1, v7')
    a('v_mul_u32_u24 v7, 18, v7')
    a('v_and_b32 v8, 1, v4')
    a('v_lshl_add_u32 v7, v8, 2, v7')
    a('s_branch prep_b_row')
    a.label('prep_b_tail')
    for e, o in enumerate([0, 1, 18, 19, 36, 37, 54, 55]):
        a('s_mov_b32 s%d, %d' % (40 + e, o * 1152))
    a('v_lshlrev_b32 v7, 4, v5')
    a('v_lshl_add_u32 v7, v4, 2, v7')
    a('v_mul_u32_u24 v7, 18, v7')
    a('v_add_u32 v7, 16, v7')
    a.label('prep_b_row')
    a('v_mul_u32_u24 v7, 1152, v7')
    a('s_lshl_b32 s30, s26, 5')
    a('v_lshl_add_u32 v7, v3, 2, v7')
    a('v_add_u32 v7, s30, v7')
    a('s_mul_i32 s30, s26, 18')
    a('v_add_u32 v9, s30, v6')
    a('v_lshlrev_b32 v9, 10, v9')
    a('v_lshl_add_u32 v9, v4, 8, v9')
    a('v_lshl_add_u32 v9, v3, 5, v9')
    a.label('prep_common')
    for e in range(8):
        a('buffer_load_dword v%d, v7, s[32:35], s%d offen' % (16 + e, 40 + e))
    a('s_mov_b32 s30, 0x05040100')
    a('s_mov_b32 s31, 0x07060302')
    a('v_cmp_gt_u32 s[50:51], 6, v3')
    a('v_cmp_eq_u32 vcc, 6, v3')
    a('v_mov_b32 v10, 0x3f80')
    a('s_nop 1')
    a('v_cndmask_b32 v10, 0, v10, vcc')
    a('s_waitcnt vmcnt(0)')
    a('s_cmp_eq_u32 s48, 0')
    a('s_cbranch_scc1 prep_noovr')
    for e in range(8):
        a('v_cndmask_b32 v%d, v10, v%d, s[50:51]' % (16 + e, 16 + e))
    a.label('prep_noovr')
    for p in range(4):
        a('v_perm_b32 v%d, v%d, v%d, s30' % (24 + p, 17 + 2 * p, 16 + 2 * p))
    for p in range(4):
        a('v_perm_b32 v%d, v%d, v%d, s31' % (28 + p, 17 + 2 * p, 16 + 2 * p))
    a('buffer_store_dwordx4 v[24:27], v9, s[36:39], 0 offen')
    a('buffer_store_dwordx4 v[28:31], v9, s[36:39], 0 offen offset:16')
    a('s_cmp_eq_u32 s49, 0')
    a('s_cbranch_scc1 prep_end')
    a('v_lshlrev_b32 v32, 16, v16')
    a('v_and_b32 v33, 0xffff0000, v16')
    for e in range(1, 8):
        a('v_lshlrev_b32 v34, 16, v%d' % (16 + e))
        a('v_and_b32 v35, 0xffff0000, v%d' % (16 + e))
        a('v_add_f32 v32, v32, v34')
        a('v_add_f32 v33, v33, v35')
    a('v_lshl_add_u32 v34, v6, 2, v4')
    a('v_lshlrev_b32 v34, 6, v34')
    a('v_lshl_add_u32 v34, v3, 3, v34')
    a('ds_write_b64 v34, v[32:33]')
    a('s_waitcnt lgkmcnt(0)')
    a('s_barrier')
    a('s_cmp_lg_u32 s24, 0')
    a('s_cbranch_scc1 prep_end')
    a('v_and_b32 v2, 15, v1')
    a('v_lshrrev_b32 v3, 4, v1')
    a('v_mul_u32_u24 v4, %d, v3' % (18 * 64))
    a('v_lshl_add_u32 v4, v2, 2, v4')
    for i in range(18):
        a('ds_read_b32 v%d, v4 offset:%d' % (16 + i, i * 64))
    a('s_waitcnt lgkmcnt(0)')
    for i in range(1, 18):
        a('v_add_f32 v16, v16, v%d' % (16 + i))
    a('v_lshlrev_b32 v5, 2, v1')
    a('ds_write_b32 v5, v16 offset:8192')
    a('v_lshlrev_b32 v6, 2, v2')
    a('s_waitcnt lgkmcnt(0)')
    for i in range(4):
        a('ds_read_b32 v%d, v6 offset:%d' % (20 + i, 8192 + i * 64))
    a('s_waitcnt lgkmcnt(0)')
    a('v_add_f32 v20, v20, v21')
    a('v_add_f32 v22, v22, v23')
    a('v_add_f32 v20, v20, v22')
    a('s_mul_i32 s30, s27, 448')
    a('s_lshl_b32 s31, s28, 6')
    a('s_add_u32 s30, s30, s31')
    a('s_mov_b64 exec, 0xffff')
    a('buffer_store_dword v20, v6, s[52:55], s30 offen')
    a('s_branch prep_end')
    a.label('prep_phi')
    srd(a, 32, P_AWPHI, 0, 32 * 324 * 2)
    srd(a, 36, P_WS, TPHI, TPHI_SZ)
    a('s_sub_u32 s27, s2, 296')
    a('v_and_b32 v2, 3, v1')
    a('v_bfe_u32 v3, v1, 2, 1')
    a('v_bfe_u32 v4, v1, 3, 1')
    a('v_lshrrev_b32 v5, 4, v1')
    a('v_lshlrev_b32 v6, 15, v3')
    a('v_lshl_or_b32 v6, v6, 16, v6')
    a('v_cmp_eq_u32 s[50:51], 0, v4')
    a('s_mov_b32 s26, s24')
    a.label('prep_phi_loop')
    a('s_cmp_ge_u32 s26, 15')
    a('s_cbranch_scc1 prep_end')
    a('s_mul_i32 s28, s26, 13')
    a('s_lshr_b32 s28, s28, 6')
    a('s_mul_i32 s29, s28, 5')
    a('s_sub_u32 s29, s26, s29')
    a('s_lshl_b32 s29, s29, 2')
    a('v_add_u32 v7, s29, v2')
    a('v_lshlrev_b32 v8, 2, v5')
    a('s_cmp_eq_u32 s28, 0')
    a('s_cbranch_scc1 prep_phi_d0')
    a('v_mov_b32 v8, 16')
    a.label('prep_phi_d0')
    a('s_lshl_b32 s30, s27, 1')
    a('v_add_u32 v9, s30, v4')
    a('v_mul_u32_u24 v9, 324, v9')
    a('v_mul_u32_u24 v8, 18, v8')
    a('v_add3_u32 v9, v9, v8, v7')
    a('v_lshlrev_b32 v9, 1, v9')
    a('v_mov_b32 v10, 0x7fff0000')
    a('v_cmp_gt_u32 vcc, 18, v7')
    a('s_nop 1')
    a('v_cndmask_b32 v9, v10, v9, vcc')
    a('s_cmp_eq_u32 s28, 0')
    a('s_cbranch_scc1 prep_phi_ld')
    a('s_sub_u32 s30, s28, 1')
    a('v_cmp_eq_u32 vcc, s30, v5')
    a('s_nop 1')
    a('v_cndmask_b32 v9, v10, v9, vcc')
    a.label('prep_phi_ld')
    for i in range(4):
        a('buffer_load_ushort v%d, v9, s[32:35], 0 offen offset:%d' % (16 + i, i * 36))
    a('s_waitcnt vmcnt(0)')
    a('v_lshl_or_b32 v16, v17, 16, v16')
    a('v_lshl_or_b32 v18, v19, 16, v18')
    a('v_xor_b32 v16, v16, v6')
    a('v_xor_b32 v18, v18, v6')
    a('v_cndmask_b32 v20, 0, v16, s[50:51]')
    a('s_cmp_eq_u32 s28, 0')
    a('s_cbranch_scc0 prep_phi_tb')
    a('v_cndmask_b32 v21, 0, v18, s[50:51]')
    a('v_cndmask_b32 v22, v16, 0, s[50:51]')
    a('v_cndmask_b32 v23, v18, 0, s[50:51]')
    a('s_branch prep_phi_st')
    a.label('prep_phi_tb')
    a('v_cndmask_b32 v21, v16, 0, s[50:51]')
    a('v_mov_b32 v22, 0')
    a('v_mov_b32 v23, 0')
    a.label('prep_phi_st')
    a('s_mul_i32 s30, s27, 15')
    a('s_add_u32 s30, s30, s26')
    a('s_lshl_b32 s30, s30, 10')
    a('v_lshlrev_b32 v11, 4, v1')
    a('buffer_store_dwordx4 v[20:23], v11, s[36:39], s30 offen')
    a('s_add_u32 s26, s26, 9')
    a('s_nop 1')
    a('s_branch prep_phi_loop')
    a.label('prep_zero')
    srd(a, 36, P_WS, KV1, 0x40000)
    a('s_sub_u32 s27, s2, 312')
    a('s_mul_i32 s27, s27, %d' % (4 * 9216))
    a('v_lshlrev_b32 v2, 4, v0')
    a('v_add_u32 v2, s27, v2')
    for i in range(4):
        a('v_mov_b32 v%d, 0' % (4 + i))
    for k in range(4):
        a('s_mov_b32 s28, %d' % (k * 9216))
        a('buffer_store_dwordx4 v[4:7], v2, s[36:39], s28 offen')
    a.label('prep_end')
    a('s_endpgm')
    return [('prep_kernel', 40, 64)]


XF0 = 64
ACC0 = 136
WB0 = 200
LDS_T = 127 * 1024
LDS_PK = 32 * 1024
PK_STRIDE = 224


def XF(a_, t):
    return XF0 + (a_ * 9 + t) * 4


def ACC(a_, u):
    return ACC0 + (a_ * 8 + u) * 4


def softmax18(a, D, sLOG2E, tmp):
    m, s = tmp, tmp + 1
    a('v_max3_f32 %s, %s, %s, %s' % (vr(m), vr(D), vr(D + 1), vr(D + 2)))
    for i in range(3, 17, 2):
        a('v_max3_f32 %s, %s, %s, %s' % (vr(m), vr(m), vr(D + i), vr(D + i + 1)))
    a('v_max_f32 %s, %s, %s' % (vr(m), vr(m), vr(D + 17)))
    a('v_mul_f32 %s, %s, %s' % (vr(m), sLOG2E, vr(m)))
    for i in range(18):
        a('v_fma_f32 %s, %s, %s, -%s' % (vr(D + i), vr(D + i), sLOG2E, vr(m)))
    for i in range(18):
        a('v_exp_f32 %s, %s' % (vr(D + i), vr(D + i)))
    a('v_add_f32 %s, %s, %s' % (vr(s), vr(D), vr(D + 1)))
    a('v_add_f32 %s, %s, %s' % (vr(m), vr(D + 2), vr(D + 3)))
    for i in range(4, 18, 2):
        a('v_add_f32 %s, %s, %s' % (vr(s), vr(s), vr(D + i)))
        a('v_add_f32 %s, %s, %s' % (vr(m), vr(m), vr(D + i + 1)))
    a('v_add_f32 %s, %s, %s' % (vr(s), vr(s), vr(m)))
    a('v_rcp_f32 %s, %s' % (vr(s), vr(s)))
    a('s_nop 0')
    for i in range(18):
        a('v_mul_f32 %s, %s, %s' % (vr(D + i), vr(s), vr(D + i)))
    for i in range(9):
        a('v_cvt_pk_bf16_f32 %s, %s, %s' % (vr(D + i), vr(D + 2 * i), vr(D + 2 * i + 1)))


def gen_qkv(a, kind, insts):
    body = 'qkv%s_body' % kind
    end = 'qkv%s_end' % kind
    SX, SW, SC, ST, SO, SK = 32, 36, 40, 44, 48, 52
    for (nm, xsrc, kvoff) in insts:
        entry(a, nm)
        a('s_cmp_ge_u32 s2, 256')
        a('s_cbranch_scc1 %s' % end)
        load_kernargs(a)
        a('s_waitcnt lgkmcnt(0)')
        if xsrc[0] == 'in':
            srd(a, SX, xsrc[1], 0, X_SZ)
        else:
            srd(a, SX, P_WS, xsrc[1], X_SZ)
        if kind == 'A':
            srd(a, SK, P_WS, kvoff, KV_SZ)
        a('s_branch %s' % body)
    a.label(body)
    vm = VM(a)
    srd(a, SW, P_WS, WQA if kind == 'A' else WQB, WQ_SZ)
    srd(a, SC, P_WS, CSA if kind == 'A' else CSB, CS_SZ)
    if kind == 'A':
        srd(a, ST, P_WS, TPHI, TPHI_SZ)
        srd(a, SO, P_WS, PHIQ, PHIQ_SZ)
    else:
        srd(a, SO, P_WS, REC, REC_SZ)
    a('s_and_b32 s24, s2, 3')
    a('s_lshl_b32 s24, s24, 2')
    a('s_bfe_u32 s25, s2, 0x20003')
    a('s_add_u32 s24, s24, s25')
    a('s_bfe_u32 s25, s2, 0x10002')
    a('s_lshl_b32 s25, s25, 3')
    a('s_lshr_b32 s26, s2, 5')
    a('s_add_u32 s25, s25, s26')
    a('v_lshrrev_b32 v2, 6, v0')
    a('v_and_b32 v1, 63, v0')
    a('v_readfirstlane_b32 s26, v2')
    a('v_and_b32 v3, 15, v1')
    a('v_lshrrev_b32 v4, 4, v1')
    a('v_lshlrev_b32 v5, 4, v1')
    a('s_and_b32 s27, s26, 3')
    a('s_lshr_b32 s28, s26, 2')
    a('s_lshl_b32 s29, s24, 7')
    a('s_lshl_b32 s30, s27, 5')
    a('s_add_u32 s29, s29, s30')
    a('s_lshl_b32 s30, s28, 4')
    a('s_add_u32 s29, s29, s30')
    a('v_add_u32 v6, s29, v3')
    a('v_xor_b32 v7, 16, v6')
    a('v_mul_u32_u24 v8, 1152, v6')
    a('v_mul_u32_u24 v9, 1152, v7')
    a('v_lshl_add_u32 v8, v4, 4, v8')
    a('v_lshl_add_u32 v9, v4, 4, v9')
    a('s_mul_i32 s30, s28, 576')
    a('s_mul_i32 s31, s28, 63')
    a('s_add_u32 s31, s31, s27')
    a('s_lshl_b32 s31, s31, 10')
    a('s_mov_b32 m0, s31')
    a('s_mul_i32 s56, s25, 129024')
    a('s_add_u32 s31, s31, s56')
    need = [(7 * t + 6) // 4 for t in range(9)]
    ii = 0
    for t in range(9):
        a('buffer_load_dwordx4 %s, v8, s[%d:%d], s30 offen offset:%d' % (vr(XF(0, t), 4), SX, SX + 3, t * 64))
        vm.issue()
        a('buffer_load_dwordx4 %s, v9, s[%d:%d], s30 offen offset:%d' % (vr(XF(1, t), 4), SX, SX + 3, t * 64))
        vm.issue()
        while ii <= need[t]:
            a('buffer_load_dwordx4 v5, s[%d:%d], s31 offen lds' % (SW, SW + 3))
            vm.issue()
            ii += 1
            if ii < 16:
                a('s_add_u32 m0, m0, 4096')
                a('s_add_u32 s31, s31, 4096')
        vm.tags[('step', t)] = vm.n
    if kind == 'A':
        a('s_lshl_b32 s31, s26, 11')
        a('s_add_u32 m0, s31, %d' % LDS_T)
        a('s_mul_i32 s56, s25, 15360')
        a('s_add_u32 s31, s31, s56')
        a('buffer_load_dwordx4 v5, s[%d:%d], s31 offen lds' % (ST, ST + 3))
        vm.issue()
        a('buffer_load_dwordx4 v5, s[%d:%d], s31 offen offset:1024 lds' % (ST, ST + 3))
        vm.issue('tphi')
    a('s_mul_i32 s56, s28, %d' % (63 * 1024))
    a('v_add_u32 v10, s56, v5')
    a('v_and_b32 v11, 3, v3')
    a('v_cmp_eq_u32 s[58:59], 1, v11')
    a('v_cmp_eq_u32 s[60:61], 2, v11')
    a('v_cmp_eq_u32 s[62:63], 3, v11')
    a('v_lshrrev_b32 v11, 2, v3')
    a('v_lshl_add_u32 v11, v11, 4, v3')
    a('v_lshlrev_b32 v11, 2, v11')
    a('v_lshlrev_b32 v12, 2, v3')
    a('v_add_u32 v12, 192, v12')
    a('v_lshlrev_b32 v13, 4, v4')
    a('s_mul_i32 s57, s25, 448')
    for t in range(9):
        vm.wait(('step', t))
        a('s_barrier')
        for u in range(7):
            a('ds_read_b128 %s, v10 offset:%d' % (vr(WB0 + 4 * u, 4), (t * 7 + u) * 1024))
        order = [1, 0] if t == 8 else [0, 1]
        first = True
        for a_ in order:
            c = '0' if t == 0 else vr(ACC(a_, 7), 4)
            a('v_mfma_f32_16x16x32_bf16 %s, %s, %s, %s' % (vr(ACC(a_, 7), 4), vr(XF(a_, t), 4), vr(XF(a_, t), 4), c))
        if t < 8:
            for u in range(7):
                a('s_waitcnt lgkmcnt(%d)' % (6 - u))
                for a_ in order:
                    c = '0' if t == 0 else vr(ACC(a_, u), 4)
                    a('v_mfma_f32_16x16x32_bf16 %s, %s, %s, %s' % (vr(ACC(a_, u), 4), vr(WB0 + 4 * u, 4), vr(XF(a_, t), 4), c))
        else:
            for a_ in order:
                for u in range(7):
                    if a_ == order[0]:
                        a('s_waitcnt lgkmcnt(%d)' % (6 - u))
                    a('v_mfma_f32_16x16x32_bf16 %s, %s, %s, %s' % (vr(ACC(a_, u), 4), vr(WB0 + 4 * u, 4), vr(XF(a_, t), 4), vr(ACC(a_, u), 4)))
        if t == 7:
            for u in range(7):
                a('buffer_load_dwordx4 %s, v13, s[%d:%d], s57 offen offset:%d' % (vr(XF0 + 4 * u, 4), SC, SC + 3, u * 64))
                vm.issue()
            vm.tags['cs'] = vm.n
    a('s_lshl_b32 s56, s27, 13')
    a('v_add_u32 v14, s56, v10')
    a('s_xor_b32 s57, s28, 1')
    a('s_mul_i32 s57, s57, %d' % (63 * 1024))
    a('s_add_u32 s57, s57, s56')
    a('v_add_u32 v15, s57, v5')
    a('s_nop 1')
    for u in range(8):
        a('ds_write_b128 v14, %s offset:%d' % (vr(ACC(1, u), 4), u * 1024))
    if kind == 'A':
        a('s_waitcnt vmcnt(%d) lgkmcnt(0)' % vm.cnt('tphi'))
    else:
        a('s_waitcnt lgkmcnt(0)')
    a('s_barrier')
    for u in range(8):
        a('ds_read_b128 %s, v15 offset:%d' % (vr(ACC(1, u), 4), u * 1024))
    R = lambda u, r: ACC(0, u) + r
    a('s_waitcnt lgkmcnt(0)')
    for u in [7, 6]:
        for r in range(4):
            a('v_add_f32 %s, %s, %s' % (vr(R(u, r)), vr(R(u, r)), vr(ACC(1, u) + r)))
    a('v_cndmask_b32 v16, %s, %s, s[58:59]' % (vr(R(7, 0)), vr(R(7, 1))))
    a('v_cndmask_b32 v16, v16, %s, s[60:61]' % vr(R(7, 2)))
    a('v_cndmask_b32 v16, v16, %s, s[62:63]' % vr(R(7, 3)))
    a('ds_bpermute_b32 v17, v11, v16')
    a('ds_bpermute_b32 v18, v12, %s' % vr(R(6, 0)))
    for u in range(6):
        for r in range(4):
            a('v_add_f32 %s, %s, %s' % (vr(R(u, r)), vr(R(u, r)), vr(ACC(1, u) + r)))
    a('s_mov_b32 s56, 0x%x' % f32bits(1.0 / 576))
    a('s_waitcnt lgkmcnt(0)')
    a('v_mul_f32 v18, s56, v18')
    a('v_mul_f32 v17, s56, v17')
    a('v_fma_f32 v17, -v18, v18, v17')
    a('v_max_f32 v17, 0, v17')
    bf16r(a, 18, 19)
    bf16r(a, 17, 19)
    a('v_add_f32 v17, 0x%x, v17' % f32bits(1e-5))
    bf16r(a, 17, 19)
    a('v_sqrt_f32 v17, v17')
    a('s_nop 0')
    bf16r(a, 17, 19)
    a('v_rcp_f32 v17, v17')
    vm.wait('cs')
    P0 = 100
    for u in range(7):
        for r in range(4):
            a('v_fma_f32 %s, -v18, %s, %s' % (vr(R(u, r)), vr(XF0 + 4 * u + r), vr(R(u, r))))
        for r in range(4):
            a('v_mul_f32 %s, v17, %s' % (vr(R(u, r)), vr(R(u, r))))
        a('v_cvt_pk_bf16_f32 %s, %s, %s' % (vr(P0 + 2 * u), vr(R(u, 0)), vr(R(u, 1))))
        a('v_cvt_pk_bf16_f32 %s, %s, %s' % (vr(P0 + 2 * u + 1), vr(R(u, 2)), vr(R(u, 3))))
    if kind == 'B':
        a('v_mul_u32_u24 v20, 48, v6')
        a('v_lshl_add_u32 v21, v4, 3, v20')
        a('s_mul_i32 s56, s25, %d' % (2 * REC_HEAD))
        for u in range(6):
            a('s_add_u32 s57, s56, %d' % ((u >> 1) * 32 * REC_HEAD + (u & 1) * REC_HEAD))
            a('buffer_store_dwordx2 %s, v21, s[%d:%d], s57 offen' % (vr(P0 + 2 * u, 2), SO, SO + 3))
        a('s_mov_b32 s57, %d' % (32 * REC_HEAD))
        a('v_mul_lo_u32 v22, v4, s57')
        a('v_add3_u32 v22, v22, v20, 32')
        a('v_cmp_eq_u32 vcc, 2, v4')
        a('v_mov_b32 v23, 0x3f80')
        a('v_mov_b32 v24, %s' % vr(P0 + 12))
        a('v_cndmask_b32 v25, 0, v23, vcc')
        a('v_mov_b32 v26, 0')
        a('v_mov_b32 v27, v25')
        a('v_mov_b32 v28, %s' % vr(P0 + 13))
        a('v_mov_b32 v29, v25')
        a('v_mov_b32 v30, 0')
        a('v_mov_b32 v31, v25')
        a('s_add_u32 s57, s56, %d' % REC_HEAD)
        a('s_mov_b32 exec_hi, 0xffff')
        a('buffer_store_dwordx4 v[24:27], v22, s[%d:%d], s56 offen' % (SO, SO + 3))
        a('buffer_store_dwordx4 v[28:31], v22, s[%d:%d], s57 offen' % (SO, SO + 3))
        a.label(end)
        a('s_endpgm')
        return [(nm, 228, 72) for (nm, _, _) in insts]
    TA, TBQ, TBK = 200, 220, 168
    DQ, DK = 64, 116
    a('v_add_u32 v19, %d, v5' % LDS_T)
    for m in range(5):
        a('ds_read_b128 %s, v19 offset:%d' % (vr(TA + 4 * m, 4), m * 1024))
    for m in range(5):
        a('ds_read_b128 %s, v19 offset:%d' % (vr(TBQ + 4 * m, 4), (5 + m) * 1024))
    for m in range(5):
        a('ds_read_b128 %s, v19 offset:%d' % (vr(TBK + 4 * m, 4), (10 + m) * 1024))
    a('v_mov_b32 %s, 0' % vr(P0 + 14))
    a('v_mov_b32 %s, 0' % vr(P0 + 15))
    a('v_and_b32 v20, 127, v6')
    a('v_mul_u32_u24 v20, %d, v20' % PK_STRIDE)
    a('v_add_u32 v20, %d, v20' % LDS_PK)
    a('v_lshl_add_u32 v21, v4, 3, v20')
    a('ds_write_b64 v21, %s offset:128' % vr(P0 + 8, 2))
    a('ds_write_b64 v21, %s offset:160' % vr(P0 + 10, 2))
    a('v_mov_b32 v24, %s' % vr(P0 + 12))
    a('v_mov_b32 v25, 0x3f80')
    a('v_mov_b32 v26, %s' % vr(P0 + 13))
    a('v_mov_b32 v27, 0x3f80')
    a('s_mov_b32 exec_lo, 0')
    a('s_mov_b32 exec_hi, 0xffff')
    a('ds_write_b128 v20, v[24:27] offset:208')
    a('s_mov_b64 exec, -1')
    a('s_mov_b32 s56, 0x%x' % f32bits(LOG2E))
    a('s_waitcnt lgkmcnt(3)')
    for m in range(5):
        a('v_mfma_f32_16x16x32_bf16 %s, %s, %s, 0' % (vr(DK + 4 * m, 4), vr(TA + 4 * m, 4), vr(P0 + 4, 4)))
    for m in range(5):
        a('v_mfma_f32_16x16x32_bf16 %s, %s, %s, %s' % (vr(DK + 4 * m, 4), vr(TBK + 4 * m, 4), vr(P0 + 12, 4), vr(DK + 4 * m, 4)))
    for m in range(5):
        a('v_mfma_f32_16x16x32_bf16 %s, %s, %s, 0' % (vr(DQ + 4 * m, 4), vr(TA + 4 * m, 4), vr(P0 + 0, 4)))
    for m in range(5):
        a('v_mfma_f32_16x16x32_bf16 %s, %s, %s, %s' % (vr(DQ + 4 * m, 4), vr(TBQ + 4 * m, 4), vr(P0 + 12, 4), vr(DQ + 4 * m, 4)))
    softmax18(a, DK, 's56', 22)
    a('v_lshl_add_u32 v21, v4, 5, v20')
    a('v_lshl_add_u32 v24, v4, 2, v20')
    a('ds_write_b128 v21, %s' % vr(DK, 4))
    a('ds_write_b128 v21, %s offset:16' % vr(DK + 4, 4))
    a('ds_write_b32 v24, %s offset:192' % vr(DK + 8))
    a('s_waitcnt lgkmcnt(0)')
    a('s_barrier')
    a('s_cmp_ge_u32 s26, 6')
    a('s_cbranch_scc1 qkvA_q')
    a('s_cmp_ge_u32 s26, 3')
    a('s_cselect_b32 s57, 1, 0')
    a('s_mul_i32 s58, s57, 3')
    a('s_sub_u32 s58, s26, s58')
    a('s_lshl_b32 s59, s57, 6')
    a('s_lshl_b32 s60, s58, 5')
    a('s_add_u32 s59, s59, s60')
    a('s_lshl_b32 s60, s57, 3')
    a('s_add_u32 s61, s60, 192')
    a('s_cmp_eq_u32 s58, 2')
    a('s_cselect_b32 s59, s61, s59')
    a('s_add_u32 s60, s60, 208')
    a('s_lshl_b32 s61, s57, 5')
    a('s_add_u32 s61, s61, 128')
    a('v_lshrrev_b32 v24, 2, v3')
    a('v_lshl_add_u32 v24, v4, 2, v24')
    a('v_mul_u32_u24 v24, %d, v24' % PK_STRIDE)
    a('v_and_b32 v25, 3, v3')
    a('v_lshl_add_u32 v24, v25, 3, v24')
    a('v_add_u32 v24, %d, v24' % LDS_PK)
    a('v_add_u32 v25, s59, v24')
    a('v_add_u32 v26, s61, v24')
    a('v_add_u32 v27, s60, v24')
    FB, FA, FT = 136, 152, 168
    for ks in range(4):
        for hf in range(2):
            off = (32 * ks + 16 * hf) * PK_STRIDE
            a('ds_read_b64_tr_b16 %s, v25 offset:%d' % (vr(FB + 4 * ks + 2 * hf, 2), off))
            a('ds_read_b64_tr_b16 %s, v26 offset:%d' % (vr(FA + 4 * ks + 2 * hf, 2), off))
            a('ds_read_b64_tr_b16 %s, v27 offset:%d' % (vr(FT + 4 * ks + 2 * hf, 2), off))
        if ks == 1:
            pass
    a('s_lshl_b32 s59, s25, 1')
    a('s_add_u32 s59, s59, s57')
    a('s_mul_i32 s59, s59, %d' % (19 * 144))
    a('s_lshl_b32 s60, s58, 6')
    a('s_add_u32 s59, s59, s60')
    a('v_mul_u32_u24 v28, 576, v4')
    a('v_lshl_add_u32 v28, v3, 2, v28')
    DM, DT = 184, 188
    for ks in range(4):
        a('s_waitcnt lgkmcnt(%d)' % min(15, 6 * (3 - ks)))
        c = '0' if ks == 0 else vr(DM, 4)
        a('v_mfma_f32_16x16x32_bf16 %s, %s, %s, %s' % (vr(DM, 4), vr(FA + 4 * ks, 4), vr(FB + 4 * ks, 4), c))
        c = '0' if ks == 0 else vr(DT, 4)
        a('v_mfma_f32_16x16x32_bf16 %s, %s, %s, %s' % (vr(DT, 4), vr(FT + 4 * ks, 4), vr(FB + 4 * ks, 4), c))
    a('s_mov_b32 s60, -1')
    a('s_mov_b32 s61, 0x000f000f')
    a('s_cmp_eq_u32 s58, 2')
    a('s_cselect_b32 s60, s61, s60')
    a('s_mov_b32 exec_lo, s60')
    a('s_mov_b32 exec_hi, s60')
    a('s_nop 4')
    for r in range(4):
        a('buffer_atomic_add_f32 %s, v28, s[%d:%d], s59 offen offset:%d' % (vr(DM + r), SK, SK + 3, r * 144))
    a('s_and_b32 exec_lo, s60, 0xffff')
    a('s_mov_b32 exec_hi, 0')
    for r in range(3):
        a('buffer_atomic_add_f32 %s, v28, s[%d:%d], s59 offen offset:%d' % (vr(DT + r), SK, SK + 3, (16 + r) * 144))
    a('s_mov_b64 exec, -1')
    a.label('qkvA_q')
    softmax18(a, DQ, 's56', 22)
    a('s_lshl_b32 s57, s24, 2')
    a('s_add_u32 s57, s57, s27')
    a('s_lshl_b32 s57, s57, 5')
    a('s_lshl_b32 s58, s25, 1')
    a('s_add_u32 s57, s57, s58')
    a('s_mul_i32 s57, s57, 2304')
    a('v_lshrrev_b32 v24, 1, v4')
    a('v_mul_u32_u24 v24, 2304, v24')
    a('v_and_b32 v25, 1, v4')
    a('v_and_b32 v26, 31, v6')
    a('v_lshl_add_u32 v27, v25, 10, v24')
    a('v_lshl_add_u32 v27, v26, 4, v27')
    a('v_lshl_add_u32 v28, v26, 3, v24')
    a('v_lshl_add_u32 v28, v25, 2, v28')
    a('buffer_store_dwordx4 %s, v27, s[%d:%d], s57 offen' % (vr(DQ, 4), SO, SO + 3))
    a('buffer_store_dwordx4 %s, v27, s[%d:%d], s57 offen offset:512' % (vr(DQ + 4, 4), SO, SO + 3))
    a('buffer_store_dword %s, v28, s[%d:%d], s57 offen offset:2048' % (vr(DQ + 8), SO, SO + 3))
    a.label(end)
    a('s_endpgm')
    return [(nm, 240, 72) for (nm, _, _) in insts]


def gen_attn(a):
    entry(a, 'attn_kernel')
    SQ, SKK, SV, SO = 32, 36, 40, 44
    a('s_cmp_ge_u32 s2, 256')
    a('s_cbranch_scc1 attn_end')
    load_kernargs(a)
    a('s_and_b32 s24, s2, 7')
    a('s_lshl_b32 s24, s24, 2')
    a('s_bfe_u32 s25, s2, 0x20003')
    a('s_add_u32 s24, s24, s25')
    a('s_lshr_b32 s25, s2, 5')
    a('v_lshrrev_b32 v2, 6, v0')
    a('v_and_b32 v1, 63, v0')
    a('v_readfirstlane_b32 s26, v2')
    a('v_and_b32 v3, 31, v1')
    a('v_lshrrev_b32 v4, 5, v1')
    a('v_lshlrev_b32 v5, 4, v1')
    a('s_mul_i32 s27, s24, %d' % REC_HEAD)
    a('s_waitcnt lgkmcnt(0)')
    a('s_add_u32 s27, s27, 0x%x' % REC)
    srd(a, SQ, P_WS, 's27', REC_HEAD)
    a('s_add_u32 s27, s27, %d' % (32 * REC_HEAD))
    srd(a, SKK, P_WS, 's27', REC_HEAD)
    a('s_add_u32 s27, s27, %d' % (32 * REC_HEAD))
    srd(a, SV, P_WS, 's27', REC_HEAD)
    srd(a, SO, P_WS, OIMG, OIMG_SZ)
    vm = VM(a)
    a('s_mul_i32 s28, s25, 12288')
    a('s_sub_u32 s28, s28, 12288')
    a('s_mul_i32 s29, s26, 3072')
    a('s_add_u32 s28, s28, s29')
    a('s_cmp_lt_i32 s28, 0')
    a('s_cselect_b32 s28, 0x40000000, s28')
    a('v_add_u32 v6, s28, v5')
    a('s_mov_b32 m0, s29')
    a('v_add_u32 v7, 1024, v6')
    a('v_add_u32 v8, 2048, v6')
    a('buffer_load_dwordx4 v6, s[%d:%d], 0 offen lds' % (SKK, SKK + 3))
    a('s_add_u32 m0, m0, 1024')
    a('s_nop 0')
    a('buffer_load_dwordx4 v7, s[%d:%d], 0 offen lds' % (SKK, SKK + 3))
    a('s_add_u32 m0, m0, 1024')
    a('s_nop 0')
    a('buffer_load_dwordx4 v8, s[%d:%d], 0 offen lds' % (SKK, SKK + 3))
    a('s_lshl_b32 s30, s25, 8')
    a('s_lshl_b32 s31, s26, 5')
    a('s_add_u32 s30, s30, s31')
    a('v_add_u32 v9, s30, v3')
    a('v_mul_u32_u24 v9, 48, v9')
    a('v_lshl_add_u32 v10, v4, 4, v9')
    Q1, Q2 = 12, 16
    for r in range(4):
        a('v_mov_b32 v%d, 0' % (Q2 + r))
    a('buffer_load_dwordx4 %s, v10, s[%d:%d], 0 offen' % (vr(Q1, 4), SQ, SQ + 3))
    a('s_mov_b32 exec_hi, 0')
    a('buffer_load_dword %s, v9, s[%d:%d], 0 offen offset:32' % (vr(Q2), SQ, SQ + 3))
    a('s_mov_b32 exec_hi, -1')
    a('s_add_u32 m0, s29, 24576')
    a('s_nop 0')
    a('buffer_load_dwordx4 v6, s[%d:%d], 0 offen lds' % (SV, SV + 3))
    a('s_add_u32 m0, m0, 1024')
    a('s_nop 0')
    a('buffer_load_dwordx4 v7, s[%d:%d], 0 offen lds' % (SV, SV + 3))
    a('s_add_u32 m0, m0, 1024')
    a('s_nop 0')
    a('buffer_load_dwordx4 v8, s[%d:%d], 0 offen lds' % (SV, SV + 3))
    S = lambda t: 64 + 16 * t
    OA = 208
    KB = [224, 232, 240]
    for b in KB:
        for r in range(5, 8):
            a('v_mov_b32 v%d, 0' % (b + r))
    a('v_lshlrev_b32 v11, 2, v4')
    a('v_sub_u32 v11, v3, v11')
    MK = 56
    for i in range(4):
        for r in range(4):
            n = 4 * i + r
            a('v_cmp_gt_i32 s[%d:%d], %d, v11' % (MK + 2 * n, MK + 2 * n + 1, 8 * i + r))
    a('v_add_u32 v20, s31, v3')
    a('v_mul_u32_u24 v20, 48, v20')
    a('v_lshl_add_u32 v21, v4, 4, v20')
    a('v_bfe_u32 v22, v1, 2, 2')
    a('v_lshl_add_u32 v22, v4, 2, v22')
    a('v_add_u32 v22, s31, v22')
    a('v_mul_u32_u24 v22, 48, v22')
    a('v_bfe_u32 v23, v1, 4, 1')
    a('v_lshl_add_u32 v22, v23, 5, v22')
    a('v_and_b32 v23, 3, v1')
    a('v_lshl_add_u32 v22, v23, 3, v22')
    a('v_add_u32 v22, 24576, v22')
    a('v_mov_b32 v24, 0xf149f2ca')
    a('s_waitcnt vmcnt(3)')
    a('s_barrier')

    def kread(t):
        b = KB[t % 3]
        a('ds_read_b128 %s, v21 offset:%d' % (vr(b, 4), t * 1536))
        a('ds_read_b32 %s, v20 offset:%d' % (vr(b + 4), t * 1536 + 32))
    kread(0)
    kread(1)
    for t in range(9):
        if t + 2 < 9:
            kread(t + 2)
            a('s_waitcnt lgkmcnt(4)')
        elif t + 1 < 9:
            a('s_waitcnt lgkmcnt(2)')
        else:
            a('s_waitcnt lgkmcnt(0)')
        b = KB[t % 3]
        a('v_mfma_f32_32x32x16_bf16 %s, %s, %s, 0' % (vr(S(t), 16), vr(b, 4), vr(Q1, 4)))
        a('v_mfma_f32_32x32x16_bf16 %s, %s, %s, %s' % (vr(S(t), 16), vr(b + 4, 4), vr(Q2, 4), vr(S(t), 16)))
    a('s_waitcnt vmcnt(0)')
    a('s_barrier')
    for n in range(16):
        a('v_cndmask_b32 %s, v24, %s, s[%d:%d]' % (vr(S(0) + n), vr(S(0) + n), MK + 2 * n, MK + 2 * n + 1))
    a('s_cmp_lg_u32 s25, 0')
    a('s_cbranch_scc1 attn_nofix')
    for t in range(8):
        a('s_cmp_ge_u32 s26, %d' % (8 - t))
        a('s_cbranch_scc1 attn_nofix')
        for n in range(16):
            a('v_mov_b32 %s, v24' % vr(S(t) + n))
    a.label('attn_nofix')
    a('v_max3_f32 v25, %s, %s, %s' % (vr(S(0)), vr(S(0) + 1), vr(S(0) + 2)))
    a('v_max_f32 v26, %s, %s' % (vr(S(0) + 3), vr(S(0) + 4)))
    k = 5
    tog = 0
    while k + 1 < 128:
        m = 25 + tog
        a('v_max3_f32 v%d, v%d, %s, %s' % (m, m, vr(64 + k), vr(64 + k + 1)))
        k += 2
        tog ^= 1
    a('v_max_f32 v25, v25, %s' % vr(64 + 127))
    for n in range(16):
        a('v_cndmask_b32 %s, %s, v24, s[%d:%d]' % (vr(S(8) + n), vr(S(8) + n), MK + 2 * n, MK + 2 * n + 1))
    for n in range(0, 16, 2):
        m = 25 + ((n >> 1) & 1)
        a('v_max3_f32 v%d, v%d, %s, %s' % (m, m, vr(S(8) + n), vr(S(8) + n + 1)))
    a('v_max_f32 v25, v25, v26')
    a('v_mov_b32 v26, v25')
    a('s_mov_b32 s28, 0x%x' % f32bits(LOG2E * 18 ** -0.5))
    a('s_nop 0')
    a('v_permlane32_swap_b32 v25, v26')
    VB = [224, 232, 240, 248]

    def vread(t):
        b = VB[t % 4]
        for ks in range(2):
            for hf in range(2):
                a('ds_read_b64_tr_b16 %s, v22 offset:%d' % (vr(b + 4 * ks + 2 * hf, 2), (32 * t + 16 * ks + 8 * hf) * 48))
    vread(0)
    vread(1)
    vread(2)
    a('v_max_f32 v25, v25, v26')
    a('v_mul_f32 v25, s28, v25')
    for t in range(9):
        for n in range(16):
            a('v_fma_f32 %s, %s, s28, -v25' % (vr(S(t) + n), vr(S(t) + n)))
        for n in range(16):
            a('v_exp_f32 %s, %s' % (vr(S(t) + n), vr(S(t) + n)))
        for n in range(8):
            a('v_cvt_pk_bf16_f32 %s, %s, %s' % (vr(S(t) + n), vr(S(t) + 2 * n), vr(S(t) + 2 * n + 1)))
        rem = min(8 - t, 2)
        a('s_waitcnt lgkmcnt(%d)' % (4 * rem))
        b = VB[t % 4]
        c = '0' if t == 0 else vr(OA, 16)
        a('v_mfma_f32_32x32x16_bf16 %s, %s, %s, %s' % (vr(OA, 16), vr(b, 4), vr(S(t), 4), c))
        a('v_mfma_f32_32x32x16_bf16 %s, %s, %s, %s' % (vr(OA, 16), vr(b + 4, 4), vr(S(t) + 4, 4), vr(OA, 16)))
        if t + 3 < 9:
            vread(t + 3)
    a('s_lshr_b32 s30, s30, 5')
    a('s_mul_i32 s30, s30, 36864')
    a('s_lshr_b32 s31, s24, 1')
    a('s_lshl_b32 s31, s31, 11')
    a('s_and_b32 s29, s24, 1')
    a('s_lshl_b32 s29, s29, 9')
    a('s_add_u32 s31, s31, s29')
    a('s_add_u32 s31, s31, s30')
    a('v_bfe_u32 v26, v1, 4, 1')
    a('v_and_b32 v27, 15, v1')
    a('v_lshlrev_b32 v27, 4, v27')
    a('v_lshl_add_u32 v27, v26, 10, v27')
    a('v_lshl_add_u32 v28, v4, 8, v27')
    a('s_lshr_b32 s29, s24, 4')
    a('s_lshl_b32 s29, s29, 11')
    a('s_add_u32 s30, s30, s29')
    a('s_bfe_u32 s29, s24, 0x20002')
    a('s_lshl_b32 s29, s29, 8')
    a('s_add_u32 s30, s30, s29')
    a('s_and_b32 s29, s24, 3')
    a('s_lshl_b32 s29, s29, 2')
    a('s_add_u32 s30, s30, s29')
    a('s_add_u32 s30, s30, 32768')
    a('v_rcp_f32 v25, %s' % vr(OA + 10))
    a('s_nop 0')
    for n in range(10):
        a('v_mul_f32 %s, v25, %s' % (vr(OA + n), vr(OA + n)))
    for n in range(5):
        a('v_cvt_pk_bf16_f32 %s, %s, %s' % (vr(OA + n), vr(OA + 2 * n), vr(OA + 2 * n + 1)))
    a('buffer_store_dwordx4 %s, v28, s[%d:%d], s31 offen' % (vr(OA, 4), SO, SO + 3))
    a('s_mov_b32 exec_hi, 0')
    a('buffer_store_dword %s, v27, s[%d:%d], s30 offen' % (vr(OA + 4), SO, SO + 3))
    a.label('attn_end')
    a('s_endpgm')
    return [('attn_kernel', 256, 96)]


def gen_wo(a, kind, insts):
    body = 'wo%s_body' % kind
    end = 'wo%s_end' % kind
    SX, SY, SW, SI, SK = 32, 36, 40, 44, 48
    for (nm, xsrc, ydst, kvoff) in insts:
        entry(a, nm)
        a('s_cmp_ge_u32 s2, 256')
        a('s_cbranch_scc1 %s' % end)
        load_kernargs(a)
        a('s_waitcnt lgkmcnt(0)')
        for (S_, src) in ((SX, xsrc), (SY, ydst)):
            if src[0] == 'in':
                srd(a, S_, src[1], 0, X_SZ)
            else:
                srd(a, S_, P_WS, src[1], X_SZ)
        if kind == 'A':
            srd(a, SK, P_WS, kvoff, KV_SZ)
        a('s_branch %s' % body)
    a.label(body)
    vm = VM(a)
    srd(a, SW, P_WS, WOA if kind == 'A' else WOB, WO_SZ)
    if kind == 'A':
        srd(a, SI, P_WS, PHIQ, PHIQ_SZ)
    else:
        srd(a, SI, P_WS, OIMG, OIMG_SZ)
    a('s_and_b32 s24, s2, 7')
    a('s_lshl_b32 s24, s24, 3')
    a('s_lshr_b32 s25, s2, 5')
    a('s_add_u32 s24, s24, s25')
    a('s_bfe_u32 s25, s2, 0x20003')
    a('v_lshrrev_b32 v2, 6, v0')
    a('v_and_b32 v1, 63, v0')
    a('v_readfirstlane_b32 s26, v2')
    a('v_lshlrev_b32 v5, 4, v1')
    WF = 96
    LO = 90112
    if kind == 'B':
        LO = 0
        a('s_lshl_b32 s27, s26, 12')
        a('s_mov_b32 m0, s27')
        a('s_mul_i32 s28, s24, 36864')
        a('s_add_u32 s27, s27, s28')
        for p in range(4):
            a('buffer_load_dwordx4 v5, s[%d:%d], s27 offen offset:%d lds' % (SI, SI + 3, p * 1024))
            vm.issue()
        vm.tags['img'] = vm.n
    else:
        a('s_cmp_eq_u32 s26, 8')
        a('s_cbranch_scc1 woA_w8')
        a('s_mul_i32 s27, s26, 11264')
        a('s_mov_b32 m0, s27')
        a('s_mul_i32 s28, s26, 10944')
        for p in range(11):
            if p in (4, 8):
                a('s_add_u32 m0, m0, 4096')
                a('s_add_u32 s28, s28, 4096')
            a('buffer_load_dwordx4 v5, s[%d:%d], s28 offen offset:%d lds' % (SK, SK + 3, (p & 3) * 1024))
            vm.issue()
        vm.tags['kv'] = vm.n
        PH = 12
        a('s_lshl_b32 s28, s24, 5')
        a('s_lshl_b32 s29, s26, 2')
        a('s_add_u32 s28, s28, s29')
        a('s_mul_i32 s28, s28, 2304')
        a('v_and_b32 v3, 31, v1')
        a('v_lshlrev_b32 v6, 3, v3')
        for hh in range(4):
            for r in range(8, 12):
                a('v_mov_b32 v%d, 0' % (PH + 12 * hh + r))
        for hh in range(4):
            a('buffer_load_dwordx4 %s, v5, s[%d:%d], s28 offen' % (vr(PH + 12 * hh, 4), SI, SI + 3))
            a('buffer_load_dwordx4 %s, v5, s[%d:%d], s28 offen offset:1024' % (vr(PH + 12 * hh + 4, 4), SI, SI + 3))
            a('s_mov_b32 exec_hi, 0')
            a('buffer_load_dwordx2 %s, v6, s[%d:%d], s28 offen offset:2048' % (vr(PH + 12 * hh + 8, 2), SI, SI + 3))
            a('s_mov_b32 exec_hi, -1')
            vm.issue(); vm.issue(); vm.issue(('phi', hh))
            if hh < 3:
                a('s_add_u32 s28, s28, 2304')
        a.label('woA_w8')
    a('s_mul_i32 s27, s25, 9')
    a('s_add_u32 s27, s27, s26')
    a('s_mul_i32 s28, s27, 18432')
    for t in range(18):
        if t and t % 4 == 0:
            a('s_add_u32 s28, s28, 4096')
        a('buffer_load_dwordx4 %s, v5, s[%d:%d], s28 offen offset:%d' % (vr(WF + 4 * t, 4), SW, SW + 3, (t & 3) * 1024))
        vm.issue(('w', t))
    a('v_and_b32 v7, 15, v1')
    a('s_lshl_b32 s28, s24, 5')
    a('v_add_u32 v7, s28, v7')
    a('v_mul_u32_u24 v7, 1152, v7')
    a('v_lshrrev_b32 v8, 4, v1')
    a('v_lshl_add_u32 v7, v8, 3, v7')
    a('s_lshl_b32 s27, s27, 5')
    a('s_add_u32 s29, s27, %d' % (16 * 1152))
    def xload():
        a('buffer_load_dwordx2 v[48:49], v7, s[%d:%d], s27 offen' % (SX, SX + 3))
        a('buffer_load_dwordx2 v[50:51], v7, s[%d:%d], s29 offen' % (SX, SX + 3))
        vm.issue(); vm.issue('x')
    if kind == 'A':
        a('s_cmp_eq_u32 s26, 8')
        a('s_cbranch_scc1 woA_s2')
        a('v_min_u32 v8, 18, v3')
        a('v_mul_u32_u24 v8, 144, v8')
        a('s_mul_i32 s28, s26, 11264')
        a('v_add_u32 v8, s28, v8')
        a('v_lshrrev_b32 v4, 5, v1')
        a('v_lshl_add_u32 v9, v4, 5, v8')
        a('v_bfe_u32 v10, v1, 4, 1')
        a('v_and_b32 v11, 15, v1')
        a('v_lshlrev_b32 v11, 4, v11')
        a('v_lshl_add_u32 v11, v10, 10, v11')
        a('v_lshl_add_u32 v10, v4, 8, v11')
        a('s_lshl_b32 s28, s26, 12')
        a('s_add_u32 s28, s28, %d' % LO)
        a('v_add_u32 v10, s28, v10')
        a('s_lshr_b32 s28, s26, 2')
        a('s_lshl_b32 s28, s28, 11')
        a('s_and_b32 s30, s26, 3')
        a('s_lshl_b32 s30, s30, 8')
        a('s_add_u32 s28, s28, s30')
        a('s_add_u32 s28, s28, %d' % (LO + 32768))
        a('v_add_u32 v11, s28, v11')
        ST, OC = 60, 80
        vm.wait('kv')
        for hh in range(4):
            o = hh * 2736
            a('ds_read_b128 %s, v9 offset:%d' % (vr(ST, 4), o))
            a('ds_read_b128 %s, v9 offset:%d' % (vr(ST + 4, 4), o + 16))
            a('ds_read_b128 %s, v9 offset:%d' % (vr(ST + 8, 4), o + 64))
            a('ds_read_b128 %s, v9 offset:%d' % (vr(ST + 12, 4), o + 80))
            a('ds_read_b128 %s, v8 offset:%d' % (vr(ST + 16, 4), o + 128))
            a('s_waitcnt lgkmcnt(0)')
            for n in range(10):
                a('v_cvt_pk_bf16_f32 %s, %s, %s' % (vr(ST + n), vr(ST + 2 * n), vr(ST + 2 * n + 1)))
            a('v_mov_b32 %s, 0' % vr(ST + 10))
            a('v_mov_b32 %s, 0' % vr(ST + 11))
            vm.wait(('phi', hh))
            a('s_nop 0')
            P = PH + 12 * hh
            a('v_mfma_f32_32x32x16_bf16 %s, %s, %s, 0' % (vr(OC, 16), vr(ST, 4), vr(P, 4)))
            a('v_mfma_f32_32x32x16_bf16 %s, %s, %s, %s' % (vr(OC, 16), vr(ST + 4, 4), vr(P + 4, 4), vr(OC, 16)))
            a('v_mfma_f32_32x32x16_bf16 %s, %s, %s, %s' % (vr(OC, 16), vr(ST + 8, 4), vr(P + 8, 4), vr(OC, 16)))
            a('s_nop 11')
            a('v_add_f32 v2, 0x%x, %s' % (f32bits(1e-6), vr(OC + 10)))
            a('v_rcp_f32 v2, v2')
            a('s_nop 0')
            for n in range(10):
                a('v_mul_f32 %s, v2, %s' % (vr(OC + n), vr(OC + n)))
            for n in range(5):
                a('v_cvt_pk_bf16_f32 %s, %s, %s' % (vr(OC + n), vr(OC + 2 * n), vr(OC + 2 * n + 1)))
            a('ds_write_b128 v10, %s offset:%d' % (vr(OC, 4), (hh >> 1) * 2048 + (hh & 1) * 512))
            a('s_mov_b32 exec_hi, 0')
            a('ds_write_b32 v11, %s offset:%d' % (vr(OC + 4), hh * 4))
            a('s_mov_b32 exec_hi, -1')
        a('s_waitcnt lgkmcnt(0)')
        a.label('woA_s2')
        xload()
    else:
        xload()
        vm.wait('img')
    a('s_barrier')
    a('v_add_u32 v12, %d, v5' % LO)
    OB = [16, 24, 32, 40]
    C0, C1 = 56, 60

    def oread(t):
        b = OB[t % 4]
        a('ds_read_b128 %s, v12 offset:%d' % (vr(b, 4), t * 2048))
        a('ds_read_b128 %s, v12 offset:%d' % (vr(b + 4, 4), t * 2048 + 1024))
    for t in range(3):
        oread(t)
    for t in range(18):
        if t + 3 < 18:
            oread(t + 3)
        rem = min(17 - t, 3)
        a('s_waitcnt vmcnt(%d) lgkmcnt(%d)' % (vm.cnt(('w', t)), 2 * rem))
        b = OB[t % 4]
        a('v_mfma_f32_16x16x32_bf16 %s, %s, %s, %s' % (vr(C0, 4), vr(WF + 4 * t, 4), vr(b, 4), '0' if t == 0 else vr(C0, 4)))
        a('v_mfma_f32_16x16x32_bf16 %s, %s, %s, %s' % (vr(C1, 4), vr(WF + 4 * t, 4), vr(b + 4, 4), '0' if t == 0 else vr(C1, 4)))
    a('s_waitcnt vmcnt(0)')
    for i in range(4):
        a('v_lshlrev_b32 v%d, 16, v%d' % (16 + 2 * i, 48 + i))
        a('v_and_b32 v%d, 0xffff0000, v%d' % (17 + 2 * i, 48 + i))
    a('s_nop 0')
    for i in range(4):
        a('v_cvt_pk_bf16_f32 v%d, v%d, v%d' % (24 + i, C0 + 2 * i, C0 + 2 * i + 1))
    for i in range(4):
        a('v_lshlrev_b32 v%d, 16, v%d' % (28 + 2 * i, 24 + i))
        a('v_and_b32 v%d, 0xffff0000, v%d' % (29 + 2 * i, 24 + i))
    for i in range(8):
        a('v_add_f32 v%d, v%d, v%d' % (16 + i, 16 + i, 28 + i))
    for i in range(4):
        a('v_cvt_pk_bf16_f32 v%d, v%d, v%d' % (24 + i, 16 + 2 * i, 17 + 2 * i))
    a('buffer_store_dwordx2 v[24:25], v7, s[%d:%d], s27 offen' % (SY, SY + 3))
    a('buffer_store_dwordx2 v[26:27], v7, s[%d:%d], s29 offen' % (SY, SY + 3))
    a.label(end)
    a('s_endpgm')
    return [(i[0], 168, 64) for i in insts]


def build(upto=None):
    a = Asm()
    ks = []
    ks += gen_prep(a)
    ks += gen_qkv(a, 'A', [('qkva1_kernel', ('in', P_AX), KV1), ('qkva3_kernel', ('ws', X2), KV3)])
    ks += gen_qkv(a, 'B', [('qkvb2_kernel', ('ws', X1), 0), ('qkvb4_kernel', ('ws', X3), 0)])
    ks += gen_attn(a)
    ks += gen_wo(a, 'A', [('woa1_kernel', ('in', P_AX), ('ws', X1), KV1), ('woa3_kernel', ('ws', X2), ('ws', X3), KV3)])
    ks += gen_wo(a, 'B', [('wob2_kernel', ('ws', X1), ('ws', X2), 0), ('wob4_kernel', ('ws', X3), ('in', P_OUT), 0)])
    LQA, LQB = 143 * 1024, 127 * 1024
    launches = [
        ('prep_kernel', 320, 576, 8448),
        ('qkva1_kernel', 256, 512, LQA),
        ('woa1_kernel', 256, 576, 90112 + 36864),
        ('qkvb2_kernel', 256, 512, LQB),
        ('attn_kernel', 256, 512, 49152 + 64),
        ('wob2_kernel', 256, 576, 36864),
        ('qkva3_kernel', 256, 512, LQA),
        ('woa3_kernel', 256, 576, 90112 + 36864),
        ('qkvb4_kernel', 256, 512, LQB),
        ('attn_kernel', 256, 512, 49152 + 64),
        ('wob4_kernel', 256, 576, 36864),
    ]
    out = []
    out.append('; generated by work/gen.py -- interleaved hedgehog linear attention / sliding window attention stack')
    for (k, g, b, l) in launches:
        out.append('; @launch kernel=%s grid=(%d,1,1) block=(%d,1,1) lds=%d' % (k, g, b, l))
    out.append('.amdgcn_target "amdgcn-amd-amdhsa--gfx950"')
    out.append('.text')
    out += a.L
    out.append('.section .rodata,"a"')
    for (k, v, s) in ks:
        out.append('.p2align 6')
        out.append(kdesc(k, v, s))
    return '\n'.join(out) + '\n'


if __name__ == '__main__':
    dst = sys.argv[1] if len(sys.argv) > 1 else 'cdna_kernels/%s.s' % NAME
    open(dst, 'w').write(build())
    print('wrote', dst)
```

```python
import sys, struct

NAME = 'interleave_layers__linear_kernel_hedgehog__sliding_block__prompt'

WQA = 0x000000
WQB = 0x200000
WQ_SZ = 16 * 18 * 7 * 1024
WOA = 0x400000
WOB = 0x500000
WO_SZ = 4 * 9 * 18 * 1024
CSA = 0x600000
CSB = 0x608000
CS_SZ = 16 * 3 * 448
TPHI = 0x610000
TPHI_SZ = 16 * 15 * 1024
KV1 = 0x660000
KV3 = 0x660000 + 32 * 19 * 144
KV_SZ = 32 * 19 * 144
X1 = 0x700000
X2 = 0x940000
X3 = 0xB80000
X_SZ = 2048 * 1152
PHIQ = 0xE00000
PHIQ_SZ = 64 * 32 * 2304
REC = 0x1300000
REC_HEAD = 262144
REC_SZ = 32 * REC_HEAD
R_Q0, R_K0, R_K1, R_V0, R_V1, R_VT, R_QT, R_KT = 0, 65536, 98304, 131072, 163840, 196608, 229376, 245760
X0 = 0x1F00000
OIMG = 0x1C00000
OIMG_SZ = 64 * 36864

LOG2E = 1.4426950408889634


def f32bits(x):
    return struct.unpack('<I', struct.pack('<f', x))[0]


class Asm:
    def __init__(self):
        self.L = []

    def __call__(self, s):
        self.L.append('    ' + s)

    def label(self, l):
        self.L.append(l + ':')

    def c(self, s):
        self.L.append('    ; ' + s)

    def raw(self, s):
        self.L.append(s)


class VM:
    def __init__(self, a):
        self.a = a
        self.n = 0
        self.tags = {}

    def issue(self, tag=None):
        self.n += 1
        if tag is not None:
            self.tags[tag] = self.n

    def cnt(self, tag):
        return self.n - self.tags[tag]

    def wait(self, tag):
        self.a('s_waitcnt vmcnt(%d)' % self.cnt(tag))


def vr(b, n=1):
    return 'v%d' % b if n == 1 else 'v[%d:%d]' % (b, b + n - 1)


def sr(b, n=1):
    return 's%d' % b if n == 1 else 's[%d:%d]' % (b, b + n - 1)


P_AX, P_AWQKV, P_AWPHI, P_AWO, P_BX, P_BWQKV, P_BWO, P_OUT, P_DBG, P_WS = 4, 6, 8, 10, 12, 14, 16, 18, 20, 22


def load_kernargs(a):
    a('s_load_dwordx16 s[4:19], s[0:1], 0')
    a('s_load_dwordx4 s[20:23], s[0:1], 64')


def srd(a, d, base, off, size):
    if off == 0:
        a('s_mov_b32 s%d, s%d' % (d, base))
        a('s_mov_b32 s%d, s%d' % (d + 1, base + 1))
    else:
        o = off if isinstance(off, str) else '0x%x' % off
        a('s_add_u32 s%d, s%d, %s' % (d, base, o))
        a('s_addc_u32 s%d, s%d, 0' % (d + 1, base + 1))
    a('s_mov_b32 s%d, 0x%x' % (d + 2, size))
    a('s_mov_b32 s%d, 0x00020000' % (d + 3))


def kdesc(name, vgpr, sgpr=96):
    acc = (vgpr + 3) // 4 * 4
    return '''.amdhsa_kernel %s
  .amdhsa_next_free_vgpr %d
  .amdhsa_next_free_sgpr %d
  .amdhsa_accum_offset %d
  .amdhsa_group_segment_fixed_size 0
  .amdhsa_kernarg_size 80
  .amdhsa_user_sgpr_count 2
  .amdhsa_user_sgpr_kernarg_segment_ptr 1
  .amdhsa_system_sgpr_workgroup_id_x 1
.end_amdhsa_kernel
''' % (name, vgpr, sgpr, acc)


def entry(a, name):
    a.raw('.p2align 8')
    a.raw('.globl %s' % name)
    a.raw('.type %s,@function' % name)
    a.label(name)


STAMP = False
STAMP_OFF = 0x3000000
_stamp_n = [0]
STAMP_REGS = list(range(72, 94))


def stamp(a):
    if not STAMP:
        return
    n = _stamp_n[0]
    a('s_memtime s[94:95]')
    a('s_waitcnt lgkmcnt(0)')
    a('s_mov_b32 s%d, s94' % STAMP_REGS[n])
    _stamp_n[0] += 1


def stamp_flush(a, kid):
    if not STAMP:
        return
    n = _stamp_n[0]
    _stamp_n[0] = 0
    a('s_mov_b64 exec, 1')
    a('s_add_u32 s68, s%d, 0x%x' % (P_WS, STAMP_OFF + kid * 0x100000))
    a('s_addc_u32 s69, s%d, 0' % (P_WS + 1))
    a('s_mov_b32 s70, 0x100000')
    a('s_mov_b32 s71, 0x00020000')
    a('s_lshl_b32 s94, s2, 4')
    a('s_add_u32 s94, s94, s26')
    a('s_lshl_b32 s94, s94, 7')
    a('v_mov_b32 v1, 0')
    for i in range(n):
        a('v_mov_b32 v2, s%d' % STAMP_REGS[i])
        a('buffer_store_dword v2, v1, s[68:71], s94 offen offset:%d' % (4 * i))
        a('s_nop 1')


def bf16r(a, v, tmp):
    a('v_cvt_pk_bf16_f32 %s, %s, %s' % (vr(tmp), vr(v), vr(v)))
    a('v_lshlrev_b32 %s, 16, %s' % (vr(v), vr(tmp)))


def magic(dv, maxv):
    for sh in range(4, 24):
        mul = (1 << sh) // dv + 1
        if all((x * mul) >> sh == x // dv for x in range(maxv + 1)):
            return mul, sh
    raise ValueError


def sdiv(a, dq, dr, src, dv, maxv):
    mul, sh = magic(dv, maxv)
    a('s_mul_i32 s%d, s%d, %d' % (dq, src, mul))
    a('s_lshr_b32 s%d, s%d, %d' % (dq, dq, sh))
    a('s_mul_i32 s%d, s%d, %d' % (dr, dq, dv))
    a('s_sub_u32 s%d, s%d, s%d' % (dr, src, dr))


NPREP = 460


def gen_prep(a):
    entry(a, 'prep_kernel')
    a('s_cmp_ge_u32 s2, %d' % NPREP)
    a('s_cbranch_scc1 prep_end')
    load_kernargs(a)
    a('v_and_b32 v1, 63, v0')
    a('v_lshrrev_b32 v2, 6, v0')
    a('v_and_b32 v3, 7, v1')
    a('v_readfirstlane_b32 s24, v2')
    a('v_lshrrev_b32 v4, 3, v1')
    a('s_waitcnt lgkmcnt(0)')
    a('s_cmp_ge_u32 s2, 332')
    a('s_cbranch_scc1 prep_x')
    a('s_cmp_ge_u32 s2, 308')
    a('s_cbranch_scc1 prep_zero')
    a('s_cmp_ge_u32 s2, 296')
    a('s_cbranch_scc1 prep_spec')
    a('s_cmp_ge_u32 s2, 216')
    a('s_cbranch_scc1 prep_phi')
    a('s_cmp_ge_u32 s2, 162')
    a('s_cbranch_scc1 prep_wo')
    a('s_cmp_ge_u32 s2, 81')
    a('s_cselect_b32 s32, s%d, s%d' % (P_BWQKV, P_AWQKV))
    a('s_cselect_b32 s33, s%d, s%d' % (P_BWQKV + 1, P_AWQKV + 1))
    a('s_cselect_b32 s25, 0x%x, 0' % (WQB - WQA))
    a('s_cselect_b32 s29, 0x%x, 0' % (CSB - CSA))
    a('s_cselect_b32 s26, 81, 0')
    a('s_add_u32 s29, s29, 0x%x' % CSA)
    a('s_mov_b32 s34, %d' % (576 * 3456))
    a('s_mov_b32 s35, 0x00020000')
    srd(a, 36, P_WS, 's25', WQ_SZ)
    srd(a, 52, P_WS, 's29', CS_SZ)
    a('s_sub_u32 s26, s2, s26')
    sdiv(a, 27, 28, 26, 3, 80)
    sdiv(a, 29, 30, 27, 9, 26)
    a('s_mul_i32 s31, s28, 3')
    a('s_add_u32 s31, s31, s24')
    for e in range(8):
        a('s_mov_b32 s%d, %d' % (40 + e, e * 3456))
    a('s_lshl_b32 s30, s30, 6')
    a('v_lshl_add_u32 v5, v3, 3, s30')
    a('s_lshl_b32 s48, s31, 3')
    a('v_add_u32 v6, s48, v4')
    a('v_mul_u32_u24 v7, %d, v6' % (8 * 3456))
    a('v_lshl_add_u32 v7, v5, 1, v7')
    a('s_mul_i32 s48, s29, 1152')
    a('v_add_u32 v7, s48, v7')
    for e in range(8):
        a('buffer_load_dwordx4 v[%d:%d], v7, s[32:35], s%d offen' % (16 + 4 * e, 19 + 4 * e, 40 + e))
    a('v_lshrrev_b32 v8, 2, v6')
    a('v_mul_u32_u24 v8, 7168, v8')
    a('v_and_b32 v9, 3, v6')
    a('v_lshl_add_u32 v8, v9, 8, v8')
    a('s_lshl_b32 s48, s29, 11')
    a('s_lshl_b32 s49, s29, 6')
    a('s_add_u32 s49, s49, 5888')
    a('s_mov_b32 s50, 129024')

    def coldest(dst, rem, tgreg, t0):
        h, d, x, y = t0, t0 + 1, t0 + 2, t0 + 3
        a('v_mul_u32_u24 v%d, 3641, v%d' % (h, rem))
        a('v_lshrrev_b32 v%d, 16, v%d' % (h, h))
        a('v_mul_u32_u24 v%d, 18, v%d' % (d, h))
        a('v_sub_u32 v%d, v%d, v%d' % (d, rem, d))
        a('v_and_b32 v%d, 1, v%d' % (x, h))
        a('v_cmp_gt_u32 vcc, 16, v%d' % d)
        a('v_lshl_add_u32 v%d, v%d, 5, s49' % (y, x))
        a('v_lshl_add_u32 v%d, v%d, 10, s48' % (x, x))
        a('v_lshrrev_b32 v%d, 1, v%d' % (h, h))
        a('v_cndmask_b32 v%d, v%d, v%d, vcc' % (x, y, x))
        a('v_mul_u32_u24 v%d, s50, v%d' % (h, h))
        a('v_lshl_add_u32 v%d, v%d, 4, v%d' % (x, d, x))
        a('v_add3_u32 v%d, v%d, v%d, v%d' % (dst, x, h, tgreg))
    for c in range(8):
        a('v_add_u32 v10, %d, v5' % c)
        coldest(48 + c, 10, 8, 11)
    a('s_mov_b32 s51, 1')
    a('s_branch prep_tr')
    a.label('prep_wo')
    a('s_cmp_ge_u32 s2, 189')
    a('s_cselect_b32 s32, s%d, s%d' % (P_BWO, P_AWO))
    a('s_cselect_b32 s33, s%d, s%d' % (P_BWO + 1, P_AWO + 1))
    a('s_cselect_b32 s25, 0x%x, 0' % (WOB - WOA))
    a('s_cselect_b32 s26, 27, 0')
    a('s_add_u32 s25, s25, 0x%x' % WOA)
    a('s_add_u32 s26, s26, 162')
    a('s_mov_b32 s34, %d' % (576 * 1152))
    a('s_mov_b32 s35, 0x00020000')
    srd(a, 36, P_WS, 's25', WO_SZ)
    srd(a, 52, P_WS, CSA, CS_SZ)
    a('s_sub_u32 s26, s2, s26')
    sdiv(a, 27, 28, 26, 3, 26)
    a('s_mul_i32 s31, s28, 3')
    a('s_add_u32 s31, s31, s24')
    a('s_lshl_b32 s48, s31, 3')
    a('v_add_u32 v6, s48, v4')
    a('s_cmp_eq_u32 s31, 8')
    a('s_cbranch_scc1 prep_b_tail')
    for e, o in enumerate([0, 1, 2, 3, 8, 9, 10, 11]):
        a('s_mov_b32 s%d, %d' % (40 + e, o * 1152))
    a('v_lshrrev_b32 v7, 1, v6')
    a('v_mul_u32_u24 v7, 18, v7')
    a('v_and_b32 v8, 1, v6')
    a('v_lshl_add_u32 v7, v8, 2, v7')
    a('s_branch prep_b_row')
    a.label('prep_b_tail')
    for e, o in enumerate([0, 1, 18, 19, 36, 37, 54, 55]):
        a('s_mov_b32 s%d, %d' % (40 + e, o * 1152))
    a('v_mul_u32_u24 v7, 72, v4')
    a('v_add_u32 v7, 16, v7')
    a.label('prep_b_row')
    a('v_mul_u32_u24 v7, 1152, v7')
    a('v_lshl_add_u32 v7, v3, 4, v7')
    a('s_lshl_b32 s30, s27, 7')
    a('v_add_u32 v7, s30, v7')
    for e in range(8):
        a('buffer_load_dwordx4 v[%d:%d], v7, s[32:35], s%d offen' % (16 + 4 * e, 19 + 4 * e, 40 + e))
    a('v_lshrrev_b32 v8, 1, v3')
    a('s_lshl_b32 s30, s27, 2')
    a('v_add_u32 v8, s30, v8')
    a('v_mul_u32_u24 v8, 18, v8')
    a('v_lshrrev_b32 v9, 2, v6')
    a('v_add_u32 v8, v8, v9')
    a('v_lshlrev_b32 v8, 10, v8')
    a('v_and_b32 v9, 3, v6')
    a('v_lshl_add_u32 v8, v9, 8, v8')
    a('v_and_b32 v9, 1, v3')
    a('v_lshl_add_u32 v8, v9, 7, v8')
    for c in range(8):
        a('v_add_u32 v%d, %d, v8' % (48 + c, 16 * c))
    a('s_mov_b32 s51, 0')
    a.label('prep_tr')
    a('s_mov_b32 s30, 0x05040100')
    a('s_mov_b32 s31, 0x07060302')
    a('s_mov_b32 s26, 0x3f803f80')
    a('s_waitcnt vmcnt(0)')
    for c in range(8):
        p, o = c >> 1, c & 1
        ob = 64 + 4 * c
        for q in range(4):
            a('v_perm_b32 v%d, v%d, v%d, s%d' % (ob + q, 16 + 4 * (2 * q + 1) + p, 16 + 4 * (2 * q) + p, 30 + o))
        a('buffer_store_dwordx4 v[%d:%d], v%d, s[36:39], 0 offen' % (ob, ob + 3, 48 + c))
    a('s_cmp_eq_u32 s51, 0')
    a('s_cbranch_scc1 prep_end')
    for c in range(8):
        a('v_dot2_f32_bf16 v%d, v%d, s26, 0' % (16 + c, 64 + 4 * c))
    for q in range(1, 4):
        for c in range(8):
            a('v_dot2_f32_bf16 v%d, v%d, s26, v%d' % (16 + c, 64 + 4 * c + q, 16 + c))
    a('v_lshrrev_b32 v10, 3, v0')
    a('v_lshlrev_b32 v10, 8, v10')
    a('v_lshl_add_u32 v10, v3, 5, v10')
    a('s_nop 2')
    a('ds_write_b128 v10, v[16:19]')
    a('ds_write_b128 v10, v[20:23] offset:16')
    a('s_waitcnt lgkmcnt(0)')
    a('s_barrier')
    a('s_cmp_lg_u32 s24, 0')
    a('s_cbranch_scc1 prep_end')
    a('v_lshlrev_b32 v10, 2, v1')
    for i in range(24):
        a('ds_read_b32 v%d, v10 offset:%d' % (16 + i, i * 256))
    a('s_mul_i32 s30, s29, 9')
    a('s_sub_u32 s30, s27, s30')
    a('s_lshl_b32 s30, s30, 6')
    a('s_lshl_b32 s48, s29, 9')
    a('s_lshl_b32 s49, s29, 6')
    a('s_add_u32 s49, s49, %d' % (96 * 16 - 256))
    a('s_mov_b32 s50, %d' % (3 * 448 * 4))
    a('v_add_u32 v10, s30, v1')
    a('s_mul_i32 s30, s28, %d' % (448 * 4))
    a('v_mov_b32 v8, s30')
    a('v_mul_u32_u24 v11, 3641, v10')
    a('v_lshrrev_b32 v11, 16, v11')
    a('v_mul_u32_u24 v12, 18, v11')
    a('v_sub_u32 v12, v10, v12')
    a('v_and_b32 v13, 1, v11')
    a('v_cmp_gt_u32 vcc, 16, v12')
    a('v_lshl_add_u32 v14, v13, 5, s49')
    a('v_lshl_add_u32 v13, v13, 8, s48')
    a('v_lshrrev_b32 v11, 1, v11')
    a('v_cndmask_b32 v13, v14, v13, vcc')
    a('v_mul_u32_u24 v11, s50, v11')
    a('v_lshl_add_u32 v13, v12, 4, v13')
    a('v_add3_u32 v13, v13, v11, v8')
    a('v_lshrrev_b32 v13, 2, v13')
    a('s_waitcnt lgkmcnt(0)')
    for i in range(1, 24):
        a('v_add_f32 v%d, v%d, v%d' % (16 + (i & 1), 16 + (i & 1), 16 + i) if i > 1 else 's_nop 0')
    a('v_add_f32 v16, v16, v17')
    a('buffer_store_dword v16, v13, s[52:55], 0 offen')
    a('s_branch prep_end')
    a.label('prep_phi')
    srd(a, 32, P_AWPHI, 0, 32 * 324 * 2)
    srd(a, 36, P_WS, TPHI, TPHI_SZ)
    a('s_sub_u32 s26, s2, 216')
    sdiv(a, 27, 29, 26, 5, 79)
    a('s_mov_b32 s28, s24')
    a('v_and_b32 v2, 3, v1')
    a('v_bfe_u32 v3, v1, 2, 1')
    a('v_bfe_u32 v4, v1, 3, 1')
    a('v_lshrrev_b32 v5, 4, v1')
    a('v_lshlrev_b32 v6, 15, v3')
    a('v_lshl_or_b32 v6, v6, 16, v6')
    a('v_cmp_eq_u32 s[50:51], 0, v4')
    a('s_lshl_b32 s30, s29, 2')
    a('v_add_u32 v7, s30, v2')
    a('v_lshlrev_b32 v8, 2, v5')
    a('s_cmp_eq_u32 s28, 0')
    a('s_cbranch_scc1 prep_phi_d0')
    a('v_mov_b32 v8, 16')
    a.label('prep_phi_d0')
    a('s_lshl_b32 s30, s27, 1')
    a('v_add_u32 v9, s30, v4')
    a('v_mul_u32_u24 v9, 324, v9')
    a('v_mul_u32_u24 v8, 18, v8')
    a('v_add3_u32 v9, v9, v8, v7')
    a('v_lshlrev_b32 v9, 1, v9')
    a('v_mov_b32 v10, 0x7fff0000')
    a('v_cmp_gt_u32 vcc, 18, v7')
    a('s_nop 1')
    a('v_cndmask_b32 v9, v10, v9, vcc')
    a('s_cmp_eq_u32 s28, 0')
    a('s_cbranch_scc1 prep_phi_ld')
    a('s_sub_u32 s30, s28, 1')
    a('v_cmp_eq_u32 vcc, s30, v5')
    a('s_nop 1')
    a('v_cndmask_b32 v9, v10, v9, vcc')
    a.label('prep_phi_ld')
    for i in range(4):
        a('buffer_load_ushort v%d, v9, s[32:35], 0 offen offset:%d' % (16 + i, i * 36))
    a('s_waitcnt vmcnt(0)')
    a('v_lshl_or_b32 v16, v17, 16, v16')
    a('v_lshl_or_b32 v18, v19, 16, v18')
    a('v_xor_b32 v16, v16, v6')
    a('v_xor_b32 v18, v18, v6')
    a('v_cndmask_b32 v20, 0, v16, s[50:51]')
    a('s_cmp_eq_u32 s28, 0')
    a('s_cbranch_scc0 prep_phi_tb')
    a('v_cndmask_b32 v21, 0, v18, s[50:51]')
    a('v_cndmask_b32 v22, v16, 0, s[50:51]')
    a('v_cndmask_b32 v23, v18, 0, s[50:51]')
    a('s_branch prep_phi_st')
    a.label('prep_phi_tb')
    a('v_cndmask_b32 v21, v16, 0, s[50:51]')
    a('v_mov_b32 v22, 0')
    a('v_mov_b32 v23, 0')
    a.label('prep_phi_st')
    a('s_mul_i32 s30, s27, 15')
    a('s_mul_i32 s31, s28, 5')
    a('s_add_u32 s30, s30, s31')
    a('s_add_u32 s30, s30, s29')
    a('s_lshl_b32 s30, s30, 10')
    a('v_lshlrev_b32 v11, 4, v1')
    a('buffer_store_dwordx4 v[20:23], v11, s[36:39], s30 offen')
    a('s_branch prep_end')
    a.label('prep_spec')
    a('s_sub_u32 s26, s2, 296')
    a('s_cmp_ge_u32 s26, 6')
    a('s_cselect_b32 s25, 0x%x, 0' % (WQB - WQA))
    a('s_cselect_b32 s29, 0x%x, 0' % (CSB - CSA))
    a('s_cselect_b32 s27, 6, 0')
    a('s_add_u32 s29, s29, 0x%x' % CSA)
    srd(a, 36, P_WS, 's25', WQ_SZ)
    srd(a, 52, P_WS, 's29', CS_SZ)
    a('s_sub_u32 s26, s26, s27')
    a('s_mul_i32 s26, s26, 192')
    a('v_add_u32 v2, s26, v0')
    a('v_lshrrev_b32 v3, 2, v2')
    a('v_mul_u32_u24 v4, 7168, v3')
    a('v_and_b32 v5, 3, v2')
    a('v_lshl_add_u32 v4, v5, 8, v4')
    a('v_add_u32 v4, %d, v4' % (6144 + 192))
    for i in range(4):
        a('v_mov_b32 v%d, 0x3f803f80' % (8 + i))
        a('v_mov_b32 v%d, 0' % (12 + i))
    a('buffer_store_dwordx4 v[8:11], v4, s[36:39], 0 offen')
    for i in range(1, 4):
        a('buffer_store_dwordx4 v[12:15], v4, s[36:39], 0 offen offset:%d' % (16 * i))
    a('v_mul_u32_u24 v6, 448, v2')
    a('v_add_u32 v6, 432, v6')
    a('buffer_store_dwordx4 v[12:15], v6, s[52:55], 0 offen')
    a('s_branch prep_end')
    a.label('prep_zero')
    srd(a, 36, P_WS, KV1, 2 * KV_SZ)
    a('s_sub_u32 s27, s2, 308')
    a('s_mul_i32 s27, s27, 9216')
    a('v_lshlrev_b32 v2, 4, v0')
    a('v_add_u32 v2, s27, v2')
    for i in range(4):
        a('v_mov_b32 v%d, 0' % (4 + i))
    for k in range(3):
        a('s_mov_b32 s28, %d' % (k * 3072))
        a('buffer_store_dwordx4 v[4:7], v2, s[36:39], s28 offen')
    a('s_branch prep_end')
    a.label('prep_x')
    srd(a, 32, P_AX, 0, X_SZ)
    srd(a, 36, P_WS, X0, X_SZ)
    a('s_sub_u32 s26, s2, 332')
    a('s_and_b32 s27, s26, 3')
    a('s_lshl_b32 s27, s27, 5')
    a('s_lshr_b32 s26, s26, 2')
    a('s_add_u32 s26, s26, s27')
    a('v_lshrrev_b32 v2, 2, v1')
    a('v_and_b32 v3, 3, v1')
    a('v_mul_u32_u24 v4, 1152, v2')
    a('v_lshl_add_u32 v4, v3, 4, v4')
    a('s_mul_i32 s27, s26, 18432')
    a('s_mul_i32 s28, s24, 384')
    a('s_add_u32 s28, s28, s27')
    for t in range(6):
        a('buffer_load_dwordx4 v[%d:%d], v4, s[32:35], s28 offen offset:%d' % (16 + 4 * t, 19 + 4 * t, t * 64))
    a('v_lshlrev_b32 v5, 4, v2')
    a('v_lshl_add_u32 v5, v3, 8, v5')
    a('s_mul_i32 s28, s24, 6144')
    a('s_add_u32 s28, s28, s27')
    a('s_add_u32 s29, s28, 3072')
    for t in range(6):
        a('s_waitcnt vmcnt(%d)' % 5)
        a('buffer_store_dwordx4 v[%d:%d], v5, s[36:39], s%d offen offset:%d' % (16 + 4 * t, 19 + 4 * t, 28 + t // 3, (t % 3) * 1024))
    a.label('prep_end')
    a('s_endpgm')
    return [('prep_kernel', 96, 72)]


XF0 = 32
ACC0 = 104
WB0 = 168
LDS_T = 127 * 1024
LDS_PK = 32 * 1024
PK_STRIDE = 224
QDEPTH = 3


def XF(a_, t):
    return XF0 + (a_ * 9 + t) * 4


def ACC(a_, u):
    return ACC0 + (a_ * 8 + u) * 4


def softmax18(a, D, sLOG2E, tmp):
    m, s = tmp, tmp + 1
    a('v_max3_f32 %s, %s, %s, %s' % (vr(m), vr(D), vr(D + 1), vr(D + 2)))
    for i in range(3, 17, 2):
        a('v_max3_f32 %s, %s, %s, %s' % (vr(m), vr(m), vr(D + i), vr(D + i + 1)))
    a('v_max_f32 %s, %s, %s' % (vr(m), vr(m), vr(D + 17)))
    a('v_mul_f32 %s, %s, %s' % (vr(m), sLOG2E, vr(m)))
    for i in range(18):
        a('v_fma_f32 %s, %s, %s, -%s' % (vr(D + i), vr(D + i), sLOG2E, vr(m)))
    for i in range(18):
        a('v_exp_f32 %s, %s' % (vr(D + i), vr(D + i)))
    a('v_add_f32 %s, %s, %s' % (vr(s), vr(D), vr(D + 1)))
    a('v_add_f32 %s, %s, %s' % (vr(m), vr(D + 2), vr(D + 3)))
    for i in range(4, 18, 2):
        a('v_add_f32 %s, %s, %s' % (vr(s), vr(s), vr(D + i)))
        a('v_add_f32 %s, %s, %s' % (vr(m), vr(m), vr(D + i + 1)))
    a('v_add_f32 %s, %s, %s' % (vr(s), vr(s), vr(m)))
    a('v_rcp_f32 %s, %s' % (vr(s), vr(s)))
    a('s_nop 0')
    for i in range(18):
        a('v_mul_f32 %s, %s, %s' % (vr(D + i), vr(s), vr(D + i)))
    for i in range(9):
        a('v_cvt_pk_bf16_f32 %s, %s, %s' % (vr(D + i), vr(D + 2 * i), vr(D + 2 * i + 1)))


def pf_setup(a, sdst, sN, half_bytes, s_ch, s_idx, s_wave, tmp):
    a('s_lshl_b32 s%d, s%d, 5' % (tmp, s_wave))
    a('s_add_u32 s%d, s%d, s%d' % (tmp, tmp, s_idx))
    a('s_mul_i32 s%d, s%d, %d' % (sdst, s_ch, half_bytes))
    a('s_cmp_lt_u32 s%d, s%d' % (tmp, sN))
    a('s_cselect_b32 s%d, s%d, 0x40000' % (tmp, tmp))
    a('s_lshl_b32 s%d, s%d, 13' % (tmp, tmp))
    a('s_add_u32 s%d, s%d, s%d' % (sdst, sdst, tmp))


def gen_qkv(a, kind, insts):
    body = 'qkv%s_body' % kind
    end = 'qkv%s_end' % kind
    SX, SW, SC, ST, SO, SK, SP = 32, 36, 40, 44, 48, 52, 64
    LDS_CS = (143 if kind == 'A' else 127) * 1024
    for (nm, xsrc, kvoff) in insts:
        entry(a, nm)
        a('s_cmp_ge_u32 s2, 256')
        a('s_cbranch_scc1 %s' % end)
        load_kernargs(a)
        a('s_waitcnt lgkmcnt(0)')
        if xsrc[0] == 'in':
            srd(a, SX, xsrc[1], 0, X_SZ)
        else:
            srd(a, SX, P_WS, xsrc[1], X_SZ)
        if kind == 'A':
            srd(a, SK, P_WS, kvoff, KV_SZ)
        a('s_branch %s' % body)
    a.label(body)
    stamp(a)
    vm = VM(a)
    srd(a, SW, P_WS, WQA if kind == 'A' else WQB, WQ_SZ)
    a('s_and_b32 s24, s2, 3')
    a('s_lshl_b32 s24, s24, 2')
    a('s_bfe_u32 s25, s2, 0x20003')
    a('s_add_u32 s24, s24, s25')
    a('s_bfe_u32 s25, s2, 0x10002')
    a('s_lshl_b32 s25, s25, 3')
    a('s_lshr_b32 s26, s2, 5')
    a('s_add_u32 s25, s25, s26')
    a('v_lshrrev_b32 v2, 6, v0')
    a('v_and_b32 v1, 63, v0')
    a('v_readfirstlane_b32 s26, v2')
    a('v_and_b32 v3, 15, v1')
    a('v_lshrrev_b32 v4, 4, v1')
    a('v_lshlrev_b32 v5, 4, v1')
    a('s_and_b32 s27, s26, 3')
    a('s_lshr_b32 s28, s26, 2')
    a('s_lshl_b32 s29, s24, 7')
    a('s_lshl_b32 s30, s27, 5')
    a('s_add_u32 s29, s29, s30')
    a('s_lshl_b32 s30, s28, 4')
    a('s_add_u32 s29, s29, s30')
    a('v_add_u32 v6, s29, v3')
    a('s_lshr_b32 s30, s29, 4')
    a('s_xor_b32 s69, s30, 1')
    a('s_mul_i32 s30, s30, 18432')
    a('s_mul_i32 s69, s69, 18432')
    a('s_mul_i32 s31, s28, 9216')
    a('s_add_u32 s30, s30, s31')
    a('s_add_u32 s69, s69, s31')
    a('s_mul_i32 s31, s28, 63')
    a('s_add_u32 s31, s31, s27')
    a('s_lshl_b32 s31, s31, 10')
    a('s_mov_b32 m0, s31')
    a('s_mul_i32 s56, s25, 129024')
    a('s_add_u32 s31, s31, s56')
    need = [(7 * t + 6) // 4 for t in range(9)]
    st = {'ii': 0}

    def loads(t):
        if t and t % 4 == 0:
            a('s_add_u32 s30, s30, 4096')
            a('s_add_u32 s69, s69, 4096')
        a('buffer_load_dwordx4 %s, v5, s[%d:%d], s30 offen offset:%d' % (vr(XF(0, t), 4), SX, SX + 3, (t & 3) * 1024))
        vm.issue()
        a('buffer_load_dwordx4 %s, v5, s[%d:%d], s69 offen offset:%d' % (vr(XF(1, t), 4), SX, SX + 3, (t & 3) * 1024))
        vm.issue()
        while st['ii'] <= need[t]:
            a('buffer_load_dwordx4 v5, s[%d:%d], s31 offen lds' % (SW, SW + 3))
            vm.issue()
            st['ii'] += 1
            if st['ii'] < 16:
                a('s_add_u32 m0, m0, 4096')
                a('s_add_u32 s31, s31, 4096')
        vm.tags[('step', t)] = vm.n
    loads(0)
    srd(a, SC, P_WS, CSA if kind == 'A' else CSB, CS_SZ)
    a('s_mul_i32 s57, s25, 1344')
    a('s_cmp_lg_u32 s26, 0')
    a('s_cselect_b32 s57, 0x40000000, s57')
    for p in range(3):
        a('buffer_load_dwordx4 v[%d:%d], v5, s[%d:%d], s57 offen offset:%d' % (12 + 4 * p, 15 + 4 * p, SC, SC + 3, p * 448))
        vm.issue()
    vm.tags['cs'] = vm.n
    for t in range(1, QDEPTH):
        a('s_barrier')
        loads(t)
    if kind == 'A':
        srd(a, ST, P_WS, TPHI, TPHI_SZ)
        srd(a, SO, P_WS, PHIQ, PHIQ_SZ)
        srd(a, SP, P_WS, WOA, WO_SZ)
    else:
        srd(a, SO, P_WS, REC, REC_SZ)
        srd(a, SP, P_WS, WOB, WO_SZ)
    a('s_bfe_u32 s56, s2, 0x10002')
    a('s_lshr_b32 s57, s2, 3')
    a('s_mov_b32 s58, 41')
    pf_setup(a, 68, 58, WO_SZ // 2, 56, 57, 26, 59)
    a('v_lshlrev_b32 v31, 7, v1')
    a('s_mul_i32 s56, s28, %d' % (63 * 1024))
    a('v_add_u32 v10, s56, v5')
    a('v_and_b32 v11, 3, v3')
    a('v_cmp_eq_u32 s[58:59], 1, v11')
    a('v_cmp_eq_u32 s[60:61], 2, v11')
    a('v_cmp_eq_u32 s[62:63], 3, v11')
    a('v_lshrrev_b32 v11, 2, v3')
    a('v_lshl_add_u32 v11, v11, 4, v3')
    a('v_lshlrev_b32 v11, 2, v11')
    a('v_lshlrev_b32 v24, 2, v3')
    a('v_add_u32 v24, 192, v24')
    a('v_lshlrev_b32 v25, 4, v4')
    a('v_add_u32 v25, %d, v25' % LDS_CS)
    vm.wait('cs')
    for r in range(4):
        a('v_add_f32 v%d, v%d, v%d' % (12 + r, 12 + r, 16 + r))
    for r in range(4):
        a('v_add_f32 v%d, v%d, v%d' % (12 + r, 12 + r, 20 + r))
    a('v_add_u32 v26, %d, v5' % LDS_CS)
    a('s_cmp_lg_u32 s26, 0')
    a('s_cbranch_scc1 %s_nocs' % body)
    a('s_mov_b64 exec, 0xfffffff')
    a('ds_write_b128 v26, v[12:15]')
    a('s_mov_b64 exec, -1')
    a('s_waitcnt lgkmcnt(0)')
    a.label('%s_nocs' % body)
    stamp(a)

    def wread(t):
        for u in range(7):
            a('ds_read_b128 %s, v10 offset:%d' % (vr(WB0 + 28 * (t & 1) + 4 * u, 4), (t * 7 + u) * 1024))
    a('s_barrier')
    wread(0)
    for t in range(9):
        if t + QDEPTH < 9:
            loads(t + QDEPTH)
        if t + QDEPTH == 9 or (QDEPTH > 9 and t == 0):
            if kind == 'A':
                a('s_lshl_b32 s31, s26, 11')
                a('s_add_u32 m0, s31, %d' % LDS_T)
                a('s_mul_i32 s56, s25, 15360')
                a('s_add_u32 s31, s31, s56')
                a('buffer_load_dwordx4 v5, s[%d:%d], s31 offen lds' % (ST, ST + 3))
                vm.issue()
                a('buffer_load_dwordx4 v5, s[%d:%d], s31 offen offset:1024 lds' % (ST, ST + 3))
                vm.issue('tphi')
            a('buffer_load_dword v30, v31, s[%d:%d], s68 offen' % (SP, SP + 3))
            vm.issue()
        order = [1, 0] if t == 8 else [0, 1]
        for a_ in order:
            c = '0' if t == 0 else vr(ACC(a_, 7), 4)
            a('v_mfma_f32_16x16x32_bf16 %s, %s, %s, %s' % (vr(ACC(a_, 7), 4), vr(XF(a_, t), 4), vr(XF(a_, t), 4), c))
        if t < 8:
            vm.wait(('step', t + 1))
            a('s_barrier')
            stamp(a)
            wread(t + 1)
        W = lambda u: vr(WB0 + 28 * (t & 1) + 4 * u, 4)
        if t < 8:
            a('s_waitcnt lgkmcnt(7)')
            for u in range(7):
                for a_ in order:
                    c = '0' if t == 0 else vr(ACC(a_, u), 4)
                    a('v_mfma_f32_16x16x32_bf16 %s, %s, %s, %s' % (vr(ACC(a_, u), 4), W(u), vr(XF(a_, t), 4), c))
        else:
            a('s_waitcnt lgkmcnt(0)')
            for a_ in order:
                for u in range(7):
                    a('v_mfma_f32_16x16x32_bf16 %s, %s, %s, %s' % (vr(ACC(a_, u), 4), W(u), vr(XF(a_, t), 4), vr(ACC(a_, u), 4)))
                if a_ == order[0]:
                    pass
    stamp(a)
    a('s_lshl_b32 s56, s27, 13')
    a('v_add_u32 v14, s56, v10')
    a('s_xor_b32 s57, s28, 1')
    a('s_mul_i32 s57, s57, %d' % (63 * 1024))
    a('s_add_u32 s57, s57, s56')
    a('v_add_u32 v15, s57, v5')
    for u in [7, 6, 0, 1, 2, 3, 4, 5]:
        a('ds_write_b128 v14, %s offset:%d' % (vr(ACC(1, u), 4), u * 1024))
    CS0 = 48
    for u in range(7):
        a('ds_read_b128 %s, v25 offset:%d' % (vr(CS0 + 4 * u, 4), u * 64))
    if kind == 'A':
        a('s_waitcnt vmcnt(%d) lgkmcnt(0)' % vm.cnt('tphi'))
    else:
        a('s_waitcnt lgkmcnt(0)')
    a('s_barrier')
    for u in [7, 6, 0, 1, 2, 3, 4, 5]:
        a('ds_read_b128 %s, v15 offset:%d' % (vr(ACC(1, u), 4), u * 1024))
    R = lambda u, r: ACC(0, u) + r
    a('s_waitcnt lgkmcnt(6)')
    for u in [7, 6]:
        for r in range(4):
            if u == 7 or r == 0:
                a('v_add_f32 %s, %s, %s' % (vr(R(u, r)), vr(R(u, r)), vr(ACC(1, u) + r)))
    a('v_cndmask_b32 v16, %s, %s, s[58:59]' % (vr(R(7, 0)), vr(R(7, 1))))
    a('v_cndmask_b32 v16, v16, %s, s[60:61]' % vr(R(7, 2)))
    a('v_cndmask_b32 v16, v16, %s, s[62:63]' % vr(R(7, 3)))
    a('ds_bpermute_b32 v18, v24, %s' % vr(R(6, 0)))
    a('ds_bpermute_b32 v17, v11, v16')
    for r in range(1, 4):
        a('v_add_f32 %s, %s, %s' % (vr(R(6, r)), vr(R(6, r)), vr(ACC(1, 6) + r)))
    a('s_waitcnt lgkmcnt(2)')
    for u in range(6):
        for r in range(4):
            a('v_add_f32 %s, %s, %s' % (vr(R(u, r)), vr(R(u, r)), vr(ACC(1, u) + r)))
    a('s_mov_b32 s56, 0x%x' % f32bits(1.0 / 576))
    a('s_waitcnt lgkmcnt(0)')
    if kind == 'A':
        TA, TBQ, TBK = 168, 188, 208
        a('v_add_u32 v19, %d, v5' % LDS_T)
        for m in range(5):
            a('ds_read_b128 %s, v19 offset:%d' % (vr(TA + 4 * m, 4), m * 1024))
        for m in range(5):
            a('ds_read_b128 %s, v19 offset:%d' % (vr(TBK + 4 * m, 4), (10 + m) * 1024))
        for m in range(5):
            a('ds_read_b128 %s, v19 offset:%d' % (vr(TBQ + 4 * m, 4), (5 + m) * 1024))
    a('v_mul_f32 v18, s56, v18')
    a('v_mul_f32 v17, s56, v17')
    a('v_fma_f32 v17, -v18, v18, v17')
    a('v_max_f32 v17, 0, v17')
    bf16r(a, 18, 19)
    bf16r(a, 17, 19)
    a('v_add_f32 v17, 0x%x, v17' % f32bits(1e-5))
    bf16r(a, 17, 19)
    a('v_sqrt_f32 v17, v17')
    a('s_nop 0')
    bf16r(a, 17, 19)
    a('v_rcp_f32 v17, v17')
    stamp(a)
    P0 = 32
    uorder = [2, 3, 6, 4, 5, 0, 1] if kind == 'A' else range(7)
    for u in uorder:
        for r in range(4):
            a('v_fma_f32 %s, -v18, %s, %s' % (vr(R(u, r)), vr(CS0 + 4 * u + r), vr(R(u, r))))
        for r in range(4):
            a('v_mul_f32 %s, v17, %s' % (vr(R(u, r)), vr(R(u, r))))
        a('v_cvt_pk_bf16_f32 %s, %s, %s' % (vr(P0 + 2 * u), vr(R(u, 0)), vr(R(u, 1))))
        a('v_cvt_pk_bf16_f32 %s, %s, %s' % (vr(P0 + 2 * u + 1), vr(R(u, 2)), vr(R(u, 3))))
        if kind == 'B' and u == 0:
            a('v_lshlrev_b32 v20, 4, v6')
            a('v_and_b32 v21, 1, v4')
            a('v_lshl_add_u32 v21, v21, 18, v20')
            a('v_lshrrev_b32 v22, 1, v4')
            a('v_lshl_add_u32 v21, v22, 15, v21')
            a('s_lshl_b32 s56, s25, 19')
        if kind == 'B' and u in (1, 3, 5):
            typ = u >> 1
            b0 = P0 + 4 * typ
            a('s_add_u32 s57, s56, %d' % (typ * 65536))
            a('s_nop 0')
            a('v_permlane16_swap_b32 %s, %s' % (vr(b0), vr(b0 + 2)))
            a('v_permlane16_swap_b32 %s, %s' % (vr(b0 + 1), vr(b0 + 3)))
            a('buffer_store_dwordx4 %s, v21, s[%d:%d], s57 offen' % (vr(b0, 4), SO, SO + 3))
    if kind == 'B':
        a('v_lshlrev_b32 v26, 3, v6')
        a('v_lshl_add_u32 v26, v4, 14, v26')
        a('v_add_u32 v26, %d, v26' % R_QT)
        a('v_add_u32 v22, %d, v20' % R_VT)
        a('v_cmp_eq_u32 vcc, 2, v4')
        a('v_mov_b32 v27, 0x3f80')
        a('v_mov_b32 v12, %s' % vr(P0 + 12))
        a('v_cndmask_b32 v13, 0, v27, vcc')
        a('v_cndmask_b32 v26, v26, v22, vcc')
        a('v_mov_b32 v14, %s' % vr(P0 + 13))
        a('v_mov_b32 v15, v13')
        a('s_add_u32 s57, s56, %d' % REC_HEAD)
        a('s_mov_b32 exec_hi, 0xffff')
        a('buffer_store_dwordx2 v[12:13], v26, s[%d:%d], s56 offen' % (SO, SO + 3))
        a('buffer_store_dwordx2 v[14:15], v26, s[%d:%d], s57 offen' % (SO, SO + 3))
        stamp(a)
        a('s_waitcnt vmcnt(0)') if STAMP else None
        stamp(a)
        stamp_flush(a, 1)
        a.label(end)
        a('s_endpgm')
        return [(nm, 224, 96) for (nm, _, _) in insts]
    DQ, DK = 76, 136
    a('v_mov_b32 %s, 0' % vr(P0 + 14))
    a('v_mov_b32 %s, 0' % vr(P0 + 15))
    a('v_and_b32 v20, 127, v6')
    a('v_mul_u32_u24 v20, %d, v20' % PK_STRIDE)
    a('v_add_u32 v20, %d, v20' % LDS_PK)
    a('v_lshl_add_u32 v21, v4, 3, v20')
    a('s_waitcnt lgkmcnt(5)')
    for m in range(5):
        a('v_mfma_f32_16x16x32_bf16 %s, %s, %s, 0' % (vr(DK + 4 * m, 4), vr(TA + 4 * m, 4), vr(P0 + 4, 4)))
    for m in range(5):
        a('v_mfma_f32_16x16x32_bf16 %s, %s, %s, %s' % (vr(DK + 4 * m, 4), vr(TBK + 4 * m, 4), vr(P0 + 12, 4), vr(DK + 4 * m, 4)))
    a('ds_write_b64 v21, %s offset:128' % vr(P0 + 8, 2))
    a('ds_write_b64 v21, %s offset:160' % vr(P0 + 10, 2))
    a('v_mov_b32 v12, %s' % vr(P0 + 12))
    a('v_mov_b32 v13, 0x3f80')
    a('v_mov_b32 v14, %s' % vr(P0 + 13))
    a('v_mov_b32 v15, 0x3f80')
    a('s_mov_b32 exec_lo, 0')
    a('s_mov_b32 exec_hi, 0xffff')
    a('ds_write_b128 v20, v[12:15] offset:208')
    a('s_mov_b64 exec, -1')
    a('s_mov_b32 s56, 0x%x' % f32bits(LOG2E))
    a('s_waitcnt lgkmcnt(3)')
    for m in range(5):
        a('v_mfma_f32_16x16x32_bf16 %s, %s, %s, 0' % (vr(DQ + 4 * m, 4), vr(TA + 4 * m, 4), vr(P0 + 0, 4)))
    for m in range(5):
        a('v_mfma_f32_16x16x32_bf16 %s, %s, %s, %s' % (vr(DQ + 4 * m, 4), vr(TBQ + 4 * m, 4), vr(P0 + 12, 4), vr(DQ + 4 * m, 4)))
    softmax18(a, DK, 's56', 22)
    a('v_lshl_add_u32 v21, v4, 5, v20')
    a('v_lshl_add_u32 v24, v4, 2, v20')
    a('ds_write_b128 v21, %s' % vr(DK, 4))
    a('ds_write_b128 v21, %s offset:16' % vr(DK + 4, 4))
    a('ds_write_b32 v24, %s offset:192' % vr(DK + 8))
    a('s_waitcnt lgkmcnt(0)')
    a('s_barrier')
    stamp(a)
    a('s_cmp_ge_u32 s26, 6')
    a('s_cbranch_scc1 qkvA_q')
    a('s_cmp_ge_u32 s26, 3')
    a('s_cselect_b32 s57, 1, 0')
    a('s_mul_i32 s58, s57, 3')
    a('s_sub_u32 s58, s26, s58')
    a('s_lshl_b32 s59, s57, 6')
    a('s_lshl_b32 s60, s58, 5')
    a('s_add_u32 s59, s59, s60')
    a('s_lshl_b32 s60, s57, 3')
    a('s_add_u32 s61, s60, 192')
    a('s_cmp_eq_u32 s58, 2')
    a('s_cselect_b32 s59, s61, s59')
    a('s_add_u32 s60, s60, 208')
    a('s_lshl_b32 s61, s57, 5')
    a('s_add_u32 s61, s61, 128')
    a('v_lshrrev_b32 v24, 2, v3')
    a('v_lshl_add_u32 v24, v4, 2, v24')
    a('v_mul_u32_u24 v24, %d, v24' % PK_STRIDE)
    a('v_and_b32 v25, 3, v3')
    a('v_lshl_add_u32 v24, v25, 3, v24')
    a('v_add_u32 v24, %d, v24' % LDS_PK)
    a('v_add_u32 v25, s59, v24')
    a('v_add_u32 v26, s61, v24')
    a('v_add_u32 v27, s60, v24')
    FB, FA, FT = 104, 120, 168
    for ks in range(4):
        for hf in range(2):
            off = (32 * ks + 16 * hf) * PK_STRIDE
            a('ds_read_b64_tr_b16 %s, v25 offset:%d' % (vr(FB + 4 * ks + 2 * hf, 2), off))
            a('ds_read_b64_tr_b16 %s, v26 offset:%d' % (vr(FA + 4 * ks + 2 * hf, 2), off))
            a('ds_read_b64_tr_b16 %s, v27 offset:%d' % (vr(FT + 4 * ks + 2 * hf, 2), off))
    a('s_lshl_b32 s59, s25, 1')
    a('s_add_u32 s59, s59, s57')
    a('s_mul_i32 s59, s59, %d' % (19 * 144))
    a('s_lshl_b32 s60, s58, 6')
    a('s_add_u32 s59, s59, s60')
    a('v_mul_u32_u24 v28, 576, v4')
    a('v_lshl_add_u32 v28, v3, 2, v28')
    DM, DT = 184, 188
    for ks in range(4):
        a('s_waitcnt lgkmcnt(%d)' % min(15, 6 * (3 - ks)))
        c = '0' if ks == 0 else vr(DM, 4)
        a('v_mfma_f32_16x16x32_bf16 %s, %s, %s, %s' % (vr(DM, 4), vr(FA + 4 * ks, 4), vr(FB + 4 * ks, 4), c))
        c = '0' if ks == 0 else vr(DT, 4)
        a('v_mfma_f32_16x16x32_bf16 %s, %s, %s, %s' % (vr(DT, 4), vr(FT + 4 * ks, 4), vr(FB + 4 * ks, 4), c))
    a('s_mov_b32 s60, -1')
    a('s_mov_b32 s61, 0x000f000f')
    a('s_cmp_eq_u32 s58, 2')
    a('s_cselect_b32 s60, s61, s60')
    a('s_mov_b32 exec_lo, s60')
    a('s_mov_b32 exec_hi, s60')
    a('s_nop 4')
    for r in range(4):
        a('buffer_atomic_add_f32 %s, v28, s[%d:%d], s59 offen offset:%d' % (vr(DM + r), SK, SK + 3, r * 144))
    a('s_and_b32 exec_lo, s60, 0xffff')
    a('s_mov_b32 exec_hi, 0')
    for r in range(3):
        a('buffer_atomic_add_f32 %s, v28, s[%d:%d], s59 offen offset:%d' % (vr(DT + r), SK, SK + 3, (16 + r) * 144))
    a('s_mov_b64 exec, -1')
    a.label('qkvA_q')
    softmax18(a, DQ, 's56', 22)
    a('s_lshl_b32 s57, s24, 2')
    a('s_add_u32 s57, s57, s27')
    a('s_lshl_b32 s57, s57, 5')
    a('s_lshl_b32 s58, s25, 1')
    a('s_add_u32 s57, s57, s58')
    a('s_mul_i32 s57, s57, 2304')
    a('v_lshrrev_b32 v24, 1, v4')
    a('v_mul_u32_u24 v24, 2304, v24')
    a('v_and_b32 v25, 1, v4')
    a('v_and_b32 v26, 31, v6')
    a('v_lshl_add_u32 v27, v25, 10, v24')
    a('v_lshl_add_u32 v27, v26, 4, v27')
    a('v_lshl_add_u32 v28, v26, 3, v24')
    a('v_lshl_add_u32 v28, v25, 2, v28')
    a('buffer_store_dwordx4 %s, v27, s[%d:%d], s57 offen' % (vr(DQ, 4), SO, SO + 3))
    a('buffer_store_dwordx4 %s, v27, s[%d:%d], s57 offen offset:512' % (vr(DQ + 4, 4), SO, SO + 3))
    a('buffer_store_dword %s, v28, s[%d:%d], s57 offen offset:2048' % (vr(DQ + 8), SO, SO + 3))
    stamp(a)
    a('s_waitcnt vmcnt(0)') if STAMP else None
    stamp(a)
    stamp_flush(a, 0)
    a.label(end)
    a('s_endpgm')
    return [(nm, 228, 96) for (nm, _, _) in insts]


A_K0, A_K1, A_KT, A_V0, A_V1, A_VT = 0, 8192, 16384, 20480, 20480 + 8256, 20480 + 2 * 8256
A_LDS = A_VT + 8192


def gen_attn(a, insts):
    SR, SO, SP = 32, 44, 36
    for (nm, pfN) in insts:
        entry(a, nm)
        a('s_cmp_ge_u32 s2, 256')
        a('s_cbranch_scc1 attn_end')
        load_kernargs(a)
        a('s_mov_b32 s40, %d' % pfN)
        a('s_branch attn_body')
    a.label('attn_body')
    a('s_bfe_u32 s41, s2, 0x10002')
    a('s_lshl_b32 s24, s41, 4')
    a('s_bfe_u32 s25, s2, 0x40003')
    a('s_add_u32 s24, s24, s25')
    a('s_and_b32 s25, s2, 3')
    a('s_lshl_b32 s25, s25, 1')
    a('s_lshr_b32 s26, s2, 7')
    a('s_add_u32 s25, s25, s26')
    a('v_lshrrev_b32 v2, 6, v0')
    a('v_and_b32 v1, 63, v0')
    a('v_readfirstlane_b32 s26, v2')
    a('v_and_b32 v3, 31, v1')
    a('v_lshrrev_b32 v4, 5, v1')
    a('v_lshlrev_b32 v5, 4, v1')
    a('s_lshl_b32 s27, s24, 18')
    a('s_add_u32 s27, s27, 0x%x' % REC)
    a('s_lshl_b32 s28, s25, 8')
    a('s_sub_u32 s28, s28, 256')
    a('s_lshl_b32 s29, s26, 6')
    a('s_add_u32 s28, s28, s29')
    a('s_lshl_b32 s29, s26, 10')
    a('s_lshl_b32 s30, s28, 4')
    a('s_lshl_b32 s31, s28, 3')
    a('s_add_u32 s31, s31, %d' % R_KT)
    a('s_waitcnt lgkmcnt(0)')
    STAMP_REGS[:] = list(range(48, 56)) + list(range(88, 94))
    stamp(a)
    srd(a, SR, P_WS, 's27', REC_HEAD)

    def dma(plane, ldsoff):
        a('s_add_u32 m0, s29, %d' % ldsoff)
        a('s_add_u32 s42, s30, %d' % plane)
        a('buffer_load_dwordx4 v5, s[%d:%d], s42 offen lds' % (SR, SR + 3))
    dma(R_K0, A_K0)
    dma(R_K1, A_K1)
    a('s_lshr_b32 s42, s29, 1')
    a('s_add_u32 m0, s42, %d' % A_KT)
    a('s_mov_b32 exec_hi, 0')
    a('buffer_load_dwordx4 v5, s[%d:%d], s31 offen lds' % (SR, SR + 3))
    a('s_mov_b32 exec_hi, -1')
    a('s_lshl_b32 s31, s25, 8')
    a('s_lshl_b32 s27, s26, 5')
    a('s_add_u32 s31, s31, s27')
    a('v_add_u32 v9, s31, v3')
    a('v_lshlrev_b32 v10, 4, v9')
    a('v_lshl_add_u32 v10, v4, 15, v10')
    a('v_lshlrev_b32 v9, 3, v9')
    Q1, Q2 = 12, 16
    for r in range(4):
        a('v_mov_b32 v%d, 0' % (Q2 + r))
    a('s_mov_b32 s42, %d' % R_QT)
    a('buffer_load_dwordx4 %s, v10, s[%d:%d], 0 offen' % (vr(Q1, 4), SR, SR + 3))
    a('s_mov_b32 exec_hi, 0')
    a('buffer_load_dwordx2 %s, v9, s[%d:%d], s42 offen' % (vr(Q2, 2), SR, SR + 3))
    a('s_mov_b32 exec_hi, -1')
    dma(R_V0, A_V0)
    dma(R_V1, A_V1)
    dma(R_VT, A_VT)
    a('s_mov_b32 s30, s31')
    srd(a, SO, P_WS, OIMG, OIMG_SZ)
    srd(a, SP, P_WS, WQA, WQ_SZ)
    a('s_lshr_b32 s42, s2, 3')
    pf_setup(a, 43, 40, WQ_SZ // 2, 41, 42, 26, 28)
    a('v_lshlrev_b32 v6, 7, v1')
    a('buffer_load_dword v7, v6, s[%d:%d], s43 offen' % (SP, SP + 3))
    a('s_mov_b32 s43, %d' % A_V0)
    S = lambda t: 64 + 16 * t
    OA = 208
    KB = [224, 232, 240]
    for b in KB:
        for r in range(6, 8):
            a('v_mov_b32 v%d, 0' % (b + r))
    a('v_lshlrev_b32 v11, 2, v4')
    a('v_sub_u32 v11, v3, v11')
    MK = 56
    for n in range(16):
        a('v_cmp_gt_i32 s[%d:%d], %d, v11' % (MK + 2 * n, MK + 2 * n + 1, 8 * (n >> 2) + (n & 3)))
    MB = 28
    a('v_mov_b32 v26, 0xffff')
    a('v_mov_b32 v27, 0xffff0000')
    for n in range(8):
        a('v_cndmask_b32 v%d, 0, v26, s[%d:%d]' % (MB + n, MK + 4 * n, MK + 4 * n + 1))
        a('v_cndmask_b32 v25, 0, v27, s[%d:%d]' % (MK + 4 * n + 2, MK + 4 * n + 3))
        a('v_or_b32 v%d, v%d, v25' % (MB + n, MB + n))
    a('v_add_u32 v20, s27, v3')
    a('v_lshlrev_b32 v21, 4, v20')
    a('v_lshl_add_u32 v21, v4, 13, v21')
    a('v_lshlrev_b32 v20, 3, v20')
    a('v_add_u32 v20, %d, v20' % A_KT)
    a('v_bfe_u32 v22, v1, 2, 2')
    a('v_lshl_add_u32 v22, v4, 2, v22')
    a('v_add_u32 v22, s27, v22')
    a('v_lshlrev_b32 v22, 4, v22')
    a('v_bfe_u32 v23, v1, 1, 1')
    a('v_mul_u32_u24 v23, %d, v23' % (A_V1 - A_V0))
    a('v_and_b32 v25, 1, v1')
    a('v_lshl_add_u32 v23, v25, 3, v23')
    a('v_and_b32 v25, 16, v1')
    a('v_cmp_eq_u32 vcc, 0, v25')
    a('v_mov_b32 v25, %d' % (A_VT - A_V0))
    a('v_mov_b32 v24, 0xf149f2ca')
    a('v_cndmask_b32 v23, v25, v23, vcc')
    a('v_add3_u32 v22, v22, v23, s43')
    a('s_sub_u32 s42, 8, s26')
    a('s_cmp_eq_u32 s25, 0')
    a('s_cselect_b32 s42, s42, 0')
    stamp(a)
    a('s_waitcnt vmcnt(4)')
    a('s_barrier')
    stamp(a)

    def kread(t):
        b = KB[t % 3]
        a('ds_read_b128 %s, v21 offset:%d' % (vr(b, 4), t * 512))
        a('ds_read_b64 %s, v20 offset:%d' % (vr(b + 4, 2), t * 256))

    def tmax(t, first):
        a('s_cmp_le_u32 s42, %d' % t)
        a('s_cbranch_scc1 attn_ok%d' % t)
        for n in range(16):
            a('v_mov_b32 %s, v24' % vr(S(t) + n))
        a.label('attn_ok%d' % t)
        if t == 0:
            return
        for n in range(0, 16, 2):
            m = 25 + ((n >> 1) & 1)
            if first and n < 4:
                a('v_max_f32 v%d, %s, %s' % (m, vr(S(t) + n), vr(S(t) + n + 1)))
            else:
                a('v_max3_f32 v%d, v%d, %s, %s' % (m, m, vr(S(t) + n), vr(S(t) + n + 1)))
    kread(0)
    kread(1)
    for t in range(9):
        if t + 2 < 9:
            kread(t + 2)
            a('s_waitcnt lgkmcnt(4)')
        elif t + 1 < 9:
            a('s_waitcnt lgkmcnt(2)')
        else:
            a('s_waitcnt lgkmcnt(0)')
        b = KB[t % 3]
        a('v_mfma_f32_32x32x16_bf16 %s, %s, %s, 0' % (vr(S(t), 16), vr(b, 4), vr(Q1, 4)))
        a('v_mfma_f32_32x32x16_bf16 %s, %s, %s, %s' % (vr(S(t), 16), vr(b + 4, 4), vr(Q2, 4), vr(S(t), 16)))
        if t >= 2:
            if t == 2:
                a('s_nop 3')
            tmax(t - 2, t == 3)
    tmax(7, False)
    stamp(a)
    a('s_waitcnt vmcnt(1)')
    a('s_barrier')
    stamp(a)
    VB = [224, 232, 240, 248]
    seq = [1, 2, 3, 4, 5, 6, 7, 0, 8]

    def vread(k):
        t = seq[k]
        b = VB[k % 4]
        for ks in range(2):
            for hf in range(2):
                a('ds_read_b64_tr_b16 %s, v22 offset:%d' % (vr(b + 4 * ks + 2 * hf, 2), (32 * t + 16 * ks + 8 * hf) * 16))
    vread(0)
    vread(1)
    vread(2)
    for n in range(16):
        a('v_cndmask_b32 %s, %s, %s, s[%d:%d]' % (vr(S(0) + n), vr(S(8) + n), vr(S(0) + n), MK + 2 * n, MK + 2 * n + 1))
    for n in range(0, 16, 2):
        m = 25 + ((n >> 1) & 1)
        a('v_max3_f32 v%d, v%d, %s, %s' % (m, m, vr(S(0) + n), vr(S(0) + n + 1)))
    a('v_max_f32 v25, v25, v26')
    a('v_mov_b32 v26, v25')
    a('s_mov_b32 s28, 0x%x' % f32bits(LOG2E * 18 ** -0.5))
    a('s_nop 0')
    a('v_permlane32_swap_b32 v25, v26')
    stamp(a)
    a('s_nop 0')
    a('v_max_f32 v25, v25, v26')
    a('v_mul_f32 v25, s28, v25')
    for k in range(9):
        t = seq[k]
        if t != 8:
            for n in range(16):
                a('v_fma_f32 %s, %s, s28, -v25' % (vr(S(t) + n), vr(S(t) + n)))
            for n in range(16):
                a('v_exp_f32 %s, %s' % (vr(S(t) + n), vr(S(t) + n)))
            for n in range(8):
                a('v_cvt_pk_bf16_f32 %s, %s, %s' % (vr(S(t) + n), vr(S(t) + 2 * n), vr(S(t) + 2 * n + 1)))
        if t == 0:
            for n in range(8):
                a('v_bfi_b32 %s, v%d, 0, %s' % (vr(S(8) + n), MB + n, vr(S(0) + n)))
            for n in range(8):
                a('v_and_b32 %s, v%d, %s' % (vr(S(0) + n), MB + n, vr(S(0) + n)))
        rem = min(8 - k, 2)
        a('s_waitcnt lgkmcnt(%d)' % (4 * rem))
        b = VB[k % 4]
        c = '0' if k == 0 else vr(OA, 16)
        a('v_mfma_f32_32x32x16_bf16 %s, %s, %s, %s' % (vr(OA, 16), vr(b, 4), vr(S(t), 4), c))
        a('v_mfma_f32_32x32x16_bf16 %s, %s, %s, %s' % (vr(OA, 16), vr(b + 4, 4), vr(S(t) + 4, 4), vr(OA, 16)))
        if k + 3 < 9:
            vread(k + 3)
    stamp(a)
    a('s_lshr_b32 s30, s30, 5')
    a('s_mul_i32 s30, s30, 36864')
    a('s_lshr_b32 s31, s24, 1')
    a('s_lshl_b32 s31, s31, 11')
    a('s_and_b32 s29, s24, 1')
    a('s_lshl_b32 s29, s29, 9')
    a('s_add_u32 s31, s31, s29')
    a('s_add_u32 s31, s31, s30')
    a('v_bfe_u32 v26, v1, 4, 1')
    a('v_and_b32 v27, 15, v1')
    a('v_lshlrev_b32 v27, 4, v27')
    a('v_lshl_add_u32 v27, v26, 10, v27')
    a('v_lshl_add_u32 v28, v4, 8, v27')
    a('s_lshr_b32 s29, s24, 4')
    a('s_lshl_b32 s29, s29, 11')
    a('s_add_u32 s30, s30, s29')
    a('s_bfe_u32 s29, s24, 0x20002')
    a('s_lshl_b32 s29, s29, 8')
    a('s_add_u32 s30, s30, s29')
    a('s_and_b32 s29, s24, 3')
    a('s_lshl_b32 s29, s29, 2')
    a('s_add_u32 s30, s30, s29')
    a('s_add_u32 s30, s30, 32768')
    a('v_rcp_f32 v25, %s' % vr(OA + 10))
    a('s_nop 0')
    for n in range(10):
        a('v_mul_f32 %s, v25, %s' % (vr(OA + n), vr(OA + n)))
    for n in range(5):
        a('v_cvt_pk_bf16_f32 %s, %s, %s' % (vr(OA + n), vr(OA + 2 * n), vr(OA + 2 * n + 1)))
    a('buffer_store_dwordx4 %s, v28, s[%d:%d], s31 offen' % (vr(OA, 4), SO, SO + 3))
    a('s_mov_b32 exec_hi, 0')
    a('buffer_store_dword %s, v27, s[%d:%d], s30 offen' % (vr(OA + 4), SO, SO + 3))
    stamp(a)
    a('s_waitcnt vmcnt(0)') if STAMP else None
    stamp(a)
    stamp_flush(a, 2)
    STAMP_REGS[:] = list(range(72, 94))
    a.label('attn_end')
    a('s_endpgm')
    return [(nm, 256, 96) for (nm, _) in insts]


def gen_wo(a, kind, insts):
    body = 'wo%s_body' % kind
    end = 'wo%s_end' % kind
    SX, SY, SW, SI, SK, SP = 32, 36, 40, 44, 48, 52
    for (nm, xsrc, ydst, kvoff) in insts:
        entry(a, nm)
        a('s_cmp_ge_u32 s2, 256')
        a('s_cbranch_scc1 %s' % end)
        load_kernargs(a)
        a('s_waitcnt lgkmcnt(0)')
        for (S_, src) in ((SX, xsrc), (SY, ydst)):
            if src[0] == 'in':
                srd(a, S_, src[1], 0, X_SZ)
            else:
                srd(a, S_, P_WS, src[1], X_SZ)
        if kind == 'A':
            srd(a, SK, P_WS, kvoff, KV_SZ)
        a('s_mov_b32 s61, %d' % (1 if ydst[0] == 'in' else 0))
        a('s_branch %s' % body)
    a.label(body)
    stamp(a)
    vm = VM(a)
    if kind == 'A':
        srd(a, SI, P_WS, PHIQ, PHIQ_SZ)
    else:
        srd(a, SI, P_WS, OIMG, OIMG_SZ)
    a('s_and_b32 s24, s2, 3')
    a('s_lshl_b32 s24, s24, 4')
    a('s_lshr_b32 s25, s2, 4')
    a('s_add_u32 s24, s24, s25')
    a('s_bfe_u32 s25, s2, 0x20002')
    a('s_and_b32 s27, s25, 1')
    a('s_lshl_b32 s27, s27, 1')
    a('s_lshr_b32 s25, s25, 1')
    a('s_add_u32 s25, s25, s27')
    a('v_lshrrev_b32 v2, 6, v0')
    a('v_and_b32 v1, 63, v0')
    a('v_readfirstlane_b32 s26, v2')
    a('v_lshlrev_b32 v5, 4, v1')
    WF = 96
    LO = 90112
    srd(a, SW, P_WS, WOA if kind == 'A' else WOB, WO_SZ)
    a('s_mul_i32 s27, s25, 9')
    a('s_add_u32 s27, s27, s26')
    a('s_mul_i32 s31, s27, 18432')
    wst = {'t': 0}

    def wload(n):
        for _ in range(n):
            t = wst['t']
            if t >= 18:
                return
            if t and t % 4 == 0:
                a('s_add_u32 s31, s31, 4096')
            a('buffer_load_dwordx4 %s, v5, s[%d:%d], s31 offen offset:%d' % (vr(WF + 4 * t, 4), SW, SW + 3, (t & 3) * 1024))
            vm.issue(('w', t))
            wst['t'] += 1
    if kind == 'B':
        LO = 0
        a('s_lshl_b32 s28, s26, 12')
        a('s_mov_b32 m0, s28')
        a('s_mul_i32 s29, s24, 36864')
        a('s_add_u32 s28, s28, s29')
        for p in range(4):
            a('buffer_load_dwordx4 v5, s[%d:%d], s28 offen offset:%d lds' % (SI, SI + 3, p * 1024))
            vm.issue()
        vm.tags['img'] = vm.n
        a('s_barrier')
        wload(6)
    else:
        a('s_cmp_eq_u32 s26, 8')
        a('s_cbranch_scc1 woA_w8')
        a('s_mul_i32 s28, s26, 11264')
        a('s_mov_b32 m0, s28')
        a('s_mul_i32 s28, s26, 10944')
        PH = 12
        a('s_lshl_b32 s29, s24, 5')
        a('s_lshl_b32 s30, s26, 2')
        a('s_add_u32 s29, s29, s30')
        a('s_mul_i32 s29, s29, 2304')
        a('v_and_b32 v3, 31, v1')
        a('v_lshlrev_b32 v6, 3, v3')
        for hh in range(4):
            for r in range(8, 12):
                a('v_mov_b32 v%d, 0' % (PH + 12 * hh + r))
        pieces_for = [3, 6, 9, 11]
        p = 0
        for hh in range(4):
            while p < pieces_for[hh]:
                if p in (4, 8):
                    a('s_add_u32 m0, m0, 4096')
                    a('s_add_u32 s28, s28, 4096')
                a('buffer_load_dwordx4 v5, s[%d:%d], s28 offen offset:%d lds' % (SK, SK + 3, (p & 3) * 1024))
                vm.issue()
                p += 1
            a('buffer_load_dwordx4 %s, v5, s[%d:%d], s29 offen' % (vr(PH + 12 * hh, 4), SI, SI + 3))
            a('buffer_load_dwordx4 %s, v5, s[%d:%d], s29 offen offset:1024' % (vr(PH + 12 * hh + 4, 4), SI, SI + 3))
            a('s_mov_b32 exec_hi, 0')
            a('buffer_load_dwordx2 %s, v6, s[%d:%d], s29 offen offset:2048' % (vr(PH + 12 * hh + 8, 2), SI, SI + 3))
            a('s_mov_b32 exec_hi, -1')
            vm.issue(); vm.issue(); vm.issue(('phi', hh))
            if hh < 3:
                a('s_add_u32 s29, s29, 2304')
        a.label('woA_w8')
        a('s_barrier')
        wload(4)
    a('v_and_b32 v7, 15, v1')
    a('v_bfe_u32 v8, v1, 4, 1')
    a('v_mul_u32_u24 v2, 18432, v8')
    a('v_lshl_add_u32 v2, v7, 4, v2')
    a('v_lshrrev_b32 v4, 5, v1')
    a('v_lshl_add_u32 v7, v4, 8, v2')
    a('s_mul_i32 s29, s24, 36864')
    a('s_lshl_b32 s28, s27, 9')
    a('s_add_u32 s29, s29, s28')
    if kind == 'A':
        srd(a, SP, P_WS, WQB, WQ_SZ)
        a('s_bfe_u32 s56, s2, 0x10002')
        a('s_lshr_b32 s57, s2, 3')
        a('s_mov_b32 s58, 126')
        pf_setup(a, 60, 58, WQ_SZ // 2, 56, 57, 26, 59)
    stamp(a)

    def xload():
        a('buffer_load_dwordx4 v[48:51], v7, s[%d:%d], s29 offen' % (SX, SX + 3))
        vm.issue('x')
    if kind == 'A':
        a('s_cmp_eq_u32 s26, 8')
        a('s_cbranch_scc1 woA_s2')
        a('v_min_u32 v8, 18, v3')
        a('v_mul_u32_u24 v8, 144, v8')
        a('s_mul_i32 s28, s26, 11264')
        a('v_add_u32 v8, s28, v8')
        a('v_lshrrev_b32 v4, 5, v1')
        a('v_lshl_add_u32 v9, v4, 5, v8')
        a('v_bfe_u32 v10, v1, 4, 1')
        a('v_and_b32 v11, 15, v1')
        a('v_lshlrev_b32 v11, 4, v11')
        a('v_lshl_add_u32 v11, v10, 10, v11')
        a('v_lshl_add_u32 v10, v4, 8, v11')
        a('s_lshl_b32 s28, s26, 12')
        a('s_add_u32 s28, s28, %d' % LO)
        a('v_add_u32 v10, s28, v10')
        a('s_lshr_b32 s28, s26, 2')
        a('s_lshl_b32 s28, s28, 11')
        a('s_and_b32 s30, s26, 3')
        a('s_lshl_b32 s30, s30, 8')
        a('s_add_u32 s28, s28, s30')
        a('s_add_u32 s28, s28, %d' % (LO + 32768))
        a('v_add_u32 v11, s28, v11')
        ST, OC = 60, 80
        for hh in range(4):
            o = hh * 2736
            vm.wait(('phi', hh))
            a('ds_read_b128 %s, v9 offset:%d' % (vr(ST, 4), o))
            a('ds_read_b128 %s, v9 offset:%d' % (vr(ST + 4, 4), o + 16))
            a('ds_read_b128 %s, v9 offset:%d' % (vr(ST + 8, 4), o + 64))
            a('ds_read_b128 %s, v9 offset:%d' % (vr(ST + 12, 4), o + 80))
            a('ds_read_b128 %s, v8 offset:%d' % (vr(ST + 16, 4), o + 128))
            a('s_waitcnt lgkmcnt(0)')
            for n in range(10):
                a('v_cvt_pk_bf16_f32 %s, %s, %s' % (vr(ST + n), vr(ST + 2 * n), vr(ST + 2 * n + 1)))
            a('v_mov_b32 %s, 0' % vr(ST + 10))
            a('v_mov_b32 %s, 0' % vr(ST + 11))
            a('s_nop 1')
            P = PH + 12 * hh
            a('v_mfma_f32_32x32x16_bf16 %s, %s, %s, 0' % (vr(OC, 16), vr(ST, 4), vr(P, 4)))
            a('v_mfma_f32_32x32x16_bf16 %s, %s, %s, %s' % (vr(OC, 16), vr(ST + 4, 4), vr(P + 4, 4), vr(OC, 16)))
            a('v_mfma_f32_32x32x16_bf16 %s, %s, %s, %s' % (vr(OC, 16), vr(ST + 8, 4), vr(P + 8, 4), vr(OC, 16)))
            a('s_nop 11')
            a('v_add_f32 v2, 0x%x, %s' % (f32bits(1e-6), vr(OC + 10)))
            a('v_rcp_f32 v2, v2')
            a('s_nop 0')
            for n in range(10):
                a('v_mul_f32 %s, v2, %s' % (vr(OC + n), vr(OC + n)))
            for n in range(5):
                a('v_cvt_pk_bf16_f32 %s, %s, %s' % (vr(OC + n), vr(OC + 2 * n), vr(OC + 2 * n + 1)))
            a('ds_write_b128 v10, %s offset:%d' % (vr(OC, 4), (hh >> 1) * 2048 + (hh & 1) * 512))
            a('s_mov_b32 exec_hi, 0')
            a('ds_write_b32 v11, %s offset:%d' % (vr(OC + 4), hh * 4))
            a('s_mov_b32 exec_hi, -1')
        a('s_waitcnt lgkmcnt(0)')
        a.label('woA_s2')
        wload(6)
        xload()
    else:
        xload()
        vm.wait('img')
    stamp(a)
    a('s_barrier')
    stamp(a)
    a('v_add_u32 v12, %d, v5' % LO)
    OB = [16, 24, 32, 40]
    C0, C1 = 56, 60

    def oread(t):
        b = OB[t % 4]
        a('ds_read_b128 %s, v12 offset:%d' % (vr(b, 4), t * 2048))
        a('ds_read_b128 %s, v12 offset:%d' % (vr(b + 4, 4), t * 2048 + 1024))
    for t in range(3):
        oread(t)
    pfdone = False
    for t in range(18):
        wload(2)
        if kind == 'A' and wst['t'] >= 18 and not pfdone:
            a('v_lshlrev_b32 v13, 7, v1')
            a('buffer_load_dword v14, v13, s[%d:%d], s60 offen' % (SP, SP + 3))
            vm.issue()
            pfdone = True
        if t + 3 < 18:
            oread(t + 3)
        rem = min(17 - t, 3)
        a('s_waitcnt vmcnt(%d) lgkmcnt(%d)' % (vm.cnt(('w', t)), 2 * rem))
        b = OB[t % 4]
        a('v_mfma_f32_16x16x32_bf16 %s, %s, %s, %s' % (vr(C0, 4), vr(WF + 4 * t, 4), vr(b, 4), '0' if t == 0 else vr(C0, 4)))
        a('v_mfma_f32_16x16x32_bf16 %s, %s, %s, %s' % (vr(C1, 4), vr(WF + 4 * t, 4), vr(b + 4, 4), '0' if t == 0 else vr(C1, 4)))
    stamp(a)
    for i in range(4):
        a('v_lshlrev_b32 v%d, 16, v%d' % (16 + 2 * i, 48 + i))
        a('v_and_b32 v%d, 0xffff0000, v%d' % (17 + 2 * i, 48 + i))
    a('s_cmp_eq_u32 s61, 0')
    a('s_cbranch_scc1 %s_fm' % body)
    a('v_and_b32 v7, 31, v1')
    a('v_mul_u32_u24 v7, 1152, v7')
    a('v_lshrrev_b32 v4, 5, v1')
    a('v_lshl_add_u32 v7, v4, 4, v7')
    a('s_mul_i32 s29, s24, 36864')
    a('s_lshl_b32 s28, s27, 5')
    a('s_add_u32 s29, s29, s28')
    a.label('%s_fm' % body)
    a('s_nop 1')
    for i in range(4):
        a('v_cvt_pk_bf16_f32 v%d, v%d, v%d' % (24 + i, C0 + 2 * i, C0 + 2 * i + 1))
    a('s_nop 1')
    a('v_permlane16_swap_b32 v24, v26')
    a('v_permlane16_swap_b32 v25, v27')
    for i in range(4):
        a('v_lshlrev_b32 v%d, 16, v%d' % (28 + 2 * i, 24 + i))
        a('v_and_b32 v%d, 0xffff0000, v%d' % (29 + 2 * i, 24 + i))
    for i in range(8):
        a('v_add_f32 v%d, v%d, v%d' % (16 + i, 16 + i, 28 + i))
    for i in range(4):
        a('v_cvt_pk_bf16_f32 v%d, v%d, v%d' % (24 + i, 16 + 2 * i, 17 + 2 * i))
    a('buffer_store_dwordx4 v[24:27], v7, s[%d:%d], s29 offen' % (SY, SY + 3))
    stamp(a)
    a('s_waitcnt vmcnt(0)') if STAMP else None
    stamp(a)
    stamp_flush(a, 3 if kind == 'A' else 4)
    a.label(end)
    a('s_endpgm')
    return [(i[0], 168, 96) for i in insts]


def build():
    a = Asm()
    ks = []
    ks += gen_prep(a)
    ks += gen_qkv(a, 'A', [('qkva1_kernel', ('ws', X0), KV1), ('qkva3_kernel', ('ws', X2), KV3)])
    ks += gen_qkv(a, 'B', [('qkvb2_kernel', ('ws', X1), 0), ('qkvb4_kernel', ('ws', X3), 0)])
    ks += gen_attn(a, [('attn2_kernel', 126), ('attn4_kernel', 0)])
    ks += gen_wo(a, 'A', [('woa1_kernel', ('ws', X0), ('ws', X1), KV1), ('woa3_kernel', ('ws', X2), ('ws', X3), KV3)])
    ks += gen_wo(a, 'B', [('wob2_kernel', ('ws', X1), ('ws', X2), 0), ('wob4_kernel', ('ws', X3), ('in', P_OUT), 0)])
    LQA, LQB = 143 * 1024 + 512, 127 * 1024 + 512
    launches = [
        ('prep_kernel', NPREP, 192, 6144),
        ('qkva1_kernel', 256, 512, LQA),
        ('woa1_kernel', 256, 576, 90112 + 36864),
        ('qkvb2_kernel', 256, 512, LQB),
        ('attn2_kernel', 256, 512, A_LDS),
        ('wob2_kernel', 256, 576, 36864),
        ('qkva3_kernel', 256, 512, LQA),
        ('woa3_kernel', 256, 576, 90112 + 36864),
        ('qkvb4_kernel', 256, 512, LQB),
        ('attn4_kernel', 256, 512, A_LDS),
        ('wob4_kernel', 256, 576, 36864),
    ]
    out = []
    out.append('; generated by work/gen.py -- interleaved hedgehog linear attention / sliding window attention stack')
    for (k, g, b, l) in launches:
        out.append('; @launch kernel=%s grid=(%d,1,1) block=(%d,1,1) lds=%d' % (k, g, b, l))
    out.append('.amdgcn_target "amdgcn-amd-amdhsa--gfx950"')
    out.append('.text')
    out += a.L
    out.append('.section .rodata,"a"')
    for (k, v, s) in ks:
        out.append('.p2align 6')
        out.append(kdesc(k, v, s))
    return '\n'.join(out) + '\n'


if __name__ == '__main__':
    if len(sys.argv) > 2 and sys.argv[2] == 'stamp':
        STAMP = True
    dst = sys.argv[1] if len(sys.argv) > 1 else 'cdna_kernels/%s.s' % NAME
    open(dst, 'w').write(build())
    print('wrote', dst)
```

```python
import sys, struct

NAME = 'interleave_layers__linear_kernel_hedgehog__sliding_block__prompt'

WQA = 0x000000
WQB = 0x200000
WQ_SZ = 16 * 18 * 7 * 1024
WOA = 0x400000
WOB = 0x500000
WO_SZ = 4 * 9 * 18 * 1024
CSA = 0x600000
CSB = 0x608000
CS_SZ = 16 * 3 * 448
TPHI = 0x610000
TPHI_SZ = 16 * 15 * 1024
KV1 = 0x660000
KV3 = 0x660000 + 32 * 2944
KV_HEAD = 2944
KV_SZ = 32 * KV_HEAD
X1 = 0x700000
X2 = 0x940000
X3 = 0xB80000
X_SZ = 2048 * 1152
PHIQ = 0xE00000
PHIQ_SZ = 64 * 32 * 2304
REC = 0x1300000
REC_HEAD = 262144
REC_SZ = 32 * REC_HEAD
R_Q0, R_K0, R_K1, R_V0, R_V1, R_VT, R_QT, R_KT = 0, 65536, 98304, 131072, 163840, 196608, 229376, 245760
X0 = 0x1F00000
OIMG = 0x1C00000
OIMG_SZ = 64 * 36864

LOG2E = 1.4426950408889634


def f32bits(x):
    return struct.unpack('<I', struct.pack('<f', x))[0]


class Asm:
    def __init__(self):
        self.L = []

    def __call__(self, s):
        self.L.append('    ' + s)

    def label(self, l):
        self.L.append(l + ':')

    def c(self, s):
        self.L.append('    ; ' + s)

    def raw(self, s):
        self.L.append(s)


class VM:
    def __init__(self, a):
        self.a = a
        self.n = 0
        self.tags = {}

    def issue(self, tag=None):
        self.n += 1
        if tag is not None:
            self.tags[tag] = self.n

    def cnt(self, tag):
        return self.n - self.tags[tag]

    def wait(self, tag):
        self.a('s_waitcnt vmcnt(%d)' % self.cnt(tag))


def vr(b, n=1):
    return 'v%d' % b if n == 1 else 'v[%d:%d]' % (b, b + n - 1)


def sr(b, n=1):
    return 's%d' % b if n == 1 else 's[%d:%d]' % (b, b + n - 1)


P_AX, P_AWQKV, P_AWPHI, P_AWO, P_BX, P_BWQKV, P_BWO, P_OUT, P_DBG, P_WS = 4, 6, 8, 10, 12, 14, 16, 18, 20, 22


def load_kernargs(a):
    a('s_load_dwordx16 s[4:19], s[0:1], 0')
    a('s_load_dwordx4 s[20:23], s[0:1], 64')


def srd(a, d, base, off, size):
    if off == 0:
        a('s_mov_b32 s%d, s%d' % (d, base))
        a('s_mov_b32 s%d, s%d' % (d + 1, base + 1))
    else:
        o = off if isinstance(off, str) else '0x%x' % off
        a('s_add_u32 s%d, s%d, %s' % (d, base, o))
        a('s_addc_u32 s%d, s%d, 0' % (d + 1, base + 1))
    a('s_mov_b32 s%d, 0x%x' % (d + 2, size))
    a('s_mov_b32 s%d, 0x00020000' % (d + 3))


def kdesc(name, vgpr, sgpr=96):
    acc = (vgpr + 3) // 4 * 4
    return '''.amdhsa_kernel %s
  .amdhsa_next_free_vgpr %d
  .amdhsa_next_free_sgpr %d
  .amdhsa_accum_offset %d
  .amdhsa_group_segment_fixed_size 0
  .amdhsa_kernarg_size 80
  .amdhsa_user_sgpr_count 2
  .amdhsa_user_sgpr_kernarg_segment_ptr 1
  .amdhsa_system_sgpr_workgroup_id_x 1
.end_amdhsa_kernel
''' % (name, vgpr, sgpr, acc)


def entry(a, name):
    a.raw('.p2align 8')
    a.raw('.globl %s' % name)
    a.raw('.type %s,@function' % name)
    a.label(name)


STAMP = False
STAMP_OFF = 0x3000000
_stamp_n = [0]
STAMP_REGS = list(range(72, 94))


def stamp(a):
    if not STAMP:
        return
    n = _stamp_n[0]
    a('s_memtime s[94:95]')
    a('s_waitcnt lgkmcnt(0)')
    a('s_mov_b32 s%d, s94' % STAMP_REGS[n])
    _stamp_n[0] += 1


def stamp_rt(a):
    if not STAMP:
        return
    n = _stamp_n[0]
    a('s_memrealtime s[94:95]')
    a('s_waitcnt lgkmcnt(0)')
    a('s_mov_b32 s%d, s94' % STAMP_REGS[n])
    _stamp_n[0] += 1


def stamp_flush(a, kid):
    if not STAMP:
        return
    a('s_getreg_b32 s%d, hwreg(HW_REG_XCC_ID)' % STAMP_REGS[_stamp_n[0]])
    n = _stamp_n[0] + 1
    _stamp_n[0] = 0
    a('s_mov_b64 exec, 1')
    a('s_add_u32 s68, s%d, 0x%x' % (P_WS, STAMP_OFF + kid * 0x100000))
    a('s_addc_u32 s69, s%d, 0' % (P_WS + 1))
    a('s_mov_b32 s70, 0x100000')
    a('s_mov_b32 s71, 0x00020000')
    a('s_lshl_b32 s94, s2, 4')
    a('s_add_u32 s94, s94, s26')
    a('s_lshl_b32 s94, s94, 7')
    a('v_mov_b32 v1, 0')
    for i in range(n):
        a('v_mov_b32 v2, s%d' % STAMP_REGS[i])
        a('buffer_store_dword v2, v1, s[68:71], s94 offen offset:%d' % (4 * i))
        a('s_nop 1')


def bf16r(a, v, tmp):
    a('v_cvt_pk_bf16_f32 %s, %s, %s' % (vr(tmp), vr(v), vr(v)))
    a('v_lshlrev_b32 %s, 16, %s' % (vr(v), vr(tmp)))


def magic(dv, maxv):
    for sh in range(4, 24):
        mul = (1 << sh) // dv + 1
        if all((x * mul) >> sh == x // dv for x in range(maxv + 1)):
            return mul, sh
    raise ValueError


def sdiv(a, dq, dr, src, dv, maxv):
    mul, sh = magic(dv, maxv)
    a('s_mul_i32 s%d, s%d, %d' % (dq, src, mul))
    a('s_lshr_b32 s%d, s%d, %d' % (dq, dq, sh))
    a('s_mul_i32 s%d, s%d, %d' % (dr, dq, dv))
    a('s_sub_u32 s%d, s%d, s%d' % (dr, src, dr))


NPREP = 460


def gen_prep(a):
    entry(a, 'prep_kernel')
    a('s_cmp_ge_u32 s2, %d' % NPREP)
    a('s_cbranch_scc1 prep_end')
    load_kernargs(a)
    a('v_and_b32 v1, 63, v0')
    a('v_lshrrev_b32 v2, 6, v0')
    a('v_and_b32 v3, 7, v1')
    a('v_readfirstlane_b32 s24, v2')
    a('v_lshrrev_b32 v4, 3, v1')
    a('s_waitcnt lgkmcnt(0)')
    stamp(a)
    stamp_rt(a)
    if STAMP:
        a('s_mov_b32 s74, s72')
    a('s_cmp_ge_u32 s2, 332')
    a('s_cbranch_scc1 prep_x')
    a('s_cmp_ge_u32 s2, 308')
    a('s_cbranch_scc1 prep_zero')
    a('s_cmp_ge_u32 s2, 296')
    a('s_cbranch_scc1 prep_spec')
    a('s_cmp_ge_u32 s2, 216')
    a('s_cbranch_scc1 prep_phi')
    a('s_cmp_ge_u32 s2, 162')
    a('s_cbranch_scc1 prep_wo')
    a('s_cmp_ge_u32 s2, 81')
    a('s_cselect_b32 s32, s%d, s%d' % (P_BWQKV, P_AWQKV))
    a('s_cselect_b32 s33, s%d, s%d' % (P_BWQKV + 1, P_AWQKV + 1))
    a('s_cselect_b32 s25, 0x%x, 0' % (WQB - WQA))
    a('s_cselect_b32 s29, 0x%x, 0' % (CSB - CSA))
    a('s_cselect_b32 s26, 81, 0')
    a('s_add_u32 s29, s29, 0x%x' % CSA)
    a('s_mov_b32 s34, %d' % (576 * 3456))
    a('s_mov_b32 s35, 0x00020000')
    srd(a, 36, P_WS, 's25', WQ_SZ)
    srd(a, 52, P_WS, 's29', CS_SZ)
    a('s_sub_u32 s26, s2, s26')
    sdiv(a, 27, 28, 26, 3, 80)
    sdiv(a, 29, 30, 27, 9, 26)
    a('s_mul_i32 s31, s28, 3')
    a('s_add_u32 s31, s31, s24')
    for e in range(8):
        a('s_mov_b32 s%d, %d' % (40 + e, e * 3456))
    a('s_lshl_b32 s30, s30, 6')
    a('v_lshl_add_u32 v5, v3, 3, s30')
    a('s_lshl_b32 s48, s31, 3')
    a('v_add_u32 v6, s48, v4')
    a('v_mul_u32_u24 v7, %d, v6' % (8 * 3456))
    a('v_lshl_add_u32 v7, v5, 1, v7')
    a('s_mul_i32 s48, s29, 1152')
    a('v_add_u32 v7, s48, v7')
    for e in range(8):
        a('buffer_load_dwordx4 v[%d:%d], v7, s[32:35], s%d offen' % (16 + 4 * e, 19 + 4 * e, 40 + e))
    a('v_mov_b32 v8, 0')
    a('s_mul_i32 s62, s31, 14336')
    a('s_add_u32 s63, s62, 7168')
    a('s_lshl_b32 s48, s29, 11')
    a('s_lshl_b32 s49, s29, 6')
    a('s_add_u32 s49, s49, 5888')
    a('s_mov_b32 s50, 129024')

    def coldest(dst, rem, tgreg, t0):
        h, d, x, y = t0, t0 + 1, t0 + 2, t0 + 3
        a('v_mul_u32_u24 v%d, 3641, v%d' % (h, rem))
        a('v_lshrrev_b32 v%d, 16, v%d' % (h, h))
        a('v_mul_u32_u24 v%d, 18, v%d' % (d, h))
        a('v_sub_u32 v%d, v%d, v%d' % (d, rem, d))
        a('v_and_b32 v%d, 1, v%d' % (x, h))
        a('v_cmp_gt_u32 vcc, 16, v%d' % d)
        a('v_lshl_add_u32 v%d, v%d, 5, s49' % (y, x))
        a('v_lshl_add_u32 v%d, v%d, 10, s48' % (x, x))
        a('v_lshrrev_b32 v%d, 1, v%d' % (h, h))
        a('v_cndmask_b32 v%d, v%d, v%d, vcc' % (x, y, x))
        a('v_mul_u32_u24 v%d, s50, v%d' % (h, h))
        a('v_lshl_add_u32 v%d, v%d, 4, v%d' % (x, d, x))
        a('v_add3_u32 v%d, v%d, v%d, v%d' % (dst, x, h, tgreg))
    a('v_add_u32 v10, s30, v1')
    coldest(48, 10, 8, 11)
    a('s_mov_b32 s51, 1')
    a('s_branch prep_tr')
    a.label('prep_wo')
    a('s_cmp_ge_u32 s2, 189')
    a('s_cselect_b32 s32, s%d, s%d' % (P_BWO, P_AWO))
    a('s_cselect_b32 s33, s%d, s%d' % (P_BWO + 1, P_AWO + 1))
    a('s_cselect_b32 s25, 0x%x, 0' % (WOB - WOA))
    a('s_cselect_b32 s26, 27, 0')
    a('s_add_u32 s25, s25, 0x%x' % WOA)
    a('s_add_u32 s26, s26, 162')
    a('s_mov_b32 s34, %d' % (576 * 1152))
    a('s_mov_b32 s35, 0x00020000')
    srd(a, 36, P_WS, 's25', WO_SZ)
    srd(a, 52, P_WS, CSA, CS_SZ)
    a('s_sub_u32 s26, s2, s26')
    sdiv(a, 27, 28, 26, 3, 26)
    a('s_mul_i32 s31, s28, 3')
    a('s_add_u32 s31, s31, s24')
    a('s_lshl_b32 s48, s31, 3')
    a('v_add_u32 v6, s48, v4')
    a('s_cmp_eq_u32 s31, 8')
    a('s_cbranch_scc1 prep_b_tail')
    for e, o in enumerate([0, 1, 2, 3, 8, 9, 10, 11]):
        a('s_mov_b32 s%d, %d' % (40 + e, o * 1152))
    a('v_lshrrev_b32 v7, 1, v6')
    a('v_mul_u32_u24 v7, 18, v7')
    a('v_and_b32 v8, 1, v6')
    a('v_lshl_add_u32 v7, v8, 2, v7')
    a('s_branch prep_b_row')
    a.label('prep_b_tail')
    for e, o in enumerate([0, 1, 18, 19, 36, 37, 54, 55]):
        a('s_mov_b32 s%d, %d' % (40 + e, o * 1152))
    a('v_mul_u32_u24 v7, 72, v4')
    a('v_add_u32 v7, 16, v7')
    a.label('prep_b_row')
    a('v_mul_u32_u24 v7, 1152, v7')
    a('v_lshl_add_u32 v7, v3, 4, v7')
    a('s_lshl_b32 s30, s27, 7')
    a('v_add_u32 v7, s30, v7')
    for e in range(8):
        a('buffer_load_dwordx4 v[%d:%d], v7, s[32:35], s%d offen' % (16 + 4 * e, 19 + 4 * e, 40 + e))
    a('v_lshrrev_b32 v8, 4, v1')
    a('s_lshl_b32 s30, s27, 2')
    a('v_add_u32 v8, s30, v8')
    a('v_mul_u32_u24 v8, 18432, v8')
    a('v_and_b32 v9, 15, v1')
    a('v_lshl_add_u32 v48, v9, 4, v8')
    a('s_lshl_b32 s62, s31, 11')
    a('s_add_u32 s63, s62, 1024')
    a('s_mov_b32 s51, 0')
    a.label('prep_tr')
    a('s_mul_i32 s30, s24, 9216')
    a('v_mul_u32_u24 v49, 1152, v4')
    a('v_mul_u32_u24 v50, 144, v3')
    a('v_add3_u32 v49, v49, v50, s30')
    a('v_add_u32 v50, v1, v4')
    a('v_lshlrev_b32 v50, 4, v50')
    a('v_add_u32 v50, s30, v50')
    a('s_mov_b32 s30, 0x05040100')
    a('s_mov_b32 s31, 0x07060302')
    a('s_mov_b32 s26, 0x3f803f80')
    a('s_waitcnt vmcnt(0)')
    stamp(a)
    for c in range(8):
        p, o = c >> 1, c & 1
        ob = 64 + 4 * c
        for q in range(4):
            a('v_perm_b32 v%d, v%d, v%d, s%d' % (ob + q, 16 + 4 * (2 * q + 1) + p, 16 + 4 * (2 * q) + p, 30 + o))
        a('ds_write_b128 v49, v[%d:%d] offset:%d' % (ob, ob + 3, 16 * c))
    a('s_waitcnt lgkmcnt(0)')
    for kg in range(8):
        a('ds_read_b128 v[%d:%d], v50 offset:%d' % (16 + 4 * kg, 19 + 4 * kg, kg * 1152))
    for kg in range(8):
        a('s_waitcnt lgkmcnt(%d)' % (7 - kg))
        a('buffer_store_dwordx4 v[%d:%d], v48, s[36:39], s%d offen offset:%d' % (16 + 4 * kg, 19 + 4 * kg, 62 + (kg >> 2), (kg & 3) * 256))
    a('s_cmp_eq_u32 s51, 0')
    a('s_cbranch_scc1 prep_end')
    for n in range(32):
        a('v_dot2_f32_bf16 v%d, v%d, s26, %s' % (52 + (n & 3), 16 + n, '0' if n < 4 else 'v%d' % (52 + (n & 3))))
    a('v_lshlrev_b32 v10, 2, v0')
    a('s_nop 1')
    a('v_add_f32 v52, v52, v53')
    a('v_add_f32 v54, v54, v55')
    a('v_add_f32 v52, v52, v54')
    a('ds_write_b32 v10, v52 offset:27648')
    a('s_waitcnt lgkmcnt(0)')
    a('s_barrier')
    a('s_cmp_lg_u32 s24, 0')
    a('s_cbranch_scc1 prep_end')
    for i in range(3):
        a('ds_read_b32 v%d, v10 offset:%d' % (16 + i, 27648 + i * 256))
    a('s_mul_i32 s30, s29, 9')
    a('s_sub_u32 s30, s27, s30')
    a('s_lshl_b32 s30, s30, 6')
    a('s_lshl_b32 s48, s29, 9')
    a('s_lshl_b32 s49, s29, 6')
    a('s_add_u32 s49, s49, %d' % (96 * 16 - 256))
    a('s_mov_b32 s50, %d' % (3 * 448 * 4))
    a('v_add_u32 v10, s30, v1')
    a('s_mul_i32 s30, s28, %d' % (448 * 4))
    a('v_mov_b32 v8, s30')
    a('v_mul_u32_u24 v11, 3641, v10')
    a('v_lshrrev_b32 v11, 16, v11')
    a('v_mul_u32_u24 v12, 18, v11')
    a('v_sub_u32 v12, v10, v12')
    a('v_and_b32 v13, 1, v11')
    a('v_cmp_gt_u32 vcc, 16, v12')
    a('v_lshl_add_u32 v14, v13, 5, s49')
    a('v_lshl_add_u32 v13, v13, 8, s48')
    a('v_lshrrev_b32 v11, 1, v11')
    a('v_cndmask_b32 v13, v14, v13, vcc')
    a('v_mul_u32_u24 v11, s50, v11')
    a('v_lshl_add_u32 v13, v12, 4, v13')
    a('v_add3_u32 v13, v13, v11, v8')
    a('v_lshrrev_b32 v13, 2, v13')
    a('s_waitcnt lgkmcnt(0)')
    a('v_add_f32 v16, v16, v17')
    a('v_add_f32 v16, v16, v18')
    a('buffer_store_dword v16, v13, s[52:55], 0 offen')
    a('s_branch prep_end')
    a.label('prep_phi')
    srd(a, 32, P_AWPHI, 0, 32 * 324 * 2)
    srd(a, 36, P_WS, TPHI, TPHI_SZ)
    a('s_sub_u32 s26, s2, 216')
    sdiv(a, 27, 29, 26, 5, 79)
    a('s_mov_b32 s28, s24')
    a('v_and_b32 v2, 3, v1')
    a('v_bfe_u32 v3, v1, 2, 1')
    a('v_bfe_u32 v4, v1, 3, 1')
    a('v_lshrrev_b32 v5, 4, v1')
    a('v_lshlrev_b32 v6, 15, v3')
    a('v_lshl_or_b32 v6, v6, 16, v6')
    a('v_cmp_eq_u32 s[50:51], 0, v4')
    a('s_lshl_b32 s30, s29, 2')
    a('v_add_u32 v7, s30, v2')
    a('v_lshlrev_b32 v8, 2, v5')
    a('s_cmp_eq_u32 s28, 0')
    a('s_cbranch_scc1 prep_phi_d0')
    a('v_mov_b32 v8, 16')
    a.label('prep_phi_d0')
    a('s_lshl_b32 s30, s27, 1')
    a('v_add_u32 v9, s30, v4')
    a('v_mul_u32_u24 v9, 324, v9')
    a('v_mul_u32_u24 v8, 18, v8')
    a('v_add3_u32 v9, v9, v8, v7')
    a('v_lshlrev_b32 v9, 1, v9')
    a('v_mov_b32 v10, 0x7fff0000')
    a('v_cmp_gt_u32 vcc, 18, v7')
    a('s_nop 1')
    a('v_cndmask_b32 v9, v10, v9, vcc')
    a('s_cmp_eq_u32 s28, 0')
    a('s_cbranch_scc1 prep_phi_ld')
    a('s_sub_u32 s30, s28, 1')
    a('v_cmp_eq_u32 vcc, s30, v5')
    a('s_nop 1')
    a('v_cndmask_b32 v9, v10, v9, vcc')
    a.label('prep_phi_ld')
    for i in range(4):
        a('buffer_load_ushort v%d, v9, s[32:35], 0 offen offset:%d' % (16 + i, i * 36))
    a('s_waitcnt vmcnt(0)')
    a('v_lshl_or_b32 v16, v17, 16, v16')
    a('v_lshl_or_b32 v18, v19, 16, v18')
    a('v_xor_b32 v16, v16, v6')
    a('v_xor_b32 v18, v18, v6')
    a('v_cndmask_b32 v20, 0, v16, s[50:51]')
    a('s_cmp_eq_u32 s28, 0')
    a('s_cbranch_scc0 prep_phi_tb')
    a('v_cndmask_b32 v21, 0, v18, s[50:51]')
    a('v_cndmask_b32 v22, v16, 0, s[50:51]')
    a('v_cndmask_b32 v23, v18, 0, s[50:51]')
    a('s_branch prep_phi_st')
    a.label('prep_phi_tb')
    a('v_cndmask_b32 v21, v16, 0, s[50:51]')
    a('v_mov_b32 v22, 0')
    a('v_mov_b32 v23, 0')
    a.label('prep_phi_st')
    a('s_mul_i32 s30, s27, 15')
    a('s_mul_i32 s31, s28, 5')
    a('s_add_u32 s30, s30, s31')
    a('s_add_u32 s30, s30, s29')
    a('s_lshl_b32 s30, s30, 10')
    a('v_lshlrev_b32 v11, 4, v1')
    a('buffer_store_dwordx4 v[20:23], v11, s[36:39], s30 offen')
    a('s_branch prep_end')
    a.label('prep_spec')
    a('s_sub_u32 s26, s2, 296')
    a('s_cmp_ge_u32 s26, 6')
    a('s_cselect_b32 s25, 0x%x, 0' % (WQB - WQA))
    a('s_cselect_b32 s29, 0x%x, 0' % (CSB - CSA))
    a('s_cselect_b32 s27, 6, 0')
    a('s_add_u32 s29, s29, 0x%x' % CSA)
    srd(a, 36, P_WS, 's25', WQ_SZ)
    srd(a, 52, P_WS, 's29', CS_SZ)
    a('s_sub_u32 s26, s26, s27')
    a('s_mul_i32 s26, s26, 192')
    a('v_add_u32 v2, s26, v0')
    a('v_lshrrev_b32 v3, 2, v2')
    a('v_mul_u32_u24 v4, 7168, v3')
    a('v_and_b32 v5, 3, v2')
    a('v_lshl_add_u32 v4, v5, 8, v4')
    a('v_add_u32 v4, %d, v4' % (6144 + 192))
    for i in range(4):
        a('v_mov_b32 v%d, 0x3f803f80' % (8 + i))
        a('v_mov_b32 v%d, 0' % (12 + i))
    a('buffer_store_dwordx4 v[8:11], v4, s[36:39], 0 offen')
    for i in range(1, 4):
        a('buffer_store_dwordx4 v[12:15], v4, s[36:39], 0 offen offset:%d' % (16 * i))
    a('v_mul_u32_u24 v6, 448, v2')
    a('v_add_u32 v6, 432, v6')
    a('buffer_store_dwordx4 v[12:15], v6, s[52:55], 0 offen')
    a('s_branch prep_end')
    a.label('prep_zero')
    srd(a, 36, P_WS, KV1, 2 * KV_SZ)
    a('s_sub_u32 s27, s2, 308')
    a('s_mul_i32 s27, s27, 9216')
    a('v_lshlrev_b32 v2, 4, v0')
    a('v_add_u32 v2, s27, v2')
    for i in range(4):
        a('v_mov_b32 v%d, 0' % (4 + i))
    for k in range(3):
        a('s_mov_b32 s28, %d' % (k * 3072))
        a('buffer_store_dwordx4 v[4:7], v2, s[36:39], s28 offen')
    a('s_branch prep_end')
    a.label('prep_x')
    srd(a, 32, P_AX, 0, X_SZ)
    srd(a, 36, P_WS, X0, X_SZ)
    a('s_sub_u32 s26, s2, 332')
    a('s_and_b32 s27, s26, 3')
    a('s_lshl_b32 s27, s27, 5')
    a('s_lshr_b32 s26, s26, 2')
    a('s_add_u32 s26, s26, s27')
    a('v_lshrrev_b32 v2, 2, v1')
    a('v_and_b32 v3, 3, v1')
    a('v_mul_u32_u24 v4, 1152, v2')
    a('v_lshl_add_u32 v4, v3, 4, v4')
    a('s_mul_i32 s27, s26, 18432')
    a('s_mul_i32 s28, s24, 384')
    a('s_add_u32 s28, s28, s27')
    for t in range(6):
        a('buffer_load_dwordx4 v[%d:%d], v4, s[32:35], s28 offen offset:%d' % (16 + 4 * t, 19 + 4 * t, t * 64))
    a('v_lshlrev_b32 v5, 4, v2')
    a('v_lshl_add_u32 v5, v3, 8, v5')
    a('s_mul_i32 s28, s24, 6144')
    a('v_add_u32 v5, s28, v5')
    a('v_lshlrev_b32 v6, 4, v1')
    a('v_add_u32 v7, s28, v6')
    a('s_add_u32 s28, s28, s27')
    a('s_add_u32 s29, s28, 3072')
    for t in range(6):
        a('s_waitcnt vmcnt(%d)' % (5 - t))
        a('ds_write_b128 v5, v[%d:%d] offset:%d' % (16 + 4 * t, 19 + 4 * t, t * 1024))
    a('s_waitcnt lgkmcnt(0)')
    for t in range(6):
        a('ds_read_b128 v[%d:%d], v7 offset:%d' % (40 + 4 * t, 43 + 4 * t, t * 1024))
    for t in range(6):
        a('s_waitcnt lgkmcnt(%d)' % (5 - t))
        a('buffer_store_dwordx4 v[%d:%d], v6, s[36:39], s%d offen offset:%d' % (40 + 4 * t, 43 + 4 * t, 28 + t // 3, (t % 3) * 1024))
    a.label('prep_end')
    if STAMP:
        a('s_cmp_ge_u32 s2, %d' % NPREP)
        a('s_cbranch_scc1 prep_end2')
        a('s_mov_b64 exec, -1')
        stamp(a)
        a('s_waitcnt vmcnt(0)')
        stamp(a)
        stamp_rt(a)
        a('s_mov_b32 s26, s24')
        a('s_lshr_b32 s3, s2, 8')
        a('s_lshl_b32 s3, s3, 2')
        a('s_add_u32 s26, s26, s3')
        a('s_and_b32 s2, s2, 255')
        stamp_flush(a, 5)
        a.label('prep_end2')
    a('s_endpgm')
    return [('prep_kernel', 96, 96)]


XF0 = 32
ACC0 = 104
WB0 = 168
LDS_T = 127 * 1024
LDS_PK = 32 * 1024
PK_STRIDE = 224
QDEPTH = 3


def XF(a_, t):
    return XF0 + (a_ * 9 + t) * 4


def ACC(a_, u):
    return ACC0 + (a_ * 8 + u) * 4


def softmax18(a, D, sLOG2E, tmp):
    m, s = tmp, tmp + 1
    a('v_max3_f32 %s, %s, %s, %s' % (vr(m), vr(D), vr(D + 1), vr(D + 2)))
    for i in range(3, 17, 2):
        a('v_max3_f32 %s, %s, %s, %s' % (vr(m), vr(m), vr(D + i), vr(D + i + 1)))
    a('v_max_f32 %s, %s, %s' % (vr(m), vr(m), vr(D + 17)))
    a('v_mul_f32 %s, %s, %s' % (vr(m), sLOG2E, vr(m)))
    for i in range(18):
        a('v_fma_f32 %s, %s, %s, -%s' % (vr(D + i), vr(D + i), sLOG2E, vr(m)))
    for i in range(18):
        a('v_exp_f32 %s, %s' % (vr(D + i), vr(D + i)))
    a('v_add_f32 %s, %s, %s' % (vr(s), vr(D), vr(D + 1)))
    a('v_add_f32 %s, %s, %s' % (vr(m), vr(D + 2), vr(D + 3)))
    for i in range(4, 18, 2):
        a('v_add_f32 %s, %s, %s' % (vr(s), vr(s), vr(D + i)))
        a('v_add_f32 %s, %s, %s' % (vr(m), vr(m), vr(D + i + 1)))
    a('v_add_f32 %s, %s, %s' % (vr(s), vr(s), vr(m)))
    a('v_rcp_f32 %s, %s' % (vr(s), vr(s)))
    a('s_nop 0')
    for i in range(18):
        a('v_mul_f32 %s, %s, %s' % (vr(D + i), vr(s), vr(D + i)))
    for i in range(9):
        a('v_cvt_pk_bf16_f32 %s, %s, %s' % (vr(D + i), vr(D + 2 * i), vr(D + 2 * i + 1)))


def pf_setup(a, sdst, sN, half_bytes, s_ch, s_idx, s_wave, tmp):
    a('s_lshl_b32 s%d, s%d, 5' % (tmp, s_wave))
    a('s_add_u32 s%d, s%d, s%d' % (tmp, tmp, s_idx))
    a('s_mul_i32 s%d, s%d, %d' % (sdst, s_ch, half_bytes))
    a('s_cmp_lt_u32 s%d, s%d' % (tmp, sN))
    a('s_cselect_b32 s%d, s%d, 0x40000' % (tmp, tmp))
    a('s_lshl_b32 s%d, s%d, 13' % (tmp, tmp))
    a('s_add_u32 s%d, s%d, s%d' % (sdst, sdst, tmp))


def gen_qkv(a, kind, insts):
    body = 'qkv%s_body' % kind
    end = 'qkv%s_end' % kind
    SX, SW, SC, ST, SO, SK, SP = 32, 36, 40, 44, 48, 52, 64
    LDS_CS = (143 if kind == 'A' else 127) * 1024
    for (nm, xsrc, kvoff) in insts:
        entry(a, nm)
        a('s_cmp_ge_u32 s2, 256')
        a('s_cbranch_scc1 %s' % end)
        a('s_load_dwordx2 s[22:23], s[0:1], 72')
        if kind == 'A':
            a('s_mov_b32 s9, 0x%x' % kvoff)
        a('s_branch %s' % body)
    a.label(body)
    vm = VM(a)
    a('s_and_b32 s24, s2, 3')
    a('s_lshl_b32 s24, s24, 2')
    a('s_bfe_u32 s25, s2, 0x20003')
    a('s_add_u32 s24, s24, s25')
    a('s_bfe_u32 s25, s2, 0x10002')
    a('s_lshl_b32 s25, s25, 3')
    a('s_lshr_b32 s26, s2, 5')
    a('s_add_u32 s25, s25, s26')
    a('v_lshrrev_b32 v2, 6, v0')
    a('v_and_b32 v1, 63, v0')
    a('v_readfirstlane_b32 s26, v2')
    a('v_and_b32 v3, 15, v1')
    a('v_lshrrev_b32 v4, 4, v1')
    a('v_lshlrev_b32 v5, 4, v1')
    a('s_and_b32 s27, s26, 3')
    a('s_lshr_b32 s28, s26, 2')
    a('s_lshl_b32 s29, s24, 7')
    a('s_lshl_b32 s30, s27, 5')
    a('s_add_u32 s29, s29, s30')
    a('s_lshl_b32 s30, s28, 4')
    a('s_add_u32 s29, s29, s30')
    a('v_add_u32 v6, s29, v3')
    a('s_lshr_b32 s30, s29, 4')
    a('s_xor_b32 s69, s30, 1')
    a('s_mul_i32 s30, s30, 18432')
    a('s_mul_i32 s69, s69, 18432')
    a('s_bfe_u32 s56, s2, 0x10002')
    a('s_mul_i32 s57, s56, 9')
    a('s_lshl_b32 s31, s28, 2')
    a('s_add_u32 s57, s57, s31')
    a('s_lshl_b32 s31, s57, 10')
    a('s_add_u32 s30, s30, s31')
    a('s_add_u32 s69, s69, s31')
    a('s_mul_i32 s56, s56, -18432')
    a('s_add_u32 s56, s56, 5120')
    a('s_mul_i32 s3, s56, 7')
    a('s_cmp_eq_u32 s28, 0')
    a('s_cselect_b32 s4, s56, 0')
    a('s_cselect_b32 s5, 0, s56')
    a('s_cselect_b32 s6, s3, 0')
    a('s_cselect_b32 s3, 0, s3')
    a('s_cmp_eq_u32 s27, 3')
    a('s_cselect_b32 s7, s3, 0')
    a('s_cselect_b32 s8, 0, s3')
    a('s_mul_i32 s31, s28, 63')
    a('s_add_u32 s31, s31, s27')
    a('s_lshl_b32 s31, s31, 10')
    a('s_mov_b32 m0, s31')
    a('s_mul_i32 s31, s57, 7')
    a('s_add_u32 s31, s31, s27')
    a('s_lshl_b32 s31, s31, 10')
    a('s_mul_i32 s56, s25, 129024')
    a('s_add_u32 s31, s31, s56')
    a('s_mul_i32 s56, s28, %d' % (63 * 1024))
    a('v_add_u32 v10, s56, v5')
    a('s_waitcnt lgkmcnt(0)')
    stamp(a)
    stamp_rt(a)
    srd(a, SX, P_WS, X0, X_SZ)
    srd(a, SW, P_WS, WQA if kind == 'A' else WQB, WQ_SZ)
    need = [(7 * t + 6) // 4 for t in range(9)]
    st = {'ii': 0}

    def load_ops(t):
        ops = []

        def x0():
            if t and t % 4 == 0:
                a('s_add_u32 s30, s30, 4096')
                a('s_add_u32 s69, s69, 4096')
            if t in (4, 5):
                a('s_add_u32 s30, s30, s%d' % t)
                a('s_add_u32 s69, s69, s%d' % t)
            a('buffer_load_dwordx4 %s, v5, s[%d:%d], s30 offen offset:%d' % (vr(XF(0, t), 4), SX, SX + 3, (t & 3) * 1024))
            vm.issue()

        def x1():
            a('buffer_load_dwordx4 %s, v5, s[%d:%d], s69 offen offset:%d' % (vr(XF(1, t), 4), SX, SX + 3, (t & 3) * 1024))
            vm.issue()

        def dma():
            a('buffer_load_dwordx4 v5, s[%d:%d], s31 offen lds' % (SW, SW + 3))
            vm.issue()
            st['ii'] += 1
            if st['ii'] < 16:
                a('s_add_u32 m0, m0, 4096')
                a('s_add_u32 s31, s31, 4096')
                if st['ii'] in (7, 8, 9):
                    a('s_add_u32 s31, s31, s%d' % (st['ii'] - 1))
            vm.tags[('step', t)] = vm.n
        ops = [x0, x1] + [dma] * (need[t] - (need[t - 1] if t else -1))
        return ops

    def loads(t):
        for op in load_ops(t):
            op()
    loads(0)
    loads(1)
    real_a = a
    a = Asm()
    if kind == 'A':
        srd(a, SK, P_WS, 's9', KV_SZ)
    srd(a, SC, P_WS, CSA if kind == 'A' else CSB, CS_SZ)
    a('s_mul_i32 s71, s25, 1344')
    a('s_cmp_lg_u32 s26, 0')
    a('s_cselect_b32 s71, 0x40000000, s71')
    if kind == 'A':
        srd(a, ST, P_WS, TPHI, TPHI_SZ)
        srd(a, SO, P_WS, PHIQ, PHIQ_SZ)
        srd(a, SP, P_WS, WOA, WO_SZ)
    else:
        srd(a, SO, P_WS, REC, REC_SZ)
        srd(a, SP, P_WS, WOB, WO_SZ)
    a('s_bfe_u32 s56, s2, 0x10002')
    a('s_lshr_b32 s57, s2, 3')
    a('s_mov_b32 s58, 41')
    pf_setup(a, 68, 58, WO_SZ // 2, 56, 57, 27, 59)
    a('v_lshlrev_b32 v31, 7, v1')
    if kind == 'B':
        a('s_and_b32 s56, s27, 1')
        a('s_lshl_b32 s56, s56, 6')
        a('v_add_u32 v26, s56, v1')
        a('v_lshrrev_b32 v27, 4, v26')
        a('v_lshlrev_b32 v27, 15, v27')
        a('v_and_b32 v28, 15, v26')
        a('v_lshl_add_u32 v27, v28, 7, v27')
        a('s_lshl_b32 s56, s24, 11')
        a('v_add_u32 v27, s56, v27')
        a('v_bfe_u32 v28, v26, 3, 1')
        a('v_lshlrev_b32 v28, 14, v28')
        a('v_and_b32 v29, 7, v26')
        a('v_lshl_add_u32 v28, v29, 7, v28')
        a('s_lshl_b32 s56, s24, 10')
        a('s_add_u32 s56, s56, %d' % R_QT)
        a('v_cmp_gt_u32 vcc, 112, v26')
        a('v_add_u32 v28, s56, v28')
        a('s_lshr_b32 s56, s27, 1')
        a('v_cndmask_b32 v29, v28, v27, vcc')
        a('s_lshl_b32 s57, s25, 1')
        a('s_add_u32 s56, s56, s57')
        a('s_lshl_b32 s70, s56, 18')
    else:
        a('v_mov_b32 v26, 0x40000000')
        a('v_cmp_gt_u32 vcc, 36, v1')
        a('s_lshl_b32 s56, s24, 2')
        a('s_add_u32 s56, s56, s27')
        a('v_cndmask_b32 v29, v26, v31, vcc')
        a('s_lshl_b32 s56, s56, 4')
        a('s_add_u32 s56, s56, s25')
        a('s_mul_i32 s70, s56, 4608')
    a('v_and_b32 v11, 3, v3')
    a('v_cmp_eq_u32 s[58:59], 1, v11')
    a('v_cmp_eq_u32 s[60:61], 2, v11')
    a('v_cmp_eq_u32 s[62:63], 3, v11')
    a('v_lshrrev_b32 v11, 2, v3')
    a('v_lshl_add_u32 v11, v11, 4, v3')
    a('v_lshlrev_b32 v11, 2, v11')
    a('v_lshlrev_b32 v24, 2, v3')
    a('v_add_u32 v24, 192, v24')
    a('v_lshlrev_b32 v25, 4, v4')
    a('v_add_u32 v25, %d, v25' % LDS_CS)
    a('v_add_u32 v26, %d, v5' % LDS_CS)
    a('s_lshl_b32 s56, s27, 13')
    a('v_add_u32 v14, s56, v10')
    a('s_xor_b32 s57, s28, 1')
    a('s_mul_i32 s57, s57, %d' % (63 * 1024))
    a('s_add_u32 s57, s57, s56')
    a('v_add_u32 v15, s57, v5')
    late_lines = a.L
    a = real_a
    late = []
    cur = []
    hold = 0
    for ln in late_lines:
        op = ln.split()[0]
        cur.append(ln)
        if op.startswith('s_cmp') or (op == 's_add_u32' and ', s%d,' % P_WS in ln):
            hold = 1
        elif op.startswith('v_cmp') and 'vcc' in ln:
            hold = 2
        elif hold == 1 and op in ('s_cselect_b32', 's_addc_u32'):
            hold = 0
        elif hold == 2 and op == 'v_cndmask_b32':
            hold = 0
        if not hold:
            late.append(cur)
            cur = []
    assert not cur

    def late_op():
        if late:
            a.L.extend(late.pop(0))
    stamp(a)

    def wread_ops(t):
        return [(lambda u=u: a('ds_read_b128 %s, v10 offset:%d' % (vr(WB0 + 28 * (t & 1) + 4 * u, 4), (t * 7 + u) * 1024))) for u in range(7)]

    def aux_ops():
        ops = []
        if kind == 'A':
            def tp():
                a('s_lshl_b32 s31, s26, 11')
                a('s_add_u32 m0, s31, %d' % LDS_T)
                a('s_mul_i32 s56, s25, 15360')
                a('s_add_u32 s31, s31, s56')
                a('buffer_load_dwordx4 v5, s[%d:%d], s31 offen lds' % (ST, ST + 3))
                vm.issue()
                a('buffer_load_dwordx4 v5, s[%d:%d], s31 offen offset:1024 lds' % (ST, ST + 3))
                vm.issue()
            ops.append(tp)

        def cs():
            for p in range(3):
                a('buffer_load_dwordx4 v[%d:%d], v5, s[%d:%d], s71 offen offset:%d' % (224 + 4 * p, 227 + 4 * p, SC, SC + 3, p * 448))
                vm.issue()
            vm.tags['cs'] = vm.n
        ops.append(cs)

        def aux():
            a('s_cmp_eq_u32 s28, 0')
            a('s_cbranch_scc1 %s_aux0' % body)
            a('buffer_load_dword v30, v31, s[%d:%d], s68 offen' % (SP, SP + 3))
            a('s_branch %s_aux1' % body)
            a.label('%s_aux0' % body)
            a('buffer_load_dword v30, v29, s[%d:%d], s70 offen' % (SO, SO + 3))
            a.label('%s_aux1' % body)
            vm.issue()
        ops.append(aux)
        return ops
    vm.wait(('step', 0))
    a('s_barrier')
    for op in wread_ops(0):
        op()
    loads(2)
    full = [(a_, u, 0) for u in [7, 0, 1, 2, 3, 4, 5, 6] for a_ in (0, 1)]
    for k, (a_, u, tt) in enumerate(full[:8]):
        if k == 2:
            a('s_waitcnt lgkmcnt(0)')
        A_ = vr(XF(a_, 0), 4) if u == 7 else vr(WB0 + 4 * u, 4)
        a('v_mfma_f32_16x16x32_bf16 %s, %s, %s, 0' % (vr(ACC(a_, u), 4), A_, vr(XF(a_, 0), 4)))
        late_op()
        late_op()
    for t in range(9):
        if t < 8:
            a('s_waitcnt vmcnt(%d) lgkmcnt(0)' % vm.cnt(('step', t + 1)))
            a('s_barrier')
            stamp(a)
            fill = wread_ops(t + 1)
            if t + QDEPTH < 9:
                fill += load_ops(t + QDEPTH)
            elif t + QDEPTH == 9:
                fill += aux_ops()
            seq = [(a_, u, t) for u in [7, 0, 1, 2, 3, 4, 5, 6] for a_ in (0, 1)]
            if t == 7:
                seq = [(1, u, 7) for u in [7, 6, 0, 1, 2, 3, 4, 5]]
            if t == 0:
                seq = seq[8:]
        else:
            a('s_waitcnt lgkmcnt(0)')
            wr = [7, 6, 0, 1, 2, 3, 4, 5]
            seq = [(1, u, 8) for u in wr] + [(0, u, 7) for u in wr] + [(0, u, 8) for u in wr]
            fill = [None] * 8
            for u in wr:
                fill += [(lambda u=u: a('ds_write_b128 v14, %s offset:%d' % (vr(ACC(1, u), 4), u * 1024))), None]
        for k, (a_, u, tt) in enumerate(seq):
            A_ = vr(XF(a_, tt), 4) if u == 7 else vr(WB0 + 28 * (tt & 1) + 4 * u, 4)
            c = '0' if tt == 0 else vr(ACC(a_, u), 4)
            a('v_mfma_f32_16x16x32_bf16 %s, %s, %s, %s' % (vr(ACC(a_, u), 4), A_, vr(XF(a_, tt), 4), c))
            if k < len(fill) and fill[k] is not None:
                fill[k]()
            if k == len(seq) - 1:
                for f in fill[len(seq):]:
                    f()
            late_op()
    assert not late
    stamp(a)
    vm.wait('cs')
    for r in range(4):
        a('v_add_f32 v%d, v%d, v%d' % (224 + r, 224 + r, 228 + r))
    for r in range(4):
        a('v_add_f32 v%d, v%d, v%d' % (224 + r, 224 + r, 232 + r))
    a('s_cmp_lg_u32 s26, 0')
    a('s_cselect_b32 s56, 0, 0xfffffff')
    a('s_mov_b32 exec_lo, s56')
    a('s_mov_b32 exec_hi, 0')
    a('s_cbranch_scc1 %s_nocs' % body)
    a('ds_write_b128 v26, v[224:227]')
    a.label('%s_nocs' % body)
    a('s_mov_b64 exec, -1')
    CS0 = 48
    a('s_waitcnt lgkmcnt(0)')
    a('s_barrier')
    for u in [7, 6, 0, 1, 2, 3, 4, 5]:
        a('ds_read_b128 %s, v15 offset:%d' % (vr(ACC(1, u), 4), u * 1024))
    R = lambda u, r: ACC(0, u) + r
    a('s_waitcnt lgkmcnt(6)')
    for u in [7, 6]:
        for r in range(4):
            if u == 7 or r == 0:
                a('v_add_f32 %s, %s, %s' % (vr(R(u, r)), vr(R(u, r)), vr(ACC(1, u) + r)))
    a('v_cndmask_b32 v16, %s, %s, s[58:59]' % (vr(R(7, 0)), vr(R(7, 1))))
    a('v_cndmask_b32 v16, v16, %s, s[60:61]' % vr(R(7, 2)))
    a('v_cndmask_b32 v16, v16, %s, s[62:63]' % vr(R(7, 3)))
    a('ds_bpermute_b32 v18, v24, %s' % vr(R(6, 0)))
    a('ds_bpermute_b32 v17, v11, v16')
    for u in range(7):
        a('ds_read_b128 %s, v25 offset:%d' % (vr(CS0 + 4 * u, 4), u * 64))
    for r in range(1, 4):
        a('v_add_f32 %s, %s, %s' % (vr(R(6, r)), vr(R(6, r)), vr(ACC(1, 6) + r)))
    a('s_waitcnt lgkmcnt(9)')
    for u in range(6):
        for r in range(4):
            a('v_add_f32 %s, %s, %s' % (vr(R(u, r)), vr(R(u, r)), vr(ACC(1, u) + r)))
    a('s_mov_b32 s56, 0x%x' % f32bits(1.0 / 576))
    a('s_waitcnt lgkmcnt(7)')
    if kind == 'A':
        TA, TBQ, TBK = 168, 188, 208
        a('v_add_u32 v19, %d, v5' % LDS_T)
        for m in range(5):
            a('ds_read_b128 %s, v19 offset:%d' % (vr(TA + 4 * m, 4), m * 1024))
        for m in range(5):
            a('ds_read_b128 %s, v19 offset:%d' % (vr(TBK + 4 * m, 4), (10 + m) * 1024))
        for m in range(5):
            a('ds_read_b128 %s, v19 offset:%d' % (vr(TBQ + 4 * m, 4), (5 + m) * 1024))
    a('v_mul_f32 v18, s56, v18')
    a('v_mul_f32 v17, s56, v17')
    a('v_fma_f32 v17, -v18, v18, v17')
    a('v_max_f32 v17, 0, v17')
    bf16r(a, 18, 19)
    bf16r(a, 17, 19)
    a('v_add_f32 v17, 0x%x, v17' % f32bits(1e-5))
    bf16r(a, 17, 19)
    a('v_sqrt_f32 v17, v17')
    a('s_nop 0')
    bf16r(a, 17, 19)
    a('v_rcp_f32 v17, v17')
    a('s_waitcnt lgkmcnt(%d)' % (15 if kind == 'A' else 0))
    stamp(a)
    P0 = 32
    uorder = [2, 3, 6] if kind == 'A' else range(7)

    def lnfix(u):
        for r in range(4):
            a('v_fma_f32 %s, -v18, %s, %s' % (vr(R(u, r)), vr(CS0 + 4 * u + r), vr(R(u, r))))
        for r in range(4):
            a('v_mul_f32 %s, v17, %s' % (vr(R(u, r)), vr(R(u, r))))
        a('v_cvt_pk_bf16_f32 %s, %s, %s' % (vr(P0 + 2 * u), vr(R(u, 0)), vr(R(u, 1))))
        a('v_cvt_pk_bf16_f32 %s, %s, %s' % (vr(P0 + 2 * u + 1), vr(R(u, 2)), vr(R(u, 3))))
    for u in uorder:
        lnfix(u)
        if kind == 'B' and u == 0:
            a('v_lshlrev_b32 v20, 4, v6')
            a('v_and_b32 v21, 1, v4')
            a('v_lshl_add_u32 v21, v21, 18, v20')
            a('v_lshrrev_b32 v22, 1, v4')
            a('v_lshl_add_u32 v21, v22, 15, v21')
            a('s_lshl_b32 s56, s25, 19')
        if kind == 'B' and u in (1, 3, 5):
            typ = u >> 1
            b0 = P0 + 4 * typ
            a('s_add_u32 s57, s56, %d' % (typ * 65536))
            a('s_nop 0')
            a('v_permlane16_swap_b32 %s, %s' % (vr(b0), vr(b0 + 2)))
            a('v_permlane16_swap_b32 %s, %s' % (vr(b0 + 1), vr(b0 + 3)))
            a('buffer_store_dwordx4 %s, v21, s[%d:%d], s57 offen' % (vr(b0, 4), SO, SO + 3))
    if kind == 'B':
        a('v_lshlrev_b32 v26, 3, v6')
        a('v_lshl_add_u32 v26, v4, 14, v26')
        a('v_add_u32 v26, %d, v26' % R_QT)
        a('v_add_u32 v22, %d, v20' % R_VT)
        a('v_cmp_eq_u32 vcc, 2, v4')
        a('v_mov_b32 v27, 0x3f80')
        a('v_mov_b32 v12, %s' % vr(P0 + 12))
        a('v_cndmask_b32 v13, 0, v27, vcc')
        a('v_cndmask_b32 v26, v26, v22, vcc')
        a('v_mov_b32 v14, %s' % vr(P0 + 13))
        a('v_mov_b32 v15, v13')
        a('s_add_u32 s57, s56, %d' % REC_HEAD)
        a('s_mov_b32 exec_hi, 0xffff')
        a('buffer_store_dwordx2 v[12:13], v26, s[%d:%d], s56 offen' % (SO, SO + 3))
        a('buffer_store_dwordx2 v[14:15], v26, s[%d:%d], s57 offen' % (SO, SO + 3))
        stamp(a)
        a('s_waitcnt vmcnt(0)') if STAMP else None
        stamp(a)
        stamp_rt(a)
        stamp_flush(a, 1)
        a.label(end)
        a('s_endpgm')
        return [(nm, 236, 96) for (nm, _, _) in insts]
    DQ, DK = 76, 136
    a('v_mov_b32 %s, 0' % vr(P0 + 14))
    a('v_mov_b32 %s, 0' % vr(P0 + 15))
    a('v_and_b32 v20, 127, v6')
    a('v_mul_u32_u24 v20, %d, v20' % PK_STRIDE)
    a('v_add_u32 v20, %d, v20' % LDS_PK)
    a('v_lshl_add_u32 v21, v4, 3, v20')
    a('s_waitcnt lgkmcnt(5)')
    for m in range(5):
        a('v_mfma_f32_16x16x32_bf16 %s, %s, %s, 0' % (vr(DK + 4 * m, 4), vr(TA + 4 * m, 4), vr(P0 + 4, 4)))
    for m in range(5):
        a('v_mfma_f32_16x16x32_bf16 %s, %s, %s, %s' % (vr(DK + 4 * m, 4), vr(TBK + 4 * m, 4), vr(P0 + 12, 4), vr(DK + 4 * m, 4)))
    lnfix(4)
    lnfix(5)
    a('ds_write_b64 v21, %s offset:128' % vr(P0 + 8, 2))
    a('ds_write_b64 v21, %s offset:160' % vr(P0 + 10, 2))
    a('v_mov_b32 v12, %s' % vr(P0 + 12))
    a('v_mov_b32 v13, 0x3f80')
    a('v_mov_b32 v14, %s' % vr(P0 + 13))
    a('v_mov_b32 v15, 0x3f80')
    a('s_mov_b32 exec_lo, 0')
    a('s_mov_b32 exec_hi, 0xffff')
    a('ds_write_b128 v20, v[12:15] offset:208')
    a('s_mov_b64 exec, -1')
    a('s_mov_b32 s56, 0x%x' % f32bits(LOG2E))
    softmax18(a, DK, 's56', 22)
    a('v_lshl_add_u32 v21, v4, 5, v20')
    a('v_lshl_add_u32 v24, v4, 2, v20')
    a('ds_write_b128 v21, %s' % vr(DK, 4))
    a('ds_write_b128 v21, %s offset:16' % vr(DK + 4, 4))
    a('ds_write_b32 v24, %s offset:192' % vr(DK + 8))
    a('s_waitcnt lgkmcnt(0)')
    a('s_barrier')
    stamp(a)
    a('s_cmp_ge_u32 s26, 6')
    a('s_cbranch_scc1 qkvA_q')
    a('s_cmp_ge_u32 s26, 3')
    a('s_cselect_b32 s57, 1, 0')
    a('s_mul_i32 s58, s57, 3')
    a('s_sub_u32 s58, s26, s58')
    a('s_lshl_b32 s59, s57, 6')
    a('s_lshl_b32 s60, s58, 5')
    a('s_add_u32 s59, s59, s60')
    a('s_lshl_b32 s60, s57, 3')
    a('s_add_u32 s61, s60, 192')
    a('s_cmp_eq_u32 s58, 2')
    a('s_cselect_b32 s59, s61, s59')
    a('s_add_u32 s60, s60, 208')
    a('s_lshl_b32 s61, s57, 5')
    a('s_add_u32 s61, s61, 128')
    a('v_lshrrev_b32 v24, 2, v3')
    a('v_lshl_add_u32 v24, v4, 2, v24')
    a('v_mul_u32_u24 v24, %d, v24' % PK_STRIDE)
    a('v_and_b32 v25, 3, v3')
    a('v_lshl_add_u32 v24, v25, 3, v24')
    a('v_add_u32 v24, %d, v24' % LDS_PK)
    a('v_add_u32 v25, s59, v24')
    a('v_add_u32 v26, s61, v24')
    a('v_add_u32 v27, s60, v24')
    FB, FA, FT = 112, 136, 152
    for ks in range(4):
        for hf in range(2):
            off = (32 * ks + 16 * hf) * PK_STRIDE
            a('ds_read_b64_tr_b16 %s, v25 offset:%d' % (vr(FB + 4 * ks + 2 * hf, 2), off))
            a('ds_read_b64_tr_b16 %s, v26 offset:%d' % (vr(FA + 4 * ks + 2 * hf, 2), off))
            a('ds_read_b64_tr_b16 %s, v27 offset:%d' % (vr(FT + 4 * ks + 2 * hf, 2), off))
    a('s_lshl_b32 s59, s25, 1')
    a('s_add_u32 s59, s59, s57')
    a('s_mul_i32 s59, s59, %d' % KV_HEAD)
    a('s_mul_i32 s60, s58, 1216')
    a('s_add_u32 s59, s59, s60')
    a('v_lshlrev_b32 v28, 2, v1')
    DM, DT = 128, 132
    a('s_cmp_eq_u32 s58, 2')
    a('s_cbranch_scc1 qkvA_kvt')
    for ks in range(4):
        a('s_waitcnt lgkmcnt(%d)' % min(15, 6 * (3 - ks)))
        c = '0' if ks == 0 else vr(DM, 4)
        a('v_mfma_f32_16x16x32_bf16 %s, %s, %s, %s' % (vr(DM, 4), vr(FA + 4 * ks, 4), vr(FB + 4 * ks, 4), c))
        c = '0' if ks == 0 else vr(DT, 4)
        a('v_mfma_f32_16x16x32_bf16 %s, %s, %s, %s' % (vr(DT, 4), vr(FT + 4 * ks, 4), vr(FB + 4 * ks, 4), c))
    a('s_nop 7')
    for r in range(4):
        a('buffer_atomic_add_f32 %s, v28, s[%d:%d], s59 offen offset:%d' % (vr(DM + r), SK, SK + 3, r * 256))
    a('s_mov_b64 exec, 0xffff')
    for r in range(3):
        a('buffer_atomic_add_f32 %s, v28, s[%d:%d], s59 offen offset:%d' % (vr(DT + r), SK, SK + 3, 1024 + r * 64))
    a('s_mov_b64 exec, -1')
    a('s_branch qkvA_q')
    a.label('qkvA_kvt')
    for ks in range(4):
        a('s_waitcnt lgkmcnt(%d)' % min(15, 6 * (3 - ks)))
        c = '0' if ks == 0 else vr(DM, 4)
        a('v_mfma_f32_16x16x32_bf16 %s, %s, %s, %s' % (vr(DM, 4), vr(FB + 4 * ks, 4), vr(FA + 4 * ks, 4), c))
        c = '0' if ks == 0 else vr(DT, 4)
        a('v_mfma_f32_16x16x32_bf16 %s, %s, %s, %s' % (vr(DT, 4), vr(FB + 4 * ks, 4), vr(FT + 4 * ks, 4), c))
    a('s_mov_b64 exec, 0xffff')
    a('s_nop 7')
    for r in range(4):
        a('buffer_atomic_add_f32 %s, v28, s[%d:%d], s59 offen offset:%d' % (vr(DM + r), SK, SK + 3, r * 128))
    a('s_mov_b64 exec, 7')
    for r in range(4):
        a('buffer_atomic_add_f32 %s, v28, s[%d:%d], s59 offen offset:%d' % (vr(DT + r), SK, SK + 3, r * 128 + 64))
    a('s_mov_b64 exec, -1')
    a.label('qkvA_q')
    lnfix(0)
    lnfix(1)
    a('s_nop 1')
    for m in range(5):
        a('v_mfma_f32_16x16x32_bf16 %s, %s, %s, 0' % (vr(DQ + 4 * m, 4), vr(TA + 4 * m, 4), vr(P0 + 0, 4)))
    for m in range(5):
        a('v_mfma_f32_16x16x32_bf16 %s, %s, %s, %s' % (vr(DQ + 4 * m, 4), vr(TBQ + 4 * m, 4), vr(P0 + 12, 4), vr(DQ + 4 * m, 4)))
    a('s_lshl_b32 s57, s24, 2')
    a('s_add_u32 s57, s57, s27')
    a('s_lshl_b32 s57, s57, 5')
    a('s_lshl_b32 s58, s25, 1')
    a('s_add_u32 s57, s57, s58')
    a('s_mul_i32 s57, s57, 2304')
    a('v_lshrrev_b32 v24, 1, v4')
    a('v_mul_u32_u24 v24, 2304, v24')
    a('v_and_b32 v25, 1, v4')
    a('v_and_b32 v26, 31, v6')
    a('v_lshl_add_u32 v27, v25, 10, v24')
    a('v_lshl_add_u32 v27, v26, 4, v27')
    a('v_lshl_add_u32 v28, v26, 3, v24')
    a('v_lshl_add_u32 v28, v25, 2, v28')
    softmax18(a, DQ, 's56', 22)
    a('buffer_store_dwordx4 %s, v27, s[%d:%d], s57 offen' % (vr(DQ, 4), SO, SO + 3))
    a('buffer_store_dwordx4 %s, v27, s[%d:%d], s57 offen offset:512' % (vr(DQ + 4, 4), SO, SO + 3))
    a('buffer_store_dword %s, v28, s[%d:%d], s57 offen offset:2048' % (vr(DQ + 8), SO, SO + 3))
    stamp(a)
    a('s_waitcnt vmcnt(0)') if STAMP else None
    stamp(a)
    stamp_rt(a)
    stamp_flush(a, 0)
    a.label(end)
    a('s_endpgm')
    return [(nm, 236, 96) for (nm, _, _) in insts]


A_K0, A_K1, A_KT, A_V0, A_V1, A_VT = 0, 8192, 16384, 20480, 20480 + 8256, 20480 + 2 * 8256
A_LDS = A_VT + 8192


def gen_attn(a, insts):
    SR, SO, SP = 32, 44, 36
    for (nm, pfN) in insts:
        entry(a, nm)
        a('s_cmp_ge_u32 s2, 256')
        a('s_cbranch_scc1 attn_end')
        a('s_load_dwordx2 s[22:23], s[0:1], 72')
        a('s_mov_b32 s40, %d' % pfN)
        a('s_branch attn_body')
    a.label('attn_body')
    a('s_bfe_u32 s41, s2, 0x10002')
    a('s_lshl_b32 s24, s41, 4')
    a('s_bfe_u32 s25, s2, 0x40003')
    a('s_add_u32 s24, s24, s25')
    a('s_and_b32 s25, s2, 3')
    a('s_lshl_b32 s25, s25, 1')
    a('s_lshr_b32 s26, s2, 7')
    a('s_add_u32 s25, s25, s26')
    a('v_lshrrev_b32 v2, 6, v0')
    a('v_and_b32 v1, 63, v0')
    a('v_readfirstlane_b32 s26, v2')
    a('v_and_b32 v3, 31, v1')
    a('v_lshrrev_b32 v4, 5, v1')
    a('v_lshlrev_b32 v5, 4, v1')
    a('s_lshl_b32 s27, s24, 18')
    a('s_add_u32 s27, s27, 0x%x' % REC)
    a('s_lshl_b32 s28, s25, 8')
    a('s_sub_u32 s28, s28, 256')
    a('s_lshl_b32 s29, s26, 6')
    a('s_add_u32 s28, s28, s29')
    a('s_lshl_b32 s29, s26, 10')
    a('s_lshl_b32 s30, s28, 4')
    a('s_lshl_b32 s31, s28, 3')
    a('s_add_u32 s31, s31, %d' % R_KT)
    a('s_waitcnt lgkmcnt(0)')
    STAMP_REGS[:] = list(range(48, 56)) + list(range(88, 94))
    stamp(a)
    stamp_rt(a)
    srd(a, SR, P_WS, 's27', REC_HEAD)

    def dma(plane, ldsoff):
        a('s_add_u32 m0, s29, %d' % ldsoff)
        a('s_add_u32 s42, s30, %d' % plane)
        a('buffer_load_dwordx4 v5, s[%d:%d], s42 offen lds' % (SR, SR + 3))
    dma(R_K0, A_K0)
    dma(R_K1, A_K1)
    a('s_lshr_b32 s42, s29, 1')
    a('s_add_u32 m0, s42, %d' % A_KT)
    a('s_mov_b32 exec_hi, 0')
    a('buffer_load_dwordx4 v5, s[%d:%d], s31 offen lds' % (SR, SR + 3))
    a('s_mov_b32 exec_hi, -1')
    a('s_lshl_b32 s31, s25, 8')
    a('s_lshl_b32 s27, s26, 5')
    a('s_add_u32 s31, s31, s27')
    a('v_add_u32 v9, s31, v3')
    a('v_lshlrev_b32 v10, 4, v9')
    a('v_lshl_add_u32 v10, v4, 15, v10')
    a('v_lshlrev_b32 v9, 3, v9')
    Q1, Q2 = 12, 16
    for r in range(4):
        a('v_mov_b32 v%d, 0' % (Q2 + r))
    a('s_mov_b32 s42, %d' % R_QT)
    a('buffer_load_dwordx4 %s, v10, s[%d:%d], 0 offen' % (vr(Q1, 4), SR, SR + 3))
    a('s_mov_b32 exec_hi, 0')
    a('buffer_load_dwordx2 %s, v9, s[%d:%d], s42 offen' % (vr(Q2, 2), SR, SR + 3))
    a('s_mov_b32 exec_hi, -1')
    dma(R_V0, A_V0)
    dma(R_V1, A_V1)
    dma(R_VT, A_VT)
    a('s_mov_b32 s30, s31')
    srd(a, SO, P_WS, OIMG, OIMG_SZ)
    srd(a, SP, P_WS, WQA, WQ_SZ)
    a('s_lshr_b32 s42, s2, 3')
    pf_setup(a, 43, 40, WQ_SZ // 2, 41, 42, 26, 28)
    a('v_lshlrev_b32 v6, 7, v1')
    a('buffer_load_dword v7, v6, s[%d:%d], s43 offen' % (SP, SP + 3))
    a('s_lshr_b32 s42, s30, 5')
    a('s_mul_i32 s42, s42, 36864')
    a('s_lshr_b32 s43, s24, 1')
    a('s_lshl_b32 s43, s43, 11')
    a('s_and_b32 s28, s24, 1')
    a('s_lshl_b32 s28, s28, 9')
    a('s_add_u32 s43, s43, s28')
    a('v_bfe_u32 v8, v1, 2, 1')
    a('v_and_b32 v9, 3, v1')
    a('v_lshlrev_b32 v9, 7, v9')
    a('v_lshl_add_u32 v8, v8, 10, v9')
    a('v_add_u32 v8, s43, v8')
    a('s_lshr_b32 s43, s24, 4')
    a('s_lshl_b32 s43, s43, 11')
    a('s_bfe_u32 s28, s24, 0x20002')
    a('s_lshl_b32 s28, s28, 8')
    a('s_add_u32 s43, s43, s28')
    a('s_add_u32 s43, s43, 32768')
    a('v_bfe_u32 v9, v1, 1, 1')
    a('v_and_b32 v10, 1, v1')
    a('v_lshlrev_b32 v10, 7, v10')
    a('v_lshl_add_u32 v9, v9, 10, v10')
    a('v_cmp_gt_u32 vcc, 8, v1')
    a('v_add_u32 v9, s43, v9')
    a('s_mov_b64 exec, 0xfff')
    a('v_cndmask_b32 v8, v9, v8, vcc')
    a('buffer_load_dword v7, v8, s[%d:%d], s42 offen' % (SO, SO + 3))
    a('s_mov_b64 exec, -1')
    a('s_mov_b32 s43, %d' % A_V0)
    S = lambda t: 64 + 16 * t
    OA = 208
    KB = [224, 232, 240]
    for b in KB:
        for r in range(6, 8):
            a('v_mov_b32 v%d, 0' % (b + r))
    a('v_lshlrev_b32 v11, 2, v4')
    a('v_sub_u32 v11, v3, v11')
    MK = 56
    for n in range(16):
        a('v_cmp_gt_i32 s[%d:%d], %d, v11' % (MK + 2 * n, MK + 2 * n + 1, 8 * (n >> 2) + (n & 3)))
    MB = 28
    a('v_mov_b32 v26, 0xffff')
    a('v_mov_b32 v27, 0xffff0000')
    for n in range(8):
        a('v_cndmask_b32 v%d, 0, v26, s[%d:%d]' % (MB + n, MK + 4 * n, MK + 4 * n + 1))
        a('v_cndmask_b32 v25, 0, v27, s[%d:%d]' % (MK + 4 * n + 2, MK + 4 * n + 3))
        a('v_or_b32 v%d, v%d, v25' % (MB + n, MB + n))
    a('v_add_u32 v20, s27, v3')
    a('v_lshlrev_b32 v21, 4, v20')
    a('v_lshl_add_u32 v21, v4, 13, v21')
    a('v_lshlrev_b32 v20, 3, v20')
    a('v_add_u32 v20, %d, v20' % A_KT)
    a('v_bfe_u32 v22, v1, 2, 2')
    a('v_lshl_add_u32 v22, v4, 2, v22')
    a('v_add_u32 v22, s27, v22')
    a('v_lshlrev_b32 v22, 4, v22')
    a('v_bfe_u32 v23, v1, 1, 1')
    a('v_mul_u32_u24 v23, %d, v23' % (A_V1 - A_V0))
    a('v_and_b32 v25, 1, v1')
    a('v_lshl_add_u32 v23, v25, 3, v23')
    a('v_and_b32 v25, 16, v1')
    a('v_cmp_eq_u32 vcc, 0, v25')
    a('v_mov_b32 v25, %d' % (A_VT - A_V0))
    a('v_mov_b32 v24, 0xf149f2ca')
    a('v_cndmask_b32 v23, v25, v23, vcc')
    a('v_add3_u32 v22, v22, v23, s43')
    a('s_sub_u32 s42, 8, s26')
    a('s_cmp_eq_u32 s25, 0')
    a('s_cselect_b32 s42, s42, 0')
    a('s_cmp_ge_u32 s26, 4')
    a('s_cbranch_scc1 attn_noprio')
    a('s_setprio 2')
    a.label('attn_noprio')
    stamp(a)
    a('s_waitcnt vmcnt(2)')
    a('s_barrier')
    stamp(a)

    def kread(t):
        b = KB[t % 3]
        a('ds_read_b128 %s, v21 offset:%d' % (vr(b, 4), t * 512))
        a('ds_read_b64 %s, v20 offset:%d' % (vr(b + 4, 2), t * 256))

    def tmax(t, first):
        a('s_cmp_le_u32 s42, %d' % t)
        a('s_cbranch_scc1 attn_ok%d' % t)
        for n in range(16):
            a('v_mov_b32 %s, v24' % vr(S(t) + n))
        a.label('attn_ok%d' % t)
        if t == 0:
            return
        for n in range(0, 16, 2):
            m = 25 + ((n >> 1) & 1)
            if first and n < 4:
                a('v_max_f32 v%d, %s, %s' % (m, vr(S(t) + n), vr(S(t) + n + 1)))
            else:
                a('v_max3_f32 v%d, v%d, %s, %s' % (m, m, vr(S(t) + n), vr(S(t) + n + 1)))
    kread(0)
    kread(1)
    for t in range(9):
        if t + 2 < 9:
            kread(t + 2)
            a('s_waitcnt lgkmcnt(4)')
        elif t + 1 < 9:
            a('s_waitcnt lgkmcnt(2)')
        else:
            a('s_waitcnt lgkmcnt(0)')
        b = KB[t % 3]
        a('v_mfma_f32_32x32x16_bf16 %s, %s, %s, 0' % (vr(S(t), 16), vr(b, 4), vr(Q1, 4)))
        a('v_mfma_f32_32x32x16_bf16 %s, %s, %s, %s' % (vr(S(t), 16), vr(b + 4, 4), vr(Q2, 4), vr(S(t), 16)))
        if t >= 2:
            if t == 2:
                a('s_nop 3')
            tmax(t - 2, t == 3)
    tmax(7, False)
    stamp(a)
    stamp(a)
    VB = [224, 232, 240, 248]
    seq = [1, 2, 3, 4, 5, 6, 7, 0, 8]

    def vread(k):
        t = seq[k]
        b = VB[k % 4]
        for ks in range(2):
            for hf in range(2):
                a('ds_read_b64_tr_b16 %s, v22 offset:%d' % (vr(b + 4 * ks + 2 * hf, 2), (32 * t + 16 * ks + 8 * hf) * 16))
    vread(0)
    vread(1)
    vread(2)
    for n in range(16):
        a('v_cndmask_b32 %s, %s, %s, s[%d:%d]' % (vr(S(0) + n), vr(S(8) + n), vr(S(0) + n), MK + 2 * n, MK + 2 * n + 1))
    for n in range(0, 16, 2):
        m = 25 + ((n >> 1) & 1)
        a('v_max3_f32 v%d, v%d, %s, %s' % (m, m, vr(S(0) + n), vr(S(0) + n + 1)))
    a('v_max_f32 v25, v25, v26')
    a('v_mov_b32 v26, v25')
    a('s_mov_b32 s28, 0x%x' % f32bits(LOG2E * 18 ** -0.5))
    a('s_nop 0')
    a('v_permlane32_swap_b32 v25, v26')
    stamp(a)
    a('s_nop 0')
    a('v_max_f32 v25, v25, v26')
    a('v_mul_f32 v25, s28, v25')
    for k in range(9):
        t = seq[k]
        if t != 8:
            for n in range(16):
                a('v_fma_f32 %s, %s, s28, -v25' % (vr(S(t) + n), vr(S(t) + n)))
            for n in range(16):
                a('v_exp_f32 %s, %s' % (vr(S(t) + n), vr(S(t) + n)))
            for n in range(8):
                a('v_cvt_pk_bf16_f32 %s, %s, %s' % (vr(S(t) + n), vr(S(t) + 2 * n), vr(S(t) + 2 * n + 1)))
        if t == 0:
            for n in range(8):
                a('v_bfi_b32 %s, v%d, 0, %s' % (vr(S(8) + n), MB + n, vr(S(0) + n)))
            for n in range(8):
                a('v_and_b32 %s, v%d, %s' % (vr(S(0) + n), MB + n, vr(S(0) + n)))
        rem = min(8 - k, 2)
        a('s_waitcnt lgkmcnt(%d)' % (4 * rem))
        b = VB[k % 4]
        c = '0' if k == 0 else vr(OA, 16)
        a('v_mfma_f32_32x32x16_bf16 %s, %s, %s, %s' % (vr(OA, 16), vr(b, 4), vr(S(t), 4), c))
        a('v_mfma_f32_32x32x16_bf16 %s, %s, %s, %s' % (vr(OA, 16), vr(b + 4, 4), vr(S(t) + 4, 4), vr(OA, 16)))
        if k + 3 < 9:
            vread(k + 3)
    stamp(a)
    a('s_lshr_b32 s30, s30, 5')
    a('s_mul_i32 s30, s30, 36864')
    a('s_lshr_b32 s31, s24, 1')
    a('s_lshl_b32 s31, s31, 11')
    a('s_and_b32 s29, s24, 1')
    a('s_lshl_b32 s29, s29, 9')
    a('s_add_u32 s31, s31, s29')
    a('s_add_u32 s31, s31, s30')
    a('v_bfe_u32 v26, v1, 4, 1')
    a('v_and_b32 v27, 15, v1')
    a('v_lshlrev_b32 v27, 4, v27')
    a('v_lshl_add_u32 v27, v26, 10, v27')
    a('v_lshl_add_u32 v28, v4, 8, v27')
    a('s_lshr_b32 s29, s24, 4')
    a('s_lshl_b32 s29, s29, 11')
    a('s_add_u32 s30, s30, s29')
    a('s_bfe_u32 s29, s24, 0x20002')
    a('s_lshl_b32 s29, s29, 8')
    a('s_add_u32 s30, s30, s29')
    a('s_and_b32 s29, s24, 3')
    a('s_lshl_b32 s29, s29, 2')
    a('s_add_u32 s30, s30, s29')
    a('s_add_u32 s30, s30, 32768')
    a('v_rcp_f32 v25, %s' % vr(OA + 10))
    a('s_nop 0')
    for n in range(10):
        a('v_mul_f32 %s, v25, %s' % (vr(OA + n), vr(OA + n)))
    for n in range(5):
        a('v_cvt_pk_bf16_f32 %s, %s, %s' % (vr(OA + n), vr(OA + 2 * n), vr(OA + 2 * n + 1)))
    a('buffer_store_dwordx4 %s, v28, s[%d:%d], s31 offen' % (vr(OA, 4), SO, SO + 3))
    a('s_mov_b32 exec_hi, 0')
    a('buffer_store_dword %s, v27, s[%d:%d], s30 offen' % (vr(OA + 4), SO, SO + 3))
    stamp(a)
    a('s_waitcnt vmcnt(0)') if STAMP else None
    stamp(a)
    stamp_rt(a)
    stamp_flush(a, 2)
    STAMP_REGS[:] = list(range(72, 94))
    a.label('attn_end')
    a('s_endpgm')
    return [(nm, 256, 96) for (nm, _) in insts]


def gen_wo(a, kind, insts):
    body = 'wo%s_body' % kind
    end = 'wo%s_end' % kind
    SX, SY, SW, SI, SK, SP = 32, 36, 40, 44, 48, 52
    for (nm, xsrc, ydst, kvoff) in insts:
        entry(a, nm)
        a('s_cmp_ge_u32 s2, 256')
        a('s_cbranch_scc1 %s' % end)
        a('s_load_dwordx2 s[18:19], s[0:1], 56')
        a('s_load_dwordx2 s[22:23], s[0:1], 72')
        a('s_mov_b32 s9, 0x%x' % kvoff)
        a('s_mov_b32 s61, %d' % (1 if ydst[0] == 'in' else 0))
        a('s_branch %s' % body)
    a.label(body)
    vm = VM(a)
    a('s_and_b32 s24, s2, 3')
    a('s_lshl_b32 s24, s24, 4')
    a('s_lshr_b32 s25, s2, 4')
    a('s_add_u32 s24, s24, s25')
    a('s_bfe_u32 s25, s2, 0x20002')
    a('s_and_b32 s27, s25, 1')
    a('s_lshl_b32 s27, s27, 1')
    a('s_lshr_b32 s25, s25, 1')
    a('s_add_u32 s25, s25, s27')
    a('v_lshrrev_b32 v2, 6, v0')
    a('v_and_b32 v1, 63, v0')
    a('v_readfirstlane_b32 s26, v2')
    a('v_lshlrev_b32 v5, 4, v1')
    WFr = (lambda t: 96 + 4 * t) if kind == 'B' else (lambda t: 116 + 4 * t if t < 13 else 56 + 4 * (t - 13))
    LO = 98304
    a('s_mul_i32 s27, s25, 9')
    a('s_add_u32 s27, s27, s26')
    a('s_mul_i32 s31, s27, 18432')

    def ptrs():
        a('s_waitcnt lgkmcnt(0)')
        stamp(a)
        stamp_rt(a)
        if kind == 'A':
            srd(a, SK, P_WS, 's9', KV_SZ)
            srd(a, SI, P_WS, PHIQ, PHIQ_SZ)
        else:
            srd(a, SI, P_WS, OIMG, OIMG_SZ)

    def ptrs2():
        srd(a, SW, P_WS, WOA if kind == 'A' else WOB, WO_SZ)
        srd(a, SX, P_WS, X0, X_SZ)
        a('s_cmp_eq_u32 s61, 0')
        a('s_cselect_b32 s%d, s%d, s%d' % (SY, SX, P_OUT))
        a('s_cselect_b32 s%d, s%d, s%d' % (SY + 1, SX + 1, P_OUT + 1))
        a('s_mov_b32 s%d, 0x%x' % (SY + 2, X_SZ))
        a('s_mov_b32 s%d, 0x00020000' % (SY + 3))
    wst = {'t': 0}

    def wload(n):
        for _ in range(n):
            t = wst['t']
            if t >= 18:
                return
            if t and t % 4 == 0:
                a('s_add_u32 s31, s31, 4096')
            a('buffer_load_dwordx4 %s, v5, s[%d:%d], s31 offen offset:%d' % (vr(WFr(t), 4), SW, SW + 3, (t & 3) * 1024))
            vm.issue(('w', t))
            wst['t'] += 1
    if kind == 'B':
        LO = 0
        a('s_lshl_b32 s28, s26, 12')
        a('s_mov_b32 m0, s28')
        a('s_mul_i32 s29, s24, 36864')
        a('s_add_u32 s28, s28, s29')
        ptrs()
        for p in range(4):
            a('buffer_load_dwordx4 v5, s[%d:%d], s28 offen offset:%d lds' % (SI, SI + 3, p * 1024))
            vm.issue()
        vm.tags['img'] = vm.n
        ptrs2()
        a('s_barrier')
        wload(6)
    else:
        a('s_mul_i32 s28, s26, 12288')
        a('s_mov_b32 m0, s28')
        a('s_mul_i32 s28, s26, %d' % (4 * KV_HEAD))
        PH = 12
        a('s_lshl_b32 s29, s24, 5')
        a('s_lshl_b32 s30, s26, 2')
        a('s_add_u32 s29, s29, s30')
        a('s_mul_i32 s29, s29, 2304')
        a('v_and_b32 v3, 31, v1')
        a('v_lshlrev_b32 v6, 3, v3')
        for hh in range(4):
            for r in range(8, 12):
                a('v_mov_b32 v%d, 0' % (PH + 12 * hh + r))
        ptrs()
        a('s_cmp_eq_u32 s26, 8')
        a('s_cbranch_scc1 woA_w8')
        pieces_for = [3, 6, 9, 12]
        p = 0
        for hh in range(4):
            while p < pieces_for[hh]:
                if p in (4, 8):
                    a('s_add_u32 m0, m0, 4096')
                    a('s_add_u32 s28, s28, 4096')
                a('buffer_load_dwordx4 v5, s[%d:%d], s28 offen offset:%d lds' % (SK, SK + 3, (p & 3) * 1024))
                vm.issue()
                p += 1
            a('buffer_load_dwordx4 %s, v5, s[%d:%d], s29 offen' % (vr(PH + 12 * hh, 4), SI, SI + 3))
            a('buffer_load_dwordx4 %s, v5, s[%d:%d], s29 offen offset:1024' % (vr(PH + 12 * hh + 4, 4), SI, SI + 3))
            a('s_mov_b32 exec_hi, 0')
            a('buffer_load_dwordx2 %s, v6, s[%d:%d], s29 offen offset:2048' % (vr(PH + 12 * hh + 8, 2), SI, SI + 3))
            a('s_mov_b32 exec_hi, -1')
            vm.issue(); vm.issue(); vm.issue(('phi', hh))
            if hh < 3:
                a('s_add_u32 s29, s29, 2304')
        a.label('woA_w8')
        ptrs2()
        a('s_barrier')
        wload(4)
    a('v_and_b32 v7, 15, v1')
    a('v_bfe_u32 v8, v1, 4, 1')
    a('v_mul_u32_u24 v2, 18432, v8')
    a('v_lshl_add_u32 v2, v7, 4, v2')
    a('v_lshrrev_b32 v4, 5, v1')
    a('v_lshl_add_u32 v7, v4, 8, v2')
    a('s_mul_i32 s29, s24, 36864')
    a('s_lshl_b32 s28, s27, 9')
    a('s_add_u32 s29, s29, s28')
    if kind == 'A':
        srd(a, SP, P_WS, WQB, WQ_SZ)
        a('s_bfe_u32 s56, s2, 0x10002')
        a('s_lshr_b32 s57, s2, 3')
        a('s_mov_b32 s58, 126')
        pf_setup(a, 60, 58, WQ_SZ // 2, 56, 57, 26, 59)
    stamp(a)

    def xload():
        a('buffer_load_dwordx4 v[52:55], v7, s[%d:%d], s29 offen' % (SX, SX + 3))
        vm.issue('x')
    if kind == 'A':
        a('s_cmp_eq_u32 s26, 8')
        a('s_cbranch_scc1 woA_s2')
        a('v_min_u32 v8, 18, v3')
        a('v_and_b32 v9, 3, v8')
        a('v_lshlrev_b32 v9, 8, v9')
        a('v_lshrrev_b32 v4, 2, v8')
        a('v_lshl_add_u32 v9, v4, 6, v9')
        a('v_lshlrev_b32 v4, 6, v8')
        a('v_cmp_gt_u32 vcc, 16, v8')
        a('s_mul_i32 s28, s26, 12288')
        a('v_lshlrev_b32 v8, 2, v8')
        a('v_cndmask_b32 v9, v4, v9, vcc')
        a('v_add_u32 v8, s28, v8')
        a('v_lshrrev_b32 v4, 5, v1')
        a('v_lshl_add_u32 v9, v4, 5, v9')
        a('v_add_u32 v9, s28, v9')
        a('v_bfe_u32 v10, v1, 4, 1')
        a('v_and_b32 v11, 15, v1')
        a('v_lshlrev_b32 v11, 4, v11')
        a('v_lshl_add_u32 v11, v10, 10, v11')
        a('v_lshl_add_u32 v10, v4, 8, v11')
        a('s_lshl_b32 s28, s26, 12')
        a('s_add_u32 s28, s28, %d' % LO)
        a('v_add_u32 v10, s28, v10')
        a('s_lshr_b32 s28, s26, 2')
        a('s_lshl_b32 s28, s28, 11')
        a('s_and_b32 s30, s26, 3')
        a('s_lshl_b32 s30, s30, 8')
        a('s_add_u32 s28, s28, s30')
        a('s_add_u32 s28, s28, %d' % (LO + 32768))
        a('v_add_u32 v11, s28, v11')
        STS, OC = [60, 80], 100

        def kvread(hh):
            ST, o = STS[hh & 1], hh * KV_HEAD
            vm.wait(('phi', hh))
            a('ds_read_b128 %s, v9 offset:%d' % (vr(ST, 4), o))
            a('ds_read_b128 %s, v9 offset:%d' % (vr(ST + 4, 4), o + 16))
            a('ds_read_b128 %s, v9 offset:%d' % (vr(ST + 8, 4), o + 1216))
            a('ds_read_b128 %s, v9 offset:%d' % (vr(ST + 12, 4), o + 1232))
            for ft in range(4):
                a('ds_read_b32 %s, v8 offset:%d' % (vr(ST + 16 + ft), o + 2432 + ft * 128))

        def cvt(hh):
            ST = STS[hh & 1]
            for n in range(10):
                a('v_cvt_pk_bf16_f32 %s, %s, %s' % (vr(ST + n), vr(ST + 2 * n), vr(ST + 2 * n + 1)))
            a('v_mov_b32 %s, 0' % vr(ST + 10))
            a('v_mov_b32 %s, 0' % vr(ST + 11))
        kvread(0)
        a('s_waitcnt lgkmcnt(0)')
        cvt(0)
        for hh in range(4):
            ST = STS[hh & 1]
            if hh < 3:
                kvread(hh + 1)
            else:
                a('s_nop 1')
            P = PH + 12 * hh
            a('v_mfma_f32_32x32x16_bf16 %s, %s, %s, 0' % (vr(OC, 16), vr(ST, 4), vr(P, 4)))
            a('v_mfma_f32_32x32x16_bf16 %s, %s, %s, %s' % (vr(OC, 16), vr(ST + 4, 4), vr(P + 4, 4), vr(OC, 16)))
            a('v_mfma_f32_32x32x16_bf16 %s, %s, %s, %s' % (vr(OC, 16), vr(ST + 8, 4), vr(P + 8, 4), vr(OC, 16)))
            wload(3 if hh < 3 else 0)
            if hh < 3:
                a('s_waitcnt lgkmcnt(0)')
                cvt(hh + 1)
            else:
                a('s_nop 11')
            a('v_add_f32 v2, 0x%x, %s' % (f32bits(1e-6), vr(OC + 10)))
            a('v_rcp_f32 v2, v2')
            a('s_nop 0')
            for n in range(10):
                a('v_mul_f32 %s, v2, %s' % (vr(OC + n), vr(OC + n)))
            for n in range(5):
                a('v_cvt_pk_bf16_f32 %s, %s, %s' % (vr(OC + n), vr(OC + 2 * n), vr(OC + 2 * n + 1)))
            a('ds_write_b128 v10, %s offset:%d' % (vr(OC, 4), (hh >> 1) * 2048 + (hh & 1) * 512))
            a('s_mov_b32 exec_hi, 0')
            a('ds_write_b32 v11, %s offset:%d' % (vr(OC + 4), hh * 4))
            a('s_mov_b32 exec_hi, -1')
        a('s_branch woA_s1done')
        a.label('woA_s2')
        wst['t'] = 4
        vm.n -= 9
        a('s_mul_i32 s31, s27, 18432')
        wload(9)
        a.label('woA_s1done')
        a('s_waitcnt lgkmcnt(0)')
        wload(5)
        xload()
    else:
        xload()
        vm.wait('img')
    stamp(a)
    a('s_barrier')
    stamp(a)
    a('v_add_u32 v8, %d, v5' % LO)
    OB = [12, 20, 28, 36]
    C0, C1 = 44, 48

    def oread(t):
        b = OB[t % 4]
        a('ds_read_b128 %s, v8 offset:%d' % (vr(b, 4), t * 2048))
        a('ds_read_b128 %s, v8 offset:%d' % (vr(b + 4, 4), t * 2048 + 1024))
    for t in range(3):
        oread(t)
    pfdone = False
    for t in range(18):
        wload(2)
        if kind == 'A' and wst['t'] >= 18 and not pfdone:
            a('v_lshlrev_b32 v9, 7, v1')
            a('buffer_load_dword v10, v9, s[%d:%d], s60 offen' % (SP, SP + 3))
            vm.issue()
            pfdone = True
        if t + 3 < 18:
            oread(t + 3)
        rem = min(17 - t, 3)
        a('s_waitcnt vmcnt(%d) lgkmcnt(%d)' % (vm.cnt(('w', t)), 2 * rem))
        b = OB[t % 4]
        a('v_mfma_f32_16x16x32_bf16 %s, %s, %s, %s' % (vr(C0, 4), vr(WFr(t), 4), vr(b, 4), '0' if t == 0 else vr(C0, 4)))
        a('v_mfma_f32_16x16x32_bf16 %s, %s, %s, %s' % (vr(C1, 4), vr(WFr(t), 4), vr(b + 4, 4), '0' if t == 0 else vr(C1, 4)))
    stamp(a)
    vm.wait('x')
    for i in range(4):
        a('v_lshlrev_b32 v%d, 16, v%d' % (16 + 2 * i, 52 + i))
        a('v_and_b32 v%d, 0xffff0000, v%d' % (17 + 2 * i, 52 + i))
    a('s_cmp_eq_u32 s61, 0')
    a('s_cbranch_scc1 %s_fm' % body)
    a('v_and_b32 v7, 31, v1')
    a('v_mul_u32_u24 v7, 1152, v7')
    a('v_lshrrev_b32 v4, 5, v1')
    a('v_lshl_add_u32 v7, v4, 4, v7')
    a('s_mul_i32 s29, s24, 36864')
    a('s_lshl_b32 s28, s27, 5')
    a('s_add_u32 s29, s29, s28')
    a.label('%s_fm' % body)
    a('s_nop 1')
    for i in range(4):
        a('v_cvt_pk_bf16_f32 v%d, v%d, v%d' % (24 + i, C0 + 2 * i, C0 + 2 * i + 1))
    a('s_nop 1')
    a('v_permlane16_swap_b32 v24, v26')
    a('v_permlane16_swap_b32 v25, v27')
    for i in range(4):
        a('v_lshlrev_b32 v%d, 16, v%d' % (28 + 2 * i, 24 + i))
        a('v_and_b32 v%d, 0xffff0000, v%d' % (29 + 2 * i, 24 + i))
    for i in range(8):
        a('v_add_f32 v%d, v%d, v%d' % (16 + i, 16 + i, 28 + i))
    for i in range(4):
        a('v_cvt_pk_bf16_f32 v%d, v%d, v%d' % (24 + i, 16 + 2 * i, 17 + 2 * i))
    a('buffer_store_dwordx4 v[24:27], v7, s[%d:%d], s29 offen' % (SY, SY + 3))
    stamp(a)
    a('s_waitcnt vmcnt(0)') if STAMP else None
    stamp(a)
    stamp_rt(a)
    stamp_flush(a, 3 if kind == 'A' else 4)
    a.label(end)
    a('s_endpgm')
    return [(i[0], 168, 96) for i in insts]


def build():
    a = Asm()
    ks = []
    ks += gen_prep(a)
    ks += gen_qkv(a, 'A', [('qkva1_kernel', ('ws', X0), KV1), ('qkva3_kernel', ('ws', X0), KV3)])
    ks += gen_qkv(a, 'B', [('qkvb2_kernel', ('ws', X0), 0), ('qkvb4_kernel', ('ws', X0), 0)])
    ks += gen_attn(a, [('attn2_kernel', 126), ('attn4_kernel', 0)])
    ks += gen_wo(a, 'A', [('woa1_kernel', ('ws', X0), ('ws', X0), KV1), ('woa3_kernel', ('ws', X0), ('ws', X0), KV3)])
    ks += gen_wo(a, 'B', [('wob2_kernel', ('ws', X0), ('ws', X0), 0), ('wob4_kernel', ('ws', X0), ('in', P_OUT), 0)])
    LQA, LQB = 143 * 1024 + 512, 127 * 1024 + 512
    launches = [
        ('prep_kernel', NPREP, 192, 28416),
        ('qkva1_kernel', 256, 512, LQA),
        ('woa1_kernel', 256, 576, 98304 + 36864),
        ('qkvb2_kernel', 256, 512, LQB),
        ('attn2_kernel', 256, 512, A_LDS),
        ('wob2_kernel', 256, 576, 36864),
        ('qkva3_kernel', 256, 512, LQA),
        ('woa3_kernel', 256, 576, 98304 + 36864),
        ('qkvb4_kernel', 256, 512, LQB),
        ('attn4_kernel', 256, 512, A_LDS),
        ('wob4_kernel', 256, 576, 36864),
    ]
    out = []
    out.append('; generated by work/gen.py -- interleaved hedgehog linear attention / sliding window attention stack')
    for (k, g, b, l) in launches:
        out.append('; @launch kernel=%s grid=(%d,1,1) block=(%d,1,1) lds=%d' % (k, g, b, l))
    out.append('.amdgcn_target "amdgcn-amd-amdhsa--gfx950"')
    out.append('.text')
    out += a.L
    out.append('.section .rodata,"a"')
    for (k, v, s) in ks:
        out.append('.p2align 6')
        out.append(kdesc(k, v, s))
    return '\n'.join(out) + '\n'


if __name__ == '__main__':
    if len(sys.argv) > 2 and sys.argv[2] == 'stamp':
        STAMP = True
    dst = sys.argv[1] if len(sys.argv) > 1 else 'cdna_kernels/%s.s' % NAME
    open(dst, 'w').write(build())
    print('wrote', dst)
```

```python
import sys, struct, os

NAME = 'interleave_layers__linear_kernel_hedgehog__sliding_block__prompt'

WQA = 0x000000
WQB = 0x200000
WQ_SZ = 16 * 18 * 7 * 1024
WOA = 0x400000
WOB = 0x500000
WO_SZ = 4 * 9 * 18 * 1024
CSA = 0x600000
CSB = 0x608000
CS_SZ = 16 * 3 * 448
TPHI = 0x610000
TPHI_SZ = 16 * 15 * 1024
KV1 = 0x660000
KV3 = 0x660000 + 32 * 2944
KV_HEAD = 2944
KV_SZ = 32 * KV_HEAD
X1 = 0x700000
X2 = 0x940000
X3 = 0xB80000
X_SZ = 2048 * 1152
PHIQ = 0xE00000
PHIQ_SZ = 64 * 32 * 2304
REC = 0x1300000
REC_HEAD = 262144
REC_SZ = 32 * REC_HEAD
R_Q0, R_K0, R_K1, R_V0, R_V1, R_VT, R_QT, R_KT = 0, 65536, 98304, 131072, 163840, 196608, 229376, 245760
X0 = 0x1F00000
OIMG = 0x1C00000
OIMG_SZ = 64 * 36864

LOG2E = 1.4426950408889634


def f32bits(x):
    return struct.unpack('<I', struct.pack('<f', x))[0]


class Asm:
    def __init__(self):
        self.L = []

    def __call__(self, s):
        self.L.append('    ' + s)

    def label(self, l):
        self.L.append(l + ':')

    def c(self, s):
        self.L.append('    ; ' + s)

    def raw(self, s):
        self.L.append(s)


class VM:
    def __init__(self, a):
        self.a = a
        self.n = 0
        self.tags = {}

    def issue(self, tag=None):
        self.n += 1
        if tag is not None:
            self.tags[tag] = self.n

    def cnt(self, tag):
        return self.n - self.tags[tag]

    def wait(self, tag):
        self.a('s_waitcnt vmcnt(%d)' % self.cnt(tag))


def vr(b, n=1):
    return 'v%d' % b if n == 1 else 'v[%d:%d]' % (b, b + n - 1)


def sr(b, n=1):
    return 's%d' % b if n == 1 else 's[%d:%d]' % (b, b + n - 1)


P_AX, P_AWQKV, P_AWPHI, P_AWO, P_BX, P_BWQKV, P_BWO, P_OUT, P_DBG, P_WS = 4, 6, 8, 10, 12, 14, 16, 18, 20, 22


def load_kernargs(a):
    a('s_load_dwordx16 s[4:19], s[0:1], 0')
    a('s_load_dwordx4 s[20:23], s[0:1], 64')


def srd(a, d, base, off, size):
    if off == 0:
        a('s_mov_b32 s%d, s%d' % (d, base))
        a('s_mov_b32 s%d, s%d' % (d + 1, base + 1))
    else:
        o = off if isinstance(off, str) else '0x%x' % off
        a('s_add_u32 s%d, s%d, %s' % (d, base, o))
        a('s_addc_u32 s%d, s%d, 0' % (d + 1, base + 1))
    a('s_mov_b32 s%d, 0x%x' % (d + 2, size))
    a('s_mov_b32 s%d, 0x00020000' % (d + 3))


def kdesc(name, vgpr, sgpr=96):
    acc = (vgpr + 3) // 4 * 4
    return '''.amdhsa_kernel %s
  .amdhsa_next_free_vgpr %d
  .amdhsa_next_free_sgpr %d
  .amdhsa_accum_offset %d
  .amdhsa_group_segment_fixed_size 0
  .amdhsa_kernarg_size 80
  .amdhsa_user_sgpr_count 2
  .amdhsa_user_sgpr_kernarg_segment_ptr 1
  .amdhsa_system_sgpr_workgroup_id_x 1
.end_amdhsa_kernel
''' % (name, vgpr, sgpr, acc)


def entry(a, name):
    a.raw('.p2align 8')
    a.raw('.globl %s' % name)
    a.raw('.type %s,@function' % name)
    a.label(name)


STAMP = False
STAMP_OFF = 0x3000000
_stamp_n = [0]
STAMP_REGS = list(range(72, 94))


def stamp(a):
    if not STAMP:
        return
    n = _stamp_n[0]
    a('s_memtime s[94:95]')
    a('s_waitcnt lgkmcnt(0)')
    a('s_mov_b32 s%d, s94' % STAMP_REGS[n])
    _stamp_n[0] += 1


def stamp_rt(a):
    if not STAMP:
        return
    n = _stamp_n[0]
    a('s_memrealtime s[94:95]')
    a('s_waitcnt lgkmcnt(0)')
    a('s_mov_b32 s%d, s94' % STAMP_REGS[n])
    _stamp_n[0] += 1


def stamp_flush(a, kid):
    if not STAMP:
        return
    a('s_getreg_b32 s%d, hwreg(HW_REG_XCC_ID)' % STAMP_REGS[_stamp_n[0]])
    n = _stamp_n[0] + 1
    _stamp_n[0] = 0
    a('s_mov_b64 exec, 1')
    a('s_add_u32 s68, s%d, 0x%x' % (P_WS, STAMP_OFF + kid * 0x100000))
    a('s_addc_u32 s69, s%d, 0' % (P_WS + 1))
    a('s_mov_b32 s70, 0x100000')
    a('s_mov_b32 s71, 0x00020000')
    a('s_lshl_b32 s94, s2, 4')
    a('s_add_u32 s94, s94, s26')
    a('s_lshl_b32 s94, s94, 7')
    a('v_mov_b32 v1, 0')
    for i in range(n):
        a('v_mov_b32 v2, s%d' % STAMP_REGS[i])
        a('buffer_store_dword v2, v1, s[68:71], s94 offen offset:%d' % (4 * i))
        a('s_nop 1')


def bf16r(a, v, tmp):
    a('v_cvt_pk_bf16_f32 %s, %s, %s' % (vr(tmp), vr(v), vr(v)))
    a('v_lshlrev_b32 %s, 16, %s' % (vr(v), vr(tmp)))


def magic(dv, maxv):
    for sh in range(4, 24):
        mul = (1 << sh) // dv + 1
        if all((x * mul) >> sh == x // dv for x in range(maxv + 1)):
            return mul, sh
    raise ValueError


def sdiv(a, dq, dr, src, dv, maxv):
    mul, sh = magic(dv, maxv)
    a('s_mul_i32 s%d, s%d, %d' % (dq, src, mul))
    a('s_lshr_b32 s%d, s%d, %d' % (dq, dq, sh))
    a('s_mul_i32 s%d, s%d, %d' % (dr, dq, dv))
    a('s_sub_u32 s%d, s%d, s%d' % (dr, src, dr))


NPREP = 460
CODEPF = int(os.environ.get('CODEPF', 1))


def gen_prep(a):
    entry(a, 'prep_kernel')
    a('s_cmp_ge_u32 s2, %d' % NPREP)
    a('s_cbranch_scc1 prep_end')
    load_kernargs(a)
    a('v_and_b32 v1, 63, v0')
    a('v_lshrrev_b32 v2, 6, v0')
    a('v_and_b32 v3, 7, v1')
    a('v_readfirstlane_b32 s24, v2')
    a('v_lshrrev_b32 v4, 3, v1')
    a('s_waitcnt lgkmcnt(0)')
    stamp(a)
    stamp_rt(a)
    if STAMP:
        a('s_mov_b32 s74, s72')
    if CODEPF:
        a('s_cmp_ge_u32 s2, 24')
        a('s_cbranch_scc1 prep_nocpf')
        a('s_getpc_b64 s[56:57]')
        a.label('prep_pc')
        a('s_lshr_b32 s58, s2, 3')
        a('s_mul_i32 s58, s58, 3')
        a('s_add_u32 s58, s58, s24')
        a('s_lshl_b32 s58, s58, 13')
        a('v_lshlrev_b32 v62, 7, v1')
        a('v_add_u32 v62, s58, v62')
        a('v_cmp_gt_u32 vcc, code_end-prep_pc-4, v62')
        a('s_and_saveexec_b64 s[58:59], vcc')
        a('s_cbranch_execz prep_cpf_skip')
        a('global_load_dword v63, v62, s[56:57]')
        a.label('prep_cpf_skip')
        a('s_mov_b64 exec, -1')
        a.label('prep_nocpf')
    a('s_cmp_ge_u32 s2, 332')
    a('s_cbranch_scc1 prep_x')
    a('s_cmp_ge_u32 s2, 308')
    a('s_cbranch_scc1 prep_zero')
    a('s_cmp_ge_u32 s2, 296')
    a('s_cbranch_scc1 prep_spec')
    a('s_cmp_ge_u32 s2, 216')
    a('s_cbranch_scc1 prep_phi')
    a('s_cmp_ge_u32 s2, 162')
    a('s_cbranch_scc1 prep_wo')
    a('s_cmp_ge_u32 s2, 81')
    a('s_cselect_b32 s32, s%d, s%d' % (P_BWQKV, P_AWQKV))
    a('s_cselect_b32 s33, s%d, s%d' % (P_BWQKV + 1, P_AWQKV + 1))
    a('s_cselect_b32 s25, 0x%x, 0' % (WQB - WQA))
    a('s_cselect_b32 s29, 0x%x, 0' % (CSB - CSA))
    a('s_cselect_b32 s26, 81, 0')
    a('s_add_u32 s29, s29, 0x%x' % CSA)
    a('s_mov_b32 s34, %d' % (576 * 3456))
    a('s_mov_b32 s35, 0x00020000')
    srd(a, 36, P_WS, 's25', WQ_SZ)
    srd(a, 52, P_WS, 's29', CS_SZ)
    a('s_sub_u32 s26, s2, s26')
    sdiv(a, 27, 28, 26, 3, 80)
    sdiv(a, 29, 30, 27, 9, 26)
    a('s_mul_i32 s31, s28, 3')
    a('s_add_u32 s31, s31, s24')
    for e in range(8):
        a('s_mov_b32 s%d, %d' % (40 + e, e * 3456))
    a('s_lshl_b32 s30, s30, 6')
    a('v_lshl_add_u32 v5, v3, 3, s30')
    a('s_lshl_b32 s48, s31, 3')
    a('v_add_u32 v6, s48, v4')
    a('v_mul_u32_u24 v7, %d, v6' % (8 * 3456))
    a('v_lshl_add_u32 v7, v5, 1, v7')
    a('s_mul_i32 s48, s29, 1152')
    a('v_add_u32 v7, s48, v7')
    for e in range(8):
        a('buffer_load_dwordx4 v[%d:%d], v7, s[32:35], s%d offen' % (16 + 4 * e, 19 + 4 * e, 40 + e))
    a('v_mov_b32 v8, 0')
    a('s_mul_i32 s62, s31, 14336')
    a('s_add_u32 s63, s62, 7168')
    a('s_lshl_b32 s48, s29, 11')
    a('s_lshl_b32 s49, s29, 6')
    a('s_add_u32 s49, s49, 5888')
    a('s_mov_b32 s50, 129024')

    def coldest(dst, rem, tgreg, t0):
        h, d, x, y = t0, t0 + 1, t0 + 2, t0 + 3
        a('v_mul_u32_u24 v%d, 3641, v%d' % (h, rem))
        a('v_lshrrev_b32 v%d, 16, v%d' % (h, h))
        a('v_mul_u32_u24 v%d, 18, v%d' % (d, h))
        a('v_sub_u32 v%d, v%d, v%d' % (d, rem, d))
        a('v_and_b32 v%d, 1, v%d' % (x, h))
        a('v_cmp_gt_u32 vcc, 16, v%d' % d)
        a('v_lshl_add_u32 v%d, v%d, 5, s49' % (y, x))
        a('v_lshl_add_u32 v%d, v%d, 10, s48' % (x, x))
        a('v_lshrrev_b32 v%d, 1, v%d' % (h, h))
        a('v_cndmask_b32 v%d, v%d, v%d, vcc' % (x, y, x))
        a('v_mul_u32_u24 v%d, s50, v%d' % (h, h))
        a('v_lshl_add_u32 v%d, v%d, 4, v%d' % (x, d, x))
        a('v_add3_u32 v%d, v%d, v%d, v%d' % (dst, x, h, tgreg))
    a('v_add_u32 v10, s30, v1')
    coldest(48, 10, 8, 11)
    a('s_mov_b32 s51, 1')
    a('s_branch prep_tr')
    a.label('prep_wo')
    a('s_cmp_ge_u32 s2, 189')
    a('s_cselect_b32 s32, s%d, s%d' % (P_BWO, P_AWO))
    a('s_cselect_b32 s33, s%d, s%d' % (P_BWO + 1, P_AWO + 1))
    a('s_cselect_b32 s25, 0x%x, 0' % (WOB - WOA))
    a('s_cselect_b32 s26, 27, 0')
    a('s_add_u32 s25, s25, 0x%x' % WOA)
    a('s_add_u32 s26, s26, 162')
    a('s_mov_b32 s34, %d' % (576 * 1152))
    a('s_mov_b32 s35, 0x00020000')
    srd(a, 36, P_WS, 's25', WO_SZ)
    srd(a, 52, P_WS, CSA, CS_SZ)
    a('s_sub_u32 s26, s2, s26')
    sdiv(a, 27, 28, 26, 3, 26)
    a('s_mul_i32 s31, s28, 3')
    a('s_add_u32 s31, s31, s24')
    a('s_lshl_b32 s48, s31, 3')
    a('v_add_u32 v6, s48, v4')
    a('s_cmp_eq_u32 s31, 8')
    a('s_cbranch_scc1 prep_b_tail')
    for e, o in enumerate([0, 1, 2, 3, 8, 9, 10, 11]):
        a('s_mov_b32 s%d, %d' % (40 + e, o * 1152))
    a('v_lshrrev_b32 v7, 1, v6')
    a('v_mul_u32_u24 v7, 18, v7')
    a('v_and_b32 v8, 1, v6')
    a('v_lshl_add_u32 v7, v8, 2, v7')
    a('s_branch prep_b_row')
    a.label('prep_b_tail')
    for e, o in enumerate([0, 1, 18, 19, 36, 37, 54, 55]):
        a('s_mov_b32 s%d, %d' % (40 + e, o * 1152))
    a('v_mul_u32_u24 v7, 72, v4')
    a('v_add_u32 v7, 16, v7')
    a.label('prep_b_row')
    a('v_mul_u32_u24 v7, 1152, v7')
    a('v_lshl_add_u32 v7, v3, 4, v7')
    a('s_lshl_b32 s30, s27, 7')
    a('v_add_u32 v7, s30, v7')
    for e in range(8):
        a('buffer_load_dwordx4 v[%d:%d], v7, s[32:35], s%d offen' % (16 + 4 * e, 19 + 4 * e, 40 + e))
    a('v_lshrrev_b32 v8, 4, v1')
    a('s_lshl_b32 s30, s27, 2')
    a('v_add_u32 v8, s30, v8')
    a('v_mul_u32_u24 v8, 18432, v8')
    a('v_and_b32 v9, 15, v1')
    a('v_lshl_add_u32 v48, v9, 4, v8')
    a('s_lshl_b32 s62, s31, 11')
    a('s_add_u32 s63, s62, 1024')
    a('s_mov_b32 s51, 0')
    a.label('prep_tr')
    a('s_mul_i32 s30, s24, 9216')
    a('v_mul_u32_u24 v49, 1152, v4')
    a('v_mul_u32_u24 v50, 144, v3')
    a('v_add3_u32 v49, v49, v50, s30')
    a('v_add_u32 v50, v1, v4')
    a('v_lshlrev_b32 v50, 4, v50')
    a('v_add_u32 v50, s30, v50')
    a('s_mov_b32 s30, 0x05040100')
    a('s_mov_b32 s31, 0x07060302')
    a('s_mov_b32 s26, 0x3f803f80')
    a('s_waitcnt vmcnt(0)')
    stamp(a)
    for c in range(8):
        p, o = c >> 1, c & 1
        ob = 64 + 4 * c
        for q in range(4):
            a('v_perm_b32 v%d, v%d, v%d, s%d' % (ob + q, 16 + 4 * (2 * q + 1) + p, 16 + 4 * (2 * q) + p, 30 + o))
        a('ds_write_b128 v49, v[%d:%d] offset:%d' % (ob, ob + 3, 16 * c))
    a('s_waitcnt lgkmcnt(0)')
    for kg in range(8):
        a('ds_read_b128 v[%d:%d], v50 offset:%d' % (16 + 4 * kg, 19 + 4 * kg, kg * 1152))
    for kg in range(8):
        a('s_waitcnt lgkmcnt(%d)' % (7 - kg))
        a('buffer_store_dwordx4 v[%d:%d], v48, s[36:39], s%d offen offset:%d' % (16 + 4 * kg, 19 + 4 * kg, 62 + (kg >> 2), (kg & 3) * 256))
    a('s_cmp_eq_u32 s51, 0')
    a('s_cbranch_scc1 prep_end')
    for n in range(32):
        a('v_dot2_f32_bf16 v%d, v%d, s26, %s' % (52 + (n & 3), 16 + n, '0' if n < 4 else 'v%d' % (52 + (n & 3))))
    a('v_lshlrev_b32 v10, 2, v0')
    a('s_nop 1')
    a('v_add_f32 v52, v52, v53')
    a('v_add_f32 v54, v54, v55')
    a('v_add_f32 v52, v52, v54')
    a('ds_write_b32 v10, v52 offset:27648')
    a('s_waitcnt lgkmcnt(0)')
    a('s_barrier')
    a('s_cmp_lg_u32 s24, 0')
    a('s_cbranch_scc1 prep_end')
    for i in range(3):
        a('ds_read_b32 v%d, v10 offset:%d' % (16 + i, 27648 + i * 256))
    a('s_mul_i32 s30, s29, 9')
    a('s_sub_u32 s30, s27, s30')
    a('s_lshl_b32 s30, s30, 6')
    a('s_lshl_b32 s48, s29, 9')
    a('s_lshl_b32 s49, s29, 6')
    a('s_add_u32 s49, s49, %d' % (96 * 16 - 256))
    a('s_mov_b32 s50, %d' % (3 * 448 * 4))
    a('v_add_u32 v10, s30, v1')
    a('s_mul_i32 s30, s28, %d' % (448 * 4))
    a('v_mov_b32 v8, s30')
    a('v_mul_u32_u24 v11, 3641, v10')
    a('v_lshrrev_b32 v11, 16, v11')
    a('v_mul_u32_u24 v12, 18, v11')
    a('v_sub_u32 v12, v10, v12')
    a('v_and_b32 v13, 1, v11')
    a('v_cmp_gt_u32 vcc, 16, v12')
    a('v_lshl_add_u32 v14, v13, 5, s49')
    a('v_lshl_add_u32 v13, v13, 8, s48')
    a('v_lshrrev_b32 v11, 1, v11')
    a('v_cndmask_b32 v13, v14, v13, vcc')
    a('v_mul_u32_u24 v11, s50, v11')
    a('v_lshl_add_u32 v13, v12, 4, v13')
    a('v_add3_u32 v13, v13, v11, v8')
    a('v_lshrrev_b32 v13, 2, v13')
    a('s_waitcnt lgkmcnt(0)')
    a('v_add_f32 v16, v16, v17')
    a('v_add_f32 v16, v16, v18')
    a('buffer_store_dword v16, v13, s[52:55], 0 offen')
    a('s_branch prep_end')
    a.label('prep_phi')
    srd(a, 32, P_AWPHI, 0, 32 * 324 * 2)
    srd(a, 36, P_WS, TPHI, TPHI_SZ)
    a('s_sub_u32 s26, s2, 216')
    sdiv(a, 27, 29, 26, 5, 79)
    a('s_mov_b32 s28, s24')
    a('v_and_b32 v2, 3, v1')
    a('v_bfe_u32 v3, v1, 2, 1')
    a('v_bfe_u32 v4, v1, 3, 1')
    a('v_lshrrev_b32 v5, 4, v1')
    a('v_lshlrev_b32 v6, 15, v3')
    a('v_lshl_or_b32 v6, v6, 16, v6')
    a('v_cmp_eq_u32 s[50:51], 0, v4')
    a('s_lshl_b32 s30, s29, 2')
    a('v_add_u32 v7, s30, v2')
    a('v_lshlrev_b32 v8, 2, v5')
    a('s_cmp_eq_u32 s28, 0')
    a('s_cbranch_scc1 prep_phi_d0')
    a('v_mov_b32 v8, 16')
    a.label('prep_phi_d0')
    a('s_lshl_b32 s30, s27, 1')
    a('v_add_u32 v9, s30, v4')
    a('v_mul_u32_u24 v9, 324, v9')
    a('v_mul_u32_u24 v8, 18, v8')
    a('v_add3_u32 v9, v9, v8, v7')
    a('v_lshlrev_b32 v9, 1, v9')
    a('v_mov_b32 v10, 0x7fff0000')
    a('v_cmp_gt_u32 vcc, 18, v7')
    a('s_nop 1')
    a('v_cndmask_b32 v9, v10, v9, vcc')
    a('s_cmp_eq_u32 s28, 0')
    a('s_cbranch_scc1 prep_phi_ld')
    a('s_sub_u32 s30, s28, 1')
    a('v_cmp_eq_u32 vcc, s30, v5')
    a('s_nop 1')
    a('v_cndmask_b32 v9, v10, v9, vcc')
    a.label('prep_phi_ld')
    for i in range(4):
        a('buffer_load_ushort v%d, v9, s[32:35], 0 offen offset:%d' % (16 + i, i * 36))
    a('s_waitcnt vmcnt(0)')
    a('v_lshl_or_b32 v16, v17, 16, v16')
    a('v_lshl_or_b32 v18, v19, 16, v18')
    a('v_xor_b32 v16, v16, v6')
    a('v_xor_b32 v18, v18, v6')
    a('v_cndmask_b32 v20, 0, v16, s[50:51]')
    a('s_cmp_eq_u32 s28, 0')
    a('s_cbranch_scc0 prep_phi_tb')
    a('v_cndmask_b32 v21, 0, v18, s[50:51]')
    a('v_cndmask_b32 v22, v16, 0, s[50:51]')
    a('v_cndmask_b32 v23, v18, 0, s[50:51]')
    a('s_branch prep_phi_st')
    a.label('prep_phi_tb')
    a('v_cndmask_b32 v21, v16, 0, s[50:51]')
    a('v_mov_b32 v22, 0')
    a('v_mov_b32 v23, 0')
    a.label('prep_phi_st')
    a('s_mul_i32 s30, s27, 15')
    a('s_mul_i32 s31, s28, 5')
    a('s_add_u32 s30, s30, s31')
    a('s_add_u32 s30, s30, s29')
    a('s_lshl_b32 s30, s30, 10')
    a('v_lshlrev_b32 v11, 4, v1')
    a('buffer_store_dwordx4 v[20:23], v11, s[36:39], s30 offen')
    a('s_branch prep_end')
    a.label('prep_spec')
    a('s_sub_u32 s26, s2, 296')
    a('s_cmp_ge_u32 s26, 6')
    a('s_cselect_b32 s25, 0x%x, 0' % (WQB - WQA))
    a('s_cselect_b32 s29, 0x%x, 0' % (CSB - CSA))
    a('s_cselect_b32 s27, 6, 0')
    a('s_add_u32 s29, s29, 0x%x' % CSA)
    srd(a, 36, P_WS, 's25', WQ_SZ)
    srd(a, 52, P_WS, 's29', CS_SZ)
    a('s_sub_u32 s26, s26, s27')
    a('s_mul_i32 s26, s26, 192')
    a('v_add_u32 v2, s26, v0')
    a('v_lshrrev_b32 v3, 2, v2')
    a('v_mul_u32_u24 v4, 7168, v3')
    a('v_and_b32 v5, 3, v2')
    a('v_lshl_add_u32 v4, v5, 8, v4')
    a('v_add_u32 v4, %d, v4' % (6144 + 192))
    for i in range(4):
        a('v_mov_b32 v%d, 0x3f803f80' % (8 + i))
        a('v_mov_b32 v%d, 0' % (12 + i))
    a('buffer_store_dwordx4 v[8:11], v4, s[36:39], 0 offen')
    for i in range(1, 4):
        a('buffer_store_dwordx4 v[12:15], v4, s[36:39], 0 offen offset:%d' % (16 * i))
    a('v_mul_u32_u24 v6, 448, v2')
    a('v_add_u32 v6, 432, v6')
    a('buffer_store_dwordx4 v[12:15], v6, s[52:55], 0 offen')
    a('s_branch prep_end')
    a.label('prep_zero')
    srd(a, 36, P_WS, KV1, 2 * KV_SZ)
    a('s_sub_u32 s27, s2, 308')
    a('s_mul_i32 s27, s27, 9216')
    a('v_lshlrev_b32 v2, 4, v0')
    a('v_add_u32 v2, s27, v2')
    for i in range(4):
        a('v_mov_b32 v%d, 0' % (4 + i))
    for k in range(3):
        a('s_mov_b32 s28, %d' % (k * 3072))
        a('buffer_store_dwordx4 v[4:7], v2, s[36:39], s28 offen')
    a('s_branch prep_end')
    a.label('prep_x')
    srd(a, 32, P_AX, 0, X_SZ)
    srd(a, 36, P_WS, X0, X_SZ)
    a('s_sub_u32 s26, s2, 332')
    a('s_and_b32 s27, s26, 3')
    a('s_lshl_b32 s27, s27, 5')
    a('s_lshr_b32 s26, s26, 2')
    a('s_add_u32 s26, s26, s27')
    a('v_lshrrev_b32 v2, 2, v1')
    a('v_and_b32 v3, 3, v1')
    a('v_mul_u32_u24 v4, 1152, v2')
    a('v_lshl_add_u32 v4, v3, 4, v4')
    a('s_mul_i32 s27, s26, 18432')
    a('s_mul_i32 s28, s24, 384')
    a('s_add_u32 s28, s28, s27')
    for t in range(6):
        a('buffer_load_dwordx4 v[%d:%d], v4, s[32:35], s28 offen offset:%d' % (16 + 4 * t, 19 + 4 * t, t * 64))
    a('v_lshlrev_b32 v5, 4, v2')
    a('v_lshl_add_u32 v5, v3, 8, v5')
    a('s_mul_i32 s28, s24, 6144')
    a('v_add_u32 v5, s28, v5')
    a('v_lshlrev_b32 v6, 4, v1')
    a('v_add_u32 v7, s28, v6')
    a('s_add_u32 s28, s28, s27')
    a('s_add_u32 s29, s28, 3072')
    for t in range(6):
        a('s_waitcnt vmcnt(%d)' % (5 - t))
        a('ds_write_b128 v5, v[%d:%d] offset:%d' % (16 + 4 * t, 19 + 4 * t, t * 1024))
    a('s_waitcnt lgkmcnt(0)')
    for t in range(6):
        a('ds_read_b128 v[%d:%d], v7 offset:%d' % (40 + 4 * t, 43 + 4 * t, t * 1024))
    for t in range(6):
        a('s_waitcnt lgkmcnt(%d)' % (5 - t))
        a('buffer_store_dwordx4 v[%d:%d], v6, s[36:39], s%d offen offset:%d' % (40 + 4 * t, 43 + 4 * t, 28 + t // 3, (t % 3) * 1024))
    a.label('prep_end')
    if STAMP:
        a('s_cmp_ge_u32 s2, %d' % NPREP)
        a('s_cbranch_scc1 prep_end2')
        a('s_mov_b64 exec, -1')
        stamp(a)
        a('s_waitcnt vmcnt(0)')
        stamp(a)
        stamp_rt(a)
        a('s_mov_b32 s26, s24')
        a('s_lshr_b32 s3, s2, 8')
        a('s_lshl_b32 s3, s3, 2')
        a('s_add_u32 s26, s26, s3')
        a('s_and_b32 s2, s2, 255')
        stamp_flush(a, 5)
        a.label('prep_end2')
    a('s_endpgm')
    return [('prep_kernel', 96, 96)]


XF0 = 32
ACC0 = 104
WB0 = 168
LDS_T = 127 * 1024
LDS_PK = 32 * 1024
PK_STRIDE = 224
QDEPTH = int(os.environ.get('QDEPTH', 3))
SPREAD = int(os.environ.get('SPREAD', 1))
LSLOTS = [1, 5, 9, 13]


def XF(a_, t):
    return XF0 + (a_ * 9 + t) * 4


def ACC(a_, u):
    return ACC0 + (a_ * 8 + u) * 4


def p2(r):
    return 'v[%d:%d]' % (r, r + 1)


def softmax18(a, D, sL, tmp):
    m, s_ = tmp, tmp + 2
    a('v_max3_f32 %s, %s, %s, %s' % (vr(m), vr(D), vr(D + 1), vr(D + 2)))
    a('v_max3_f32 %s, %s, %s, %s' % (vr(m + 1), vr(D + 3), vr(D + 4), vr(D + 5)))
    for i in range(6, 18, 4):
        a('v_max3_f32 %s, %s, %s, %s' % (vr(m), vr(m), vr(D + i), vr(D + i + 1)))
        a('v_max3_f32 %s, %s, %s, %s' % (vr(m + 1), vr(m + 1), vr(D + i + 2), vr(D + i + 3)))
    a('v_max_f32 %s, %s, %s' % (vr(m), vr(m), vr(m + 1)))
    a('v_mul_f32 %s, s%d, %s' % (vr(m), sL, vr(m)))
    pf = lambda k: a('v_pk_fma_f32 %s, %s, s[%d:%d], %s op_sel_hi:[1,0,0] neg_lo:[0,0,1] neg_hi:[0,0,1]' % (p2(D + 2 * k), p2(D + 2 * k), sL, sL + 1, p2(m)))
    pf(0)
    pf(1)
    for k in range(9):
        a('v_exp_f32 %s, %s' % (vr(D + 2 * k), vr(D + 2 * k)))
        if k + 2 < 9:
            pf(k + 2)
        elif k == 7:
            a('v_pk_add_f32 %s, %s, %s' % (p2(s_), p2(s_), p2(D + 10)))
        else:
            a('v_pk_add_f32 %s, %s, %s' % (p2(s_), p2(s_), p2(D + 14)))
        a('v_exp_f32 %s, %s' % (vr(D + 2 * k + 1), vr(D + 2 * k + 1)))
        if k == 2:
            a('v_pk_add_f32 %s, %s, %s' % (p2(s_), p2(D), p2(D + 2)))
        elif 3 <= k <= 5:
            a('v_pk_add_f32 %s, %s, %s' % (p2(s_), p2(s_), p2(D + 2 * k - 2)))
        elif k == 7:
            a('v_pk_add_f32 %s, %s, %s' % (p2(s_), p2(s_), p2(D + 12)))
        elif k == 8:
            a('s_nop 0')
    a('v_pk_add_f32 %s, %s, %s' % (p2(s_), p2(s_), p2(D + 16)))
    a('v_add_f32 %s, %s, %s' % (vr(s_), vr(s_), vr(s_ + 1)))
    a('v_rcp_f32 %s, %s' % (vr(s_), vr(s_)))
    a('s_nop 0')
    for k in range(9):
        a('v_pk_mul_f32 %s, %s, %s op_sel_hi:[1,0]' % (p2(D + 2 * k), p2(D + 2 * k), p2(s_)))
    for i in range(9):
        a('v_cvt_pk_bf16_f32 %s, %s, %s' % (vr(D + i), vr(D + 2 * i), vr(D + 2 * i + 1)))


def pf_setup(a, sdst, sN, half_bytes, s_ch, s_idx, s_wave, tmp):
    a('s_lshl_b32 s%d, s%d, 5' % (tmp, s_wave))
    a('s_add_u32 s%d, s%d, s%d' % (tmp, tmp, s_idx))
    a('s_mul_i32 s%d, s%d, %d' % (sdst, s_ch, half_bytes))
    a('s_cmp_lt_u32 s%d, s%d' % (tmp, sN))
    a('s_cselect_b32 s%d, s%d, 0x40000' % (tmp, tmp))
    a('s_lshl_b32 s%d, s%d, 13' % (tmp, tmp))
    a('s_add_u32 s%d, s%d, s%d' % (sdst, sdst, tmp))


def gen_qkv(a, kind, insts):
    body = 'qkv%s_body' % kind
    end = 'qkv%s_end' % kind
    SX, SW, SC, ST, SO, SK, SP = 32, 36, 40, 44, 48, 52, 64
    LDS_CS = (143 if kind == 'A' else 127) * 1024
    for (nm, xsrc, kvoff) in insts:
        entry(a, nm)
        a('s_cmp_ge_u32 s2, 256')
        a('s_cbranch_scc1 %s' % end)
        a('s_load_dwordx2 s[22:23], s[0:1], 72')
        if kind == 'A':
            a('s_mov_b32 s9, 0x%x' % kvoff)
        a('s_branch %s' % body)
    a.label(body)
    vm = VM(a)
    a('s_and_b32 s24, s2, 3')
    a('s_lshl_b32 s24, s24, 2')
    a('s_bfe_u32 s25, s2, 0x20003')
    a('s_add_u32 s24, s24, s25')
    a('s_bfe_u32 s25, s2, 0x10002')
    a('s_lshl_b32 s25, s25, 3')
    a('s_lshr_b32 s26, s2, 5')
    a('s_add_u32 s25, s25, s26')
    a('v_lshrrev_b32 v2, 6, v0')
    a('v_and_b32 v1, 63, v0')
    a('v_readfirstlane_b32 s26, v2')
    a('v_and_b32 v3, 15, v1')
    a('v_lshrrev_b32 v4, 4, v1')
    a('v_lshlrev_b32 v5, 4, v1')
    a('s_and_b32 s27, s26, 3')
    a('s_lshr_b32 s28, s26, 2')
    a('s_lshl_b32 s29, s24, 7')
    a('s_lshl_b32 s30, s27, 5')
    a('s_add_u32 s29, s29, s30')
    a('s_lshl_b32 s30, s28, 4')
    a('s_add_u32 s29, s29, s30')
    a('v_add_u32 v6, s29, v3')
    a('s_lshr_b32 s30, s29, 4')
    a('s_xor_b32 s69, s30, 1')
    a('s_mul_i32 s30, s30, 18432')
    a('s_mul_i32 s69, s69, 18432')
    a('s_bfe_u32 s56, s2, 0x10002')
    a('s_mul_i32 s57, s56, 9')
    a('s_lshl_b32 s31, s28, 2')
    a('s_add_u32 s57, s57, s31')
    a('s_lshl_b32 s31, s57, 10')
    a('s_add_u32 s30, s30, s31')
    a('s_add_u32 s69, s69, s31')
    a('s_mul_i32 s56, s56, -18432')
    a('s_add_u32 s56, s56, 5120')
    a('s_mul_i32 s3, s56, 7')
    a('s_cmp_eq_u32 s28, 0')
    a('s_cselect_b32 s4, s56, 0')
    a('s_cselect_b32 s5, 0, s56')
    a('s_cselect_b32 s6, s3, 0')
    a('s_cselect_b32 s3, 0, s3')
    a('s_cmp_eq_u32 s27, 3')
    a('s_cselect_b32 s7, s3, 0')
    a('s_cselect_b32 s8, 0, s3')
    a('s_mul_i32 s31, s28, 63')
    a('s_add_u32 s31, s31, s27')
    a('s_lshl_b32 s31, s31, 10')
    a('s_mov_b32 m0, s31')
    a('s_mul_i32 s31, s57, 7')
    a('s_add_u32 s31, s31, s27')
    a('s_lshl_b32 s31, s31, 10')
    a('s_mul_i32 s56, s25, 129024')
    a('s_add_u32 s31, s31, s56')
    a('s_mul_i32 s56, s28, %d' % (63 * 1024))
    a('v_add_u32 v10, s56, v5')
    a('s_waitcnt lgkmcnt(0)')
    stamp(a)
    stamp_rt(a)
    srd(a, SX, P_WS, X0, X_SZ)
    srd(a, SW, P_WS, WQA if kind == 'A' else WQB, WQ_SZ)
    need = [(7 * t + 6) // 4 for t in range(9)]
    st = {'ii': 0}

    def load_ops(t):
        ops = []

        def x0():
            if t and t % 4 == 0:
                a('s_add_u32 s30, s30, 4096')
                a('s_add_u32 s69, s69, 4096')
            if t in (4, 5):
                a('s_add_u32 s30, s30, s%d' % t)
                a('s_add_u32 s69, s69, s%d' % t)
            a('buffer_load_dwordx4 %s, v5, s[%d:%d], s30 offen offset:%d' % (vr(XF(0, t), 4), SX, SX + 3, (t & 3) * 1024))
            vm.issue()

        def x1():
            a('buffer_load_dwordx4 %s, v5, s[%d:%d], s69 offen offset:%d' % (vr(XF(1, t), 4), SX, SX + 3, (t & 3) * 1024))
            vm.issue()

        def dma():
            a('buffer_load_dwordx4 v5, s[%d:%d], s31 offen lds' % (SW, SW + 3))
            vm.issue()
            st['ii'] += 1
            if st['ii'] < 16:
                a('s_add_u32 m0, m0, 4096')
                a('s_add_u32 s31, s31, 4096')
                if st['ii'] in (7, 8, 9):
                    a('s_add_u32 s31, s31, s%d' % (st['ii'] - 1))
            vm.tags[('step', t)] = vm.n
        ops = [x0, x1] + [dma] * (need[t] - (need[t - 1] if t else -1))
        return ops

    def loads(t):
        for op in load_ops(t):
            op()
    loads(0)
    loads(1)
    real_a = a
    a = Asm()
    if kind == 'A':
        srd(a, SK, P_WS, 's9', KV_SZ)
    srd(a, SC, P_WS, CSA if kind == 'A' else CSB, CS_SZ)
    a('s_mul_i32 s71, s25, 1344')
    a('s_cmp_lg_u32 s26, 0')
    a('s_cselect_b32 s71, 0x40000000, s71')
    if kind == 'A':
        srd(a, ST, P_WS, TPHI, TPHI_SZ)
        srd(a, SO, P_WS, PHIQ, PHIQ_SZ)
        srd(a, SP, P_WS, WOA, WO_SZ)
    else:
        srd(a, SO, P_WS, REC, REC_SZ)
        srd(a, SP, P_WS, WOB, WO_SZ)
    a('s_bfe_u32 s56, s2, 0x10002')
    a('s_lshr_b32 s57, s2, 3')
    a('s_mov_b32 s58, 41')
    pf_setup(a, 68, 58, WO_SZ // 2, 56, 57, 27, 59)
    a('v_lshlrev_b32 v31, 7, v1')
    if kind == 'B':
        a('s_and_b32 s56, s27, 1')
        a('s_lshl_b32 s56, s56, 6')
        a('v_add_u32 v26, s56, v1')
        a('v_lshrrev_b32 v27, 4, v26')
        a('v_lshlrev_b32 v27, 15, v27')
        a('v_and_b32 v28, 15, v26')
        a('v_lshl_add_u32 v27, v28, 7, v27')
        a('s_lshl_b32 s56, s24, 11')
        a('v_add_u32 v27, s56, v27')
        a('v_bfe_u32 v28, v26, 3, 1')
        a('v_lshlrev_b32 v28, 14, v28')
        a('v_and_b32 v29, 7, v26')
        a('v_lshl_add_u32 v28, v29, 7, v28')
        a('s_lshl_b32 s56, s24, 10')
        a('s_add_u32 s56, s56, %d' % R_QT)
        a('v_cmp_gt_u32 vcc, 112, v26')
        a('v_add_u32 v28, s56, v28')
        a('s_lshr_b32 s56, s27, 1')
        a('v_cndmask_b32 v29, v28, v27, vcc')
        a('s_lshl_b32 s57, s25, 1')
        a('s_add_u32 s56, s56, s57')
        a('s_lshl_b32 s70, s56, 18')
    else:
        a('v_mov_b32 v26, 0x40000000')
        a('v_cmp_gt_u32 vcc, 36, v1')
        a('s_lshl_b32 s56, s24, 2')
        a('s_add_u32 s56, s56, s27')
        a('v_cndmask_b32 v29, v26, v31, vcc')
        a('s_lshl_b32 s56, s56, 4')
        a('s_add_u32 s56, s56, s25')
        a('s_mul_i32 s70, s56, 4608')
    a('v_and_b32 v11, 3, v3')
    a('v_cmp_eq_u32 s[58:59], 1, v11')
    a('v_cmp_eq_u32 s[60:61], 2, v11')
    a('v_cmp_eq_u32 s[62:63], 3, v11')
    a('v_lshrrev_b32 v11, 2, v3')
    a('v_lshl_add_u32 v11, v11, 4, v3')
    a('v_lshlrev_b32 v11, 2, v11')
    a('v_lshlrev_b32 v24, 2, v3')
    a('v_add_u32 v24, 192, v24')
    a('v_lshlrev_b32 v25, 4, v4')
    a('v_add_u32 v25, %d, v25' % LDS_CS)
    a('v_add_u32 v26, %d, v5' % LDS_CS)
    a('s_lshl_b32 s56, s27, 13')
    a('v_add_u32 v14, s56, v10')
    a('s_xor_b32 s57, s28, 1')
    a('s_mul_i32 s57, s57, %d' % (63 * 1024))
    a('s_add_u32 s57, s57, s56')
    a('v_add_u32 v15, s57, v5')
    late_lines = a.L
    a = real_a
    late = []
    cur = []
    hold = 0
    for ln in late_lines:
        op = ln.split()[0]
        cur.append(ln)
        if op.startswith('s_cmp') or (op == 's_add_u32' and ', s%d,' % P_WS in ln):
            hold = 1
        elif op.startswith('v_cmp') and 'vcc' in ln:
            hold = 2
        elif hold == 1 and op in ('s_cselect_b32', 's_addc_u32'):
            hold = 0
        elif hold == 2 and op == 'v_cndmask_b32':
            hold = 0
        if not hold:
            late.append(cur)
            cur = []
    assert not cur

    def late_op():
        if late:
            a.L.extend(late.pop(0))
    stamp(a)

    def wread_ops(t):
        return [(lambda u=u: a('ds_read_b128 %s, v10 offset:%d' % (vr(WB0 + 28 * (t & 1) + 4 * u, 4), (t * 7 + u) * 1024))) for u in range(7)]

    def aux_ops():
        ops = []
        if kind == 'A':
            def tp():
                a('s_lshl_b32 s31, s26, 11')
                a('s_add_u32 m0, s31, %d' % LDS_T)
                a('s_mul_i32 s56, s25, 15360')
                a('s_add_u32 s31, s31, s56')
                a('buffer_load_dwordx4 v5, s[%d:%d], s31 offen lds' % (ST, ST + 3))
                vm.issue()
                a('buffer_load_dwordx4 v5, s[%d:%d], s31 offen offset:1024 lds' % (ST, ST + 3))
                vm.issue()
            ops.append(tp)

        def cs():
            for p in range(3):
                a('buffer_load_dwordx4 v[%d:%d], v5, s[%d:%d], s71 offen offset:%d' % (224 + 4 * p, 227 + 4 * p, SC, SC + 3, p * 448))
                vm.issue()
            vm.tags['cs'] = vm.n
        ops.append(cs)

        def aux():
            a('s_cmp_eq_u32 s28, 0')
            a('s_cbranch_scc1 %s_aux0' % body)
            a('buffer_load_dword v30, v31, s[%d:%d], s68 offen' % (SP, SP + 3))
            a('s_branch %s_aux1' % body)
            a.label('%s_aux0' % body)
            a('buffer_load_dword v30, v29, s[%d:%d], s70 offen' % (SO, SO + 3))
            a.label('%s_aux1' % body)
            vm.issue()
        ops.append(aux)
        return ops
    vm.wait(('step', 0))
    a('s_barrier')
    for op in wread_ops(0):
        op()
    for t_ in range(2, QDEPTH):
        loads(t_)
    full = [(a_, u, 0) for u in [7, 0, 1, 2, 3, 4, 5, 6] for a_ in (0, 1)]
    for k, (a_, u, tt) in enumerate(full[:8]):
        if k == 2:
            a('s_waitcnt lgkmcnt(0)')
        A_ = vr(XF(a_, 0), 4) if u == 7 else vr(WB0 + 4 * u, 4)
        a('v_mfma_f32_16x16x32_bf16 %s, %s, %s, 0' % (vr(ACC(a_, u), 4), A_, vr(XF(a_, 0), 4)))
        late_op()
        late_op()
    for t in range(9):
        if t < 8:
            a('s_waitcnt vmcnt(%d) lgkmcnt(0)' % vm.cnt(('step', t + 1)))
            a('s_barrier')
            stamp(a)
            rd = wread_ops(t + 1)
            ld = load_ops(t + QDEPTH) if t + QDEPTH < 9 else (aux_ops() if t + QDEPTH == 9 else [])
            if t == 0 or t == 7 or not SPREAD:
                fill = rd + ld
            else:
                fill = [None] * 16
                for k_, op in zip(LSLOTS, ld):
                    fill[k_] = op
                free = [k_ for k_ in range(16) if k_ not in LSLOTS]
                for k_, op in zip(free, rd):
                    fill[k_] = op
            seq = [(a_, u, t) for u in [7, 0, 1, 2, 3, 4, 5, 6] for a_ in (0, 1)]
            if t == 7:
                seq = [(1, u, 7) for u in [7, 6, 0, 1, 2, 3, 4, 5]]
            if t == 0:
                seq = seq[8:]
        else:
            a('s_waitcnt lgkmcnt(0)')
            wr = [7, 6, 0, 1, 2, 3, 4, 5]
            seq = [(1, u, 8) for u in wr] + [(0, u, 7) for u in wr] + [(0, u, 8) for u in wr]
            fill = [None] * 8
            for u in wr:
                fill += [(lambda u=u: a('ds_write_b128 v14, %s offset:%d' % (vr(ACC(1, u), 4), u * 1024))), None]
        for k, (a_, u, tt) in enumerate(seq):
            A_ = vr(XF(a_, tt), 4) if u == 7 else vr(WB0 + 28 * (tt & 1) + 4 * u, 4)
            c = '0' if tt == 0 else vr(ACC(a_, u), 4)
            a('v_mfma_f32_16x16x32_bf16 %s, %s, %s, %s' % (vr(ACC(a_, u), 4), A_, vr(XF(a_, tt), 4), c))
            if k < len(fill) and fill[k] is not None:
                fill[k]()
            if k == len(seq) - 1:
                for f in fill[len(seq):]:
                    f()
            late_op()
    assert not late
    stamp(a)
    vm.wait('cs')
    for r in range(4):
        a('v_add_f32 v%d, v%d, v%d' % (224 + r, 224 + r, 228 + r))
    for r in range(4):
        a('v_add_f32 v%d, v%d, v%d' % (224 + r, 224 + r, 232 + r))
    a('s_cmp_lg_u32 s26, 0')
    a('s_cselect_b32 s56, 0, 0xfffffff')
    a('s_mov_b32 exec_lo, s56')
    a('s_mov_b32 exec_hi, 0')
    a('s_cbranch_scc1 %s_nocs' % body)
    a('ds_write_b128 v26, v[224:227]')
    a.label('%s_nocs' % body)
    a('s_mov_b64 exec, -1')
    CS0 = 48
    a('s_waitcnt lgkmcnt(0)')
    a('s_barrier')
    for u in [7, 6, 0, 1, 2, 3, 4, 5]:
        a('ds_read_b128 %s, v15 offset:%d' % (vr(ACC(1, u), 4), u * 1024))
    R = lambda u, r: ACC(0, u) + r
    a('s_waitcnt lgkmcnt(6)')
    for u in [7, 6]:
        for r in range(4):
            if u == 7 or r == 0:
                a('v_add_f32 %s, %s, %s' % (vr(R(u, r)), vr(R(u, r)), vr(ACC(1, u) + r)))
    a('v_cndmask_b32 v16, %s, %s, s[58:59]' % (vr(R(7, 0)), vr(R(7, 1))))
    a('v_cndmask_b32 v16, v16, %s, s[60:61]' % vr(R(7, 2)))
    a('v_cndmask_b32 v16, v16, %s, s[62:63]' % vr(R(7, 3)))
    a('ds_bpermute_b32 v18, v24, %s' % vr(R(6, 0)))
    a('ds_bpermute_b32 v17, v11, v16')
    for u in range(7):
        a('ds_read_b128 %s, v25 offset:%d' % (vr(CS0 + 4 * u, 4), u * 64))
    for r in range(1, 4):
        a('v_add_f32 %s, %s, %s' % (vr(R(6, r)), vr(R(6, r)), vr(ACC(1, 6) + r)))
    a('s_waitcnt lgkmcnt(9)')
    for u in range(6):
        for r in (0, 2):
            a('v_pk_add_f32 %s, %s, %s' % (p2(R(u, r)), p2(R(u, r)), p2(ACC(1, u) + r)))
    a('s_mov_b32 s56, 0x%x' % f32bits(1.0 / 576))
    a('s_waitcnt lgkmcnt(7)')
    if kind == 'A':
        TA, TBQ, TBK = 168, 188, 208
        a('v_add_u32 v19, %d, v5' % LDS_T)
        for m in range(5):
            a('ds_read_b128 %s, v19 offset:%d' % (vr(TA + 4 * m, 4), m * 1024))
        for m in range(5):
            a('ds_read_b128 %s, v19 offset:%d' % (vr(TBK + 4 * m, 4), (10 + m) * 1024))
        for m in range(5):
            a('ds_read_b128 %s, v19 offset:%d' % (vr(TBQ + 4 * m, 4), (5 + m) * 1024))
    a('v_mul_f32 v18, s56, v18')
    a('v_mul_f32 v17, s56, v17')
    a('v_fma_f32 v17, -v18, v18, v17')
    a('v_max_f32 v17, 0, v17')
    bf16r(a, 18, 19)
    bf16r(a, 17, 19)
    a('v_add_f32 v17, 0x%x, v17' % f32bits(1e-5))
    bf16r(a, 17, 19)
    a('v_sqrt_f32 v17, v17')
    a('s_nop 0')
    bf16r(a, 17, 19)
    a('v_rcp_f32 v16, v17')
    a('s_waitcnt lgkmcnt(%d)' % (15 if kind == 'A' else 0))
    stamp(a)
    P0 = 32
    uorder = [2, 3, 6] if kind == 'A' else range(7)

    def lnfix(u):
        for r in (0, 2):
            a('v_pk_fma_f32 %s, %s, v[18:19], %s op_sel_hi:[1,0,1] neg_lo:[0,1,0] neg_hi:[0,1,0]' % (p2(R(u, r)), p2(CS0 + 4 * u + r), p2(R(u, r))))
        for r in (0, 2):
            a('v_pk_mul_f32 %s, %s, v[16:17] op_sel_hi:[1,0]' % (p2(R(u, r)), p2(R(u, r))))
        a('v_cvt_pk_bf16_f32 %s, %s, %s' % (vr(P0 + 2 * u), vr(R(u, 0)), vr(R(u, 1))))
        a('v_cvt_pk_bf16_f32 %s, %s, %s' % (vr(P0 + 2 * u + 1), vr(R(u, 2)), vr(R(u, 3))))
    for u in uorder:
        lnfix(u)
        if kind == 'B' and u == 0:
            a('v_lshlrev_b32 v20, 4, v6')
            a('v_and_b32 v21, 1, v4')
            a('v_lshl_add_u32 v21, v21, 18, v20')
            a('v_lshrrev_b32 v22, 1, v4')
            a('v_lshl_add_u32 v21, v22, 15, v21')
            a('s_lshl_b32 s56, s25, 19')
        if kind == 'B' and u in (1, 3, 5):
            typ = u >> 1
            b0 = P0 + 4 * typ
            a('s_add_u32 s57, s56, %d' % (typ * 65536))
            a('s_nop 0')
            a('v_permlane16_swap_b32 %s, %s' % (vr(b0), vr(b0 + 2)))
            a('v_permlane16_swap_b32 %s, %s' % (vr(b0 + 1), vr(b0 + 3)))
            a('buffer_store_dwordx4 %s, v21, s[%d:%d], s57 offen' % (vr(b0, 4), SO, SO + 3))
    if kind == 'B':
        a('v_lshlrev_b32 v26, 3, v6')
        a('v_lshl_add_u32 v26, v4, 14, v26')
        a('v_add_u32 v26, %d, v26' % R_QT)
        a('v_add_u32 v22, %d, v20' % R_VT)
        a('v_cmp_eq_u32 vcc, 2, v4')
        a('v_mov_b32 v27, 0x3f80')
        a('v_mov_b32 v12, %s' % vr(P0 + 12))
        a('v_cndmask_b32 v13, 0, v27, vcc')
        a('v_cndmask_b32 v26, v26, v22, vcc')
        a('v_mov_b32 v14, %s' % vr(P0 + 13))
        a('v_mov_b32 v15, v13')
        a('s_add_u32 s57, s56, %d' % REC_HEAD)
        a('s_mov_b32 exec_hi, 0xffff')
        a('buffer_store_dwordx2 v[12:13], v26, s[%d:%d], s56 offen' % (SO, SO + 3))
        a('buffer_store_dwordx2 v[14:15], v26, s[%d:%d], s57 offen' % (SO, SO + 3))
        stamp(a)
        a('s_waitcnt vmcnt(0)') if STAMP else None
        stamp(a)
        stamp_rt(a)
        stamp_flush(a, 1)
        a.label(end)
        a('s_endpgm')
        return [(nm, 236, 96) for (nm, _, _) in insts]
    DQ, DK = 76, 136
    a('v_mov_b32 %s, 0' % vr(P0 + 14))
    a('v_mov_b32 %s, 0' % vr(P0 + 15))
    a('v_and_b32 v20, 127, v6')
    a('v_mul_u32_u24 v20, %d, v20' % PK_STRIDE)
    a('v_add_u32 v20, %d, v20' % LDS_PK)
    a('v_lshl_add_u32 v21, v4, 3, v20')
    a('s_waitcnt lgkmcnt(5)')
    for m in range(5):
        a('v_mfma_f32_16x16x32_bf16 %s, %s, %s, 0' % (vr(DK + 4 * m, 4), vr(TA + 4 * m, 4), vr(P0 + 4, 4)))
    for m in range(5):
        a('v_mfma_f32_16x16x32_bf16 %s, %s, %s, %s' % (vr(DK + 4 * m, 4), vr(TBK + 4 * m, 4), vr(P0 + 12, 4), vr(DK + 4 * m, 4)))
    lnfix(4)
    lnfix(5)
    a('ds_write_b64 v21, %s offset:128' % vr(P0 + 8, 2))
    a('ds_write_b64 v21, %s offset:160' % vr(P0 + 10, 2))
    a('v_mov_b32 v12, %s' % vr(P0 + 12))
    a('v_mov_b32 v13, 0x3f80')
    a('v_mov_b32 v14, %s' % vr(P0 + 13))
    a('v_mov_b32 v15, 0x3f80')
    a('s_mov_b32 exec_lo, 0')
    a('s_mov_b32 exec_hi, 0xffff')
    a('ds_write_b128 v20, v[12:15] offset:208')
    a('s_mov_b64 exec, -1')
    a('s_mov_b32 s56, 0x%x' % f32bits(LOG2E))
    softmax18(a, DK, 56, 12)
    a('v_lshl_add_u32 v21, v4, 5, v20')
    a('v_lshl_add_u32 v24, v4, 2, v20')
    a('ds_write_b128 v21, %s' % vr(DK, 4))
    a('ds_write_b128 v21, %s offset:16' % vr(DK + 4, 4))
    a('ds_write_b32 v24, %s offset:192' % vr(DK + 8))
    a('s_waitcnt lgkmcnt(0)')
    a('s_barrier')
    stamp(a)
    a('s_cmp_ge_u32 s26, 6')
    a('s_cbranch_scc1 qkvA_q')
    a('s_cmp_ge_u32 s26, 3')
    a('s_cselect_b32 s57, 1, 0')
    a('s_mul_i32 s58, s57, 3')
    a('s_sub_u32 s58, s26, s58')
    a('s_lshl_b32 s59, s57, 6')
    a('s_lshl_b32 s60, s58, 5')
    a('s_add_u32 s59, s59, s60')
    a('s_lshl_b32 s60, s57, 3')
    a('s_add_u32 s61, s60, 192')
    a('s_cmp_eq_u32 s58, 2')
    a('s_cselect_b32 s59, s61, s59')
    a('s_add_u32 s60, s60, 208')
    a('s_lshl_b32 s61, s57, 5')
    a('s_add_u32 s61, s61, 128')
    a('v_lshrrev_b32 v24, 2, v3')
    a('v_lshl_add_u32 v24, v4, 2, v24')
    a('v_mul_u32_u24 v24, %d, v24' % PK_STRIDE)
    a('v_and_b32 v25, 3, v3')
    a('v_lshl_add_u32 v24, v25, 3, v24')
    a('v_add_u32 v24, %d, v24' % LDS_PK)
    a('v_add_u32 v25, s59, v24')
    a('v_add_u32 v26, s61, v24')
    a('v_add_u32 v27, s60, v24')
    FB, FA, FT = 112, 136, 152
    for ks in range(4):
        for hf in range(2):
            off = (32 * ks + 16 * hf) * PK_STRIDE
            a('ds_read_b64_tr_b16 %s, v25 offset:%d' % (vr(FB + 4 * ks + 2 * hf, 2), off))
            a('ds_read_b64_tr_b16 %s, v26 offset:%d' % (vr(FA + 4 * ks + 2 * hf, 2), off))
            a('ds_read_b64_tr_b16 %s, v27 offset:%d' % (vr(FT + 4 * ks + 2 * hf, 2), off))
    a('s_lshl_b32 s59, s25, 1')
    a('s_add_u32 s59, s59, s57')
    a('s_mul_i32 s59, s59, %d' % KV_HEAD)
    a('s_mul_i32 s60, s58, 1216')
    a('s_add_u32 s59, s59, s60')
    a('v_lshlrev_b32 v28, 2, v1')
    DM, DT = 128, 132
    a('s_cmp_eq_u32 s58, 2')
    a('s_cbranch_scc1 qkvA_kvt')
    for ks in range(4):
        a('s_waitcnt lgkmcnt(%d)' % min(15, 6 * (3 - ks)))
        c = '0' if ks == 0 else vr(DM, 4)
        a('v_mfma_f32_16x16x32_bf16 %s, %s, %s, %s' % (vr(DM, 4), vr(FA + 4 * ks, 4), vr(FB + 4 * ks, 4), c))
        c = '0' if ks == 0 else vr(DT, 4)
        a('v_mfma_f32_16x16x32_bf16 %s, %s, %s, %s' % (vr(DT, 4), vr(FT + 4 * ks, 4), vr(FB + 4 * ks, 4), c))
    a('s_nop 7')
    for r in range(4):
        a('buffer_atomic_add_f32 %s, v28, s[%d:%d], s59 offen offset:%d' % (vr(DM + r), SK, SK + 3, r * 256))
    a('s_mov_b64 exec, 0xffff')
    for r in range(3):
        a('buffer_atomic_add_f32 %s, v28, s[%d:%d], s59 offen offset:%d' % (vr(DT + r), SK, SK + 3, 1024 + r * 64))
    a('s_mov_b64 exec, -1')
    a('s_branch qkvA_q')
    a.label('qkvA_kvt')
    for ks in range(4):
        a('s_waitcnt lgkmcnt(%d)' % min(15, 6 * (3 - ks)))
        c = '0' if ks == 0 else vr(DM, 4)
        a('v_mfma_f32_16x16x32_bf16 %s, %s, %s, %s' % (vr(DM, 4), vr(FB + 4 * ks, 4), vr(FA + 4 * ks, 4), c))
        c = '0' if ks == 0 else vr(DT, 4)
        a('v_mfma_f32_16x16x32_bf16 %s, %s, %s, %s' % (vr(DT, 4), vr(FB + 4 * ks, 4), vr(FT + 4 * ks, 4), c))
    a('s_mov_b64 exec, 0xffff')
    a('s_nop 7')
    for r in range(4):
        a('buffer_atomic_add_f32 %s, v28, s[%d:%d], s59 offen offset:%d' % (vr(DM + r), SK, SK + 3, r * 128))
    a('s_mov_b64 exec, 7')
    for r in range(4):
        a('buffer_atomic_add_f32 %s, v28, s[%d:%d], s59 offen offset:%d' % (vr(DT + r), SK, SK + 3, r * 128 + 64))
    a('s_mov_b64 exec, -1')
    a.label('qkvA_q')
    lnfix(0)
    lnfix(1)
    a('s_nop 1')
    for m in range(5):
        a('v_mfma_f32_16x16x32_bf16 %s, %s, %s, 0' % (vr(DQ + 4 * m, 4), vr(TA + 4 * m, 4), vr(P0 + 0, 4)))
    for m in range(5):
        a('v_mfma_f32_16x16x32_bf16 %s, %s, %s, %s' % (vr(DQ + 4 * m, 4), vr(TBQ + 4 * m, 4), vr(P0 + 12, 4), vr(DQ + 4 * m, 4)))
    a('s_lshl_b32 s57, s24, 2')
    a('s_add_u32 s57, s57, s27')
    a('s_lshl_b32 s57, s57, 5')
    a('s_lshl_b32 s58, s25, 1')
    a('s_add_u32 s57, s57, s58')
    a('s_mul_i32 s57, s57, 2304')
    a('v_lshrrev_b32 v24, 1, v4')
    a('v_mul_u32_u24 v24, 2304, v24')
    a('v_and_b32 v25, 1, v4')
    a('v_and_b32 v26, 31, v6')
    a('v_lshl_add_u32 v27, v25, 10, v24')
    a('v_lshl_add_u32 v27, v26, 4, v27')
    a('v_lshl_add_u32 v28, v26, 3, v24')
    a('v_lshl_add_u32 v28, v25, 2, v28')
    softmax18(a, DQ, 56, 12)
    a('buffer_store_dwordx4 %s, v27, s[%d:%d], s57 offen' % (vr(DQ, 4), SO, SO + 3))
    a('buffer_store_dwordx4 %s, v27, s[%d:%d], s57 offen offset:512' % (vr(DQ + 4, 4), SO, SO + 3))
    a('buffer_store_dword %s, v28, s[%d:%d], s57 offen offset:2048' % (vr(DQ + 8), SO, SO + 3))
    stamp(a)
    a('s_waitcnt vmcnt(0)') if STAMP else None
    stamp(a)
    stamp_rt(a)
    stamp_flush(a, 0)
    a.label(end)
    a('s_endpgm')
    return [(nm, 236, 96) for (nm, _, _) in insts]


A_K0, A_K1, A_KT, A_V0, A_V1, A_VT = 0, 8192, 16384, 20480, 20480 + 8256, 20480 + 2 * 8256
A_LDS = A_VT + 8192


def gen_attn(a, insts):
    SR, SO, SP = 32, 44, 36
    for (nm, pfN) in insts:
        entry(a, nm)
        a('s_cmp_ge_u32 s2, 256')
        a('s_cbranch_scc1 attn_end')
        a('s_load_dwordx2 s[22:23], s[0:1], 72')
        a('s_mov_b32 s40, %d' % pfN)
        a('s_branch attn_body')
    a.label('attn_body')
    a('s_bfe_u32 s41, s2, 0x10002')
    a('s_lshl_b32 s24, s41, 4')
    a('s_bfe_u32 s25, s2, 0x40003')
    a('s_add_u32 s24, s24, s25')
    a('s_and_b32 s25, s2, 3')
    a('s_lshl_b32 s25, s25, 1')
    a('s_lshr_b32 s26, s2, 7')
    a('s_add_u32 s25, s25, s26')
    a('v_lshrrev_b32 v2, 6, v0')
    a('v_and_b32 v1, 63, v0')
    a('v_readfirstlane_b32 s26, v2')
    a('v_and_b32 v3, 31, v1')
    a('v_lshrrev_b32 v4, 5, v1')
    a('v_lshlrev_b32 v5, 4, v1')
    a('s_lshl_b32 s27, s24, 18')
    a('s_add_u32 s27, s27, 0x%x' % REC)
    a('s_lshl_b32 s28, s25, 8')
    a('s_sub_u32 s28, s28, 256')
    a('s_lshl_b32 s29, s26, 6')
    a('s_add_u32 s28, s28, s29')
    a('s_lshl_b32 s29, s26, 10')
    a('s_lshl_b32 s30, s28, 4')
    a('s_lshl_b32 s31, s28, 3')
    a('s_add_u32 s31, s31, %d' % R_KT)
    a('s_waitcnt lgkmcnt(0)')
    STAMP_REGS[:] = list(range(48, 56)) + list(range(88, 94))
    stamp(a)
    stamp_rt(a)
    srd(a, SR, P_WS, 's27', REC_HEAD)

    def dma(plane, ldsoff):
        a('s_add_u32 m0, s29, %d' % ldsoff)
        a('s_add_u32 s42, s30, %d' % plane)
        a('buffer_load_dwordx4 v5, s[%d:%d], s42 offen lds' % (SR, SR + 3))
    dma(R_K0, A_K0)
    dma(R_K1, A_K1)
    a('s_lshr_b32 s42, s29, 1')
    a('s_add_u32 m0, s42, %d' % A_KT)
    a('s_mov_b32 exec_hi, 0')
    a('buffer_load_dwordx4 v5, s[%d:%d], s31 offen lds' % (SR, SR + 3))
    a('s_mov_b32 exec_hi, -1')
    a('s_lshl_b32 s31, s25, 8')
    a('s_lshl_b32 s27, s26, 5')
    a('s_add_u32 s31, s31, s27')
    a('v_add_u32 v9, s31, v3')
    a('v_lshlrev_b32 v10, 4, v9')
    a('v_lshl_add_u32 v10, v4, 15, v10')
    a('v_lshlrev_b32 v9, 3, v9')
    Q1, Q2 = 12, 16
    for r in range(4):
        a('v_mov_b32 v%d, 0' % (Q2 + r))
    a('s_mov_b32 s42, %d' % R_QT)
    a('buffer_load_dwordx4 %s, v10, s[%d:%d], 0 offen' % (vr(Q1, 4), SR, SR + 3))
    a('s_mov_b32 exec_hi, 0')
    a('buffer_load_dwordx2 %s, v9, s[%d:%d], s42 offen' % (vr(Q2, 2), SR, SR + 3))
    a('s_mov_b32 exec_hi, -1')
    dma(R_V0, A_V0)
    dma(R_V1, A_V1)
    dma(R_VT, A_VT)
    a('s_mov_b32 s30, s31')
    srd(a, SO, P_WS, OIMG, OIMG_SZ)
    srd(a, SP, P_WS, WQA, WQ_SZ)
    a('s_lshr_b32 s42, s2, 3')
    pf_setup(a, 43, 40, WQ_SZ // 2, 41, 42, 26, 28)
    a('v_lshlrev_b32 v6, 7, v1')
    a('buffer_load_dword v7, v6, s[%d:%d], s43 offen' % (SP, SP + 3))
    a('s_lshr_b32 s42, s30, 5')
    a('s_mul_i32 s42, s42, 36864')
    a('s_lshr_b32 s43, s24, 1')
    a('s_lshl_b32 s43, s43, 11')
    a('s_and_b32 s28, s24, 1')
    a('s_lshl_b32 s28, s28, 9')
    a('s_add_u32 s43, s43, s28')
    a('v_bfe_u32 v8, v1, 2, 1')
    a('v_and_b32 v9, 3, v1')
    a('v_lshlrev_b32 v9, 7, v9')
    a('v_lshl_add_u32 v8, v8, 10, v9')
    a('v_add_u32 v8, s43, v8')
    a('s_lshr_b32 s43, s24, 4')
    a('s_lshl_b32 s43, s43, 11')
    a('s_bfe_u32 s28, s24, 0x20002')
    a('s_lshl_b32 s28, s28, 8')
    a('s_add_u32 s43, s43, s28')
    a('s_add_u32 s43, s43, 32768')
    a('v_bfe_u32 v9, v1, 1, 1')
    a('v_and_b32 v10, 1, v1')
    a('v_lshlrev_b32 v10, 7, v10')
    a('v_lshl_add_u32 v9, v9, 10, v10')
    a('v_cmp_gt_u32 vcc, 8, v1')
    a('v_add_u32 v9, s43, v9')
    a('s_mov_b64 exec, 0xfff')
    a('v_cndmask_b32 v8, v9, v8, vcc')
    a('buffer_load_dword v7, v8, s[%d:%d], s42 offen' % (SO, SO + 3))
    a('s_mov_b64 exec, -1')
    a('s_mov_b32 s43, %d' % A_V0)
    S = lambda t: 64 + 16 * t
    OA = 208
    KB = [224, 232, 240]
    for b in KB:
        for r in range(6, 8):
            a('v_mov_b32 v%d, 0' % (b + r))
    a('v_lshlrev_b32 v11, 2, v4')
    a('v_sub_u32 v11, v3, v11')
    MK = 56
    for n in range(16):
        a('v_cmp_gt_i32 s[%d:%d], %d, v11' % (MK + 2 * n, MK + 2 * n + 1, 8 * (n >> 2) + (n & 3)))
    MB = 28
    a('v_mov_b32 v26, 0xffff')
    a('v_mov_b32 v27, 0xffff0000')
    for n in range(8):
        a('v_cndmask_b32 v%d, 0, v26, s[%d:%d]' % (MB + n, MK + 4 * n, MK + 4 * n + 1))
        a('v_cndmask_b32 v25, 0, v27, s[%d:%d]' % (MK + 4 * n + 2, MK + 4 * n + 3))
        a('v_or_b32 v%d, v%d, v25' % (MB + n, MB + n))
    a('v_add_u32 v20, s27, v3')
    a('v_lshlrev_b32 v21, 4, v20')
    a('v_lshl_add_u32 v21, v4, 13, v21')
    a('v_lshlrev_b32 v20, 3, v20')
    a('v_add_u32 v20, %d, v20' % A_KT)
    a('v_bfe_u32 v22, v1, 2, 2')
    a('v_lshl_add_u32 v22, v4, 2, v22')
    a('v_add_u32 v22, s27, v22')
    a('v_lshlrev_b32 v22, 4, v22')
    a('v_bfe_u32 v23, v1, 1, 1')
    a('v_mul_u32_u24 v23, %d, v23' % (A_V1 - A_V0))
    a('v_and_b32 v25, 1, v1')
    a('v_lshl_add_u32 v23, v25, 3, v23')
    a('v_and_b32 v25, 16, v1')
    a('v_cmp_eq_u32 vcc, 0, v25')
    a('v_mov_b32 v25, %d' % (A_VT - A_V0))
    a('v_mov_b32 v24, 0xf149f2ca')
    a('v_cndmask_b32 v23, v25, v23, vcc')
    a('v_add3_u32 v22, v22, v23, s43')
    a('s_sub_u32 s42, 8, s26')
    a('s_cmp_eq_u32 s25, 0')
    a('s_cselect_b32 s42, s42, 0')
    a('s_cmp_ge_u32 s26, 4')
    a('s_cbranch_scc1 attn_noprio')
    a('s_setprio 2')
    a.label('attn_noprio')
    stamp(a)
    a('s_waitcnt vmcnt(2)')
    a('s_barrier')
    stamp(a)

    def kread(t):
        b = KB[t % 3]
        a('ds_read_b128 %s, v21 offset:%d' % (vr(b, 4), t * 512))
        a('ds_read_b64 %s, v20 offset:%d' % (vr(b + 4, 2), t * 256))

    def tfix(t):
        a('s_cmp_le_u32 s42, %d' % t)
        a('s_cbranch_scc1 attn_ok%d' % t)
        for n in range(16):
            a('v_mov_b32 %s, v24' % vr(S(t) + n))
        a.label('attn_ok%d' % t)

    def tmax(t, half):
        if t < 1:
            return
        for n in range(8 * half, 8 * half + 8, 2):
            m = 25 + ((n >> 1) & 1)
            if t == 1 and n < 4:
                a('v_max_f32 v%d, %s, %s' % (m, vr(S(t) + n), vr(S(t) + n + 1)))
            else:
                a('v_max3_f32 v%d, v%d, %s, %s' % (m, m, vr(S(t) + n), vr(S(t) + n + 1)))
    kread(0)
    kread(1)
    for t in range(9):
        if t + 2 < 9:
            kread(t + 2)
            a('s_waitcnt lgkmcnt(4)')
        elif t + 1 < 9:
            a('s_waitcnt lgkmcnt(2)')
        else:
            a('s_waitcnt lgkmcnt(0)')
        b = KB[t % 3]
        a('v_mfma_f32_32x32x16_bf16 %s, %s, %s, 0' % (vr(S(t), 16), vr(b, 4), vr(Q1, 4)))
        if t >= 3:
            tfix(t - 3)
            tmax(t - 3, 0)
        a('v_mfma_f32_32x32x16_bf16 %s, %s, %s, %s' % (vr(S(t), 16), vr(b + 4, 4), vr(Q2, 4), vr(S(t), 16)))
        if t >= 3:
            tmax(t - 3, 1)
    for t in (6, 7):
        tfix(t)
        tmax(t, 0)
        tmax(t, 1)
    stamp(a)
    stamp(a)
    VB = [224, 232, 240, 248]
    seq = [1, 2, 3, 4, 5, 6, 7, 0, 8]

    def vread(k):
        t = seq[k]
        b = VB[k % 4]
        for ks in range(2):
            for hf in range(2):
                a('ds_read_b64_tr_b16 %s, v22 offset:%d' % (vr(b + 4 * ks + 2 * hf, 2), (32 * t + 16 * ks + 8 * hf) * 16))
    vread(0)
    vread(1)
    vread(2)
    for n in range(16):
        a('v_cndmask_b32 %s, %s, %s, s[%d:%d]' % (vr(S(0) + n), vr(S(8) + n), vr(S(0) + n), MK + 2 * n, MK + 2 * n + 1))
    for n in range(0, 16, 2):
        m = 25 + ((n >> 1) & 1)
        a('v_max3_f32 v%d, v%d, %s, %s' % (m, m, vr(S(0) + n), vr(S(0) + n + 1)))
    a('v_max_f32 v25, v25, v26')
    a('v_mov_b32 v26, v25')
    a('s_mov_b32 s28, 0x%x' % f32bits(LOG2E * 18 ** -0.5))
    a('s_nop 0')
    a('v_permlane32_swap_b32 v25, v26')
    stamp(a)
    a('s_nop 0')
    a('v_max_f32 v25, v25, v26')
    a('v_mul_f32 v26, s28, v25')
    pf = lambda t, m: a('v_pk_fma_f32 %s, %s, s[28:29], v[26:27] op_sel_hi:[1,0,0] neg_lo:[0,0,1] neg_hi:[0,0,1]' % (p2(S(t) + 2 * m), p2(S(t) + 2 * m)))
    cv = lambda t, m: a('v_cvt_pk_bf16_f32 %s, %s, %s' % (vr(S(t) + m), vr(S(t) + 2 * m), vr(S(t) + 2 * m + 1)))
    for m in range(8):
        pf(seq[0], m)
    def pv(k, half):
        t = seq[k]
        b = VB[k % 4]
        c = '0' if (k == 0 and half == 0) else vr(OA, 16)
        a('v_mfma_f32_32x32x16_bf16 %s, %s, %s, %s' % (vr(OA, 16), vr(b + 4 * half, 4), vr(S(t) + 4 * half, 4), c))

    def split(n):
        a('v_bfi_b32 %s, v%d, 0, %s' % (vr(S(8) + n), MB + n, vr(S(0) + n)))
        a('v_and_b32 %s, v%d, %s' % (vr(S(0) + n), MB + n, vr(S(0) + n)))
    for k in range(8):
        t = seq[k]
        for m in range(8):
            a('v_exp_f32 %s, %s' % (vr(S(t) + 2 * m), vr(S(t) + 2 * m)))
            if k < 7:
                pf(seq[k + 1], m)
            elif m >= 2:
                split(m - 2)
            if m == 1 and k >= 1:
                pv(k - 1, 1)
                if k + 2 < 9:
                    vread(k + 2)
            if m == 6:
                a('s_waitcnt lgkmcnt(%d)' % (4 * min(8 - k, 2)))
                pv(k, 0)
            a('v_exp_f32 %s, %s' % (vr(S(t) + 2 * m + 1), vr(S(t) + 2 * m + 1)))
            if m >= 1:
                cv(t, m - 1)
        a('s_nop 0')
        cv(t, 7)
    split(6)
    split(7)
    a('s_waitcnt lgkmcnt(0)')
    pv(8, 0)
    pv(7, 1)
    pv(8, 1)
    stamp(a)
    a('s_lshr_b32 s30, s30, 5')
    a('s_mul_i32 s30, s30, 36864')
    a('s_lshr_b32 s31, s24, 1')
    a('s_lshl_b32 s31, s31, 11')
    a('s_and_b32 s29, s24, 1')
    a('s_lshl_b32 s29, s29, 9')
    a('s_add_u32 s31, s31, s29')
    a('s_add_u32 s31, s31, s30')
    a('v_bfe_u32 v26, v1, 4, 1')
    a('v_and_b32 v27, 15, v1')
    a('v_lshlrev_b32 v27, 4, v27')
    a('v_lshl_add_u32 v27, v26, 10, v27')
    a('v_lshl_add_u32 v28, v4, 8, v27')
    a('s_lshr_b32 s29, s24, 4')
    a('s_lshl_b32 s29, s29, 11')
    a('s_add_u32 s30, s30, s29')
    a('s_bfe_u32 s29, s24, 0x20002')
    a('s_lshl_b32 s29, s29, 8')
    a('s_add_u32 s30, s30, s29')
    a('s_and_b32 s29, s24, 3')
    a('s_lshl_b32 s29, s29, 2')
    a('s_add_u32 s30, s30, s29')
    a('s_add_u32 s30, s30, 32768')
    a('v_rcp_f32 v24, %s' % vr(OA + 10))
    a('s_nop 0')
    for n in range(0, 10, 2):
        a('v_pk_mul_f32 %s, %s, v[24:25] op_sel_hi:[1,0]' % (p2(OA + n), p2(OA + n)))
    for n in range(5):
        a('v_cvt_pk_bf16_f32 %s, %s, %s' % (vr(OA + n), vr(OA + 2 * n), vr(OA + 2 * n + 1)))
    a('buffer_store_dwordx4 %s, v28, s[%d:%d], s31 offen' % (vr(OA, 4), SO, SO + 3))
    a('s_mov_b32 exec_hi, 0')
    a('buffer_store_dword %s, v27, s[%d:%d], s30 offen' % (vr(OA + 4), SO, SO + 3))
    stamp(a)
    a('s_waitcnt vmcnt(0)') if STAMP else None
    stamp(a)
    stamp_rt(a)
    stamp_flush(a, 2)
    STAMP_REGS[:] = list(range(72, 94))
    a.label('attn_end')
    a('s_endpgm')
    return [(nm, 256, 96) for (nm, _) in insts]


def gen_wo(a, kind, insts):
    body = 'wo%s_body' % kind
    end = 'wo%s_end' % kind
    SX, SY, SW, SI, SK, SP = 32, 36, 40, 44, 48, 52
    for (nm, xsrc, ydst, kvoff) in insts:
        entry(a, nm)
        a('s_cmp_ge_u32 s2, 256')
        a('s_cbranch_scc1 %s' % end)
        a('s_load_dwordx2 s[18:19], s[0:1], 56')
        a('s_load_dwordx2 s[22:23], s[0:1], 72')
        a('s_mov_b32 s9, 0x%x' % kvoff)
        a('s_mov_b32 s61, %d' % (1 if ydst[0] == 'in' else 0))
        a('s_branch %s' % body)
    a.label(body)
    vm = VM(a)
    a('s_and_b32 s24, s2, 3')
    a('s_lshl_b32 s24, s24, 4')
    a('s_lshr_b32 s25, s2, 4')
    a('s_add_u32 s24, s24, s25')
    a('s_bfe_u32 s25, s2, 0x20002')
    a('s_and_b32 s27, s25, 1')
    a('s_lshl_b32 s27, s27, 1')
    a('s_lshr_b32 s25, s25, 1')
    a('s_add_u32 s25, s25, s27')
    a('v_lshrrev_b32 v2, 6, v0')
    a('v_and_b32 v1, 63, v0')
    a('v_readfirstlane_b32 s26, v2')
    a('v_lshlrev_b32 v5, 4, v1')
    WFr = (lambda t: 96 + 4 * t) if kind == 'B' else (lambda t: 116 + 4 * t if t < 13 else 56 + 4 * (t - 13))
    LO = 98304
    a('s_mul_i32 s27, s25, 9')
    a('s_add_u32 s27, s27, s26')
    a('s_mul_i32 s31, s27, 18432')

    def ptrs():
        a('s_waitcnt lgkmcnt(0)')
        stamp(a)
        stamp_rt(a)
        if kind == 'A':
            srd(a, SK, P_WS, 's9', KV_SZ)
            srd(a, SI, P_WS, PHIQ, PHIQ_SZ)
        else:
            srd(a, SI, P_WS, OIMG, OIMG_SZ)

    def ptrs2():
        srd(a, SW, P_WS, WOA if kind == 'A' else WOB, WO_SZ)
        srd(a, SX, P_WS, X0, X_SZ)
        a('s_cmp_eq_u32 s61, 0')
        a('s_cselect_b32 s%d, s%d, s%d' % (SY, SX, P_OUT))
        a('s_cselect_b32 s%d, s%d, s%d' % (SY + 1, SX + 1, P_OUT + 1))
        a('s_mov_b32 s%d, 0x%x' % (SY + 2, X_SZ))
        a('s_mov_b32 s%d, 0x00020000' % (SY + 3))
    wst = {'t': 0}

    def wload(n):
        for _ in range(n):
            t = wst['t']
            if t >= 18:
                return
            if t and t % 4 == 0:
                a('s_add_u32 s31, s31, 4096')
            a('buffer_load_dwordx4 %s, v5, s[%d:%d], s31 offen offset:%d' % (vr(WFr(t), 4), SW, SW + 3, (t & 3) * 1024))
            vm.issue(('w', t))
            wst['t'] += 1
    if kind == 'B':
        LO = 0
        a('s_lshl_b32 s28, s26, 12')
        a('s_mov_b32 m0, s28')
        a('s_mul_i32 s29, s24, 36864')
        a('s_add_u32 s28, s28, s29')
        ptrs()
        for p in range(4):
            a('buffer_load_dwordx4 v5, s[%d:%d], s28 offen offset:%d lds' % (SI, SI + 3, p * 1024))
            vm.issue()
        vm.tags['img'] = vm.n
        ptrs2()
        a('s_barrier')
        wload(6)
    else:
        a('s_mul_i32 s28, s26, 12288')
        a('s_mov_b32 m0, s28')
        a('s_mul_i32 s28, s26, %d' % (4 * KV_HEAD))
        PH = 12
        a('s_lshl_b32 s29, s24, 5')
        a('s_lshl_b32 s30, s26, 2')
        a('s_add_u32 s29, s29, s30')
        a('s_mul_i32 s29, s29, 2304')
        a('v_and_b32 v3, 31, v1')
        a('v_lshlrev_b32 v6, 3, v3')
        for hh in range(4):
            for r in range(8, 12):
                a('v_mov_b32 v%d, 0' % (PH + 12 * hh + r))
        ptrs()
        a('s_cmp_eq_u32 s26, 8')
        a('s_cbranch_scc1 woA_w8')
        pieces_for = [3, 6, 9, 12]
        p = 0
        for hh in range(4):
            while p < pieces_for[hh]:
                if p in (4, 8):
                    a('s_add_u32 m0, m0, 4096')
                    a('s_add_u32 s28, s28, 4096')
                a('buffer_load_dwordx4 v5, s[%d:%d], s28 offen offset:%d lds' % (SK, SK + 3, (p & 3) * 1024))
                vm.issue()
                p += 1
            a('buffer_load_dwordx4 %s, v5, s[%d:%d], s29 offen' % (vr(PH + 12 * hh, 4), SI, SI + 3))
            a('buffer_load_dwordx4 %s, v5, s[%d:%d], s29 offen offset:1024' % (vr(PH + 12 * hh + 4, 4), SI, SI + 3))
            a('s_mov_b32 exec_hi, 0')
            a('buffer_load_dwordx2 %s, v6, s[%d:%d], s29 offen offset:2048' % (vr(PH + 12 * hh + 8, 2), SI, SI + 3))
            a('s_mov_b32 exec_hi, -1')
            vm.issue(); vm.issue(); vm.issue(('phi', hh))
            if hh < 3:
                a('s_add_u32 s29, s29, 2304')
        a.label('woA_w8')
        ptrs2()
        a('s_barrier')
        wload(4)
    a('v_and_b32 v7, 15, v1')
    a('v_bfe_u32 v8, v1, 4, 1')
    a('v_mul_u32_u24 v2, 18432, v8')
    a('v_lshl_add_u32 v2, v7, 4, v2')
    a('v_lshrrev_b32 v4, 5, v1')
    a('v_lshl_add_u32 v7, v4, 8, v2')
    a('s_mul_i32 s29, s24, 36864')
    a('s_lshl_b32 s28, s27, 9')
    a('s_add_u32 s29, s29, s28')
    if kind == 'A':
        srd(a, SP, P_WS, WQB, WQ_SZ)
        a('s_bfe_u32 s56, s2, 0x10002')
        a('s_lshr_b32 s57, s2, 3')
        a('s_mov_b32 s58, 126')
        pf_setup(a, 60, 58, WQ_SZ // 2, 56, 57, 26, 59)
    stamp(a)

    def xload():
        a('buffer_load_dwordx4 v[52:55], v7, s[%d:%d], s29 offen' % (SX, SX + 3))
        vm.issue('x')
    if kind == 'A':
        a('s_cmp_eq_u32 s26, 8')
        a('s_cbranch_scc1 woA_s2')
        a('v_min_u32 v8, 18, v3')
        a('v_and_b32 v9, 3, v8')
        a('v_lshlrev_b32 v9, 8, v9')
        a('v_lshrrev_b32 v4, 2, v8')
        a('v_lshl_add_u32 v9, v4, 6, v9')
        a('v_lshlrev_b32 v4, 6, v8')
        a('v_cmp_gt_u32 vcc, 16, v8')
        a('s_mul_i32 s28, s26, 12288')
        a('v_lshlrev_b32 v8, 2, v8')
        a('v_cndmask_b32 v9, v4, v9, vcc')
        a('v_add_u32 v8, s28, v8')
        a('v_lshrrev_b32 v4, 5, v1')
        a('v_lshl_add_u32 v9, v4, 5, v9')
        a('v_add_u32 v9, s28, v9')
        a('v_bfe_u32 v10, v1, 4, 1')
        a('v_and_b32 v11, 15, v1')
        a('v_lshlrev_b32 v11, 4, v11')
        a('v_lshl_add_u32 v11, v10, 10, v11')
        a('v_lshl_add_u32 v10, v4, 8, v11')
        a('s_lshl_b32 s28, s26, 12')
        a('s_add_u32 s28, s28, %d' % LO)
        a('v_add_u32 v10, s28, v10')
        a('s_lshr_b32 s28, s26, 2')
        a('s_lshl_b32 s28, s28, 11')
        a('s_and_b32 s30, s26, 3')
        a('s_lshl_b32 s30, s30, 8')
        a('s_add_u32 s28, s28, s30')
        a('s_add_u32 s28, s28, %d' % (LO + 32768))
        a('v_add_u32 v11, s28, v11')
        STS, OC = [60, 80], 100

        def kvread(hh):
            ST, o = STS[hh & 1], hh * KV_HEAD
            vm.wait(('phi', hh))
            a('ds_read_b128 %s, v9 offset:%d' % (vr(ST, 4), o))
            a('ds_read_b128 %s, v9 offset:%d' % (vr(ST + 4, 4), o + 16))
            a('ds_read_b128 %s, v9 offset:%d' % (vr(ST + 8, 4), o + 1216))
            a('ds_read_b128 %s, v9 offset:%d' % (vr(ST + 12, 4), o + 1232))
            for ft in range(4):
                a('ds_read_b32 %s, v8 offset:%d' % (vr(ST + 16 + ft), o + 2432 + ft * 128))

        def cvt(hh, part=None):
            ST = STS[hh & 1]
            ops = ['v_cvt_pk_bf16_f32 %s, %s, %s' % (vr(ST + n), vr(ST + 2 * n), vr(ST + 2 * n + 1)) for n in range(10)]
            ops += ['v_mov_b32 %s, 0' % vr(ST + 10), 'v_mov_b32 %s, 0' % vr(ST + 11)]
            for o_ in (ops if part is None else ops[4 * part:4 * part + 4]):
                a(o_)
        kvread(0)
        a('s_waitcnt lgkmcnt(0)')
        kvread(1)
        cvt(0)
        a('s_nop 1')
        for hh in range(4):
            ST = STS[hh & 1]
            P = PH + 12 * hh
            for q_ in range(3):
                a('v_mfma_f32_32x32x16_bf16 %s, %s, %s, %s' % (vr(OC, 16), vr(ST + 4 * q_, 4), vr(P + 4 * q_, 4), '0' if q_ == 0 else vr(OC, 16)))
                if hh < 3:
                    if q_ == 0:
                        a('s_waitcnt lgkmcnt(0)')
                    cvt(hh + 1, q_)
                elif q_ < 2:
                    a('s_nop 5')
            if hh < 2:
                kvread(hh + 2)
            elif hh == 2:
                a('s_nop 4')
            wload(3 if hh < 3 else 0)
            if hh == 3:
                a('s_nop 11')
            a('v_add_f32 v2, 0x%x, %s' % (f32bits(1e-6), vr(OC + 10)))
            a('v_rcp_f32 v2, v2')
            a('s_nop 0')
            for n in range(0, 10, 2):
                a('v_pk_mul_f32 %s, %s, v[2:3] op_sel_hi:[1,0]' % (p2(OC + n), p2(OC + n)))
            for n in range(5):
                a('v_cvt_pk_bf16_f32 %s, %s, %s' % (vr(OC + n), vr(OC + 2 * n), vr(OC + 2 * n + 1)))
            a('ds_write_b128 v10, %s offset:%d' % (vr(OC, 4), (hh >> 1) * 2048 + (hh & 1) * 512))
            a('s_mov_b32 exec_hi, 0')
            a('ds_write_b32 v11, %s offset:%d' % (vr(OC + 4), hh * 4))
            a('s_mov_b32 exec_hi, -1')
        a('s_branch woA_s1done')
        a.label('woA_s2')
        wst['t'] = 4
        vm.n -= 9
        a('s_mul_i32 s31, s27, 18432')
        wload(9)
        a.label('woA_s1done')
        a('s_waitcnt lgkmcnt(0)')
        wload(5)
        xload()
    else:
        xload()
        vm.wait('img')
    stamp(a)
    a('s_barrier')
    stamp(a)
    a('v_add_u32 v8, %d, v5' % LO)
    OB = [12, 20, 28, 36]
    C0, C1 = 44, 48

    def oread(t):
        b = OB[t % 4]
        a('ds_read_b128 %s, v8 offset:%d' % (vr(b, 4), t * 2048))
        a('ds_read_b128 %s, v8 offset:%d' % (vr(b + 4, 4), t * 2048 + 1024))
    for t in range(3):
        oread(t)
    pfdone = False
    for t in range(18):
        wload(2)
        if kind == 'A' and wst['t'] >= 18 and not pfdone:
            a('v_lshlrev_b32 v9, 7, v1')
            a('buffer_load_dword v10, v9, s[%d:%d], s60 offen' % (SP, SP + 3))
            vm.issue()
            pfdone = True
        if t + 3 < 18:
            oread(t + 3)
        rem = min(17 - t, 3)
        a('s_waitcnt vmcnt(%d) lgkmcnt(%d)' % (vm.cnt(('w', t)), 2 * rem))
        b = OB[t % 4]
        a('v_mfma_f32_16x16x32_bf16 %s, %s, %s, %s' % (vr(C0, 4), vr(WFr(t), 4), vr(b, 4), '0' if t == 0 else vr(C0, 4)))
        a('v_mfma_f32_16x16x32_bf16 %s, %s, %s, %s' % (vr(C1, 4), vr(WFr(t), 4), vr(b + 4, 4), '0' if t == 0 else vr(C1, 4)))
    stamp(a)
    vm.wait('x')
    for i in range(4):
        a('v_lshlrev_b32 v%d, 16, v%d' % (16 + 2 * i, 52 + i))
        a('v_and_b32 v%d, 0xffff0000, v%d' % (17 + 2 * i, 52 + i))
    a('s_cmp_eq_u32 s61, 0')
    a('s_cbranch_scc1 %s_fm' % body)
    a('v_and_b32 v7, 31, v1')
    a('v_mul_u32_u24 v7, 1152, v7')
    a('v_lshrrev_b32 v4, 5, v1')
    a('v_lshl_add_u32 v7, v4, 4, v7')
    a('s_mul_i32 s29, s24, 36864')
    a('s_lshl_b32 s28, s27, 5')
    a('s_add_u32 s29, s29, s28')
    a.label('%s_fm' % body)
    a('s_nop 1')
    for i in range(4):
        a('v_cvt_pk_bf16_f32 v%d, v%d, v%d' % (24 + i, C0 + 2 * i, C0 + 2 * i + 1))
    a('s_nop 1')
    a('v_permlane16_swap_b32 v24, v26')
    a('v_permlane16_swap_b32 v25, v27')
    for i in range(4):
        a('v_lshlrev_b32 v%d, 16, v%d' % (28 + 2 * i, 24 + i))
        a('v_and_b32 v%d, 0xffff0000, v%d' % (29 + 2 * i, 24 + i))
    for i in range(0, 8, 2):
        a('v_pk_add_f32 %s, %s, %s' % (p2(16 + i), p2(16 + i), p2(28 + i)))
    for i in range(4):
        a('v_cvt_pk_bf16_f32 v%d, v%d, v%d' % (24 + i, 16 + 2 * i, 17 + 2 * i))
    a('buffer_store_dwordx4 v[24:27], v7, s[%d:%d], s29 offen' % (SY, SY + 3))
    stamp(a)
    a('s_waitcnt vmcnt(0)') if STAMP else None
    stamp(a)
    stamp_rt(a)
    stamp_flush(a, 3 if kind == 'A' else 4)
    a.label(end)
    a('s_endpgm')
    return [(i[0], 168, 96) for i in insts]


def build():
    a = Asm()
    ks = []
    ks += gen_prep(a)
    ks += gen_qkv(a, 'A', [('qkva1_kernel', ('ws', X0), KV1), ('qkva3_kernel', ('ws', X0), KV3)])
    ks += gen_qkv(a, 'B', [('qkvb2_kernel', ('ws', X0), 0), ('qkvb4_kernel', ('ws', X0), 0)])
    ks += gen_attn(a, [('attn2_kernel', 126), ('attn4_kernel', 0)])
    ks += gen_wo(a, 'A', [('woa1_kernel', ('ws', X0), ('ws', X0), KV1), ('woa3_kernel', ('ws', X0), ('ws', X0), KV3)])
    ks += gen_wo(a, 'B', [('wob2_kernel', ('ws', X0), ('ws', X0), 0), ('wob4_kernel', ('ws', X0), ('in', P_OUT), 0)])
    LQA, LQB = 143 * 1024 + 512, 127 * 1024 + 512
    launches = [
        ('prep_kernel', NPREP, 192, 28416),
        ('qkva1_kernel', 256, 512, LQA),
        ('woa1_kernel', 256, 576, 98304 + 36864),
        ('qkvb2_kernel', 256, 512, LQB),
        ('attn2_kernel', 256, 512, A_LDS),
        ('wob2_kernel', 256, 576, 36864),
        ('qkva3_kernel', 256, 512, LQA),
        ('woa3_kernel', 256, 576, 98304 + 36864),
        ('qkvb4_kernel', 256, 512, LQB),
        ('attn4_kernel', 256, 512, A_LDS),
        ('wob4_kernel', 256, 576, 36864),
    ]
    out = []
    out.append('; generated by work/gen.py -- interleaved hedgehog linear attention / sliding window attention stack')
    for (k, g, b, l) in launches:
        out.append('; @launch kernel=%s grid=(%d,1,1) block=(%d,1,1) lds=%d' % (k, g, b, l))
    out.append('.amdgcn_target "amdgcn-amd-amdhsa--gfx950"')
    out.append('.text')
    out += a.L
    out.append('code_end:')
    out.append('    s_endpgm')
    out.append('.section .rodata,"a"')
    for (k, v, s) in ks:
        out.append('.p2align 6')
        out.append(kdesc(k, v, s))
    return '\n'.join(out) + '\n'


if __name__ == '__main__':
    if len(sys.argv) > 2 and sys.argv[2] == 'stamp':
        STAMP = True
    dst = sys.argv[1] if len(sys.argv) > 1 else 'cdna_kernels/%s.s' % NAME
    open(dst, 'w').write(build())
    print('wrote', dst)
```

```python
import sys, struct, os

NAME = 'interleave_layers__linear_kernel_hedgehog__sliding_block__prompt'

WQA = 0x000000
WQB = 0x200000
WQ_SZ = 16 * 18 * 7 * 1024
WOA = 0x400000
WOB = 0x500000
WO_SZ = 8 * 18 * 5 * 1024
CSA = 0x600000
CSB = 0x608000
CS_SZ = 16 * 3 * 448
TPHI = 0x610000
TPHI_SZ = 16 * 15 * 1024
KV1 = 0x660000
KV3 = 0x660000 + 32 * 2944
KV_HEAD = 2944
KV_SZ = 32 * KV_HEAD
X1 = 0x700000
X2 = 0x940000
X3 = 0xB80000
X_SZ = 2048 * 1152
PHIQ = 0xE00000
PHIQ_SZ = 64 * 32 * 2304
REC = 0x1300000
REC_HEAD = 262144
REC_SZ = 32 * REC_HEAD
R_Q0, R_K0, R_K1, R_V0, R_V1, R_VT, R_QT, R_KT = 0, 65536, 98304, 131072, 163840, 196608, 229376, 245760
X0 = 0x2400000
XS = 0x240000
FL = 0x6A0000
FL_SZ = 0x8000
WS_USED = 0x5000000
OIMG = 0x3000000
OIMG_SZ = 64 * 36864

LOG2E = 1.4426950408889634


def f32bits(x):
    return struct.unpack('<I', struct.pack('<f', x))[0]


class Asm:
    def __init__(self):
        self.L = []

    def __call__(self, s):
        self.L.append('    ' + s)

    def label(self, l):
        self.L.append(l + ':')

    def c(self, s):
        self.L.append('    ; ' + s)

    def raw(self, s):
        self.L.append(s)


class VM:
    def __init__(self, a):
        self.a = a
        self.n = 0
        self.tags = {}

    def issue(self, tag=None):
        self.n += 1
        if tag is not None:
            self.tags[tag] = self.n

    def cnt(self, tag):
        return self.n - self.tags[tag]

    def wait(self, tag):
        self.a('s_waitcnt vmcnt(%d)' % self.cnt(tag))


def vr(b, n=1):
    return 'v%d' % b if n == 1 else 'v[%d:%d]' % (b, b + n - 1)


def sr(b, n=1):
    return 's%d' % b if n == 1 else 's[%d:%d]' % (b, b + n - 1)


P_AX, P_AWQKV, P_AWPHI, P_AWO, P_BX, P_BWQKV, P_BWO, P_OUT, P_DBG, P_WS = 4, 6, 8, 10, 12, 14, 16, 18, 20, 22


def load_kernargs(a):
    a('s_load_dwordx16 s[4:19], s[0:1], 0')
    a('s_load_dwordx4 s[20:23], s[0:1], 64')


def srd(a, d, base, off, size):
    if off == 0:
        a('s_mov_b32 s%d, s%d' % (d, base))
        a('s_mov_b32 s%d, s%d' % (d + 1, base + 1))
    else:
        o = off if isinstance(off, str) else '0x%x' % off
        a('s_add_u32 s%d, s%d, %s' % (d, base, o))
        a('s_addc_u32 s%d, s%d, 0' % (d + 1, base + 1))
    a('s_mov_b32 s%d, 0x%x' % (d + 2, size))
    a('s_mov_b32 s%d, 0x00020000' % (d + 3))


def kdesc(name, vgpr, sgpr=96):
    acc = (vgpr + 3) // 4 * 4
    return '''.amdhsa_kernel %s
  .amdhsa_next_free_vgpr %d
  .amdhsa_next_free_sgpr %d
  .amdhsa_accum_offset %d
  .amdhsa_group_segment_fixed_size 0
  .amdhsa_kernarg_size 80
  .amdhsa_user_sgpr_count 2
  .amdhsa_user_sgpr_kernarg_segment_ptr 1
  .amdhsa_system_sgpr_workgroup_id_x 1
.end_amdhsa_kernel
''' % (name, vgpr, sgpr, acc)


def entry(a, name):
    a.raw('.p2align 8')
    a.raw('.globl %s' % name)
    a.raw('.type %s,@function' % name)
    a.label(name)


STAMP = False
STAMP_OFF = 0x4000000
_stamp_n = [0]
STAMP_REGS = list(range(72, 94))


def stamp(a):
    if not STAMP:
        return
    n = _stamp_n[0]
    a('s_memtime s[94:95]')
    a('s_waitcnt lgkmcnt(0)')
    a('s_mov_b32 s%d, s94' % STAMP_REGS[n])
    _stamp_n[0] += 1


def stamp_rt(a):
    if not STAMP:
        return
    n = _stamp_n[0]
    a('s_memrealtime s[94:95]')
    a('s_waitcnt lgkmcnt(0)')
    a('s_mov_b32 s%d, s94' % STAMP_REGS[n])
    _stamp_n[0] += 1


def stamp_flush(a, kid):
    if not STAMP:
        return
    a('s_getreg_b32 s%d, hwreg(HW_REG_XCC_ID)' % STAMP_REGS[_stamp_n[0]])
    n = _stamp_n[0] + 1
    _stamp_n[0] = 0
    a('s_mov_b64 exec, 1')
    a('s_add_u32 s68, s%d, 0x%x' % (P_WS, STAMP_OFF + kid * 0x100000))
    a('s_addc_u32 s69, s%d, 0' % (P_WS + 1))
    a('s_mov_b32 s70, 0x100000')
    a('s_mov_b32 s71, 0x00020000')
    a('s_lshl_b32 s94, s2, 4')
    a('s_add_u32 s94, s94, s26')
    a('s_lshl_b32 s94, s94, 7')
    a('v_mov_b32 v1, 0')
    for i in range(n):
        a('v_mov_b32 v2, s%d' % STAMP_REGS[i])
        a('buffer_store_dword v2, v1, s[68:71], s94 offen offset:%d' % (4 * i))
        a('s_nop 1')


def bf16r(a, v, tmp):
    a('v_cvt_pk_bf16_f32 %s, %s, %s' % (vr(tmp), vr(v), vr(v)))
    a('v_lshlrev_b32 %s, 16, %s' % (vr(v), vr(tmp)))


def magic(dv, maxv):
    for sh in range(4, 24):
        mul = (1 << sh) // dv + 1
        if all((x * mul) >> sh == x // dv for x in range(maxv + 1)):
            return mul, sh
    raise ValueError


def sdiv(a, dq, dr, src, dv, maxv):
    mul, sh = magic(dv, maxv)
    a('s_mul_i32 s%d, s%d, %d' % (dq, src, mul))
    a('s_lshr_b32 s%d, s%d, %d' % (dq, dq, sh))
    a('s_mul_i32 s%d, s%d, %d' % (dr, dq, dv))
    a('s_sub_u32 s%d, s%d, s%d' % (dr, src, dr))


NPREP = 460
CODEPF = int(os.environ.get('CODEPF', 1))


def gen_prep(a):
    entry(a, 'prep_kernel')
    a('s_cmp_ge_u32 s2, %d' % NPREP)
    a('s_cbranch_scc1 prep_end')
    load_kernargs(a)
    a('v_and_b32 v1, 63, v0')
    a('v_lshrrev_b32 v2, 6, v0')
    a('v_and_b32 v3, 7, v1')
    a('v_readfirstlane_b32 s24, v2')
    a('v_lshrrev_b32 v4, 3, v1')
    a('s_waitcnt lgkmcnt(0)')
    stamp(a)
    stamp_rt(a)
    if STAMP:
        a('s_mov_b32 s74, s72')
    if CODEPF:
        a('s_cmp_ge_u32 s2, 24')
        a('s_cbranch_scc1 prep_nocpf')
        a('s_getpc_b64 s[56:57]')
        a.label('prep_pc')
        a('s_lshr_b32 s58, s2, 3')
        a('s_mul_i32 s58, s58, 3')
        a('s_add_u32 s58, s58, s24')
        a('s_lshl_b32 s58, s58, 13')
        a('v_lshlrev_b32 v62, 7, v1')
        a('v_add_u32 v62, s58, v62')
        a('v_cmp_gt_u32 vcc, code_end-prep_pc-4, v62')
        a('s_and_saveexec_b64 s[58:59], vcc')
        a('s_cbranch_execz prep_cpf_skip')
        a('global_load_dword v63, v62, s[56:57]')
        a.label('prep_cpf_skip')
        a('s_mov_b64 exec, -1')
        a.label('prep_nocpf')
    a('s_cmp_ge_u32 s2, 332')
    a('s_cbranch_scc1 prep_x')
    a('s_cmp_ge_u32 s2, 308')
    a('s_cbranch_scc1 prep_zero')
    a('s_cmp_ge_u32 s2, 296')
    a('s_cbranch_scc1 prep_spec')
    a('s_cmp_ge_u32 s2, 216')
    a('s_cbranch_scc1 prep_phi')
    a('s_cmp_ge_u32 s2, 162')
    a('s_cbranch_scc1 prep_wo')
    a('s_cmp_ge_u32 s2, 81')
    a('s_cselect_b32 s32, s%d, s%d' % (P_BWQKV, P_AWQKV))
    a('s_cselect_b32 s33, s%d, s%d' % (P_BWQKV + 1, P_AWQKV + 1))
    a('s_cselect_b32 s25, 0x%x, 0' % (WQB - WQA))
    a('s_cselect_b32 s29, 0x%x, 0' % (CSB - CSA))
    a('s_cselect_b32 s26, 81, 0')
    a('s_add_u32 s29, s29, 0x%x' % CSA)
    a('s_mov_b32 s34, %d' % (576 * 3456))
    a('s_mov_b32 s35, 0x00020000')
    srd(a, 36, P_WS, 's25', WQ_SZ)
    srd(a, 52, P_WS, 's29', CS_SZ)
    a('s_sub_u32 s26, s2, s26')
    sdiv(a, 27, 28, 26, 3, 80)
    sdiv(a, 29, 30, 27, 9, 26)
    a('s_mul_i32 s31, s28, 3')
    a('s_add_u32 s31, s31, s24')
    for e in range(8):
        a('s_mov_b32 s%d, %d' % (40 + e, e * 3456))
    a('s_lshl_b32 s30, s30, 6')
    a('v_lshl_add_u32 v5, v3, 3, s30')
    a('s_lshl_b32 s48, s31, 3')
    a('v_add_u32 v6, s48, v4')
    a('v_mul_u32_u24 v7, %d, v6' % (8 * 3456))
    a('v_lshl_add_u32 v7, v5, 1, v7')
    a('s_mul_i32 s48, s29, 1152')
    a('v_add_u32 v7, s48, v7')
    for e in range(8):
        a('buffer_load_dwordx4 v[%d:%d], v7, s[32:35], s%d offen' % (16 + 4 * e, 19 + 4 * e, 40 + e))
    a('v_mov_b32 v8, 0')
    a('s_mul_i32 s62, s31, 14336')
    a('s_add_u32 s63, s62, 7168')
    a('s_lshl_b32 s48, s29, 11')
    a('s_lshl_b32 s49, s29, 6')
    a('s_add_u32 s49, s49, 5888')
    a('s_mov_b32 s50, 129024')

    def coldest(dst, rem, tgreg, t0):
        h, d, x, y = t0, t0 + 1, t0 + 2, t0 + 3
        a('v_mul_u32_u24 v%d, 3641, v%d' % (h, rem))
        a('v_lshrrev_b32 v%d, 16, v%d' % (h, h))
        a('v_mul_u32_u24 v%d, 18, v%d' % (d, h))
        a('v_sub_u32 v%d, v%d, v%d' % (d, rem, d))
        a('v_and_b32 v%d, 1, v%d' % (x, h))
        a('v_cmp_gt_u32 vcc, 16, v%d' % d)
        a('v_lshl_add_u32 v%d, v%d, 5, s49' % (y, x))
        a('v_lshl_add_u32 v%d, v%d, 10, s48' % (x, x))
        a('v_lshrrev_b32 v%d, 1, v%d' % (h, h))
        a('v_cndmask_b32 v%d, v%d, v%d, vcc' % (x, y, x))
        a('v_mul_u32_u24 v%d, s50, v%d' % (h, h))
        a('v_lshl_add_u32 v%d, v%d, 4, v%d' % (x, d, x))
        a('v_add3_u32 v%d, v%d, v%d, v%d' % (dst, x, h, tgreg))
    a('v_add_u32 v10, s30, v1')
    coldest(48, 10, 8, 11)
    a('s_mov_b32 s51, 1')
    a('s_branch prep_tr')
    a.label('prep_wo')
    a('s_cmp_ge_u32 s2, 189')
    a('s_cselect_b32 s32, s%d, s%d' % (P_BWO, P_AWO))
    a('s_cselect_b32 s33, s%d, s%d' % (P_BWO + 1, P_AWO + 1))
    a('s_cselect_b32 s25, 0x%x, 0' % (WOB - WOA))
    a('s_cselect_b32 s26, 27, 0')
    a('s_add_u32 s25, s25, 0x%x' % WOA)
    a('s_add_u32 s26, s26, 162')
    a('s_mov_b32 s34, %d' % (576 * 1152))
    a('s_mov_b32 s35, 0x00020000')
    srd(a, 36, P_WS, 's25', WO_SZ)
    srd(a, 52, P_WS, CSA, CS_SZ)
    a('s_sub_u32 s26, s2, s26')
    sdiv(a, 27, 28, 26, 3, 26)
    a('s_mul_i32 s31, s28, 3')
    a('s_add_u32 s31, s31, s24')
    a('s_lshl_b32 s48, s31, 3')
    a('v_add_u32 v6, s48, v4')
    a('s_cmp_eq_u32 s31, 8')
    a('s_cbranch_scc1 prep_b_tail')
    for e, o in enumerate([0, 1, 2, 3, 8, 9, 10, 11]):
        a('s_mov_b32 s%d, %d' % (40 + e, o * 1152))
    a('v_lshrrev_b32 v7, 1, v6')
    a('v_mul_u32_u24 v7, 18, v7')
    a('v_and_b32 v8, 1, v6')
    a('v_lshl_add_u32 v7, v8, 2, v7')
    a('s_branch prep_b_row')
    a.label('prep_b_tail')
    for e, o in enumerate([0, 1, 18, 19, 36, 37, 54, 55]):
        a('s_mov_b32 s%d, %d' % (40 + e, o * 1152))
    a('v_mul_u32_u24 v7, 72, v4')
    a('v_add_u32 v7, 16, v7')
    a.label('prep_b_row')
    a('v_mul_u32_u24 v7, 1152, v7')
    a('v_lshl_add_u32 v7, v3, 4, v7')
    a('s_lshl_b32 s30, s27, 7')
    a('v_add_u32 v7, s30, v7')
    for e in range(8):
        a('buffer_load_dwordx4 v[%d:%d], v7, s[32:35], s%d offen' % (16 + 4 * e, 19 + 4 * e, 40 + e))
    a('s_lshl_b32 s30, s27, 6')
    a('v_add_u32 v8, s30, v1')
    a('v_mul_u32_u24 v9, 911, v8')
    a('v_lshrrev_b32 v9, 16, v9')
    a('v_mul_u32_u24 v10, 72, v9')
    a('v_sub_u32 v8, v8, v10')
    a('s_mov_b32 s30, 92160')
    a('v_mul_u32_u24 v9, s30, v9')
    a('v_lshrrev_b32 v10, 4, v8')
    a('v_lshl_add_u32 v9, v10, 10, v9')
    a('v_and_b32 v8, 15, v8')
    a('v_lshl_add_u32 v48, v8, 4, v9')
    a('s_mul_i32 s62, s31, 10240')
    a('s_add_u32 s63, s62, 5120')
    a('s_mov_b32 s51, 0')
    a.label('prep_tr')
    a('s_mul_i32 s30, s24, 9216')
    a('v_mul_u32_u24 v49, 1152, v4')
    a('v_mul_u32_u24 v50, 144, v3')
    a('v_add3_u32 v49, v49, v50, s30')
    a('v_add_u32 v50, v1, v4')
    a('v_lshlrev_b32 v50, 4, v50')
    a('v_add_u32 v50, s30, v50')
    a('s_mov_b32 s30, 0x05040100')
    a('s_mov_b32 s31, 0x07060302')
    a('s_mov_b32 s26, 0x3f803f80')
    a('s_waitcnt vmcnt(0)')
    stamp(a)
    for c in range(8):
        p, o = c >> 1, c & 1
        ob = 64 + 4 * c
        for q in range(4):
            a('v_perm_b32 v%d, v%d, v%d, s%d' % (ob + q, 16 + 4 * (2 * q + 1) + p, 16 + 4 * (2 * q) + p, 30 + o))
        a('ds_write_b128 v49, v[%d:%d] offset:%d' % (ob, ob + 3, 16 * c))
    a('s_waitcnt lgkmcnt(0)')
    for kg in range(8):
        a('ds_read_b128 v[%d:%d], v50 offset:%d' % (16 + 4 * kg, 19 + 4 * kg, kg * 1152))
    for kg in range(8):
        a('s_waitcnt lgkmcnt(%d)' % (7 - kg))
        a('buffer_store_dwordx4 v[%d:%d], v48, s[36:39], s%d offen offset:%d' % (16 + 4 * kg, 19 + 4 * kg, 62 + (kg >> 2), (kg & 3) * 256))
    a('s_cmp_eq_u32 s51, 0')
    a('s_cbranch_scc1 prep_end')
    for n in range(32):
        a('v_dot2_f32_bf16 v%d, v%d, s26, %s' % (52 + (n & 3), 16 + n, '0' if n < 4 else 'v%d' % (52 + (n & 3))))
    a('v_lshlrev_b32 v10, 2, v0')
    a('s_nop 1')
    a('v_add_f32 v52, v52, v53')
    a('v_add_f32 v54, v54, v55')
    a('v_add_f32 v52, v52, v54')
    a('ds_write_b32 v10, v52 offset:27648')
    a('s_waitcnt lgkmcnt(0)')
    a('s_barrier')
    a('s_cmp_lg_u32 s24, 0')
    a('s_cbranch_scc1 prep_end')
    for i in range(3):
        a('ds_read_b32 v%d, v10 offset:%d' % (16 + i, 27648 + i * 256))
    a('s_mul_i32 s30, s29, 9')
    a('s_sub_u32 s30, s27, s30')
    a('s_lshl_b32 s30, s30, 6')
    a('s_lshl_b32 s48, s29, 9')
    a('s_lshl_b32 s49, s29, 6')
    a('s_add_u32 s49, s49, %d' % (96 * 16 - 256))
    a('s_mov_b32 s50, %d' % (3 * 448 * 4))
    a('v_add_u32 v10, s30, v1')
    a('s_mul_i32 s30, s28, %d' % (448 * 4))
    a('v_mov_b32 v8, s30')
    a('v_mul_u32_u24 v11, 3641, v10')
    a('v_lshrrev_b32 v11, 16, v11')
    a('v_mul_u32_u24 v12, 18, v11')
    a('v_sub_u32 v12, v10, v12')
    a('v_and_b32 v13, 1, v11')
    a('v_cmp_gt_u32 vcc, 16, v12')
    a('v_lshl_add_u32 v14, v13, 5, s49')
    a('v_lshl_add_u32 v13, v13, 8, s48')
    a('v_lshrrev_b32 v11, 1, v11')
    a('v_cndmask_b32 v13, v14, v13, vcc')
    a('v_mul_u32_u24 v11, s50, v11')
    a('v_lshl_add_u32 v13, v12, 4, v13')
    a('v_add3_u32 v13, v13, v11, v8')
    a('v_lshrrev_b32 v13, 2, v13')
    a('s_waitcnt lgkmcnt(0)')
    a('v_add_f32 v16, v16, v17')
    a('v_add_f32 v16, v16, v18')
    a('buffer_store_dword v16, v13, s[52:55], 0 offen')
    a('s_branch prep_end')
    a.label('prep_phi')
    srd(a, 32, P_AWPHI, 0, 32 * 324 * 2)
    srd(a, 36, P_WS, TPHI, TPHI_SZ)
    a('s_sub_u32 s26, s2, 216')
    sdiv(a, 27, 29, 26, 5, 79)
    a('s_mov_b32 s28, s24')
    a('v_and_b32 v2, 3, v1')
    a('v_bfe_u32 v3, v1, 2, 1')
    a('v_bfe_u32 v4, v1, 3, 1')
    a('v_lshrrev_b32 v5, 4, v1')
    a('v_lshlrev_b32 v6, 15, v3')
    a('v_lshl_or_b32 v6, v6, 16, v6')
    a('v_cmp_eq_u32 s[50:51], 0, v4')
    a('s_lshl_b32 s30, s29, 2')
    a('v_add_u32 v7, s30, v2')
    a('v_lshlrev_b32 v8, 2, v5')
    a('s_cmp_eq_u32 s28, 0')
    a('s_cbranch_scc1 prep_phi_d0')
    a('v_mov_b32 v8, 16')
    a.label('prep_phi_d0')
    a('s_lshl_b32 s30, s27, 1')
    a('v_add_u32 v9, s30, v4')
    a('v_mul_u32_u24 v9, 324, v9')
    a('v_mul_u32_u24 v8, 18, v8')
    a('v_add3_u32 v9, v9, v8, v7')
    a('v_lshlrev_b32 v9, 1, v9')
    a('v_mov_b32 v10, 0x7fff0000')
    a('v_cmp_gt_u32 vcc, 18, v7')
    a('s_nop 1')
    a('v_cndmask_b32 v9, v10, v9, vcc')
    a('s_cmp_eq_u32 s28, 0')
    a('s_cbranch_scc1 prep_phi_ld')
    a('s_sub_u32 s30, s28, 1')
    a('v_cmp_eq_u32 vcc, s30, v5')
    a('s_nop 1')
    a('v_cndmask_b32 v9, v10, v9, vcc')
    a.label('prep_phi_ld')
    for i in range(4):
        a('buffer_load_ushort v%d, v9, s[32:35], 0 offen offset:%d' % (16 + i, i * 36))
    a('s_waitcnt vmcnt(0)')
    a('v_lshl_or_b32 v16, v17, 16, v16')
    a('v_lshl_or_b32 v18, v19, 16, v18')
    a('v_xor_b32 v16, v16, v6')
    a('v_xor_b32 v18, v18, v6')
    a('v_cndmask_b32 v20, 0, v16, s[50:51]')
    a('s_cmp_eq_u32 s28, 0')
    a('s_cbranch_scc0 prep_phi_tb')
    a('v_cndmask_b32 v21, 0, v18, s[50:51]')
    a('v_cndmask_b32 v22, v16, 0, s[50:51]')
    a('v_cndmask_b32 v23, v18, 0, s[50:51]')
    a('s_branch prep_phi_st')
    a.label('prep_phi_tb')
    a('v_cndmask_b32 v21, v16, 0, s[50:51]')
    a('v_mov_b32 v22, 0')
    a('v_mov_b32 v23, 0')
    a.label('prep_phi_st')
    a('s_mul_i32 s30, s27, 15')
    a('s_mul_i32 s31, s28, 5')
    a('s_add_u32 s30, s30, s31')
    a('s_add_u32 s30, s30, s29')
    a('s_lshl_b32 s30, s30, 10')
    a('v_lshlrev_b32 v11, 4, v1')
    a('buffer_store_dwordx4 v[20:23], v11, s[36:39], s30 offen')
    a('s_branch prep_end')
    a.label('prep_spec')
    a('s_sub_u32 s26, s2, 296')
    a('s_cmp_ge_u32 s26, 6')
    a('s_cselect_b32 s25, 0x%x, 0' % (WQB - WQA))
    a('s_cselect_b32 s29, 0x%x, 0' % (CSB - CSA))
    a('s_cselect_b32 s27, 6, 0')
    a('s_add_u32 s29, s29, 0x%x' % CSA)
    srd(a, 36, P_WS, 's25', WQ_SZ)
    srd(a, 52, P_WS, 's29', CS_SZ)
    a('s_sub_u32 s26, s26, s27')
    a('s_mul_i32 s26, s26, 192')
    a('v_add_u32 v2, s26, v0')
    a('v_lshrrev_b32 v3, 2, v2')
    a('v_mul_u32_u24 v4, 7168, v3')
    a('v_and_b32 v5, 3, v2')
    a('v_lshl_add_u32 v4, v5, 8, v4')
    a('v_add_u32 v4, %d, v4' % (6144 + 192))
    for i in range(4):
        a('v_mov_b32 v%d, 0x3f803f80' % (8 + i))
        a('v_mov_b32 v%d, 0' % (12 + i))
    a('buffer_store_dwordx4 v[8:11], v4, s[36:39], 0 offen')
    for i in range(1, 4):
        a('buffer_store_dwordx4 v[12:15], v4, s[36:39], 0 offen offset:%d' % (16 * i))
    a('v_mul_u32_u24 v6, 448, v2')
    a('v_add_u32 v6, 432, v6')
    a('buffer_store_dwordx4 v[12:15], v6, s[52:55], 0 offen')
    a('s_branch prep_end')
    a.label('prep_zero')
    srd(a, 36, P_WS, KV1, 2 * KV_SZ)
    a('s_sub_u32 s27, s2, 308')
    a('s_mul_i32 s27, s27, 9216')
    a('v_lshlrev_b32 v2, 4, v0')
    a('v_add_u32 v2, s27, v2')
    for i in range(4):
        a('v_mov_b32 v%d, 0' % (4 + i))
    for k in range(3):
        a('s_mov_b32 s28, %d' % (k * 3072))
        a('buffer_store_dwordx4 v[4:7], v2, s[36:39], s28 offen')
    srd(a, 36, P_WS, FL, FL_SZ)
    a('s_sub_u32 s27, s2, 308')
    a('s_mul_i32 s27, s27, 3072')
    a('v_lshlrev_b32 v2, 4, v0')
    a('buffer_store_dwordx4 v[4:7], v2, s[36:39], s27 offen')
    a('s_branch prep_end')
    a.label('prep_x')
    srd(a, 32, P_AX, 0, X_SZ)
    srd(a, 36, P_WS, X0, X_SZ)
    a('s_sub_u32 s26, s2, 332')
    a('s_and_b32 s27, s26, 3')
    a('s_lshl_b32 s27, s27, 5')
    a('s_lshr_b32 s26, s26, 2')
    a('s_add_u32 s26, s26, s27')
    a('v_lshrrev_b32 v2, 2, v1')
    a('v_and_b32 v3, 3, v1')
    a('v_mul_u32_u24 v4, 1152, v2')
    a('v_lshl_add_u32 v4, v3, 4, v4')
    a('s_mul_i32 s27, s26, 18432')
    a('s_mul_i32 s28, s24, 384')
    a('s_add_u32 s28, s28, s27')
    for t in range(6):
        a('buffer_load_dwordx4 v[%d:%d], v4, s[32:35], s28 offen offset:%d' % (16 + 4 * t, 19 + 4 * t, t * 64))
    a('v_lshlrev_b32 v5, 4, v2')
    a('v_lshl_add_u32 v5, v3, 8, v5')
    a('s_mul_i32 s28, s24, 6144')
    a('v_add_u32 v5, s28, v5')
    a('v_lshlrev_b32 v6, 4, v1')
    a('v_add_u32 v7, s28, v6')
    a('s_add_u32 s28, s28, s27')
    a('s_add_u32 s29, s28, 3072')
    for t in range(6):
        a('s_waitcnt vmcnt(%d)' % (5 - t))
        a('ds_write_b128 v5, v[%d:%d] offset:%d' % (16 + 4 * t, 19 + 4 * t, t * 1024))
    a('s_waitcnt lgkmcnt(0)')
    for t in range(6):
        a('ds_read_b128 v[%d:%d], v7 offset:%d' % (40 + 4 * t, 43 + 4 * t, t * 1024))
    for t in range(6):
        a('s_waitcnt lgkmcnt(%d)' % (5 - t))
        a('buffer_store_dwordx4 v[%d:%d], v6, s[36:39], s%d offen offset:%d' % (40 + 4 * t, 43 + 4 * t, 28 + t // 3, (t % 3) * 1024))
    a.label('prep_end')
    if STAMP:
        a('s_cmp_ge_u32 s2, %d' % NPREP)
        a('s_cbranch_scc1 prep_end2')
        a('s_mov_b64 exec, -1')
        stamp(a)
        a('s_waitcnt vmcnt(0)')
        stamp(a)
        stamp_rt(a)
        a('s_mov_b32 s26, s24')
        a('s_lshr_b32 s3, s2, 8')
        a('s_lshl_b32 s3, s3, 2')
        a('s_add_u32 s26, s26, s3')
        a('s_and_b32 s2, s2, 255')
        stamp_flush(a, 5)
        a.label('prep_end2')
    a('s_endpgm')
    return [('prep_kernel', 96, 96)]


XF0 = 32
ACC0 = 104
WB0 = 168
LDS_T = 127 * 1024
LDS_PK = 32 * 1024
PK_STRIDE = 224
QDEPTH = int(os.environ.get('QDEPTH', 3))
SPREAD = int(os.environ.get('SPREAD', 1))
LSLOTS = [1, 5, 9, 13]


def XF(a_, t):
    return XF0 + (a_ * 9 + t) * 4


def ACC(a_, u):
    return ACC0 + (a_ * 8 + u) * 4


def p2(r):
    return 'v[%d:%d]' % (r, r + 1)


def softmax18(a, D, sL, tmp):
    m, s_ = tmp, tmp + 2
    a('v_max3_f32 %s, %s, %s, %s' % (vr(m), vr(D), vr(D + 1), vr(D + 2)))
    a('v_max3_f32 %s, %s, %s, %s' % (vr(m + 1), vr(D + 3), vr(D + 4), vr(D + 5)))
    for i in range(6, 18, 4):
        a('v_max3_f32 %s, %s, %s, %s' % (vr(m), vr(m), vr(D + i), vr(D + i + 1)))
        a('v_max3_f32 %s, %s, %s, %s' % (vr(m + 1), vr(m + 1), vr(D + i + 2), vr(D + i + 3)))
    a('v_max_f32 %s, %s, %s' % (vr(m), vr(m), vr(m + 1)))
    a('v_mul_f32 %s, s%d, %s' % (vr(m), sL, vr(m)))
    pf = lambda k: a('v_pk_fma_f32 %s, %s, s[%d:%d], %s op_sel_hi:[1,0,0] neg_lo:[0,0,1] neg_hi:[0,0,1]' % (p2(D + 2 * k), p2(D + 2 * k), sL, sL + 1, p2(m)))
    pf(0)
    pf(1)
    for k in range(9):
        a('v_exp_f32 %s, %s' % (vr(D + 2 * k), vr(D + 2 * k)))
        if k + 2 < 9:
            pf(k + 2)
        elif k == 7:
            a('v_pk_add_f32 %s, %s, %s' % (p2(s_), p2(s_), p2(D + 10)))
        else:
            a('v_pk_add_f32 %s, %s, %s' % (p2(s_), p2(s_), p2(D + 14)))
        a('v_exp_f32 %s, %s' % (vr(D + 2 * k + 1), vr(D + 2 * k + 1)))
        if k == 2:
            a('v_pk_add_f32 %s, %s, %s' % (p2(s_), p2(D), p2(D + 2)))
        elif 3 <= k <= 5:
            a('v_pk_add_f32 %s, %s, %s' % (p2(s_), p2(s_), p2(D + 2 * k - 2)))
        elif k == 7:
            a('v_pk_add_f32 %s, %s, %s' % (p2(s_), p2(s_), p2(D + 12)))
        elif k == 8:
            a('s_nop 0')
    a('v_pk_add_f32 %s, %s, %s' % (p2(s_), p2(s_), p2(D + 16)))
    a('v_add_f32 %s, %s, %s' % (vr(s_), vr(s_), vr(s_ + 1)))
    a('v_rcp_f32 %s, %s' % (vr(s_), vr(s_)))
    a('s_nop 0')
    for k in range(9):
        a('v_pk_mul_f32 %s, %s, %s op_sel_hi:[1,0]' % (p2(D + 2 * k), p2(D + 2 * k), p2(s_)))
    for i in range(9):
        a('v_cvt_pk_bf16_f32 %s, %s, %s' % (vr(D + i), vr(D + 2 * i), vr(D + 2 * i + 1)))


SWS, SOUT = 32, 36
F_KVC, F_OC, F_XC, F_KVF = FL, FL + 4096, FL + 12288, FL + 20480
SPIN_LIMIT = 40000
LDS_CS = 143 * 1024
L_PHI = 96 * 1024
L_KV = 116 * 1024
IM_P = 6144 + 64
I_K0, I_K1, I_V0, I_V1, I_VT = 0, IM_P, 2 * IM_P, 3 * IM_P, 4 * IM_P
I_KT = 5 * IM_P
I_Q0 = I_KT + 3072
I_Q1 = I_Q0 + 2048
I_QT = I_Q1 + 2048
IM_HEAD = I_QT + 1024
MEGA_LDS = 143 * 1024 + 512
_uid = [0]


def mstamp(a):
    if not STAMP:
        return
    a('s_memtime s[94:95]')
    a('s_waitcnt lgkmcnt(0)')
    a('v_writelane_b32 v31, s94, s93')
    a('s_add_u32 s93, s93, 1')


def ws_ld(a, dst, n, voff, soff, imm=0, extra=''):
    a('buffer_load_dword%s %s, %s, s[%d:%d], %s offen offset:%d %s' % ('' if n == 1 else 'x%d' % n, vr(dst, n), voff, SWS, SWS + 3, soff, imm, extra))


def ws_dma(a, soff, imm=0, extra=''):
    a('buffer_load_dwordx4 v5, s[%d:%d], %s offen offset:%d %s lds' % (SWS, SWS + 3, soff, imm, extra))


def ws_st(a, src, n, voff, soff, imm=0, extra='sc1'):
    a('buffer_store_dword%s %s, %s, s[%d:%d], %s offen offset:%d %s' % ('' if n == 1 else 'x%d' % n, vr(src, n), voff, SWS, SWS + 3, soff, imm, extra))


def arrive(a, soff):
    _uid[0] += 1
    l = 'arr%d' % _uid[0]
    a('s_cmp_lg_u32 s26, 0')
    a('s_cbranch_scc1 %s' % l)
    a('v_mov_b32 v29, 0')
    a('v_mov_b32 v30, 1')
    a('s_mov_b64 exec, 1')
    a('buffer_atomic_add v30, v29, s[%d:%d], %s offen sc1' % (SWS, SWS + 3, soff))
    a('s_mov_b64 exec, -1')
    a.label(l)


def poll(a, soffs, target, skip_cond=None):
    _uid[0] += 1
    l = 'pl%d' % _uid[0]
    a('s_cmp_lg_u32 s26, 0')
    a('s_cbranch_scc1 %s_e' % l)
    if skip_cond:
        a(skip_cond)
        a('s_cbranch_scc1 %s_e' % l)
    a('v_mov_b32 v29, 0')
    a('s_mov_b64 exec, 1')
    a('s_mov_b32 s90, 0')
    a.label(l)
    for q, so in enumerate(soffs):
        a('buffer_load_dword v%d, v29, s[%d:%d], %s offen sc1' % (27 + q, SWS, SWS + 3, so))
    a('s_waitcnt vmcnt(0)')
    if len(soffs) == 2:
        a('v_min_u32 v27, v27, v28')
        a('s_nop 0')
    a('v_readfirstlane_b32 s91, v27')
    a('s_add_u32 s90, s90, 1')
    a('s_cmp_ge_u32 s90, %d' % SPIN_LIMIT)
    a('s_cbranch_scc1 %s_d' % l)
    a('s_cmp_lt_u32 s91, %d' % target)
    a('s_cbranch_scc1 %s' % l)
    a.label('%s_d' % l)
    a('s_mov_b64 exec, -1')
    a.label('%s_e' % l)


def oimg_addr(a, s_rb32, s_head, s_main, s_tail, t1, t2):
    a('s_mul_i32 s%d, s10, 0x%x' % (t1, XS))
    a('s_mul_i32 s%d, s%d, 36864' % (s_tail, s_rb32))
    a('s_add_u32 s%d, s%d, s%d' % (s_tail, s_tail, t1))
    a('s_add_u32 s%d, s%d, 0x%x' % (s_tail, s_tail, OIMG))
    a('s_lshl_b32 s%d, s%d, 10' % (t1, s_head))
    a('s_and_b32 s%d, s%d, 1' % (t2, s_head))
    a('s_lshl_b32 s%d, s%d, 9' % (t2, t2))
    a('s_sub_u32 s%d, s%d, s%d' % (t1, t1, t2))
    a('s_add_u32 s%d, s%d, s%d' % (s_main, s_tail, t1))
    a('s_lshr_b32 s%d, s%d, 4' % (t1, s_head))
    a('s_lshl_b32 s%d, s%d, 11' % (t1, t1))
    a('s_add_u32 s%d, s%d, s%d' % (s_tail, s_tail, t1))
    a('s_bfe_u32 s%d, s%d, 0x20002' % (t1, s_head))
    a('s_lshl_b32 s%d, s%d, 8' % (t1, t1))
    a('s_add_u32 s%d, s%d, s%d' % (s_tail, s_tail, t1))
    a('s_and_b32 s%d, s%d, 3' % (t1, s_head))
    a('s_lshl_b32 s%d, s%d, 2' % (t1, t1))
    a('s_add_u32 s%d, s%d, s%d' % (s_tail, s_tail, t1))
    a('s_add_u32 s%d, s%d, 32768' % (s_tail, s_tail))


def o_store(a, OA, s_main, s_tail, vden, eps):
    a('v_bfe_u32 v26, v1, 4, 1')
    a('v_and_b32 v27, 15, v1')
    a('v_lshlrev_b32 v27, 4, v27')
    a('v_lshl_add_u32 v27, v26, 10, v27')
    a('v_lshrrev_b32 v26, 5, v1')
    a('v_lshl_add_u32 v28, v26, 8, v27')
    if eps:
        a('v_add_f32 v24, 0x%x, %s' % (f32bits(eps), vr(OA + 10)))
        a('v_rcp_f32 v24, v24')
    else:
        a('v_rcp_f32 v24, %s' % vr(OA + 10))
    a('s_nop 0')
    for n in range(0, 10, 2):
        a('v_pk_mul_f32 %s, %s, v[24:25] op_sel_hi:[1,0]' % (p2(OA + n), p2(OA + n)))
    for n in range(5):
        a('v_cvt_pk_bf16_f32 %s, %s, %s' % (vr(OA + n), vr(OA + 2 * n), vr(OA + 2 * n + 1)))
    ws_st(a, OA, 4, 'v28', 's%d' % s_main)
    a('s_mov_b32 exec_hi, 0')
    ws_st(a, OA + 4, 1, 'v27', 's%d' % s_tail)
    a('s_mov_b32 exec_hi, -1')


def gen_mega(a):
    entry(a, 'mega_kernel')
    a('s_cmp_ge_u32 s2, 256')
    a('s_cbranch_scc1 mega_end')
    a('s_load_dwordx2 s[18:19], s[0:1], 56')
    a('s_load_dwordx2 s[22:23], s[0:1], 72')
    a('s_and_b32 s24, s2, 3')
    a('s_lshl_b32 s12, s24, 3')
    a('s_lshl_b32 s24, s24, 2')
    a('s_bfe_u32 s25, s2, 0x20003')
    a('s_add_u32 s24, s24, s25')
    a('s_bfe_u32 s11, s2, 0x10002')
    a('s_lshl_b32 s13, s11, 2')
    a('s_add_u32 s13, s13, s25')
    a('s_lshl_b32 s25, s11, 3')
    a('s_lshr_b32 s26, s2, 5')
    a('s_add_u32 s25, s25, s26')
    a('s_add_u32 s12, s12, s26')
    a('v_lshrrev_b32 v2, 6, v0')
    a('v_and_b32 v1, 63, v0')
    a('v_readfirstlane_b32 s26, v2')
    a('v_lshlrev_b32 v5, 4, v1')
    a('s_mov_b32 s10, 0')
    a('s_mov_b32 s93, 0')
    a('v_mov_b32 v31, 0')
    a('s_and_b32 s27, s26, 3')
    a('s_lshr_b32 s28, s26, 2')
    a('s_waitcnt lgkmcnt(0)')
    srd(a, SWS, P_WS, 0, WS_USED)
    srd(a, SOUT, P_OUT, 0, X_SZ)
    a.label('L_top')
    mstamp(a)
    a('s_and_b32 s14, s10, 1')
    a('s_mul_i32 s31, s28, 63')
    a('s_add_u32 s31, s31, s27')
    a('s_lshl_b32 s31, s31, 10')
    a('s_mov_b32 m0, s31')
    a('s_mul_i32 s56, s25, 129024')
    a('s_add_u32 s31, s31, s56')
    a('s_mul_i32 s56, s14, 0x%x' % (WQB - WQA))
    a('s_add_u32 s31, s31, s56')
    for ii in range(16):
        ws_dma(a, 's31')
        if ii < 15:
            a('s_add_u32 m0, m0, 4096')
            a('s_add_u32 s31, s31, 4096')
    a('s_lshl_b32 s31, s26, 11')
    a('s_add_u32 m0, s31, %d' % LDS_T)
    a('s_mul_i32 s56, s25, 15360')
    a('s_add_u32 s31, s31, s56')
    a('s_add_u32 s31, s31, 0x%x' % TPHI)
    ws_dma(a, 's31')
    ws_dma(a, 's31', 1024)
    a('s_mul_i32 s56, s25, 1344')
    a('s_mul_i32 s57, s14, 0x%x' % (CSB - CSA))
    a('s_add_u32 s56, s56, s57')
    a('s_add_u32 s56, s56, 0x%x' % CSA)
    for p in range(3):
        ws_ld(a, 224 + 4 * p, 4, 'v5', 's56', p * 448)
    a('v_and_b32 v3, 15, v1')
    a('v_lshrrev_b32 v4, 4, v1')
    a('s_lshl_b32 s29, s24, 7')
    a('s_lshl_b32 s30, s27, 5')
    a('s_add_u32 s29, s29, s30')
    a('s_lshl_b32 s30, s28, 4')
    a('s_add_u32 s29, s29, s30')
    a('v_add_u32 v6, s29, v3')
    a('s_lshr_b32 s30, s29, 4')
    a('s_xor_b32 s69, s30, 1')
    a('s_mul_i32 s30, s30, 18432')
    a('s_mul_i32 s69, s69, 18432')
    a('s_mul_i32 s31, s28, 9216')
    a('s_mul_i32 s56, s10, 0x%x' % XS)
    a('s_add_u32 s31, s31, s56')
    a('s_add_u32 s31, s31, 0x%x' % X0)
    a('s_add_u32 s30, s30, s31')
    a('s_add_u32 s69, s69, s31')
    a('s_mul_i32 s56, s28, %d' % (63 * 1024))
    a('v_add_u32 v10, s56, v5')
    a('v_and_b32 v11, 3, v3')
    a('v_cmp_eq_u32 s[58:59], 1, v11')
    a('v_cmp_eq_u32 s[60:61], 2, v11')
    a('v_cmp_eq_u32 s[62:63], 3, v11')
    a('v_lshrrev_b32 v11, 2, v3')
    a('v_lshl_add_u32 v11, v11, 4, v3')
    a('v_lshlrev_b32 v11, 2, v11')
    a('v_lshlrev_b32 v24, 2, v3')
    a('v_add_u32 v24, 192, v24')
    a('v_lshlrev_b32 v25, 4, v4')
    a('v_add_u32 v25, %d, v25' % LDS_CS)
    a('v_add_u32 v26, %d, v5' % LDS_CS)
    a('s_lshl_b32 s56, s27, 13')
    a('v_add_u32 v14, s56, v10')
    a('s_xor_b32 s57, s28, 1')
    a('s_mul_i32 s57, s57, %d' % (63 * 1024))
    a('s_add_u32 s57, s57, s56')
    a('v_add_u32 v15, s57, v5')
    a('s_lshl_b32 s56, s10, 4')
    a('s_add_u32 s56, s56, s24')
    a('s_lshl_b32 s56, s56, 7')
    a('s_add_u32 s56, s56, 0x%x' % (F_XC - 2048))
    a('s_waitcnt vmcnt(0)')
    for r in (0, 2):
        a('v_pk_add_f32 %s, %s, %s' % (p2(224 + r), p2(224 + r), p2(228 + r)))
    for r in (0, 2):
        a('v_pk_add_f32 %s, %s, %s' % (p2(224 + r), p2(224 + r), p2(232 + r)))
    a('s_cmp_lg_u32 s26, 1')
    a('s_cbranch_scc1 q_nocs')
    a('s_mov_b64 exec, 0xfffffff')
    a('ds_write_b128 v26, v[224:227]')
    a('s_mov_b64 exec, -1')
    a.label('q_nocs')
    mstamp(a)
    poll(a, ['s56'], 16, 's_cmp_eq_u32 s10, 0')
    a('s_waitcnt lgkmcnt(0)')
    a('s_barrier')
    mstamp(a)
    vm = VM(a)
    for t in range(9):
        if t and t % 4 == 0:
            a('s_add_u32 s30, s30, 4096')
            a('s_add_u32 s69, s69, 4096')
        ws_ld(a, XF(0, t), 4, 'v5', 's30', (t & 3) * 1024)
        vm.issue()
        ws_ld(a, XF(1, t), 4, 'v5', 's69', (t & 3) * 1024)
        vm.issue(t)
        if t == 0:
            for u in range(7):
                a('ds_read_b128 %s, v10 offset:%d' % (vr(WB0 + 4 * u, 4), u * 1024))
    for t in range(9):
        a('s_waitcnt vmcnt(%d) lgkmcnt(0)' % vm.cnt(t))
        if t == 7:
            a('s_barrier')
        if t < 8:
            fill = [(lambda u=u: a('ds_read_b128 %s, v10 offset:%d' % (vr(WB0 + 28 * ((t + 1) & 1) + 4 * u, 4), ((t + 1) * 7 + u) * 1024))) for u in range(7)]
            seq = [(a_, u, t) for u in [7, 0, 1, 2, 3, 4, 5, 6] for a_ in (0, 1)]
            if t == 7:
                seq = [(1, u, 7) for u in [7, 6, 0, 1, 2, 3, 4, 5]]
        else:
            wr = [7, 6, 0, 1, 2, 3, 4, 5]
            seq = [(1, u, 8) for u in wr] + [(0, u, 7) for u in wr] + [(0, u, 8) for u in wr]
            fill = [None] * 8
            for u in wr:
                fill += [(lambda u=u: a('ds_write_b128 v14, %s offset:%d' % (vr(ACC(1, u), 4), u * 1024))), None]
        for k, (a_, u, tt) in enumerate(seq):
            A_ = vr(XF(a_, tt), 4) if u == 7 else vr(WB0 + 28 * (tt & 1) + 4 * u, 4)
            c = '0' if tt == 0 else vr(ACC(a_, u), 4)
            a('v_mfma_f32_16x16x32_bf16 %s, %s, %s, %s' % (vr(ACC(a_, u), 4), A_, vr(XF(a_, tt), 4), c))
            if k < len(fill) and fill[k] is not None:
                fill[k]()
    mstamp(a)
    CS0 = 48
    a('s_waitcnt lgkmcnt(0)')
    a('s_barrier')
    for u in [7, 6, 0, 1, 2, 3, 4, 5]:
        a('ds_read_b128 %s, v15 offset:%d' % (vr(ACC(1, u), 4), u * 1024))
    R = lambda u, r: ACC(0, u) + r
    a('s_waitcnt lgkmcnt(6)')
    for r in (0, 2):
        a('v_pk_add_f32 %s, %s, %s' % (p2(R(7, r)), p2(R(7, r)), p2(ACC(1, 7) + r)))
        a('v_pk_add_f32 %s, %s, %s' % (p2(R(6, r)), p2(R(6, r)), p2(ACC(1, 6) + r)))
    a('v_cndmask_b32 v16, %s, %s, s[58:59]' % (vr(R(7, 0)), vr(R(7, 1))))
    a('v_cndmask_b32 v16, v16, %s, s[60:61]' % vr(R(7, 2)))
    a('v_cndmask_b32 v16, v16, %s, s[62:63]' % vr(R(7, 3)))
    a('ds_bpermute_b32 v18, v24, %s' % vr(R(6, 0)))
    a('ds_bpermute_b32 v17, v11, v16')
    for u in range(7):
        a('ds_read_b128 %s, v25 offset:%d' % (vr(CS0 + 4 * u, 4), u * 64))
    a('s_waitcnt lgkmcnt(9)')
    for u in range(6):
        for r in (0, 2):
            a('v_pk_add_f32 %s, %s, %s' % (p2(R(u, r)), p2(R(u, r)), p2(ACC(1, u) + r)))
    a('s_mov_b32 s56, 0x%x' % f32bits(1.0 / 576))
    a('s_waitcnt lgkmcnt(7)')
    a('v_mul_f32 v18, s56, v18')
    a('v_mul_f32 v17, s56, v17')
    a('v_fma_f32 v17, -v18, v18, v17')
    a('v_max_f32 v17, 0, v17')
    bf16r(a, 18, 19)
    bf16r(a, 17, 19)
    a('v_add_f32 v17, 0x%x, v17' % f32bits(1e-5))
    bf16r(a, 17, 19)
    a('v_sqrt_f32 v17, v17')
    a('s_nop 0')
    bf16r(a, 17, 19)
    a('v_rcp_f32 v16, v17')
    a('s_waitcnt lgkmcnt(0)')
    mstamp(a)
    P0 = 32

    def lnfix(u):
        for r in (0, 2):
            a('v_pk_fma_f32 %s, %s, v[18:19], %s op_sel_hi:[1,0,1] neg_lo:[0,1,0] neg_hi:[0,1,0]' % (p2(R(u, r)), p2(CS0 + 4 * u + r), p2(R(u, r))))
        for r in (0, 2):
            a('v_pk_mul_f32 %s, %s, v[16:17] op_sel_hi:[1,0]' % (p2(R(u, r)), p2(R(u, r))))
        a('v_cvt_pk_bf16_f32 %s, %s, %s' % (vr(P0 + 2 * u), vr(R(u, 0)), vr(R(u, 1))))
        a('v_cvt_pk_bf16_f32 %s, %s, %s' % (vr(P0 + 2 * u + 1), vr(R(u, 2)), vr(R(u, 3))))
    a('s_cmp_eq_u32 s14, 1')
    a('s_cbranch_scc1 B_epi')
    TA, TBQ, TBK = 168, 188, 208
    DQ, DK = 76, 136
    a('v_add_u32 v20, %d, v5' % LDS_T)
    for m in range(5):
        a('ds_read_b128 %s, v20 offset:%d' % (vr(TA + 4 * m, 4), m * 1024))
    for m in range(5):
        a('ds_read_b128 %s, v20 offset:%d' % (vr(TBK + 4 * m, 4), (10 + m) * 1024))
    for m in range(5):
        a('ds_read_b128 %s, v20 offset:%d' % (vr(TBQ + 4 * m, 4), (5 + m) * 1024))
    for u in (2, 3, 6):
        lnfix(u)
    a('v_mov_b32 %s, 0' % vr(P0 + 14))
    a('v_mov_b32 %s, 0' % vr(P0 + 15))
    a('v_and_b32 v20, 127, v6')
    a('v_mul_u32_u24 v20, %d, v20' % PK_STRIDE)
    a('v_add_u32 v20, %d, v20' % LDS_PK)
    a('v_lshl_add_u32 v21, v4, 3, v20')
    a('s_waitcnt lgkmcnt(5)')
    for m in range(5):
        a('v_mfma_f32_16x16x32_bf16 %s, %s, %s, 0' % (vr(DK + 4 * m, 4), vr(TA + 4 * m, 4), vr(P0 + 4, 4)))
    for m in range(5):
        a('v_mfma_f32_16x16x32_bf16 %s, %s, %s, %s' % (vr(DK + 4 * m, 4), vr(TBK + 4 * m, 4), vr(P0 + 12, 4), vr(DK + 4 * m, 4)))
    lnfix(4)
    lnfix(5)
    a('ds_write_b64 v21, %s offset:128' % vr(P0 + 8, 2))
    a('ds_write_b64 v21, %s offset:160' % vr(P0 + 10, 2))
    a('v_mov_b32 v12, %s' % vr(P0 + 12))
    a('v_mov_b32 v13, 0x3f80')
    a('v_mov_b32 v14, %s' % vr(P0 + 13))
    a('v_mov_b32 v15, 0x3f80')
    a('s_mov_b32 exec_lo, 0')
    a('s_mov_b32 exec_hi, 0xffff')
    a('ds_write_b128 v20, v[12:15] offset:208')
    a('s_mov_b64 exec, -1')
    a('s_mov_b32 s56, 0x%x' % f32bits(LOG2E))
    softmax18(a, DK, 56, 12)
    a('v_lshl_add_u32 v21, v4, 5, v20')
    a('v_lshl_add_u32 v24, v4, 2, v20')
    a('ds_write_b128 v21, %s' % vr(DK, 4))
    a('ds_write_b128 v21, %s offset:16' % vr(DK + 4, 4))
    a('ds_write_b32 v24, %s offset:192' % vr(DK + 8))
    a('s_lshr_b32 s64, s10, 1')
    a('s_mul_i32 s64, s64, %d' % KV_SZ)
    a('s_add_u32 s64, s64, 0x%x' % KV1)
    a('s_mul_i32 s65, s25, %d' % (2 * KV_HEAD))
    a('s_add_u32 s64, s64, s65')
    a('s_waitcnt lgkmcnt(0)')
    a('s_barrier')
    mstamp(a)
    a('s_cmp_ge_u32 s26, 6')
    a('s_cbranch_scc1 A_q')
    a('s_cmp_ge_u32 s26, 3')
    a('s_cselect_b32 s57, 1, 0')
    a('s_mul_i32 s58, s57, 3')
    a('s_sub_u32 s58, s26, s58')
    a('s_lshl_b32 s59, s57, 6')
    a('s_lshl_b32 s60, s58, 5')
    a('s_add_u32 s59, s59, s60')
    a('s_lshl_b32 s60, s57, 3')
    a('s_add_u32 s61, s60, 192')
    a('s_cmp_eq_u32 s58, 2')
    a('s_cselect_b32 s59, s61, s59')
    a('s_add_u32 s60, s60, 208')
    a('s_lshl_b32 s61, s57, 5')
    a('s_add_u32 s61, s61, 128')
    a('v_lshrrev_b32 v24, 2, v3')
    a('v_lshl_add_u32 v24, v4, 2, v24')
    a('v_mul_u32_u24 v24, %d, v24' % PK_STRIDE)
    a('v_and_b32 v25, 3, v3')
    a('v_lshl_add_u32 v24, v25, 3, v24')
    a('v_add_u32 v24, %d, v24' % LDS_PK)
    a('v_add_u32 v25, s59, v24')
    a('v_add_u32 v26, s61, v24')
    a('v_add_u32 v27, s60, v24')
    FB, FA, FT = 112, 136, 152
    for ks in range(4):
        for hf in range(2):
            off = (32 * ks + 16 * hf) * PK_STRIDE
            a('ds_read_b64_tr_b16 %s, v25 offset:%d' % (vr(FB + 4 * ks + 2 * hf, 2), off))
            a('ds_read_b64_tr_b16 %s, v26 offset:%d' % (vr(FA + 4 * ks + 2 * hf, 2), off))
            a('ds_read_b64_tr_b16 %s, v27 offset:%d' % (vr(FT + 4 * ks + 2 * hf, 2), off))
    a('s_mul_i32 s59, s57, %d' % KV_HEAD)
    a('s_mul_i32 s60, s58, 1216')
    a('s_add_u32 s59, s59, s60')
    a('s_add_u32 s59, s59, s64')
    a('v_lshlrev_b32 v28, 2, v1')
    DM, DT = 128, 132
    at = lambda r, off: a('buffer_atomic_add_f32 %s, v28, s[%d:%d], s59 offen offset:%d' % (vr(r), SWS, SWS + 3, off))
    a('s_cmp_eq_u32 s58, 2')
    a('s_cbranch_scc1 A_kvt')
    for ks in range(4):
        a('s_waitcnt lgkmcnt(%d)' % min(15, 6 * (3 - ks)))
        a('v_mfma_f32_16x16x32_bf16 %s, %s, %s, %s' % (vr(DM, 4), vr(FA + 4 * ks, 4), vr(FB + 4 * ks, 4), '0' if ks == 0 else vr(DM, 4)))
        a('v_mfma_f32_16x16x32_bf16 %s, %s, %s, %s' % (vr(DT, 4), vr(FT + 4 * ks, 4), vr(FB + 4 * ks, 4), '0' if ks == 0 else vr(DT, 4)))
    a('s_nop 7')
    for r in range(4):
        at(DM + r, r * 256)
    a('s_mov_b64 exec, 0xffff')
    for r in range(3):
        at(DT + r, 1024 + r * 64)
    a('s_mov_b64 exec, -1')
    a('s_branch A_q')
    a.label('A_kvt')
    for ks in range(4):
        a('s_waitcnt lgkmcnt(%d)' % min(15, 6 * (3 - ks)))
        a('v_mfma_f32_16x16x32_bf16 %s, %s, %s, %s' % (vr(DM, 4), vr(FB + 4 * ks, 4), vr(FA + 4 * ks, 4), '0' if ks == 0 else vr(DM, 4)))
        a('v_mfma_f32_16x16x32_bf16 %s, %s, %s, %s' % (vr(DT, 4), vr(FB + 4 * ks, 4), vr(FT + 4 * ks, 4), '0' if ks == 0 else vr(DT, 4)))
    a('s_mov_b64 exec, 0xffff')
    a('s_nop 7')
    for r in range(4):
        at(DM + r, r * 128)
    a('s_mov_b64 exec, 7')
    for r in range(4):
        at(DT + r, r * 128 + 64)
    a('s_mov_b64 exec, -1')
    a.label('A_q')
    lnfix(0)
    lnfix(1)
    a('s_nop 1')
    for m in range(5):
        a('v_mfma_f32_16x16x32_bf16 %s, %s, %s, 0' % (vr(DQ + 4 * m, 4), vr(TA + 4 * m, 4), vr(P0 + 0, 4)))
    for m in range(5):
        a('v_mfma_f32_16x16x32_bf16 %s, %s, %s, %s' % (vr(DQ + 4 * m, 4), vr(TBQ + 4 * m, 4), vr(P0 + 12, 4), vr(DQ + 4 * m, 4)))
    a('s_mul_i32 s57, s27, 4608')
    a('s_add_u32 s57, s57, %d' % L_PHI)
    a('v_lshrrev_b32 v24, 1, v4')
    a('v_mul_u32_u24 v24, 2304, v24')
    a('v_add_u32 v24, s57, v24')
    a('v_and_b32 v25, 1, v4')
    a('v_and_b32 v26, 31, v6')
    a('v_lshl_add_u32 v22, v25, 10, v24')
    a('v_lshl_add_u32 v22, v26, 4, v22')
    a('v_lshl_add_u32 v23, v26, 3, v24')
    a('v_lshl_add_u32 v23, v25, 2, v23')
    softmax18(a, DQ, 56, 12)
    a('ds_write_b128 v22, %s' % vr(DQ, 4))
    a('ds_write_b128 v22, %s offset:512' % vr(DQ + 4, 4))
    a('ds_write_b32 v23, %s offset:2048' % vr(DQ + 8))
    a('s_lshr_b32 s56, s10, 1')
    a('s_lshl_b32 s56, s56, 4')
    a('s_add_u32 s56, s56, s25')
    a('s_lshl_b32 s56, s56, 7')
    a('s_add_u32 s56, s56, 0x%x' % F_KVC)
    mstamp(a)
    a('s_waitcnt vmcnt(0) lgkmcnt(0)')
    a('s_barrier')
    mstamp(a)
    arrive(a, 's56')
    PH, ST, OC = 32, 48, 72
    a('s_lshl_b32 s57, s27, 1')
    a('s_add_u32 s57, s57, s28')
    a('s_mul_i32 s57, s57, 2304')
    a('s_add_u32 s57, s57, %d' % L_PHI)
    a('v_add_u32 v20, s57, v5')
    a('v_and_b32 v3, 31, v1')
    a('v_lshlrev_b32 v21, 3, v3')
    a('v_add_u32 v21, s57, v21')
    for r in range(8, 12):
        a('v_mov_b32 v%d, 0' % (PH + r))
    a('ds_read_b128 %s, v20' % vr(PH, 4))
    a('ds_read_b128 %s, v20 offset:1024' % vr(PH + 4, 4))
    a('s_mov_b32 exec_hi, 0')
    a('ds_read_b64 %s, v21 offset:2048' % vr(PH + 8, 2))
    a('s_mov_b32 exec_hi, -1')
    a('s_mul_i32 s58, s26, 3072')
    a('s_add_u32 s58, s58, %d' % L_KV)
    a('v_min_u32 v8, 18, v3')
    a('v_and_b32 v9, 3, v8')
    a('v_lshlrev_b32 v9, 8, v9')
    a('v_lshrrev_b32 v4, 2, v8')
    a('v_lshl_add_u32 v9, v4, 6, v9')
    a('v_lshlrev_b32 v4, 6, v8')
    a('v_cmp_gt_u32 vcc, 16, v8')
    a('v_lshlrev_b32 v8, 2, v8')
    a('v_add_u32 v8, s58, v8')
    a('v_cndmask_b32 v9, v4, v9, vcc')
    a('v_lshrrev_b32 v4, 5, v1')
    a('v_lshl_add_u32 v9, v4, 5, v9')
    a('v_add_u32 v9, s58, v9')
    a('s_lshl_b32 s59, s24, 2')
    a('s_add_u32 s59, s59, s27')
    a('s_lshl_b32 s60, s25, 1')
    a('s_add_u32 s60, s60, s28')
    oimg_addr(a, 59, 60, 66, 67, 61, 62)
    a('s_mul_i32 s57, s28, %d' % KV_HEAD)
    a('s_add_u32 s57, s57, s64')
    a('s_mov_b32 m0, s58')
    poll(a, ['s56'], 16)
    a('s_barrier')
    mstamp(a)
    for p in range(3):
        ws_dma(a, 's57', p * 1024, 'sc1')
    a('s_waitcnt vmcnt(0)')
    a('ds_read_b128 %s, v9' % vr(ST, 4))
    a('ds_read_b128 %s, v9 offset:16' % vr(ST + 4, 4))
    a('ds_read_b128 %s, v9 offset:1216' % vr(ST + 8, 4))
    a('ds_read_b128 %s, v9 offset:1232' % vr(ST + 12, 4))
    for ft in range(4):
        a('ds_read_b32 %s, v8 offset:%d' % (vr(ST + 16 + ft), 2432 + ft * 128))
    a('s_waitcnt lgkmcnt(0)')
    for n in range(10):
        a('v_cvt_pk_bf16_f32 %s, %s, %s' % (vr(ST + n), vr(ST + 2 * n), vr(ST + 2 * n + 1)))
    a('v_mov_b32 %s, 0' % vr(ST + 10))
    a('v_mov_b32 %s, 0' % vr(ST + 11))
    a('s_nop 1')
    for q_ in range(3):
        a('v_mfma_f32_32x32x16_bf16 %s, %s, %s, %s' % (vr(OC, 16), vr(ST + 4 * q_, 4), vr(PH + 4 * q_, 4), '0' if q_ == 0 else vr(OC, 16)))
    a('s_nop 6')
    o_store(a, OC, 66, 67, None, 1e-6)
    a('s_branch O_pub')
    a.label('B_epi')
    for u in range(7):
        lnfix(u)
    a('s_lshr_b32 s64, s10, 1')
    a('s_lshl_b32 s64, s64, 23')
    a('s_add_u32 s64, s64, 0x%x' % REC)
    a('s_lshl_b32 s65, s25, 19')
    a('s_add_u32 s64, s64, s65')
    a('v_lshlrev_b32 v20, 4, v6')
    a('v_and_b32 v21, 1, v4')
    a('v_lshl_add_u32 v22, v21, 18, v20')
    a('v_lshrrev_b32 v23, 1, v4')
    a('v_lshl_add_u32 v22, v23, 15, v22')
    a('v_and_b32 v24, 127, v6')
    a('v_mul_u32_u24 v25, %d, v21' % IM_HEAD)
    a('v_lshl_add_u32 v25, v24, 4, v25')
    a('v_lshl_add_u32 v26, v23, 11, v25')
    a('v_mul_u32_u24 v27, %d, v23' % IM_P)
    a('v_add_u32 v27, v27, v25')
    a('s_add_u32 s56, s64, %d' % R_K0)
    a('s_add_u32 s57, s64, %d' % R_V0)
    for typ in range(3):
        b0 = P0 + 4 * typ
        a('v_permlane16_swap_b32 %s, %s' % (vr(b0), vr(b0 + 2)))
        a('v_permlane16_swap_b32 %s, %s' % (vr(b0 + 1), vr(b0 + 3)))
    ws_st(a, P0 + 4, 4, 'v22', 's56')
    ws_st(a, P0 + 8, 4, 'v22', 's57')
    a('v_cmp_eq_u32 vcc, 2, v4')
    a('v_mov_b32 v28, 0x3f80')
    a('v_mov_b32 v12, %s' % vr(P0 + 12))
    a('v_cndmask_b32 v13, 0, v28, vcc')
    a('v_mov_b32 v14, %s' % vr(P0 + 13))
    a('v_mov_b32 v15, v13')
    a('v_lshlrev_b32 v28, 3, v6')
    a('v_add_u32 v28, %d, v28' % R_KT)
    a('v_add_u32 v20, %d, v20' % R_VT)
    a('v_cndmask_b32 v28, v28, v20, vcc')
    a('v_lshlrev_b32 v20, 3, v24')
    a('v_add_u32 v21, %d, v20' % I_QT)
    a('v_add_u32 v20, %d, v20' % (I_KT + 2048))
    a('v_lshlrev_b32 v23, 4, v24')
    a('v_add_u32 v23, %d, v23' % (I_VT + 4096))
    a('v_cndmask_b32 v20, v20, v23, vcc')
    a('v_cmp_eq_u32 vcc, 0, v4')
    a('s_add_u32 s57, s64, %d' % REC_HEAD)
    a('s_mov_b32 exec_lo, 0xffff0000')
    a('s_mov_b32 exec_hi, 0xffff')
    ws_st(a, 12, 2, 'v28', 's64')
    ws_st(a, 14, 2, 'v28', 's57')
    a('s_mov_b64 exec, -1')
    a('v_cndmask_b32 v20, v20, v21, vcc')
    a('s_barrier')
    a('ds_write_b128 v26, %s offset:%d' % (vr(P0, 4), I_Q0))
    a('ds_write_b128 v27, %s offset:%d' % (vr(P0 + 4, 4), I_K0 + 4096))
    a('ds_write_b128 v27, %s offset:%d' % (vr(P0 + 8, 4), I_V0 + 4096))
    a('s_mov_b32 exec_hi, 0xffff')
    a('ds_write_b64 v20, v[12:13]')
    a('ds_write_b64 v20, v[14:15] offset:%d' % IM_HEAD)
    a('s_mov_b32 exec_hi, -1')
    a('s_lshr_b32 s56, s10, 1')
    a('s_lshl_b32 s56, s56, 4')
    a('s_add_u32 s56, s56, s25')
    a('s_lshl_b32 s56, s56, 7')
    a('s_add_u32 s56, s56, 0x%x' % F_KVF)
    a('s_lshl_b32 s57, s24, 2')
    a('s_add_u32 s57, s57, s56')
    a('s_sub_u32 s58, s57, 4')
    a('s_sub_u32 s59, s57, 8')
    a('s_max_u32 s59, s59, s56')
    mstamp(a)
    a('s_waitcnt vmcnt(0) lgkmcnt(0)')
    a('s_barrier')
    mstamp(a)
    arrive(a, 's57')
    poll(a, ['s58', 's59'], 1, 's_cmp_eq_u32 s24, 0')
    a('s_barrier')
    mstamp(a)
    a('s_lshl_b32 s56, s24, 7')
    a('s_sub_u32 s56, s56, 256')
    a('s_lshl_b32 s57, s27, 6')
    a('s_add_u32 s56, s56, s57')
    a('s_lshl_b32 s58, s28, 18')
    a('s_add_u32 s58, s58, s64')
    a('s_lshl_b32 s59, s56, 4')
    a('s_add_u32 s59, s59, s58')
    a('s_lshl_b32 s60, s56, 3')
    a('s_add_u32 s60, s60, s58')
    a('s_add_u32 s60, s60, %d' % R_KT)
    a('s_cmp_lt_i32 s56, 0')
    a('s_cselect_b32 s59, 0x40000000, s59')
    a('s_cselect_b32 s60, 0x40000000, s60')
    a('s_mul_i32 s65, s28, %d' % IM_HEAD)
    a('s_lshl_b32 s57, s27, 10')
    a('s_add_u32 s57, s57, s65')
    for (pl, lo) in ((R_K0, I_K0), (R_K1, I_K1)):
        a('s_add_u32 m0, s57, %d' % lo)
        a('s_add_u32 s61, s59, %d' % pl)
        ws_dma(a, 's61')
    a('s_lshl_b32 s61, s27, 9')
    a('s_add_u32 s61, s61, s65')
    a('s_add_u32 m0, s61, %d' % I_KT)
    a('s_mov_b32 exec_hi, 0')
    ws_dma(a, 's60')
    a('s_mov_b32 exec_hi, -1')
    for (pl, lo) in ((R_V0, I_V0), (R_V1, I_V1), (R_VT, I_VT)):
        a('s_add_u32 m0, s57, %d' % lo)
        a('s_add_u32 s61, s59, %d' % pl)
        ws_dma(a, 's61')
    Q1, Q2 = 12, 16
    S = lambda t: 64 + 16 * t
    OA = 208
    KB = [224, 232, 240]
    MK, MB = 56, 36
    a('v_and_b32 v3, 31, v1')
    a('v_lshrrev_b32 v4, 5, v1')
    a('s_lshl_b32 s27, s27, 5')
    a('v_add_u32 v9, s27, v3')
    a('v_lshlrev_b32 v10, 4, v9')
    a('v_add_u32 v21, s65, v10')
    a('v_lshl_add_u32 v10, v4, 11, v21')
    a('v_lshlrev_b32 v20, 3, v9')
    a('v_add_u32 v20, s65, v20')
    for r in range(4):
        a('v_mov_b32 v%d, 0' % (Q2 + r))
    a('ds_read_b128 %s, v10 offset:%d' % (vr(Q1, 4), I_Q0))
    a('s_mov_b32 exec_hi, 0')
    a('ds_read_b64 %s, v20 offset:%d' % (vr(Q2, 2), I_QT))
    a('s_mov_b32 exec_hi, -1')
    a('v_mul_u32_u24 v9, %d, v4' % IM_P)
    a('v_add_u32 v21, v21, v9')
    a('v_add_u32 v20, %d, v20' % I_KT)
    for b in KB:
        for r in range(6, 8):
            a('v_mov_b32 v%d, 0' % (b + r))
    a('v_bfe_u32 v22, v1, 2, 2')
    a('v_lshl_add_u32 v22, v4, 2, v22')
    a('v_add_u32 v22, s27, v22')
    a('v_lshlrev_b32 v22, 4, v22')
    a('v_bfe_u32 v23, v1, 1, 1')
    a('v_mul_u32_u24 v23, %d, v23' % IM_P)
    a('v_and_b32 v25, 1, v1')
    a('v_lshl_add_u32 v23, v25, 3, v23')
    a('v_and_b32 v25, 16, v1')
    a('v_cmp_eq_u32 vcc, 0, v25')
    a('v_mov_b32 v25, %d' % (I_VT - I_V0))
    a('s_add_u32 s65, s65, %d' % I_V0)
    a('v_cndmask_b32 v23, v25, v23, vcc')
    a('v_add3_u32 v22, v22, v23, s65')
    a('s_lshr_b32 s27, s27, 5')
    a('s_lshl_b32 s40, s24, 2')
    a('s_add_u32 s40, s40, s27')
    a('s_lshl_b32 s41, s25, 1')
    a('s_add_u32 s41, s41, s28')
    oimg_addr(a, 40, 41, 44, 45, 42, 43)
    a('s_sub_u32 s42, 8, s40')
    a('s_max_i32 s42, s42, 0')
    a('v_lshlrev_b32 v11, 2, v4')
    a('v_sub_u32 v11, v3, v11')
    for n in range(16):
        a('v_cmp_gt_i32 s[%d:%d], %d, v11' % (MK + 2 * n, MK + 2 * n + 1, 8 * (n >> 2) + (n & 3)))
    a('v_mov_b32 v26, 0xffff')
    a('v_mov_b32 v27, 0xffff0000')
    for n in range(8):
        a('v_cndmask_b32 v%d, 0, v26, s[%d:%d]' % (MB + n, MK + 4 * n, MK + 4 * n + 1))
        a('v_cndmask_b32 v25, 0, v27, s[%d:%d]' % (MK + 4 * n + 2, MK + 4 * n + 3))
        a('v_or_b32 v%d, v%d, v25' % (MB + n, MB + n))
    a('v_mov_b32 v24, 0xf149f2ca')
    a('s_mov_b32 s46, 0x%x' % f32bits(LOG2E * 18 ** -0.5))
    a('s_waitcnt vmcnt(0) lgkmcnt(0)')
    a('s_barrier')
    mstamp(a)

    def kread(t):
        b = KB[t % 3]
        a('ds_read_b128 %s, v21 offset:%d' % (vr(b, 4), t * 512))
        a('ds_read_b64 %s, v20 offset:%d' % (vr(b + 4, 2), t * 256))

    def tfix(t):
        a('s_cmp_le_u32 s42, %d' % t)
        a('s_cbranch_scc1 attn_ok%d' % t)
        for n in range(16):
            a('v_mov_b32 %s, v24' % vr(S(t) + n))
        a.label('attn_ok%d' % t)

    def tmax(t, half):
        if t < 1:
            return
        for n in range(8 * half, 8 * half + 8, 2):
            m = 25 + ((n >> 1) & 1)
            if t == 1 and n < 4:
                a('v_max_f32 v%d, %s, %s' % (m, vr(S(t) + n), vr(S(t) + n + 1)))
            else:
                a('v_max3_f32 v%d, v%d, %s, %s' % (m, m, vr(S(t) + n), vr(S(t) + n + 1)))
    kread(0)
    kread(1)
    for t in range(9):
        if t + 2 < 9:
            kread(t + 2)
            a('s_waitcnt lgkmcnt(4)')
        elif t + 1 < 9:
            a('s_waitcnt lgkmcnt(2)')
        else:
            a('s_waitcnt lgkmcnt(0)')
        b = KB[t % 3]
        a('v_mfma_f32_32x32x16_bf16 %s, %s, %s, 0' % (vr(S(t), 16), vr(b, 4), vr(Q1, 4)))
        if t >= 3:
            tfix(t - 3)
            tmax(t - 3, 0)
        a('v_mfma_f32_32x32x16_bf16 %s, %s, %s, %s' % (vr(S(t), 16), vr(b + 4, 4), vr(Q2, 4), vr(S(t), 16)))
        if t >= 3:
            tmax(t - 3, 1)
    for t in (6, 7):
        tfix(t)
        tmax(t, 0)
        tmax(t, 1)
    VB = [224, 232, 240, 248]
    seq = [1, 2, 3, 4, 5, 6, 7, 0, 8]

    def vread(k):
        t = seq[k]
        b = VB[k % 4]
        for ks in range(2):
            for hf in range(2):
                a('ds_read_b64_tr_b16 %s, v22 offset:%d' % (vr(b + 4 * ks + 2 * hf, 2), (32 * t + 16 * ks + 8 * hf) * 16))
    vread(0)
    vread(1)
    vread(2)
    for n in range(16):
        a('v_cndmask_b32 %s, %s, %s, s[%d:%d]' % (vr(S(0) + n), vr(S(8) + n), vr(S(0) + n), MK + 2 * n, MK + 2 * n + 1))
    for n in range(0, 16, 2):
        m = 25 + ((n >> 1) & 1)
        a('v_max3_f32 v%d, v%d, %s, %s' % (m, m, vr(S(0) + n), vr(S(0) + n + 1)))
    a('v_max_f32 v25, v25, v26')
    a('v_mov_b32 v26, v25')
    a('s_nop 1')
    a('v_permlane32_swap_b32 v25, v26')
    a('s_nop 0')
    a('v_max_f32 v25, v25, v26')
    a('v_mul_f32 v26, s46, v25')
    pf = lambda t, m: a('v_pk_fma_f32 %s, %s, s[46:47], v[26:27] op_sel_hi:[1,0,0] neg_lo:[0,0,1] neg_hi:[0,0,1]' % (p2(S(t) + 2 * m), p2(S(t) + 2 * m)))
    cv = lambda t, m: a('v_cvt_pk_bf16_f32 %s, %s, %s' % (vr(S(t) + m), vr(S(t) + 2 * m), vr(S(t) + 2 * m + 1)))
    for m in range(8):
        pf(seq[0], m)

    def pv(k, half):
        t = seq[k]
        b = VB[k % 4]
        c = '0' if (k == 0 and half == 0) else vr(OA, 16)
        a('v_mfma_f32_32x32x16_bf16 %s, %s, %s, %s' % (vr(OA, 16), vr(b + 4 * half, 4), vr(S(t) + 4 * half, 4), c))

    def split(n):
        a('v_bfi_b32 %s, v%d, 0, %s' % (vr(S(8) + n), MB + n, vr(S(0) + n)))
        a('v_and_b32 %s, v%d, %s' % (vr(S(0) + n), MB + n, vr(S(0) + n)))
    for k in range(8):
        t = seq[k]
        for m in range(8):
            a('v_exp_f32 %s, %s' % (vr(S(t) + 2 * m), vr(S(t) + 2 * m)))
            if k < 7:
                pf(seq[k + 1], m)
            elif m >= 2:
                split(m - 2)
            if m == 1 and k >= 1:
                pv(k - 1, 1)
                if k + 2 < 9:
                    vread(k + 2)
            if m == 6:
                a('s_waitcnt lgkmcnt(%d)' % (4 * min(8 - k, 2)))
                pv(k, 0)
            a('v_exp_f32 %s, %s' % (vr(S(t) + 2 * m + 1), vr(S(t) + 2 * m + 1)))
            if m >= 1:
                cv(t, m - 1)
        a('s_nop 0')
        cv(t, 7)
    split(6)
    split(7)
    a('s_waitcnt lgkmcnt(0)')
    pv(8, 0)
    pv(7, 1)
    pv(8, 1)
    a('s_mov_b32 s66, s44')
    a('s_mov_b32 s67, s45')
    a('s_nop 4')
    o_store(a, OA, 66, 67, None, 0)
    a.label('O_pub')
    a('s_lshl_b32 s56, s10, 4')
    a('s_add_u32 s57, s56, s24')
    a('s_lshl_b32 s57, s57, 7')
    a('s_add_u32 s57, s57, 0x%x' % F_OC)
    a('s_lshr_b32 s58, s12, 1')
    a('s_add_u32 s58, s58, s56')
    a('s_lshl_b32 s58, s58, 7')
    a('s_add_u32 s59, s58, 0x%x' % F_XC)
    a('s_add_u32 s58, s58, 0x%x' % F_OC)
    mstamp(a)
    a('s_waitcnt vmcnt(0)')
    a('s_barrier')
    mstamp(a)
    arrive(a, 's57')
    a('s_mul_i32 s31, s26, 12288')
    a('s_mov_b32 m0, s31')
    a('s_mul_i32 s56, s13, 92160')
    a('s_add_u32 s31, s31, s56')
    a('s_mul_i32 s56, s14, 0x%x' % (WOB - WOA))
    a('s_add_u32 s31, s31, s56')
    a('s_add_u32 s31, s31, 0x%x' % WOA)
    for p in range(12):
        if p and p % 4 == 0:
            a('s_add_u32 m0, m0, 4096')
            a('s_add_u32 s31, s31, 4096')
        ws_dma(a, 's31', (p & 3) * 1024)
    a('v_and_b32 v3, 15, v1')
    a('v_lshrrev_b32 v4, 4, v1')
    a('s_lshl_b32 s29, s12, 2')
    a('s_add_u32 s29, s29, s27')
    a('v_and_b32 v6, 1, v4')
    a('v_lshrrev_b32 v7, 1, v4')
    a('v_lshl_add_u32 v6, v6, 1, v7')
    a('v_lshlrev_b32 v6, 8, v6')
    a('v_lshl_add_u32 v6, v3, 4, v6')
    a('v_lshlrev_b32 v7, 4, v3')
    a('v_lshl_add_u32 v7, v4, 3, v7')
    a('s_mul_i32 s60, s29, 18432')
    a('s_mul_i32 s61, s13, 2304')
    a('s_add_u32 s60, s60, s61')
    a('s_mul_i32 s61, s10, 0x%x' % XS)
    a('s_add_u32 s60, s60, s61')
    a('s_add_u32 s60, s60, 0x%x' % X0)
    a('s_lshl_b32 s61, s28, 10')
    a('s_add_u32 s61, s61, s60')
    ws_ld(a, 52, 4, 'v6', 's61')
    ws_ld(a, 56, 2, 'v7', 's60', 2048)
    a('s_lshr_b32 s30, s29, 1')
    a('s_mul_i32 s30, s30, 36864')
    a('s_and_b32 s31, s29, 1')
    a('s_lshl_b32 s31, s31, 10')
    a('s_add_u32 s30, s30, s31')
    a('s_mul_i32 s31, s28, 18432')
    a('s_add_u32 s30, s30, s31')
    a('s_mul_i32 s31, s10, 0x%x' % XS)
    a('s_add_u32 s30, s30, s31')
    a('s_add_u32 s30, s30, 0x%x' % OIMG)
    a('s_mul_i32 s31, s28, %d' % (9 * 5120))
    a('v_add_u32 v10, s31, v5')
    a('s_lshl_b32 s31, s28, 11')
    a('v_add_u32 v8, s31, v10')
    a('s_xor_b32 s31, s31, 2048')
    a('v_add_u32 v9, s31, v10')
    a('s_mul_i32 s31, s26, 3072')
    a('s_add_u32 s31, s31, 98304')
    a('v_add_u32 v14, s31, v5')
    a('s_xor_b32 s31, s26, 4')
    a('s_mul_i32 s31, s31, 3072')
    a('s_add_u32 s31, s31, 98304')
    a('v_add_u32 v15, s31, v5')
    a('s_waitcnt vmcnt(0)')
    mstamp(a)
    poll(a, ['s58'], 16)
    a('s_barrier')
    mstamp(a)
    OF, WV, CA = 64, 100, 140
    vm = VM(a)
    for t in range(9):
        if t and t % 2 == 0:
            a('s_add_u32 s30, s30, 4096')
        ws_ld(a, OF + 4 * t, 4, 'v5', 's30', (t & 1) * 2048)
        vm.issue(t)

    def wrd(t, q):
        base, off = [('v8', 0), ('v8', 1024), ('v9', 0), ('v9', 1024), ('v10', 4096)][q]
        a('ds_read_b128 %s, %s offset:%d' % (vr(WV + 20 * (t & 1) + 4 * q, 4), base, t * 5120 + off))
    for q in range(5):
        wrd(0, q)
    for t in range(9):
        a('s_waitcnt vmcnt(%d) lgkmcnt(0)' % vm.cnt(t))
        for k, q in enumerate([2, 3, 4, 0, 1]):
            a('v_mfma_f32_16x16x32_bf16 %s, %s, %s, %s' % (vr(CA + 4 * q, 4), vr(WV + 20 * (t & 1) + 4 * q, 4), vr(OF + 4 * t, 4), '0' if t == 0 else vr(CA + 4 * q, 4)))
            if t < 8:
                wrd(t + 1, k)
    for i in range(4):
        a('v_lshlrev_b32 v%d, 16, v%d' % (16 + 2 * i, 52 + i))
        a('v_and_b32 v%d, 0xffff0000, v%d' % (17 + 2 * i, 52 + i))
    for q in (2, 3, 4):
        a('ds_write_b128 v14, %s offset:%d' % (vr(CA + 4 * q, 4), (q - 2) * 1024))
    for i in range(2):
        a('v_lshlrev_b32 v%d, 16, v%d' % (40 + 2 * i, 56 + i))
        a('v_and_b32 v%d, 0xffff0000, v%d' % (41 + 2 * i, 56 + i))
    a('s_add_u32 s60, s60, 0x%x' % XS)
    a('s_add_u32 s61, s61, 0x%x' % XS)
    a('s_waitcnt lgkmcnt(0)')
    a('s_barrier')
    for q in range(3):
        a('ds_read_b128 %s, v15 offset:%d' % (vr(64 + 4 * q, 4), q * 1024))
    a('s_waitcnt lgkmcnt(1)')
    for r in range(0, 8, 2):
        a('v_pk_add_f32 %s, %s, %s' % (p2(CA + r), p2(CA + r), p2(64 + r)))
    for i in range(4):
        a('v_cvt_pk_bf16_f32 v%d, v%d, v%d' % (24 + i, CA + 2 * i, CA + 2 * i + 1))
    a('s_waitcnt lgkmcnt(0)')
    a('v_pk_add_f32 %s, %s, %s' % (p2(CA + 16), p2(CA + 16), p2(72)))
    a('v_permlane16_swap_b32 v24, v26')
    a('v_permlane16_swap_b32 v25, v27')
    a('v_pk_add_f32 %s, %s, %s' % (p2(CA + 18), p2(CA + 18), p2(74)))
    for i in range(4):
        a('v_lshlrev_b32 v%d, 16, v%d' % (32 + 2 * i, 24 + i))
        a('v_and_b32 v%d, 0xffff0000, v%d' % (33 + 2 * i, 24 + i))
    a('v_cvt_pk_bf16_f32 v44, v%d, v%d' % (CA + 16, CA + 17))
    a('v_cvt_pk_bf16_f32 v45, v%d, v%d' % (CA + 18, CA + 19))
    for i in range(0, 8, 2):
        a('v_pk_add_f32 %s, %s, %s' % (p2(16 + i), p2(16 + i), p2(32 + i)))
    for i in range(2):
        a('v_lshlrev_b32 v%d, 16, v%d' % (46 + 2 * i, 44 + i))
        a('v_and_b32 v%d, 0xffff0000, v%d' % (47 + 2 * i, 44 + i))
    for i in range(4):
        a('v_cvt_pk_bf16_f32 v%d, v%d, v%d' % (24 + i, 16 + 2 * i, 17 + 2 * i))
    a('v_pk_add_f32 v[40:41], v[40:41], v[46:47]')
    a('v_pk_add_f32 v[42:43], v[42:43], v[48:49]')
    a('v_cvt_pk_bf16_f32 v28, v40, v41')
    a('v_cvt_pk_bf16_f32 v29, v42, v43')
    a('s_cmp_eq_u32 s28, 0')
    a('s_cselect_b32 s62, -1, 0')
    a('s_cmp_eq_u32 s10, 3')
    a('s_cbranch_scc1 W_final')
    ws_st(a, 24, 4, 'v6', 's61')
    a('s_cmp_eq_u32 s28, 0')
    a('s_cbranch_scc0 W_pub')
    a('s_mov_b32 exec_hi, 0')
    ws_st(a, 28, 2, 'v7', 's60', 2048)
    a('s_mov_b32 exec_hi, -1')
    a.label('W_pub')
    mstamp(a)
    a('s_waitcnt vmcnt(0)')
    a('s_barrier')
    arrive(a, 's59')
    a('s_add_u32 s10, s10, 1')
    a('s_branch L_top')
    a.label('W_final')
    a('v_mul_u32_u24 v8, 1152, v3')
    a('v_lshrrev_b32 v9, 8, v6')
    a('v_lshl_add_u32 v9, v9, 4, v8')
    a('v_lshl_add_u32 v8, v4, 3, v8')
    a('s_mul_i32 s60, s29, 18432')
    a('s_mul_i32 s61, s13, 144')
    a('s_add_u32 s60, s60, s61')
    a('s_lshl_b32 s61, s28, 6')
    a('s_add_u32 s61, s61, s60')
    a('buffer_store_dwordx4 v[24:27], v9, s[%d:%d], s61 offen' % (SOUT, SOUT + 3))
    a('s_cmp_eq_u32 s28, 0')
    a('s_cbranch_scc0 W_done')
    a('s_mov_b32 exec_hi, 0')
    a('buffer_store_dwordx2 v[28:29], v8, s[%d:%d], s60 offen offset:128' % (SOUT, SOUT + 3))
    a('s_mov_b32 exec_hi, -1')
    a.label('W_done')
    if STAMP:
        mstamp(a)
        a('s_waitcnt vmcnt(0)')
        mstamp(a)
        a('s_lshl_b32 s56, s2, 3')
        a('s_add_u32 s56, s56, s26')
        a('s_lshl_b32 s56, s56, 8')
        a('s_add_u32 s56, s56, 0x%x' % STAMP_OFF)
        a('v_lshlrev_b32 v2, 2, v1')
        ws_st(a, 31, 1, 'v2', 's56', 0, '')
    a.label('mega_end')
    a('s_endpgm')
    return [('mega_kernel', 256, 96)]


def build():
    a = Asm()
    ks = []
    global STAMP
    st = STAMP
    STAMP = False
    ks += gen_prep(a)
    STAMP = st
    ks += gen_mega(a)
    launches = [
        ('prep_kernel', NPREP, 192, 28416),
        ('mega_kernel', 256, 512, MEGA_LDS),
    ]
    out = []
    for (k, g, b, l) in launches:
        out.append('; @launch kernel=%s grid=(%d,1,1) block=(%d,1,1) lds=%d' % (k, g, b, l))
    out.append('.amdgcn_target "amdgcn-amd-amdhsa--gfx950"')
    out.append('.text')
    out += a.L
    out.append('code_end:')
    out.append('    s_endpgm')
    out.append('.section .rodata,"a"')
    for (k, v, s) in ks:
        out.append('.p2align 6')
        out.append(kdesc(k, v, s))
    return '\n'.join(out) + '\n'


if __name__ == '__main__':
    if len(sys.argv) > 2 and sys.argv[2] == 'stamp':
        STAMP = True
    dst = sys.argv[1] if len(sys.argv) > 1 else 'cdna_kernels/%s.s' % NAME
    open(dst, 'w').write(build())
    print('wrote', dst)
```

```python
import sys, struct, os

NAME = 'interleave_layers__linear_kernel_hedgehog__sliding_block__prompt'

WQA = 0x000000
WQB = 0x200000
WQ_SZ = 16 * 18 * 7 * 1024
WOA = 0x400000
WOB = 0x500000
WO_SZ = 8 * 18 * 5 * 1024
CSA = 0x600000
CSB = 0x608000
CS_SZ = 16 * 3 * 448
TPHI = 0x610000
TPHI_SZ = 16 * 15 * 1024
KV1 = 0x660000
KV3 = 0x660000 + 32 * 2944
KV_HEAD = 2944
KV_SZ = 32 * KV_HEAD
X1 = 0x700000
X2 = 0x940000
X3 = 0xB80000
X_SZ = 2048 * 1152
PHIQ = 0xE00000
PHIQ_SZ = 64 * 32 * 2304
REC = 0x1300000
REC_HEAD = 262144
REC_SZ = 32 * REC_HEAD
R_Q0, R_K0, R_K1, R_V0, R_V1, R_VT, R_QT, R_KT = 0, 65536, 98304, 131072, 163840, 196608, 229376, 245760
X0 = 0x2400000
XS = 0x240000
FL = 0x6A0000
FL_SZ = 0x8000
WS_USED = 0x5000000
OIMG = 0x3000000
OIMG_SZ = 64 * 36864

LOG2E = 1.4426950408889634


def f32bits(x):
    return struct.unpack('<I', struct.pack('<f', x))[0]


class Asm:
    def __init__(self):
        self.L = []

    def __call__(self, s):
        self.L.append('    ' + s)

    def label(self, l):
        self.L.append(l + ':')

    def c(self, s):
        self.L.append('    ; ' + s)

    def raw(self, s):
        self.L.append(s)


class VM:
    def __init__(self, a):
        self.a = a
        self.n = 0
        self.tags = {}

    def issue(self, tag=None):
        self.n += 1
        if tag is not None:
            self.tags[tag] = self.n

    def cnt(self, tag):
        return self.n - self.tags[tag]

    def wait(self, tag):
        self.a('s_waitcnt vmcnt(%d)' % self.cnt(tag))


def vr(b, n=1):
    return 'v%d' % b if n == 1 else 'v[%d:%d]' % (b, b + n - 1)


def sr(b, n=1):
    return 's%d' % b if n == 1 else 's[%d:%d]' % (b, b + n - 1)


P_AX, P_AWQKV, P_AWPHI, P_AWO, P_BX, P_BWQKV, P_BWO, P_OUT, P_DBG, P_WS = 4, 6, 8, 10, 12, 14, 16, 18, 20, 22


def load_kernargs(a):
    a('s_load_dwordx16 s[4:19], s[0:1], 0')
    a('s_load_dwordx4 s[20:23], s[0:1], 64')


def srd(a, d, base, off, size):
    if off == 0:
        a('s_mov_b32 s%d, s%d' % (d, base))
        a('s_mov_b32 s%d, s%d' % (d + 1, base + 1))
    else:
        o = off if isinstance(off, str) else '0x%x' % off
        a('s_add_u32 s%d, s%d, %s' % (d, base, o))
        a('s_addc_u32 s%d, s%d, 0' % (d + 1, base + 1))
    a('s_mov_b32 s%d, 0x%x' % (d + 2, size))
    a('s_mov_b32 s%d, 0x00020000' % (d + 3))


def kdesc(name, vgpr, sgpr=96):
    acc = (vgpr + 3) // 4 * 4
    return '''.amdhsa_kernel %s
  .amdhsa_next_free_vgpr %d
  .amdhsa_next_free_sgpr %d
  .amdhsa_accum_offset %d
  .amdhsa_group_segment_fixed_size 0
  .amdhsa_kernarg_size 80
  .amdhsa_user_sgpr_count 2
  .amdhsa_user_sgpr_kernarg_segment_ptr 1
  .amdhsa_system_sgpr_workgroup_id_x 1
.end_amdhsa_kernel
''' % (name, vgpr, sgpr, acc)


def entry(a, name):
    a.raw('.p2align 8')
    a.raw('.globl %s' % name)
    a.raw('.type %s,@function' % name)
    a.label(name)


STAMP = False
STAMP_OFF = 0x4000000
_stamp_n = [0]
STAMP_REGS = list(range(72, 94))


def stamp(a):
    if not STAMP:
        return
    n = _stamp_n[0]
    a('s_memtime s[94:95]')
    a('s_waitcnt lgkmcnt(0)')
    a('s_mov_b32 s%d, s94' % STAMP_REGS[n])
    _stamp_n[0] += 1


def stamp_rt(a):
    if not STAMP:
        return
    n = _stamp_n[0]
    a('s_memrealtime s[94:95]')
    a('s_waitcnt lgkmcnt(0)')
    a('s_mov_b32 s%d, s94' % STAMP_REGS[n])
    _stamp_n[0] += 1


def stamp_flush(a, kid):
    if not STAMP:
        return
    a('s_getreg_b32 s%d, hwreg(HW_REG_XCC_ID)' % STAMP_REGS[_stamp_n[0]])
    n = _stamp_n[0] + 1
    _stamp_n[0] = 0
    a('s_mov_b64 exec, 1')
    a('s_add_u32 s68, s%d, 0x%x' % (P_WS, STAMP_OFF + kid * 0x100000))
    a('s_addc_u32 s69, s%d, 0' % (P_WS + 1))
    a('s_mov_b32 s70, 0x100000')
    a('s_mov_b32 s71, 0x00020000')
    a('s_lshl_b32 s94, s2, 4')
    a('s_add_u32 s94, s94, s26')
    a('s_lshl_b32 s94, s94, 7')
    a('v_mov_b32 v1, 0')
    for i in range(n):
        a('v_mov_b32 v2, s%d' % STAMP_REGS[i])
        a('buffer_store_dword v2, v1, s[68:71], s94 offen offset:%d' % (4 * i))
        a('s_nop 1')


def bf16r(a, v, tmp):
    a('v_cvt_pk_bf16_f32 %s, %s, %s' % (vr(tmp), vr(v), vr(v)))
    a('v_lshlrev_b32 %s, 16, %s' % (vr(v), vr(tmp)))


def magic(dv, maxv):
    for sh in range(4, 24):
        mul = (1 << sh) // dv + 1
        if all((x * mul) >> sh == x // dv for x in range(maxv + 1)):
            return mul, sh
    raise ValueError


def sdiv(a, dq, dr, src, dv, maxv):
    mul, sh = magic(dv, maxv)
    a('s_mul_i32 s%d, s%d, %d' % (dq, src, mul))
    a('s_lshr_b32 s%d, s%d, %d' % (dq, dq, sh))
    a('s_mul_i32 s%d, s%d, %d' % (dr, dq, dv))
    a('s_sub_u32 s%d, s%d, s%d' % (dr, src, dr))


NPREP = 460
CODEPF = int(os.environ.get('CODEPF', 1))


def gen_prep(a):
    entry(a, 'prep_kernel')
    a('s_cmp_ge_u32 s2, %d' % NPREP)
    a('s_cbranch_scc1 prep_end')
    load_kernargs(a)
    a('v_and_b32 v1, 63, v0')
    a('v_lshrrev_b32 v2, 6, v0')
    a('v_and_b32 v3, 7, v1')
    a('v_readfirstlane_b32 s24, v2')
    a('v_lshrrev_b32 v4, 3, v1')
    a('s_waitcnt lgkmcnt(0)')
    stamp(a)
    stamp_rt(a)
    if STAMP:
        a('s_mov_b32 s74, s72')
    if CODEPF:
        a('s_cmp_ge_u32 s2, 24')
        a('s_cbranch_scc1 prep_nocpf')
        a('s_getpc_b64 s[56:57]')
        a.label('prep_pc')
        a('s_lshr_b32 s58, s2, 3')
        a('s_mul_i32 s58, s58, 3')
        a('s_add_u32 s58, s58, s24')
        a('s_lshl_b32 s58, s58, 13')
        a('v_lshlrev_b32 v62, 7, v1')
        a('v_add_u32 v62, s58, v62')
        a('v_cmp_gt_u32 vcc, code_end-prep_pc-4, v62')
        a('s_and_saveexec_b64 s[58:59], vcc')
        a('s_cbranch_execz prep_cpf_skip')
        a('global_load_dword v63, v62, s[56:57]')
        a.label('prep_cpf_skip')
        a('s_mov_b64 exec, -1')
        a.label('prep_nocpf')
    a('s_cmp_ge_u32 s2, 332')
    a('s_cbranch_scc1 prep_x')
    a('s_cmp_ge_u32 s2, 308')
    a('s_cbranch_scc1 prep_zero')
    a('s_cmp_ge_u32 s2, 296')
    a('s_cbranch_scc1 prep_spec')
    a('s_cmp_ge_u32 s2, 216')
    a('s_cbranch_scc1 prep_phi')
    a('s_cmp_ge_u32 s2, 162')
    a('s_cbranch_scc1 prep_wo')
    a('s_cmp_ge_u32 s2, 81')
    a('s_cselect_b32 s32, s%d, s%d' % (P_BWQKV, P_AWQKV))
    a('s_cselect_b32 s33, s%d, s%d' % (P_BWQKV + 1, P_AWQKV + 1))
    a('s_cselect_b32 s25, 0x%x, 0' % (WQB - WQA))
    a('s_cselect_b32 s29, 0x%x, 0' % (CSB - CSA))
    a('s_cselect_b32 s26, 81, 0')
    a('s_add_u32 s29, s29, 0x%x' % CSA)
    a('s_mov_b32 s34, %d' % (576 * 3456))
    a('s_mov_b32 s35, 0x00020000')
    srd(a, 36, P_WS, 's25', WQ_SZ)
    srd(a, 52, P_WS, 's29', CS_SZ)
    a('s_sub_u32 s26, s2, s26')
    sdiv(a, 27, 28, 26, 3, 80)
    sdiv(a, 29, 30, 27, 9, 26)
    a('s_mul_i32 s31, s28, 3')
    a('s_add_u32 s31, s31, s24')
    for e in range(8):
        a('s_mov_b32 s%d, %d' % (40 + e, e * 3456))
    a('s_lshl_b32 s30, s30, 6')
    a('v_lshl_add_u32 v5, v3, 3, s30')
    a('s_lshl_b32 s48, s31, 3')
    a('v_add_u32 v6, s48, v4')
    a('v_mul_u32_u24 v7, %d, v6' % (8 * 3456))
    a('v_lshl_add_u32 v7, v5, 1, v7')
    a('s_mul_i32 s48, s29, 1152')
    a('v_add_u32 v7, s48, v7')
    for e in range(8):
        a('buffer_load_dwordx4 v[%d:%d], v7, s[32:35], s%d offen' % (16 + 4 * e, 19 + 4 * e, 40 + e))
    a('v_mov_b32 v8, 0')
    a('s_mul_i32 s62, s31, 14336')
    a('s_add_u32 s63, s62, 7168')
    a('s_lshl_b32 s48, s29, 11')
    a('s_lshl_b32 s49, s29, 6')
    a('s_add_u32 s49, s49, 5888')
    a('s_mov_b32 s50, 129024')

    def coldest(dst, rem, tgreg, t0):
        h, d, x, y = t0, t0 + 1, t0 + 2, t0 + 3
        a('v_mul_u32_u24 v%d, 3641, v%d' % (h, rem))
        a('v_lshrrev_b32 v%d, 16, v%d' % (h, h))
        a('v_mul_u32_u24 v%d, 18, v%d' % (d, h))
        a('v_sub_u32 v%d, v%d, v%d' % (d, rem, d))
        a('v_and_b32 v%d, 1, v%d' % (x, h))
        a('v_cmp_gt_u32 vcc, 16, v%d' % d)
        a('v_lshl_add_u32 v%d, v%d, 5, s49' % (y, x))
        a('v_lshl_add_u32 v%d, v%d, 10, s48' % (x, x))
        a('v_lshrrev_b32 v%d, 1, v%d' % (h, h))
        a('v_cndmask_b32 v%d, v%d, v%d, vcc' % (x, y, x))
        a('v_mul_u32_u24 v%d, s50, v%d' % (h, h))
        a('v_lshl_add_u32 v%d, v%d, 4, v%d' % (x, d, x))
        a('v_add3_u32 v%d, v%d, v%d, v%d' % (dst, x, h, tgreg))
    a('v_add_u32 v10, s30, v1')
    coldest(48, 10, 8, 11)
    a('s_mov_b32 s51, 1')
    a('s_branch prep_tr')
    a.label('prep_wo')
    a('s_cmp_ge_u32 s2, 189')
    a('s_cselect_b32 s32, s%d, s%d' % (P_BWO, P_AWO))
    a('s_cselect_b32 s33, s%d, s%d' % (P_BWO + 1, P_AWO + 1))
    a('s_cselect_b32 s25, 0x%x, 0' % (WOB - WOA))
    a('s_cselect_b32 s26, 27, 0')
    a('s_add_u32 s25, s25, 0x%x' % WOA)
    a('s_add_u32 s26, s26, 162')
    a('s_mov_b32 s34, %d' % (576 * 1152))
    a('s_mov_b32 s35, 0x00020000')
    srd(a, 36, P_WS, 's25', WO_SZ)
    srd(a, 52, P_WS, CSA, CS_SZ)
    a('s_sub_u32 s26, s2, s26')
    sdiv(a, 27, 28, 26, 3, 26)
    a('s_mul_i32 s31, s28, 3')
    a('s_add_u32 s31, s31, s24')
    a('s_lshl_b32 s48, s31, 3')
    a('v_add_u32 v6, s48, v4')
    a('s_cmp_eq_u32 s31, 8')
    a('s_cbranch_scc1 prep_b_tail')
    for e, o in enumerate([0, 1, 2, 3, 8, 9, 10, 11]):
        a('s_mov_b32 s%d, %d' % (40 + e, o * 1152))
    a('v_lshrrev_b32 v7, 1, v6')
    a('v_mul_u32_u24 v7, 18, v7')
    a('v_and_b32 v8, 1, v6')
    a('v_lshl_add_u32 v7, v8, 2, v7')
    a('s_branch prep_b_row')
    a.label('prep_b_tail')
    for e, o in enumerate([0, 1, 18, 19, 36, 37, 54, 55]):
        a('s_mov_b32 s%d, %d' % (40 + e, o * 1152))
    a('v_mul_u32_u24 v7, 72, v4')
    a('v_add_u32 v7, 16, v7')
    a.label('prep_b_row')
    a('v_mul_u32_u24 v7, 1152, v7')
    a('v_lshl_add_u32 v7, v3, 4, v7')
    a('s_lshl_b32 s30, s27, 7')
    a('v_add_u32 v7, s30, v7')
    for e in range(8):
        a('buffer_load_dwordx4 v[%d:%d], v7, s[32:35], s%d offen' % (16 + 4 * e, 19 + 4 * e, 40 + e))
    a('s_lshl_b32 s30, s27, 6')
    a('v_add_u32 v8, s30, v1')
    a('v_mul_u32_u24 v9, 911, v8')
    a('v_lshrrev_b32 v9, 16, v9')
    a('v_mul_u32_u24 v10, 72, v9')
    a('v_sub_u32 v8, v8, v10')
    a('s_mov_b32 s30, 92160')
    a('v_mul_u32_u24 v9, s30, v9')
    a('v_lshrrev_b32 v10, 4, v8')
    a('v_lshl_add_u32 v9, v10, 10, v9')
    a('v_and_b32 v8, 15, v8')
    a('v_lshl_add_u32 v48, v8, 4, v9')
    a('s_mul_i32 s62, s31, 10240')
    a('s_add_u32 s63, s62, 5120')
    a('s_mov_b32 s51, 0')
    a.label('prep_tr')
    a('s_mul_i32 s30, s24, 9216')
    a('v_mul_u32_u24 v49, 1152, v4')
    a('v_mul_u32_u24 v50, 144, v3')
    a('v_add3_u32 v49, v49, v50, s30')
    a('v_add_u32 v50, v1, v4')
    a('v_lshlrev_b32 v50, 4, v50')
    a('v_add_u32 v50, s30, v50')
    a('s_mov_b32 s30, 0x05040100')
    a('s_mov_b32 s31, 0x07060302')
    a('s_mov_b32 s26, 0x3f803f80')
    a('s_waitcnt vmcnt(0)')
    stamp(a)
    for c in range(8):
        p, o = c >> 1, c & 1
        ob = 64 + 4 * c
        for q in range(4):
            a('v_perm_b32 v%d, v%d, v%d, s%d' % (ob + q, 16 + 4 * (2 * q + 1) + p, 16 + 4 * (2 * q) + p, 30 + o))
        a('ds_write_b128 v49, v[%d:%d] offset:%d' % (ob, ob + 3, 16 * c))
    a('s_waitcnt lgkmcnt(0)')
    for kg in range(8):
        a('ds_read_b128 v[%d:%d], v50 offset:%d' % (16 + 4 * kg, 19 + 4 * kg, kg * 1152))
    for kg in range(8):
        a('s_waitcnt lgkmcnt(%d)' % (7 - kg))
        a('buffer_store_dwordx4 v[%d:%d], v48, s[36:39], s%d offen offset:%d' % (16 + 4 * kg, 19 + 4 * kg, 62 + (kg >> 2), (kg & 3) * 256))
    a('s_cmp_eq_u32 s51, 0')
    a('s_cbranch_scc1 prep_end')
    for n in range(32):
        a('v_dot2_f32_bf16 v%d, v%d, s26, %s' % (52 + (n & 3), 16 + n, '0' if n < 4 else 'v%d' % (52 + (n & 3))))
    a('v_lshlrev_b32 v10, 2, v0')
    a('s_nop 1')
    a('v_add_f32 v52, v52, v53')
    a('v_add_f32 v54, v54, v55')
    a('v_add_f32 v52, v52, v54')
    a('ds_write_b32 v10, v52 offset:27648')
    a('s_waitcnt lgkmcnt(0)')
    a('s_barrier')
    a('s_cmp_lg_u32 s24, 0')
    a('s_cbranch_scc1 prep_end')
    for i in range(3):
        a('ds_read_b32 v%d, v10 offset:%d' % (16 + i, 27648 + i * 256))
    a('s_mul_i32 s30, s29, 9')
    a('s_sub_u32 s30, s27, s30')
    a('s_lshl_b32 s30, s30, 6')
    a('s_lshl_b32 s48, s29, 9')
    a('s_lshl_b32 s49, s29, 6')
    a('s_add_u32 s49, s49, %d' % (96 * 16 - 256))
    a('s_mov_b32 s50, %d' % (3 * 448 * 4))
    a('v_add_u32 v10, s30, v1')
    a('s_mul_i32 s30, s28, %d' % (448 * 4))
    a('v_mov_b32 v8, s30')
    a('v_mul_u32_u24 v11, 3641, v10')
    a('v_lshrrev_b32 v11, 16, v11')
    a('v_mul_u32_u24 v12, 18, v11')
    a('v_sub_u32 v12, v10, v12')
    a('v_and_b32 v13, 1, v11')
    a('v_cmp_gt_u32 vcc, 16, v12')
    a('v_lshl_add_u32 v14, v13, 5, s49')
    a('v_lshl_add_u32 v13, v13, 8, s48')
    a('v_lshrrev_b32 v11, 1, v11')
    a('v_cndmask_b32 v13, v14, v13, vcc')
    a('v_mul_u32_u24 v11, s50, v11')
    a('v_lshl_add_u32 v13, v12, 4, v13')
    a('v_add3_u32 v13, v13, v11, v8')
    a('v_lshrrev_b32 v13, 2, v13')
    a('s_waitcnt lgkmcnt(0)')
    a('v_add_f32 v16, v16, v17')
    a('v_add_f32 v16, v16, v18')
    a('buffer_store_dword v16, v13, s[52:55], 0 offen')
    a('s_branch prep_end')
    a.label('prep_phi')
    srd(a, 32, P_AWPHI, 0, 32 * 324 * 2)
    srd(a, 36, P_WS, TPHI, TPHI_SZ)
    a('s_sub_u32 s26, s2, 216')
    sdiv(a, 27, 29, 26, 5, 79)
    a('s_mov_b32 s28, s24')
    a('v_and_b32 v2, 3, v1')
    a('v_bfe_u32 v3, v1, 2, 1')
    a('v_bfe_u32 v4, v1, 3, 1')
    a('v_lshrrev_b32 v5, 4, v1')
    a('v_lshlrev_b32 v6, 15, v3')
    a('v_lshl_or_b32 v6, v6, 16, v6')
    a('v_cmp_eq_u32 s[50:51], 0, v4')
    a('s_lshl_b32 s30, s29, 2')
    a('v_add_u32 v7, s30, v2')
    a('v_lshlrev_b32 v8, 2, v5')
    a('s_cmp_eq_u32 s28, 0')
    a('s_cbranch_scc1 prep_phi_d0')
    a('v_mov_b32 v8, 16')
    a.label('prep_phi_d0')
    a('s_lshl_b32 s30, s27, 1')
    a('v_add_u32 v9, s30, v4')
    a('v_mul_u32_u24 v9, 324, v9')
    a('v_mul_u32_u24 v8, 18, v8')
    a('v_add3_u32 v9, v9, v8, v7')
    a('v_lshlrev_b32 v9, 1, v9')
    a('v_mov_b32 v10, 0x7fff0000')
    a('v_cmp_gt_u32 vcc, 18, v7')
    a('s_nop 1')
    a('v_cndmask_b32 v9, v10, v9, vcc')
    a('s_cmp_eq_u32 s28, 0')
    a('s_cbranch_scc1 prep_phi_ld')
    a('s_sub_u32 s30, s28, 1')
    a('v_cmp_eq_u32 vcc, s30, v5')
    a('s_nop 1')
    a('v_cndmask_b32 v9, v10, v9, vcc')
    a.label('prep_phi_ld')
    for i in range(4):
        a('buffer_load_ushort v%d, v9, s[32:35], 0 offen offset:%d' % (16 + i, i * 36))
    a('s_waitcnt vmcnt(0)')
    a('v_lshl_or_b32 v16, v17, 16, v16')
    a('v_lshl_or_b32 v18, v19, 16, v18')
    a('v_xor_b32 v16, v16, v6')
    a('v_xor_b32 v18, v18, v6')
    a('v_cndmask_b32 v20, 0, v16, s[50:51]')
    a('s_cmp_eq_u32 s28, 0')
    a('s_cbranch_scc0 prep_phi_tb')
    a('v_cndmask_b32 v21, 0, v18, s[50:51]')
    a('v_cndmask_b32 v22, v16, 0, s[50:51]')
    a('v_cndmask_b32 v23, v18, 0, s[50:51]')
    a('s_branch prep_phi_st')
    a.label('prep_phi_tb')
    a('v_cndmask_b32 v21, v16, 0, s[50:51]')
    a('v_mov_b32 v22, 0')
    a('v_mov_b32 v23, 0')
    a.label('prep_phi_st')
    a('s_mul_i32 s30, s27, 15')
    a('s_mul_i32 s31, s28, 5')
    a('s_add_u32 s30, s30, s31')
    a('s_add_u32 s30, s30, s29')
    a('s_lshl_b32 s30, s30, 10')
    a('v_lshlrev_b32 v11, 4, v1')
    a('buffer_store_dwordx4 v[20:23], v11, s[36:39], s30 offen')
    a('s_branch prep_end')
    a.label('prep_spec')
    a('s_sub_u32 s26, s2, 296')
    a('s_cmp_ge_u32 s26, 6')
    a('s_cselect_b32 s25, 0x%x, 0' % (WQB - WQA))
    a('s_cselect_b32 s29, 0x%x, 0' % (CSB - CSA))
    a('s_cselect_b32 s27, 6, 0')
    a('s_add_u32 s29, s29, 0x%x' % CSA)
    srd(a, 36, P_WS, 's25', WQ_SZ)
    srd(a, 52, P_WS, 's29', CS_SZ)
    a('s_sub_u32 s26, s26, s27')
    a('s_mul_i32 s26, s26, 192')
    a('v_add_u32 v2, s26, v0')
    a('v_lshrrev_b32 v3, 2, v2')
    a('v_mul_u32_u24 v4, 7168, v3')
    a('v_and_b32 v5, 3, v2')
    a('v_lshl_add_u32 v4, v5, 8, v4')
    a('v_add_u32 v4, %d, v4' % (6144 + 192))
    for i in range(4):
        a('v_mov_b32 v%d, 0x3f803f80' % (8 + i))
        a('v_mov_b32 v%d, 0' % (12 + i))
    a('buffer_store_dwordx4 v[8:11], v4, s[36:39], 0 offen')
    for i in range(1, 4):
        a('buffer_store_dwordx4 v[12:15], v4, s[36:39], 0 offen offset:%d' % (16 * i))
    a('v_mul_u32_u24 v6, 448, v2')
    a('v_add_u32 v6, 432, v6')
    a('buffer_store_dwordx4 v[12:15], v6, s[52:55], 0 offen')
    a('s_branch prep_end')
    a.label('prep_zero')
    srd(a, 36, P_WS, KV1, 2 * KV_SZ)
    a('s_sub_u32 s27, s2, 308')
    a('s_mul_i32 s27, s27, 9216')
    a('v_lshlrev_b32 v2, 4, v0')
    a('v_add_u32 v2, s27, v2')
    for i in range(4):
        a('v_mov_b32 v%d, 0' % (4 + i))
    for k in range(3):
        a('s_mov_b32 s28, %d' % (k * 3072))
        a('buffer_store_dwordx4 v[4:7], v2, s[36:39], s28 offen')
    srd(a, 36, P_WS, FL, FL_SZ)
    a('s_sub_u32 s27, s2, 308')
    a('s_mul_i32 s27, s27, 3072')
    a('v_lshlrev_b32 v2, 4, v0')
    a('buffer_store_dwordx4 v[4:7], v2, s[36:39], s27 offen')
    a('s_branch prep_end')
    a.label('prep_x')
    srd(a, 32, P_AX, 0, X_SZ)
    srd(a, 36, P_WS, X0, X_SZ)
    a('s_sub_u32 s26, s2, 332')
    a('s_and_b32 s27, s26, 3')
    a('s_lshl_b32 s27, s27, 5')
    a('s_lshr_b32 s26, s26, 2')
    a('s_add_u32 s26, s26, s27')
    a('v_lshrrev_b32 v2, 2, v1')
    a('v_and_b32 v3, 3, v1')
    a('v_mul_u32_u24 v4, 1152, v2')
    a('v_lshl_add_u32 v4, v3, 4, v4')
    a('s_mul_i32 s27, s26, 18432')
    a('s_mul_i32 s28, s24, 384')
    a('s_add_u32 s28, s28, s27')
    for t in range(6):
        a('buffer_load_dwordx4 v[%d:%d], v4, s[32:35], s28 offen offset:%d' % (16 + 4 * t, 19 + 4 * t, t * 64))
    a('v_lshlrev_b32 v5, 4, v2')
    a('v_lshl_add_u32 v5, v3, 8, v5')
    a('s_mul_i32 s28, s24, 6144')
    a('v_add_u32 v5, s28, v5')
    a('v_lshlrev_b32 v6, 4, v1')
    a('v_add_u32 v7, s28, v6')
    a('s_add_u32 s28, s28, s27')
    a('s_add_u32 s29, s28, 3072')
    for t in range(6):
        a('s_waitcnt vmcnt(%d)' % (5 - t))
        a('ds_write_b128 v5, v[%d:%d] offset:%d' % (16 + 4 * t, 19 + 4 * t, t * 1024))
    a('s_waitcnt lgkmcnt(0)')
    for t in range(6):
        a('ds_read_b128 v[%d:%d], v7 offset:%d' % (40 + 4 * t, 43 + 4 * t, t * 1024))
    for t in range(6):
        a('s_waitcnt lgkmcnt(%d)' % (5 - t))
        a('buffer_store_dwordx4 v[%d:%d], v6, s[36:39], s%d offen offset:%d' % (40 + 4 * t, 43 + 4 * t, 28 + t // 3, (t % 3) * 1024))
    a.label('prep_end')
    if STAMP:
        a('s_cmp_ge_u32 s2, %d' % NPREP)
        a('s_cbranch_scc1 prep_end2')
        a('s_mov_b64 exec, -1')
        stamp(a)
        a('s_waitcnt vmcnt(0)')
        stamp(a)
        stamp_rt(a)
        a('s_mov_b32 s26, s24')
        a('s_lshr_b32 s3, s2, 8')
        a('s_lshl_b32 s3, s3, 2')
        a('s_add_u32 s26, s26, s3')
        a('s_and_b32 s2, s2, 255')
        stamp_flush(a, 5)
        a.label('prep_end2')
    a('s_endpgm')
    return [('prep_kernel', 96, 96)]


XF0 = 32
ACC0 = 104
WB0 = 168
LDS_T = 127 * 1024
LDS_PK = 32 * 1024
PK_STRIDE = 224
QDEPTH = int(os.environ.get('QDEPTH', 3))
SPREAD = int(os.environ.get('SPREAD', 1))
LSLOTS = [1, 5, 9, 13]


def XF(a_, t):
    return XF0 + (a_ * 9 + t) * 4


def ACC(a_, u):
    return ACC0 + (a_ * 8 + u) * 4


def p2(r):
    return 'v[%d:%d]' % (r, r + 1)


def softmax18(a, D, sL, tmp):
    m, s_ = tmp, tmp + 2
    a('v_max3_f32 %s, %s, %s, %s' % (vr(m), vr(D), vr(D + 1), vr(D + 2)))
    a('v_max3_f32 %s, %s, %s, %s' % (vr(m + 1), vr(D + 3), vr(D + 4), vr(D + 5)))
    for i in range(6, 18, 4):
        a('v_max3_f32 %s, %s, %s, %s' % (vr(m), vr(m), vr(D + i), vr(D + i + 1)))
        a('v_max3_f32 %s, %s, %s, %s' % (vr(m + 1), vr(m + 1), vr(D + i + 2), vr(D + i + 3)))
    a('v_max_f32 %s, %s, %s' % (vr(m), vr(m), vr(m + 1)))
    a('v_mul_f32 %s, s%d, %s' % (vr(m), sL, vr(m)))
    pf = lambda k: a('v_pk_fma_f32 %s, %s, s[%d:%d], %s op_sel_hi:[1,0,0] neg_lo:[0,0,1] neg_hi:[0,0,1]' % (p2(D + 2 * k), p2(D + 2 * k), sL, sL + 1, p2(m)))
    pf(0)
    pf(1)
    for k in range(9):
        a('v_exp_f32 %s, %s' % (vr(D + 2 * k), vr(D + 2 * k)))
        if k + 2 < 9:
            pf(k + 2)
        elif k == 7:
            a('v_pk_add_f32 %s, %s, %s' % (p2(s_), p2(s_), p2(D + 10)))
        else:
            a('v_pk_add_f32 %s, %s, %s' % (p2(s_), p2(s_), p2(D + 14)))
        a('v_exp_f32 %s, %s' % (vr(D + 2 * k + 1), vr(D + 2 * k + 1)))
        if k == 2:
            a('v_pk_add_f32 %s, %s, %s' % (p2(s_), p2(D), p2(D + 2)))
        elif 3 <= k <= 5:
            a('v_pk_add_f32 %s, %s, %s' % (p2(s_), p2(s_), p2(D + 2 * k - 2)))
        elif k == 7:
            a('v_pk_add_f32 %s, %s, %s' % (p2(s_), p2(s_), p2(D + 12)))
        elif k == 8:
            a('s_nop 0')
    a('v_pk_add_f32 %s, %s, %s' % (p2(s_), p2(s_), p2(D + 16)))
    a('v_add_f32 %s, %s, %s' % (vr(s_), vr(s_), vr(s_ + 1)))
    a('v_rcp_f32 %s, %s' % (vr(s_), vr(s_)))
    a('s_nop 0')
    for k in range(9):
        a('v_pk_mul_f32 %s, %s, %s op_sel_hi:[1,0]' % (p2(D + 2 * k), p2(D + 2 * k), p2(s_)))
    for i in range(9):
        a('v_cvt_pk_bf16_f32 %s, %s, %s' % (vr(D + i), vr(D + 2 * i), vr(D + 2 * i + 1)))


SWS, SOUT = 32, 36
F_KVC, F_OC, F_XC, F_KVF = FL, FL + 4096, FL + 12288, FL + 20480
SPIN_LIMIT = 40000
WQ_PRE = int(os.environ.get('WQ_PRE', 8))
WOMAP = int(os.environ.get('WOMAP', 1))
LDS_CS = 143 * 1024
L_PHI = 0
L_KV = 32 * 1024
L_WO = 70 * 1024
L_WX = 127 * 1024
IM_P = 6144 + 64
I_K0, I_K1, I_V0, I_V1, I_VT = 0, IM_P, 2 * IM_P, 3 * IM_P, 4 * IM_P
I_KT = 5 * IM_P
I_Q0 = I_V0
I_Q1 = I_Q0 + 2048
I_QT = I_V1
IM_HEAD = I_KT + 3072
MEGA_LDS = 160 * 1024
_uid = [0]


def mstamp(a):
    if not STAMP:
        return
    a('s_memtime s[94:95]')
    a('s_waitcnt lgkmcnt(0)')
    a('s_mov_b32 s92, m0')
    a('s_mov_b32 m0, s93')
    a('s_nop 1')
    a('v_writelane_b32 v2, s94, m0')
    a('s_mov_b32 m0, s92')
    a('s_add_u32 s93, s93, 1')


def ws_ld(a, dst, n, voff, soff, imm=0, extra=''):
    a('buffer_load_dword%s %s, %s, s[%d:%d], %s offen offset:%d %s' % ('' if n == 1 else 'x%d' % n, vr(dst, n), voff, SWS, SWS + 3, soff, imm, extra))


def ws_dma(a, soff, imm=0, extra=''):
    a('buffer_load_dwordx4 v5, s[%d:%d], %s offen offset:%d %s lds' % (SWS, SWS + 3, soff, imm, extra))


def ws_st(a, src, n, voff, soff, imm=0, extra='sc1'):
    a('buffer_store_dword%s %s, %s, s[%d:%d], %s offen offset:%d %s' % ('' if n == 1 else 'x%d' % n, vr(src, n), voff, SWS, SWS + 3, soff, imm, extra))


def arrive(a, soff):
    _uid[0] += 1
    l = 'arr%d' % _uid[0]
    a('s_cmp_lg_u32 s26, 0')
    a('s_cbranch_scc1 %s' % l)
    a('v_mov_b32 v29, 0')
    a('v_mov_b32 v30, 1')
    a('s_mov_b64 exec, 1')
    a('buffer_atomic_add v30, v29, s[%d:%d], %s offen sc1' % (SWS, SWS + 3, soff))
    a('s_mov_b64 exec, -1')
    a.label(l)


def poll(a, soffs, target, skip_cond=None):
    _uid[0] += 1
    l = 'pl%d' % _uid[0]
    a('s_cmp_lg_u32 s26, 0')
    a('s_cbranch_scc1 %s_e' % l)
    if skip_cond:
        a(skip_cond)
        a('s_cbranch_scc1 %s_e' % l)
    a('v_mov_b32 v29, 0')
    a('s_mov_b64 exec, 1')
    a('s_mov_b32 s90, 0')
    a.label(l)
    for q, so in enumerate(soffs):
        a('buffer_load_dword v%d, v29, s[%d:%d], %s offen sc1' % (27 + q, SWS, SWS + 3, so))
    a('s_waitcnt vmcnt(0)')
    if len(soffs) == 2:
        a('v_min_u32 v27, v27, v28')
        a('s_nop 0')
    a('v_readfirstlane_b32 s91, v27')
    a('s_add_u32 s90, s90, 1')
    a('s_cmp_ge_u32 s90, %d' % SPIN_LIMIT)
    a('s_cbranch_scc1 %s_d' % l)
    a('s_cmp_lt_u32 s91, %d' % target)
    a('s_cbranch_scc1 %s' % l)
    a.label('%s_d' % l)
    a('s_mov_b64 exec, -1')
    a.label('%s_e' % l)


def oimg_addr(a, s_rb32, s_head, s_main, s_tail, t1, t2):
    a('s_mul_i32 s%d, s10, 0x%x' % (t1, XS))
    a('s_mul_i32 s%d, s%d, 36864' % (s_tail, s_rb32))
    a('s_add_u32 s%d, s%d, s%d' % (s_tail, s_tail, t1))
    a('s_add_u32 s%d, s%d, 0x%x' % (s_tail, s_tail, OIMG))
    a('s_lshl_b32 s%d, s%d, 10' % (t1, s_head))
    a('s_and_b32 s%d, s%d, 1' % (t2, s_head))
    a('s_lshl_b32 s%d, s%d, 9' % (t2, t2))
    a('s_sub_u32 s%d, s%d, s%d' % (t1, t1, t2))
    a('s_add_u32 s%d, s%d, s%d' % (s_main, s_tail, t1))
    a('s_lshr_b32 s%d, s%d, 4' % (t1, s_head))
    a('s_lshl_b32 s%d, s%d, 11' % (t1, t1))
    a('s_add_u32 s%d, s%d, s%d' % (s_tail, s_tail, t1))
    a('s_bfe_u32 s%d, s%d, 0x20002' % (t1, s_head))
    a('s_lshl_b32 s%d, s%d, 8' % (t1, t1))
    a('s_add_u32 s%d, s%d, s%d' % (s_tail, s_tail, t1))
    a('s_and_b32 s%d, s%d, 3' % (t1, s_head))
    a('s_lshl_b32 s%d, s%d, 2' % (t1, t1))
    a('s_add_u32 s%d, s%d, s%d' % (s_tail, s_tail, t1))
    a('s_add_u32 s%d, s%d, 32768' % (s_tail, s_tail))


def o_store(a, OA, s_main, s_tail, vden, eps):
    a('v_bfe_u32 v26, v1, 4, 1')
    a('v_and_b32 v27, 15, v1')
    a('v_lshlrev_b32 v27, 4, v27')
    a('v_lshl_add_u32 v27, v26, 10, v27')
    a('v_lshrrev_b32 v26, 5, v1')
    a('v_lshl_add_u32 v28, v26, 8, v27')
    if eps:
        a('v_add_f32 v24, 0x%x, %s' % (f32bits(eps), vr(OA + 10)))
        a('v_rcp_f32 v24, v24')
    else:
        a('v_rcp_f32 v24, %s' % vr(OA + 10))
    a('s_nop 0')
    for n in range(0, 10, 2):
        a('v_pk_mul_f32 %s, %s, v[24:25] op_sel_hi:[1,0]' % (p2(OA + n), p2(OA + n)))
    for n in range(5):
        a('v_cvt_pk_bf16_f32 %s, %s, %s' % (vr(OA + n), vr(OA + 2 * n), vr(OA + 2 * n + 1)))
    ws_st(a, OA, 4, 'v28', 's%d' % s_main)
    a('s_mov_b32 exec_hi, 0')
    ws_st(a, OA + 4, 1, 'v27', 's%d' % s_tail)
    a('s_mov_b32 exec_hi, -1')


def wq_dma(a, s_kind, lo, hi):
    a('s_lshl_b32 s31, s26, 10')
    a('s_add_u32 s31, s31, %d' % (lo * 8192))
    a('s_mov_b32 m0, s31')
    a('s_mul_i32 s56, s25, 129024')
    a('s_add_u32 s31, s31, s56')
    a('s_mul_i32 s56, s%d, 0x%x' % (s_kind, WQB - WQA))
    a('s_add_u32 s31, s31, s56')
    for ii in range(lo, hi):
        if ii == 15:
            a('s_cmp_ge_u32 s26, 6')
            a('s_cselect_b32 s56, 8192, 0')
            a('s_sub_u32 m0, m0, s56')
            a('s_sub_u32 s31, s31, s56')
        ws_dma(a, 's31')
        if ii < hi - 1:
            a('s_add_u32 m0, m0, 8192')
            a('s_add_u32 s31, s31, 8192')


def wo_dma_ops(a):
    def first():
        a('s_lshl_b32 s31, s26, 10')
        a('s_add_u32 m0, s31, %d' % L_WO)
        a('s_mul_i32 s29, s13, 92160')
        a('s_add_u32 s31, s31, s29')
        a('s_mul_i32 s29, s14, 0x%x' % (WOB - WOA))
        a('s_add_u32 s31, s31, s29')
        a('s_add_u32 s31, s31, 0x%x' % WOA)
        ws_dma(a, 's31')

    def nxt():
        a('s_add_u32 m0, m0, 8192')
        a('s_add_u32 s31, s31, 8192')
        ws_dma(a, 's31')

    def last():
        a('s_cmp_lt_u32 s26, 2')
        a('s_cselect_b32 s29, 8192, 0')
        a('s_add_u32 m0, m0, s29')
        a('s_add_u32 s31, s31, s29')
        ws_dma(a, 's31')
    return [first] + [nxt] * 10 + [last]


class Sprinkle:
    def __init__(self, a, ops, n):
        self.a, self.ops, self.n, self.c = a, list(ops), n, 0

    def __call__(self, s_):
        self.a(s_)
        self.c += 1
        if self.c % self.n == 0 and self.ops:
            self.ops.pop(0)()

    def flush(self):
        while self.ops:
            self.ops.pop(0)()


def gen_mega(a):
    entry(a, 'mega_kernel')
    a('s_cmp_ge_u32 s2, 256')
    a('s_cbranch_scc1 mega_end')
    a('s_load_dwordx2 s[18:19], s[0:1], 56')
    a('s_load_dwordx2 s[22:23], s[0:1], 72')
    a('s_and_b32 s24, s2, 3')
    a('s_lshl_b32 s12, s24, 3')
    a('s_lshl_b32 s24, s24, 2')
    a('s_bfe_u32 s25, s2, 0x20003')
    a('s_add_u32 s24, s24, s25')
    a('s_bfe_u32 s11, s2, 0x10002')
    a('s_lshl_b32 s13, s11, 2')
    a('s_add_u32 s13, s13, s25')
    a('s_lshl_b32 s25, s11, 3')
    a('s_lshr_b32 s26, s2, 5')
    a('s_add_u32 s25, s25, s26')
    a('s_add_u32 s12, s12, s26')
    if WOMAP:
        a('s_and_b32 s12, s2, 7')
        a('s_lshl_b32 s12, s12, 2')
        a('s_lshr_b32 s13, s2, 6')
        a('s_add_u32 s12, s12, s13')
        a('s_bfe_u32 s13, s2, 0x30003')
    a('v_lshrrev_b32 v2, 6, v0')
    a('v_and_b32 v1, 63, v0')
    a('v_readfirstlane_b32 s26, v2')
    a('v_lshlrev_b32 v5, 4, v1')
    a('v_mov_b32 v2, 0')
    a('s_mov_b32 s10, 0')
    a('s_mov_b32 s93, 0')
    a('s_and_b32 s27, s26, 3')
    a('s_lshr_b32 s28, s26, 2')
    a('s_waitcnt lgkmcnt(0)')
    srd(a, SWS, P_WS, 0, WS_USED)
    srd(a, SOUT, P_OUT, 0, X_SZ)
    wq_dma(a, 10, 0, 16)
    a('s_waitcnt vmcnt(0)')
    a('s_barrier')
    a.label('L_top')
    mstamp(a)
    a('s_and_b32 s14, s10, 1')
    a('s_lshl_b32 s31, s26, 11')
    a('s_add_u32 m0, s31, %d' % LDS_T)
    a('s_mul_i32 s56, s25, 15360')
    a('s_add_u32 s31, s31, s56')
    a('s_add_u32 s31, s31, 0x%x' % TPHI)
    ws_dma(a, 's31')
    ws_dma(a, 's31', 1024)
    a('s_mul_i32 s56, s25, 1344')
    a('s_mul_i32 s57, s14, 0x%x' % (CSB - CSA))
    a('s_add_u32 s56, s56, s57')
    a('s_add_u32 s56, s56, 0x%x' % CSA)
    for p in range(3):
        ws_ld(a, 224 + 4 * p, 4, 'v5', 's56', p * 448)
    a('v_and_b32 v3, 15, v1')
    a('v_lshrrev_b32 v4, 4, v1')
    a('s_lshl_b32 s29, s24, 7')
    a('s_lshl_b32 s30, s27, 5')
    a('s_add_u32 s29, s29, s30')
    a('s_lshl_b32 s30, s28, 4')
    a('s_add_u32 s29, s29, s30')
    a('v_add_u32 v6, s29, v3')
    a('s_lshr_b32 s30, s29, 4')
    a('s_xor_b32 s69, s30, 1')
    a('s_mul_i32 s30, s30, 18432')
    a('s_mul_i32 s69, s69, 18432')
    a('s_mul_i32 s31, s28, 9216')
    a('s_mul_i32 s56, s10, 0x%x' % XS)
    a('s_add_u32 s31, s31, s56')
    a('s_add_u32 s31, s31, 0x%x' % X0)
    a('s_add_u32 s30, s30, s31')
    a('s_add_u32 s69, s69, s31')
    a('s_mul_i32 s56, s28, %d' % (63 * 1024))
    a('v_add_u32 v10, s56, v5')
    a('v_and_b32 v11, 3, v3')
    a('v_cmp_eq_u32 s[58:59], 1, v11')
    a('v_cmp_eq_u32 s[60:61], 2, v11')
    a('v_cmp_eq_u32 s[62:63], 3, v11')
    a('v_lshrrev_b32 v11, 2, v3')
    a('v_lshl_add_u32 v11, v11, 4, v3')
    a('v_lshlrev_b32 v11, 2, v11')
    a('v_lshlrev_b32 v24, 2, v3')
    a('v_add_u32 v24, 192, v24')
    a('v_lshlrev_b32 v25, 4, v4')
    a('v_add_u32 v25, %d, v25' % LDS_CS)
    a('v_add_u32 v26, %d, v5' % LDS_CS)
    a('s_lshl_b32 s56, s27, 13')
    a('v_add_u32 v14, s56, v10')
    a('s_xor_b32 s57, s28, 1')
    a('s_mul_i32 s57, s57, %d' % (63 * 1024))
    a('s_add_u32 s57, s57, s56')
    a('v_add_u32 v15, s57, v5')
    a('s_lshl_b32 s56, s10, 4')
    a('s_add_u32 s56, s56, s24')
    a('s_lshl_b32 s56, s56, 7')
    a('s_add_u32 s56, s56, 0x%x' % (F_XC - 2048))
    a('s_waitcnt vmcnt(0)')
    for r in (0, 2):
        a('v_pk_add_f32 %s, %s, %s' % (p2(224 + r), p2(224 + r), p2(228 + r)))
    for r in (0, 2):
        a('v_pk_add_f32 %s, %s, %s' % (p2(224 + r), p2(224 + r), p2(232 + r)))
    a('s_cmp_lg_u32 s26, 1')
    a('s_cbranch_scc1 q_nocs')
    a('s_mov_b64 exec, 0xfffffff')
    a('ds_write_b128 v26, v[224:227]')
    a('s_mov_b64 exec, -1')
    a.label('q_nocs')
    mstamp(a)
    poll(a, ['s56'], 16, 's_cmp_eq_u32 s10, 0')
    a('s_waitcnt lgkmcnt(0)')
    a('s_barrier')
    mstamp(a)
    vm = VM(a)
    for t in range(9):
        if t and t % 4 == 0:
            a('s_add_u32 s30, s30, 4096')
            a('s_add_u32 s69, s69, 4096')
        ws_ld(a, XF(0, t), 4, 'v5', 's30', (t & 3) * 1024)
        vm.issue()
        ws_ld(a, XF(1, t), 4, 'v5', 's69', (t & 3) * 1024)
        vm.issue(t)
        if t == 0:
            for u in range(7):
                a('ds_read_b128 %s, v10 offset:%d' % (vr(WB0 + 4 * u, 4), u * 1024))
    for t in range(9):
        a('s_waitcnt vmcnt(%d) lgkmcnt(0)' % vm.cnt(t))
        if t == 7:
            a('s_barrier')
        if t < 8:
            fill = [(lambda u=u: a('ds_read_b128 %s, v10 offset:%d' % (vr(WB0 + 28 * ((t + 1) & 1) + 4 * u, 4), ((t + 1) * 7 + u) * 1024))) for u in range(7)]
            seq = [(a_, u, t) for u in [7, 0, 1, 2, 3, 4, 5, 6] for a_ in (0, 1)]
            if t == 7:
                seq = [(1, u, 7) for u in [7, 6, 0, 1, 2, 3, 4, 5]]
        else:
            wr = [7, 6, 0, 1, 2, 3, 4, 5]
            seq = [(1, u, 8) for u in wr] + [(0, u, 7) for u in wr] + [(0, u, 8) for u in wr]
            fill = [None] * 8
            for u in wr:
                fill += [(lambda u=u: a('ds_write_b128 v14, %s offset:%d' % (vr(ACC(1, u), 4), u * 1024))), None]
        for k, (a_, u, tt) in enumerate(seq):
            A_ = vr(XF(a_, tt), 4) if u == 7 else vr(WB0 + 28 * (tt & 1) + 4 * u, 4)
            c = '0' if tt == 0 else vr(ACC(a_, u), 4)
            a('v_mfma_f32_16x16x32_bf16 %s, %s, %s, %s' % (vr(ACC(a_, u), 4), A_, vr(XF(a_, tt), 4), c))
            if k < len(fill) and fill[k] is not None:
                fill[k]()
    mstamp(a)
    CS0 = 48
    a('s_waitcnt lgkmcnt(0)')
    a('s_barrier')
    for u in [7, 6, 0, 1, 2, 3, 4, 5]:
        a('ds_read_b128 %s, v15 offset:%d' % (vr(ACC(1, u), 4), u * 1024))
    R = lambda u, r: ACC(0, u) + r
    a('s_waitcnt lgkmcnt(6)')
    for r in (0, 2):
        a('v_pk_add_f32 %s, %s, %s' % (p2(R(7, r)), p2(R(7, r)), p2(ACC(1, 7) + r)))
        a('v_pk_add_f32 %s, %s, %s' % (p2(R(6, r)), p2(R(6, r)), p2(ACC(1, 6) + r)))
    a('v_cndmask_b32 v16, %s, %s, s[58:59]' % (vr(R(7, 0)), vr(R(7, 1))))
    a('v_cndmask_b32 v16, v16, %s, s[60:61]' % vr(R(7, 2)))
    a('v_cndmask_b32 v16, v16, %s, s[62:63]' % vr(R(7, 3)))
    a('ds_bpermute_b32 v18, v24, %s' % vr(R(6, 0)))
    a('ds_bpermute_b32 v17, v11, v16')
    for u in range(7):
        a('ds_read_b128 %s, v25 offset:%d' % (vr(CS0 + 4 * u, 4), u * 64))
    a('s_waitcnt lgkmcnt(9)')
    for u in range(6):
        for r in (0, 2):
            a('v_pk_add_f32 %s, %s, %s' % (p2(R(u, r)), p2(R(u, r)), p2(ACC(1, u) + r)))
    a('s_mov_b32 s56, 0x%x' % f32bits(1.0 / 576))
    a('s_waitcnt lgkmcnt(7)')
    a('v_mul_f32 v18, s56, v18')
    a('v_mul_f32 v17, s56, v17')
    a('v_fma_f32 v17, -v18, v18, v17')
    a('v_max_f32 v17, 0, v17')
    bf16r(a, 18, 19)
    bf16r(a, 17, 19)
    a('v_add_f32 v17, 0x%x, v17' % f32bits(1e-5))
    bf16r(a, 17, 19)
    a('v_sqrt_f32 v17, v17')
    a('s_nop 0')
    bf16r(a, 17, 19)
    a('v_rcp_f32 v16, v17')
    a('s_waitcnt lgkmcnt(0)')
    mstamp(a)
    P0 = 32

    def lnfix(u):
        for r in (0, 2):
            a('v_pk_fma_f32 %s, %s, v[18:19], %s op_sel_hi:[1,0,1] neg_lo:[0,1,0] neg_hi:[0,1,0]' % (p2(R(u, r)), p2(CS0 + 4 * u + r), p2(R(u, r))))
        for r in (0, 2):
            a('v_pk_mul_f32 %s, %s, v[16:17] op_sel_hi:[1,0]' % (p2(R(u, r)), p2(R(u, r))))
        a('v_cvt_pk_bf16_f32 %s, %s, %s' % (vr(P0 + 2 * u), vr(R(u, 0)), vr(R(u, 1))))
        a('v_cvt_pk_bf16_f32 %s, %s, %s' % (vr(P0 + 2 * u + 1), vr(R(u, 2)), vr(R(u, 3))))
    a('s_cmp_eq_u32 s14, 1')
    a('s_cbranch_scc1 B_epi')
    TA, TBQ, TBK = 168, 188, 208
    DQ, DK = 76, 136
    a('v_add_u32 v20, %d, v5' % LDS_T)
    for m in range(5):
        a('ds_read_b128 %s, v20 offset:%d' % (vr(TA + 4 * m, 4), m * 1024))
    for m in range(5):
        a('ds_read_b128 %s, v20 offset:%d' % (vr(TBK + 4 * m, 4), (10 + m) * 1024))
    for m in range(5):
        a('ds_read_b128 %s, v20 offset:%d' % (vr(TBQ + 4 * m, 4), (5 + m) * 1024))
    for u in (2, 3, 6):
        lnfix(u)
    a('v_mov_b32 %s, 0' % vr(P0 + 14))
    a('v_mov_b32 %s, 0' % vr(P0 + 15))
    a('v_and_b32 v20, 127, v6')
    a('v_mul_u32_u24 v20, %d, v20' % PK_STRIDE)
    a('v_add_u32 v20, %d, v20' % LDS_PK)
    a('v_lshl_add_u32 v21, v4, 3, v20')
    a('s_waitcnt lgkmcnt(5)')
    for m in range(5):
        a('v_mfma_f32_16x16x32_bf16 %s, %s, %s, 0' % (vr(DK + 4 * m, 4), vr(TA + 4 * m, 4), vr(P0 + 4, 4)))
    for m in range(5):
        a('v_mfma_f32_16x16x32_bf16 %s, %s, %s, %s' % (vr(DK + 4 * m, 4), vr(TBK + 4 * m, 4), vr(P0 + 12, 4), vr(DK + 4 * m, 4)))
    lnfix(4)
    lnfix(5)
    a('ds_write_b64 v21, %s offset:128' % vr(P0 + 8, 2))
    a('ds_write_b64 v21, %s offset:160' % vr(P0 + 10, 2))
    a('v_mov_b32 v12, %s' % vr(P0 + 12))
    a('v_mov_b32 v13, 0x3f80')
    a('v_mov_b32 v14, %s' % vr(P0 + 13))
    a('v_mov_b32 v15, 0x3f80')
    a('s_mov_b32 exec_lo, 0')
    a('s_mov_b32 exec_hi, 0xffff')
    a('ds_write_b128 v20, v[12:15] offset:208')
    a('s_mov_b64 exec, -1')
    a('s_mov_b32 s56, 0x%x' % f32bits(LOG2E))
    softmax18(a, DK, 56, 12)
    a('v_lshl_add_u32 v21, v4, 5, v20')
    a('v_lshl_add_u32 v24, v4, 2, v20')
    a('ds_write_b128 v21, %s' % vr(DK, 4))
    a('ds_write_b128 v21, %s offset:16' % vr(DK + 4, 4))
    a('ds_write_b32 v24, %s offset:192' % vr(DK + 8))
    a('s_lshr_b32 s64, s10, 1')
    a('s_mul_i32 s64, s64, %d' % KV_SZ)
    a('s_add_u32 s64, s64, 0x%x' % KV1)
    a('s_mul_i32 s65, s25, %d' % (2 * KV_HEAD))
    a('s_add_u32 s64, s64, s65')
    a('s_waitcnt lgkmcnt(0)')
    a('s_barrier')
    mstamp(a)
    a('s_cmp_ge_u32 s26, 6')
    a('s_cbranch_scc1 A_q')
    a('s_cmp_ge_u32 s26, 3')
    a('s_cselect_b32 s57, 1, 0')
    a('s_mul_i32 s58, s57, 3')
    a('s_sub_u32 s58, s26, s58')
    a('s_lshl_b32 s59, s57, 6')
    a('s_lshl_b32 s60, s58, 5')
    a('s_add_u32 s59, s59, s60')
    a('s_lshl_b32 s60, s57, 3')
    a('s_add_u32 s61, s60, 192')
    a('s_cmp_eq_u32 s58, 2')
    a('s_cselect_b32 s59, s61, s59')
    a('s_add_u32 s60, s60, 208')
    a('s_lshl_b32 s61, s57, 5')
    a('s_add_u32 s61, s61, 128')
    a('v_lshrrev_b32 v24, 2, v3')
    a('v_lshl_add_u32 v24, v4, 2, v24')
    a('v_mul_u32_u24 v24, %d, v24' % PK_STRIDE)
    a('v_and_b32 v25, 3, v3')
    a('v_lshl_add_u32 v24, v25, 3, v24')
    a('v_add_u32 v24, %d, v24' % LDS_PK)
    a('v_add_u32 v25, s59, v24')
    a('v_add_u32 v26, s61, v24')
    a('v_add_u32 v27, s60, v24')
    FB, FA, FT = 112, 136, 152
    for ks in range(4):
        for hf in range(2):
            off = (32 * ks + 16 * hf) * PK_STRIDE
            a('ds_read_b64_tr_b16 %s, v25 offset:%d' % (vr(FB + 4 * ks + 2 * hf, 2), off))
            a('ds_read_b64_tr_b16 %s, v26 offset:%d' % (vr(FA + 4 * ks + 2 * hf, 2), off))
            a('ds_read_b64_tr_b16 %s, v27 offset:%d' % (vr(FT + 4 * ks + 2 * hf, 2), off))
    a('s_mul_i32 s59, s57, %d' % KV_HEAD)
    a('s_mul_i32 s60, s58, 1216')
    a('s_add_u32 s59, s59, s60')
    a('s_add_u32 s59, s59, s64')
    a('v_lshlrev_b32 v28, 2, v1')
    DM, DT = 128, 132
    at = lambda r, off: a('buffer_atomic_add_f32 %s, v28, s[%d:%d], s59 offen offset:%d' % (vr(r), SWS, SWS + 3, off))
    a('s_cmp_eq_u32 s58, 2')
    a('s_cbranch_scc1 A_kvt')
    for ks in range(4):
        a('s_waitcnt lgkmcnt(%d)' % min(14, 6 * (3 - ks)))
        a('v_mfma_f32_16x16x32_bf16 %s, %s, %s, %s' % (vr(DM, 4), vr(FA + 4 * ks, 4), vr(FB + 4 * ks, 4), '0' if ks == 0 else vr(DM, 4)))
        a('v_mfma_f32_16x16x32_bf16 %s, %s, %s, %s' % (vr(DT, 4), vr(FT + 4 * ks, 4), vr(FB + 4 * ks, 4), '0' if ks == 0 else vr(DT, 4)))
    a('s_nop 7')
    for r in range(4):
        at(DM + r, r * 256)
    a('s_mov_b64 exec, 0xffff')
    for r in range(3):
        at(DT + r, 1024 + r * 64)
    a('s_mov_b64 exec, -1')
    a('s_branch A_q')
    a.label('A_kvt')
    for ks in range(4):
        a('s_waitcnt lgkmcnt(%d)' % min(14, 6 * (3 - ks)))
        a('v_mfma_f32_16x16x32_bf16 %s, %s, %s, %s' % (vr(DM, 4), vr(FB + 4 * ks, 4), vr(FA + 4 * ks, 4), '0' if ks == 0 else vr(DM, 4)))
        a('v_mfma_f32_16x16x32_bf16 %s, %s, %s, %s' % (vr(DT, 4), vr(FB + 4 * ks, 4), vr(FT + 4 * ks, 4), '0' if ks == 0 else vr(DT, 4)))
    a('s_mov_b64 exec, 0xffff')
    a('s_nop 7')
    for r in range(4):
        at(DM + r, r * 128)
    a('s_mov_b64 exec, 7')
    for r in range(4):
        at(DT + r, r * 128 + 64)
    a('s_mov_b64 exec, -1')
    a.label('A_q')
    lnfix(0)
    lnfix(1)
    a('s_nop 1')
    for m in range(5):
        a('v_mfma_f32_16x16x32_bf16 %s, %s, %s, 0' % (vr(DQ + 4 * m, 4), vr(TA + 4 * m, 4), vr(P0 + 0, 4)))
    for m in range(5):
        a('v_mfma_f32_16x16x32_bf16 %s, %s, %s, %s' % (vr(DQ + 4 * m, 4), vr(TBQ + 4 * m, 4), vr(P0 + 12, 4), vr(DQ + 4 * m, 4)))
    a('s_mul_i32 s57, s27, 4608')
    a('s_add_u32 s57, s57, %d' % L_PHI)
    a('v_lshrrev_b32 v24, 1, v4')
    a('v_mul_u32_u24 v24, 2304, v24')
    a('v_add_u32 v24, s57, v24')
    a('v_and_b32 v25, 1, v4')
    a('v_and_b32 v26, 31, v6')
    a('v_lshl_add_u32 v22, v25, 10, v24')
    a('v_lshl_add_u32 v22, v26, 4, v22')
    a('v_lshl_add_u32 v23, v26, 3, v24')
    a('v_lshl_add_u32 v23, v25, 2, v23')
    softmax18(a, DQ, 56, 12)
    a('ds_write_b128 v22, %s' % vr(DQ, 4))
    a('ds_write_b128 v22, %s offset:512' % vr(DQ + 4, 4))
    a('ds_write_b32 v23, %s offset:2048' % vr(DQ + 8))
    a('s_lshr_b32 s56, s10, 1')
    a('s_lshl_b32 s56, s56, 4')
    a('s_add_u32 s56, s56, s25')
    a('s_lshl_b32 s56, s56, 7')
    a('s_add_u32 s56, s56, 0x%x' % F_KVC)
    mstamp(a)
    a('s_waitcnt vmcnt(0) lgkmcnt(0)')
    a('s_barrier')
    mstamp(a)
    arrive(a, 's56')
    PH, ST, OC = 32, 48, 72
    a('s_lshl_b32 s57, s27, 1')
    a('s_add_u32 s57, s57, s28')
    a('s_mul_i32 s57, s57, 2304')
    a('s_add_u32 s57, s57, %d' % L_PHI)
    a('v_add_u32 v20, s57, v5')
    a('v_and_b32 v3, 31, v1')
    a('v_lshlrev_b32 v21, 3, v3')
    a('v_add_u32 v21, s57, v21')
    for r in range(8, 12):
        a('v_mov_b32 v%d, 0' % (PH + r))
    a('ds_read_b128 %s, v20' % vr(PH, 4))
    a('ds_read_b128 %s, v20 offset:1024' % vr(PH + 4, 4))
    a('s_mov_b32 exec_hi, 0')
    a('ds_read_b64 %s, v21 offset:2048' % vr(PH + 8, 2))
    a('s_mov_b32 exec_hi, -1')
    a('s_mul_i32 s58, s26, 3072')
    a('s_add_u32 s58, s58, %d' % L_KV)
    a('v_min_u32 v8, 18, v3')
    a('v_and_b32 v9, 3, v8')
    a('v_lshlrev_b32 v9, 8, v9')
    a('v_lshrrev_b32 v4, 2, v8')
    a('v_lshl_add_u32 v9, v4, 6, v9')
    a('v_lshlrev_b32 v4, 6, v8')
    a('v_cmp_gt_u32 vcc, 16, v8')
    a('v_lshlrev_b32 v8, 2, v8')
    a('v_add_u32 v8, s58, v8')
    a('v_cndmask_b32 v9, v4, v9, vcc')
    a('v_lshrrev_b32 v4, 5, v1')
    a('v_lshl_add_u32 v9, v4, 5, v9')
    a('v_add_u32 v9, s58, v9')
    a('s_lshl_b32 s59, s24, 2')
    a('s_add_u32 s59, s59, s27')
    a('s_lshl_b32 s60, s25, 1')
    a('s_add_u32 s60, s60, s28')
    oimg_addr(a, 59, 60, 66, 67, 61, 62)
    a('s_mul_i32 s57, s28, %d' % KV_HEAD)
    a('s_add_u32 s57, s57, s64')
    a('s_mov_b32 m0, s58')
    poll(a, ['s56'], 16)
    a('s_barrier')
    mstamp(a)
    for p in range(3):
        ws_dma(a, 's57', p * 1024, 'sc1')
    a('s_waitcnt vmcnt(0)')
    a('ds_read_b128 %s, v9' % vr(ST, 4))
    a('ds_read_b128 %s, v9 offset:16' % vr(ST + 4, 4))
    a('ds_read_b128 %s, v9 offset:1216' % vr(ST + 8, 4))
    a('ds_read_b128 %s, v9 offset:1232' % vr(ST + 12, 4))
    for ft in range(4):
        a('ds_read_b32 %s, v8 offset:%d' % (vr(ST + 16 + ft), 2432 + ft * 128))
    a('s_waitcnt lgkmcnt(0)')
    for n in range(10):
        a('v_cvt_pk_bf16_f32 %s, %s, %s' % (vr(ST + n), vr(ST + 2 * n), vr(ST + 2 * n + 1)))
    a('v_mov_b32 %s, 0' % vr(ST + 10))
    a('v_mov_b32 %s, 0' % vr(ST + 11))
    a('s_nop 1')
    for q_ in range(3):
        a('v_mfma_f32_32x32x16_bf16 %s, %s, %s, %s' % (vr(OC, 16), vr(ST + 4 * q_, 4), vr(PH + 4 * q_, 4), '0' if q_ == 0 else vr(OC, 16)))
    a('s_nop 6')
    o_store(a, OC, 66, 67, None, 1e-6)
    for op in wo_dma_ops(a):
        op()
    mstamp(a)
    a('s_waitcnt vmcnt(12)')
    a('s_branch O_pub')
    a.label('B_epi')
    for u in range(7):
        lnfix(u)
    a('s_lshr_b32 s64, s10, 1')
    a('s_lshl_b32 s64, s64, 23')
    a('s_add_u32 s64, s64, 0x%x' % REC)
    a('s_lshl_b32 s65, s25, 19')
    a('s_add_u32 s64, s64, s65')
    a('v_lshlrev_b32 v20, 4, v6')
    a('v_and_b32 v21, 1, v4')
    a('v_lshl_add_u32 v22, v21, 18, v20')
    a('v_lshrrev_b32 v23, 1, v4')
    a('v_lshl_add_u32 v22, v23, 15, v22')
    a('v_and_b32 v24, 127, v6')
    a('v_mul_u32_u24 v25, %d, v21' % IM_HEAD)
    a('v_lshl_add_u32 v25, v24, 4, v25')
    a('v_lshl_add_u32 v26, v23, 11, v25')
    a('v_mul_u32_u24 v27, %d, v23' % IM_P)
    a('v_add_u32 v27, v27, v25')
    a('s_add_u32 s56, s64, %d' % R_K0)
    a('s_add_u32 s57, s64, %d' % R_V0)
    for typ in range(3):
        b0 = P0 + 4 * typ
        a('v_permlane16_swap_b32 %s, %s' % (vr(b0), vr(b0 + 2)))
        a('v_permlane16_swap_b32 %s, %s' % (vr(b0 + 1), vr(b0 + 3)))
    ws_st(a, P0 + 4, 4, 'v22', 's56')
    ws_st(a, P0 + 8, 4, 'v22', 's57')
    a('v_cmp_eq_u32 vcc, 2, v4')
    a('v_mov_b32 v28, 0x3f80')
    a('v_mov_b32 v12, %s' % vr(P0 + 12))
    a('v_cndmask_b32 v13, 0, v28, vcc')
    a('v_mov_b32 v14, %s' % vr(P0 + 13))
    a('v_mov_b32 v15, v13')
    a('v_lshlrev_b32 v28, 3, v6')
    a('v_add_u32 v28, %d, v28' % R_KT)
    a('v_add_u32 v20, %d, v20' % R_VT)
    a('v_cndmask_b32 v28, v28, v20, vcc')
    a('v_lshlrev_b32 v20, 3, v24')
    a('v_add_u32 v21, %d, v20' % I_QT)
    a('v_add_u32 v20, %d, v20' % (I_KT + 2048))
    a('v_lshlrev_b32 v23, 4, v24')
    a('v_add_u32 v23, %d, v23' % (I_VT + 4096))
    a('v_cndmask_b32 v20, v20, v23, vcc')
    a('v_cmp_eq_u32 vcc, 0, v4')
    a('s_add_u32 s57, s64, %d' % REC_HEAD)
    a('s_mov_b32 exec_lo, 0xffff0000')
    a('s_mov_b32 exec_hi, 0xffff')
    ws_st(a, 12, 2, 'v28', 's64')
    ws_st(a, 14, 2, 'v28', 's57')
    a('s_mov_b64 exec, -1')
    a('v_cndmask_b32 v20, v20, v21, vcc')
    a('s_barrier')
    a('ds_write_b128 v26, %s offset:%d' % (vr(P0, 4), I_Q0))
    a('ds_write_b128 v27, %s offset:%d' % (vr(P0 + 4, 4), I_K0 + 4096))
    a('ds_write_b128 v27, %s offset:%d' % (vr(P0 + 8, 4), I_V0 + 4096))
    a('s_mov_b32 exec_hi, 0xffff')
    a('ds_write_b64 v20, v[12:13]')
    a('ds_write_b64 v20, v[14:15] offset:%d' % IM_HEAD)
    a('s_mov_b32 exec_hi, -1')
    a('s_lshr_b32 s48, s10, 1')
    a('s_lshl_b32 s48, s48, 4')
    a('s_add_u32 s48, s48, s25')
    a('s_lshl_b32 s48, s48, 7')
    a('s_add_u32 s48, s48, 0x%x' % F_KVF)
    a('s_lshl_b32 s49, s24, 2')
    a('s_add_u32 s49, s49, s48')
    a('s_sub_u32 s50, s49, 4')
    a('s_sub_u32 s51, s49, 8')
    a('s_max_u32 s51, s51, s48')
    a('s_lshl_b32 s56, s24, 7')
    a('s_sub_u32 s56, s56, 256')
    a('s_lshl_b32 s54, s27, 6')
    a('s_add_u32 s56, s56, s54')
    a('s_lshl_b32 s58, s28, 18')
    a('s_add_u32 s58, s58, s64')
    a('s_lshl_b32 s52, s56, 4')
    a('s_add_u32 s52, s52, s58')
    a('s_lshl_b32 s53, s56, 3')
    a('s_add_u32 s53, s53, s58')
    a('s_add_u32 s53, s53, %d' % R_KT)
    a('s_cmp_lt_i32 s56, 0')
    a('s_cselect_b32 s52, 0x40000000, s52')
    a('s_cselect_b32 s53, 0x40000000, s53')
    a('s_mul_i32 s65, s28, %d' % IM_HEAD)
    a('s_lshl_b32 s54, s27, 10')
    a('s_add_u32 s54, s54, s65')
    a('s_mov_b32 s3, s65')
    Q1, Q2 = 12, 16
    S = lambda t: 64 + 16 * t
    OA = 208
    KB = [224, 232, 240]
    MK, MB = 56, 36
    a('v_and_b32 v3, 31, v1')
    a('v_lshrrev_b32 v4, 5, v1')
    a('s_lshl_b32 s27, s27, 5')
    a('v_add_u32 v9, s27, v3')
    a('v_lshlrev_b32 v10, 4, v9')
    a('v_add_u32 v21, s65, v10')
    a('v_lshl_add_u32 v10, v4, 11, v21')
    a('v_lshlrev_b32 v20, 3, v9')
    a('v_add_u32 v20, s65, v20')
    for r in range(4):
        a('v_mov_b32 v%d, 0' % (Q2 + r))
    a('v_mul_u32_u24 v9, %d, v4' % IM_P)
    a('v_add_u32 v21, v21, v9')
    a('v_mov_b32 v8, v20')
    a('v_add_u32 v20, %d, v20' % I_KT)
    for b in KB:
        for r in range(6, 8):
            a('v_mov_b32 v%d, 0' % (b + r))
    a('v_bfe_u32 v22, v1, 2, 2')
    a('v_lshl_add_u32 v22, v4, 2, v22')
    a('v_add_u32 v22, s27, v22')
    a('v_lshlrev_b32 v22, 4, v22')
    a('v_bfe_u32 v23, v1, 1, 1')
    a('v_mul_u32_u24 v23, %d, v23' % IM_P)
    a('v_and_b32 v25, 1, v1')
    a('v_lshl_add_u32 v23, v25, 3, v23')
    a('v_and_b32 v25, 16, v1')
    a('v_cmp_eq_u32 vcc, 0, v25')
    a('v_mov_b32 v25, %d' % (I_VT - I_V0))
    a('s_add_u32 s65, s65, %d' % I_V0)
    a('v_cndmask_b32 v23, v25, v23, vcc')
    a('v_add3_u32 v22, v22, v23, s65')
    a('s_lshr_b32 s27, s27, 5')
    a('s_lshl_b32 s40, s24, 2')
    a('s_add_u32 s40, s40, s27')
    a('s_lshl_b32 s41, s25, 1')
    a('s_add_u32 s41, s41, s28')
    oimg_addr(a, 40, 41, 44, 45, 42, 43)
    a('s_sub_u32 s42, 8, s40')
    a('s_max_i32 s42, s42, 0')
    a('v_lshlrev_b32 v11, 2, v4')
    a('v_sub_u32 v11, v3, v11')
    for n in range(16):
        a('v_cmp_gt_i32 s[%d:%d], %d, v11' % (MK + 2 * n, MK + 2 * n + 1, 8 * (n >> 2) + (n & 3)))
    a('v_mov_b32 v26, 0xffff')
    a('v_mov_b32 v27, 0xffff0000')
    for n in range(8):
        a('v_cndmask_b32 v%d, 0, v26, s[%d:%d]' % (MB + n, MK + 4 * n, MK + 4 * n + 1))
        a('v_cndmask_b32 v25, 0, v27, s[%d:%d]' % (MK + 4 * n + 2, MK + 4 * n + 3))
        a('v_or_b32 v%d, v%d, v25' % (MB + n, MB + n))
    a('v_mov_b32 v24, 0xf149f2ca')
    a('s_mov_b32 s46, 0x%x' % f32bits(LOG2E * 18 ** -0.5))
    mstamp(a)
    a('s_waitcnt vmcnt(0) lgkmcnt(0)')
    a('s_barrier')
    mstamp(a)
    arrive(a, 's49')
    a('ds_read_b128 %s, v10 offset:%d' % (vr(Q1, 4), I_Q0))
    a('s_mov_b32 exec_hi, 0')
    a('ds_read_b64 %s, v8 offset:%d' % (vr(Q2, 2), I_QT))
    a('s_mov_b32 exec_hi, -1')
    poll(a, ['s50', 's51'], 1, 's_cmp_eq_u32 s24, 0')
    a('s_waitcnt lgkmcnt(0)')
    a('s_barrier')
    mstamp(a)
    for (pl, lo) in ((R_K0, I_K0), (R_K1, I_K1)):
        a('s_add_u32 m0, s54, %d' % lo)
        a('s_add_u32 s55, s52, %d' % pl)
        ws_dma(a, 's55')
    a('s_lshl_b32 s55, s27, 9')
    a('s_add_u32 s55, s55, s3')
    a('s_add_u32 m0, s55, %d' % I_KT)
    a('s_mov_b32 exec_hi, 0')
    ws_dma(a, 's53')
    a('s_mov_b32 exec_hi, -1')
    for (pl, lo) in ((R_V0, I_V0), (R_V1, I_V1), (R_VT, I_VT)):
        a('s_add_u32 m0, s54, %d' % lo)
        a('s_add_u32 s55, s52, %d' % pl)
        ws_dma(a, 's55')
    a('s_waitcnt vmcnt(0) lgkmcnt(0)')
    a('s_barrier')
    mstamp(a)

    def kread(t):
        b = KB[t % 3]
        a('ds_read_b128 %s, v21 offset:%d' % (vr(b, 4), t * 512))
        a('ds_read_b64 %s, v20 offset:%d' % (vr(b + 4, 2), t * 256))

    def tfix(t):
        a('s_cmp_le_u32 s42, %d' % t)
        a('s_cbranch_scc1 attn_ok%d' % t)
        for n in range(16):
            a('v_mov_b32 %s, v24' % vr(S(t) + n))
        a.label('attn_ok%d' % t)

    def tmax(t, half):
        if t < 1:
            return
        for n in range(8 * half, 8 * half + 8, 2):
            m = 25 + ((n >> 1) & 1)
            if t == 1 and n < 4:
                a('v_max_f32 v%d, %s, %s' % (m, vr(S(t) + n), vr(S(t) + n + 1)))
            else:
                a('v_max3_f32 v%d, v%d, %s, %s' % (m, m, vr(S(t) + n), vr(S(t) + n + 1)))
    kread(0)
    kread(1)
    for t in range(9):
        if t + 2 < 9:
            kread(t + 2)
            a('s_waitcnt lgkmcnt(4)')
        elif t + 1 < 9:
            a('s_waitcnt lgkmcnt(2)')
        else:
            a('s_waitcnt lgkmcnt(0)')
        b = KB[t % 3]
        a('v_mfma_f32_32x32x16_bf16 %s, %s, %s, 0' % (vr(S(t), 16), vr(b, 4), vr(Q1, 4)))
        if t >= 3:
            tfix(t - 3)
            tmax(t - 3, 0)
        a('v_mfma_f32_32x32x16_bf16 %s, %s, %s, %s' % (vr(S(t), 16), vr(b + 4, 4), vr(Q2, 4), vr(S(t), 16)))
        if t >= 3:
            tmax(t - 3, 1)
    for t in (6, 7):
        tfix(t)
        tmax(t, 0)
        tmax(t, 1)
    VB = [224, 232, 240, 248]
    seq = [1, 2, 3, 4, 5, 6, 7, 0, 8]

    def vread(k):
        t = seq[k]
        b = VB[k % 4]
        for ks in range(2):
            for hf in range(2):
                a('ds_read_b64_tr_b16 %s, v22 offset:%d' % (vr(b + 4 * ks + 2 * hf, 2), (32 * t + 16 * ks + 8 * hf) * 16))
    vread(0)
    vread(1)
    vread(2)
    for n in range(16):
        a('v_cndmask_b32 %s, %s, %s, s[%d:%d]' % (vr(S(0) + n), vr(S(8) + n), vr(S(0) + n), MK + 2 * n, MK + 2 * n + 1))
    for n in range(0, 16, 2):
        m = 25 + ((n >> 1) & 1)
        a('v_max3_f32 v%d, v%d, %s, %s' % (m, m, vr(S(0) + n), vr(S(0) + n + 1)))
    a('v_max_f32 v25, v25, v26')
    a('v_mov_b32 v26, v25')
    a('s_nop 1')
    a('v_permlane32_swap_b32 v25, v26')
    a('s_nop 0')
    a('v_max_f32 v25, v25, v26')
    a('v_mul_f32 v26, s46, v25')
    pf = lambda t, m: a('v_pk_fma_f32 %s, %s, s[46:47], v[26:27] op_sel_hi:[1,0,0] neg_lo:[0,0,1] neg_hi:[0,0,1]' % (p2(S(t) + 2 * m), p2(S(t) + 2 * m)))
    cv = lambda t, m: a('v_cvt_pk_bf16_f32 %s, %s, %s' % (vr(S(t) + m), vr(S(t) + 2 * m), vr(S(t) + 2 * m + 1)))
    for m in range(8):
        pf(seq[0], m)

    def pv(k, half):
        t = seq[k]
        b = VB[k % 4]
        c = '0' if (k == 0 and half == 0) else vr(OA, 16)
        a('v_mfma_f32_32x32x16_bf16 %s, %s, %s, %s' % (vr(OA, 16), vr(b + 4 * half, 4), vr(S(t) + 4 * half, 4), c))

    def split(n):
        a('v_bfi_b32 %s, v%d, 0, %s' % (vr(S(8) + n), MB + n, vr(S(0) + n)))
        a('v_and_b32 %s, v%d, %s' % (vr(S(0) + n), MB + n, vr(S(0) + n)))
    wops = wo_dma_ops(a)
    for k in range(8):
        t = seq[k]
        for m in range(8):
            if (m == 3 or (m == 5 and k < 4)) and wops:
                wops.pop(0)()
            a('v_exp_f32 %s, %s' % (vr(S(t) + 2 * m), vr(S(t) + 2 * m)))
            if k < 7:
                pf(seq[k + 1], m)
            elif m >= 2:
                split(m - 2)
            if m == 1 and k >= 1:
                pv(k - 1, 1)
                if k + 2 < 9:
                    vread(k + 2)
            if m == 6:
                a('s_waitcnt lgkmcnt(%d)' % (4 * min(8 - k, 2)))
                pv(k, 0)
            a('v_exp_f32 %s, %s' % (vr(S(t) + 2 * m + 1), vr(S(t) + 2 * m + 1)))
            if m >= 1:
                cv(t, m - 1)
        a('s_nop 0')
        cv(t, 7)
    split(6)
    split(7)
    a('s_waitcnt lgkmcnt(0)')
    pv(8, 0)
    pv(7, 1)
    pv(8, 1)
    a('s_mov_b32 s66, s44')
    a('s_mov_b32 s67, s45')
    a('s_nop 4')
    o_store(a, OA, 66, 67, None, 0)
    mstamp(a)
    a('s_waitcnt vmcnt(0)')
    a.label('O_pub')
    a('s_lshl_b32 s56, s10, 4')
    a('s_add_u32 s57, s56, s24')
    a('s_lshl_b32 s57, s57, 7')
    a('s_add_u32 s57, s57, 0x%x' % F_OC)
    a('s_lshr_b32 s58, s12, 1')
    a('s_add_u32 s58, s58, s56')
    a('s_lshl_b32 s58, s58, 7')
    a('s_add_u32 s59, s58, 0x%x' % F_XC)
    a('s_add_u32 s58, s58, 0x%x' % F_OC)
    OF, WV, CA = 36, 72, 16
    a('s_mul_i32 s31, s28, %d' % (9 * 5120))
    a('s_add_u32 s31, s31, %d' % L_WO)
    a('v_add_u32 v10, s31, v5')
    a('s_lshl_b32 s31, s28, 11')
    a('v_add_u32 v8, s31, v10')
    a('s_xor_b32 s31, s31, 2048')
    a('v_add_u32 v9, s31, v10')
    a('s_barrier')
    mstamp(a)
    arrive(a, 's57')
    a('v_and_b32 v3, 15, v1')
    a('v_lshrrev_b32 v4, 4, v1')
    a('s_lshl_b32 s29, s12, 2')
    a('s_add_u32 s29, s29, s27')
    a('v_and_b32 v6, 1, v4')
    a('v_lshrrev_b32 v7, 1, v4')
    a('v_lshl_add_u32 v6, v6, 1, v7')
    a('v_lshlrev_b32 v6, 8, v6')
    a('v_lshl_add_u32 v6, v3, 4, v6')
    a('v_lshlrev_b32 v7, 4, v3')
    a('v_lshl_add_u32 v7, v4, 3, v7')
    a('s_mul_i32 s60, s29, 18432')
    a('s_mul_i32 s61, s13, 2304')
    a('s_add_u32 s60, s60, s61')
    a('s_mul_i32 s61, s10, 0x%x' % XS)
    a('s_add_u32 s60, s60, s61')
    a('s_add_u32 s60, s60, 0x%x' % X0)
    a('s_lshl_b32 s61, s28, 10')
    a('s_add_u32 s61, s61, s60')
    ws_ld(a, 252, 4, 'v6', 's61')
    ws_ld(a, 12, 2, 'v7', 's60', 2048)
    a('s_xor_b32 s15, s14, 1')

    a('s_lshr_b32 s30, s29, 1')
    a('s_mul_i32 s30, s30, 36864')
    a('s_and_b32 s31, s29, 1')
    a('s_lshl_b32 s31, s31, 10')
    a('s_add_u32 s30, s30, s31')
    a('s_mul_i32 s31, s28, 18432')
    a('s_add_u32 s30, s30, s31')
    a('s_mul_i32 s31, s10, 0x%x' % XS)
    a('s_add_u32 s30, s30, s31')
    a('s_add_u32 s30, s30, 0x%x' % OIMG)
    a('s_mul_i32 s31, s26, 3072')
    a('s_add_u32 s31, s31, %d' % L_WX)
    a('v_add_u32 v14, s31, v5')
    a('s_xor_b32 s31, s26, 4')
    a('s_mul_i32 s31, s31, 3072')
    a('s_add_u32 s31, s31, %d' % L_WX)
    a('v_add_u32 v15, s31, v5')
    a('s_waitcnt vmcnt(0)')
    a('s_barrier')
    if WQ_PRE:
        wq_dma(a, 15, 0, WQ_PRE)
    for t in range(9):
        for q in range(5):
            base, off = [('v8', 0), ('v8', 1024), ('v9', 0), ('v9', 1024), ('v10', 4096)][q]
            a('ds_read_b128 %s, %s offset:%d' % (vr(WV + 20 * t + 4 * q, 4), base, t * 5120 + off))
    a('s_waitcnt lgkmcnt(0)')
    mstamp(a)
    poll(a, ['s58'], 16)
    a('s_barrier')
    mstamp(a)
    vm = VM(a)
    for t in range(9):
        if t and t % 2 == 0:
            a('s_add_u32 s30, s30, 4096')
        ws_ld(a, OF + 4 * t, 4, 'v5', 's30', (t & 1) * 2048)
        vm.issue(t)
    for t in range(9):
        a('s_waitcnt vmcnt(%d)' % vm.cnt(t))
        for k, q in enumerate([2, 3, 4, 0, 1]):
            a('v_mfma_f32_16x16x32_bf16 %s, %s, %s, %s' % (vr(CA + 4 * q, 4), vr(WV + 20 * t + 4 * q, 4), vr(OF + 4 * t, 4), '0' if t == 0 else vr(CA + 4 * q, 4)))
    a('s_nop 0')
    for i in range(4):
        a('v_lshlrev_b32 v%d, 16, v%d' % (40 + 2 * i, 252 + i))
        a('v_and_b32 v%d, 0xffff0000, v%d' % (41 + 2 * i, 252 + i))
    for q in (2, 3, 4):
        a('ds_write_b128 v14, %s offset:%d' % (vr(CA + 4 * q, 4), (q - 2) * 1024))
    for i in range(2):
        a('v_lshlrev_b32 v%d, 16, v%d' % (48 + 2 * i, 12 + i))
        a('v_and_b32 v%d, 0xffff0000, v%d' % (49 + 2 * i, 12 + i))
    a('s_add_u32 s60, s60, 0x%x' % XS)
    a('s_add_u32 s61, s61, 0x%x' % XS)
    a('s_waitcnt lgkmcnt(0)')
    a('s_barrier')
    for q in range(3):
        a('ds_read_b128 %s, v15 offset:%d' % (vr(64 + 4 * q, 4), q * 1024))
    a('s_waitcnt lgkmcnt(1)')
    for r in range(0, 8, 2):
        a('v_pk_add_f32 %s, %s, %s' % (p2(CA + r), p2(CA + r), p2(64 + r)))
    for i in range(4):
        a('v_cvt_pk_bf16_f32 v%d, v%d, v%d' % (80 + i, CA + 2 * i, CA + 2 * i + 1))
    a('s_waitcnt lgkmcnt(0)')
    a('v_pk_add_f32 %s, %s, %s' % (p2(CA + 16), p2(CA + 16), p2(72)))
    a('v_permlane16_swap_b32 v80, v82')
    a('v_permlane16_swap_b32 v81, v83')
    a('v_pk_add_f32 %s, %s, %s' % (p2(CA + 18), p2(CA + 18), p2(74)))
    for i in range(4):
        a('v_lshlrev_b32 v%d, 16, v%d' % (84 + 2 * i, 80 + i))
        a('v_and_b32 v%d, 0xffff0000, v%d' % (85 + 2 * i, 80 + i))
    a('v_cvt_pk_bf16_f32 v92, v%d, v%d' % (CA + 16, CA + 17))
    a('v_cvt_pk_bf16_f32 v93, v%d, v%d' % (CA + 18, CA + 19))
    for i in range(0, 8, 2):
        a('v_pk_add_f32 %s, %s, %s' % (p2(40 + i), p2(40 + i), p2(84 + i)))
    for i in range(2):
        a('v_lshlrev_b32 v%d, 16, v%d' % (94 + 2 * i, 92 + i))
        a('v_and_b32 v%d, 0xffff0000, v%d' % (95 + 2 * i, 92 + i))
    for i in range(4):
        a('v_cvt_pk_bf16_f32 v%d, v%d, v%d' % (24 + i, 40 + 2 * i, 41 + 2 * i))
    a('v_pk_add_f32 v[48:49], v[48:49], v[94:95]')
    a('v_pk_add_f32 v[50:51], v[50:51], v[96:97]')
    a('v_cvt_pk_bf16_f32 v28, v48, v49')
    a('v_cvt_pk_bf16_f32 v29, v50, v51')
    a('s_cmp_eq_u32 s10, 3')
    a('s_cbranch_scc1 W_final')
    ws_st(a, 24, 4, 'v6', 's61')
    a('s_cmp_eq_u32 s28, 0')
    a('s_cbranch_scc0 W_pub')
    a('s_mov_b32 exec_hi, 0')
    ws_st(a, 28, 2, 'v7', 's60', 2048)
    a('s_mov_b32 exec_hi, -1')
    a.label('W_pub')
    wq_dma(a, 15, WQ_PRE, 16)
    mstamp(a)
    a('s_waitcnt vmcnt(%d)' % (16 - WQ_PRE))
    a('s_barrier')
    arrive(a, 's59')
    a('s_add_u32 s10, s10, 1')
    a('s_branch L_top')
    a.label('W_final')
    a('v_mul_u32_u24 v8, 1152, v3')
    a('v_lshrrev_b32 v9, 8, v6')
    a('v_lshl_add_u32 v9, v9, 4, v8')
    a('v_lshl_add_u32 v8, v4, 3, v8')
    a('s_mul_i32 s60, s29, 18432')
    a('s_mul_i32 s61, s13, 144')
    a('s_add_u32 s60, s60, s61')
    a('s_lshl_b32 s61, s28, 6')
    a('s_add_u32 s61, s61, s60')
    a('buffer_store_dwordx4 v[24:27], v9, s[%d:%d], s61 offen' % (SOUT, SOUT + 3))
    a('s_cmp_eq_u32 s28, 0')
    a('s_cbranch_scc0 W_done')
    a('s_mov_b32 exec_hi, 0')
    a('buffer_store_dwordx2 v[28:29], v8, s[%d:%d], s60 offen offset:128' % (SOUT, SOUT + 3))
    a('s_mov_b32 exec_hi, -1')
    a.label('W_done')
    if STAMP:
        mstamp(a)
        a('s_waitcnt vmcnt(0)')
        mstamp(a)
        a('s_lshl_b32 s56, s2, 3')
        a('s_add_u32 s56, s56, s26')
        a('s_lshl_b32 s56, s56, 8')
        a('s_add_u32 s56, s56, 0x%x' % STAMP_OFF)
        a('v_lshlrev_b32 v3, 2, v1')
        ws_st(a, 2, 1, 'v3', 's56', 0, '')
    a.label('mega_end')
    a('s_endpgm')
    return [('mega_kernel', 256, 96)]


def build():
    a = Asm()
    ks = []
    global STAMP
    st = STAMP
    STAMP = False
    ks += gen_prep(a)
    STAMP = st
    ks += gen_mega(a)
    launches = [
        ('prep_kernel', NPREP, 192, 28416),
        ('mega_kernel', 256, 512, MEGA_LDS),
    ]
    out = []
    for (k, g, b, l) in launches:
        out.append('; @launch kernel=%s grid=(%d,1,1) block=(%d,1,1) lds=%d' % (k, g, b, l))
    out.append('.amdgcn_target "amdgcn-amd-amdhsa--gfx950"')
    out.append('.text')
    out += a.L
    out.append('code_end:')
    out.append('    s_endpgm')
    out.append('.section .rodata,"a"')
    for (k, v, s) in ks:
        out.append('.p2align 6')
        out.append(kdesc(k, v, s))
    return '\n'.join(out) + '\n'


if __name__ == '__main__':
    if len(sys.argv) > 2 and sys.argv[2] == 'stamp':
        STAMP = True
    dst = sys.argv[1] if len(sys.argv) > 1 else 'cdna_kernels/%s.s' % NAME
    open(dst, 'w').write(build())
    print('wrote', dst)
```

```python
import sys, struct, os

NAME = 'interleave_layers__linear_kernel_hedgehog__sliding_block__prompt'

WQA = 0x000000
WQB = 0x200000
WQ_SZ = 16 * 18 * 7 * 1024
WOA = 0x400000
WOB = 0x500000
WO_SZ = 8 * 18 * 5 * 1024
CSA = 0x600000
CSB = 0x608000
CS_SZ = 16 * 3 * 448
TPHI = 0x610000
TPHI_SZ = 16 * 15 * 1024
KV1 = 0x660000
KV3 = 0x660000 + 32 * 2944
KV_HEAD = 2944
KV_SZ = 32 * KV_HEAD
X1 = 0x700000
X2 = 0x940000
X3 = 0xB80000
X_SZ = 2048 * 1152
PHIQ = 0xE00000
PHIQ_SZ = 64 * 32 * 2304
REC = 0x1300000
REC_HEAD = 262144
REC_SZ = 32 * REC_HEAD
R_Q0, R_K0, R_K1, R_V0, R_V1, R_VT, R_QT, R_KT = 0, 65536, 98304, 131072, 163840, 196608, 229376, 245760
X0 = 0x2400000
XS = 0x240000
FL = 0x6A0000
FL_SZ = 0x8000
WS_USED = 0x5000000
OIMG = 0x3000000
OIMG_SZ = 64 * 36864

LOG2E = 1.4426950408889634


def f32bits(x):
    return struct.unpack('<I', struct.pack('<f', x))[0]


class Asm:
    def __init__(self):
        self.L = []

    def __call__(self, s):
        self.L.append('    ' + s)

    def label(self, l):
        self.L.append(l + ':')

    def c(self, s):
        self.L.append('    ; ' + s)

    def raw(self, s):
        self.L.append(s)


class VM:
    def __init__(self, a):
        self.a = a
        self.n = 0
        self.tags = {}

    def issue(self, tag=None):
        self.n += 1
        if tag is not None:
            self.tags[tag] = self.n

    def cnt(self, tag):
        return self.n - self.tags[tag]

    def wait(self, tag):
        self.a('s_waitcnt vmcnt(%d)' % self.cnt(tag))


def vr(b, n=1):
    return 'v%d' % b if n == 1 else 'v[%d:%d]' % (b, b + n - 1)


def sr(b, n=1):
    return 's%d' % b if n == 1 else 's[%d:%d]' % (b, b + n - 1)


P_AX, P_AWQKV, P_AWPHI, P_AWO, P_BX, P_BWQKV, P_BWO, P_OUT, P_DBG, P_WS = 4, 6, 8, 10, 12, 14, 16, 18, 20, 22


def load_kernargs(a):
    a('s_load_dwordx16 s[4:19], s[0:1], 0')
    a('s_load_dwordx4 s[20:23], s[0:1], 64')


def srd(a, d, base, off, size):
    if off == 0:
        a('s_mov_b32 s%d, s%d' % (d, base))
        a('s_mov_b32 s%d, s%d' % (d + 1, base + 1))
    else:
        o = off if isinstance(off, str) else '0x%x' % off
        a('s_add_u32 s%d, s%d, %s' % (d, base, o))
        a('s_addc_u32 s%d, s%d, 0' % (d + 1, base + 1))
    a('s_mov_b32 s%d, 0x%x' % (d + 2, size))
    a('s_mov_b32 s%d, 0x00020000' % (d + 3))


def kdesc(name, vgpr, sgpr=96):
    acc = (vgpr + 3) // 4 * 4
    return '''.amdhsa_kernel %s
  .amdhsa_next_free_vgpr %d
  .amdhsa_next_free_sgpr %d
  .amdhsa_accum_offset %d
  .amdhsa_group_segment_fixed_size 0
  .amdhsa_kernarg_size 80
  .amdhsa_user_sgpr_count 2
  .amdhsa_user_sgpr_kernarg_segment_ptr 1
  .amdhsa_system_sgpr_workgroup_id_x 1
.end_amdhsa_kernel
''' % (name, vgpr, sgpr, acc)


def entry(a, name):
    a.raw('.p2align 8')
    a.raw('.globl %s' % name)
    a.raw('.type %s,@function' % name)
    a.label(name)


STAMP = False
STAMP_OFF = 0x4000000
_stamp_n = [0]
STAMP_REGS = list(range(72, 94))


def stamp(a):
    if not STAMP:
        return
    n = _stamp_n[0]
    a('s_memtime s[94:95]')
    a('s_waitcnt lgkmcnt(0)')
    a('s_mov_b32 s%d, s94' % STAMP_REGS[n])
    _stamp_n[0] += 1


def stamp_rt(a):
    if not STAMP:
        return
    n = _stamp_n[0]
    a('s_memrealtime s[94:95]')
    a('s_waitcnt lgkmcnt(0)')
    a('s_mov_b32 s%d, s94' % STAMP_REGS[n])
    _stamp_n[0] += 1


def stamp_flush(a, kid):
    if not STAMP:
        return
    a('s_getreg_b32 s%d, hwreg(HW_REG_XCC_ID)' % STAMP_REGS[_stamp_n[0]])
    n = _stamp_n[0] + 1
    _stamp_n[0] = 0
    a('s_mov_b64 exec, 1')
    a('s_add_u32 s68, s%d, 0x%x' % (P_WS, STAMP_OFF + kid * 0x100000))
    a('s_addc_u32 s69, s%d, 0' % (P_WS + 1))
    a('s_mov_b32 s70, 0x100000')
    a('s_mov_b32 s71, 0x00020000')
    a('s_lshl_b32 s94, s2, 4')
    a('s_add_u32 s94, s94, s26')
    a('s_lshl_b32 s94, s94, 7')
    a('v_mov_b32 v1, 0')
    for i in range(n):
        a('v_mov_b32 v2, s%d' % STAMP_REGS[i])
        a('buffer_store_dword v2, v1, s[68:71], s94 offen offset:%d' % (4 * i))
        a('s_nop 1')


def bf16r(a, v, tmp):
    a('v_cvt_pk_bf16_f32 %s, %s, %s' % (vr(tmp), vr(v), vr(v)))
    a('v_lshlrev_b32 %s, 16, %s' % (vr(v), vr(tmp)))


def magic(dv, maxv):
    for sh in range(4, 24):
        mul = (1 << sh) // dv + 1
        if all((x * mul) >> sh == x // dv for x in range(maxv + 1)):
            return mul, sh
    raise ValueError


def sdiv(a, dq, dr, src, dv, maxv):
    mul, sh = magic(dv, maxv)
    a('s_mul_i32 s%d, s%d, %d' % (dq, src, mul))
    a('s_lshr_b32 s%d, s%d, %d' % (dq, dq, sh))
    a('s_mul_i32 s%d, s%d, %d' % (dr, dq, dv))
    a('s_sub_u32 s%d, s%d, s%d' % (dr, src, dr))


NPREP = 460
CODEPF = int(os.environ.get('CODEPF', 1))


def gen_prep(a):
    entry(a, 'prep_kernel')
    a('s_cmp_ge_u32 s2, %d' % NPREP)
    a('s_cbranch_scc1 prep_end')
    load_kernargs(a)
    a('v_and_b32 v1, 63, v0')
    a('v_lshrrev_b32 v2, 6, v0')
    a('v_and_b32 v3, 7, v1')
    a('v_readfirstlane_b32 s24, v2')
    a('v_lshrrev_b32 v4, 3, v1')
    a('s_waitcnt lgkmcnt(0)')
    stamp(a)
    stamp_rt(a)
    if STAMP:
        a('s_mov_b32 s74, s72')
    if CODEPF:
        a('s_cmp_ge_u32 s2, 24')
        a('s_cbranch_scc1 prep_nocpf')
        a('s_getpc_b64 s[56:57]')
        a.label('prep_pc')
        a('s_lshr_b32 s58, s2, 3')
        a('s_mul_i32 s58, s58, 3')
        a('s_add_u32 s58, s58, s24')
        a('s_lshl_b32 s58, s58, 13')
        a('v_lshlrev_b32 v62, 7, v1')
        a('v_add_u32 v62, s58, v62')
        a('v_cmp_gt_u32 vcc, code_end-prep_pc-4, v62')
        a('s_and_saveexec_b64 s[58:59], vcc')
        a('s_cbranch_execz prep_cpf_skip')
        a('global_load_dword v63, v62, s[56:57]')
        a.label('prep_cpf_skip')
        a('s_mov_b64 exec, -1')
        a.label('prep_nocpf')
    a('s_cmp_ge_u32 s2, 332')
    a('s_cbranch_scc1 prep_x')
    a('s_cmp_ge_u32 s2, 308')
    a('s_cbranch_scc1 prep_zero')
    a('s_cmp_ge_u32 s2, 296')
    a('s_cbranch_scc1 prep_spec')
    a('s_cmp_ge_u32 s2, 216')
    a('s_cbranch_scc1 prep_phi')
    a('s_cmp_ge_u32 s2, 162')
    a('s_cbranch_scc1 prep_wo')
    a('s_cmp_ge_u32 s2, 81')
    a('s_cselect_b32 s32, s%d, s%d' % (P_BWQKV, P_AWQKV))
    a('s_cselect_b32 s33, s%d, s%d' % (P_BWQKV + 1, P_AWQKV + 1))
    a('s_cselect_b32 s25, 0x%x, 0' % (WQB - WQA))
    a('s_cselect_b32 s29, 0x%x, 0' % (CSB - CSA))
    a('s_cselect_b32 s26, 81, 0')
    a('s_add_u32 s29, s29, 0x%x' % CSA)
    a('s_mov_b32 s34, %d' % (576 * 3456))
    a('s_mov_b32 s35, 0x00020000')
    srd(a, 36, P_WS, 's25', WQ_SZ)
    srd(a, 52, P_WS, 's29', CS_SZ)
    a('s_sub_u32 s26, s2, s26')
    sdiv(a, 27, 28, 26, 3, 80)
    sdiv(a, 29, 30, 27, 9, 26)
    a('s_mul_i32 s31, s28, 3')
    a('s_add_u32 s31, s31, s24')
    for e in range(8):
        a('s_mov_b32 s%d, %d' % (40 + e, e * 3456))
    a('s_lshl_b32 s30, s30, 6')
    a('v_lshl_add_u32 v5, v3, 3, s30')
    a('s_lshl_b32 s48, s31, 3')
    a('v_add_u32 v6, s48, v4')
    a('v_mul_u32_u24 v7, %d, v6' % (8 * 3456))
    a('v_lshl_add_u32 v7, v5, 1, v7')
    a('s_mul_i32 s48, s29, 1152')
    a('v_add_u32 v7, s48, v7')
    for e in range(8):
        a('buffer_load_dwordx4 v[%d:%d], v7, s[32:35], s%d offen' % (16 + 4 * e, 19 + 4 * e, 40 + e))
    a('v_mov_b32 v8, 0')
    a('s_mul_i32 s62, s31, 14336')
    a('s_add_u32 s63, s62, 7168')
    a('s_lshl_b32 s48, s29, 11')
    a('s_lshl_b32 s49, s29, 6')
    a('s_add_u32 s49, s49, 5888')
    a('s_mov_b32 s50, 129024')

    def coldest(dst, rem, tgreg, t0):
        h, d, x, y = t0, t0 + 1, t0 + 2, t0 + 3
        a('v_mul_u32_u24 v%d, 3641, v%d' % (h, rem))
        a('v_lshrrev_b32 v%d, 16, v%d' % (h, h))
        a('v_mul_u32_u24 v%d, 18, v%d' % (d, h))
        a('v_sub_u32 v%d, v%d, v%d' % (d, rem, d))
        a('v_and_b32 v%d, 1, v%d' % (x, h))
        a('v_cmp_gt_u32 vcc, 16, v%d' % d)
        a('v_lshl_add_u32 v%d, v%d, 5, s49' % (y, x))
        a('v_lshl_add_u32 v%d, v%d, 10, s48' % (x, x))
        a('v_lshrrev_b32 v%d, 1, v%d' % (h, h))
        a('v_cndmask_b32 v%d, v%d, v%d, vcc' % (x, y, x))
        a('v_mul_u32_u24 v%d, s50, v%d' % (h, h))
        a('v_lshl_add_u32 v%d, v%d, 4, v%d' % (x, d, x))
        a('v_add3_u32 v%d, v%d, v%d, v%d' % (dst, x, h, tgreg))
    a('v_add_u32 v10, s30, v1')
    coldest(48, 10, 8, 11)
    a('s_mov_b32 s51, 1')
    a('s_branch prep_tr')
    a.label('prep_wo')
    a('s_cmp_ge_u32 s2, 189')
    a('s_cselect_b32 s32, s%d, s%d' % (P_BWO, P_AWO))
    a('s_cselect_b32 s33, s%d, s%d' % (P_BWO + 1, P_AWO + 1))
    a('s_cselect_b32 s25, 0x%x, 0' % (WOB - WOA))
    a('s_cselect_b32 s26, 27, 0')
    a('s_add_u32 s25, s25, 0x%x' % WOA)
    a('s_add_u32 s26, s26, 162')
    a('s_mov_b32 s34, %d' % (576 * 1152))
    a('s_mov_b32 s35, 0x00020000')
    srd(a, 36, P_WS, 's25', WO_SZ)
    srd(a, 52, P_WS, CSA, CS_SZ)
    a('s_sub_u32 s26, s2, s26')
    sdiv(a, 27, 28, 26, 3, 26)
    a('s_mul_i32 s31, s28, 3')
    a('s_add_u32 s31, s31, s24')
    a('s_lshl_b32 s48, s31, 3')
    a('v_add_u32 v6, s48, v4')
    a('s_cmp_eq_u32 s31, 8')
    a('s_cbranch_scc1 prep_b_tail')
    for e, o in enumerate([0, 1, 2, 3, 8, 9, 10, 11]):
        a('s_mov_b32 s%d, %d' % (40 + e, o * 1152))
    a('v_lshrrev_b32 v7, 1, v6')
    a('v_mul_u32_u24 v7, 18, v7')
    a('v_and_b32 v8, 1, v6')
    a('v_lshl_add_u32 v7, v8, 2, v7')
    a('s_branch prep_b_row')
    a.label('prep_b_tail')
    for e, o in enumerate([0, 1, 18, 19, 36, 37, 54, 55]):
        a('s_mov_b32 s%d, %d' % (40 + e, o * 1152))
    a('v_mul_u32_u24 v7, 72, v4')
    a('v_add_u32 v7, 16, v7')
    a.label('prep_b_row')
    a('v_mul_u32_u24 v7, 1152, v7')
    a('v_lshl_add_u32 v7, v3, 4, v7')
    a('s_lshl_b32 s30, s27, 7')
    a('v_add_u32 v7, s30, v7')
    for e in range(8):
        a('buffer_load_dwordx4 v[%d:%d], v7, s[32:35], s%d offen' % (16 + 4 * e, 19 + 4 * e, 40 + e))
    a('s_lshl_b32 s30, s27, 6')
    a('v_add_u32 v8, s30, v1')
    a('v_mul_u32_u24 v9, 911, v8')
    a('v_lshrrev_b32 v9, 16, v9')
    a('v_mul_u32_u24 v10, 72, v9')
    a('v_sub_u32 v8, v8, v10')
    a('s_mov_b32 s30, 92160')
    a('v_mul_u32_u24 v9, s30, v9')
    a('v_lshrrev_b32 v10, 4, v8')
    a('v_lshl_add_u32 v9, v10, 10, v9')
    a('v_and_b32 v8, 15, v8')
    a('v_lshl_add_u32 v48, v8, 4, v9')
    a('s_mul_i32 s62, s31, 10240')
    a('s_add_u32 s63, s62, 5120')
    a('s_mov_b32 s51, 0')
    a.label('prep_tr')
    a('s_mul_i32 s30, s24, 9216')
    a('v_mul_u32_u24 v49, 1152, v4')
    a('v_mul_u32_u24 v50, 144, v3')
    a('v_add3_u32 v49, v49, v50, s30')
    a('v_add_u32 v50, v1, v4')
    a('v_lshlrev_b32 v50, 4, v50')
    a('v_add_u32 v50, s30, v50')
    a('s_mov_b32 s30, 0x05040100')
    a('s_mov_b32 s31, 0x07060302')
    a('s_mov_b32 s26, 0x3f803f80')
    a('s_waitcnt vmcnt(0)')
    stamp(a)
    for c in range(8):
        p, o = c >> 1, c & 1
        ob = 64 + 4 * c
        for q in range(4):
            a('v_perm_b32 v%d, v%d, v%d, s%d' % (ob + q, 16 + 4 * (2 * q + 1) + p, 16 + 4 * (2 * q) + p, 30 + o))
        a('ds_write_b128 v49, v[%d:%d] offset:%d' % (ob, ob + 3, 16 * c))
    a('s_waitcnt lgkmcnt(0)')
    for kg in range(8):
        a('ds_read_b128 v[%d:%d], v50 offset:%d' % (16 + 4 * kg, 19 + 4 * kg, kg * 1152))
    for kg in range(8):
        a('s_waitcnt lgkmcnt(%d)' % (7 - kg))
        a('buffer_store_dwordx4 v[%d:%d], v48, s[36:39], s%d offen offset:%d' % (16 + 4 * kg, 19 + 4 * kg, 62 + (kg >> 2), (kg & 3) * 256))
    a('s_cmp_eq_u32 s51, 0')
    a('s_cbranch_scc1 prep_end')
    for n in range(32):
        a('v_dot2_f32_bf16 v%d, v%d, s26, %s' % (52 + (n & 3), 16 + n, '0' if n < 4 else 'v%d' % (52 + (n & 3))))
    a('v_lshlrev_b32 v10, 2, v0')
    a('s_nop 1')
    a('v_add_f32 v52, v52, v53')
    a('v_add_f32 v54, v54, v55')
    a('v_add_f32 v52, v52, v54')
    a('ds_write_b32 v10, v52 offset:27648')
    a('s_waitcnt lgkmcnt(0)')
    a('s_barrier')
    a('s_cmp_lg_u32 s24, 0')
    a('s_cbranch_scc1 prep_end')
    for i in range(3):
        a('ds_read_b32 v%d, v10 offset:%d' % (16 + i, 27648 + i * 256))
    a('s_mul_i32 s30, s29, 9')
    a('s_sub_u32 s30, s27, s30')
    a('s_lshl_b32 s30, s30, 6')
    a('s_lshl_b32 s48, s29, 9')
    a('s_lshl_b32 s49, s29, 6')
    a('s_add_u32 s49, s49, %d' % (96 * 16 - 256))
    a('s_mov_b32 s50, %d' % (3 * 448 * 4))
    a('v_add_u32 v10, s30, v1')
    a('s_mul_i32 s30, s28, %d' % (448 * 4))
    a('v_mov_b32 v8, s30')
    a('v_mul_u32_u24 v11, 3641, v10')
    a('v_lshrrev_b32 v11, 16, v11')
    a('v_mul_u32_u24 v12, 18, v11')
    a('v_sub_u32 v12, v10, v12')
    a('v_and_b32 v13, 1, v11')
    a('v_cmp_gt_u32 vcc, 16, v12')
    a('v_lshl_add_u32 v14, v13, 5, s49')
    a('v_lshl_add_u32 v13, v13, 8, s48')
    a('v_lshrrev_b32 v11, 1, v11')
    a('v_cndmask_b32 v13, v14, v13, vcc')
    a('v_mul_u32_u24 v11, s50, v11')
    a('v_lshl_add_u32 v13, v12, 4, v13')
    a('v_add3_u32 v13, v13, v11, v8')
    a('v_lshrrev_b32 v13, 2, v13')
    a('s_waitcnt lgkmcnt(0)')
    a('v_add_f32 v16, v16, v17')
    a('v_add_f32 v16, v16, v18')
    a('buffer_store_dword v16, v13, s[52:55], 0 offen')
    a('s_branch prep_end')
    a.label('prep_phi')
    srd(a, 32, P_AWPHI, 0, 32 * 324 * 2)
    srd(a, 36, P_WS, TPHI, TPHI_SZ)
    a('s_sub_u32 s26, s2, 216')
    sdiv(a, 27, 29, 26, 5, 79)
    a('s_mov_b32 s28, s24')
    a('v_and_b32 v2, 3, v1')
    a('v_bfe_u32 v3, v1, 2, 1')
    a('v_bfe_u32 v4, v1, 3, 1')
    a('v_lshrrev_b32 v5, 4, v1')
    a('v_lshlrev_b32 v6, 15, v3')
    a('v_lshl_or_b32 v6, v6, 16, v6')
    a('v_cmp_eq_u32 s[50:51], 0, v4')
    a('s_lshl_b32 s30, s29, 2')
    a('v_add_u32 v7, s30, v2')
    a('v_lshlrev_b32 v8, 2, v5')
    a('s_cmp_eq_u32 s28, 0')
    a('s_cbranch_scc1 prep_phi_d0')
    a('v_mov_b32 v8, 16')
    a.label('prep_phi_d0')
    a('s_lshl_b32 s30, s27, 1')
    a('v_add_u32 v9, s30, v4')
    a('v_mul_u32_u24 v9, 324, v9')
    a('v_mul_u32_u24 v8, 18, v8')
    a('v_add3_u32 v9, v9, v8, v7')
    a('v_lshlrev_b32 v9, 1, v9')
    a('v_mov_b32 v10, 0x7fff0000')
    a('v_cmp_gt_u32 vcc, 18, v7')
    a('s_nop 1')
    a('v_cndmask_b32 v9, v10, v9, vcc')
    a('s_cmp_eq_u32 s28, 0')
    a('s_cbranch_scc1 prep_phi_ld')
    a('s_sub_u32 s30, s28, 1')
    a('v_cmp_eq_u32 vcc, s30, v5')
    a('s_nop 1')
    a('v_cndmask_b32 v9, v10, v9, vcc')
    a.label('prep_phi_ld')
    for i in range(4):
        a('buffer_load_ushort v%d, v9, s[32:35], 0 offen offset:%d' % (16 + i, i * 36))
    a('s_waitcnt vmcnt(0)')
    a('v_lshl_or_b32 v16, v17, 16, v16')
    a('v_lshl_or_b32 v18, v19, 16, v18')
    a('v_xor_b32 v16, v16, v6')
    a('v_xor_b32 v18, v18, v6')
    a('v_cndmask_b32 v20, 0, v16, s[50:51]')
    a('s_cmp_eq_u32 s28, 0')
    a('s_cbranch_scc0 prep_phi_tb')
    a('v_cndmask_b32 v21, 0, v18, s[50:51]')
    a('v_cndmask_b32 v22, v16, 0, s[50:51]')
    a('v_cndmask_b32 v23, v18, 0, s[50:51]')
    a('s_branch prep_phi_st')
    a.label('prep_phi_tb')
    a('v_cndmask_b32 v21, v16, 0, s[50:51]')
    a('v_mov_b32 v22, 0')
    a('v_mov_b32 v23, 0')
    a.label('prep_phi_st')
    a('s_mul_i32 s30, s27, 15')
    a('s_mul_i32 s31, s28, 5')
    a('s_add_u32 s30, s30, s31')
    a('s_add_u32 s30, s30, s29')
    a('s_lshl_b32 s30, s30, 10')
    a('v_lshlrev_b32 v11, 4, v1')
    a('buffer_store_dwordx4 v[20:23], v11, s[36:39], s30 offen')
    a('s_branch prep_end')
    a.label('prep_spec')
    a('s_sub_u32 s26, s2, 296')
    a('s_cmp_ge_u32 s26, 6')
    a('s_cselect_b32 s25, 0x%x, 0' % (WQB - WQA))
    a('s_cselect_b32 s29, 0x%x, 0' % (CSB - CSA))
    a('s_cselect_b32 s27, 6, 0')
    a('s_add_u32 s29, s29, 0x%x' % CSA)
    srd(a, 36, P_WS, 's25', WQ_SZ)
    srd(a, 52, P_WS, 's29', CS_SZ)
    a('s_sub_u32 s26, s26, s27')
    a('s_mul_i32 s26, s26, 192')
    a('v_add_u32 v2, s26, v0')
    a('v_lshrrev_b32 v3, 2, v2')
    a('v_mul_u32_u24 v4, 7168, v3')
    a('v_and_b32 v5, 3, v2')
    a('v_lshl_add_u32 v4, v5, 8, v4')
    a('v_add_u32 v4, %d, v4' % (6144 + 192))
    for i in range(4):
        a('v_mov_b32 v%d, 0x3f803f80' % (8 + i))
        a('v_mov_b32 v%d, 0' % (12 + i))
    a('buffer_store_dwordx4 v[8:11], v4, s[36:39], 0 offen')
    for i in range(1, 4):
        a('buffer_store_dwordx4 v[12:15], v4, s[36:39], 0 offen offset:%d' % (16 * i))
    a('v_mul_u32_u24 v6, 448, v2')
    a('v_add_u32 v6, 432, v6')
    a('buffer_store_dwordx4 v[12:15], v6, s[52:55], 0 offen')
    a('s_branch prep_end')
    a.label('prep_zero')
    srd(a, 36, P_WS, KV1, 2 * KV_SZ)
    a('s_sub_u32 s27, s2, 308')
    a('s_mul_i32 s27, s27, 9216')
    a('v_lshlrev_b32 v2, 4, v0')
    a('v_add_u32 v2, s27, v2')
    for i in range(4):
        a('v_mov_b32 v%d, 0' % (4 + i))
    for k in range(3):
        a('s_mov_b32 s28, %d' % (k * 3072))
        a('buffer_store_dwordx4 v[4:7], v2, s[36:39], s28 offen')
    srd(a, 36, P_WS, FL, FL_SZ)
    a('s_sub_u32 s27, s2, 308')
    a('s_mul_i32 s27, s27, 3072')
    a('v_lshlrev_b32 v2, 4, v0')
    a('buffer_store_dwordx4 v[4:7], v2, s[36:39], s27 offen')
    a('s_branch prep_end')
    a.label('prep_x')
    srd(a, 32, P_AX, 0, X_SZ)
    srd(a, 36, P_WS, X0, X_SZ)
    a('s_sub_u32 s26, s2, 332')
    a('s_and_b32 s27, s26, 3')
    a('s_lshl_b32 s27, s27, 5')
    a('s_lshr_b32 s26, s26, 2')
    a('s_add_u32 s26, s26, s27')
    a('v_lshrrev_b32 v2, 2, v1')
    a('v_and_b32 v3, 3, v1')
    a('v_mul_u32_u24 v4, 1152, v2')
    a('v_lshl_add_u32 v4, v3, 4, v4')
    a('s_mul_i32 s27, s26, 18432')
    a('s_mul_i32 s28, s24, 384')
    a('s_add_u32 s28, s28, s27')
    for t in range(6):
        a('buffer_load_dwordx4 v[%d:%d], v4, s[32:35], s28 offen offset:%d' % (16 + 4 * t, 19 + 4 * t, t * 64))
    a('v_lshlrev_b32 v5, 4, v2')
    a('v_lshl_add_u32 v5, v3, 8, v5')
    a('s_mul_i32 s28, s24, 6144')
    a('v_add_u32 v5, s28, v5')
    a('v_lshlrev_b32 v6, 4, v1')
    a('v_add_u32 v7, s28, v6')
    a('s_add_u32 s28, s28, s27')
    a('s_add_u32 s29, s28, 3072')
    for t in range(6):
        a('s_waitcnt vmcnt(%d)' % (5 - t))
        a('ds_write_b128 v5, v[%d:%d] offset:%d' % (16 + 4 * t, 19 + 4 * t, t * 1024))
    a('s_waitcnt lgkmcnt(0)')
    for t in range(6):
        a('ds_read_b128 v[%d:%d], v7 offset:%d' % (40 + 4 * t, 43 + 4 * t, t * 1024))
    for t in range(6):
        a('s_waitcnt lgkmcnt(%d)' % (5 - t))
        a('buffer_store_dwordx4 v[%d:%d], v6, s[36:39], s%d offen offset:%d' % (40 + 4 * t, 43 + 4 * t, 28 + t // 3, (t % 3) * 1024))
    a.label('prep_end')
    if STAMP:
        a('s_cmp_ge_u32 s2, %d' % NPREP)
        a('s_cbranch_scc1 prep_end2')
        a('s_mov_b64 exec, -1')
        stamp(a)
        a('s_waitcnt vmcnt(0)')
        stamp(a)
        stamp_rt(a)
        a('s_mov_b32 s26, s24')
        a('s_lshr_b32 s3, s2, 8')
        a('s_lshl_b32 s3, s3, 2')
        a('s_add_u32 s26, s26, s3')
        a('s_and_b32 s2, s2, 255')
        stamp_flush(a, 5)
        a.label('prep_end2')
    a('s_endpgm')
    return [('prep_kernel', 96, 96)]


XF0 = 32
ACC0 = 104
WB0 = 168
LDS_T = 127 * 1024
LDS_PK = 32 * 1024
PK_STRIDE = 224
QDEPTH = int(os.environ.get('QDEPTH', 3))
SPREAD = int(os.environ.get('SPREAD', 1))
LSLOTS = [1, 5, 9, 13]


def XF(a_, t):
    return XF0 + (a_ * 9 + t) * 4


def ACC(a_, u):
    return ACC0 + (a_ * 8 + u) * 4


def p2(r):
    return 'v[%d:%d]' % (r, r + 1)


def softmax18(a, D, sL, tmp):
    m, s_ = tmp, tmp + 2
    a('v_max3_f32 %s, %s, %s, %s' % (vr(m), vr(D), vr(D + 1), vr(D + 2)))
    a('v_max3_f32 %s, %s, %s, %s' % (vr(m + 1), vr(D + 3), vr(D + 4), vr(D + 5)))
    for i in range(6, 18, 4):
        a('v_max3_f32 %s, %s, %s, %s' % (vr(m), vr(m), vr(D + i), vr(D + i + 1)))
        a('v_max3_f32 %s, %s, %s, %s' % (vr(m + 1), vr(m + 1), vr(D + i + 2), vr(D + i + 3)))
    a('v_max_f32 %s, %s, %s' % (vr(m), vr(m), vr(m + 1)))
    a('v_mul_f32 %s, s%d, %s' % (vr(m), sL, vr(m)))
    pf = lambda k: a('v_pk_fma_f32 %s, %s, s[%d:%d], %s op_sel_hi:[1,0,0] neg_lo:[0,0,1] neg_hi:[0,0,1]' % (p2(D + 2 * k), p2(D + 2 * k), sL, sL + 1, p2(m)))
    pf(0)
    pf(1)
    for k in range(9):
        a('v_exp_f32 %s, %s' % (vr(D + 2 * k), vr(D + 2 * k)))
        if k + 2 < 9:
            pf(k + 2)
        elif k == 7:
            a('v_pk_add_f32 %s, %s, %s' % (p2(s_), p2(s_), p2(D + 10)))
        else:
            a('v_pk_add_f32 %s, %s, %s' % (p2(s_), p2(s_), p2(D + 14)))
        a('v_exp_f32 %s, %s' % (vr(D + 2 * k + 1), vr(D + 2 * k + 1)))
        if k == 2:
            a('v_pk_add_f32 %s, %s, %s' % (p2(s_), p2(D), p2(D + 2)))
        elif 3 <= k <= 5:
            a('v_pk_add_f32 %s, %s, %s' % (p2(s_), p2(s_), p2(D + 2 * k - 2)))
        elif k == 7:
            a('v_pk_add_f32 %s, %s, %s' % (p2(s_), p2(s_), p2(D + 12)))
        elif k == 8:
            a('s_nop 0')
    a('v_pk_add_f32 %s, %s, %s' % (p2(s_), p2(s_), p2(D + 16)))
    a('v_add_f32 %s, %s, %s' % (vr(s_), vr(s_), vr(s_ + 1)))
    a('v_rcp_f32 %s, %s' % (vr(s_), vr(s_)))
    a('s_nop 0')
    for k in range(9):
        a('v_pk_mul_f32 %s, %s, %s op_sel_hi:[1,0]' % (p2(D + 2 * k), p2(D + 2 * k), p2(s_)))
    for i in range(9):
        a('v_cvt_pk_bf16_f32 %s, %s, %s' % (vr(D + i), vr(D + 2 * i), vr(D + 2 * i + 1)))


SWS, SOUT = 32, 36
F_KVC, F_OC, F_XC, F_KVF = FL, FL + 4096, FL + 12288, FL + 20480
SPIN_LIMIT = 40000
O_A = int(os.environ.get('O_A', 1))
O_B = int(os.environ.get('O_B', 1))
O_P = int(os.environ.get('O_P', 1))
WQ_PRE = int(os.environ.get('WQ_PRE', 8))
WOMAP = int(os.environ.get('WOMAP', 1))
LDS_CS = 143 * 1024
L_PHI = 0
L_KV = 32 * 1024
L_WO = 70 * 1024
L_WX = 127 * 1024
IM_P = 6144 + 64
I_K0, I_K1, I_V0, I_V1, I_VT = 0, IM_P, 2 * IM_P, 3 * IM_P, 4 * IM_P
I_KT = 5 * IM_P
I_Q0 = I_V0
I_Q1 = I_Q0 + 2048
I_QT = I_V1
IM_HEAD = I_KT + 3072
MEGA_LDS = 160 * 1024
_uid = [0]


def mstamp(a):
    if not STAMP:
        return
    a('s_memtime s[94:95]')
    a('s_waitcnt lgkmcnt(0)')
    a('s_mov_b32 s92, m0')
    a('s_mov_b32 m0, s93')
    a('s_nop 1')
    a('v_writelane_b32 v2, s94, m0')
    a('s_mov_b32 m0, s92')
    a('s_add_u32 s93, s93, 1')


def ws_ld(a, dst, n, voff, soff, imm=0, extra=''):
    a('buffer_load_dword%s %s, %s, s[%d:%d], %s offen offset:%d %s' % ('' if n == 1 else 'x%d' % n, vr(dst, n), voff, SWS, SWS + 3, soff, imm, extra))


def ws_dma(a, soff, imm=0, extra=''):
    a('buffer_load_dwordx4 v5, s[%d:%d], %s offen offset:%d %s lds' % (SWS, SWS + 3, soff, imm, extra))


def ws_st(a, src, n, voff, soff, imm=0, extra='sc1'):
    a('buffer_store_dword%s %s, %s, s[%d:%d], %s offen offset:%d %s' % ('' if n == 1 else 'x%d' % n, vr(src, n), voff, SWS, SWS + 3, soff, imm, extra))


def arrive(a, soff):
    _uid[0] += 1
    l = 'arr%d' % _uid[0]
    a('s_cmp_lg_u32 s26, 0')
    a('s_cbranch_scc1 %s' % l)
    a('v_mov_b32 v29, 0')
    a('v_mov_b32 v30, 1')
    a('s_mov_b64 exec, 1')
    a('buffer_atomic_add v30, v29, s[%d:%d], %s offen sc1' % (SWS, SWS + 3, soff))
    a('s_mov_b64 exec, -1')
    a.label(l)


def poll(a, soffs, target, skip_cond=None):
    _uid[0] += 1
    l = 'pl%d' % _uid[0]
    a('s_cmp_lg_u32 s26, 0')
    a('s_cbranch_scc1 %s_e' % l)
    if skip_cond:
        a(skip_cond)
        a('s_cbranch_scc1 %s_e' % l)
    a('v_mov_b32 v29, 0')
    a('s_mov_b64 exec, 1')
    a('s_mov_b32 s90, 0')
    n = len(soffs)
    ld = lambda base: [a('buffer_load_dword v%d, v29, s[%d:%d], %s offen sc1' % (base + q, SWS, SWS + 3, so)) for q, so in enumerate(soffs)]
    if O_P:
        a('s_waitcnt vmcnt(0)')
        ld(27)
        a.label(l)
        ld(0 if n == 1 else 30)
        a('s_waitcnt vmcnt(%d)' % n)
        if n == 2:
            a('v_min_u32 v27, v27, v28')
            a('s_nop 0')
        a('v_readfirstlane_b32 s91, v27')
        a('s_cmp_ge_u32 s91, %d' % target)
        a('s_cbranch_scc1 %s_d' % l)
        ld(27)
        a('s_waitcnt vmcnt(%d)' % n)
        if n == 2:
            a('v_min_u32 v30, v30, v31')
            a('s_nop 0')
        a('v_readfirstlane_b32 s91, v%d' % (0 if n == 1 else 30))
    else:
        a.label(l)
        ld(27)
        a('s_waitcnt vmcnt(0)')
        if n == 2:
            a('v_min_u32 v27, v27, v28')
            a('s_nop 0')
        a('v_readfirstlane_b32 s91, v27')
    a('s_add_u32 s90, s90, 1')
    a('s_cmp_ge_u32 s90, %d' % SPIN_LIMIT)
    a('s_cbranch_scc1 %s_d' % l)
    a('s_cmp_lt_u32 s91, %d' % target)
    a('s_cbranch_scc1 %s' % l)
    a.label('%s_d' % l)
    a('s_mov_b64 exec, -1')
    a.label('%s_e' % l)


def oimg_addr(a, s_rb32, s_head, s_main, s_tail, t1, t2):
    a('s_mul_i32 s%d, s10, 0x%x' % (t1, XS))
    a('s_mul_i32 s%d, s%d, 36864' % (s_tail, s_rb32))
    a('s_add_u32 s%d, s%d, s%d' % (s_tail, s_tail, t1))
    a('s_add_u32 s%d, s%d, 0x%x' % (s_tail, s_tail, OIMG))
    a('s_lshl_b32 s%d, s%d, 10' % (t1, s_head))
    a('s_and_b32 s%d, s%d, 1' % (t2, s_head))
    a('s_lshl_b32 s%d, s%d, 9' % (t2, t2))
    a('s_sub_u32 s%d, s%d, s%d' % (t1, t1, t2))
    a('s_add_u32 s%d, s%d, s%d' % (s_main, s_tail, t1))
    a('s_lshr_b32 s%d, s%d, 4' % (t1, s_head))
    a('s_lshl_b32 s%d, s%d, 11' % (t1, t1))
    a('s_add_u32 s%d, s%d, s%d' % (s_tail, s_tail, t1))
    a('s_bfe_u32 s%d, s%d, 0x20002' % (t1, s_head))
    a('s_lshl_b32 s%d, s%d, 8' % (t1, t1))
    a('s_add_u32 s%d, s%d, s%d' % (s_tail, s_tail, t1))
    a('s_and_b32 s%d, s%d, 3' % (t1, s_head))
    a('s_lshl_b32 s%d, s%d, 2' % (t1, t1))
    a('s_add_u32 s%d, s%d, s%d' % (s_tail, s_tail, t1))
    a('s_add_u32 s%d, s%d, 32768' % (s_tail, s_tail))


def o_store(a, OA, s_main, s_tail, vden, eps):
    a('v_bfe_u32 v26, v1, 4, 1')
    a('v_and_b32 v27, 15, v1')
    a('v_lshlrev_b32 v27, 4, v27')
    a('v_lshl_add_u32 v27, v26, 10, v27')
    a('v_lshrrev_b32 v26, 5, v1')
    a('v_lshl_add_u32 v28, v26, 8, v27')
    if eps:
        a('v_add_f32 v24, 0x%x, %s' % (f32bits(eps), vr(OA + 10)))
        a('v_rcp_f32 v24, v24')
    else:
        a('v_rcp_f32 v24, %s' % vr(OA + 10))
    a('s_nop 0')
    for n in range(0, 10, 2):
        a('v_pk_mul_f32 %s, %s, v[24:25] op_sel_hi:[1,0]' % (p2(OA + n), p2(OA + n)))
    for n in range(5):
        a('v_cvt_pk_bf16_f32 %s, %s, %s' % (vr(OA + n), vr(OA + 2 * n), vr(OA + 2 * n + 1)))
    ws_st(a, OA, 4, 'v28', 's%d' % s_main)
    a('s_mov_b32 exec_hi, 0')
    ws_st(a, OA + 4, 1, 'v27', 's%d' % s_tail)
    a('s_mov_b32 exec_hi, -1')


def wq_dma(a, s_kind, lo, hi):
    a('s_lshl_b32 s31, s26, 10')
    a('s_add_u32 s31, s31, %d' % (lo * 8192))
    a('s_mov_b32 m0, s31')
    a('s_mul_i32 s56, s25, 129024')
    a('s_add_u32 s31, s31, s56')
    a('s_mul_i32 s56, s%d, 0x%x' % (s_kind, WQB - WQA))
    a('s_add_u32 s31, s31, s56')
    for ii in range(lo, hi):
        if ii == 15:
            a('s_cmp_ge_u32 s26, 6')
            a('s_cselect_b32 s56, 8192, 0')
            a('s_sub_u32 m0, m0, s56')
            a('s_sub_u32 s31, s31, s56')
        ws_dma(a, 's31')
        if ii < hi - 1:
            a('s_add_u32 m0, m0, 8192')
            a('s_add_u32 s31, s31, 8192')


def wo_dma_ops(a):
    def first():
        a('s_lshl_b32 s31, s26, 10')
        a('s_add_u32 m0, s31, %d' % L_WO)
        a('s_mul_i32 s29, s13, 92160')
        a('s_add_u32 s31, s31, s29')
        a('s_mul_i32 s29, s14, 0x%x' % (WOB - WOA))
        a('s_add_u32 s31, s31, s29')
        a('s_add_u32 s31, s31, 0x%x' % WOA)
        ws_dma(a, 's31')

    def nxt():
        a('s_add_u32 m0, m0, 8192')
        a('s_add_u32 s31, s31, 8192')
        ws_dma(a, 's31')

    def last():
        a('s_cmp_lt_u32 s26, 2')
        a('s_cselect_b32 s29, 8192, 0')
        a('s_add_u32 m0, m0, s29')
        a('s_add_u32 s31, s31, s29')
        ws_dma(a, 's31')
    return [first] + [nxt] * 10 + [last]


class Sprinkle:
    def __init__(self, a, ops, n):
        self.a, self.ops, self.n, self.c = a, list(ops), n, 0

    def __call__(self, s_):
        self.a(s_)
        self.c += 1
        if self.c % self.n == 0 and self.ops:
            self.ops.pop(0)()

    def flush(self):
        while self.ops:
            self.ops.pop(0)()


OF, WV, CA = 36, 72, 16


def wfrag_reads(a):
    a('s_mul_i32 s31, s28, %d' % (9 * 5120))
    a('s_add_u32 s31, s31, %d' % L_WO)
    a('v_add_u32 v10, s31, v5')
    a('s_lshl_b32 s31, s28, 11')
    a('v_add_u32 v8, s31, v10')
    a('s_xor_b32 s31, s31, 2048')
    a('v_add_u32 v9, s31, v10')
    for t in range(9):
        for q in range(5):
            base, off = [('v8', 0), ('v8', 1024), ('v9', 0), ('v9', 1024), ('v10', 4096)][q]
            a('ds_read_b128 %s, %s offset:%d' % (vr(WV + 20 * t + 4 * q, 4), base, t * 5120 + off))


def gen_mega(a):
    entry(a, 'mega_kernel')
    a('s_cmp_ge_u32 s2, 256')
    a('s_cbranch_scc1 mega_end')
    a('s_load_dwordx2 s[18:19], s[0:1], 56')
    a('s_load_dwordx2 s[22:23], s[0:1], 72')
    a('s_and_b32 s24, s2, 3')
    a('s_lshl_b32 s12, s24, 3')
    a('s_lshl_b32 s24, s24, 2')
    a('s_bfe_u32 s25, s2, 0x20003')
    a('s_add_u32 s24, s24, s25')
    a('s_bfe_u32 s11, s2, 0x10002')
    a('s_lshl_b32 s13, s11, 2')
    a('s_add_u32 s13, s13, s25')
    a('s_lshl_b32 s25, s11, 3')
    a('s_lshr_b32 s26, s2, 5')
    a('s_add_u32 s25, s25, s26')
    a('s_add_u32 s12, s12, s26')
    if WOMAP:
        a('s_and_b32 s12, s2, 7')
        a('s_lshl_b32 s12, s12, 2')
        a('s_lshr_b32 s13, s2, 6')
        a('s_add_u32 s12, s12, s13')
        a('s_bfe_u32 s13, s2, 0x30003')
    a('v_lshrrev_b32 v2, 6, v0')
    a('v_and_b32 v1, 63, v0')
    a('v_readfirstlane_b32 s26, v2')
    a('v_lshlrev_b32 v5, 4, v1')
    a('v_mov_b32 v2, 0')
    a('s_mov_b32 s10, 0')
    a('s_mov_b32 s93, 0')
    a('s_and_b32 s27, s26, 3')
    a('s_lshr_b32 s28, s26, 2')
    a('s_waitcnt lgkmcnt(0)')
    srd(a, SWS, P_WS, 0, WS_USED)
    srd(a, SOUT, P_OUT, 0, X_SZ)
    if STAMP:
        a('s_memrealtime s[94:95]')
        a('s_memtime s[96:97]')
        a('s_waitcnt lgkmcnt(0)')
        a('v_writelane_b32 v2, s94, 62')
        a('v_writelane_b32 v2, s96, 61')
    wq_dma(a, 10, 0, 16)
    if not O_A:
        a('s_waitcnt vmcnt(0)')
        a('s_barrier')
    a.label('L_top')
    mstamp(a)
    a('s_and_b32 s14, s10, 1')
    a('s_lshl_b32 s31, s26, 11')
    a('s_add_u32 m0, s31, %d' % LDS_T)
    a('s_mul_i32 s56, s25, 15360')
    a('s_add_u32 s31, s31, s56')
    a('s_add_u32 s31, s31, 0x%x' % TPHI)
    ws_dma(a, 's31')
    ws_dma(a, 's31', 1024)
    a('s_mul_i32 s56, s25, 1344')
    a('s_mul_i32 s57, s14, 0x%x' % (CSB - CSA))
    a('s_add_u32 s56, s56, s57')
    a('s_add_u32 s56, s56, 0x%x' % CSA)
    for p in range(3):
        ws_ld(a, 224 + 4 * p, 4, 'v5', 's56', p * 448)
    a('v_and_b32 v3, 15, v1')
    a('v_lshrrev_b32 v4, 4, v1')
    a('s_lshl_b32 s29, s24, 7')
    a('s_lshl_b32 s30, s27, 5')
    a('s_add_u32 s29, s29, s30')
    a('s_lshl_b32 s30, s28, 4')
    a('s_add_u32 s29, s29, s30')
    a('v_add_u32 v6, s29, v3')
    a('s_lshr_b32 s30, s29, 4')
    a('s_xor_b32 s69, s30, 1')
    a('s_mul_i32 s30, s30, 18432')
    a('s_mul_i32 s69, s69, 18432')
    a('s_mul_i32 s31, s28, 9216')
    a('s_mul_i32 s56, s10, 0x%x' % XS)
    a('s_add_u32 s31, s31, s56')
    a('s_add_u32 s31, s31, 0x%x' % X0)
    a('s_add_u32 s30, s30, s31')
    a('s_add_u32 s69, s69, s31')

    def xloads(vm):
        for t in range(9):
            if t and t % 4 == 0:
                a('s_add_u32 s30, s30, 4096')
                a('s_add_u32 s69, s69, 4096')
            ws_ld(a, XF(0, t), 4, 'v5', 's30', (t & 3) * 1024)
            vm.issue()
            ws_ld(a, XF(1, t), 4, 'v5', 's69', (t & 3) * 1024)
            vm.issue(t)
    if O_A:
        a('s_cmp_lg_u32 s10, 0')
        a('s_cbranch_scc1 q_noearly')
        xloads(VM(a))
        a.label('q_noearly')
    a('s_mul_i32 s56, s28, %d' % (63 * 1024))
    a('v_add_u32 v10, s56, v5')
    a('v_and_b32 v11, 3, v3')
    a('v_cmp_eq_u32 s[58:59], 1, v11')
    a('v_cmp_eq_u32 s[60:61], 2, v11')
    a('v_cmp_eq_u32 s[62:63], 3, v11')
    a('v_lshrrev_b32 v11, 2, v3')
    a('v_lshl_add_u32 v11, v11, 4, v3')
    a('v_lshlrev_b32 v11, 2, v11')
    a('v_lshlrev_b32 v24, 2, v3')
    a('v_add_u32 v24, 192, v24')
    a('v_lshlrev_b32 v25, 4, v4')
    a('v_add_u32 v25, %d, v25' % LDS_CS)
    a('v_add_u32 v26, %d, v5' % LDS_CS)
    a('s_lshl_b32 s56, s27, 13')
    a('v_add_u32 v14, s56, v10')
    a('s_xor_b32 s57, s28, 1')
    a('s_mul_i32 s57, s57, %d' % (63 * 1024))
    a('s_add_u32 s57, s57, s56')
    a('v_add_u32 v15, s57, v5')
    a('s_lshl_b32 s56, s10, 4')
    a('s_add_u32 s56, s56, s24')
    a('s_lshl_b32 s56, s56, 7')
    a('s_add_u32 s56, s56, 0x%x' % (F_XC - 2048))
    a('s_waitcnt vmcnt(0)')
    for r in (0, 2):
        a('v_pk_add_f32 %s, %s, %s' % (p2(224 + r), p2(224 + r), p2(228 + r)))
    for r in (0, 2):
        a('v_pk_add_f32 %s, %s, %s' % (p2(224 + r), p2(224 + r), p2(232 + r)))
    a('s_cmp_lg_u32 s26, 1')
    a('s_cbranch_scc1 q_nocs')
    a('s_mov_b64 exec, 0xfffffff')
    a('ds_write_b128 v26, v[224:227]')
    a('s_mov_b64 exec, -1')
    a.label('q_nocs')
    mstamp(a)
    poll(a, ['s56'], 16, 's_cmp_eq_u32 s10, 0')
    a('s_waitcnt lgkmcnt(0)')
    a('s_barrier')
    mstamp(a)
    vm = VM(a)
    if O_A:
        a('s_cmp_eq_u32 s10, 0')
        a('s_cbranch_scc1 q_xdone')
    xloads(vm)
    a.label('q_xdone')
    for u in range(7):
        a('ds_read_b128 %s, v10 offset:%d' % (vr(WB0 + 4 * u, 4), u * 1024))
    for t in range(9):
        a('s_waitcnt vmcnt(%d) lgkmcnt(0)' % vm.cnt(t))
        if t == 7:
            a('s_barrier')
        if t < 8:
            fill = [(lambda u=u: a('ds_read_b128 %s, v10 offset:%d' % (vr(WB0 + 28 * ((t + 1) & 1) + 4 * u, 4), ((t + 1) * 7 + u) * 1024))) for u in range(7)]
            seq = [(a_, u, t) for u in [7, 0, 1, 2, 3, 4, 5, 6] for a_ in (0, 1)]
            if t == 7:
                seq = [(1, u, 7) for u in [7, 6, 0, 1, 2, 3, 4, 5]]
        else:
            wr = [7, 6, 0, 1, 2, 3, 4, 5]
            seq = [(1, u, 8) for u in wr] + [(0, u, 7) for u in wr] + [(0, u, 8) for u in wr]
            fill = [None] * 8
            for u in wr:
                fill += [(lambda u=u: a('ds_write_b128 v14, %s offset:%d' % (vr(ACC(1, u), 4), u * 1024))), None]
        for k, (a_, u, tt) in enumerate(seq):
            A_ = vr(XF(a_, tt), 4) if u == 7 else vr(WB0 + 28 * (tt & 1) + 4 * u, 4)
            c = '0' if tt == 0 else vr(ACC(a_, u), 4)
            a('v_mfma_f32_16x16x32_bf16 %s, %s, %s, %s' % (vr(ACC(a_, u), 4), A_, vr(XF(a_, tt), 4), c))
            if k < len(fill) and fill[k] is not None:
                fill[k]()
    mstamp(a)
    CS0 = 48
    a('s_waitcnt lgkmcnt(0)')
    a('s_barrier')
    for u in [7, 6, 0, 1, 2, 3, 4, 5]:
        a('ds_read_b128 %s, v15 offset:%d' % (vr(ACC(1, u), 4), u * 1024))
    R = lambda u, r: ACC(0, u) + r
    a('s_waitcnt lgkmcnt(6)')
    for r in (0, 2):
        a('v_pk_add_f32 %s, %s, %s' % (p2(R(7, r)), p2(R(7, r)), p2(ACC(1, 7) + r)))
        a('v_pk_add_f32 %s, %s, %s' % (p2(R(6, r)), p2(R(6, r)), p2(ACC(1, 6) + r)))
    a('v_cndmask_b32 v16, %s, %s, s[58:59]' % (vr(R(7, 0)), vr(R(7, 1))))
    a('v_cndmask_b32 v16, v16, %s, s[60:61]' % vr(R(7, 2)))
    a('v_cndmask_b32 v16, v16, %s, s[62:63]' % vr(R(7, 3)))
    a('ds_bpermute_b32 v18, v24, %s' % vr(R(6, 0)))
    a('ds_bpermute_b32 v17, v11, v16')
    for u in range(7):
        a('ds_read_b128 %s, v25 offset:%d' % (vr(CS0 + 4 * u, 4), u * 64))
    a('s_waitcnt lgkmcnt(9)')
    for u in range(6):
        for r in (0, 2):
            a('v_pk_add_f32 %s, %s, %s' % (p2(R(u, r)), p2(R(u, r)), p2(ACC(1, u) + r)))
    a('s_mov_b32 s56, 0x%x' % f32bits(1.0 / 576))
    a('s_waitcnt lgkmcnt(7)')
    a('v_mul_f32 v18, s56, v18')
    a('v_mul_f32 v17, s56, v17')
    a('v_fma_f32 v17, -v18, v18, v17')
    a('v_max_f32 v17, 0, v17')
    bf16r(a, 18, 19)
    bf16r(a, 17, 19)
    a('v_add_f32 v17, 0x%x, v17' % f32bits(1e-5))
    bf16r(a, 17, 19)
    a('v_sqrt_f32 v17, v17')
    a('s_nop 0')
    bf16r(a, 17, 19)
    a('v_rcp_f32 v16, v17')
    a('s_waitcnt lgkmcnt(0)')
    mstamp(a)
    P0 = 32

    def lnfix(u):
        for r in (0, 2):
            a('v_pk_fma_f32 %s, %s, v[18:19], %s op_sel_hi:[1,0,1] neg_lo:[0,1,0] neg_hi:[0,1,0]' % (p2(R(u, r)), p2(CS0 + 4 * u + r), p2(R(u, r))))
        for r in (0, 2):
            a('v_pk_mul_f32 %s, %s, v[16:17] op_sel_hi:[1,0]' % (p2(R(u, r)), p2(R(u, r))))
        a('v_cvt_pk_bf16_f32 %s, %s, %s' % (vr(P0 + 2 * u), vr(R(u, 0)), vr(R(u, 1))))
        a('v_cvt_pk_bf16_f32 %s, %s, %s' % (vr(P0 + 2 * u + 1), vr(R(u, 2)), vr(R(u, 3))))
    a('s_cmp_eq_u32 s14, 1')
    a('s_cbranch_scc1 B_epi')
    TA, TBQ, TBK = 168, 188, 208
    DQ, DK = 76, 136
    a('v_add_u32 v20, %d, v5' % LDS_T)
    for m in range(5):
        a('ds_read_b128 %s, v20 offset:%d' % (vr(TA + 4 * m, 4), m * 1024))
    for m in range(5):
        a('ds_read_b128 %s, v20 offset:%d' % (vr(TBK + 4 * m, 4), (10 + m) * 1024))
    for m in range(5):
        a('ds_read_b128 %s, v20 offset:%d' % (vr(TBQ + 4 * m, 4), (5 + m) * 1024))
    for u in (2, 3, 6):
        lnfix(u)
    a('v_mov_b32 %s, 0' % vr(P0 + 14))
    a('v_mov_b32 %s, 0' % vr(P0 + 15))
    a('v_and_b32 v20, 127, v6')
    a('v_mul_u32_u24 v20, %d, v20' % PK_STRIDE)
    a('v_add_u32 v20, %d, v20' % LDS_PK)
    a('v_lshl_add_u32 v21, v4, 3, v20')
    a('s_waitcnt lgkmcnt(5)')
    for m in range(5):
        a('v_mfma_f32_16x16x32_bf16 %s, %s, %s, 0' % (vr(DK + 4 * m, 4), vr(TA + 4 * m, 4), vr(P0 + 4, 4)))
    for m in range(5):
        a('v_mfma_f32_16x16x32_bf16 %s, %s, %s, %s' % (vr(DK + 4 * m, 4), vr(TBK + 4 * m, 4), vr(P0 + 12, 4), vr(DK + 4 * m, 4)))
    lnfix(4)
    lnfix(5)
    a('ds_write_b64 v21, %s offset:128' % vr(P0 + 8, 2))
    a('ds_write_b64 v21, %s offset:160' % vr(P0 + 10, 2))
    a('v_mov_b32 v12, %s' % vr(P0 + 12))
    a('v_mov_b32 v13, 0x3f80')
    a('v_mov_b32 v14, %s' % vr(P0 + 13))
    a('v_mov_b32 v15, 0x3f80')
    a('s_mov_b32 exec_lo, 0')
    a('s_mov_b32 exec_hi, 0xffff')
    a('ds_write_b128 v20, v[12:15] offset:208')
    a('s_mov_b64 exec, -1')
    a('s_mov_b32 s56, 0x%x' % f32bits(LOG2E))
    softmax18(a, DK, 56, 12)
    a('v_lshl_add_u32 v21, v4, 5, v20')
    a('v_lshl_add_u32 v24, v4, 2, v20')
    a('ds_write_b128 v21, %s' % vr(DK, 4))
    a('ds_write_b128 v21, %s offset:16' % vr(DK + 4, 4))
    a('ds_write_b32 v24, %s offset:192' % vr(DK + 8))
    a('s_lshr_b32 s64, s10, 1')
    a('s_mul_i32 s64, s64, %d' % KV_SZ)
    a('s_add_u32 s64, s64, 0x%x' % KV1)
    a('s_mul_i32 s65, s25, %d' % (2 * KV_HEAD))
    a('s_add_u32 s64, s64, s65')
    a('s_waitcnt lgkmcnt(0)')
    a('s_barrier')
    mstamp(a)
    a('s_cmp_ge_u32 s26, 6')
    a('s_cbranch_scc1 A_q')
    a('s_cmp_ge_u32 s26, 3')
    a('s_cselect_b32 s57, 1, 0')
    a('s_mul_i32 s58, s57, 3')
    a('s_sub_u32 s58, s26, s58')
    a('s_lshl_b32 s59, s57, 6')
    a('s_lshl_b32 s60, s58, 5')
    a('s_add_u32 s59, s59, s60')
    a('s_lshl_b32 s60, s57, 3')
    a('s_add_u32 s61, s60, 192')
    a('s_cmp_eq_u32 s58, 2')
    a('s_cselect_b32 s59, s61, s59')
    a('s_add_u32 s60, s60, 208')
    a('s_lshl_b32 s61, s57, 5')
    a('s_add_u32 s61, s61, 128')
    a('v_lshrrev_b32 v24, 2, v3')
    a('v_lshl_add_u32 v24, v4, 2, v24')
    a('v_mul_u32_u24 v24, %d, v24' % PK_STRIDE)
    a('v_and_b32 v25, 3, v3')
    a('v_lshl_add_u32 v24, v25, 3, v24')
    a('v_add_u32 v24, %d, v24' % LDS_PK)
    a('v_add_u32 v25, s59, v24')
    a('v_add_u32 v26, s61, v24')
    a('v_add_u32 v27, s60, v24')
    FB, FA, FT = 112, 136, 152
    for ks in range(4):
        for hf in range(2):
            off = (32 * ks + 16 * hf) * PK_STRIDE
            a('ds_read_b64_tr_b16 %s, v25 offset:%d' % (vr(FB + 4 * ks + 2 * hf, 2), off))
            a('ds_read_b64_tr_b16 %s, v26 offset:%d' % (vr(FA + 4 * ks + 2 * hf, 2), off))
            a('ds_read_b64_tr_b16 %s, v27 offset:%d' % (vr(FT + 4 * ks + 2 * hf, 2), off))
    a('s_mul_i32 s59, s57, %d' % KV_HEAD)
    a('s_mul_i32 s60, s58, 1216')
    a('s_add_u32 s59, s59, s60')
    a('s_add_u32 s59, s59, s64')
    a('v_lshlrev_b32 v28, 2, v1')
    DM, DT = 128, 132
    at = lambda r, off: a('buffer_atomic_add_f32 %s, v28, s[%d:%d], s59 offen offset:%d' % (vr(r), SWS, SWS + 3, off))
    a('s_cmp_eq_u32 s58, 2')
    a('s_cbranch_scc1 A_kvt')
    for ks in range(4):
        a('s_waitcnt lgkmcnt(%d)' % min(14, 6 * (3 - ks)))
        a('v_mfma_f32_16x16x32_bf16 %s, %s, %s, %s' % (vr(DM, 4), vr(FA + 4 * ks, 4), vr(FB + 4 * ks, 4), '0' if ks == 0 else vr(DM, 4)))
        a('v_mfma_f32_16x16x32_bf16 %s, %s, %s, %s' % (vr(DT, 4), vr(FT + 4 * ks, 4), vr(FB + 4 * ks, 4), '0' if ks == 0 else vr(DT, 4)))
    a('s_nop 7')
    for r in range(4):
        at(DM + r, r * 256)
    a('s_mov_b64 exec, 0xffff')
    for r in range(3):
        at(DT + r, 1024 + r * 64)
    a('s_mov_b64 exec, -1')
    a('s_branch A_q')
    a.label('A_kvt')
    for ks in range(4):
        a('s_waitcnt lgkmcnt(%d)' % min(14, 6 * (3 - ks)))
        a('v_mfma_f32_16x16x32_bf16 %s, %s, %s, %s' % (vr(DM, 4), vr(FB + 4 * ks, 4), vr(FA + 4 * ks, 4), '0' if ks == 0 else vr(DM, 4)))
        a('v_mfma_f32_16x16x32_bf16 %s, %s, %s, %s' % (vr(DT, 4), vr(FB + 4 * ks, 4), vr(FT + 4 * ks, 4), '0' if ks == 0 else vr(DT, 4)))
    a('s_mov_b64 exec, 0xffff')
    a('s_nop 7')
    for r in range(4):
        at(DM + r, r * 128)
    a('s_mov_b64 exec, 7')
    for r in range(4):
        at(DT + r, r * 128 + 64)
    a('s_mov_b64 exec, -1')
    a.label('A_q')
    lnfix(0)
    lnfix(1)
    a('s_nop 1')
    for m in range(5):
        a('v_mfma_f32_16x16x32_bf16 %s, %s, %s, 0' % (vr(DQ + 4 * m, 4), vr(TA + 4 * m, 4), vr(P0 + 0, 4)))
    for m in range(5):
        a('v_mfma_f32_16x16x32_bf16 %s, %s, %s, %s' % (vr(DQ + 4 * m, 4), vr(TBQ + 4 * m, 4), vr(P0 + 12, 4), vr(DQ + 4 * m, 4)))
    a('s_mul_i32 s57, s27, 4608')
    a('s_add_u32 s57, s57, %d' % L_PHI)
    a('v_lshrrev_b32 v24, 1, v4')
    a('v_mul_u32_u24 v24, 2304, v24')
    a('v_add_u32 v24, s57, v24')
    a('v_and_b32 v25, 1, v4')
    a('v_and_b32 v26, 31, v6')
    a('v_lshl_add_u32 v22, v25, 10, v24')
    a('v_lshl_add_u32 v22, v26, 4, v22')
    a('v_lshl_add_u32 v23, v26, 3, v24')
    a('v_lshl_add_u32 v23, v25, 2, v23')
    softmax18(a, DQ, 56, 12)
    a('ds_write_b128 v22, %s' % vr(DQ, 4))
    a('ds_write_b128 v22, %s offset:512' % vr(DQ + 4, 4))
    a('ds_write_b32 v23, %s offset:2048' % vr(DQ + 8))
    a('s_lshr_b32 s56, s10, 1')
    a('s_lshl_b32 s56, s56, 4')
    a('s_add_u32 s56, s56, s25')
    a('s_lshl_b32 s56, s56, 7')
    a('s_add_u32 s56, s56, 0x%x' % F_KVC)
    mstamp(a)
    a('s_waitcnt vmcnt(0) lgkmcnt(0)')
    a('s_barrier')
    mstamp(a)
    arrive(a, 's56')
    PH, ST, OC = 32, 48, 72
    a('s_lshl_b32 s57, s27, 1')
    a('s_add_u32 s57, s57, s28')
    a('s_mul_i32 s57, s57, 2304')
    a('s_add_u32 s57, s57, %d' % L_PHI)
    a('v_add_u32 v20, s57, v5')
    a('v_and_b32 v3, 31, v1')
    a('v_lshlrev_b32 v21, 3, v3')
    a('v_add_u32 v21, s57, v21')
    for r in range(8, 12):
        a('v_mov_b32 v%d, 0' % (PH + r))
    a('ds_read_b128 %s, v20' % vr(PH, 4))
    a('ds_read_b128 %s, v20 offset:1024' % vr(PH + 4, 4))
    a('s_mov_b32 exec_hi, 0')
    a('ds_read_b64 %s, v21 offset:2048' % vr(PH + 8, 2))
    a('s_mov_b32 exec_hi, -1')
    a('s_mul_i32 s58, s26, 3072')
    a('s_add_u32 s58, s58, %d' % L_KV)
    a('v_min_u32 v8, 18, v3')
    a('v_and_b32 v9, 3, v8')
    a('v_lshlrev_b32 v9, 8, v9')
    a('v_lshrrev_b32 v4, 2, v8')
    a('v_lshl_add_u32 v9, v4, 6, v9')
    a('v_lshlrev_b32 v4, 6, v8')
    a('v_cmp_gt_u32 vcc, 16, v8')
    a('v_lshlrev_b32 v8, 2, v8')
    a('v_add_u32 v8, s58, v8')
    a('v_cndmask_b32 v9, v4, v9, vcc')
    a('v_lshrrev_b32 v4, 5, v1')
    a('v_lshl_add_u32 v9, v4, 5, v9')
    a('v_add_u32 v9, s58, v9')
    a('s_lshl_b32 s59, s24, 2')
    a('s_add_u32 s59, s59, s27')
    a('s_lshl_b32 s60, s25, 1')
    a('s_add_u32 s60, s60, s28')
    oimg_addr(a, 59, 60, 66, 67, 61, 62)
    a('s_mul_i32 s57, s28, %d' % KV_HEAD)
    a('s_add_u32 s57, s57, s64')
    a('s_mov_b32 m0, s58')
    poll(a, ['s56'], 16)
    a('s_barrier')
    mstamp(a)
    for p in range(3):
        ws_dma(a, 's57', p * 1024, 'sc1')
    a('s_waitcnt vmcnt(0)')
    a('ds_read_b128 %s, v9' % vr(ST, 4))
    a('ds_read_b128 %s, v9 offset:16' % vr(ST + 4, 4))
    a('ds_read_b128 %s, v9 offset:1216' % vr(ST + 8, 4))
    a('ds_read_b128 %s, v9 offset:1232' % vr(ST + 12, 4))
    for ft in range(4):
        a('ds_read_b32 %s, v8 offset:%d' % (vr(ST + 16 + ft), 2432 + ft * 128))
    a('s_waitcnt lgkmcnt(0)')
    for n in range(10):
        a('v_cvt_pk_bf16_f32 %s, %s, %s' % (vr(ST + n), vr(ST + 2 * n), vr(ST + 2 * n + 1)))
    a('v_mov_b32 %s, 0' % vr(ST + 10))
    a('v_mov_b32 %s, 0' % vr(ST + 11))
    a('s_nop 1')
    for q_ in range(3):
        a('v_mfma_f32_32x32x16_bf16 %s, %s, %s, %s' % (vr(OC, 16), vr(ST + 4 * q_, 4), vr(PH + 4 * q_, 4), '0' if q_ == 0 else vr(OC, 16)))
    a('s_nop 6')
    o_store(a, OC, 66, 67, None, 1e-6)
    for op in wo_dma_ops(a):
        op()
    mstamp(a)
    a('s_waitcnt vmcnt(12)')
    a('s_branch O_pub')
    a.label('B_epi')
    for u in (2, 3, 4, 5, 6):
        lnfix(u)
    a('s_lshr_b32 s64, s10, 1')
    a('s_lshl_b32 s64, s64, 23')
    a('s_add_u32 s64, s64, 0x%x' % REC)
    a('s_lshl_b32 s65, s25, 19')
    a('s_add_u32 s64, s64, s65')
    a('v_lshlrev_b32 v20, 4, v6')
    a('v_and_b32 v21, 1, v4')
    a('v_lshl_add_u32 v22, v21, 18, v20')
    a('v_lshrrev_b32 v23, 1, v4')
    a('v_lshl_add_u32 v22, v23, 15, v22')
    a('v_and_b32 v24, 127, v6')
    a('v_mul_u32_u24 v25, %d, v21' % IM_HEAD)
    a('v_lshl_add_u32 v25, v24, 4, v25')
    a('v_lshl_add_u32 v26, v23, 11, v25')
    a('v_mul_u32_u24 v27, %d, v23' % IM_P)
    a('v_add_u32 v27, v27, v25')
    a('s_add_u32 s56, s64, %d' % R_K0)
    a('s_add_u32 s57, s64, %d' % R_V0)
    for typ in (1, 2):
        b0 = P0 + 4 * typ
        a('v_permlane16_swap_b32 %s, %s' % (vr(b0), vr(b0 + 2)))
        a('v_permlane16_swap_b32 %s, %s' % (vr(b0 + 1), vr(b0 + 3)))
    ws_st(a, P0 + 4, 4, 'v22', 's56')
    ws_st(a, P0 + 8, 4, 'v22', 's57')
    a('v_cmp_eq_u32 vcc, 2, v4')
    a('v_mov_b32 v28, 0x3f80')
    a('v_mov_b32 v12, %s' % vr(P0 + 12))
    a('v_cndmask_b32 v13, 0, v28, vcc')
    a('v_mov_b32 v14, %s' % vr(P0 + 13))
    a('v_mov_b32 v15, v13')
    a('v_lshlrev_b32 v28, 3, v6')
    a('v_add_u32 v28, %d, v28' % R_KT)
    a('v_add_u32 v20, %d, v20' % R_VT)
    a('v_cndmask_b32 v28, v28, v20, vcc')
    a('v_lshlrev_b32 v20, 3, v24')
    a('v_add_u32 v21, %d, v20' % I_QT)
    a('v_add_u32 v20, %d, v20' % (I_KT + 2048))
    a('v_lshlrev_b32 v23, 4, v24')
    a('v_add_u32 v23, %d, v23' % (I_VT + 4096))
    a('v_cndmask_b32 v20, v20, v23, vcc')
    a('v_cmp_eq_u32 vcc, 0, v4')
    a('s_add_u32 s57, s64, %d' % REC_HEAD)
    a('s_mov_b32 exec_lo, 0xffff0000')
    a('s_mov_b32 exec_hi, 0xffff')
    ws_st(a, 12, 2, 'v28', 's64')
    ws_st(a, 14, 2, 'v28', 's57')
    a('s_mov_b64 exec, -1')
    a('v_cndmask_b32 v20, v20, v21, vcc')
    lnfix(0)
    lnfix(1)
    a('s_barrier')
    a('s_nop 0')
    a('v_permlane16_swap_b32 %s, %s' % (vr(P0), vr(P0 + 2)))
    a('v_permlane16_swap_b32 %s, %s' % (vr(P0 + 1), vr(P0 + 3)))
    a('ds_write_b128 v26, %s offset:%d' % (vr(P0, 4), I_Q0))
    a('ds_write_b128 v27, %s offset:%d' % (vr(P0 + 4, 4), I_K0 + 4096))
    a('ds_write_b128 v27, %s offset:%d' % (vr(P0 + 8, 4), I_V0 + 4096))
    a('s_mov_b32 exec_hi, 0xffff')
    a('ds_write_b64 v20, v[12:13]')
    a('ds_write_b64 v20, v[14:15] offset:%d' % IM_HEAD)
    a('s_mov_b32 exec_hi, -1')
    a('s_lshr_b32 s48, s10, 1')
    a('s_lshl_b32 s48, s48, 4')
    a('s_add_u32 s48, s48, s25')
    a('s_lshl_b32 s48, s48, 7')
    a('s_add_u32 s48, s48, 0x%x' % F_KVF)
    a('s_lshl_b32 s49, s24, 2')
    a('s_add_u32 s49, s49, s48')
    a('s_sub_u32 s50, s49, 4')
    a('s_sub_u32 s51, s49, 8')
    a('s_max_u32 s51, s51, s48')
    a('s_lshl_b32 s56, s24, 7')
    a('s_sub_u32 s56, s56, 256')
    a('s_lshl_b32 s54, s27, 6')
    a('s_add_u32 s56, s56, s54')
    a('s_lshl_b32 s58, s28, 18')
    a('s_add_u32 s58, s58, s64')
    a('s_lshl_b32 s52, s56, 4')
    a('s_add_u32 s52, s52, s58')
    a('s_lshl_b32 s53, s56, 3')
    a('s_add_u32 s53, s53, s58')
    a('s_add_u32 s53, s53, %d' % R_KT)
    a('s_cmp_lt_i32 s56, 0')
    a('s_cselect_b32 s52, 0x40000000, s52')
    a('s_cselect_b32 s53, 0x40000000, s53')
    a('s_mul_i32 s65, s28, %d' % IM_HEAD)
    a('s_lshl_b32 s54, s27, 10')
    a('s_add_u32 s54, s54, s65')
    a('s_mov_b32 s3, s65')
    Q1, Q2 = 12, 16
    S = lambda t: 64 + 16 * t
    OA = 208
    KB = [224, 232, 240]
    MK, MB = 56, 36
    a('v_and_b32 v3, 31, v1')
    a('v_lshrrev_b32 v4, 5, v1')
    a('s_lshl_b32 s27, s27, 5')
    a('v_add_u32 v9, s27, v3')
    a('v_lshlrev_b32 v10, 4, v9')
    a('v_add_u32 v21, s65, v10')
    a('v_lshl_add_u32 v10, v4, 11, v21')
    a('v_lshlrev_b32 v20, 3, v9')
    a('v_add_u32 v20, s65, v20')
    for r in range(4):
        a('v_mov_b32 v%d, 0' % (Q2 + r))
    a('v_mul_u32_u24 v9, %d, v4' % IM_P)
    a('v_add_u32 v21, v21, v9')
    a('v_mov_b32 v8, v20')
    a('v_add_u32 v20, %d, v20' % I_KT)
    for b in KB:
        for r in range(6, 8):
            a('v_mov_b32 v%d, 0' % (b + r))
    a('v_bfe_u32 v22, v1, 2, 2')
    a('v_lshl_add_u32 v22, v4, 2, v22')
    a('v_add_u32 v22, s27, v22')
    a('v_lshlrev_b32 v22, 4, v22')
    a('v_bfe_u32 v23, v1, 1, 1')
    a('v_mul_u32_u24 v23, %d, v23' % IM_P)
    a('v_and_b32 v25, 1, v1')
    a('v_lshl_add_u32 v23, v25, 3, v23')
    a('v_and_b32 v25, 16, v1')
    a('v_cmp_eq_u32 vcc, 0, v25')
    a('v_mov_b32 v25, %d' % (I_VT - I_V0))
    a('s_add_u32 s65, s65, %d' % I_V0)
    a('v_cndmask_b32 v23, v25, v23, vcc')
    a('v_add3_u32 v22, v22, v23, s65')
    a('s_lshr_b32 s27, s27, 5')
    a('s_lshl_b32 s40, s24, 2')
    a('s_add_u32 s40, s40, s27')
    a('s_lshl_b32 s41, s25, 1')
    a('s_add_u32 s41, s41, s28')
    oimg_addr(a, 40, 41, 44, 45, 42, 43)
    a('s_sub_u32 s42, 8, s40')
    a('s_max_i32 s42, s42, 0')
    a('v_lshlrev_b32 v11, 2, v4')
    a('v_sub_u32 v11, v3, v11')
    for n in range(16):
        a('v_cmp_gt_i32 s[%d:%d], %d, v11' % (MK + 2 * n, MK + 2 * n + 1, 8 * (n >> 2) + (n & 3)))
    a('v_mov_b32 v26, 0xffff')
    a('v_mov_b32 v27, 0xffff0000')
    for n in range(8):
        a('v_cndmask_b32 v%d, 0, v26, s[%d:%d]' % (MB + n, MK + 4 * n, MK + 4 * n + 1))
        a('v_cndmask_b32 v25, 0, v27, s[%d:%d]' % (MK + 4 * n + 2, MK + 4 * n + 3))
        a('v_or_b32 v%d, v%d, v25' % (MB + n, MB + n))
    a('v_mov_b32 v24, 0xf149f2ca')
    a('s_mov_b32 s46, 0x%x' % f32bits(LOG2E * 18 ** -0.5))
    mstamp(a)
    a('s_waitcnt vmcnt(0) lgkmcnt(0)')
    a('s_barrier')
    mstamp(a)
    arrive(a, 's49')
    a('ds_read_b128 %s, v10 offset:%d' % (vr(Q1, 4), I_Q0))
    a('s_mov_b32 exec_hi, 0')
    a('ds_read_b64 %s, v8 offset:%d' % (vr(Q2, 2), I_QT))
    a('s_mov_b32 exec_hi, -1')
    poll(a, ['s50', 's51'], 1, 's_cmp_eq_u32 s24, 0')
    a('s_waitcnt lgkmcnt(0)')
    a('s_barrier')
    mstamp(a)
    for (pl, lo) in ((R_K0, I_K0), (R_K1, I_K1)):
        a('s_add_u32 m0, s54, %d' % lo)
        a('s_add_u32 s55, s52, %d' % pl)
        ws_dma(a, 's55')
    a('s_lshl_b32 s55, s27, 9')
    a('s_add_u32 s55, s55, s3')
    a('s_add_u32 m0, s55, %d' % I_KT)
    a('s_mov_b32 exec_hi, 0')
    ws_dma(a, 's53')
    a('s_mov_b32 exec_hi, -1')
    for (pl, lo) in ((R_V0, I_V0), (R_V1, I_V1), (R_VT, I_VT)):
        a('s_add_u32 m0, s54, %d' % lo)
        a('s_add_u32 s55, s52, %d' % pl)
        ws_dma(a, 's55')
    a('s_waitcnt vmcnt(0) lgkmcnt(0)')
    a('s_barrier')
    mstamp(a)

    def kread(t):
        b = KB[t % 3]
        a('ds_read_b128 %s, v21 offset:%d' % (vr(b, 4), t * 512))
        a('ds_read_b64 %s, v20 offset:%d' % (vr(b + 4, 2), t * 256))

    def tfix(t):
        a('s_cmp_le_u32 s42, %d' % t)
        a('s_cbranch_scc1 attn_ok%d' % t)
        for n in range(16):
            a('v_mov_b32 %s, v24' % vr(S(t) + n))
        a.label('attn_ok%d' % t)

    def tmax(t, half):
        if t < 1:
            return
        for n in range(8 * half, 8 * half + 8, 2):
            m = 25 + ((n >> 1) & 1)
            if t == 1 and n < 4:
                a('v_max_f32 v%d, %s, %s' % (m, vr(S(t) + n), vr(S(t) + n + 1)))
            else:
                a('v_max3_f32 v%d, v%d, %s, %s' % (m, m, vr(S(t) + n), vr(S(t) + n + 1)))
    kread(0)
    kread(1)
    for t in range(9):
        if t + 2 < 9:
            kread(t + 2)
            a('s_waitcnt lgkmcnt(4)')
        elif t + 1 < 9:
            a('s_waitcnt lgkmcnt(2)')
        else:
            a('s_waitcnt lgkmcnt(0)')
        b = KB[t % 3]
        a('v_mfma_f32_32x32x16_bf16 %s, %s, %s, 0' % (vr(S(t), 16), vr(b, 4), vr(Q1, 4)))
        if t >= 3:
            tfix(t - 3)
            tmax(t - 3, 0)
        a('v_mfma_f32_32x32x16_bf16 %s, %s, %s, %s' % (vr(S(t), 16), vr(b + 4, 4), vr(Q2, 4), vr(S(t), 16)))
        if t >= 3:
            tmax(t - 3, 1)
    for t in (6, 7):
        tfix(t)
        tmax(t, 0)
        tmax(t, 1)
    VB = [224, 232, 240, 248]
    seq = [1, 2, 3, 4, 5, 6, 7, 0, 8]

    def vread(k):
        t = seq[k]
        b = VB[k % 4]
        for ks in range(2):
            for hf in range(2):
                a('ds_read_b64_tr_b16 %s, v22 offset:%d' % (vr(b + 4 * ks + 2 * hf, 2), (32 * t + 16 * ks + 8 * hf) * 16))
    vread(0)
    vread(1)
    vread(2)
    for n in range(16):
        a('v_cndmask_b32 %s, %s, %s, s[%d:%d]' % (vr(S(0) + n), vr(S(8) + n), vr(S(0) + n), MK + 2 * n, MK + 2 * n + 1))
    for n in range(0, 16, 2):
        m = 25 + ((n >> 1) & 1)
        a('v_max3_f32 v%d, v%d, %s, %s' % (m, m, vr(S(0) + n), vr(S(0) + n + 1)))
    a('v_max_f32 v25, v25, v26')
    a('v_mov_b32 v26, v25')
    a('s_nop 1')
    a('v_permlane32_swap_b32 v25, v26')
    a('s_nop 0')
    a('v_max_f32 v25, v25, v26')
    a('v_mul_f32 v26, s46, v25')
    pf = lambda t, m: a('v_pk_fma_f32 %s, %s, s[46:47], v[26:27] op_sel_hi:[1,0,0] neg_lo:[0,0,1] neg_hi:[0,0,1]' % (p2(S(t) + 2 * m), p2(S(t) + 2 * m)))
    cv = lambda t, m: a('v_cvt_pk_bf16_f32 %s, %s, %s' % (vr(S(t) + m), vr(S(t) + 2 * m), vr(S(t) + 2 * m + 1)))
    for m in range(8):
        pf(seq[0], m)

    def pv(k, half):
        t = seq[k]
        b = VB[k % 4]
        c = '0' if (k == 0 and half == 0) else vr(OA, 16)
        a('v_mfma_f32_32x32x16_bf16 %s, %s, %s, %s' % (vr(OA, 16), vr(b + 4 * half, 4), vr(S(t) + 4 * half, 4), c))

    def split(n):
        a('v_bfi_b32 %s, v%d, 0, %s' % (vr(S(8) + n), MB + n, vr(S(0) + n)))
        a('v_and_b32 %s, v%d, %s' % (vr(S(0) + n), MB + n, vr(S(0) + n)))
    wops = wo_dma_ops(a)
    for k in range(8):
        t = seq[k]
        for m in range(8):
            if m in (2, 5) and wops:
                wops.pop(0)()
            if k == 7 and m == 0 and O_B:
                a('s_waitcnt vmcnt(0)')
                a('s_barrier')
            a('v_exp_f32 %s, %s' % (vr(S(t) + 2 * m), vr(S(t) + 2 * m)))
            if k < 7:
                pf(seq[k + 1], m)
            elif m >= 2:
                split(m - 2)
            if m == 1 and k >= 1:
                pv(k - 1, 1)
                if k + 2 < 9:
                    vread(k + 2)
            if m == 6:
                a('s_waitcnt lgkmcnt(%d)' % (4 * min(8 - k, 2)))
                pv(k, 0)
            a('v_exp_f32 %s, %s' % (vr(S(t) + 2 * m + 1), vr(S(t) + 2 * m + 1)))
            if m >= 1:
                cv(t, m - 1)
        a('s_nop 0')
        cv(t, 7)
    split(6)
    split(7)
    a('s_waitcnt lgkmcnt(0)')
    pv(8, 0)
    pv(7, 1)
    pv(8, 1)
    a('s_mov_b32 s66, s44')
    a('s_mov_b32 s67, s45')
    a('s_nop 4')
    o_store(a, OA, 66, 67, None, 0)
    if O_B:
        wfrag_reads(a)
    mstamp(a)
    a('s_waitcnt vmcnt(0)')
    a.label('O_pub')
    a('s_lshl_b32 s56, s10, 4')
    a('s_add_u32 s57, s56, s24')
    a('s_lshl_b32 s57, s57, 7')
    a('s_add_u32 s57, s57, 0x%x' % F_OC)
    a('s_lshr_b32 s58, s12, 1')
    a('s_add_u32 s58, s58, s56')
    a('s_lshl_b32 s58, s58, 7')
    a('s_add_u32 s59, s58, 0x%x' % F_XC)
    a('s_add_u32 s58, s58, 0x%x' % F_OC)
    a('s_barrier')
    mstamp(a)
    arrive(a, 's57')
    a('v_and_b32 v3, 15, v1')
    a('v_lshrrev_b32 v4, 4, v1')
    a('s_lshl_b32 s29, s12, 2')
    a('s_add_u32 s29, s29, s27')
    a('v_and_b32 v6, 1, v4')
    a('v_lshrrev_b32 v7, 1, v4')
    a('v_lshl_add_u32 v6, v6, 1, v7')
    a('v_lshlrev_b32 v6, 8, v6')
    a('v_lshl_add_u32 v6, v3, 4, v6')
    a('v_lshlrev_b32 v7, 4, v3')
    a('v_lshl_add_u32 v7, v4, 3, v7')
    a('s_mul_i32 s60, s29, 18432')
    a('s_mul_i32 s61, s13, 2304')
    a('s_add_u32 s60, s60, s61')
    a('s_mul_i32 s61, s10, 0x%x' % XS)
    a('s_add_u32 s60, s60, s61')
    a('s_add_u32 s60, s60, 0x%x' % X0)
    a('s_lshl_b32 s61, s28, 10')
    a('s_add_u32 s61, s61, s60')
    ws_ld(a, 252, 4, 'v6', 's61')
    ws_ld(a, 12, 2, 'v7', 's60', 2048)
    a('s_xor_b32 s15, s14, 1')

    a('s_lshr_b32 s30, s29, 1')
    a('s_mul_i32 s30, s30, 36864')
    a('s_and_b32 s31, s29, 1')
    a('s_lshl_b32 s31, s31, 10')
    a('s_add_u32 s30, s30, s31')
    a('s_mul_i32 s31, s28, 18432')
    a('s_add_u32 s30, s30, s31')
    a('s_mul_i32 s31, s10, 0x%x' % XS)
    a('s_add_u32 s30, s30, s31')
    a('s_add_u32 s30, s30, 0x%x' % OIMG)
    a('s_mul_i32 s31, s26, 3072')
    a('s_add_u32 s31, s31, %d' % L_WX)
    a('v_add_u32 v14, s31, v5')
    a('s_xor_b32 s31, s26, 4')
    a('s_mul_i32 s31, s31, 3072')
    a('s_add_u32 s31, s31, %d' % L_WX)
    a('v_add_u32 v15, s31, v5')
    if O_B:
        a('s_cmp_eq_u32 s14, 1')
        a('s_cbranch_scc1 W_haveW')
    a('s_waitcnt vmcnt(0)')
    a('s_barrier')
    if WQ_PRE and not O_B:
        wq_dma(a, 15, 0, WQ_PRE)
    wfrag_reads(a)
    a.label('W_haveW')
    if WQ_PRE and O_B:
        wq_dma(a, 15, 0, WQ_PRE)
    a('s_waitcnt lgkmcnt(0)')
    mstamp(a)
    poll(a, ['s58'], 16)
    a('s_barrier')
    mstamp(a)
    vm = VM(a)
    for t in range(9):
        if t and t % 2 == 0:
            a('s_add_u32 s30, s30, 4096')
        ws_ld(a, OF + 4 * t, 4, 'v5', 's30', (t & 1) * 2048)
        vm.issue(t)
    for t in range(9):
        a('s_waitcnt vmcnt(%d)' % vm.cnt(t))
        for k, q in enumerate([2, 3, 4, 0, 1]):
            a('v_mfma_f32_16x16x32_bf16 %s, %s, %s, %s' % (vr(CA + 4 * q, 4), vr(WV + 20 * t + 4 * q, 4), vr(OF + 4 * t, 4), '0' if t == 0 else vr(CA + 4 * q, 4)))
    a('s_nop 0')
    for i in range(4):
        a('v_lshlrev_b32 v%d, 16, v%d' % (40 + 2 * i, 252 + i))
        a('v_and_b32 v%d, 0xffff0000, v%d' % (41 + 2 * i, 252 + i))
    for q in (2, 3, 4):
        a('ds_write_b128 v14, %s offset:%d' % (vr(CA + 4 * q, 4), (q - 2) * 1024))
    for i in range(2):
        a('v_lshlrev_b32 v%d, 16, v%d' % (48 + 2 * i, 12 + i))
        a('v_and_b32 v%d, 0xffff0000, v%d' % (49 + 2 * i, 12 + i))
    a('s_add_u32 s60, s60, 0x%x' % XS)
    a('s_add_u32 s61, s61, 0x%x' % XS)
    a('s_waitcnt lgkmcnt(0)')
    a('s_barrier')
    for q in range(3):
        a('ds_read_b128 %s, v15 offset:%d' % (vr(64 + 4 * q, 4), q * 1024))
    a('s_waitcnt lgkmcnt(1)')
    for r in range(0, 8, 2):
        a('v_pk_add_f32 %s, %s, %s' % (p2(CA + r), p2(CA + r), p2(64 + r)))
    for i in range(4):
        a('v_cvt_pk_bf16_f32 v%d, v%d, v%d' % (80 + i, CA + 2 * i, CA + 2 * i + 1))
    a('s_waitcnt lgkmcnt(0)')
    a('v_pk_add_f32 %s, %s, %s' % (p2(CA + 16), p2(CA + 16), p2(72)))
    a('v_permlane16_swap_b32 v80, v82')
    a('v_permlane16_swap_b32 v81, v83')
    a('v_pk_add_f32 %s, %s, %s' % (p2(CA + 18), p2(CA + 18), p2(74)))
    for i in range(4):
        a('v_lshlrev_b32 v%d, 16, v%d' % (84 + 2 * i, 80 + i))
        a('v_and_b32 v%d, 0xffff0000, v%d' % (85 + 2 * i, 80 + i))
    a('v_cvt_pk_bf16_f32 v92, v%d, v%d' % (CA + 16, CA + 17))
    a('v_cvt_pk_bf16_f32 v93, v%d, v%d' % (CA + 18, CA + 19))
    for i in range(0, 8, 2):
        a('v_pk_add_f32 %s, %s, %s' % (p2(40 + i), p2(40 + i), p2(84 + i)))
    for i in range(2):
        a('v_lshlrev_b32 v%d, 16, v%d' % (94 + 2 * i, 92 + i))
        a('v_and_b32 v%d, 0xffff0000, v%d' % (95 + 2 * i, 92 + i))
    for i in range(4):
        a('v_cvt_pk_bf16_f32 v%d, v%d, v%d' % (24 + i, 40 + 2 * i, 41 + 2 * i))
    a('v_pk_add_f32 v[48:49], v[48:49], v[94:95]')
    a('v_pk_add_f32 v[50:51], v[50:51], v[96:97]')
    a('v_cvt_pk_bf16_f32 v28, v48, v49')
    a('v_cvt_pk_bf16_f32 v29, v50, v51')
    a('s_cmp_eq_u32 s10, 3')
    a('s_cbranch_scc1 W_final')
    ws_st(a, 24, 4, 'v6', 's61')
    a('s_cmp_eq_u32 s28, 0')
    a('s_cbranch_scc0 W_pub')
    a('s_mov_b32 exec_hi, 0')
    ws_st(a, 28, 2, 'v7', 's60', 2048)
    a('s_mov_b32 exec_hi, -1')
    a.label('W_pub')
    wq_dma(a, 15, WQ_PRE, 16)
    mstamp(a)
    a('s_waitcnt vmcnt(%d)' % (16 - WQ_PRE))
    a('s_barrier')
    arrive(a, 's59')
    a('s_add_u32 s10, s10, 1')
    a('s_branch L_top')
    a.label('W_final')
    a('v_mul_u32_u24 v8, 1152, v3')
    a('v_lshrrev_b32 v9, 8, v6')
    a('v_lshl_add_u32 v9, v9, 4, v8')
    a('v_lshl_add_u32 v8, v4, 3, v8')
    a('s_mul_i32 s60, s29, 18432')
    a('s_mul_i32 s61, s13, 144')
    a('s_add_u32 s60, s60, s61')
    a('s_lshl_b32 s61, s28, 6')
    a('s_add_u32 s61, s61, s60')
    a('buffer_store_dwordx4 v[24:27], v9, s[%d:%d], s61 offen' % (SOUT, SOUT + 3))
    a('s_cmp_eq_u32 s28, 0')
    a('s_cbranch_scc0 W_done')
    a('s_mov_b32 exec_hi, 0')
    a('buffer_store_dwordx2 v[28:29], v8, s[%d:%d], s60 offen offset:128' % (SOUT, SOUT + 3))
    a('s_mov_b32 exec_hi, -1')
    a.label('W_done')
    if STAMP:
        mstamp(a)
        a('s_waitcnt vmcnt(0)')
        mstamp(a)
        a('s_memrealtime s[94:95]')
        a('s_waitcnt lgkmcnt(0)')
        a('v_writelane_b32 v2, s94, 63')
        a('s_lshl_b32 s56, s2, 3')
        a('s_add_u32 s56, s56, s26')
        a('s_lshl_b32 s56, s56, 8')
        a('s_add_u32 s56, s56, 0x%x' % STAMP_OFF)
        a('v_lshlrev_b32 v3, 2, v1')
        ws_st(a, 2, 1, 'v3', 's56', 0, '')
    a.label('mega_end')
    a('s_endpgm')
    return [('mega_kernel', 256, 100)]


def build():
    a = Asm()
    ks = []
    global STAMP
    st = STAMP
    STAMP = False
    ks += gen_prep(a)
    STAMP = st
    ks += gen_mega(a)
    launches = [
        ('prep_kernel', NPREP, 192, 28416),
        ('mega_kernel', 256, 512, MEGA_LDS),
    ]
    out = []
    for (k, g, b, l) in launches:
        out.append('; @launch kernel=%s grid=(%d,1,1) block=(%d,1,1) lds=%d' % (k, g, b, l))
    out.append('.amdgcn_target "amdgcn-amd-amdhsa--gfx950"')
    out.append('.text')
    out += a.L
    out.append('code_end:')
    out.append('    s_endpgm')
    out.append('.section .rodata,"a"')
    for (k, v, s) in ks:
        out.append('.p2align 6')
        out.append(kdesc(k, v, s))
    return '\n'.join(out) + '\n'


if __name__ == '__main__':
    if len(sys.argv) > 2 and sys.argv[2] == 'stamp':
        STAMP = True
    dst = sys.argv[1] if len(sys.argv) > 1 else 'cdna_kernels/%s.s' % NAME
    open(dst, 'w').write(build())
    print('wrote', dst)
```

```python
import sys, struct, os

NAME = 'interleave_layers__linear_kernel_hedgehog__sliding_block__prompt'

WQA = 0x000000
WQB = 0x200000
WQ_SZ = 16 * 18 * 7 * 1024
WOA = 0x400000
WOB = 0x500000
WO_SZ = 8 * 18 * 5 * 1024
CSA = 0x600000
CSB = 0x608000
CS_SZ = 16 * 3 * 448
TPHI = 0x610000
TPHI_SZ = 16 * 15 * 1024
KV1 = 0x660000
KV3 = 0x660000 + 32 * 2944
KV_HEAD = 2944
KV_SZ = 32 * KV_HEAD
X1 = 0x700000
X2 = 0x940000
X3 = 0xB80000
X_SZ = 2048 * 1152
PHIQ = 0xE00000
PHIQ_SZ = 64 * 32 * 2304
REC = 0x1300000
REC_HEAD = 262144
REC_SZ = 32 * REC_HEAD
R_Q0, R_K0, R_K1, R_V0, R_V1, R_VT, R_QT, R_KT = 0, 65536, 98304, 131072, 163840, 196608, 229376, 245760
X0 = 0x2400000
XS = 0x240000
FL = 0x6A0000
FL_SZ = 0x9000
WS_USED = 0x5000000
OIMG = 0x3000000
OIMG_SZ = 64 * 36864

LOG2E = 1.4426950408889634


def f32bits(x):
    return struct.unpack('<I', struct.pack('<f', x))[0]


class Asm:
    def __init__(self):
        self.L = []

    def __call__(self, s):
        self.L.append('    ' + s)

    def label(self, l):
        self.L.append(l + ':')

    def c(self, s):
        self.L.append('    ; ' + s)

    def raw(self, s):
        self.L.append(s)


class VM:
    def __init__(self, a):
        self.a = a
        self.n = 0
        self.tags = {}

    def issue(self, tag=None):
        self.n += 1
        if tag is not None:
            self.tags[tag] = self.n

    def cnt(self, tag):
        return self.n - self.tags[tag]

    def wait(self, tag):
        self.a('s_waitcnt vmcnt(%d)' % self.cnt(tag))


def vr(b, n=1):
    return 'v%d' % b if n == 1 else 'v[%d:%d]' % (b, b + n - 1)


def sr(b, n=1):
    return 's%d' % b if n == 1 else 's[%d:%d]' % (b, b + n - 1)


P_AX, P_AWQKV, P_AWPHI, P_AWO, P_BX, P_BWQKV, P_BWO, P_OUT, P_DBG, P_WS = 4, 6, 8, 10, 12, 14, 16, 18, 20, 22


def load_kernargs(a):
    a('s_load_dwordx16 s[4:19], s[0:1], 0')
    a('s_load_dwordx4 s[20:23], s[0:1], 64')


def srd(a, d, base, off, size):
    if off == 0:
        a('s_mov_b32 s%d, s%d' % (d, base))
        a('s_mov_b32 s%d, s%d' % (d + 1, base + 1))
    else:
        o = off if isinstance(off, str) else '0x%x' % off
        a('s_add_u32 s%d, s%d, %s' % (d, base, o))
        a('s_addc_u32 s%d, s%d, 0' % (d + 1, base + 1))
    a('s_mov_b32 s%d, 0x%x' % (d + 2, size))
    a('s_mov_b32 s%d, 0x00020000' % (d + 3))


def kdesc(name, vgpr, sgpr=96):
    acc = (vgpr + 3) // 4 * 4
    return '''.amdhsa_kernel %s
  .amdhsa_next_free_vgpr %d
  .amdhsa_next_free_sgpr %d
  .amdhsa_accum_offset %d
  .amdhsa_group_segment_fixed_size 0
  .amdhsa_kernarg_size 80
  .amdhsa_user_sgpr_count 2
  .amdhsa_user_sgpr_kernarg_segment_ptr 1
  .amdhsa_system_sgpr_workgroup_id_x 1
.end_amdhsa_kernel
''' % (name, vgpr, sgpr, acc)


def entry(a, name):
    a.raw('.p2align 8')
    a.raw('.globl %s' % name)
    a.raw('.type %s,@function' % name)
    a.label(name)


STAMP = False
STAMP_OFF = 0x4000000
_stamp_n = [0]
STAMP_REGS = list(range(72, 94))


def stamp(a):
    if not STAMP:
        return
    n = _stamp_n[0]
    a('s_memtime s[94:95]')
    a('s_waitcnt lgkmcnt(0)')
    a('s_mov_b32 s%d, s94' % STAMP_REGS[n])
    _stamp_n[0] += 1


def stamp_rt(a):
    if not STAMP:
        return
    n = _stamp_n[0]
    a('s_memrealtime s[94:95]')
    a('s_waitcnt lgkmcnt(0)')
    a('s_mov_b32 s%d, s94' % STAMP_REGS[n])
    _stamp_n[0] += 1


def stamp_flush(a, kid):
    if not STAMP:
        return
    a('s_getreg_b32 s%d, hwreg(HW_REG_XCC_ID)' % STAMP_REGS[_stamp_n[0]])
    n = _stamp_n[0] + 1
    _stamp_n[0] = 0
    a('s_mov_b64 exec, 1')
    a('s_add_u32 s68, s%d, 0x%x' % (P_WS, STAMP_OFF + kid * 0x100000))
    a('s_addc_u32 s69, s%d, 0' % (P_WS + 1))
    a('s_mov_b32 s70, 0x100000')
    a('s_mov_b32 s71, 0x00020000')
    a('s_lshl_b32 s94, s2, 4')
    a('s_add_u32 s94, s94, s26')
    a('s_lshl_b32 s94, s94, 7')
    a('v_mov_b32 v1, 0')
    for i in range(n):
        a('v_mov_b32 v2, s%d' % STAMP_REGS[i])
        a('buffer_store_dword v2, v1, s[68:71], s94 offen offset:%d' % (4 * i))
        a('s_nop 1')


def bf16r(a, v, tmp):
    a('v_cvt_pk_bf16_f32 %s, %s, %s' % (vr(tmp), vr(v), vr(v)))
    a('v_lshlrev_b32 %s, 16, %s' % (vr(v), vr(tmp)))


def magic(dv, maxv):
    for sh in range(4, 24):
        mul = (1 << sh) // dv + 1
        if all((x * mul) >> sh == x // dv for x in range(maxv + 1)):
            return mul, sh
    raise ValueError


def sdiv(a, dq, dr, src, dv, maxv):
    mul, sh = magic(dv, maxv)
    a('s_mul_i32 s%d, s%d, %d' % (dq, src, mul))
    a('s_lshr_b32 s%d, s%d, %d' % (dq, dq, sh))
    a('s_mul_i32 s%d, s%d, %d' % (dr, dq, dv))
    a('s_sub_u32 s%d, s%d, s%d' % (dr, src, dr))


NPREP = 460
CODEPF = int(os.environ.get('CODEPF', 1))


def gen_prep(a):
    entry(a, 'prep_kernel')
    a('s_cmp_ge_u32 s2, %d' % NPREP)
    a('s_cbranch_scc1 prep_end')
    load_kernargs(a)
    a('v_and_b32 v1, 63, v0')
    a('v_lshrrev_b32 v2, 6, v0')
    a('v_and_b32 v3, 7, v1')
    a('v_readfirstlane_b32 s24, v2')
    a('v_lshrrev_b32 v4, 3, v1')
    a('s_waitcnt lgkmcnt(0)')
    stamp(a)
    stamp_rt(a)
    if STAMP:
        a('s_mov_b32 s74, s72')
    if CODEPF:
        a('s_cmp_ge_u32 s2, 24')
        a('s_cbranch_scc1 prep_nocpf')
        a('s_getpc_b64 s[56:57]')
        a.label('prep_pc')
        a('s_lshr_b32 s58, s2, 3')
        a('s_mul_i32 s58, s58, 3')
        a('s_add_u32 s58, s58, s24')
        a('s_lshl_b32 s58, s58, 13')
        a('v_lshlrev_b32 v62, 7, v1')
        a('v_add_u32 v62, s58, v62')
        a('v_cmp_gt_u32 vcc, code_end-prep_pc-4, v62')
        a('s_and_saveexec_b64 s[58:59], vcc')
        a('s_cbranch_execz prep_cpf_skip')
        a('global_load_dword v63, v62, s[56:57]')
        a.label('prep_cpf_skip')
        a('s_mov_b64 exec, -1')
        a.label('prep_nocpf')
    a('s_cmp_ge_u32 s2, 332')
    a('s_cbranch_scc1 prep_x')
    a('s_cmp_ge_u32 s2, 308')
    a('s_cbranch_scc1 prep_zero')
    a('s_cmp_ge_u32 s2, 296')
    a('s_cbranch_scc1 prep_spec')
    a('s_cmp_ge_u32 s2, 216')
    a('s_cbranch_scc1 prep_phi')
    a('s_cmp_ge_u32 s2, 162')
    a('s_cbranch_scc1 prep_wo')
    a('s_cmp_ge_u32 s2, 81')
    a('s_cselect_b32 s32, s%d, s%d' % (P_BWQKV, P_AWQKV))
    a('s_cselect_b32 s33, s%d, s%d' % (P_BWQKV + 1, P_AWQKV + 1))
    a('s_cselect_b32 s25, 0x%x, 0' % (WQB - WQA))
    a('s_cselect_b32 s29, 0x%x, 0' % (CSB - CSA))
    a('s_cselect_b32 s26, 81, 0')
    a('s_add_u32 s29, s29, 0x%x' % CSA)
    a('s_mov_b32 s34, %d' % (576 * 3456))
    a('s_mov_b32 s35, 0x00020000')
    srd(a, 36, P_WS, 's25', WQ_SZ)
    srd(a, 52, P_WS, 's29', CS_SZ)
    a('s_sub_u32 s26, s2, s26')
    sdiv(a, 27, 28, 26, 3, 80)
    sdiv(a, 29, 30, 27, 9, 26)
    a('s_mul_i32 s31, s28, 3')
    a('s_add_u32 s31, s31, s24')
    for e in range(8):
        a('s_mov_b32 s%d, %d' % (40 + e, e * 3456))
    a('s_lshl_b32 s30, s30, 6')
    a('v_lshl_add_u32 v5, v3, 3, s30')
    a('s_lshl_b32 s48, s31, 3')
    a('v_add_u32 v6, s48, v4')
    a('v_mul_u32_u24 v7, %d, v6' % (8 * 3456))
    a('v_lshl_add_u32 v7, v5, 1, v7')
    a('s_mul_i32 s48, s29, 1152')
    a('v_add_u32 v7, s48, v7')
    for e in range(8):
        a('buffer_load_dwordx4 v[%d:%d], v7, s[32:35], s%d offen' % (16 + 4 * e, 19 + 4 * e, 40 + e))
    a('v_mov_b32 v8, 0')
    a('s_mul_i32 s62, s31, 14336')
    a('s_add_u32 s63, s62, 7168')
    a('s_lshl_b32 s48, s29, 11')
    a('s_lshl_b32 s49, s29, 6')
    a('s_add_u32 s49, s49, 5888')
    a('s_mov_b32 s50, 129024')

    def coldest(dst, rem, tgreg, t0):
        h, d, x, y = t0, t0 + 1, t0 + 2, t0 + 3
        a('v_mul_u32_u24 v%d, 3641, v%d' % (h, rem))
        a('v_lshrrev_b32 v%d, 16, v%d' % (h, h))
        a('v_mul_u32_u24 v%d, 18, v%d' % (d, h))
        a('v_sub_u32 v%d, v%d, v%d' % (d, rem, d))
        a('v_and_b32 v%d, 1, v%d' % (x, h))
        a('v_cmp_gt_u32 vcc, 16, v%d' % d)
        a('v_lshl_add_u32 v%d, v%d, 5, s49' % (y, x))
        a('v_lshl_add_u32 v%d, v%d, 10, s48' % (x, x))
        a('v_lshrrev_b32 v%d, 1, v%d' % (h, h))
        a('v_cndmask_b32 v%d, v%d, v%d, vcc' % (x, y, x))
        a('v_mul_u32_u24 v%d, s50, v%d' % (h, h))
        a('v_lshl_add_u32 v%d, v%d, 4, v%d' % (x, d, x))
        a('v_add3_u32 v%d, v%d, v%d, v%d' % (dst, x, h, tgreg))
    a('v_add_u32 v10, s30, v1')
    coldest(48, 10, 8, 11)
    a('s_mov_b32 s51, 1')
    a('s_branch prep_tr')
    a.label('prep_wo')
    a('s_cmp_ge_u32 s2, 189')
    a('s_cselect_b32 s32, s%d, s%d' % (P_BWO, P_AWO))
    a('s_cselect_b32 s33, s%d, s%d' % (P_BWO + 1, P_AWO + 1))
    a('s_cselect_b32 s25, 0x%x, 0' % (WOB - WOA))
    a('s_cselect_b32 s26, 27, 0')
    a('s_add_u32 s25, s25, 0x%x' % WOA)
    a('s_add_u32 s26, s26, 162')
    a('s_mov_b32 s34, %d' % (576 * 1152))
    a('s_mov_b32 s35, 0x00020000')
    srd(a, 36, P_WS, 's25', WO_SZ)
    srd(a, 52, P_WS, CSA, CS_SZ)
    a('s_sub_u32 s26, s2, s26')
    sdiv(a, 27, 28, 26, 3, 26)
    a('s_mul_i32 s31, s28, 3')
    a('s_add_u32 s31, s31, s24')
    a('s_lshl_b32 s48, s31, 3')
    a('v_add_u32 v6, s48, v4')
    a('s_cmp_eq_u32 s31, 8')
    a('s_cbranch_scc1 prep_b_tail')
    for e, o in enumerate([0, 1, 2, 3, 8, 9, 10, 11]):
        a('s_mov_b32 s%d, %d' % (40 + e, o * 1152))
    a('v_lshrrev_b32 v7, 1, v6')
    a('v_mul_u32_u24 v7, 18, v7')
    a('v_and_b32 v8, 1, v6')
    a('v_lshl_add_u32 v7, v8, 2, v7')
    a('s_branch prep_b_row')
    a.label('prep_b_tail')
    for e, o in enumerate([0, 1, 18, 19, 36, 37, 54, 55]):
        a('s_mov_b32 s%d, %d' % (40 + e, o * 1152))
    a('v_mul_u32_u24 v7, 72, v4')
    a('v_add_u32 v7, 16, v7')
    a.label('prep_b_row')
    a('v_mul_u32_u24 v7, 1152, v7')
    a('v_lshl_add_u32 v7, v3, 4, v7')
    a('s_lshl_b32 s30, s27, 7')
    a('v_add_u32 v7, s30, v7')
    for e in range(8):
        a('buffer_load_dwordx4 v[%d:%d], v7, s[32:35], s%d offen' % (16 + 4 * e, 19 + 4 * e, 40 + e))
    a('s_lshl_b32 s30, s27, 6')
    a('v_add_u32 v8, s30, v1')
    a('v_mul_u32_u24 v9, 911, v8')
    a('v_lshrrev_b32 v9, 16, v9')
    a('v_mul_u32_u24 v10, 72, v9')
    a('v_sub_u32 v8, v8, v10')
    a('s_mov_b32 s30, 92160')
    a('v_mul_u32_u24 v9, s30, v9')
    a('v_lshrrev_b32 v10, 4, v8')
    a('v_lshl_add_u32 v9, v10, 10, v9')
    a('v_and_b32 v8, 15, v8')
    a('v_lshl_add_u32 v48, v8, 4, v9')
    a('s_mul_i32 s62, s31, 10240')
    a('s_add_u32 s63, s62, 5120')
    a('s_mov_b32 s51, 0')
    a.label('prep_tr')
    a('s_mul_i32 s30, s24, 9216')
    a('v_mul_u32_u24 v49, 1152, v4')
    a('v_mul_u32_u24 v50, 144, v3')
    a('v_add3_u32 v49, v49, v50, s30')
    a('v_add_u32 v50, v1, v4')
    a('v_lshlrev_b32 v50, 4, v50')
    a('v_add_u32 v50, s30, v50')
    a('s_mov_b32 s30, 0x05040100')
    a('s_mov_b32 s31, 0x07060302')
    a('s_mov_b32 s26, 0x3f803f80')
    a('s_waitcnt vmcnt(0)')
    stamp(a)
    for c in range(8):
        p, o = c >> 1, c & 1
        ob = 64 + 4 * c
        for q in range(4):
            a('v_perm_b32 v%d, v%d, v%d, s%d' % (ob + q, 16 + 4 * (2 * q + 1) + p, 16 + 4 * (2 * q) + p, 30 + o))
        a('ds_write_b128 v49, v[%d:%d] offset:%d' % (ob, ob + 3, 16 * c))
    a('s_waitcnt lgkmcnt(0)')
    for kg in range(8):
        a('ds_read_b128 v[%d:%d], v50 offset:%d' % (16 + 4 * kg, 19 + 4 * kg, kg * 1152))
    for kg in range(8):
        a('s_waitcnt lgkmcnt(%d)' % (7 - kg))
        a('buffer_store_dwordx4 v[%d:%d], v48, s[36:39], s%d offen offset:%d' % (16 + 4 * kg, 19 + 4 * kg, 62 + (kg >> 2), (kg & 3) * 256))
    a('s_cmp_eq_u32 s51, 0')
    a('s_cbranch_scc1 prep_end')
    for n in range(32):
        a('v_dot2_f32_bf16 v%d, v%d, s26, %s' % (52 + (n & 3), 16 + n, '0' if n < 4 else 'v%d' % (52 + (n & 3))))
    a('v_lshlrev_b32 v10, 2, v0')
    a('s_nop 1')
    a('v_add_f32 v52, v52, v53')
    a('v_add_f32 v54, v54, v55')
    a('v_add_f32 v52, v52, v54')
    a('ds_write_b32 v10, v52 offset:27648')
    a('s_waitcnt lgkmcnt(0)')
    a('s_barrier')
    a('s_cmp_lg_u32 s24, 0')
    a('s_cbranch_scc1 prep_end')
    for i in range(3):
        a('ds_read_b32 v%d, v10 offset:%d' % (16 + i, 27648 + i * 256))
    a('s_mul_i32 s30, s29, 9')
    a('s_sub_u32 s30, s27, s30')
    a('s_lshl_b32 s30, s30, 6')
    a('s_lshl_b32 s48, s29, 9')
    a('s_lshl_b32 s49, s29, 6')
    a('s_add_u32 s49, s49, %d' % (96 * 16 - 256))
    a('s_mov_b32 s50, %d' % (3 * 448 * 4))
    a('v_add_u32 v10, s30, v1')
    a('s_mul_i32 s30, s28, %d' % (448 * 4))
    a('v_mov_b32 v8, s30')
    a('v_mul_u32_u24 v11, 3641, v10')
    a('v_lshrrev_b32 v11, 16, v11')
    a('v_mul_u32_u24 v12, 18, v11')
    a('v_sub_u32 v12, v10, v12')
    a('v_and_b32 v13, 1, v11')
    a('v_cmp_gt_u32 vcc, 16, v12')
    a('v_lshl_add_u32 v14, v13, 5, s49')
    a('v_lshl_add_u32 v13, v13, 8, s48')
    a('v_lshrrev_b32 v11, 1, v11')
    a('v_cndmask_b32 v13, v14, v13, vcc')
    a('v_mul_u32_u24 v11, s50, v11')
    a('v_lshl_add_u32 v13, v12, 4, v13')
    a('v_add3_u32 v13, v13, v11, v8')
    a('v_lshrrev_b32 v13, 2, v13')
    a('s_waitcnt lgkmcnt(0)')
    a('v_add_f32 v16, v16, v17')
    a('v_add_f32 v16, v16, v18')
    a('buffer_store_dword v16, v13, s[52:55], 0 offen')
    a('s_branch prep_end')
    a.label('prep_phi')
    srd(a, 32, P_AWPHI, 0, 32 * 324 * 2)
    srd(a, 36, P_WS, TPHI, TPHI_SZ)
    a('s_sub_u32 s26, s2, 216')
    sdiv(a, 27, 29, 26, 5, 79)
    a('s_mov_b32 s28, s24')
    a('v_and_b32 v2, 3, v1')
    a('v_bfe_u32 v3, v1, 2, 1')
    a('v_bfe_u32 v4, v1, 3, 1')
    a('v_lshrrev_b32 v5, 4, v1')
    a('v_lshlrev_b32 v6, 15, v3')
    a('v_lshl_or_b32 v6, v6, 16, v6')
    a('v_cmp_eq_u32 s[50:51], 0, v4')
    a('s_lshl_b32 s30, s29, 2')
    a('v_add_u32 v7, s30, v2')
    a('v_lshlrev_b32 v8, 2, v5')
    a('s_cmp_eq_u32 s28, 0')
    a('s_cbranch_scc1 prep_phi_d0')
    a('v_mov_b32 v8, 16')
    a.label('prep_phi_d0')
    a('s_lshl_b32 s30, s27, 1')
    a('v_add_u32 v9, s30, v4')
    a('v_mul_u32_u24 v9, 324, v9')
    a('v_mul_u32_u24 v8, 18, v8')
    a('v_add3_u32 v9, v9, v8, v7')
    a('v_lshlrev_b32 v9, 1, v9')
    a('v_mov_b32 v10, 0x7fff0000')
    a('v_cmp_gt_u32 vcc, 18, v7')
    a('s_nop 1')
    a('v_cndmask_b32 v9, v10, v9, vcc')
    a('s_cmp_eq_u32 s28, 0')
    a('s_cbranch_scc1 prep_phi_ld')
    a('s_sub_u32 s30, s28, 1')
    a('v_cmp_eq_u32 vcc, s30, v5')
    a('s_nop 1')
    a('v_cndmask_b32 v9, v10, v9, vcc')
    a.label('prep_phi_ld')
    for i in range(4):
        a('buffer_load_ushort v%d, v9, s[32:35], 0 offen offset:%d' % (16 + i, i * 36))
    a('s_waitcnt vmcnt(0)')
    a('v_lshl_or_b32 v16, v17, 16, v16')
    a('v_lshl_or_b32 v18, v19, 16, v18')
    a('v_xor_b32 v16, v16, v6')
    a('v_xor_b32 v18, v18, v6')
    a('v_cndmask_b32 v20, 0, v16, s[50:51]')
    a('s_cmp_eq_u32 s28, 0')
    a('s_cbranch_scc0 prep_phi_tb')
    a('v_cndmask_b32 v21, 0, v18, s[50:51]')
    a('v_cndmask_b32 v22, v16, 0, s[50:51]')
    a('v_cndmask_b32 v23, v18, 0, s[50:51]')
    a('s_branch prep_phi_st')
    a.label('prep_phi_tb')
    a('v_cndmask_b32 v21, v16, 0, s[50:51]')
    a('v_mov_b32 v22, 0')
    a('v_mov_b32 v23, 0')
    a.label('prep_phi_st')
    a('s_mul_i32 s30, s27, 15')
    a('s_mul_i32 s31, s28, 5')
    a('s_add_u32 s30, s30, s31')
    a('s_add_u32 s30, s30, s29')
    a('s_lshl_b32 s30, s30, 10')
    a('v_lshlrev_b32 v11, 4, v1')
    a('buffer_store_dwordx4 v[20:23], v11, s[36:39], s30 offen')
    a('s_branch prep_end')
    a.label('prep_spec')
    a('s_sub_u32 s26, s2, 296')
    a('s_cmp_ge_u32 s26, 6')
    a('s_cselect_b32 s25, 0x%x, 0' % (WQB - WQA))
    a('s_cselect_b32 s29, 0x%x, 0' % (CSB - CSA))
    a('s_cselect_b32 s27, 6, 0')
    a('s_add_u32 s29, s29, 0x%x' % CSA)
    srd(a, 36, P_WS, 's25', WQ_SZ)
    srd(a, 52, P_WS, 's29', CS_SZ)
    a('s_sub_u32 s26, s26, s27')
    a('s_mul_i32 s26, s26, 192')
    a('v_add_u32 v2, s26, v0')
    a('v_lshrrev_b32 v3, 2, v2')
    a('v_mul_u32_u24 v4, 7168, v3')
    a('v_and_b32 v5, 3, v2')
    a('v_lshl_add_u32 v4, v5, 8, v4')
    a('v_add_u32 v4, %d, v4' % (6144 + 192))
    for i in range(4):
        a('v_mov_b32 v%d, 0x3f803f80' % (8 + i))
        a('v_mov_b32 v%d, 0' % (12 + i))
    a('buffer_store_dwordx4 v[8:11], v4, s[36:39], 0 offen')
    for i in range(1, 4):
        a('buffer_store_dwordx4 v[12:15], v4, s[36:39], 0 offen offset:%d' % (16 * i))
    a('v_mul_u32_u24 v6, 448, v2')
    a('v_add_u32 v6, 432, v6')
    a('buffer_store_dwordx4 v[12:15], v6, s[52:55], 0 offen')
    a('s_branch prep_end')
    a.label('prep_zero')
    srd(a, 36, P_WS, KV1, 2 * KV_SZ)
    a('s_sub_u32 s27, s2, 308')
    a('s_mul_i32 s27, s27, 9216')
    a('v_lshlrev_b32 v2, 4, v0')
    a('v_add_u32 v2, s27, v2')
    for i in range(4):
        a('v_mov_b32 v%d, 0' % (4 + i))
    for k in range(3):
        a('s_mov_b32 s28, %d' % (k * 3072))
        a('buffer_store_dwordx4 v[4:7], v2, s[36:39], s28 offen')
    srd(a, 36, P_WS, FL, FL_SZ)
    a('s_sub_u32 s27, s2, 308')
    a('s_mul_i32 s27, s27, 3072')
    a('v_lshlrev_b32 v2, 4, v0')
    a('buffer_store_dwordx4 v[4:7], v2, s[36:39], s27 offen')
    a('s_branch prep_end')
    a.label('prep_x')
    srd(a, 32, P_AX, 0, X_SZ)
    srd(a, 36, P_WS, X0, X_SZ)
    a('s_sub_u32 s26, s2, 332')
    a('s_and_b32 s27, s26, 3')
    a('s_lshl_b32 s27, s27, 5')
    a('s_lshr_b32 s26, s26, 2')
    a('s_add_u32 s26, s26, s27')
    a('v_lshrrev_b32 v2, 2, v1')
    a('v_and_b32 v3, 3, v1')
    a('v_mul_u32_u24 v4, 1152, v2')
    a('v_lshl_add_u32 v4, v3, 4, v4')
    a('s_mul_i32 s27, s26, 18432')
    a('s_mul_i32 s28, s24, 384')
    a('s_add_u32 s28, s28, s27')
    for t in range(6):
        a('buffer_load_dwordx4 v[%d:%d], v4, s[32:35], s28 offen offset:%d' % (16 + 4 * t, 19 + 4 * t, t * 64))
    a('v_lshlrev_b32 v5, 4, v2')
    a('v_lshl_add_u32 v5, v3, 8, v5')
    a('s_mul_i32 s28, s24, 6144')
    a('v_add_u32 v5, s28, v5')
    a('v_lshlrev_b32 v6, 4, v1')
    a('v_add_u32 v7, s28, v6')
    a('s_add_u32 s28, s28, s27')
    a('s_add_u32 s29, s28, 3072')
    for t in range(6):
        a('s_waitcnt vmcnt(%d)' % (5 - t))
        a('ds_write_b128 v5, v[%d:%d] offset:%d' % (16 + 4 * t, 19 + 4 * t, t * 1024))
    a('s_waitcnt lgkmcnt(0)')
    for t in range(6):
        a('ds_read_b128 v[%d:%d], v7 offset:%d' % (40 + 4 * t, 43 + 4 * t, t * 1024))
    for t in range(6):
        a('s_waitcnt lgkmcnt(%d)' % (5 - t))
        a('buffer_store_dwordx4 v[%d:%d], v6, s[36:39], s%d offen offset:%d' % (40 + 4 * t, 43 + 4 * t, 28 + t // 3, (t % 3) * 1024))
    a.label('prep_end')
    if STAMP:
        a('s_cmp_ge_u32 s2, %d' % NPREP)
        a('s_cbranch_scc1 prep_end2')
        a('s_mov_b64 exec, -1')
        stamp(a)
        a('s_waitcnt vmcnt(0)')
        stamp(a)
        stamp_rt(a)
        a('s_mov_b32 s26, s24')
        a('s_lshr_b32 s3, s2, 8')
        a('s_lshl_b32 s3, s3, 2')
        a('s_add_u32 s26, s26, s3')
        a('s_and_b32 s2, s2, 255')
        stamp_flush(a, 5)
        a.label('prep_end2')
    a('s_endpgm')
    return [('prep_kernel', 96, 96)]


XF0 = 32
ACC0 = 104
WB0 = 168
LDS_T = 127 * 1024
LDS_PK = 32 * 1024
PK_STRIDE = 224
QDEPTH = int(os.environ.get('QDEPTH', 3))
SPREAD = int(os.environ.get('SPREAD', 1))
LSLOTS = [1, 5, 9, 13]


def XF(a_, t):
    return XF0 + (a_ * 9 + t) * 4


def ACC(a_, u):
    return ACC0 + (a_ * 8 + u) * 4


def p2(r):
    return 'v[%d:%d]' % (r, r + 1)


def softmax18(a, D, sL, tmp):
    m, s_ = tmp, tmp + 2
    a('v_max3_f32 %s, %s, %s, %s' % (vr(m), vr(D), vr(D + 1), vr(D + 2)))
    a('v_max3_f32 %s, %s, %s, %s' % (vr(m + 1), vr(D + 3), vr(D + 4), vr(D + 5)))
    for i in range(6, 18, 4):
        a('v_max3_f32 %s, %s, %s, %s' % (vr(m), vr(m), vr(D + i), vr(D + i + 1)))
        a('v_max3_f32 %s, %s, %s, %s' % (vr(m + 1), vr(m + 1), vr(D + i + 2), vr(D + i + 3)))
    a('v_max_f32 %s, %s, %s' % (vr(m), vr(m), vr(m + 1)))
    a('v_mul_f32 %s, s%d, %s' % (vr(m), sL, vr(m)))
    pf = lambda k: a('v_pk_fma_f32 %s, %s, s[%d:%d], %s op_sel_hi:[1,0,0] neg_lo:[0,0,1] neg_hi:[0,0,1]' % (p2(D + 2 * k), p2(D + 2 * k), sL, sL + 1, p2(m)))
    pf(0)
    pf(1)
    for k in range(9):
        a('v_exp_f32 %s, %s' % (vr(D + 2 * k), vr(D + 2 * k)))
        if k + 2 < 9:
            pf(k + 2)
        elif k == 7:
            a('v_pk_add_f32 %s, %s, %s' % (p2(s_), p2(s_), p2(D + 10)))
        else:
            a('v_pk_add_f32 %s, %s, %s' % (p2(s_), p2(s_), p2(D + 14)))
        a('v_exp_f32 %s, %s' % (vr(D + 2 * k + 1), vr(D + 2 * k + 1)))
        if k == 2:
            a('v_pk_add_f32 %s, %s, %s' % (p2(s_), p2(D), p2(D + 2)))
        elif 3 <= k <= 5:
            a('v_pk_add_f32 %s, %s, %s' % (p2(s_), p2(s_), p2(D + 2 * k - 2)))
        elif k == 7:
            a('v_pk_add_f32 %s, %s, %s' % (p2(s_), p2(s_), p2(D + 12)))
        elif k == 8:
            a('s_nop 0')
    a('v_pk_add_f32 %s, %s, %s' % (p2(s_), p2(s_), p2(D + 16)))
    a('v_add_f32 %s, %s, %s' % (vr(s_), vr(s_), vr(s_ + 1)))
    a('v_rcp_f32 %s, %s' % (vr(s_), vr(s_)))
    a('s_nop 0')
    for k in range(9):
        a('v_pk_mul_f32 %s, %s, %s op_sel_hi:[1,0]' % (p2(D + 2 * k), p2(D + 2 * k), p2(s_)))
    for i in range(9):
        a('v_cvt_pk_bf16_f32 %s, %s, %s' % (vr(D + i), vr(D + 2 * i), vr(D + 2 * i + 1)))


SWS, SOUT = 32, 36
F_KVC, F_OC, F_XC, F_KVF = FL, FL + 4096, FL + 12288, FL + 20480
SPIN_LIMIT = 40000
PFN = int(os.environ.get('PFN', 4))
LOCAL = int(os.environ.get('LOCAL', 0))
F_OW, F_XW, F_GRP = FL + 24576, FL + 28672, FL + 32768
XD = int(os.environ.get('XD', 3))
OD = int(os.environ.get('OD', 4))
PT = int(os.environ.get('PT', 0))
O_A = int(os.environ.get('O_A', 0))
O_B = int(os.environ.get('O_B', 1))
O_P = int(os.environ.get('O_P', 0))
WQ_PRE = int(os.environ.get('WQ_PRE', 8))
WOMAP = int(os.environ.get('WOMAP', 1))
LDS_CS = 143 * 1024
L_PHI = 0
L_KV = 32 * 1024
L_WO = 70 * 1024
L_WX = 127 * 1024
IM_P = 6144 + 64
I_K0, I_K1, I_V0, I_V1, I_VT = 0, IM_P, 2 * IM_P, 3 * IM_P, 4 * IM_P
I_KT = 5 * IM_P
I_Q0 = I_V0
I_Q1 = I_Q0 + 2048
I_QT = I_V1
IM_HEAD = I_KT + 3072
MEGA_LDS = 160 * 1024
_uid = [0]


FINE = int(os.environ.get('FINE', 0))


def mstamp(a, fine=False):
    if not STAMP or (FINE and not fine) or (fine == 2 and not FINE):
        return
    a('s_memtime s[94:95]')
    a('s_waitcnt lgkmcnt(0)')
    a('s_mov_b32 s92, m0')
    a('s_mov_b32 m0, s93')
    a('s_nop 1')
    a('v_writelane_b32 v2, s94, m0')
    a('s_mov_b32 m0, s92')
    a('s_add_u32 s93, s93, 1')


def ws_ld(a, dst, n, voff, soff, imm=0, extra=''):
    a('buffer_load_dword%s %s, %s, s[%d:%d], %s offen offset:%d %s' % ('' if n == 1 else 'x%d' % n, vr(dst, n), voff, SWS, SWS + 3, soff, imm, extra))


def ws_dma(a, soff, imm=0, extra=''):
    a('buffer_load_dwordx4 v5, s[%d:%d], %s offen offset:%d %s lds' % (SWS, SWS + 3, soff, imm, extra))


def ws_st(a, src, n, voff, soff, imm=0, extra='sc1'):
    a('buffer_store_dword%s %s, %s, s[%d:%d], %s offen offset:%d %s' % ('' if n == 1 else 'x%d' % n, vr(src, n), voff, SWS, SWS + 3, soff, imm, extra))


def arrive(a, soff):
    _uid[0] += 1
    l = 'arr%d' % _uid[0]
    a('s_cmp_lg_u32 s26, 0')
    a('s_cbranch_scc1 %s' % l)
    a('v_mov_b32 v29, 0')
    a('v_mov_b32 v30, 1')
    a('s_mov_b64 exec, 1')
    a('buffer_atomic_add v30, v29, s[%d:%d], %s offen sc1' % (SWS, SWS + 3, soff))
    a('s_mov_b64 exec, -1')
    a.label(l)


def poll(a, soffs, target, skip_cond=None):
    _uid[0] += 1
    l = 'pl%d' % _uid[0]
    a('s_cmp_lg_u32 s26, 0')
    a('s_cbranch_scc1 %s_e' % l)
    if skip_cond:
        a(skip_cond)
        a('s_cbranch_scc1 %s_e' % l)
    a('v_mov_b32 v29, 0')
    a('s_mov_b64 exec, 1')
    a('s_mov_b32 s90, 0')
    n = len(soffs)
    ld = lambda base: [a('buffer_load_dword v%d, v29, s[%d:%d], %s offen sc1' % (base + q, SWS, SWS + 3, so)) for q, so in enumerate(soffs)]
    if O_P:
        a('s_waitcnt vmcnt(0)')
        ld(27)
        a.label(l)
        ld(0 if n == 1 else 30)
        a('s_waitcnt vmcnt(%d)' % n)
        if n == 2:
            a('v_min_u32 v27, v27, v28')
            a('s_nop 0')
        a('v_readfirstlane_b32 s91, v27')
        a('s_cmp_ge_u32 s91, %d' % target)
        a('s_cbranch_scc1 %s_d' % l)
        ld(27)
        a('s_waitcnt vmcnt(%d)' % n)
        if n == 2:
            a('v_min_u32 v30, v30, v31')
            a('s_nop 0')
        a('v_readfirstlane_b32 s91, v%d' % (0 if n == 1 else 30))
    else:
        a.label(l)
        ld(27)
        a('s_waitcnt vmcnt(0)')
        if n == 2:
            a('v_min_u32 v27, v27, v28')
            a('s_nop 0')
        a('v_readfirstlane_b32 s91, v27')
    a('s_add_u32 s90, s90, 1')
    a('s_cmp_ge_u32 s90, %d' % SPIN_LIMIT)
    a('s_cbranch_scc1 %s_d' % l)
    a('s_cmp_lt_u32 s91, %d' % target)
    a('s_cbranch_scc1 %s' % l)
    a.label('%s_d' % l)
    a('s_mov_b64 exec, -1')
    a.label('%s_e' % l)


def st_mode(a, emit):
    _uid[0] += 1
    l = 'sm%d' % _uid[0]
    a('s_cmp_eq_u32 s16, 1')
    a('s_cbranch_scc1 %s_l' % l)
    emit('sc1')
    a('s_branch %s_e' % l)
    a.label('%s_l' % l)
    emit('')
    a.label('%s_e' % l)


def arrive2(a, s_cnt, s_word, s_me):
    _uid[0] += 1
    l = 'ar%d' % _uid[0]
    a('s_cmp_lg_u32 s26, 0')
    a('s_cbranch_scc1 %s_e' % l)
    a('v_mov_b32 v30, 1')
    a('s_mov_b64 exec, 1')
    a('s_cmp_eq_u32 s16, 1')
    a('s_cbranch_scc1 %s_l' % l)
    a('v_mov_b32 v29, 0')
    a('buffer_atomic_add v30, v29, s[%d:%d], %s offen sc1' % (SWS, SWS + 3, s_cnt))
    a('s_branch %s_x' % l)
    a.label('%s_l' % l)
    a('s_lshl_b32 s90, %s, 2' % s_me)
    a('v_mov_b32 v29, s90')
    a('buffer_store_dword v30, v29, s[%d:%d], %s offen' % (SWS, SWS + 3, s_word))
    a.label('%s_x' % l)
    a('s_mov_b64 exec, -1')
    a.label('%s_e' % l)


def poll2(a, s_cnt, s_word, skip_cond=None):
    _uid[0] += 1
    l = 'pw%d' % _uid[0]
    a('s_cmp_eq_u32 s16, 1')
    a('s_cbranch_scc1 %s_l' % l)
    poll(a, [s_cnt], 16, skip_cond)
    a('s_branch %s_e' % l)
    a.label('%s_l' % l)
    a('s_cmp_lg_u32 s26, 0')
    a('s_cbranch_scc1 %s_e' % l)
    if skip_cond:
        a(skip_cond)
        a('s_cbranch_scc1 %s_e' % l)
    a('v_lshlrev_b32 v29, 2, v1')
    a('s_mov_b64 exec, 0xffff')
    a('s_mov_b32 s90, 0')
    a.label(l)
    a('buffer_load_dword v27, v29, s[%d:%d], %s offen sc1' % (SWS, SWS + 3, s_word))
    a('s_waitcnt vmcnt(0)')
    a('v_cmp_eq_u32 vcc, 1, v27')
    a('s_add_u32 s90, s90, 1')
    a('s_cmp_ge_u32 s90, %d' % SPIN_LIMIT)
    a('s_cbranch_scc1 %s_d' % l)
    a('s_cmp_lg_u32 vcc_lo, 0xffff')
    a('s_cbranch_scc1 %s' % l)
    a.label('%s_d' % l)
    a('s_mov_b64 exec, -1')
    a.label('%s_e' % l)


def oimg_addr(a, s_rb32, s_head, s_main, s_tail, t1, t2):
    a('s_mul_i32 s%d, s10, 0x%x' % (t1, XS))
    a('s_mul_i32 s%d, s%d, 36864' % (s_tail, s_rb32))
    a('s_add_u32 s%d, s%d, s%d' % (s_tail, s_tail, t1))
    a('s_add_u32 s%d, s%d, 0x%x' % (s_tail, s_tail, OIMG))
    a('s_lshl_b32 s%d, s%d, 10' % (t1, s_head))
    a('s_and_b32 s%d, s%d, 1' % (t2, s_head))
    a('s_lshl_b32 s%d, s%d, 9' % (t2, t2))
    a('s_sub_u32 s%d, s%d, s%d' % (t1, t1, t2))
    a('s_add_u32 s%d, s%d, s%d' % (s_main, s_tail, t1))
    a('s_lshr_b32 s%d, s%d, 4' % (t1, s_head))
    a('s_lshl_b32 s%d, s%d, 11' % (t1, t1))
    a('s_add_u32 s%d, s%d, s%d' % (s_tail, s_tail, t1))
    a('s_bfe_u32 s%d, s%d, 0x20002' % (t1, s_head))
    a('s_lshl_b32 s%d, s%d, 8' % (t1, t1))
    a('s_add_u32 s%d, s%d, s%d' % (s_tail, s_tail, t1))
    a('s_and_b32 s%d, s%d, 3' % (t1, s_head))
    a('s_lshl_b32 s%d, s%d, 2' % (t1, t1))
    a('s_add_u32 s%d, s%d, s%d' % (s_tail, s_tail, t1))
    a('s_add_u32 s%d, s%d, 32768' % (s_tail, s_tail))


def o_store(a, OA, s_main, s_tail, vden, eps):
    a('v_bfe_u32 v26, v1, 4, 1')
    a('v_and_b32 v27, 15, v1')
    a('v_lshlrev_b32 v27, 4, v27')
    a('v_lshl_add_u32 v27, v26, 10, v27')
    a('v_lshrrev_b32 v26, 5, v1')
    a('v_lshl_add_u32 v28, v26, 8, v27')
    if eps:
        a('v_add_f32 v24, 0x%x, %s' % (f32bits(eps), vr(OA + 10)))
        a('v_rcp_f32 v24, v24')
    else:
        a('v_rcp_f32 v24, %s' % vr(OA + 10))
    a('s_nop 0')
    for n in range(0, 10, 2):
        a('v_pk_mul_f32 %s, %s, v[24:25] op_sel_hi:[1,0]' % (p2(OA + n), p2(OA + n)))
    for n in range(5):
        a('v_cvt_pk_bf16_f32 %s, %s, %s' % (vr(OA + n), vr(OA + 2 * n), vr(OA + 2 * n + 1)))

    def emit(fl):
        ws_st(a, OA, 4, 'v28', 's%d' % s_main, 0, fl)
        a('s_mov_b32 exec_hi, 0')
        ws_st(a, OA + 4, 1, 'v27', 's%d' % s_tail, 0, fl)
        a('s_mov_b32 exec_hi, -1')
    st_mode(a, emit)


def wq_dma(a, s_kind, lo, hi):
    a('s_lshl_b32 s31, s26, 10')
    a('s_add_u32 s31, s31, %d' % (lo * 8192))
    a('s_mov_b32 m0, s31')
    a('s_mul_i32 s56, s25, 129024')
    a('s_add_u32 s31, s31, s56')
    a('s_mul_i32 s56, s%d, 0x%x' % (s_kind, WQB - WQA))
    a('s_add_u32 s31, s31, s56')
    for ii in range(lo, hi):
        if ii == 15:
            a('s_cmp_ge_u32 s26, 6')
            a('s_cselect_b32 s56, 8192, 0')
            a('s_sub_u32 m0, m0, s56')
            a('s_sub_u32 s31, s31, s56')
        ws_dma(a, 's31')
        if ii < hi - 1:
            a('s_add_u32 m0, m0, 8192')
            a('s_add_u32 s31, s31, 8192')


def wo_dma_ops(a):
    def first():
        a('s_lshl_b32 s31, s26, 10')
        a('s_add_u32 m0, s31, %d' % L_WO)
        a('s_mul_i32 s29, s13, 92160')
        a('s_add_u32 s31, s31, s29')
        a('s_mul_i32 s29, s14, 0x%x' % (WOB - WOA))
        a('s_add_u32 s31, s31, s29')
        a('s_add_u32 s31, s31, 0x%x' % WOA)
        ws_dma(a, 's31')

    def nxt():
        a('s_add_u32 m0, m0, 8192')
        a('s_add_u32 s31, s31, 8192')
        ws_dma(a, 's31')

    def last():
        a('s_cmp_lt_u32 s26, 2')
        a('s_cselect_b32 s29, 8192, 0')
        a('s_add_u32 m0, m0, s29')
        a('s_add_u32 s31, s31, s29')
        ws_dma(a, 's31')
    return [first] + [nxt] * 10 + [last]


def wq_pf_ops(a, n):
    per = 64 // n

    def first():
        a('s_lshr_b32 s4, s2, 3')
        a('s_lshl_b32 s4, s4, 3')
        a('s_add_u32 s4, s4, s26')
        a('s_lshl_b32 s4, s4, 13')
        a('s_xor_b32 s5, s14, 1')
        a('s_mul_i32 s5, s5, 0x%x' % (WQB - WQA))
        a('s_add_u32 s4, s4, s5')
        a('v_lshlrev_b32 v7, 7, v1')
        nxt0()

    def nxt0():
        a('s_mov_b64 exec, 0x%x' % ((1 << per) - 1))
        ws_ld(a, 0, 1, 'v7', 's4', 0, 'sc1')
        a('s_mov_b64 exec, -1')

    def nxt():
        a('s_add_u32 s4, s4, %d' % (per * 128))
        nxt0()
    return [first] + [nxt] * (n - 1)


class Sprinkle:
    def __init__(self, a, ops, n):
        self.a, self.ops, self.n, self.c = a, list(ops), n, 0

    def __call__(self, s_):
        self.a(s_)
        self.c += 1
        if self.c % self.n == 0 and self.ops:
            self.ops.pop(0)()

    def flush(self):
        while self.ops:
            self.ops.pop(0)()


OF, WV, CA = 36, 72, 16


def wfrag_reads(a):
    a('s_mul_i32 s31, s28, %d' % (9 * 5120))
    a('s_add_u32 s31, s31, %d' % L_WO)
    a('v_add_u32 v10, s31, v5')
    a('s_lshl_b32 s31, s28, 11')
    a('v_add_u32 v8, s31, v10')
    a('s_xor_b32 s31, s31, 2048')
    a('v_add_u32 v9, s31, v10')
    for t in range(9):
        for q in range(5):
            base, off = [('v8', 0), ('v8', 1024), ('v9', 0), ('v9', 1024), ('v10', 4096)][q]
            a('ds_read_b128 %s, %s offset:%d' % (vr(WV + 20 * t + 4 * q, 4), base, t * 5120 + off))


def gen_mega(a):
    entry(a, 'mega_kernel')
    a('s_cmp_ge_u32 s2, 256')
    a('s_cbranch_scc1 mega_end')
    a('s_load_dwordx2 s[18:19], s[0:1], 56')
    a('s_load_dwordx2 s[22:23], s[0:1], 72')
    a('s_and_b32 s24, s2, 3')
    a('s_lshl_b32 s12, s24, 3')
    a('s_lshl_b32 s24, s24, 2')
    a('s_bfe_u32 s25, s2, 0x20003')
    a('s_add_u32 s24, s24, s25')
    a('s_bfe_u32 s11, s2, 0x10002')
    a('s_lshl_b32 s13, s11, 2')
    a('s_add_u32 s13, s13, s25')
    a('s_lshl_b32 s25, s11, 3')
    a('s_lshr_b32 s26, s2, 5')
    a('s_add_u32 s25, s25, s26')
    a('s_add_u32 s12, s12, s26')
    if WOMAP:
        a('s_and_b32 s12, s2, 7')
        a('s_lshl_b32 s12, s12, 2')
        a('s_lshr_b32 s13, s2, 6')
        a('s_add_u32 s12, s12, s13')
        a('s_bfe_u32 s13, s2, 0x30003')
    a('v_lshrrev_b32 v2, 6, v0')
    a('v_and_b32 v1, 63, v0')
    a('v_readfirstlane_b32 s26, v2')
    a('v_lshlrev_b32 v5, 4, v1')
    a('v_mov_b32 v2, 0')
    a('s_mov_b32 s10, 0')
    a('s_mov_b32 s93, 0')
    a('s_and_b32 s27, s26, 3')
    a('s_lshr_b32 s28, s26, 2')
    a('s_waitcnt lgkmcnt(0)')
    srd(a, SWS, P_WS, 0, WS_USED)
    srd(a, SOUT, P_OUT, 0, X_SZ)
    a('s_mov_b32 s16, 0')
    a('s_mov_b32 s17, 0')
    a('s_and_b32 s9, s2, 7')
    a('s_lshl_b32 s9, s9, 7')
    a('s_add_u32 s9, s9, 0x%x' % F_GRP)
    if LOCAL:
        a('s_getreg_b32 s56, hwreg(HW_REG_XCC_ID)')
        a('s_and_b32 s56, s56, 7')
        a('s_lshl_b32 s56, s56, 2')
        a('s_add_u32 s56, s56, s9')
        arrive(a, 's56')
    if STAMP:
        a('s_memrealtime s[94:95]')
        a('s_memtime s[96:97]')
        a('s_waitcnt lgkmcnt(0)')
        a('v_writelane_b32 v2, s94, 62')
        a('v_writelane_b32 v2, s96, 61')
    wq_dma(a, 10, 0, 16)
    if not O_A:
        a('s_waitcnt vmcnt(0)')
        a('s_barrier')
    a.label('L_top')
    mstamp(a, True)
    a('s_and_b32 s14, s10, 1')
    a('s_lshl_b32 s31, s26, 11')
    a('s_add_u32 m0, s31, %d' % LDS_T)
    a('s_mul_i32 s56, s25, 15360')
    a('s_add_u32 s31, s31, s56')
    a('s_add_u32 s31, s31, 0x%x' % TPHI)
    a('s_cmp_eq_u32 s14, 1')
    a('s_cbranch_scc1 q_noTd')
    ws_dma(a, 's31')
    ws_dma(a, 's31', 1024)
    a.label('q_noTd')
    a('s_mul_i32 s56, s25, 1344')
    a('s_mul_i32 s57, s14, 0x%x' % (CSB - CSA))
    a('s_add_u32 s56, s56, s57')
    a('s_add_u32 s56, s56, 0x%x' % CSA)
    for p in range(3):
        ws_ld(a, 224 + 4 * p, 4, 'v5', 's56', p * 448)
    a('v_and_b32 v3, 15, v1')
    a('v_lshrrev_b32 v4, 4, v1')
    a('s_lshl_b32 s29, s24, 7')
    a('s_lshl_b32 s30, s27, 5')
    a('s_add_u32 s29, s29, s30')
    a('s_lshl_b32 s30, s28, 4')
    a('s_add_u32 s29, s29, s30')
    a('v_add_u32 v6, s29, v3')
    a('s_lshr_b32 s30, s29, 4')
    a('s_xor_b32 s69, s30, 1')
    a('s_mul_i32 s30, s30, 18432')
    a('s_mul_i32 s69, s69, 18432')
    a('s_mul_i32 s31, s28, 9216')
    a('s_mul_i32 s56, s10, 0x%x' % XS)
    a('s_add_u32 s31, s31, s56')
    a('s_add_u32 s31, s31, 0x%x' % X0)
    a('s_add_u32 s30, s30, s31')
    a('s_add_u32 s69, s69, s31')

    def xloads(vm):
        for t in range(9):
            if t and t % 4 == 0:
                a('s_add_u32 s30, s30, 4096')
                a('s_add_u32 s69, s69, 4096')
            ws_ld(a, XF(0, t), 4, 'v5', 's30', (t & 3) * 1024)
            vm.issue()
            ws_ld(a, XF(1, t), 4, 'v5', 's69', (t & 3) * 1024)
            vm.issue(t)
    if O_A:
        a('s_cmp_lg_u32 s10, 0')
        a('s_cbranch_scc1 q_noearly')
        xloads(VM(a))
        a.label('q_noearly')
    a('s_mul_i32 s56, s28, %d' % (63 * 1024))
    a('v_add_u32 v10, s56, v5')
    a('v_and_b32 v11, 3, v3')
    a('v_cmp_eq_u32 s[58:59], 1, v11')
    a('v_cmp_eq_u32 s[60:61], 2, v11')
    a('v_cmp_eq_u32 s[62:63], 3, v11')
    a('v_lshrrev_b32 v11, 2, v3')
    a('v_lshl_add_u32 v11, v11, 4, v3')
    a('v_lshlrev_b32 v11, 2, v11')
    a('v_lshlrev_b32 v24, 2, v3')
    a('v_add_u32 v24, 192, v24')
    a('v_lshlrev_b32 v25, 4, v4')
    a('v_add_u32 v25, %d, v25' % LDS_CS)
    a('v_add_u32 v26, %d, v5' % LDS_CS)
    a('s_lshl_b32 s56, s27, 13')
    a('v_add_u32 v14, s56, v10')
    a('s_xor_b32 s57, s28, 1')
    a('s_mul_i32 s57, s57, %d' % (63 * 1024))
    a('s_add_u32 s57, s57, s56')
    a('v_add_u32 v15, s57, v5')
    a('s_lshl_b32 s56, s10, 4')
    a('s_add_u32 s56, s56, s24')
    a('s_lshl_b32 s56, s56, 7')
    a('s_lshr_b32 s57, s56, 1')
    a('s_add_u32 s57, s57, 0x%x' % (F_XW - 1024))
    a('s_add_u32 s56, s56, 0x%x' % (F_XC - 2048))
    a('s_waitcnt vmcnt(0)')
    for r in (0, 2):
        a('v_pk_add_f32 %s, %s, %s' % (p2(224 + r), p2(224 + r), p2(228 + r)))
    for r in (0, 2):
        a('v_pk_add_f32 %s, %s, %s' % (p2(224 + r), p2(224 + r), p2(232 + r)))
    a('s_cmp_lg_u32 s26, 1')
    a('s_cbranch_scc1 q_nocs')
    a('s_mov_b64 exec, 0xfffffff')
    a('ds_write_b128 v26, v[224:227]')
    a('s_mov_b64 exec, -1')
    a.label('q_nocs')
    mstamp(a)
    poll2(a, 's56', 's57', 's_cmp_eq_u32 s10, 0')
    a('s_waitcnt lgkmcnt(0)')
    a('s_barrier')
    mstamp(a, True)
    vm = VM(a)

    def xl(t, which):
        if which == 0:
            if t and t % 4 == 0:
                a('s_add_u32 s30, s30, 4096')
                a('s_add_u32 s69, s69, 4096')
            ws_ld(a, XF(0, t), 4, 'v5', 's30', (t & 3) * 1024)
            vm.issue()
        else:
            ws_ld(a, XF(1, t), 4, 'v5', 's69', (t & 3) * 1024)
            vm.issue(t)
    for t in range(XD):
        xl(t, 0)
        xl(t, 1)

    def aux1():
        a('s_lshr_b32 s56, s2, 3')
        a('s_lshl_b32 s56, s56, 3')
        a('s_add_u32 s56, s56, s26')
        a('s_lshl_b32 s56, s56, 13')
        a('s_xor_b32 s57, s14, 1')
        a('s_mul_i32 s57, s57, 0x%x' % (WQB - WQA))
        a('s_add_u32 s56, s56, s57')
        a('v_lshlrev_b32 v7, 7, v1')
        ws_ld(a, 0, 1, 'v7', 's56', 0, 'sc1')
        vm.issue()

    def aux2():
        a('s_lshl_b32 s56, s24, 2')
        a('s_add_u32 s56, s56, s27')
        a('s_mul_i32 s56, s56, 36864')
        a('s_mul_i32 s57, s10, 0x%x' % XS)
        a('s_add_u32 s56, s56, s57')
        a('s_add_u32 s56, s56, 0x%x' % OIMG)
        a('s_lshl_b32 s57, s25, 11')
        a('v_lshlrev_b32 v7, 7, v1')
        a('v_add_u32 v8, s57, v7')
        a('s_lshr_b32 s57, s25, 3')
        a('s_lshl_b32 s57, s57, 11')
        a('s_bfe_u32 s29, s25, 0x20001')
        a('s_lshl_b32 s29, s29, 8')
        a('s_add_u32 s57, s57, s29')
        a('s_add_u32 s57, s57, 32768')
        a('v_bfe_u32 v9, v1, 1, 1')
        a('v_lshlrev_b32 v9, 10, v9')
        a('v_and_b32 v12, 1, v1')
        a('v_lshl_add_u32 v9, v12, 7, v9')
        a('v_cmp_gt_u32 vcc, 16, v1')
        a('v_add_u32 v9, s57, v9')
        a('s_cmp_eq_u32 s28, 0')
        a('s_cselect_b32 s56, s56, 0x40000000')
        a('v_cndmask_b32 v8, v9, v8, vcc')
        a('s_mov_b64 exec, 0xfffff')
        ws_ld(a, 0, 1, 'v8', 's56', 0, 'sc1')
        a('s_mov_b64 exec, -1')
        vm.issue()
    for u in range(7):
        a('ds_read_b128 %s, v10 offset:%d' % (vr(WB0 + 4 * u, 4), u * 1024))
    for t in range(9):
        if t == 0:
            mstamp(a, 2)
        a('s_waitcnt vmcnt(%d) lgkmcnt(0)' % vm.cnt(t))
        if t in (0, 4):
            mstamp(a, 2)
        if t == 7:
            a('s_barrier')
        if t < 8:
            fill = [(lambda u=u: a('ds_read_b128 %s, v10 offset:%d' % (vr(WB0 + 28 * ((t + 1) & 1) + 4 * u, 4), ((t + 1) * 7 + u) * 1024))) for u in range(7)]
            if t + XD < 9:
                fill += [lambda: xl(t + XD, 0), None, None, None, lambda: xl(t + XD, 1)]
            elif t + XD == 9 and LOCAL:
                fill += [aux2]
            seq = [(a_, u, t) for u in [7, 0, 1, 2, 3, 4, 5, 6] for a_ in (0, 1)]
            if t == 7:
                seq = [(1, u, 7) for u in [7, 6, 0, 1, 2, 3, 4, 5]]
        else:
            wr = [7, 6, 0, 1, 2, 3, 4, 5]
            seq = [(1, u, 8) for u in wr] + [(0, u, 7) for u in wr] + [(0, u, 8) for u in wr]
            fill = [None] * 8
            for u in wr:
                fill += [(lambda u=u: a('ds_write_b128 v14, %s offset:%d' % (vr(ACC(1, u), 4), u * 1024))), None]
        for k, (a_, u, tt) in enumerate(seq):
            A_ = vr(XF(a_, tt), 4) if u == 7 else vr(WB0 + 28 * (tt & 1) + 4 * u, 4)
            c = '0' if tt == 0 else vr(ACC(a_, u), 4)
            a('v_mfma_f32_16x16x32_bf16 %s, %s, %s, %s' % (vr(ACC(a_, u), 4), A_, vr(XF(a_, tt), 4), c))
            if k < len(fill) and fill[k] is not None:
                fill[k]()
    mstamp(a, True)
    CS0 = 48
    a('s_waitcnt lgkmcnt(0)')
    a('s_barrier')
    for u in [7, 6, 0, 1, 2, 3, 4, 5]:
        a('ds_read_b128 %s, v15 offset:%d' % (vr(ACC(1, u), 4), u * 1024))
    R = lambda u, r: ACC(0, u) + r
    a('s_waitcnt lgkmcnt(6)')
    for r in (0, 2):
        a('v_pk_add_f32 %s, %s, %s' % (p2(R(7, r)), p2(R(7, r)), p2(ACC(1, 7) + r)))
        a('v_pk_add_f32 %s, %s, %s' % (p2(R(6, r)), p2(R(6, r)), p2(ACC(1, 6) + r)))
    a('v_cndmask_b32 v16, %s, %s, s[58:59]' % (vr(R(7, 0)), vr(R(7, 1))))
    a('v_cndmask_b32 v16, v16, %s, s[60:61]' % vr(R(7, 2)))
    a('v_cndmask_b32 v16, v16, %s, s[62:63]' % vr(R(7, 3)))
    a('ds_bpermute_b32 v18, v24, %s' % vr(R(6, 0)))
    a('ds_bpermute_b32 v17, v11, v16')
    for u in range(7):
        a('ds_read_b128 %s, v25 offset:%d' % (vr(CS0 + 4 * u, 4), u * 64))
    a('s_waitcnt lgkmcnt(9)')
    for u in range(6):
        for r in (0, 2):
            a('v_pk_add_f32 %s, %s, %s' % (p2(R(u, r)), p2(R(u, r)), p2(ACC(1, u) + r)))
    a('s_mov_b32 s56, 0x%x' % f32bits(1.0 / 576))
    a('s_waitcnt lgkmcnt(7)')
    TA, TBQ, TBK = 168, 188, 208
    a('s_cmp_eq_u32 s14, 1')
    a('s_cbranch_scc1 q_noT')
    a('v_add_u32 v20, %d, v5' % LDS_T)
    for m in range(5):
        a('ds_read_b128 %s, v20 offset:%d' % (vr(TA + 4 * m, 4), m * 1024))
    for m in range(5):
        a('ds_read_b128 %s, v20 offset:%d' % (vr(TBK + 4 * m, 4), (10 + m) * 1024))
    for m in range(5):
        a('ds_read_b128 %s, v20 offset:%d' % (vr(TBQ + 4 * m, 4), (5 + m) * 1024))
    a.label('q_noT')
    a('v_mul_f32 v18, s56, v18')
    a('v_mul_f32 v17, s56, v17')
    a('v_fma_f32 v17, -v18, v18, v17')
    a('v_max_f32 v17, 0, v17')
    bf16r(a, 18, 19)
    bf16r(a, 17, 19)
    a('v_add_f32 v17, 0x%x, v17' % f32bits(1e-5))
    bf16r(a, 17, 19)
    a('v_sqrt_f32 v17, v17')
    a('s_nop 0')
    bf16r(a, 17, 19)
    a('v_rcp_f32 v16, v17')
    a('s_waitcnt lgkmcnt(0)')
    mstamp(a)
    P0 = 32

    def lnfix(u):
        for r in (0, 2):
            a('v_pk_fma_f32 %s, %s, v[18:19], %s op_sel_hi:[1,0,1] neg_lo:[0,1,0] neg_hi:[0,1,0]' % (p2(R(u, r)), p2(CS0 + 4 * u + r), p2(R(u, r))))
        for r in (0, 2):
            a('v_pk_mul_f32 %s, %s, v[16:17] op_sel_hi:[1,0]' % (p2(R(u, r)), p2(R(u, r))))
        a('v_cvt_pk_bf16_f32 %s, %s, %s' % (vr(P0 + 2 * u), vr(R(u, 0)), vr(R(u, 1))))
        a('v_cvt_pk_bf16_f32 %s, %s, %s' % (vr(P0 + 2 * u + 1), vr(R(u, 2)), vr(R(u, 3))))
    a('s_cmp_eq_u32 s10, 0')
    a('s_cselect_b32 s16, 0, s17')
    a('s_cmp_eq_u32 s14, 1')
    a('s_cbranch_scc1 B_epi')
    TA, TBQ, TBK = 168, 188, 208
    DQ, DK = 76, 136
    a('s_barrier')
    for u in (2, 3, 6):
        lnfix(u)
    a('v_mov_b32 %s, 0' % vr(P0 + 14))
    a('v_mov_b32 %s, 0' % vr(P0 + 15))
    a('v_and_b32 v20, 127, v6')
    a('v_mul_u32_u24 v20, %d, v20' % PK_STRIDE)
    a('v_add_u32 v20, %d, v20' % LDS_PK)
    a('v_lshl_add_u32 v21, v4, 3, v20')
    for m in range(5):
        a('v_mfma_f32_16x16x32_bf16 %s, %s, %s, 0' % (vr(DK + 4 * m, 4), vr(TA + 4 * m, 4), vr(P0 + 4, 4)))
    for m in range(5):
        a('v_mfma_f32_16x16x32_bf16 %s, %s, %s, %s' % (vr(DK + 4 * m, 4), vr(TBK + 4 * m, 4), vr(P0 + 12, 4), vr(DK + 4 * m, 4)))
    lnfix(4)
    lnfix(5)
    a('ds_write_b64 v21, %s offset:128' % vr(P0 + 8, 2))
    a('ds_write_b64 v21, %s offset:160' % vr(P0 + 10, 2))
    a('v_mov_b32 v12, %s' % vr(P0 + 12))
    a('v_mov_b32 v13, 0x3f80')
    a('v_mov_b32 v14, %s' % vr(P0 + 13))
    a('v_mov_b32 v15, 0x3f80')
    a('s_mov_b32 exec_lo, 0')
    a('s_mov_b32 exec_hi, 0xffff')
    a('ds_write_b128 v20, v[12:15] offset:208')
    a('s_mov_b64 exec, -1')
    a('s_mov_b32 s56, 0x%x' % f32bits(LOG2E))
    pfo = wq_pf_ops(a, PFN) if LOCAL else []
    sp = Sprinkle(a, wo_dma_ops(a), 5)
    softmax18(sp, DK, 56, 12)
    sp.flush()
    a('v_lshl_add_u32 v21, v4, 5, v20')
    a('v_lshl_add_u32 v24, v4, 2, v20')
    a('ds_write_b128 v21, %s' % vr(DK, 4))
    a('ds_write_b128 v21, %s offset:16' % vr(DK + 4, 4))
    a('ds_write_b32 v24, %s offset:192' % vr(DK + 8))
    a('s_lshr_b32 s64, s10, 1')
    a('s_mul_i32 s64, s64, %d' % KV_SZ)
    a('s_add_u32 s64, s64, 0x%x' % KV1)
    a('s_mul_i32 s65, s25, %d' % (2 * KV_HEAD))
    a('s_add_u32 s64, s64, s65')
    a('s_waitcnt lgkmcnt(0)')
    a('s_barrier')
    mstamp(a)
    a('s_cmp_ge_u32 s26, 6')
    a('s_cbranch_scc1 A_q')
    a('s_cmp_ge_u32 s26, 3')
    a('s_cselect_b32 s57, 1, 0')
    a('s_mul_i32 s58, s57, 3')
    a('s_sub_u32 s58, s26, s58')
    a('s_lshl_b32 s59, s57, 6')
    a('s_lshl_b32 s60, s58, 5')
    a('s_add_u32 s59, s59, s60')
    a('s_lshl_b32 s60, s57, 3')
    a('s_add_u32 s61, s60, 192')
    a('s_cmp_eq_u32 s58, 2')
    a('s_cselect_b32 s59, s61, s59')
    a('s_add_u32 s60, s60, 208')
    a('s_lshl_b32 s61, s57, 5')
    a('s_add_u32 s61, s61, 128')
    a('v_lshrrev_b32 v24, 2, v3')
    a('v_lshl_add_u32 v24, v4, 2, v24')
    a('v_mul_u32_u24 v24, %d, v24' % PK_STRIDE)
    a('v_and_b32 v25, 3, v3')
    a('v_lshl_add_u32 v24, v25, 3, v24')
    a('v_add_u32 v24, %d, v24' % LDS_PK)
    a('v_add_u32 v25, s59, v24')
    a('v_add_u32 v26, s61, v24')
    a('v_add_u32 v27, s60, v24')
    FB, FA, FT = 112, 136, 152
    for ks in range(4):
        for hf in range(2):
            off = (32 * ks + 16 * hf) * PK_STRIDE
            a('ds_read_b64_tr_b16 %s, v25 offset:%d' % (vr(FB + 4 * ks + 2 * hf, 2), off))
            a('ds_read_b64_tr_b16 %s, v26 offset:%d' % (vr(FA + 4 * ks + 2 * hf, 2), off))
            a('ds_read_b64_tr_b16 %s, v27 offset:%d' % (vr(FT + 4 * ks + 2 * hf, 2), off))
    a('s_mul_i32 s59, s57, %d' % KV_HEAD)
    a('s_mul_i32 s60, s58, 1216')
    a('s_add_u32 s59, s59, s60')
    a('s_add_u32 s59, s59, s64')
    a('v_lshlrev_b32 v28, 2, v1')
    DM, DT = 128, 132
    at = lambda r, off: a('buffer_atomic_add_f32 %s, v28, s[%d:%d], s59 offen offset:%d' % (vr(r), SWS, SWS + 3, off))
    a('s_cmp_eq_u32 s58, 2')
    a('s_cbranch_scc1 A_kvt')
    for ks in range(4):
        a('s_waitcnt lgkmcnt(%d)' % min(14, 6 * (3 - ks)))
        a('v_mfma_f32_16x16x32_bf16 %s, %s, %s, %s' % (vr(DM, 4), vr(FA + 4 * ks, 4), vr(FB + 4 * ks, 4), '0' if ks == 0 else vr(DM, 4)))
        a('v_mfma_f32_16x16x32_bf16 %s, %s, %s, %s' % (vr(DT, 4), vr(FT + 4 * ks, 4), vr(FB + 4 * ks, 4), '0' if ks == 0 else vr(DT, 4)))
    a('s_nop 7')
    for r in range(4):
        at(DM + r, r * 256)
    a('s_mov_b64 exec, 0xffff')
    for r in range(3):
        at(DT + r, 1024 + r * 64)
    a('s_mov_b64 exec, -1')
    a('s_branch A_q')
    a.label('A_kvt')
    for ks in range(4):
        a('s_waitcnt lgkmcnt(%d)' % min(14, 6 * (3 - ks)))
        a('v_mfma_f32_16x16x32_bf16 %s, %s, %s, %s' % (vr(DM, 4), vr(FB + 4 * ks, 4), vr(FA + 4 * ks, 4), '0' if ks == 0 else vr(DM, 4)))
        a('v_mfma_f32_16x16x32_bf16 %s, %s, %s, %s' % (vr(DT, 4), vr(FB + 4 * ks, 4), vr(FT + 4 * ks, 4), '0' if ks == 0 else vr(DT, 4)))
    a('s_mov_b64 exec, 0xffff')
    a('s_nop 7')
    for r in range(4):
        at(DM + r, r * 128)
    a('s_mov_b64 exec, 7')
    for r in range(4):
        at(DT + r, r * 128 + 64)
    a('s_mov_b64 exec, -1')
    a.label('A_q')
    lnfix(0)
    lnfix(1)
    a('s_nop 1')
    for m in range(5):
        a('v_mfma_f32_16x16x32_bf16 %s, %s, %s, 0' % (vr(DQ + 4 * m, 4), vr(TA + 4 * m, 4), vr(P0 + 0, 4)))
    for m in range(5):
        a('v_mfma_f32_16x16x32_bf16 %s, %s, %s, %s' % (vr(DQ + 4 * m, 4), vr(TBQ + 4 * m, 4), vr(P0 + 12, 4), vr(DQ + 4 * m, 4)))
    a('s_mul_i32 s57, s27, 4608')
    a('s_add_u32 s57, s57, %d' % L_PHI)
    a('v_lshrrev_b32 v24, 1, v4')
    a('v_mul_u32_u24 v24, 2304, v24')
    a('v_add_u32 v24, s57, v24')
    a('v_and_b32 v25, 1, v4')
    a('v_and_b32 v26, 31, v6')
    a('v_lshl_add_u32 v22, v25, 10, v24')
    a('v_lshl_add_u32 v22, v26, 4, v22')
    a('v_lshl_add_u32 v23, v26, 3, v24')
    a('v_lshl_add_u32 v23, v25, 2, v23')
    sp = Sprinkle(a, pfo, 64 // PFN)
    softmax18(sp, DQ, 56, 12)
    sp.flush()
    a('ds_write_b128 v22, %s' % vr(DQ, 4))
    a('ds_write_b128 v22, %s offset:512' % vr(DQ + 4, 4))
    a('ds_write_b32 v23, %s offset:2048' % vr(DQ + 8))
    a('s_lshr_b32 s56, s10, 1')
    a('s_lshl_b32 s56, s56, 4')
    a('s_add_u32 s56, s56, s25')
    a('s_lshl_b32 s56, s56, 7')
    a('s_add_u32 s56, s56, 0x%x' % F_KVC)
    mstamp(a)
    a('s_waitcnt vmcnt(0) lgkmcnt(0)')
    a('s_barrier')
    mstamp(a)
    arrive(a, 's56')
    PH, ST, OC = 32, 48, 72
    a('s_lshl_b32 s57, s27, 1')
    a('s_add_u32 s57, s57, s28')
    a('s_mul_i32 s57, s57, 2304')
    a('s_add_u32 s57, s57, %d' % L_PHI)
    a('v_add_u32 v20, s57, v5')
    a('v_and_b32 v3, 31, v1')
    a('v_lshlrev_b32 v21, 3, v3')
    a('v_add_u32 v21, s57, v21')
    for r in range(8, 12):
        a('v_mov_b32 v%d, 0' % (PH + r))
    a('ds_read_b128 %s, v20' % vr(PH, 4))
    a('ds_read_b128 %s, v20 offset:1024' % vr(PH + 4, 4))
    a('s_mov_b32 exec_hi, 0')
    a('ds_read_b64 %s, v21 offset:2048' % vr(PH + 8, 2))
    a('s_mov_b32 exec_hi, -1')
    a('s_mul_i32 s58, s26, 3072')
    a('s_add_u32 s58, s58, %d' % L_KV)
    a('v_min_u32 v8, 18, v3')
    a('v_and_b32 v9, 3, v8')
    a('v_lshlrev_b32 v9, 8, v9')
    a('v_lshrrev_b32 v4, 2, v8')
    a('v_lshl_add_u32 v9, v4, 6, v9')
    a('v_lshlrev_b32 v4, 6, v8')
    a('v_cmp_gt_u32 vcc, 16, v8')
    a('v_lshlrev_b32 v8, 2, v8')
    a('v_add_u32 v8, s58, v8')
    a('v_cndmask_b32 v9, v4, v9, vcc')
    a('v_lshrrev_b32 v4, 5, v1')
    a('v_lshl_add_u32 v9, v4, 5, v9')
    a('v_add_u32 v9, s58, v9')
    a('s_lshl_b32 s59, s24, 2')
    a('s_add_u32 s59, s59, s27')
    a('s_lshl_b32 s60, s25, 1')
    a('s_add_u32 s60, s60, s28')
    oimg_addr(a, 59, 60, 66, 67, 61, 62)
    a('s_mul_i32 s57, s28, %d' % KV_HEAD)
    a('s_add_u32 s57, s57, s64')
    a('s_mov_b32 m0, s58')
    poll(a, ['s56'], 16)
    a('s_barrier')
    mstamp(a)
    for p in range(3):
        ws_dma(a, 's57', p * 1024, 'sc1')
    a('s_waitcnt vmcnt(0)')
    a('ds_read_b128 %s, v9' % vr(ST, 4))
    a('ds_read_b128 %s, v9 offset:16' % vr(ST + 4, 4))
    a('ds_read_b128 %s, v9 offset:1216' % vr(ST + 8, 4))
    a('ds_read_b128 %s, v9 offset:1232' % vr(ST + 12, 4))
    for ft in range(4):
        a('ds_read_b32 %s, v8 offset:%d' % (vr(ST + 16 + ft), 2432 + ft * 128))
    a('s_waitcnt lgkmcnt(0)')
    for n in range(10):
        a('v_cvt_pk_bf16_f32 %s, %s, %s' % (vr(ST + n), vr(ST + 2 * n), vr(ST + 2 * n + 1)))
    a('v_mov_b32 %s, 0' % vr(ST + 10))
    a('v_mov_b32 %s, 0' % vr(ST + 11))
    a('s_nop 1')
    for q_ in range(3):
        a('v_mfma_f32_32x32x16_bf16 %s, %s, %s, %s' % (vr(OC, 16), vr(ST + 4 * q_, 4), vr(PH + 4 * q_, 4), '0' if q_ == 0 else vr(OC, 16)))
    a('s_nop 6')
    o_store(a, OC, 66, 67, None, 1e-6)
    wfrag_reads(a)
    mstamp(a)
    a('s_waitcnt vmcnt(0)')
    a('s_branch O_pub')
    a.label('B_epi')
    for u in (2, 3, 4, 5, 6):
        lnfix(u)
    a('s_lshr_b32 s64, s10, 1')
    a('s_lshl_b32 s64, s64, 23')
    a('s_add_u32 s64, s64, 0x%x' % REC)
    a('s_lshl_b32 s65, s25, 19')
    a('s_add_u32 s64, s64, s65')
    a('v_lshlrev_b32 v20, 4, v6')
    a('v_and_b32 v21, 1, v4')
    a('v_lshl_add_u32 v22, v21, 18, v20')
    a('v_lshrrev_b32 v23, 1, v4')
    a('v_lshl_add_u32 v22, v23, 15, v22')
    a('v_and_b32 v24, 127, v6')
    a('v_mul_u32_u24 v25, %d, v21' % IM_HEAD)
    a('v_lshl_add_u32 v25, v24, 4, v25')
    a('v_lshl_add_u32 v26, v23, 11, v25')
    a('v_mul_u32_u24 v27, %d, v23' % IM_P)
    a('v_add_u32 v27, v27, v25')
    a('s_add_u32 s56, s64, %d' % R_K0)
    a('s_add_u32 s57, s64, %d' % R_V0)
    for typ in (1, 2):
        b0 = P0 + 4 * typ
        a('v_permlane16_swap_b32 %s, %s' % (vr(b0), vr(b0 + 2)))
        a('v_permlane16_swap_b32 %s, %s' % (vr(b0 + 1), vr(b0 + 3)))
    ws_st(a, P0 + 4, 4, 'v22', 's56')
    ws_st(a, P0 + 8, 4, 'v22', 's57')
    a('v_cmp_eq_u32 vcc, 2, v4')
    a('v_mov_b32 v28, 0x3f80')
    a('v_mov_b32 v12, %s' % vr(P0 + 12))
    a('v_cndmask_b32 v13, 0, v28, vcc')
    a('v_mov_b32 v14, %s' % vr(P0 + 13))
    a('v_mov_b32 v15, v13')
    a('v_lshlrev_b32 v28, 3, v6')
    a('v_add_u32 v28, %d, v28' % R_KT)
    a('v_add_u32 v20, %d, v20' % R_VT)
    a('v_cndmask_b32 v28, v28, v20, vcc')
    a('v_lshlrev_b32 v20, 3, v24')
    a('v_add_u32 v21, %d, v20' % I_QT)
    a('v_add_u32 v20, %d, v20' % (I_KT + 2048))
    a('v_lshlrev_b32 v23, 4, v24')
    a('v_add_u32 v23, %d, v23' % (I_VT + 4096))
    a('v_cndmask_b32 v20, v20, v23, vcc')
    a('v_cmp_eq_u32 vcc, 0, v4')
    a('s_add_u32 s57, s64, %d' % REC_HEAD)
    a('s_mov_b32 exec_lo, 0xffff0000')
    a('s_mov_b32 exec_hi, 0xffff')
    ws_st(a, 12, 2, 'v28', 's64')
    ws_st(a, 14, 2, 'v28', 's57')
    a('s_mov_b64 exec, -1')
    a('v_cndmask_b32 v20, v20, v21, vcc')
    lnfix(0)
    lnfix(1)
    a('s_barrier')
    a('s_nop 0')
    a('v_permlane16_swap_b32 %s, %s' % (vr(P0), vr(P0 + 2)))
    a('v_permlane16_swap_b32 %s, %s' % (vr(P0 + 1), vr(P0 + 3)))
    a('ds_write_b128 v26, %s offset:%d' % (vr(P0, 4), I_Q0))
    a('ds_write_b128 v27, %s offset:%d' % (vr(P0 + 4, 4), I_K0 + 4096))
    a('ds_write_b128 v27, %s offset:%d' % (vr(P0 + 8, 4), I_V0 + 4096))
    a('s_mov_b32 exec_hi, 0xffff')
    a('ds_write_b64 v20, v[12:13]')
    a('ds_write_b64 v20, v[14:15] offset:%d' % IM_HEAD)
    a('s_mov_b32 exec_hi, -1')
    a('s_lshr_b32 s48, s10, 1')
    a('s_lshl_b32 s48, s48, 4')
    a('s_add_u32 s48, s48, s25')
    a('s_lshl_b32 s48, s48, 7')
    a('s_add_u32 s48, s48, 0x%x' % F_KVF)
    a('s_lshl_b32 s49, s24, 2')
    a('s_add_u32 s49, s49, s48')
    a('s_sub_u32 s50, s49, 4')
    a('s_sub_u32 s51, s49, 8')
    a('s_max_u32 s51, s51, s48')
    a('s_lshl_b32 s56, s24, 7')
    a('s_sub_u32 s56, s56, 256')
    a('s_lshl_b32 s54, s27, 6')
    a('s_add_u32 s56, s56, s54')
    a('s_lshl_b32 s58, s28, 18')
    a('s_add_u32 s58, s58, s64')
    a('s_lshl_b32 s52, s56, 4')
    a('s_add_u32 s52, s52, s58')
    a('s_lshl_b32 s53, s56, 3')
    a('s_add_u32 s53, s53, s58')
    a('s_add_u32 s53, s53, %d' % R_KT)
    a('s_cmp_lt_i32 s56, 0')
    a('s_cselect_b32 s52, 0x40000000, s52')
    a('s_cselect_b32 s53, 0x40000000, s53')
    a('s_mul_i32 s65, s28, %d' % IM_HEAD)
    a('s_lshl_b32 s54, s27, 10')
    a('s_add_u32 s54, s54, s65')
    a('s_mov_b32 s3, s65')
    a('s_mov_b32 s30, s64')
    Q1, Q2 = 12, 16
    S = lambda t: 64 + 16 * t
    OA = 208
    KB = [224, 232, 240]
    MK, MB = 56, 36
    a('v_and_b32 v3, 31, v1')
    a('v_lshrrev_b32 v4, 5, v1')
    a('s_lshl_b32 s27, s27, 5')
    a('v_add_u32 v9, s27, v3')
    a('v_lshlrev_b32 v10, 4, v9')
    a('v_add_u32 v21, s65, v10')
    a('v_lshl_add_u32 v10, v4, 11, v21')
    a('v_lshlrev_b32 v20, 3, v9')
    a('v_add_u32 v20, s65, v20')
    for r in range(4):
        a('v_mov_b32 v%d, 0' % (Q2 + r))
    a('v_mul_u32_u24 v9, %d, v4' % IM_P)
    a('v_add_u32 v21, v21, v9')
    a('v_mov_b32 v8, v20')
    a('v_add_u32 v20, %d, v20' % I_KT)
    for b in KB:
        for r in range(6, 8):
            a('v_mov_b32 v%d, 0' % (b + r))
    a('v_bfe_u32 v22, v1, 2, 2')
    a('v_lshl_add_u32 v22, v4, 2, v22')
    a('v_add_u32 v22, s27, v22')
    a('v_lshlrev_b32 v22, 4, v22')
    a('v_bfe_u32 v23, v1, 1, 1')
    a('v_mul_u32_u24 v23, %d, v23' % IM_P)
    a('v_and_b32 v25, 1, v1')
    a('v_lshl_add_u32 v23, v25, 3, v23')
    a('v_and_b32 v25, 16, v1')
    a('v_cmp_eq_u32 vcc, 0, v25')
    a('v_mov_b32 v25, %d' % (I_VT - I_V0))
    a('s_add_u32 s65, s65, %d' % I_V0)
    a('v_cndmask_b32 v23, v25, v23, vcc')
    a('v_add3_u32 v22, v22, v23, s65')
    a('s_lshr_b32 s27, s27, 5')
    a('s_lshl_b32 s40, s24, 2')
    a('s_add_u32 s40, s40, s27')
    a('s_lshl_b32 s41, s25, 1')
    a('s_add_u32 s41, s41, s28')
    oimg_addr(a, 40, 41, 44, 45, 42, 43)
    a('s_sub_u32 s42, 8, s40')
    a('s_max_i32 s42, s42, 0')
    a('v_lshlrev_b32 v11, 2, v4')
    a('v_sub_u32 v11, v3, v11')
    for n in range(16):
        a('v_cmp_gt_i32 s[%d:%d], %d, v11' % (MK + 2 * n, MK + 2 * n + 1, 8 * (n >> 2) + (n & 3)))
    a('v_mov_b32 v26, 0xffff')
    a('v_mov_b32 v27, 0xffff0000')
    for n in range(8):
        a('v_cndmask_b32 v%d, 0, v26, s[%d:%d]' % (MB + n, MK + 4 * n, MK + 4 * n + 1))
        a('v_cndmask_b32 v25, 0, v27, s[%d:%d]' % (MK + 4 * n + 2, MK + 4 * n + 3))
        a('v_or_b32 v%d, v%d, v25' % (MB + n, MB + n))
    a('v_mov_b32 v24, 0xf149f2ca')
    a('s_mov_b32 s46, 0x%x' % f32bits(LOG2E * 18 ** -0.5))
    mstamp(a)
    a('s_waitcnt vmcnt(0) lgkmcnt(0)')
    a('s_barrier')
    mstamp(a)
    arrive(a, 's49')
    if PT:
        a('s_sub_u32 s29, s26, 1')
        a('s_cmp_lt_u32 s29, 3')
        a('s_cbranch_scc0 pt_kv')
        a('s_lshl_b32 s29, s29, 6')
        a('v_add_u32 v27, s29, v1')
        a('v_cmp_le_u32 vcc, 88, v27')
        a('v_subrev_u32 v28, 88, v27')
        a('s_lshl_b32 s29, s24, 11')
        a('v_cndmask_b32 v28, v27, v28, vcc')
        a('v_cndmask_b32 v29, 0, 1, vcc')
        a('v_lshrrev_b32 v30, 4, v28')
        a('v_add_u32 v30, 2, v30')
        a('v_lshlrev_b32 v30, 15, v30')
        a('v_and_b32 v31, 15, v28')
        a('v_lshl_add_u32 v30, v31, 7, v30')
        a('v_add_u32 v30, s29, v30')
        a('v_subrev_u32 v31, 80, v28')
        a('v_lshlrev_b32 v31, 7, v31')
        a('s_lshl_b32 s29, s24, 10')
        a('s_add_u32 s29, s29, %d' % R_KT)
        a('v_cmp_gt_u32 vcc, 80, v28')
        a('v_add_u32 v31, s29, v31')
        a('s_mov_b32 s29, 0x40000000')
        a('v_cndmask_b32 v30, v31, v30, vcc')
        a('v_lshl_add_u32 v30, v29, 18, v30')
        a('v_cmp_gt_u32 vcc, 176, v27')
        a('v_mov_b32 v31, s29')
        a('s_nop 0')
        a('v_cndmask_b32 v30, v31, v30, vcc')
        ws_ld(a, 0, 1, 'v30', 's30')
        a.label('pt_kv')
    a('ds_read_b128 %s, v10 offset:%d' % (vr(Q1, 4), I_Q0))
    a('s_mov_b32 exec_hi, 0')
    a('ds_read_b64 %s, v8 offset:%d' % (vr(Q2, 2), I_QT))
    a('s_mov_b32 exec_hi, -1')
    poll(a, ['s50', 's51'], 1, 's_cmp_eq_u32 s24, 0')
    a('s_waitcnt lgkmcnt(0)')
    a('s_barrier')
    mstamp(a)
    for (pl, lo) in ((R_K0, I_K0), (R_K1, I_K1)):
        a('s_add_u32 m0, s54, %d' % lo)
        a('s_add_u32 s55, s52, %d' % pl)
        ws_dma(a, 's55')
    a('s_lshl_b32 s55, s27, 9')
    a('s_add_u32 s55, s55, s3')
    a('s_add_u32 m0, s55, %d' % I_KT)
    a('s_mov_b32 exec_hi, 0')
    ws_dma(a, 's53')
    a('s_mov_b32 exec_hi, -1')
    for (pl, lo) in ((R_V0, I_V0), (R_V1, I_V1), (R_VT, I_VT)):
        a('s_add_u32 m0, s54, %d' % lo)
        a('s_add_u32 s55, s52, %d' % pl)
        ws_dma(a, 's55')
    a('s_waitcnt vmcnt(0) lgkmcnt(0)')
    a('s_barrier')
    mstamp(a)

    def kread(t):
        b = KB[t % 3]
        a('ds_read_b128 %s, v21 offset:%d' % (vr(b, 4), t * 512))
        a('ds_read_b64 %s, v20 offset:%d' % (vr(b + 4, 2), t * 256))

    def tfix(t):
        a('s_cmp_le_u32 s42, %d' % t)
        a('s_cbranch_scc1 attn_ok%d' % t)
        for n in range(16):
            a('v_mov_b32 %s, v24' % vr(S(t) + n))
        a.label('attn_ok%d' % t)

    def tmax(t, half):
        if t < 1:
            return
        for n in range(8 * half, 8 * half + 8, 2):
            m = 25 + ((n >> 1) & 1)
            if t == 1 and n < 4:
                a('v_max_f32 v%d, %s, %s' % (m, vr(S(t) + n), vr(S(t) + n + 1)))
            else:
                a('v_max3_f32 v%d, v%d, %s, %s' % (m, m, vr(S(t) + n), vr(S(t) + n + 1)))
    kread(0)
    kread(1)
    for t in range(9):
        if t + 2 < 9:
            kread(t + 2)
            a('s_waitcnt lgkmcnt(4)')
        elif t + 1 < 9:
            a('s_waitcnt lgkmcnt(2)')
        else:
            a('s_waitcnt lgkmcnt(0)')
        b = KB[t % 3]
        a('v_mfma_f32_32x32x16_bf16 %s, %s, %s, 0' % (vr(S(t), 16), vr(b, 4), vr(Q1, 4)))
        if t >= 3:
            tfix(t - 3)
            tmax(t - 3, 0)
        a('v_mfma_f32_32x32x16_bf16 %s, %s, %s, %s' % (vr(S(t), 16), vr(b + 4, 4), vr(Q2, 4), vr(S(t), 16)))
        if t >= 3:
            tmax(t - 3, 1)
    for t in (6, 7):
        tfix(t)
        tmax(t, 0)
        tmax(t, 1)
    VB = [224, 232, 240, 248]
    seq = [1, 2, 3, 4, 5, 6, 7, 0, 8]

    def vread(k):
        t = seq[k]
        b = VB[k % 4]
        for ks in range(2):
            for hf in range(2):
                a('ds_read_b64_tr_b16 %s, v22 offset:%d' % (vr(b + 4 * ks + 2 * hf, 2), (32 * t + 16 * ks + 8 * hf) * 16))
    vread(0)
    vread(1)
    vread(2)
    for n in range(16):
        a('v_cndmask_b32 %s, %s, %s, s[%d:%d]' % (vr(S(0) + n), vr(S(8) + n), vr(S(0) + n), MK + 2 * n, MK + 2 * n + 1))
    for n in range(0, 16, 2):
        m = 25 + ((n >> 1) & 1)
        a('v_max3_f32 v%d, v%d, %s, %s' % (m, m, vr(S(0) + n), vr(S(0) + n + 1)))
    a('v_max_f32 v25, v25, v26')
    a('v_mov_b32 v26, v25')
    a('s_nop 1')
    a('v_permlane32_swap_b32 v25, v26')
    a('s_nop 0')
    a('v_max_f32 v25, v25, v26')
    a('v_mul_f32 v26, s46, v25')
    pf = lambda t, m: a('v_pk_fma_f32 %s, %s, s[46:47], v[26:27] op_sel_hi:[1,0,0] neg_lo:[0,0,1] neg_hi:[0,0,1]' % (p2(S(t) + 2 * m), p2(S(t) + 2 * m)))
    cv = lambda t, m: a('v_cvt_pk_bf16_f32 %s, %s, %s' % (vr(S(t) + m), vr(S(t) + 2 * m), vr(S(t) + 2 * m + 1)))
    for m in range(8):
        pf(seq[0], m)

    def pv(k, half):
        t = seq[k]
        b = VB[k % 4]
        c = '0' if (k == 0 and half == 0) else vr(OA, 16)
        a('v_mfma_f32_32x32x16_bf16 %s, %s, %s, %s' % (vr(OA, 16), vr(b + 4 * half, 4), vr(S(t) + 4 * half, 4), c))

    def split(n):
        a('v_bfi_b32 %s, v%d, 0, %s' % (vr(S(8) + n), MB + n, vr(S(0) + n)))
        a('v_and_b32 %s, v%d, %s' % (vr(S(0) + n), MB + n, vr(S(0) + n)))
    wops = wo_dma_ops(a)
    pfb = wq_pf_ops(a, PFN) if LOCAL else []
    for k in range(8):
        t = seq[k]
        for m in range(8):
            if m in (2, 5) and wops:
                wops.pop(0)()
            if m == 7 and pfb and k < 7:
                for _ in range(-(-PFN // 7)):
                    if pfb:
                        pfb.pop(0)()
            if k == 7 and m == 0 and O_B:
                a('s_waitcnt vmcnt(0)')
                a('s_barrier')
            a('v_exp_f32 %s, %s' % (vr(S(t) + 2 * m), vr(S(t) + 2 * m)))
            if k < 7:
                pf(seq[k + 1], m)
            elif m >= 2:
                split(m - 2)
            if m == 1 and k >= 1:
                pv(k - 1, 1)
                if k + 2 < 9:
                    vread(k + 2)
            if m == 6:
                a('s_waitcnt lgkmcnt(%d)' % (4 * min(8 - k, 2)))
                pv(k, 0)
            a('v_exp_f32 %s, %s' % (vr(S(t) + 2 * m + 1), vr(S(t) + 2 * m + 1)))
            if m >= 1:
                cv(t, m - 1)
        a('s_nop 0')
        cv(t, 7)
    split(6)
    split(7)
    a('s_waitcnt lgkmcnt(0)')
    pv(8, 0)
    pv(7, 1)
    pv(8, 1)
    a('s_mov_b32 s66, s44')
    a('s_mov_b32 s67, s45')
    a('s_nop 4')
    o_store(a, OA, 66, 67, None, 0)
    if O_B:
        wfrag_reads(a)
    mstamp(a)
    a('s_waitcnt vmcnt(0)')
    a.label('O_pub')
    a('s_lshl_b32 s56, s10, 4')
    a('s_add_u32 s57, s56, s24')
    a('s_lshl_b32 s57, s57, 7')
    a('s_lshr_b32 s62, s57, 1')
    a('s_add_u32 s62, s62, 0x%x' % F_OW)
    a('s_add_u32 s57, s57, 0x%x' % F_OC)
    a('s_lshr_b32 s58, s12, 1')
    a('s_add_u32 s58, s58, s56')
    a('s_lshl_b32 s58, s58, 7')
    a('s_lshr_b32 s63, s58, 1')
    a('s_add_u32 s64, s63, 0x%x' % F_XW)
    a('s_add_u32 s63, s63, 0x%x' % F_OW)
    a('s_add_u32 s59, s58, 0x%x' % F_XC)
    a('s_add_u32 s58, s58, 0x%x' % F_OC)
    a('s_barrier')
    mstamp(a)
    arrive2(a, 's57', 's62', 's25')
    if LOCAL:
        a('s_and_b32 s24, s2, 7')
        a('s_lshl_b32 s24, s24, 1')
        a('s_bfe_u32 s25, s2, 0x10003')
        a('s_add_u32 s24, s24, s25')
        a('s_lshr_b32 s25, s2, 4')
    if PT:
        a('s_mul_i32 s29, s24, %d' % (4 * 36864))
        a('s_mul_i32 s30, s10, 0x%x' % XS)
        a('s_add_u32 s29, s29, s30')
        a('s_add_u32 s29, s29, 0x%x' % OIMG)
        a('v_lshrrev_b32 v3, 4, v1')
        a('v_mul_u32_u24 v3, 36864, v3')
        a('s_cmp_eq_u32 s26, 1')
        a('s_cbranch_scc0 pt_o1')
        a('v_and_b32 v4, 15, v1')
        a('v_lshl_add_u32 v3, v4, 7, v3')
        a('s_lshl_b32 s30, s25, 11')
        a('s_add_u32 s29, s29, s30')
        ws_ld(a, 0, 1, 'v3', 's29')
        a.label('pt_o1')
        a('s_cmp_eq_u32 s26, 2')
        a('s_cbranch_scc0 pt_o2')
        a('v_bfe_u32 v4, v1, 1, 1')
        a('v_lshl_add_u32 v3, v4, 10, v3')
        a('v_and_b32 v4, 1, v1')
        a('v_lshl_add_u32 v3, v4, 7, v3')
        a('s_lshr_b32 s30, s25, 3')
        a('s_lshl_b32 s30, s30, 11')
        a('s_add_u32 s29, s29, s30')
        a('s_bfe_u32 s30, s25, 0x20001')
        a('s_lshl_b32 s30, s30, 8')
        a('s_add_u32 s29, s29, s30')
        a('s_add_u32 s29, s29, 32768')
        a('s_mov_b32 exec_lo, 0x000f000f')
        a('s_mov_b32 exec_hi, 0x000f000f')
        ws_ld(a, 0, 1, 'v3', 's29')
        a('s_mov_b64 exec, -1')
        a.label('pt_o2')
    a('v_and_b32 v3, 15, v1')
    a('v_lshrrev_b32 v4, 4, v1')
    a('s_lshl_b32 s29, s12, 2')
    a('s_add_u32 s29, s29, s27')
    a('v_and_b32 v6, 1, v4')
    a('v_lshrrev_b32 v7, 1, v4')
    a('v_lshl_add_u32 v6, v6, 1, v7')
    a('v_lshlrev_b32 v6, 8, v6')
    a('v_lshl_add_u32 v6, v3, 4, v6')
    a('v_lshlrev_b32 v7, 4, v3')
    a('v_lshl_add_u32 v7, v4, 3, v7')
    a('s_mul_i32 s60, s29, 18432')
    a('s_mul_i32 s61, s13, 2304')
    a('s_add_u32 s60, s60, s61')
    a('s_mul_i32 s61, s10, 0x%x' % XS)
    a('s_add_u32 s60, s60, s61')
    a('s_add_u32 s60, s60, 0x%x' % X0)
    a('s_lshl_b32 s61, s28, 10')
    a('s_add_u32 s61, s61, s60')
    ws_ld(a, 252, 4, 'v6', 's61')
    ws_ld(a, 12, 2, 'v7', 's60', 2048)
    a('s_xor_b32 s15, s14, 1')
    if LOCAL:
        a('s_add_u32 s56, s60, 0x%x' % XS)
        a('s_cmp_eq_u32 s28, 1')
        a('s_cselect_b32 s56, s56, 0x40000000')
        a('v_lshlrev_b32 v11, 7, v1')
        a('s_mov_b64 exec, 0x3ffff')
        ws_ld(a, 0, 1, 'v11', 's56', 0, 'sc1')
        a('s_mov_b64 exec, -1')
        a('s_cmp_lg_u32 s10, 0')
        a('s_cbranch_scc1 cen_e')
        a('v_lshlrev_b32 v29, 2, v1')
        a('s_mov_b64 exec, 0xff')
        a('s_mov_b32 s90, 0')
        a.label('cen')
        a('buffer_load_dword v27, v29, s[%d:%d], s9 offen sc1' % (SWS, SWS + 3))
        a('s_waitcnt vmcnt(0)')
        a('v_cmp_eq_u32 vcc, 32, v27')
        a('s_mov_b32 s91, 0')
        for q in range(8):
            a('v_readlane_b32 s56, v27, %d' % q)
            a('s_add_u32 s91, s91, s56')
        a('s_add_u32 s90, s90, 1')
        a('s_cmp_ge_u32 s90, %d' % SPIN_LIMIT)
        a('s_cbranch_scc1 cen_d')
        a('s_cmp_lt_u32 s91, 32')
        a('s_cbranch_scc1 cen')
        a.label('cen_d')
        a('s_cmp_lg_u32 vcc_lo, 0')
        a('s_cselect_b32 s17, 1, 0')
        a('s_mov_b64 exec, -1')
        a.label('cen_e')

    a('s_lshr_b32 s30, s29, 1')
    a('s_mul_i32 s30, s30, 36864')
    a('s_and_b32 s31, s29, 1')
    a('s_lshl_b32 s31, s31, 10')
    a('s_add_u32 s30, s30, s31')
    a('s_mul_i32 s31, s28, 18432')
    a('s_add_u32 s30, s30, s31')
    a('s_mul_i32 s31, s10, 0x%x' % XS)
    a('s_add_u32 s30, s30, s31')
    a('s_add_u32 s30, s30, 0x%x' % OIMG)
    a('s_mul_i32 s31, s26, 3072')
    a('s_add_u32 s31, s31, %d' % L_WX)
    a('v_add_u32 v14, s31, v5')
    a('s_xor_b32 s31, s26, 4')
    a('s_mul_i32 s31, s31, 3072')
    a('s_add_u32 s31, s31, %d' % L_WX)
    a('v_add_u32 v15, s31, v5')
    if WQ_PRE:
        wq_dma(a, 15, 0, WQ_PRE)
    a('s_waitcnt lgkmcnt(0)')
    mstamp(a)
    poll2(a, 's58', 's63')
    a('s_barrier')
    mstamp(a, True)
    vm = VM(a)

    def ol(t):
        if t and t % 2 == 0:
            a('s_add_u32 s30, s30, 4096')
        ws_ld(a, OF + 4 * t, 4, 'v5', 's30', (t & 1) * 2048)
        vm.issue(t)
    for t in range(OD):
        ol(t)
    for t in range(9):
        if t == 0:
            mstamp(a, 2)
        a('s_waitcnt vmcnt(%d)' % vm.cnt(t))
        if t in (0, 8):
            mstamp(a, 2)
        for k, q in enumerate([2, 3, 4, 0, 1]):
            a('v_mfma_f32_16x16x32_bf16 %s, %s, %s, %s' % (vr(CA + 4 * q, 4), vr(WV + 20 * t + 4 * q, 4), vr(OF + 4 * t, 4), '0' if t == 0 else vr(CA + 4 * q, 4)))
            if k == 0 and t + OD < 9:
                ol(t + OD)
    a('s_nop 0')
    for i in range(4):
        a('v_lshlrev_b32 v%d, 16, v%d' % (40 + 2 * i, 252 + i))
        a('v_and_b32 v%d, 0xffff0000, v%d' % (41 + 2 * i, 252 + i))
    for q in (2, 3, 4):
        a('ds_write_b128 v14, %s offset:%d' % (vr(CA + 4 * q, 4), (q - 2) * 1024))
    for i in range(2):
        a('v_lshlrev_b32 v%d, 16, v%d' % (48 + 2 * i, 12 + i))
        a('v_and_b32 v%d, 0xffff0000, v%d' % (49 + 2 * i, 12 + i))
    a('s_add_u32 s60, s60, 0x%x' % XS)
    a('s_add_u32 s61, s61, 0x%x' % XS)
    a('s_waitcnt lgkmcnt(0)')
    mstamp(a, 2)
    a('s_barrier')
    mstamp(a, 2)
    for q in range(3):
        a('ds_read_b128 %s, v15 offset:%d' % (vr(64 + 4 * q, 4), q * 1024))
    a('s_waitcnt lgkmcnt(1)')
    for r in range(0, 8, 2):
        a('v_pk_add_f32 %s, %s, %s' % (p2(CA + r), p2(CA + r), p2(64 + r)))
    for i in range(4):
        a('v_cvt_pk_bf16_f32 v%d, v%d, v%d' % (80 + i, CA + 2 * i, CA + 2 * i + 1))
    a('s_waitcnt lgkmcnt(0)')
    a('v_pk_add_f32 %s, %s, %s' % (p2(CA + 16), p2(CA + 16), p2(72)))
    a('v_permlane16_swap_b32 v80, v82')
    a('v_permlane16_swap_b32 v81, v83')
    a('v_pk_add_f32 %s, %s, %s' % (p2(CA + 18), p2(CA + 18), p2(74)))
    for i in range(4):
        a('v_lshlrev_b32 v%d, 16, v%d' % (84 + 2 * i, 80 + i))
        a('v_and_b32 v%d, 0xffff0000, v%d' % (85 + 2 * i, 80 + i))
    a('v_cvt_pk_bf16_f32 v92, v%d, v%d' % (CA + 16, CA + 17))
    a('v_cvt_pk_bf16_f32 v93, v%d, v%d' % (CA + 18, CA + 19))
    for i in range(0, 8, 2):
        a('v_pk_add_f32 %s, %s, %s' % (p2(40 + i), p2(40 + i), p2(84 + i)))
    for i in range(2):
        a('v_lshlrev_b32 v%d, 16, v%d' % (94 + 2 * i, 92 + i))
        a('v_and_b32 v%d, 0xffff0000, v%d' % (95 + 2 * i, 92 + i))
    for i in range(4):
        a('v_cvt_pk_bf16_f32 v%d, v%d, v%d' % (24 + i, 40 + 2 * i, 41 + 2 * i))
    a('v_pk_add_f32 v[48:49], v[48:49], v[94:95]')
    a('v_pk_add_f32 v[50:51], v[50:51], v[96:97]')
    a('v_cvt_pk_bf16_f32 v28, v48, v49')
    a('v_cvt_pk_bf16_f32 v29, v50, v51')
    a('s_cmp_eq_u32 s10, 3')
    a('s_cbranch_scc1 W_final')
    a('s_mov_b32 s16, s17')
    a('s_cmp_eq_u32 s28, 0')
    a('s_cselect_b32 s56, -1, 0')

    def emitx(fl):
        _uid[0] += 1
        ws_st(a, 24, 4, 'v6', 's61', 0, fl)
        a('s_cmp_eq_u32 s28, 0')
        a('s_cbranch_scc0 xs%d' % _uid[0])
        a('s_mov_b32 exec_hi, 0')
        ws_st(a, 28, 2, 'v7', 's60', 2048, fl)
        a('s_mov_b32 exec_hi, -1')
        a.label('xs%d' % _uid[0])
    st_mode(a, emitx)
    a.label('W_pub')
    mstamp(a, 2)
    wq_dma(a, 15, WQ_PRE, 16)
    mstamp(a, True)
    a('s_waitcnt vmcnt(%d)' % (16 - WQ_PRE))
    a('s_barrier')
    a('s_and_b32 s65, s12, 1')
    a('s_lshl_b32 s65, s65, 3')
    a('s_add_u32 s65, s65, s13')
    arrive2(a, 's59', 's64', 's65')
    if PT:
        a('s_cmp_eq_u32 s28, 1')
        a('s_cbranch_scc0 pt_x')
        a('v_lshlrev_b32 v3, 7, v1')
        a('s_mov_b64 exec, 0x3ffff')
        ws_ld(a, 0, 1, 'v3', 's60')
        a('s_mov_b64 exec, -1')
        a.label('pt_x')
    a('s_add_u32 s10, s10, 1')
    a('s_branch L_top')
    a.label('W_final')
    a('v_mul_u32_u24 v8, 1152, v3')
    a('v_lshrrev_b32 v9, 8, v6')
    a('v_lshl_add_u32 v9, v9, 4, v8')
    a('v_lshl_add_u32 v8, v4, 3, v8')
    a('s_mul_i32 s60, s29, 18432')
    a('s_mul_i32 s61, s13, 144')
    a('s_add_u32 s60, s60, s61')
    a('s_lshl_b32 s61, s28, 6')
    a('s_add_u32 s61, s61, s60')
    a('buffer_store_dwordx4 v[24:27], v9, s[%d:%d], s61 offen' % (SOUT, SOUT + 3))
    a('s_cmp_eq_u32 s28, 0')
    a('s_cbranch_scc0 W_done')
    a('s_mov_b32 exec_hi, 0')
    a('buffer_store_dwordx2 v[28:29], v8, s[%d:%d], s60 offen offset:128' % (SOUT, SOUT + 3))
    a('s_mov_b32 exec_hi, -1')
    a.label('W_done')
    if STAMP:
        mstamp(a)
        a('s_waitcnt vmcnt(0)')
        mstamp(a)
        a('s_memrealtime s[94:95]')
        a('s_waitcnt lgkmcnt(0)')
        a('v_writelane_b32 v2, s94, 63')
        a('s_lshl_b32 s56, s2, 3')
        a('s_add_u32 s56, s56, s26')
        a('s_lshl_b32 s56, s56, 8')
        a('s_add_u32 s56, s56, 0x%x' % STAMP_OFF)
        a('v_lshlrev_b32 v3, 2, v1')
        ws_st(a, 2, 1, 'v3', 's56', 0, '')
    a.label('mega_end')
    a('s_endpgm')
    return [('mega_kernel', 256, 100)]


def build():
    a = Asm()
    ks = []
    global STAMP
    st = STAMP
    STAMP = False
    ks += gen_prep(a)
    STAMP = st
    ks += gen_mega(a)
    launches = [
        ('prep_kernel', NPREP, 192, 28416),
        ('mega_kernel', 256, 512, MEGA_LDS),
    ]
    out = []
    for (k, g, b, l) in launches:
        out.append('; @launch kernel=%s grid=(%d,1,1) block=(%d,1,1) lds=%d' % (k, g, b, l))
    out.append('.amdgcn_target "amdgcn-amd-amdhsa--gfx950"')
    out.append('.text')
    out += a.L
    out.append('code_end:')
    out.append('    s_endpgm')
    out.append('.section .rodata,"a"')
    for (k, v, s) in ks:
        out.append('.p2align 6')
        out.append(kdesc(k, v, s))
    return '\n'.join(out) + '\n'


if __name__ == '__main__':
    if len(sys.argv) > 2 and sys.argv[2] == 'stamp':
        STAMP = True
    dst = sys.argv[1] if len(sys.argv) > 1 else 'cdna_kernels/%s.s' % NAME
    open(dst, 'w').write(build())
    print('wrote', dst)
```

```python
import sys, struct, os

NAME = 'interleave_layers__linear_kernel_hedgehog__sliding_block__prompt'

WQA = 0x000000
WQB = 0x200000
WQ_SZ = 16 * 18 * 7 * 1024
WOA = 0x400000
WOB = 0x500000
WO_SZ = 8 * 18 * 5 * 1024
CSA = 0x600000
CSB = 0x608000
CS_SZ = 16 * 3 * 448
TPHI = 0x610000
TPHI_SZ = 16 * 15 * 1024
KV1 = 0x660000
KV3 = 0x660000 + 32 * 2944
KV_HEAD = 2944
KV_SZ = 32 * KV_HEAD
X1 = 0x700000
X2 = 0x940000
X3 = 0xB80000
X_SZ = 2048 * 1152
PHIQ = 0xE00000
PHIQ_SZ = 64 * 32 * 2304
REC = 0x1300000
REC_HEAD = 262144
REC_SZ = 32 * REC_HEAD
R_Q0, R_K0, R_K1, R_V0, R_V1, R_VT, R_QT, R_KT = 0, 65536, 98304, 131072, 163840, 196608, 229376, 245760
X0 = 0x2400000
XS = 0x240000
FL = 0x6A0000
FL_SZ = 0x9000
WS_USED = 0x5000000
OIMG = 0x3000000
OIMG_SZ = 64 * 36864

LOG2E = 1.4426950408889634


def f32bits(x):
    return struct.unpack('<I', struct.pack('<f', x))[0]


class Asm:
    def __init__(self):
        self.L = []

    def __call__(self, s):
        self.L.append('    ' + s)

    def label(self, l):
        self.L.append(l + ':')

    def c(self, s):
        self.L.append('    ; ' + s)

    def raw(self, s):
        self.L.append(s)


class VM:
    def __init__(self, a):
        self.a = a
        self.n = 0
        self.tags = {}

    def issue(self, tag=None):
        self.n += 1
        if tag is not None:
            self.tags[tag] = self.n

    def cnt(self, tag):
        return self.n - self.tags[tag]

    def wait(self, tag):
        self.a('s_waitcnt vmcnt(%d)' % self.cnt(tag))


def vr(b, n=1):
    return 'v%d' % b if n == 1 else 'v[%d:%d]' % (b, b + n - 1)


def sr(b, n=1):
    return 's%d' % b if n == 1 else 's[%d:%d]' % (b, b + n - 1)


P_AX, P_AWQKV, P_AWPHI, P_AWO, P_BX, P_BWQKV, P_BWO, P_OUT, P_DBG, P_WS = 4, 6, 8, 10, 12, 14, 16, 18, 20, 22


def load_kernargs(a):
    a('s_load_dwordx16 s[4:19], s[0:1], 0')
    a('s_load_dwordx4 s[20:23], s[0:1], 64')


def srd(a, d, base, off, size):
    if off == 0:
        a('s_mov_b32 s%d, s%d' % (d, base))
        a('s_mov_b32 s%d, s%d' % (d + 1, base + 1))
    else:
        o = off if isinstance(off, str) else '0x%x' % off
        a('s_add_u32 s%d, s%d, %s' % (d, base, o))
        a('s_addc_u32 s%d, s%d, 0' % (d + 1, base + 1))
    a('s_mov_b32 s%d, 0x%x' % (d + 2, size))
    a('s_mov_b32 s%d, 0x00020000' % (d + 3))


def kdesc(name, vgpr, sgpr=96):
    acc = (vgpr + 3) // 4 * 4
    return '''.amdhsa_kernel %s
  .amdhsa_next_free_vgpr %d
  .amdhsa_next_free_sgpr %d
  .amdhsa_accum_offset %d
  .amdhsa_group_segment_fixed_size 0
  .amdhsa_kernarg_size 80
  .amdhsa_user_sgpr_count 2
  .amdhsa_user_sgpr_kernarg_segment_ptr 1
  .amdhsa_system_sgpr_workgroup_id_x 1
.end_amdhsa_kernel
''' % (name, vgpr, sgpr, acc)


def entry(a, name):
    a.raw('.p2align 8')
    a.raw('.globl %s' % name)
    a.raw('.type %s,@function' % name)
    a.label(name)


STAMP = False
STAMP_OFF = 0x4000000
_stamp_n = [0]
STAMP_REGS = list(range(72, 94))


def stamp(a):
    if not STAMP:
        return
    n = _stamp_n[0]
    a('s_memtime s[94:95]')
    a('s_waitcnt lgkmcnt(0)')
    a('s_mov_b32 s%d, s94' % STAMP_REGS[n])
    _stamp_n[0] += 1


def stamp_rt(a):
    if not STAMP:
        return
    n = _stamp_n[0]
    a('s_memrealtime s[94:95]')
    a('s_waitcnt lgkmcnt(0)')
    a('s_mov_b32 s%d, s94' % STAMP_REGS[n])
    _stamp_n[0] += 1


def stamp_flush(a, kid):
    if not STAMP:
        return
    a('s_getreg_b32 s%d, hwreg(HW_REG_XCC_ID)' % STAMP_REGS[_stamp_n[0]])
    n = _stamp_n[0] + 1
    _stamp_n[0] = 0
    a('s_mov_b64 exec, 1')
    a('s_add_u32 s68, s%d, 0x%x' % (P_WS, STAMP_OFF + kid * 0x100000))
    a('s_addc_u32 s69, s%d, 0' % (P_WS + 1))
    a('s_mov_b32 s70, 0x100000')
    a('s_mov_b32 s71, 0x00020000')
    a('s_lshl_b32 s94, s2, 4')
    a('s_add_u32 s94, s94, s26')
    a('s_lshl_b32 s94, s94, 7')
    a('v_mov_b32 v1, 0')
    for i in range(n):
        a('v_mov_b32 v2, s%d' % STAMP_REGS[i])
        a('buffer_store_dword v2, v1, s[68:71], s94 offen offset:%d' % (4 * i))
        a('s_nop 1')


def bf16r(a, v, tmp):
    a('v_cvt_pk_bf16_f32 %s, %s, %s' % (vr(tmp), vr(v), vr(v)))
    a('v_lshlrev_b32 %s, 16, %s' % (vr(v), vr(tmp)))


def magic(dv, maxv):
    for sh in range(4, 24):
        mul = (1 << sh) // dv + 1
        if all((x * mul) >> sh == x // dv for x in range(maxv + 1)):
            return mul, sh
    raise ValueError


def sdiv(a, dq, dr, src, dv, maxv):
    mul, sh = magic(dv, maxv)
    a('s_mul_i32 s%d, s%d, %d' % (dq, src, mul))
    a('s_lshr_b32 s%d, s%d, %d' % (dq, dq, sh))
    a('s_mul_i32 s%d, s%d, %d' % (dr, dq, dv))
    a('s_sub_u32 s%d, s%d, s%d' % (dr, src, dr))


NPREP = 460
CODEPF = int(os.environ.get('CODEPF', 1))


def gen_prep(a):
    entry(a, 'prep_kernel')
    a('s_cmp_ge_u32 s2, %d' % NPREP)
    a('s_cbranch_scc1 prep_end')
    load_kernargs(a)
    a('v_and_b32 v1, 63, v0')
    a('v_lshrrev_b32 v2, 6, v0')
    a('v_and_b32 v3, 7, v1')
    a('v_readfirstlane_b32 s24, v2')
    a('v_lshrrev_b32 v4, 3, v1')
    a('s_waitcnt lgkmcnt(0)')
    stamp(a)
    stamp_rt(a)
    if STAMP:
        a('s_mov_b32 s74, s72')
    if CODEPF:
        a('s_cmp_ge_u32 s2, 24')
        a('s_cbranch_scc1 prep_nocpf')
        a('s_getpc_b64 s[56:57]')
        a.label('prep_pc')
        a('s_lshr_b32 s58, s2, 3')
        a('s_mul_i32 s58, s58, 3')
        a('s_add_u32 s58, s58, s24')
        a('s_lshl_b32 s58, s58, 13')
        a('v_lshlrev_b32 v62, 7, v1')
        a('v_add_u32 v62, s58, v62')
        a('v_cmp_gt_u32 vcc, code_end-prep_pc-4, v62')
        a('s_and_saveexec_b64 s[58:59], vcc')
        a('s_cbranch_execz prep_cpf_skip')
        a('global_load_dword v63, v62, s[56:57]')
        a.label('prep_cpf_skip')
        a('s_mov_b64 exec, -1')
        a.label('prep_nocpf')
    a('s_cmp_ge_u32 s2, 332')
    a('s_cbranch_scc1 prep_x')
    a('s_cmp_ge_u32 s2, 308')
    a('s_cbranch_scc1 prep_zero')
    a('s_cmp_ge_u32 s2, 296')
    a('s_cbranch_scc1 prep_spec')
    a('s_cmp_ge_u32 s2, 216')
    a('s_cbranch_scc1 prep_phi')
    a('s_cmp_ge_u32 s2, 162')
    a('s_cbranch_scc1 prep_wo')
    a('s_cmp_ge_u32 s2, 81')
    a('s_cselect_b32 s32, s%d, s%d' % (P_BWQKV, P_AWQKV))
    a('s_cselect_b32 s33, s%d, s%d' % (P_BWQKV + 1, P_AWQKV + 1))
    a('s_cselect_b32 s25, 0x%x, 0' % (WQB - WQA))
    a('s_cselect_b32 s29, 0x%x, 0' % (CSB - CSA))
    a('s_cselect_b32 s26, 81, 0')
    a('s_add_u32 s29, s29, 0x%x' % CSA)
    a('s_mov_b32 s34, %d' % (576 * 3456))
    a('s_mov_b32 s35, 0x00020000')
    srd(a, 36, P_WS, 's25', WQ_SZ)
    srd(a, 52, P_WS, 's29', CS_SZ)
    a('s_sub_u32 s26, s2, s26')
    sdiv(a, 27, 28, 26, 3, 80)
    sdiv(a, 29, 30, 27, 9, 26)
    a('s_mul_i32 s31, s28, 3')
    a('s_add_u32 s31, s31, s24')
    for e in range(8):
        a('s_mov_b32 s%d, %d' % (40 + e, e * 3456))
    a('s_lshl_b32 s30, s30, 6')
    a('v_lshl_add_u32 v5, v3, 3, s30')
    a('s_lshl_b32 s48, s31, 3')
    a('v_add_u32 v6, s48, v4')
    a('v_mul_u32_u24 v7, %d, v6' % (8 * 3456))
    a('v_lshl_add_u32 v7, v5, 1, v7')
    a('s_mul_i32 s48, s29, 1152')
    a('v_add_u32 v7, s48, v7')
    for e in range(8):
        a('buffer_load_dwordx4 v[%d:%d], v7, s[32:35], s%d offen' % (16 + 4 * e, 19 + 4 * e, 40 + e))
    a('v_add_u32 v10, s30, v1')
    a('v_mul_u32_u24 v11, 3641, v10')
    a('v_lshrrev_b32 v11, 16, v11')
    a('v_mul_u32_u24 v12, 18, v11')
    a('v_sub_u32 v12, v10, v12')
    a('v_and_b32 v13, 1, v11')
    a('s_lshl_b32 s48, s29, 11')
    a('s_sub_u32 s48, s48, 2048')
    a('s_cmp_eq_u32 s29, 0')
    a('s_cselect_b32 s48, 92160, s48')
    a('s_mov_b32 s50, 5120')
    a('s_cselect_b32 s50, 2048, s50')
    a('s_lshl_b32 s49, s29, 6')
    a('s_add_u32 s49, s49, %d' % (4096 - 256))
    a('v_cmp_gt_u32 vcc, 16, v12')
    a('v_lshl_add_u32 v14, v13, 5, s49')
    a('v_lshl_add_u32 v13, v13, 10, s48')
    a('v_lshrrev_b32 v11, 1, v11')
    a('v_cndmask_b32 v13, v14, v13, vcc')
    a('v_mov_b32 v14, 5120')
    a('v_mov_b32 v15, s50')
    a('s_mov_b32 s50, 129024')
    a('v_cndmask_b32 v14, v14, v15, vcc')
    a('v_mul_u32_u24 v11, s50, v11')
    a('v_lshl_add_u32 v13, v12, 4, v13')
    a('v_add_u32 v13, v13, v11')
    a('s_lshl_b32 s62, s31, 1')
    a('v_mad_u32_u24 v48, v14, s62, v13')
    a('v_add_u32 v51, v48, v14')
    a('s_mov_b32 s62, 0')
    a('s_mov_b32 s63, 0')
    a('s_mov_b32 s51, 1')
    a('s_branch prep_tr')
    a.label('prep_wo')
    a('s_cmp_ge_u32 s2, 189')
    a('s_cselect_b32 s32, s%d, s%d' % (P_BWO, P_AWO))
    a('s_cselect_b32 s33, s%d, s%d' % (P_BWO + 1, P_AWO + 1))
    a('s_cselect_b32 s25, 0x%x, 0' % (WOB - WOA))
    a('s_cselect_b32 s26, 27, 0')
    a('s_add_u32 s25, s25, 0x%x' % WOA)
    a('s_add_u32 s26, s26, 162')
    a('s_mov_b32 s34, %d' % (576 * 1152))
    a('s_mov_b32 s35, 0x00020000')
    srd(a, 36, P_WS, 's25', WO_SZ)
    srd(a, 52, P_WS, CSA, CS_SZ)
    a('s_sub_u32 s26, s2, s26')
    sdiv(a, 27, 28, 26, 3, 26)
    a('s_mul_i32 s31, s28, 3')
    a('s_add_u32 s31, s31, s24')
    a('s_lshl_b32 s48, s31, 3')
    a('v_add_u32 v6, s48, v4')
    a('s_cmp_eq_u32 s31, 8')
    a('s_cbranch_scc1 prep_b_tail')
    for e, o in enumerate([0, 1, 2, 3, 8, 9, 10, 11]):
        a('s_mov_b32 s%d, %d' % (40 + e, o * 1152))
    a('v_lshrrev_b32 v7, 1, v6')
    a('v_mul_u32_u24 v7, 18, v7')
    a('v_and_b32 v8, 1, v6')
    a('v_lshl_add_u32 v7, v8, 2, v7')
    a('s_branch prep_b_row')
    a.label('prep_b_tail')
    for e, o in enumerate([0, 1, 18, 19, 36, 37, 54, 55]):
        a('s_mov_b32 s%d, %d' % (40 + e, o * 1152))
    a('v_mul_u32_u24 v7, 72, v4')
    a('v_add_u32 v7, 16, v7')
    a.label('prep_b_row')
    a('v_mul_u32_u24 v7, 1152, v7')
    a('v_lshl_add_u32 v7, v3, 4, v7')
    a('s_lshl_b32 s30, s27, 7')
    a('v_add_u32 v7, s30, v7')
    for e in range(8):
        a('buffer_load_dwordx4 v[%d:%d], v7, s[32:35], s%d offen' % (16 + 4 * e, 19 + 4 * e, 40 + e))
    a('s_lshl_b32 s30, s27, 6')
    a('v_add_u32 v8, s30, v1')
    a('v_mul_u32_u24 v9, 911, v8')
    a('v_lshrrev_b32 v9, 16, v9')
    a('v_mul_u32_u24 v10, 72, v9')
    a('v_sub_u32 v8, v8, v10')
    a('s_mov_b32 s30, 92160')
    a('v_mul_u32_u24 v9, s30, v9')
    a('v_lshrrev_b32 v10, 4, v8')
    a('v_lshl_add_u32 v9, v10, 10, v9')
    a('v_and_b32 v8, 15, v8')
    a('v_lshl_add_u32 v48, v8, 4, v9')
    a('v_mov_b32 v51, v48')
    a('s_mul_i32 s62, s31, 10240')
    a('s_add_u32 s63, s62, 5120')
    a('s_mov_b32 s51, 0')
    a.label('prep_tr')
    a('s_mul_i32 s30, s24, 9216')
    a('v_mul_u32_u24 v49, 1152, v4')
    a('v_mul_u32_u24 v50, 144, v3')
    a('v_add3_u32 v49, v49, v50, s30')
    a('v_add_u32 v50, v1, v4')
    a('v_lshlrev_b32 v50, 4, v50')
    a('v_add_u32 v50, s30, v50')
    a('s_mov_b32 s30, 0x05040100')
    a('s_mov_b32 s31, 0x07060302')
    a('s_mov_b32 s26, 0x3f803f80')
    a('s_waitcnt vmcnt(0)')
    stamp(a)
    for c in range(8):
        p, o = c >> 1, c & 1
        ob = 64 + 4 * c
        for q in range(4):
            a('v_perm_b32 v%d, v%d, v%d, s%d' % (ob + q, 16 + 4 * (2 * q + 1) + p, 16 + 4 * (2 * q) + p, 30 + o))
        a('ds_write_b128 v49, v[%d:%d] offset:%d' % (ob, ob + 3, 16 * c))
    a('s_waitcnt lgkmcnt(0)')
    for kg in range(8):
        a('ds_read_b128 v[%d:%d], v50 offset:%d' % (16 + 4 * kg, 19 + 4 * kg, kg * 1152))
    for kg in range(8):
        a('s_waitcnt lgkmcnt(%d)' % (7 - kg))
        a('buffer_store_dwordx4 v[%d:%d], v%d, s[36:39], s%d offen offset:%d' % (16 + 4 * kg, 19 + 4 * kg, 48 if kg < 4 else 51, 62 + (kg >> 2), (kg & 3) * 256))
    a('s_cmp_eq_u32 s51, 0')
    a('s_cbranch_scc1 prep_end')
    for n in range(32):
        a('v_dot2_f32_bf16 v%d, v%d, s26, %s' % (52 + (n & 3), 16 + n, '0' if n < 4 else 'v%d' % (52 + (n & 3))))
    a('v_lshlrev_b32 v10, 2, v0')
    a('s_nop 1')
    a('v_add_f32 v52, v52, v53')
    a('v_add_f32 v54, v54, v55')
    a('v_add_f32 v52, v52, v54')
    a('ds_write_b32 v10, v52 offset:27648')
    a('s_waitcnt lgkmcnt(0)')
    a('s_barrier')
    a('s_cmp_lg_u32 s24, 0')
    a('s_cbranch_scc1 prep_end')
    for i in range(3):
        a('ds_read_b32 v%d, v10 offset:%d' % (16 + i, 27648 + i * 256))
    a('s_mul_i32 s30, s29, 9')
    a('s_sub_u32 s30, s27, s30')
    a('s_lshl_b32 s30, s30, 6')
    a('s_lshl_b32 s48, s29, 9')
    a('s_lshl_b32 s49, s29, 6')
    a('s_add_u32 s49, s49, %d' % (96 * 16 - 256))
    a('s_mov_b32 s50, %d' % (3 * 448 * 4))
    a('v_add_u32 v10, s30, v1')
    a('s_mul_i32 s30, s28, %d' % (448 * 4))
    a('v_mov_b32 v8, s30')
    a('v_mul_u32_u24 v11, 3641, v10')
    a('v_lshrrev_b32 v11, 16, v11')
    a('v_mul_u32_u24 v12, 18, v11')
    a('v_sub_u32 v12, v10, v12')
    a('v_and_b32 v13, 1, v11')
    a('v_cmp_gt_u32 vcc, 16, v12')
    a('v_lshl_add_u32 v14, v13, 5, s49')
    a('v_lshl_add_u32 v13, v13, 8, s48')
    a('v_lshrrev_b32 v11, 1, v11')
    a('v_cndmask_b32 v13, v14, v13, vcc')
    a('v_mul_u32_u24 v11, s50, v11')
    a('v_lshl_add_u32 v13, v12, 4, v13')
    a('v_add3_u32 v13, v13, v11, v8')
    a('v_lshrrev_b32 v13, 2, v13')
    a('s_waitcnt lgkmcnt(0)')
    a('v_add_f32 v16, v16, v17')
    a('v_add_f32 v16, v16, v18')
    a('buffer_store_dword v16, v13, s[52:55], 0 offen')
    a('s_branch prep_end')
    a.label('prep_phi')
    srd(a, 32, P_AWPHI, 0, 32 * 324 * 2)
    srd(a, 36, P_WS, TPHI, TPHI_SZ)
    a('s_sub_u32 s26, s2, 216')
    sdiv(a, 27, 29, 26, 5, 79)
    a('s_mov_b32 s28, s24')
    a('v_and_b32 v2, 3, v1')
    a('v_bfe_u32 v3, v1, 2, 1')
    a('v_bfe_u32 v4, v1, 3, 1')
    a('v_lshrrev_b32 v5, 4, v1')
    a('v_lshlrev_b32 v6, 15, v3')
    a('v_lshl_or_b32 v6, v6, 16, v6')
    a('v_cmp_eq_u32 s[50:51], 0, v4')
    a('s_lshl_b32 s30, s29, 2')
    a('v_add_u32 v7, s30, v2')
    a('v_lshlrev_b32 v8, 2, v5')
    a('s_cmp_eq_u32 s28, 0')
    a('s_cbranch_scc1 prep_phi_d0')
    a('v_mov_b32 v8, 16')
    a.label('prep_phi_d0')
    a('s_lshl_b32 s30, s27, 1')
    a('v_add_u32 v9, s30, v4')
    a('v_mul_u32_u24 v9, 324, v9')
    a('v_mul_u32_u24 v8, 18, v8')
    a('v_add3_u32 v9, v9, v8, v7')
    a('v_lshlrev_b32 v9, 1, v9')
    a('v_mov_b32 v10, 0x7fff0000')
    a('v_cmp_gt_u32 vcc, 18, v7')
    a('s_nop 1')
    a('v_cndmask_b32 v9, v10, v9, vcc')
    a('s_cmp_eq_u32 s28, 0')
    a('s_cbranch_scc1 prep_phi_ld')
    a('s_sub_u32 s30, s28, 1')
    a('v_cmp_eq_u32 vcc, s30, v5')
    a('s_nop 1')
    a('v_cndmask_b32 v9, v10, v9, vcc')
    a.label('prep_phi_ld')
    for i in range(4):
        a('buffer_load_ushort v%d, v9, s[32:35], 0 offen offset:%d' % (16 + i, i * 36))
    a('s_waitcnt vmcnt(0)')
    a('v_lshl_or_b32 v16, v17, 16, v16')
    a('v_lshl_or_b32 v18, v19, 16, v18')
    a('v_xor_b32 v16, v16, v6')
    a('v_xor_b32 v18, v18, v6')
    a('v_cndmask_b32 v20, 0, v16, s[50:51]')
    a('s_cmp_eq_u32 s28, 0')
    a('s_cbranch_scc0 prep_phi_tb')
    a('v_cndmask_b32 v21, 0, v18, s[50:51]')
    a('v_cndmask_b32 v22, v16, 0, s[50:51]')
    a('v_cndmask_b32 v23, v18, 0, s[50:51]')
    a('s_branch prep_phi_st')
    a.label('prep_phi_tb')
    a('v_cndmask_b32 v21, v16, 0, s[50:51]')
    a('v_mov_b32 v22, 0')
    a('v_mov_b32 v23, 0')
    a.label('prep_phi_st')
    a('s_mul_i32 s30, s27, 15')
    a('s_mul_i32 s31, s28, 5')
    a('s_add_u32 s30, s30, s31')
    a('s_add_u32 s30, s30, s29')
    a('s_lshl_b32 s30, s30, 10')
    a('v_lshlrev_b32 v11, 4, v1')
    a('buffer_store_dwordx4 v[20:23], v11, s[36:39], s30 offen')
    a('s_branch prep_end')
    a.label('prep_spec')
    a('s_sub_u32 s26, s2, 296')
    a('s_cmp_ge_u32 s26, 6')
    a('s_cselect_b32 s25, 0x%x, 0' % (WQB - WQA))
    a('s_cselect_b32 s29, 0x%x, 0' % (CSB - CSA))
    a('s_cselect_b32 s27, 6, 0')
    a('s_add_u32 s29, s29, 0x%x' % CSA)
    srd(a, 36, P_WS, 's25', WQ_SZ)
    srd(a, 52, P_WS, 's29', CS_SZ)
    a('s_sub_u32 s26, s26, s27')
    a('s_mul_i32 s26, s26, 192')
    a('v_add_u32 v2, s26, v0')
    a('v_lshrrev_b32 v3, 2, v2')
    a('v_mul_u32_u24 v4, 3641, v3')
    a('v_lshrrev_b32 v4, 16, v4')
    a('v_mul_u32_u24 v6, 18, v4')
    a('v_sub_u32 v6, v3, v6')
    a('s_mov_b32 s28, 129024')
    a('v_mul_u32_u24 v4, s28, v4')
    a('v_mul_u32_u24 v6, 5120, v6')
    a('v_add_u32 v4, v4, v6')
    a('v_and_b32 v5, 3, v2')
    a('v_lshl_add_u32 v4, v5, 8, v4')
    a('v_add_u32 v4, %d, v4' % (4096 + 192))
    for i in range(4):
        a('v_mov_b32 v%d, 0x3f803f80' % (8 + i))
        a('v_mov_b32 v%d, 0' % (12 + i))
    a('buffer_store_dwordx4 v[8:11], v4, s[36:39], 0 offen')
    for i in range(1, 4):
        a('buffer_store_dwordx4 v[12:15], v4, s[36:39], 0 offen offset:%d' % (16 * i))
    a('v_mul_u32_u24 v6, 448, v2')
    a('v_add_u32 v6, 432, v6')
    a('buffer_store_dwordx4 v[12:15], v6, s[52:55], 0 offen')
    a('s_branch prep_end')
    a.label('prep_zero')
    srd(a, 36, P_WS, KV1, 2 * KV_SZ)
    a('s_sub_u32 s27, s2, 308')
    a('s_mul_i32 s27, s27, 9216')
    a('v_lshlrev_b32 v2, 4, v0')
    a('v_add_u32 v2, s27, v2')
    for i in range(4):
        a('v_mov_b32 v%d, 0' % (4 + i))
    for k in range(3):
        a('s_mov_b32 s28, %d' % (k * 3072))
        a('buffer_store_dwordx4 v[4:7], v2, s[36:39], s28 offen')
    srd(a, 36, P_WS, FL, FL_SZ)
    a('s_sub_u32 s27, s2, 308')
    a('s_mul_i32 s27, s27, 3072')
    a('v_lshlrev_b32 v2, 4, v0')
    a('buffer_store_dwordx4 v[4:7], v2, s[36:39], s27 offen')
    a('s_branch prep_end')
    a.label('prep_x')
    srd(a, 32, P_AX, 0, X_SZ)
    srd(a, 36, P_WS, X0, X_SZ)
    a('s_sub_u32 s26, s2, 332')
    a('s_and_b32 s27, s26, 3')
    a('s_lshl_b32 s27, s27, 5')
    a('s_lshr_b32 s26, s26, 2')
    a('s_add_u32 s26, s26, s27')
    a('v_lshrrev_b32 v2, 2, v1')
    a('v_and_b32 v3, 3, v1')
    a('v_mul_u32_u24 v4, 1152, v2')
    a('v_lshl_add_u32 v4, v3, 4, v4')
    a('s_mul_i32 s27, s26, 18432')
    a('s_mul_i32 s28, s24, 384')
    a('s_add_u32 s28, s28, s27')
    for t in range(6):
        a('buffer_load_dwordx4 v[%d:%d], v4, s[32:35], s28 offen offset:%d' % (16 + 4 * t, 19 + 4 * t, t * 64))
    a('v_lshlrev_b32 v5, 4, v2')
    a('v_lshl_add_u32 v5, v3, 8, v5')
    a('s_mul_i32 s28, s24, 6144')
    a('v_add_u32 v5, s28, v5')
    a('v_lshlrev_b32 v6, 4, v1')
    a('v_add_u32 v7, s28, v6')
    a('s_add_u32 s28, s28, s27')
    a('s_add_u32 s29, s28, 3072')
    for t in range(6):
        a('s_waitcnt vmcnt(%d)' % (5 - t))
        a('ds_write_b128 v5, v[%d:%d] offset:%d' % (16 + 4 * t, 19 + 4 * t, t * 1024))
    a('s_waitcnt lgkmcnt(0)')
    for t in range(6):
        a('ds_read_b128 v[%d:%d], v7 offset:%d' % (40 + 4 * t, 43 + 4 * t, t * 1024))
    for t in range(6):
        a('s_waitcnt lgkmcnt(%d)' % (5 - t))
        a('buffer_store_dwordx4 v[%d:%d], v6, s[36:39], s%d offen offset:%d' % (40 + 4 * t, 43 + 4 * t, 28 + t // 3, (t % 3) * 1024))
    a.label('prep_end')
    if STAMP:
        a('s_cmp_ge_u32 s2, %d' % NPREP)
        a('s_cbranch_scc1 prep_end2')
        a('s_mov_b64 exec, -1')
        stamp(a)
        a('s_waitcnt vmcnt(0)')
        stamp(a)
        stamp_rt(a)
        a('s_mov_b32 s26, s24')
        a('s_lshr_b32 s3, s2, 8')
        a('s_lshl_b32 s3, s3, 2')
        a('s_add_u32 s26, s26, s3')
        a('s_and_b32 s2, s2, 255')
        stamp_flush(a, 5)
        a.label('prep_end2')
    a('s_endpgm')
    return [('prep_kernel', 96, 96)]


XF0 = 32
ACC0 = 104
WB0 = 168
LDS_T = 127 * 1024
LDS_PK = 32 * 1024
PK_STRIDE = 224
QDEPTH = int(os.environ.get('QDEPTH', 3))
SPREAD = int(os.environ.get('SPREAD', 1))
LSLOTS = [1, 5, 9, 13]


def XF(a_, t):
    return XF0 + (a_ * 9 + t) * 4


def ACC(a_, u):
    return ACC0 + (a_ * 8 + u) * 4


def p2(r):
    return 'v[%d:%d]' % (r, r + 1)


def softmax18(a, D, sL, tmp):
    m, s_ = tmp, tmp + 2
    a('v_max3_f32 %s, %s, %s, %s' % (vr(m), vr(D), vr(D + 1), vr(D + 2)))
    a('v_max3_f32 %s, %s, %s, %s' % (vr(m + 1), vr(D + 3), vr(D + 4), vr(D + 5)))
    for i in range(6, 18, 4):
        a('v_max3_f32 %s, %s, %s, %s' % (vr(m), vr(m), vr(D + i), vr(D + i + 1)))
        a('v_max3_f32 %s, %s, %s, %s' % (vr(m + 1), vr(m + 1), vr(D + i + 2), vr(D + i + 3)))
    a('v_max_f32 %s, %s, %s' % (vr(m), vr(m), vr(m + 1)))
    a('v_mul_f32 %s, s%d, %s' % (vr(m), sL, vr(m)))
    pf = lambda k: a('v_pk_fma_f32 %s, %s, s[%d:%d], %s op_sel_hi:[1,0,0] neg_lo:[0,0,1] neg_hi:[0,0,1]' % (p2(D + 2 * k), p2(D + 2 * k), sL, sL + 1, p2(m)))
    pf(0)
    pf(1)
    for k in range(9):
        a('v_exp_f32 %s, %s' % (vr(D + 2 * k), vr(D + 2 * k)))
        if k + 2 < 9:
            pf(k + 2)
        elif k == 7:
            a('v_pk_add_f32 %s, %s, %s' % (p2(s_), p2(s_), p2(D + 10)))
        else:
            a('v_pk_add_f32 %s, %s, %s' % (p2(s_), p2(s_), p2(D + 14)))
        a('v_exp_f32 %s, %s' % (vr(D + 2 * k + 1), vr(D + 2 * k + 1)))
        if k == 2:
            a('v_pk_add_f32 %s, %s, %s' % (p2(s_), p2(D), p2(D + 2)))
        elif 3 <= k <= 5:
            a('v_pk_add_f32 %s, %s, %s' % (p2(s_), p2(s_), p2(D + 2 * k - 2)))
        elif k == 7:
            a('v_pk_add_f32 %s, %s, %s' % (p2(s_), p2(s_), p2(D + 12)))
        elif k == 8:
            a('s_nop 0')
    a('v_pk_add_f32 %s, %s, %s' % (p2(s_), p2(s_), p2(D + 16)))
    a('v_add_f32 %s, %s, %s' % (vr(s_), vr(s_), vr(s_ + 1)))
    a('v_rcp_f32 %s, %s' % (vr(s_), vr(s_)))
    a('s_nop 0')
    for k in range(9):
        a('v_pk_mul_f32 %s, %s, %s op_sel_hi:[1,0]' % (p2(D + 2 * k), p2(D + 2 * k), p2(s_)))
    for i in range(9):
        a('v_cvt_pk_bf16_f32 %s, %s, %s' % (vr(D + i), vr(D + 2 * i), vr(D + 2 * i + 1)))


SWS, SOUT = 32, 36
F_KVC, F_OC, F_XC, F_KVF = FL, FL + 4096, FL + 12288, FL + 20480
SPIN_LIMIT = 40000
PFN = int(os.environ.get('PFN', 4))
LOCAL = int(os.environ.get('LOCAL', 0))
F_OW, F_XW, F_GRP = FL + 24576, FL + 28672, FL + 32768
XD = int(os.environ.get('XD', 3))
OD = int(os.environ.get('OD', 4))
PT = int(os.environ.get('PT', 0))
O_A = int(os.environ.get('O_A', 0))
O_B = int(os.environ.get('O_B', 1))
O_P = int(os.environ.get('O_P', 0))
WQ_PRE = int(os.environ.get('WQ_PRE', 8))
WOMAP = int(os.environ.get('WOMAP', 1))
L_T, L_CS = 0, 16384
L_W = 34816
L_Q = L_W + 92160
L_PK = L_W
L_PHI = L_W
L_KV = 0
L_X2A, L_X2B = 17408, 71680
L_QP = 88064
L_WO = 70 * 1024
L_WX = 0
IM_P = 6144 + 64
I_K0, I_K1, I_V0, I_V1, I_VT = 0, IM_P, 2 * IM_P, 3 * IM_P, 4 * IM_P
I_KT = 5 * IM_P
IM_HEAD = I_KT + 3072
MEGA_LDS = 160 * 1024
_uid = [0]


FINE = int(os.environ.get('FINE', 0))


def mstamp(a, fine=False):
    if not STAMP or (FINE and not fine) or (fine == 2 and not FINE):
        return
    a('s_memtime s[94:95]')
    a('s_waitcnt lgkmcnt(0)')
    a('s_mov_b32 s92, m0')
    a('s_mov_b32 m0, s93')
    a('s_nop 1')
    a('v_writelane_b32 v2, s94, m0')
    a('s_mov_b32 m0, s92')
    a('s_add_u32 s93, s93, 1')


def ws_ld(a, dst, n, voff, soff, imm=0, extra=''):
    a('buffer_load_dword%s %s, %s, s[%d:%d], %s offen offset:%d %s' % ('' if n == 1 else 'x%d' % n, vr(dst, n), voff, SWS, SWS + 3, soff, imm, extra))


def ws_dma(a, soff, imm=0, extra=''):
    a('buffer_load_dwordx4 v5, s[%d:%d], %s offen offset:%d %s lds' % (SWS, SWS + 3, soff, imm, extra))


def ws_st(a, src, n, voff, soff, imm=0, extra='sc1'):
    a('buffer_store_dword%s %s, %s, s[%d:%d], %s offen offset:%d %s' % ('' if n == 1 else 'x%d' % n, vr(src, n), voff, SWS, SWS + 3, soff, imm, extra))


def arrive(a, soff):
    _uid[0] += 1
    l = 'arr%d' % _uid[0]
    a('s_cmp_lg_u32 s26, 0')
    a('s_cbranch_scc1 %s' % l)
    a('v_mov_b32 v29, 0')
    a('v_mov_b32 v30, 1')
    a('s_mov_b64 exec, 1')
    a('buffer_atomic_add v30, v29, s[%d:%d], %s offen sc1' % (SWS, SWS + 3, soff))
    a('s_mov_b64 exec, -1')
    a.label(l)


def warrive(a, soff):
    a('v_mov_b32 v29, 0')
    a('v_mov_b32 v30, 1')
    a('s_mov_b64 exec, 1')
    a('buffer_atomic_add v30, v29, s[%d:%d], %s offen sc1' % (SWS, SWS + 3, soff))
    a('s_mov_b64 exec, -1')


def poll(a, soffs, target, skip_cond=None):
    _uid[0] += 1
    l = 'pl%d' % _uid[0]
    a('s_cmp_lg_u32 s26, 0')
    a('s_cbranch_scc1 %s_e' % l)
    if skip_cond:
        a(skip_cond)
        a('s_cbranch_scc1 %s_e' % l)
    a('v_mov_b32 v29, 0')
    a('s_mov_b64 exec, 1')
    a('s_mov_b32 s90, 0')
    n = len(soffs)
    ld = lambda base: [a('buffer_load_dword v%d, v29, s[%d:%d], %s offen sc1' % (base + q, SWS, SWS + 3, so)) for q, so in enumerate(soffs)]
    if O_P:
        a('s_waitcnt vmcnt(0)')
        ld(27)
        a.label(l)
        ld(0 if n == 1 else 30)
        a('s_waitcnt vmcnt(%d)' % n)
        if n == 2:
            a('v_min_u32 v27, v27, v28')
            a('s_nop 0')
        a('v_readfirstlane_b32 s91, v27')
        a('s_cmp_ge_u32 s91, %d' % target)
        a('s_cbranch_scc1 %s_d' % l)
        ld(27)
        a('s_waitcnt vmcnt(%d)' % n)
        if n == 2:
            a('v_min_u32 v30, v30, v31')
            a('s_nop 0')
        a('v_readfirstlane_b32 s91, v%d' % (0 if n == 1 else 30))
    else:
        a.label(l)
        ld(27)
        a('s_waitcnt vmcnt(0)')
        if n == 2:
            a('v_min_u32 v27, v27, v28')
            a('s_nop 0')
        a('v_readfirstlane_b32 s91, v27')
    a('s_add_u32 s90, s90, 1')
    a('s_cmp_ge_u32 s90, %d' % SPIN_LIMIT)
    a('s_cbranch_scc1 %s_d' % l)
    a('s_cmp_lt_u32 s91, %d' % target)
    a('s_cbranch_scc1 %s' % l)
    a.label('%s_d' % l)
    a('s_mov_b64 exec, -1')
    a.label('%s_e' % l)


def st_mode(a, emit):
    _uid[0] += 1
    l = 'sm%d' % _uid[0]
    a('s_cmp_eq_u32 s16, 1')
    a('s_cbranch_scc1 %s_l' % l)
    emit('sc1')
    a('s_branch %s_e' % l)
    a.label('%s_l' % l)
    emit('')
    a.label('%s_e' % l)


def arrive2(a, s_cnt, s_word, s_me):
    _uid[0] += 1
    l = 'ar%d' % _uid[0]
    a('s_cmp_lg_u32 s26, 0')
    a('s_cbranch_scc1 %s_e' % l)
    a('v_mov_b32 v30, 1')
    a('s_mov_b64 exec, 1')
    a('s_cmp_eq_u32 s16, 1')
    a('s_cbranch_scc1 %s_l' % l)
    a('v_mov_b32 v29, 0')
    a('buffer_atomic_add v30, v29, s[%d:%d], %s offen sc1' % (SWS, SWS + 3, s_cnt))
    a('s_branch %s_x' % l)
    a.label('%s_l' % l)
    a('s_lshl_b32 s90, %s, 2' % s_me)
    a('v_mov_b32 v29, s90')
    a('buffer_store_dword v30, v29, s[%d:%d], %s offen' % (SWS, SWS + 3, s_word))
    a.label('%s_x' % l)
    a('s_mov_b64 exec, -1')
    a.label('%s_e' % l)


def poll2(a, s_cnt, s_word, skip_cond=None):
    _uid[0] += 1
    l = 'pw%d' % _uid[0]
    a('s_cmp_eq_u32 s16, 1')
    a('s_cbranch_scc1 %s_l' % l)
    poll(a, [s_cnt], 16, skip_cond)
    a('s_branch %s_e' % l)
    a.label('%s_l' % l)
    a('s_cmp_lg_u32 s26, 0')
    a('s_cbranch_scc1 %s_e' % l)
    if skip_cond:
        a(skip_cond)
        a('s_cbranch_scc1 %s_e' % l)
    a('v_lshlrev_b32 v29, 2, v1')
    a('s_mov_b64 exec, 0xffff')
    a('s_mov_b32 s90, 0')
    a.label(l)
    a('buffer_load_dword v27, v29, s[%d:%d], %s offen sc1' % (SWS, SWS + 3, s_word))
    a('s_waitcnt vmcnt(0)')
    a('v_cmp_eq_u32 vcc, 1, v27')
    a('s_add_u32 s90, s90, 1')
    a('s_cmp_ge_u32 s90, %d' % SPIN_LIMIT)
    a('s_cbranch_scc1 %s_d' % l)
    a('s_cmp_lg_u32 vcc_lo, 0xffff')
    a('s_cbranch_scc1 %s' % l)
    a.label('%s_d' % l)
    a('s_mov_b64 exec, -1')
    a.label('%s_e' % l)


def oimg_addr(a, s_rb32, s_head, s_main, s_tail, t1, t2):
    a('s_mul_i32 s%d, s10, 0x%x' % (t1, XS))
    a('s_mul_i32 s%d, s%d, 36864' % (s_tail, s_rb32))
    a('s_add_u32 s%d, s%d, s%d' % (s_tail, s_tail, t1))
    a('s_add_u32 s%d, s%d, 0x%x' % (s_tail, s_tail, OIMG))
    a('s_lshl_b32 s%d, s%d, 10' % (t1, s_head))
    a('s_and_b32 s%d, s%d, 1' % (t2, s_head))
    a('s_lshl_b32 s%d, s%d, 9' % (t2, t2))
    a('s_sub_u32 s%d, s%d, s%d' % (t1, t1, t2))
    a('s_add_u32 s%d, s%d, s%d' % (s_main, s_tail, t1))
    a('s_lshr_b32 s%d, s%d, 4' % (t1, s_head))
    a('s_lshl_b32 s%d, s%d, 11' % (t1, t1))
    a('s_add_u32 s%d, s%d, s%d' % (s_tail, s_tail, t1))
    a('s_bfe_u32 s%d, s%d, 0x20002' % (t1, s_head))
    a('s_lshl_b32 s%d, s%d, 8' % (t1, t1))
    a('s_add_u32 s%d, s%d, s%d' % (s_tail, s_tail, t1))
    a('s_and_b32 s%d, s%d, 3' % (t1, s_head))
    a('s_lshl_b32 s%d, s%d, 2' % (t1, t1))
    a('s_add_u32 s%d, s%d, s%d' % (s_tail, s_tail, t1))
    a('s_add_u32 s%d, s%d, 32768' % (s_tail, s_tail))


def o_store(a, OA, s_main, s_tail, vden, eps):
    a('v_bfe_u32 v26, v1, 4, 1')
    a('v_and_b32 v27, 15, v1')
    a('v_lshlrev_b32 v27, 4, v27')
    a('v_lshl_add_u32 v27, v26, 10, v27')
    a('v_lshrrev_b32 v26, 5, v1')
    a('v_lshl_add_u32 v28, v26, 8, v27')
    if eps:
        a('v_add_f32 v24, 0x%x, %s' % (f32bits(eps), vr(OA + 10)))
        a('v_rcp_f32 v24, v24')
    else:
        a('v_rcp_f32 v24, %s' % vr(OA + 10))
    a('s_nop 0')
    for n in range(0, 10, 2):
        a('v_pk_mul_f32 %s, %s, v[24:25] op_sel_hi:[1,0]' % (p2(OA + n), p2(OA + n)))
    for n in range(5):
        a('v_cvt_pk_bf16_f32 %s, %s, %s' % (vr(OA + n), vr(OA + 2 * n), vr(OA + 2 * n + 1)))

    def emit(fl):
        ws_st(a, OA, 4, 'v28', 's%d' % s_main, 0, fl)
        a('s_mov_b32 exec_hi, 0')
        ws_st(a, OA + 4, 1, 'v27', 's%d' % s_tail, 0, fl)
        a('s_mov_b32 exec_hi, -1')
    st_mode(a, emit)


def wq_dma(a, s_kind, lo, hi):
    a('s_lshl_b32 s31, s26, 10')
    a('s_add_u32 s31, s31, %d' % (lo * 8192))
    a('s_add_u32 m0, s31, %d' % L_W)
    a('s_mul_i32 s56, s25, 129024')
    a('s_add_u32 s31, s31, s56')
    a('s_mul_i32 s56, s%d, 0x%x' % (s_kind, WQB - WQA))
    a('s_add_u32 s31, s31, s56')
    for ii in range(lo, hi):
        if ii == 15:
            a('s_cmp_ge_u32 s26, 6')
            a('s_cselect_b32 s56, 8192, 0')
            a('s_sub_u32 m0, m0, s56')
            a('s_sub_u32 s31, s31, s56')
        ws_dma(a, 's31')
        if ii < hi - 1:
            a('s_add_u32 m0, m0, 8192')
            a('s_add_u32 s31, s31, 8192')


def wo_dma_ops(a):
    def first():
        a('s_lshl_b32 s31, s26, 10')
        a('s_add_u32 m0, s31, %d' % L_WO)
        a('s_mul_i32 s29, s13, 92160')
        a('s_add_u32 s31, s31, s29')
        a('s_mul_i32 s29, s14, 0x%x' % (WOB - WOA))
        a('s_add_u32 s31, s31, s29')
        a('s_add_u32 s31, s31, 0x%x' % WOA)
        ws_dma(a, 's31')

    def nxt():
        a('s_add_u32 m0, m0, 8192')
        a('s_add_u32 s31, s31, 8192')
        ws_dma(a, 's31')

    def last():
        a('s_cmp_lt_u32 s26, 2')
        a('s_cselect_b32 s29, 8192, 0')
        a('s_add_u32 m0, m0, s29')
        a('s_add_u32 s31, s31, s29')
        ws_dma(a, 's31')
    return [first] + [nxt] * 10 + [last]


def wq_pf_ops(a, n):
    per = 64 // n

    def first():
        a('s_lshr_b32 s4, s2, 3')
        a('s_lshl_b32 s4, s4, 3')
        a('s_add_u32 s4, s4, s26')
        a('s_lshl_b32 s4, s4, 13')
        a('s_xor_b32 s5, s14, 1')
        a('s_mul_i32 s5, s5, 0x%x' % (WQB - WQA))
        a('s_add_u32 s4, s4, s5')
        a('v_lshlrev_b32 v7, 7, v1')
        nxt0()

    def nxt0():
        a('s_mov_b64 exec, 0x%x' % ((1 << per) - 1))
        ws_ld(a, 0, 1, 'v7', 's4', 0, 'sc1')
        a('s_mov_b64 exec, -1')

    def nxt():
        a('s_add_u32 s4, s4, %d' % (per * 128))
        nxt0()
    return [first] + [nxt] * (n - 1)


class Sprinkle:
    def __init__(self, a, ops, n):
        self.a, self.ops, self.n, self.c = a, list(ops), n, 0

    def __call__(self, s_):
        self.a(s_)
        self.c += 1
        if self.c % self.n == 0 and self.ops:
            self.ops.pop(0)()

    def flush(self):
        while self.ops:
            self.ops.pop(0)()


OF, WV, CA = 36, 72, 16


def wfrag_reads(a):
    a('s_mul_i32 s31, s28, %d' % (9 * 5120))
    a('s_add_u32 s31, s31, %d' % L_WO)
    a('v_add_u32 v10, s31, v5')
    a('s_lshl_b32 s31, s28, 11')
    a('v_add_u32 v8, s31, v10')
    a('s_xor_b32 s31, s31, 2048')
    a('v_add_u32 v9, s31, v10')
    for t in range(9):
        for q in range(5):
            base, off = [('v8', 0), ('v8', 1024), ('v9', 0), ('v9', 1024), ('v10', 4096)][q]
            a('ds_read_b128 %s, %s offset:%d' % (vr(WV + 20 * t + 4 * q, 4), base, t * 5120 + off))


def gen_mega(a):
    entry(a, 'mega_kernel')
    a('s_cmp_ge_u32 s2, 256')
    a('s_cbranch_scc1 mega_end')
    a('s_load_dwordx2 s[18:19], s[0:1], 56')
    a('s_load_dwordx2 s[22:23], s[0:1], 72')
    a('s_and_b32 s24, s2, 3')
    a('s_lshl_b32 s12, s24, 3')
    a('s_lshl_b32 s24, s24, 2')
    a('s_bfe_u32 s25, s2, 0x20003')
    a('s_add_u32 s24, s24, s25')
    a('s_bfe_u32 s11, s2, 0x10002')
    a('s_lshl_b32 s13, s11, 2')
    a('s_add_u32 s13, s13, s25')
    a('s_lshl_b32 s25, s11, 3')
    a('s_lshr_b32 s26, s2, 5')
    a('s_add_u32 s25, s25, s26')
    a('s_add_u32 s12, s12, s26')
    if WOMAP:
        a('s_and_b32 s12, s2, 7')
        a('s_lshl_b32 s12, s12, 2')
        a('s_lshr_b32 s13, s2, 6')
        a('s_add_u32 s12, s12, s13')
        a('s_bfe_u32 s13, s2, 0x30003')
    a('v_lshrrev_b32 v2, 6, v0')
    a('v_and_b32 v1, 63, v0')
    a('v_readfirstlane_b32 s26, v2')
    a('v_lshlrev_b32 v5, 4, v1')
    a('v_mov_b32 v2, 0')
    a('s_mov_b32 s10, 0')
    a('s_mov_b32 s93, 0')
    a('s_and_b32 s27, s26, 3')
    a('s_lshr_b32 s28, s26, 2')
    a('s_waitcnt lgkmcnt(0)')
    srd(a, SWS, P_WS, 0, WS_USED)
    srd(a, SOUT, P_OUT, 0, X_SZ)
    a('s_mov_b32 s16, 0')
    a('s_mov_b32 s17, 0')
    a('s_and_b32 s9, s2, 7')
    a('s_lshl_b32 s9, s9, 7')
    a('s_add_u32 s9, s9, 0x%x' % F_GRP)
    if LOCAL:
        a('s_getreg_b32 s56, hwreg(HW_REG_XCC_ID)')
        a('s_and_b32 s56, s56, 7')
        a('s_lshl_b32 s56, s56, 2')
        a('s_add_u32 s56, s56, s9')
        arrive(a, 's56')
    if STAMP:
        a('s_memrealtime s[94:95]')
        a('s_memtime s[96:97]')
        a('s_waitcnt lgkmcnt(0)')
        a('v_writelane_b32 v2, s94, 62')
        a('v_writelane_b32 v2, s96, 61')
    wq_dma(a, 10, 0, 16)
    if not O_A:
        a('s_waitcnt vmcnt(0)')
        a('s_barrier')
    a.label('L_top')
    mstamp(a, True)
    a('s_and_b32 s14, s10, 1')
    a('s_lshl_b32 s31, s26, 11')
    a('s_add_u32 m0, s31, %d' % L_T)
    a('s_mul_i32 s56, s25, 15360')
    a('s_add_u32 s31, s31, s56')
    a('s_add_u32 s31, s31, 0x%x' % TPHI)
    a('s_cmp_eq_u32 s14, 1')
    a('s_cbranch_scc1 q_noTd')
    ws_dma(a, 's31')
    a('s_cmp_eq_u32 s26, 7')
    a('s_cbranch_scc1 q_noTd')
    ws_dma(a, 's31', 1024)
    a.label('q_noTd')
    a('s_mul_i32 s56, s25, 1344')
    a('s_mul_i32 s57, s14, 0x%x' % (CSB - CSA))
    a('s_add_u32 s56, s56, s57')
    a('s_add_u32 s56, s56, 0x%x' % CSA)
    for p in range(3):
        ws_ld(a, 224 + 4 * p, 4, 'v5', 's56', p * 448)
    a('v_and_b32 v3, 15, v1')
    a('v_lshrrev_b32 v4, 4, v1')
    a('s_lshl_b32 s29, s24, 7')
    a('s_lshl_b32 s30, s27, 5')
    a('s_add_u32 s29, s29, s30')
    a('s_lshl_b32 s30, s28, 4')
    a('s_add_u32 s29, s29, s30')
    a('v_add_u32 v6, s29, v3')
    a('s_lshr_b32 s30, s29, 4')
    a('s_xor_b32 s69, s30, 1')
    a('s_mul_i32 s30, s30, 18432')
    a('s_mul_i32 s69, s69, 18432')
    a('s_mul_i32 s31, s28, 9216')
    a('s_mul_i32 s56, s10, 0x%x' % XS)
    a('s_add_u32 s31, s31, s56')
    a('s_add_u32 s31, s31, 0x%x' % X0)
    a('s_add_u32 s30, s30, s31')
    a('s_add_u32 s69, s69, s31')
    a('s_mul_i32 s56, s28, 46080')
    a('s_add_u32 s56, s56, %d' % L_W)
    a('v_add_u32 v10, s56, v5')
    a('s_mul_i32 s57, s27, 6144')
    a('v_add_u32 v14, s57, v10')
    a('s_xor_b32 s56, s28, 1')
    a('s_mul_i32 s56, s56, 46080')
    a('s_add_u32 s56, s56, s57')
    a('s_add_u32 s56, s56, %d' % L_W)
    a('v_add_u32 v15, s56, v5')
    a('s_mul_i32 s56, s28, 18432')
    a('s_add_u32 s56, s56, %d' % L_Q)
    a('v_add_u32 v7, s56, v5')
    a('v_and_b32 v11, 3, v3')
    a('v_cmp_eq_u32 s[58:59], 1, v11')
    a('v_cmp_eq_u32 s[60:61], 2, v11')
    a('v_cmp_eq_u32 s[62:63], 3, v11')
    a('v_lshrrev_b32 v11, 2, v3')
    a('v_lshl_add_u32 v11, v11, 4, v3')
    a('v_lshlrev_b32 v11, 2, v11')
    a('v_lshlrev_b32 v24, 2, v3')
    a('v_add_u32 v24, 192, v24')
    a('v_lshlrev_b32 v25, 4, v4')
    a('v_add_u32 v25, %d, v25' % L_CS)
    a('v_add_u32 v26, %d, v5' % L_CS)
    a('s_lshl_b32 s56, s10, 4')
    a('s_add_u32 s56, s56, s24')
    a('s_lshl_b32 s56, s56, 7')
    a('s_add_u32 s56, s56, 0x%x' % (F_XC - 2048))
    a('s_waitcnt vmcnt(0)')
    for r in (0, 2):
        a('v_pk_add_f32 %s, %s, %s' % (p2(224 + r), p2(224 + r), p2(228 + r)))
    for r in (0, 2):
        a('v_pk_add_f32 %s, %s, %s' % (p2(224 + r), p2(224 + r), p2(232 + r)))
    a('s_cmp_lg_u32 s26, 1')
    a('s_cbranch_scc1 q_nocs')
    a('s_mov_b64 exec, 0xfffffff')
    a('ds_write_b128 v26, v[224:227]')
    a('s_mov_b64 exec, -1')
    a.label('q_nocs')
    mstamp(a)
    poll(a, ['s56'], 16, 's_cmp_eq_u32 s10, 0')
    a('s_waitcnt lgkmcnt(0)')
    a('s_barrier')
    mstamp(a, True)
    vm = VM(a)
    A1 = lambda a_, q: 104 + (a_ * 6 + q) * 4
    W1 = lambda t, q: 152 + 20 * (t & 1) + 4 * q

    def xl(t, which):
        if which == 0:
            if t and t % 4 == 0:
                a('s_add_u32 s30, s30, 4096')
                a('s_add_u32 s69, s69, 4096')
            ws_ld(a, XF(0, t), 4, 'v5', 's30', (t & 3) * 1024)
            vm.issue()
        else:
            ws_ld(a, XF(1, t), 4, 'v5', 's69', (t & 3) * 1024)
            vm.issue(t)
    for t in range(XD):
        xl(t, 0)
        xl(t, 1)
    for q in range(5):
        a('ds_read_b128 %s, v10 offset:%d' % (vr(W1(0, q), 4), q * 1024))
    wr = [5, 4, 0, 1, 2, 3]
    for t in range(9):
        a('s_waitcnt vmcnt(%d) lgkmcnt(0)' % vm.cnt(t))
        if t == 7:
            a('s_barrier')
        if t < 8:
            fill = [(lambda q=q: a('ds_read_b128 %s, v10 offset:%d' % (vr(W1(t + 1, q), 4), (t + 1) * 5120 + q * 1024))) for q in range(5)]
            if t + XD < 9:
                fill += [lambda: xl(t + XD, 0), None, None, lambda: xl(t + XD, 1)]
            seq = [(a_, q, t) for q in [5, 0, 1, 2, 3, 4] for a_ in (0, 1)]
            if t == 7:
                seq = [(1, q, 7) for q in wr]
        else:
            seq = [(1, q, 8) for q in wr] + [(0, q, 7) for q in wr] + [(0, q, 8) for q in wr]
            fill = [None] * 8
            for q in wr[:5]:
                fill += [(lambda q=q: a('ds_write_b128 v14, %s offset:%d' % (vr(A1(1, q), 4), q * 1024))), None]
        for k, (a_, q, tt) in enumerate(seq):
            A_ = vr(XF(a_, tt), 4) if q == 5 else vr(W1(tt, q), 4)
            c = '0' if tt == 0 else vr(A1(a_, q), 4)
            a('v_mfma_f32_16x16x32_bf16 %s, %s, %s, %s' % (vr(A1(a_, q), 4), A_, vr(XF(a_, tt), 4), c))
            if k < len(fill) and fill[k] is not None:
                fill[k]()
    a('ds_write_b128 v14, %s offset:%d' % (vr(A1(1, 3), 4), 3 * 1024))
    mstamp(a, True)
    CSK, CSQ = 192, 248
    a('s_waitcnt lgkmcnt(0)')
    a('s_barrier')
    for q in wr:
        a('ds_read_b128 %s, v15 offset:%d' % (vr(A1(1, q), 4), q * 1024))
    R = lambda q, r: A1(0, q) + r
    a('s_waitcnt lgkmcnt(4)')
    for r in (0, 2):
        a('v_pk_add_f32 %s, %s, %s' % (p2(R(5, r)), p2(R(5, r)), p2(A1(1, 5) + r)))
        a('v_pk_add_f32 %s, %s, %s' % (p2(R(4, r)), p2(R(4, r)), p2(A1(1, 4) + r)))
    a('v_cndmask_b32 v16, %s, %s, s[58:59]' % (vr(R(5, 0)), vr(R(5, 1))))
    a('v_cndmask_b32 v16, v16, %s, s[60:61]' % vr(R(5, 2)))
    a('v_cndmask_b32 v16, v16, %s, s[62:63]' % vr(R(5, 3)))
    a('ds_bpermute_b32 v18, v24, %s' % vr(R(4, 0)))
    a('ds_bpermute_b32 v17, v11, v16')
    for q in range(5):
        a('ds_read_b128 %s, v25 offset:%d' % (vr(CSK + 4 * q, 4), (2 + q) * 64))
    for u in range(2):
        a('ds_read_b128 %s, v25 offset:%d' % (vr(CSQ + 4 * u, 4), u * 64))
    a('s_waitcnt lgkmcnt(9)')
    for q in range(4):
        for r in (0, 2):
            a('v_pk_add_f32 %s, %s, %s' % (p2(R(q, r)), p2(R(q, r)), p2(A1(1, q) + r)))
    a('s_mov_b32 s56, 0x%x' % f32bits(1.0 / 576))
    a('s_waitcnt lgkmcnt(7)')
    TA, TBK, TBQ = 152, 172, 192
    a('v_add_u32 v20, %d, v5' % L_T)
    a('s_cmp_eq_u32 s14, 1')
    a('s_cbranch_scc1 q_noT')
    for m in range(5):
        a('ds_read_b128 %s, v20 offset:%d' % (vr(TA + 4 * m, 4), m * 1024))
    for m in range(5):
        a('ds_read_b128 %s, v20 offset:%d' % (vr(TBK + 4 * m, 4), (10 + m) * 1024))
    a.label('q_noT')
    a('v_mul_f32 v18, s56, v18')
    a('v_mul_f32 v17, s56, v17')
    a('v_fma_f32 v17, -v18, v18, v17')
    a('v_max_f32 v17, 0, v17')
    bf16r(a, 18, 19)
    bf16r(a, 17, 19)
    a('v_add_f32 v17, 0x%x, v17' % f32bits(1e-5))
    bf16r(a, 17, 19)
    a('v_sqrt_f32 v17, v17')
    a('s_nop 0')
    bf16r(a, 17, 19)
    a('v_rcp_f32 v16, v17')
    a('s_waitcnt lgkmcnt(0)')
    mstamp(a)
    PK_, PV_, PT_, PQ_ = 220, 224, 228, 104

    def lnfix(r0, cs, dst):
        for r in (0, 2):
            a('v_pk_fma_f32 %s, %s, v[18:19], %s op_sel_hi:[1,0,1] neg_lo:[0,1,0] neg_hi:[0,1,0]' % (p2(r0 + r), p2(cs + r), p2(r0 + r)))
        for r in (0, 2):
            a('v_pk_mul_f32 %s, %s, v[16:17] op_sel_hi:[1,0]' % (p2(r0 + r), p2(r0 + r)))
        a('v_cvt_pk_bf16_f32 %s, %s, %s' % (vr(dst), vr(r0), vr(r0 + 1)))
        a('v_cvt_pk_bf16_f32 %s, %s, %s' % (vr(dst + 1), vr(r0 + 2), vr(r0 + 3)))
    ln1 = lambda q: lnfix(R(q, 0), CSK + 4 * q, PK_ + 2 * q)
    W2s = list(range(104, 152, 4)) + list(range(172, 192, 4)) + [212]
    A2 = lambda a_, u: 232 + (a_ * 2 + u) * 4

    def pass2(x2base, mid):
        rd = lambda t: [a('ds_read_b128 %s, v7 offset:%d' % (vr(W2s[2 * t + u], 4), t * 2048 + u * 1024)) for u in range(2)]
        for t in range(4):
            rd(t)
        a('s_lshl_b32 s56, s26, 11')
        a('s_add_u32 s56, s56, %d' % x2base)
        a('v_add_u32 v14, s56, v5')
        a('s_xor_b32 s56, s26, 4')
        a('s_lshl_b32 s56, s56, 11')
        a('s_add_u32 s56, s56, %d' % x2base)
        a('v_add_u32 v15, s56, v5')
        for t in range(9):
            if t + 4 < 9:
                rd(t + 4)
            a('s_waitcnt lgkmcnt(%d)' % (2 * min(4, 8 - t)))
            for (a_, u) in ((1, 0), (1, 1), (0, 0), (0, 1)):
                a('v_mfma_f32_16x16x32_bf16 %s, %s, %s, %s' % (vr(A2(a_, u), 4), vr(W2s[2 * t + u], 4), vr(XF(a_, t), 4), '0' if t == 0 else vr(A2(a_, u), 4)))
            if t == 5 and mid:
                mid()
        a('s_nop 5')
        for u in range(2):
            a('ds_write_b128 v14, %s offset:%d' % (vr(A2(1, u), 4), u * 1024))
        a('s_waitcnt lgkmcnt(0)')
        a('s_barrier')
        for u in range(2):
            a('ds_read_b128 %s, v15 offset:%d' % (vr(A2(1, u), 4), u * 1024))
        a('s_waitcnt lgkmcnt(0)')
        for r in range(0, 8, 2):
            a('v_pk_add_f32 %s, %s, %s' % (p2(A2(0, 0) + r), p2(A2(0, 0) + r), p2(A2(1, 0) + r)))
        for u in range(2):
            lnfix(A2(0, u), CSQ + 4 * u, PQ_ + 2 * u)
    a('s_mov_b32 s16, 0')
    a('s_cmp_eq_u32 s14, 1')
    a('s_cbranch_scc1 B_epi')
    DK, DQ = 128, 108
    a('s_barrier')
    for q in (0, 1, 4):
        ln1(q)
    a('v_mov_b32 %s, 0' % vr(PT_ + 2))
    a('v_mov_b32 %s, 0' % vr(PT_ + 3))
    a('v_and_b32 v22, 127, v6')
    a('v_mul_u32_u24 v22, %d, v22' % PK_STRIDE)
    a('v_add_u32 v22, %d, v22' % L_PK)
    a('v_lshl_add_u32 v21, v4, 3, v22')
    for m in range(5):
        a('v_mfma_f32_16x16x32_bf16 %s, %s, %s, 0' % (vr(DK + 4 * m, 4), vr(TA + 4 * m, 4), vr(PK_, 4)))
    for m in range(5):
        a('v_mfma_f32_16x16x32_bf16 %s, %s, %s, %s' % (vr(DK + 4 * m, 4), vr(TBK + 4 * m, 4), vr(PT_, 4), vr(DK + 4 * m, 4)))
    ln1(2)
    ln1(3)
    for m in range(5):
        a('ds_read_b128 %s, v20 offset:%d' % (vr(TBQ + 4 * m, 4), (5 + m) * 1024))
    a('ds_write_b64 v21, %s offset:128' % vr(PV_, 2))
    a('ds_write_b64 v21, %s offset:160' % vr(PV_ + 2, 2))
    a('v_mov_b32 v12, %s' % vr(PT_))
    a('v_mov_b32 v13, 0x3f80')
    a('v_mov_b32 v14, %s' % vr(PT_ + 1))
    a('v_mov_b32 v15, 0x3f80')
    a('s_mov_b32 exec_lo, 0')
    a('s_mov_b32 exec_hi, 0xffff')
    a('ds_write_b128 v22, v[12:15] offset:208')
    a('s_mov_b64 exec, -1')
    a('s_mov_b32 s56, 0x%x' % f32bits(LOG2E))
    wops = wo_dma_ops(a)
    sp = Sprinkle(a, wops[:6], 11)
    softmax18(sp, DK, 56, 12)
    sp.flush()
    a('v_lshl_add_u32 v21, v4, 5, v22')
    a('v_lshl_add_u32 v24, v4, 2, v22')
    a('ds_write_b128 v21, %s' % vr(DK, 4))
    a('ds_write_b128 v21, %s offset:16' % vr(DK + 4, 4))
    a('ds_write_b32 v24, %s offset:192' % vr(DK + 8))
    a('s_lshr_b32 s64, s10, 1')
    a('s_mul_i32 s64, s64, %d' % KV_SZ)
    a('s_add_u32 s64, s64, 0x%x' % KV1)
    a('s_mul_i32 s65, s25, %d' % (2 * KV_HEAD))
    a('s_add_u32 s64, s64, s65')
    a('s_lshr_b32 s65, s10, 1')
    a('s_lshl_b32 s65, s65, 4')
    a('s_add_u32 s65, s65, s25')
    a('s_lshl_b32 s65, s65, 7')
    a('s_add_u32 s65, s65, 0x%x' % F_KVC)
    a('s_waitcnt lgkmcnt(0)')
    a('s_barrier')
    mstamp(a)
    a('s_cmp_ge_u32 s26, 6')
    a('s_cbranch_scc1 A_q')
    a('s_cmp_ge_u32 s26, 3')
    a('s_cselect_b32 s57, 1, 0')
    a('s_mul_i32 s58, s57, 3')
    a('s_sub_u32 s58, s26, s58')
    a('s_lshl_b32 s59, s57, 6')
    a('s_lshl_b32 s60, s58, 5')
    a('s_add_u32 s59, s59, s60')
    a('s_lshl_b32 s60, s57, 3')
    a('s_add_u32 s61, s60, 192')
    a('s_cmp_eq_u32 s58, 2')
    a('s_cselect_b32 s59, s61, s59')
    a('s_add_u32 s60, s60, 208')
    a('s_lshl_b32 s61, s57, 5')
    a('s_add_u32 s61, s61, 128')
    a('v_lshrrev_b32 v24, 2, v3')
    a('v_lshl_add_u32 v24, v4, 2, v24')
    a('v_mul_u32_u24 v24, %d, v24' % PK_STRIDE)
    a('v_and_b32 v25, 3, v3')
    a('v_lshl_add_u32 v24, v25, 3, v24')
    a('v_add_u32 v24, %d, v24' % L_PK)
    a('v_add_u32 v25, s59, v24')
    a('v_add_u32 v26, s61, v24')
    a('v_add_u32 v27, s60, v24')
    FB, FA, FT = 104, 128, 172
    for ks in range(4):
        for hf in range(2):
            off = (32 * ks + 16 * hf) * PK_STRIDE
            a('ds_read_b64_tr_b16 %s, v25 offset:%d' % (vr(FB + 4 * ks + 2 * hf, 2), off))
            a('ds_read_b64_tr_b16 %s, v26 offset:%d' % (vr(FA + 4 * ks + 2 * hf, 2), off))
            a('ds_read_b64_tr_b16 %s, v27 offset:%d' % (vr(FT + 4 * ks + 2 * hf, 2), off))
    a('s_mul_i32 s59, s57, %d' % KV_HEAD)
    a('s_mul_i32 s60, s58, 1216')
    a('s_add_u32 s59, s59, s60')
    a('s_add_u32 s59, s59, s64')
    a('v_lshlrev_b32 v28, 2, v1')
    DM, DT = 120, 124
    at = lambda r, off: a('buffer_atomic_add_f32 %s, v28, s[%d:%d], s59 offen offset:%d' % (vr(r), SWS, SWS + 3, off))
    a('s_cmp_eq_u32 s58, 2')
    a('s_cbranch_scc1 A_kvt')
    for ks in range(4):
        a('s_waitcnt lgkmcnt(%d)' % min(14, 6 * (3 - ks)))
        a('v_mfma_f32_16x16x32_bf16 %s, %s, %s, %s' % (vr(DM, 4), vr(FA + 4 * ks, 4), vr(FB + 4 * ks, 4), '0' if ks == 0 else vr(DM, 4)))
        a('v_mfma_f32_16x16x32_bf16 %s, %s, %s, %s' % (vr(DT, 4), vr(FT + 4 * ks, 4), vr(FB + 4 * ks, 4), '0' if ks == 0 else vr(DT, 4)))
    a('s_nop 7')
    for r in range(4):
        at(DM + r, r * 256)
    a('s_mov_b64 exec, 0xffff')
    for r in range(3):
        at(DT + r, 1024 + r * 64)
    a('s_mov_b64 exec, -1')
    a('s_branch A_q')
    a.label('A_kvt')
    for ks in range(4):
        a('s_waitcnt lgkmcnt(%d)' % min(14, 6 * (3 - ks)))
        a('v_mfma_f32_16x16x32_bf16 %s, %s, %s, %s' % (vr(DM, 4), vr(FB + 4 * ks, 4), vr(FA + 4 * ks, 4), '0' if ks == 0 else vr(DM, 4)))
        a('v_mfma_f32_16x16x32_bf16 %s, %s, %s, %s' % (vr(DT, 4), vr(FB + 4 * ks, 4), vr(FT + 4 * ks, 4), '0' if ks == 0 else vr(DT, 4)))
    a('s_mov_b64 exec, 0xffff')
    a('s_nop 7')
    for r in range(4):
        at(DM + r, r * 128)
    a('s_mov_b64 exec, 7')
    for r in range(4):
        at(DT + r, r * 128 + 64)
    a('s_mov_b64 exec, -1')
    a.label('A_q')
    pass2(L_X2A, None)
    mstamp(a)
    a('s_mul_i32 s57, s27, 4608')
    a('s_add_u32 s57, s57, %d' % L_PHI)
    for m in range(5):
        a('v_mfma_f32_16x16x32_bf16 %s, %s, %s, 0' % (vr(DQ + 4 * m, 4), vr(TA + 4 * m, 4), vr(PQ_, 4)))
    for m in range(5):
        a('v_mfma_f32_16x16x32_bf16 %s, %s, %s, %s' % (vr(DQ + 4 * m, 4), vr(TBQ + 4 * m, 4), vr(PT_, 4), vr(DQ + 4 * m, 4)))
    a('v_lshrrev_b32 v24, 1, v4')
    a('v_mul_u32_u24 v24, 2304, v24')
    a('v_add_u32 v24, s57, v24')
    a('v_and_b32 v25, 1, v4')
    a('v_and_b32 v26, 31, v6')
    a('v_lshl_add_u32 v22, v25, 10, v24')
    a('v_lshl_add_u32 v22, v26, 4, v22')
    a('v_lshl_add_u32 v23, v26, 3, v24')
    a('v_lshl_add_u32 v23, v25, 2, v23')
    a('s_mov_b32 s56, 0x%x' % f32bits(LOG2E))
    a('s_waitcnt vmcnt(0)')
    warrive(a, 's65')
    sp = Sprinkle(a, wops[6:], 11)
    softmax18(sp, DQ, 56, 12)
    sp.flush()
    a('ds_write_b128 v22, %s' % vr(DQ, 4))
    a('ds_write_b128 v22, %s offset:512' % vr(DQ + 4, 4))
    a('ds_write_b32 v23, %s offset:2048' % vr(DQ + 8))
    a('s_mov_b32 s56, s65')
    mstamp(a)
    a('s_waitcnt vmcnt(0) lgkmcnt(0)')
    a('s_barrier')
    mstamp(a)
    PH, ST, OC = 32, 48, 72
    a('s_lshl_b32 s57, s27, 1')
    a('s_add_u32 s57, s57, s28')
    a('s_mul_i32 s57, s57, 2304')
    a('s_add_u32 s57, s57, %d' % L_PHI)
    a('v_add_u32 v20, s57, v5')
    a('v_and_b32 v3, 31, v1')
    a('v_lshlrev_b32 v21, 3, v3')
    a('v_add_u32 v21, s57, v21')
    for r in range(8, 12):
        a('v_mov_b32 v%d, 0' % (PH + r))
    a('ds_read_b128 %s, v20' % vr(PH, 4))
    a('ds_read_b128 %s, v20 offset:1024' % vr(PH + 4, 4))
    a('s_mov_b32 exec_hi, 0')
    a('ds_read_b64 %s, v21 offset:2048' % vr(PH + 8, 2))
    a('s_mov_b32 exec_hi, -1')
    a('s_mul_i32 s58, s26, 3072')
    a('s_add_u32 s58, s58, %d' % L_KV)
    a('v_min_u32 v8, 18, v3')
    a('v_and_b32 v9, 3, v8')
    a('v_lshlrev_b32 v9, 8, v9')
    a('v_lshrrev_b32 v4, 2, v8')
    a('v_lshl_add_u32 v9, v4, 6, v9')
    a('v_lshlrev_b32 v4, 6, v8')
    a('v_cmp_gt_u32 vcc, 16, v8')
    a('v_lshlrev_b32 v8, 2, v8')
    a('v_add_u32 v8, s58, v8')
    a('v_cndmask_b32 v9, v4, v9, vcc')
    a('v_lshrrev_b32 v4, 5, v1')
    a('v_lshl_add_u32 v9, v4, 5, v9')
    a('v_add_u32 v9, s58, v9')
    a('s_lshl_b32 s59, s24, 2')
    a('s_add_u32 s59, s59, s27')
    a('s_lshl_b32 s60, s25, 1')
    a('s_add_u32 s60, s60, s28')
    oimg_addr(a, 59, 60, 66, 67, 61, 62)
    a('s_mul_i32 s57, s28, %d' % KV_HEAD)
    a('s_add_u32 s57, s57, s64')
    a('s_mov_b32 m0, s58')
    poll(a, ['s56'], 128)
    a('s_barrier')
    mstamp(a)
    for p in range(3):
        ws_dma(a, 's57', p * 1024, 'sc1')
    a('s_waitcnt vmcnt(0)')
    a('ds_read_b128 %s, v9' % vr(ST, 4))
    a('ds_read_b128 %s, v9 offset:16' % vr(ST + 4, 4))
    a('ds_read_b128 %s, v9 offset:1216' % vr(ST + 8, 4))
    a('ds_read_b128 %s, v9 offset:1232' % vr(ST + 12, 4))
    for ft in range(4):
        a('ds_read_b32 %s, v8 offset:%d' % (vr(ST + 16 + ft), 2432 + ft * 128))
    a('s_waitcnt lgkmcnt(0)')
    for n in range(10):
        a('v_cvt_pk_bf16_f32 %s, %s, %s' % (vr(ST + n), vr(ST + 2 * n), vr(ST + 2 * n + 1)))
    a('v_mov_b32 %s, 0' % vr(ST + 10))
    a('v_mov_b32 %s, 0' % vr(ST + 11))
    a('s_nop 1')
    for q_ in range(3):
        a('v_mfma_f32_32x32x16_bf16 %s, %s, %s, %s' % (vr(OC, 16), vr(ST + 4 * q_, 4), vr(PH + 4 * q_, 4), '0' if q_ == 0 else vr(OC, 16)))
    a('s_nop 6')
    o_store(a, OC, 66, 67, None, 1e-6)
    wfrag_reads(a)
    mstamp(a)
    a('s_waitcnt vmcnt(0)')
    a('s_branch O_pub')
    a.label('B_epi')
    for q in range(5):
        ln1(q)
    a('s_lshr_b32 s64, s10, 1')
    a('s_lshl_b32 s64, s64, 23')
    a('s_add_u32 s64, s64, 0x%x' % REC)
    a('s_lshl_b32 s65, s25, 19')
    a('s_add_u32 s64, s64, s65')
    a('v_lshlrev_b32 v20, 4, v6')
    a('v_and_b32 v21, 1, v4')
    a('v_lshl_add_u32 v22, v21, 18, v20')
    a('v_lshrrev_b32 v23, 1, v4')
    a('v_lshl_add_u32 v22, v23, 15, v22')
    a('v_and_b32 v24, 127, v6')
    a('v_mul_u32_u24 v25, %d, v21' % IM_HEAD)
    a('v_lshl_add_u32 v25, v24, 4, v25')
    a('v_mul_u32_u24 v27, %d, v23' % IM_P)
    a('v_add_u32 v27, v27, v25')
    a('v_mul_u32_u24 v9, 5120, v21')
    a('v_lshl_add_u32 v9, v24, 4, v9')
    a('v_lshl_add_u32 v9, v23, 11, v9')
    a('v_add_u32 v9, %d, v9' % L_QP)
    a('s_add_u32 s56, s64, %d' % R_K0)
    a('s_add_u32 s57, s64, %d' % R_V0)
    for b0 in (PK_, PV_):
        a('v_permlane16_swap_b32 %s, %s' % (vr(b0), vr(b0 + 2)))
        a('v_permlane16_swap_b32 %s, %s' % (vr(b0 + 1), vr(b0 + 3)))
    ws_st(a, PK_, 4, 'v22', 's56')
    ws_st(a, PV_, 4, 'v22', 's57')
    a('v_cmp_eq_u32 vcc, 2, v4')
    a('v_mov_b32 v28, 0x3f80')
    a('v_mov_b32 v12, %s' % vr(PT_))
    a('v_cndmask_b32 v13, 0, v28, vcc')
    a('v_mov_b32 v14, %s' % vr(PT_ + 1))
    a('v_mov_b32 v15, v13')
    a('v_lshlrev_b32 v28, 3, v6')
    a('v_add_u32 v28, %d, v28' % R_KT)
    a('v_add_u32 v20, %d, v20' % R_VT)
    a('v_cndmask_b32 v28, v28, v20, vcc')
    a('v_lshlrev_b32 v20, 3, v24')
    a('v_add_u32 v21, %d, v20' % (L_QP + 4096))
    a('v_add_u32 v20, %d, v20' % (I_KT + 2048))
    a('v_lshlrev_b32 v23, 4, v24')
    a('v_add_u32 v23, %d, v23' % (I_VT + 4096))
    a('v_cndmask_b32 v20, v20, v23, vcc')
    a('v_cmp_eq_u32 vcc, 0, v4')
    a('s_add_u32 s57, s64, %d' % REC_HEAD)
    a('s_mov_b32 exec_lo, 0xffff0000')
    a('s_mov_b32 exec_hi, 0xffff')
    ws_st(a, 12, 2, 'v28', 's64')
    ws_st(a, 14, 2, 'v28', 's57')
    a('s_mov_b64 exec, -1')
    a('v_add_u32 v23, %d, v20' % IM_HEAD)
    a('v_cndmask_b32 v20, v20, v21, vcc')
    a('v_add_u32 v21, 5120, v21')
    a('v_cndmask_b32 v21, v23, v21, vcc')
    a('s_barrier')
    a('ds_write_b128 v27, %s offset:%d' % (vr(PK_, 4), I_K0 + 4096))
    a('ds_write_b128 v27, %s offset:%d' % (vr(PV_, 4), I_V0 + 4096))
    a('s_mov_b32 exec_hi, 0xffff')
    a('ds_write_b64 v20, v[12:13]')
    a('ds_write_b64 v21, v[14:15]')
    a('s_mov_b32 exec_hi, -1')
    a('s_lshr_b32 s48, s10, 1')
    a('s_lshl_b32 s48, s48, 4')
    a('s_add_u32 s48, s48, s25')
    a('s_lshl_b32 s48, s48, 7')
    a('s_add_u32 s48, s48, 0x%x' % F_KVF)
    a('s_lshl_b32 s49, s24, 2')
    a('s_add_u32 s49, s49, s48')
    a('s_sub_u32 s50, s49, 4')
    a('s_sub_u32 s51, s49, 8')
    a('s_max_u32 s51, s51, s48')
    a('s_lshl_b32 s56, s24, 7')
    a('s_sub_u32 s56, s56, 256')
    a('s_lshl_b32 s54, s27, 6')
    a('s_add_u32 s56, s56, s54')
    a('s_lshl_b32 s58, s28, 18')
    a('s_add_u32 s58, s58, s64')
    a('s_lshl_b32 s52, s56, 4')
    a('s_add_u32 s52, s52, s58')
    a('s_lshl_b32 s53, s56, 3')
    a('s_add_u32 s53, s53, s58')
    a('s_add_u32 s53, s53, %d' % R_KT)
    a('s_cmp_lt_i32 s56, 0')
    a('s_cselect_b32 s52, 0x40000000, s52')
    a('s_cselect_b32 s53, 0x40000000, s53')
    a('s_mul_i32 s65, s28, %d' % IM_HEAD)
    a('s_lshl_b32 s54, s27, 10')
    a('s_add_u32 s54, s54, s65')
    a('s_mov_b32 s3, s65')
    a('s_mov_b32 s30, s64')
    mstamp(a)

    def kvf_arrive():
        a('s_waitcnt vmcnt(0)')
        warrive(a, 's49')
    a('s_waitcnt lgkmcnt(0)')
    pass2(L_X2B, kvf_arrive)
    a('s_nop 0')
    a('v_permlane16_swap_b32 %s, %s' % (vr(PQ_), vr(PQ_ + 2)))
    a('v_permlane16_swap_b32 %s, %s' % (vr(PQ_ + 1), vr(PQ_ + 3)))
    a('ds_write_b128 v9, %s' % vr(PQ_, 4))
    mstamp(a)
    Q1, Q2 = 12, 16
    S = lambda t: 64 + 16 * t
    OA = 208
    KB = [224, 232, 240]
    MK, MB = 56, 36
    a('v_and_b32 v3, 31, v1')
    a('v_lshrrev_b32 v4, 5, v1')
    a('s_lshl_b32 s27, s27, 5')
    a('v_add_u32 v9, s27, v3')
    a('v_lshlrev_b32 v10, 4, v9')
    a('v_add_u32 v21, s65, v10')
    a('s_mul_i32 s29, s28, 5120')
    a('s_add_u32 s29, s29, %d' % L_QP)
    a('v_lshl_add_u32 v10, v4, 11, v10')
    a('v_add_u32 v10, s29, v10')
    a('v_lshlrev_b32 v20, 3, v9')
    a('v_add_u32 v8, s29, v20')
    a('v_add_u32 v20, s65, v20')
    for r in range(4):
        a('v_mov_b32 v%d, 0' % (Q2 + r))
    a('v_mul_u32_u24 v9, %d, v4' % IM_P)
    a('v_add_u32 v21, v21, v9')
    a('v_add_u32 v20, %d, v20' % I_KT)
    for b in KB:
        for r in range(6, 8):
            a('v_mov_b32 v%d, 0' % (b + r))
    a('v_bfe_u32 v22, v1, 2, 2')
    a('v_lshl_add_u32 v22, v4, 2, v22')
    a('v_add_u32 v22, s27, v22')
    a('v_lshlrev_b32 v22, 4, v22')
    a('v_bfe_u32 v23, v1, 1, 1')
    a('v_mul_u32_u24 v23, %d, v23' % IM_P)
    a('v_and_b32 v25, 1, v1')
    a('v_lshl_add_u32 v23, v25, 3, v23')
    a('v_and_b32 v25, 16, v1')
    a('v_cmp_eq_u32 vcc, 0, v25')
    a('v_mov_b32 v25, %d' % (I_VT - I_V0))
    a('s_add_u32 s65, s65, %d' % I_V0)
    a('v_cndmask_b32 v23, v25, v23, vcc')
    a('v_add3_u32 v22, v22, v23, s65')
    a('s_lshr_b32 s27, s27, 5')
    a('s_lshl_b32 s40, s24, 2')
    a('s_add_u32 s40, s40, s27')
    a('s_lshl_b32 s41, s25, 1')
    a('s_add_u32 s41, s41, s28')
    oimg_addr(a, 40, 41, 44, 45, 42, 43)
    a('s_sub_u32 s42, 8, s40')
    a('s_max_i32 s42, s42, 0')
    a('v_lshlrev_b32 v11, 2, v4')
    a('v_sub_u32 v11, v3, v11')
    for n in range(16):
        a('v_cmp_gt_i32 s[%d:%d], %d, v11' % (MK + 2 * n, MK + 2 * n + 1, 8 * (n >> 2) + (n & 3)))
    a('v_mov_b32 v26, 0xffff')
    a('v_mov_b32 v27, 0xffff0000')
    for n in range(8):
        a('v_cndmask_b32 v%d, 0, v26, s[%d:%d]' % (MB + n, MK + 4 * n, MK + 4 * n + 1))
        a('v_cndmask_b32 v25, 0, v27, s[%d:%d]' % (MK + 4 * n + 2, MK + 4 * n + 3))
        a('v_or_b32 v%d, v%d, v25' % (MB + n, MB + n))
    a('v_mov_b32 v24, 0xf149f2ca')
    a('s_mov_b32 s46, 0x%x' % f32bits(LOG2E * 18 ** -0.5))
    mstamp(a)
    poll(a, ['s50', 's51'], 8, 's_cmp_eq_u32 s24, 0')
    a('s_waitcnt lgkmcnt(0)')
    a('s_barrier')
    mstamp(a)
    for (pl, lo) in ((R_K0, I_K0), (R_K1, I_K1)):
        a('s_add_u32 m0, s54, %d' % lo)
        a('s_add_u32 s55, s52, %d' % pl)
        ws_dma(a, 's55')
    a('s_lshl_b32 s55, s27, 9')
    a('s_add_u32 s55, s55, s3')
    a('s_add_u32 m0, s55, %d' % I_KT)
    a('s_mov_b32 exec_hi, 0')
    ws_dma(a, 's53')
    a('s_mov_b32 exec_hi, -1')
    for (pl, lo) in ((R_V0, I_V0), (R_V1, I_V1), (R_VT, I_VT)):
        a('s_add_u32 m0, s54, %d' % lo)
        a('s_add_u32 s55, s52, %d' % pl)
        ws_dma(a, 's55')
    a('ds_read_b128 %s, v10' % vr(Q1, 4))
    a('s_mov_b32 exec_hi, 0')
    a('ds_read_b64 %s, v8 offset:4096' % vr(Q2, 2))
    a('s_mov_b32 exec_hi, -1')
    a('s_waitcnt vmcnt(0) lgkmcnt(0)')
    a('s_barrier')
    mstamp(a)

    def kread(t):
        b = KB[t % 3]
        a('ds_read_b128 %s, v21 offset:%d' % (vr(b, 4), t * 512))
        a('ds_read_b64 %s, v20 offset:%d' % (vr(b + 4, 2), t * 256))

    def tfix(t):
        a('s_cmp_le_u32 s42, %d' % t)
        a('s_cbranch_scc1 attn_ok%d' % t)
        for n in range(16):
            a('v_mov_b32 %s, v24' % vr(S(t) + n))
        a.label('attn_ok%d' % t)

    def tmax(t, half):
        if t < 1:
            return
        for n in range(8 * half, 8 * half + 8, 2):
            m = 25 + ((n >> 1) & 1)
            if t == 1 and n < 4:
                a('v_max_f32 v%d, %s, %s' % (m, vr(S(t) + n), vr(S(t) + n + 1)))
            else:
                a('v_max3_f32 v%d, v%d, %s, %s' % (m, m, vr(S(t) + n), vr(S(t) + n + 1)))
    kread(0)
    kread(1)
    for t in range(9):
        if t + 2 < 9:
            kread(t + 2)
            a('s_waitcnt lgkmcnt(4)')
        elif t + 1 < 9:
            a('s_waitcnt lgkmcnt(2)')
        else:
            a('s_waitcnt lgkmcnt(0)')
        b = KB[t % 3]
        a('v_mfma_f32_32x32x16_bf16 %s, %s, %s, 0' % (vr(S(t), 16), vr(b, 4), vr(Q1, 4)))
        if t >= 3:
            tfix(t - 3)
            tmax(t - 3, 0)
        a('v_mfma_f32_32x32x16_bf16 %s, %s, %s, %s' % (vr(S(t), 16), vr(b + 4, 4), vr(Q2, 4), vr(S(t), 16)))
        if t >= 3:
            tmax(t - 3, 1)
    for t in (6, 7):
        tfix(t)
        tmax(t, 0)
        tmax(t, 1)
    VB = [224, 232, 240, 248]
    seq = [1, 2, 3, 4, 5, 6, 7, 0, 8]

    def vread(k):
        t = seq[k]
        b = VB[k % 4]
        for ks in range(2):
            for hf in range(2):
                a('ds_read_b64_tr_b16 %s, v22 offset:%d' % (vr(b + 4 * ks + 2 * hf, 2), (32 * t + 16 * ks + 8 * hf) * 16))
    vread(0)
    vread(1)
    vread(2)
    for n in range(16):
        a('v_cndmask_b32 %s, %s, %s, s[%d:%d]' % (vr(S(0) + n), vr(S(8) + n), vr(S(0) + n), MK + 2 * n, MK + 2 * n + 1))
    for n in range(0, 16, 2):
        m = 25 + ((n >> 1) & 1)
        a('v_max3_f32 v%d, v%d, %s, %s' % (m, m, vr(S(0) + n), vr(S(0) + n + 1)))
    a('v_max_f32 v25, v25, v26')
    a('v_mov_b32 v26, v25')
    a('s_nop 1')
    a('v_permlane32_swap_b32 v25, v26')
    a('s_nop 0')
    a('v_max_f32 v25, v25, v26')
    a('v_mul_f32 v26, s46, v25')
    pf = lambda t, m: a('v_pk_fma_f32 %s, %s, s[46:47], v[26:27] op_sel_hi:[1,0,0] neg_lo:[0,0,1] neg_hi:[0,0,1]' % (p2(S(t) + 2 * m), p2(S(t) + 2 * m)))
    cv = lambda t, m: a('v_cvt_pk_bf16_f32 %s, %s, %s' % (vr(S(t) + m), vr(S(t) + 2 * m), vr(S(t) + 2 * m + 1)))
    for m in range(8):
        pf(seq[0], m)

    def pv(k, half):
        t = seq[k]
        b = VB[k % 4]
        c = '0' if (k == 0 and half == 0) else vr(OA, 16)
        a('v_mfma_f32_32x32x16_bf16 %s, %s, %s, %s' % (vr(OA, 16), vr(b + 4 * half, 4), vr(S(t) + 4 * half, 4), c))

    def split(n):
        a('v_bfi_b32 %s, v%d, 0, %s' % (vr(S(8) + n), MB + n, vr(S(0) + n)))
        a('v_and_b32 %s, v%d, %s' % (vr(S(0) + n), MB + n, vr(S(0) + n)))
    wops = wo_dma_ops(a)
    pfb = wq_pf_ops(a, PFN) if LOCAL else []
    for k in range(8):
        t = seq[k]
        for m in range(8):
            if m in (2, 5) and wops:
                wops.pop(0)()
            if m == 7 and pfb and k < 7:
                for _ in range(-(-PFN // 7)):
                    if pfb:
                        pfb.pop(0)()
            if k == 7 and m == 0 and O_B:
                a('s_waitcnt vmcnt(0)')
                a('s_barrier')
            a('v_exp_f32 %s, %s' % (vr(S(t) + 2 * m), vr(S(t) + 2 * m)))
            if k < 7:
                pf(seq[k + 1], m)
            elif m >= 2:
                split(m - 2)
            if m == 1 and k >= 1:
                pv(k - 1, 1)
                if k + 2 < 9:
                    vread(k + 2)
            if m == 6:
                a('s_waitcnt lgkmcnt(%d)' % (4 * min(8 - k, 2)))
                pv(k, 0)
            a('v_exp_f32 %s, %s' % (vr(S(t) + 2 * m + 1), vr(S(t) + 2 * m + 1)))
            if m >= 1:
                cv(t, m - 1)
        a('s_nop 0')
        cv(t, 7)
    split(6)
    split(7)
    a('s_waitcnt lgkmcnt(0)')
    pv(8, 0)
    pv(7, 1)
    pv(8, 1)
    a('s_mov_b32 s66, s44')
    a('s_mov_b32 s67, s45')
    a('s_nop 4')
    o_store(a, OA, 66, 67, None, 0)
    if O_B:
        wfrag_reads(a)
    mstamp(a)
    a('s_waitcnt vmcnt(0)')
    a.label('O_pub')
    a('s_lshl_b32 s56, s10, 4')
    a('s_add_u32 s57, s56, s24')
    a('s_lshl_b32 s57, s57, 7')
    a('s_lshr_b32 s62, s57, 1')
    a('s_add_u32 s62, s62, 0x%x' % F_OW)
    a('s_add_u32 s57, s57, 0x%x' % F_OC)
    a('s_lshr_b32 s58, s12, 1')
    a('s_add_u32 s58, s58, s56')
    a('s_lshl_b32 s58, s58, 7')
    a('s_lshr_b32 s63, s58, 1')
    a('s_add_u32 s64, s63, 0x%x' % F_XW)
    a('s_add_u32 s63, s63, 0x%x' % F_OW)
    a('s_add_u32 s59, s58, 0x%x' % F_XC)
    a('s_add_u32 s58, s58, 0x%x' % F_OC)
    a('s_waitcnt lgkmcnt(0)')
    a('s_barrier')
    mstamp(a)
    arrive2(a, 's57', 's62', 's25')
    if LOCAL:
        a('s_and_b32 s24, s2, 7')
        a('s_lshl_b32 s24, s24, 1')
        a('s_bfe_u32 s25, s2, 0x10003')
        a('s_add_u32 s24, s24, s25')
        a('s_lshr_b32 s25, s2, 4')
    if PT:
        a('s_mul_i32 s29, s24, %d' % (4 * 36864))
        a('s_mul_i32 s30, s10, 0x%x' % XS)
        a('s_add_u32 s29, s29, s30')
        a('s_add_u32 s29, s29, 0x%x' % OIMG)
        a('v_lshrrev_b32 v3, 4, v1')
        a('v_mul_u32_u24 v3, 36864, v3')
        a('s_cmp_eq_u32 s26, 1')
        a('s_cbranch_scc0 pt_o1')
        a('v_and_b32 v4, 15, v1')
        a('v_lshl_add_u32 v3, v4, 7, v3')
        a('s_lshl_b32 s30, s25, 11')
        a('s_add_u32 s29, s29, s30')
        ws_ld(a, 0, 1, 'v3', 's29')
        a.label('pt_o1')
        a('s_cmp_eq_u32 s26, 2')
        a('s_cbranch_scc0 pt_o2')
        a('v_bfe_u32 v4, v1, 1, 1')
        a('v_lshl_add_u32 v3, v4, 10, v3')
        a('v_and_b32 v4, 1, v1')
        a('v_lshl_add_u32 v3, v4, 7, v3')
        a('s_lshr_b32 s30, s25, 3')
        a('s_lshl_b32 s30, s30, 11')
        a('s_add_u32 s29, s29, s30')
        a('s_bfe_u32 s30, s25, 0x20001')
        a('s_lshl_b32 s30, s30, 8')
        a('s_add_u32 s29, s29, s30')
        a('s_add_u32 s29, s29, 32768')
        a('s_mov_b32 exec_lo, 0x000f000f')
        a('s_mov_b32 exec_hi, 0x000f000f')
        ws_ld(a, 0, 1, 'v3', 's29')
        a('s_mov_b64 exec, -1')
        a.label('pt_o2')
    a('v_and_b32 v3, 15, v1')
    a('v_lshrrev_b32 v4, 4, v1')
    a('s_lshl_b32 s29, s12, 2')
    a('s_add_u32 s29, s29, s27')
    a('v_and_b32 v6, 1, v4')
    a('v_lshrrev_b32 v7, 1, v4')
    a('v_lshl_add_u32 v6, v6, 1, v7')
    a('v_lshlrev_b32 v6, 8, v6')
    a('v_lshl_add_u32 v6, v3, 4, v6')
    a('v_lshlrev_b32 v7, 4, v3')
    a('v_lshl_add_u32 v7, v4, 3, v7')
    a('s_mul_i32 s60, s29, 18432')
    a('s_mul_i32 s61, s13, 2304')
    a('s_add_u32 s60, s60, s61')
    a('s_mul_i32 s61, s10, 0x%x' % XS)
    a('s_add_u32 s60, s60, s61')
    a('s_add_u32 s60, s60, 0x%x' % X0)
    a('s_lshl_b32 s61, s28, 10')
    a('s_add_u32 s61, s61, s60')
    ws_ld(a, 252, 4, 'v6', 's61')
    ws_ld(a, 12, 2, 'v7', 's60', 2048)
    a('s_xor_b32 s15, s14, 1')
    if LOCAL:
        a('s_add_u32 s56, s60, 0x%x' % XS)
        a('s_cmp_eq_u32 s28, 1')
        a('s_cselect_b32 s56, s56, 0x40000000')
        a('v_lshlrev_b32 v11, 7, v1')
        a('s_mov_b64 exec, 0x3ffff')
        ws_ld(a, 0, 1, 'v11', 's56', 0, 'sc1')
        a('s_mov_b64 exec, -1')
        a('s_cmp_lg_u32 s10, 0')
        a('s_cbranch_scc1 cen_e')
        a('v_lshlrev_b32 v29, 2, v1')
        a('s_mov_b64 exec, 0xff')
        a('s_mov_b32 s90, 0')
        a.label('cen')
        a('buffer_load_dword v27, v29, s[%d:%d], s9 offen sc1' % (SWS, SWS + 3))
        a('s_waitcnt vmcnt(0)')
        a('v_cmp_eq_u32 vcc, 32, v27')
        a('s_mov_b32 s91, 0')
        for q in range(8):
            a('v_readlane_b32 s56, v27, %d' % q)
            a('s_add_u32 s91, s91, s56')
        a('s_add_u32 s90, s90, 1')
        a('s_cmp_ge_u32 s90, %d' % SPIN_LIMIT)
        a('s_cbranch_scc1 cen_d')
        a('s_cmp_lt_u32 s91, 32')
        a('s_cbranch_scc1 cen')
        a.label('cen_d')
        a('s_cmp_lg_u32 vcc_lo, 0')
        a('s_cselect_b32 s17, 1, 0')
        a('s_mov_b64 exec, -1')
        a.label('cen_e')

    a('s_lshr_b32 s30, s29, 1')
    a('s_mul_i32 s30, s30, 36864')
    a('s_and_b32 s31, s29, 1')
    a('s_lshl_b32 s31, s31, 10')
    a('s_add_u32 s30, s30, s31')
    a('s_mul_i32 s31, s28, 18432')
    a('s_add_u32 s30, s30, s31')
    a('s_mul_i32 s31, s10, 0x%x' % XS)
    a('s_add_u32 s30, s30, s31')
    a('s_add_u32 s30, s30, 0x%x' % OIMG)
    a('s_mul_i32 s31, s26, 3072')
    a('s_add_u32 s31, s31, %d' % L_WX)
    a('v_add_u32 v14, s31, v5')
    a('s_xor_b32 s31, s26, 4')
    a('s_mul_i32 s31, s31, 3072')
    a('s_add_u32 s31, s31, %d' % L_WX)
    a('v_add_u32 v15, s31, v5')
    if WQ_PRE:
        wq_dma(a, 15, 0, WQ_PRE)
    a('s_waitcnt lgkmcnt(0)')
    mstamp(a)
    poll2(a, 's58', 's63')
    a('s_barrier')
    mstamp(a, True)
    vm = VM(a)

    def ol(t):
        if t and t % 2 == 0:
            a('s_add_u32 s30, s30, 4096')
        ws_ld(a, OF + 4 * t, 4, 'v5', 's30', (t & 1) * 2048)
        vm.issue(t)
    for t in range(OD):
        ol(t)
    for t in range(9):
        if t == 0:
            mstamp(a, 2)
        a('s_waitcnt vmcnt(%d)' % vm.cnt(t))
        if t in (0, 8):
            mstamp(a, 2)
        for k, q in enumerate([2, 3, 4, 0, 1]):
            a('v_mfma_f32_16x16x32_bf16 %s, %s, %s, %s' % (vr(CA + 4 * q, 4), vr(WV + 20 * t + 4 * q, 4), vr(OF + 4 * t, 4), '0' if t == 0 else vr(CA + 4 * q, 4)))
            if k == 0 and t + OD < 9:
                ol(t + OD)
    a('s_nop 0')
    for i in range(4):
        a('v_lshlrev_b32 v%d, 16, v%d' % (40 + 2 * i, 252 + i))
        a('v_and_b32 v%d, 0xffff0000, v%d' % (41 + 2 * i, 252 + i))
    for q in (2, 3, 4):
        a('ds_write_b128 v14, %s offset:%d' % (vr(CA + 4 * q, 4), (q - 2) * 1024))
    for i in range(2):
        a('v_lshlrev_b32 v%d, 16, v%d' % (48 + 2 * i, 12 + i))
        a('v_and_b32 v%d, 0xffff0000, v%d' % (49 + 2 * i, 12 + i))
    a('s_add_u32 s60, s60, 0x%x' % XS)
    a('s_add_u32 s61, s61, 0x%x' % XS)
    a('s_waitcnt lgkmcnt(0)')
    mstamp(a, 2)
    a('s_barrier')
    mstamp(a, 2)
    for q in range(3):
        a('ds_read_b128 %s, v15 offset:%d' % (vr(64 + 4 * q, 4), q * 1024))
    a('s_waitcnt lgkmcnt(1)')
    for r in range(0, 8, 2):
        a('v_pk_add_f32 %s, %s, %s' % (p2(CA + r), p2(CA + r), p2(64 + r)))
    for i in range(4):
        a('v_cvt_pk_bf16_f32 v%d, v%d, v%d' % (80 + i, CA + 2 * i, CA + 2 * i + 1))
    a('s_waitcnt lgkmcnt(0)')
    a('v_pk_add_f32 %s, %s, %s' % (p2(CA + 16), p2(CA + 16), p2(72)))
    a('v_permlane16_swap_b32 v80, v82')
    a('v_permlane16_swap_b32 v81, v83')
    a('v_pk_add_f32 %s, %s, %s' % (p2(CA + 18), p2(CA + 18), p2(74)))
    for i in range(4):
        a('v_lshlrev_b32 v%d, 16, v%d' % (84 + 2 * i, 80 + i))
        a('v_and_b32 v%d, 0xffff0000, v%d' % (85 + 2 * i, 80 + i))
    a('v_cvt_pk_bf16_f32 v92, v%d, v%d' % (CA + 16, CA + 17))
    a('v_cvt_pk_bf16_f32 v93, v%d, v%d' % (CA + 18, CA + 19))
    for i in range(0, 8, 2):
        a('v_pk_add_f32 %s, %s, %s' % (p2(40 + i), p2(40 + i), p2(84 + i)))
    for i in range(2):
        a('v_lshlrev_b32 v%d, 16, v%d' % (94 + 2 * i, 92 + i))
        a('v_and_b32 v%d, 0xffff0000, v%d' % (95 + 2 * i, 92 + i))
    for i in range(4):
        a('v_cvt_pk_bf16_f32 v%d, v%d, v%d' % (24 + i, 40 + 2 * i, 41 + 2 * i))
    a('v_pk_add_f32 v[48:49], v[48:49], v[94:95]')
    a('v_pk_add_f32 v[50:51], v[50:51], v[96:97]')
    a('v_cvt_pk_bf16_f32 v28, v48, v49')
    a('v_cvt_pk_bf16_f32 v29, v50, v51')
    a('s_cmp_eq_u32 s10, 3')
    a('s_cbranch_scc1 W_final')
    a('s_mov_b32 s16, s17')
    a('s_cmp_eq_u32 s28, 0')
    a('s_cselect_b32 s56, -1, 0')

    def emitx(fl):
        _uid[0] += 1
        ws_st(a, 24, 4, 'v6', 's61', 0, fl)
        a('s_cmp_eq_u32 s28, 0')
        a('s_cbranch_scc0 xs%d' % _uid[0])
        a('s_mov_b32 exec_hi, 0')
        ws_st(a, 28, 2, 'v7', 's60', 2048, fl)
        a('s_mov_b32 exec_hi, -1')
        a.label('xs%d' % _uid[0])
    st_mode(a, emitx)
    a.label('W_pub')
    mstamp(a, 2)
    wq_dma(a, 15, WQ_PRE, 16)
    mstamp(a, True)
    a('s_waitcnt vmcnt(%d)' % (16 - WQ_PRE))
    a('s_barrier')
    a('s_and_b32 s65, s12, 1')
    a('s_lshl_b32 s65, s65, 3')
    a('s_add_u32 s65, s65, s13')
    arrive2(a, 's59', 's64', 's65')
    if PT:
        a('s_cmp_eq_u32 s28, 1')
        a('s_cbranch_scc0 pt_x')
        a('v_lshlrev_b32 v3, 7, v1')
        a('s_mov_b64 exec, 0x3ffff')
        ws_ld(a, 0, 1, 'v3', 's60')
        a('s_mov_b64 exec, -1')
        a.label('pt_x')
    a('s_add_u32 s10, s10, 1')
    a('s_branch L_top')
    a.label('W_final')
    a('v_mul_u32_u24 v8, 1152, v3')
    a('v_lshrrev_b32 v9, 8, v6')
    a('v_lshl_add_u32 v9, v9, 4, v8')
    a('v_lshl_add_u32 v8, v4, 3, v8')
    a('s_mul_i32 s60, s29, 18432')
    a('s_mul_i32 s61, s13, 144')
    a('s_add_u32 s60, s60, s61')
    a('s_lshl_b32 s61, s28, 6')
    a('s_add_u32 s61, s61, s60')
    a('buffer_store_dwordx4 v[24:27], v9, s[%d:%d], s61 offen' % (SOUT, SOUT + 3))
    a('s_cmp_eq_u32 s28, 0')
    a('s_cbranch_scc0 W_done')
    a('s_mov_b32 exec_hi, 0')
    a('buffer_store_dwordx2 v[28:29], v8, s[%d:%d], s60 offen offset:128' % (SOUT, SOUT + 3))
    a('s_mov_b32 exec_hi, -1')
    a.label('W_done')
    if STAMP:
        mstamp(a)
        a('s_waitcnt vmcnt(0)')
        mstamp(a)
        a('s_memrealtime s[94:95]')
        a('s_waitcnt lgkmcnt(0)')
        a('v_writelane_b32 v2, s94, 63')
        a('s_lshl_b32 s56, s2, 3')
        a('s_add_u32 s56, s56, s26')
        a('s_lshl_b32 s56, s56, 8')
        a('s_add_u32 s56, s56, 0x%x' % STAMP_OFF)
        a('v_lshlrev_b32 v3, 2, v1')
        ws_st(a, 2, 1, 'v3', 's56', 0, '')
    a.label('mega_end')
    a('s_endpgm')
    return [('mega_kernel', 256, 100)]


def build():
    a = Asm()
    ks = []
    global STAMP
    st = STAMP
    STAMP = False
    ks += gen_prep(a)
    STAMP = st
    ks += gen_mega(a)
    launches = [
        ('prep_kernel', NPREP, 192, 28416),
        ('mega_kernel', 256, 512, MEGA_LDS),
    ]
    out = []
    for (k, g, b, l) in launches:
        out.append('; @launch kernel=%s grid=(%d,1,1) block=(%d,1,1) lds=%d' % (k, g, b, l))
    out.append('.amdgcn_target "amdgcn-amd-amdhsa--gfx950"')
    out.append('.text')
    out += a.L
    out.append('code_end:')
    out.append('    s_endpgm')
    out.append('.section .rodata,"a"')
    for (k, v, s) in ks:
        out.append('.p2align 6')
        out.append(kdesc(k, v, s))
    return '\n'.join(out) + '\n'


if __name__ == '__main__':
    if len(sys.argv) > 2 and sys.argv[2] == 'stamp':
        STAMP = True
    dst = sys.argv[1] if len(sys.argv) > 1 else 'cdna_kernels/%s.s' % NAME
    open(dst, 'w').write(build())
    print('wrote', dst)
```

```python
import sys, struct, os

NAME = 'interleave_layers__linear_kernel_hedgehog__sliding_block__prompt'

WQA = 0x000000
WQB = 0x200000
WQ_SZ = 16 * 18 * 7 * 1024
WOA = 0x400000
WOB = 0x500000
WO_SZ = 8 * 18 * 5 * 1024
CSA = 0x600000
CSB = 0x608000
CS_SZ = 16 * 3 * 448
TPHI = 0x610000
TPHI_SZ = 16 * 15 * 1024
KV1 = 0x660000
KV3 = 0x660000 + 32 * 2944
KV_HEAD = 2944
KV_SZ = 32 * KV_HEAD
X1 = 0x700000
X2 = 0x940000
X3 = 0xB80000
X_SZ = 2048 * 1152
PHIQ = 0xE00000
PHIQ_SZ = 64 * 32 * 2304
REC = 0x1300000
REC_HEAD = 262144
REC_SZ = 32 * REC_HEAD
R_Q0, R_K0, R_K1, R_V0, R_V1, R_VT, R_QT, R_KT = 0, 65536, 98304, 131072, 163840, 196608, 229376, 245760
X0 = 0x2400000
XS = 0x240000
FL = 0x6A0000
FL_SZ = 0x9000
WS_USED = 0x5000000
OIMG = 0x3000000
OIMG_SZ = 64 * 36864

LOG2E = 1.4426950408889634


def f32bits(x):
    return struct.unpack('<I', struct.pack('<f', x))[0]


class Asm:
    def __init__(self):
        self.L = []

    def __call__(self, s):
        self.L.append('    ' + s)

    def label(self, l):
        self.L.append(l + ':')

    def c(self, s):
        self.L.append('    ; ' + s)

    def raw(self, s):
        self.L.append(s)


class VM:
    def __init__(self, a):
        self.a = a
        self.n = 0
        self.tags = {}

    def issue(self, tag=None):
        self.n += 1
        if tag is not None:
            self.tags[tag] = self.n

    def cnt(self, tag):
        return self.n - self.tags[tag]

    def wait(self, tag):
        self.a('s_waitcnt vmcnt(%d)' % self.cnt(tag))


def vr(b, n=1):
    return 'v%d' % b if n == 1 else 'v[%d:%d]' % (b, b + n - 1)


def sr(b, n=1):
    return 's%d' % b if n == 1 else 's[%d:%d]' % (b, b + n - 1)


P_AX, P_AWQKV, P_AWPHI, P_AWO, P_BX, P_BWQKV, P_BWO, P_OUT, P_DBG, P_WS = 4, 6, 8, 10, 12, 14, 16, 18, 20, 22


def load_kernargs(a):
    a('s_load_dwordx16 s[4:19], s[0:1], 0')
    a('s_load_dwordx4 s[20:23], s[0:1], 64')


def srd(a, d, base, off, size):
    if off == 0:
        a('s_mov_b32 s%d, s%d' % (d, base))
        a('s_mov_b32 s%d, s%d' % (d + 1, base + 1))
    else:
        o = off if isinstance(off, str) else '0x%x' % off
        a('s_add_u32 s%d, s%d, %s' % (d, base, o))
        a('s_addc_u32 s%d, s%d, 0' % (d + 1, base + 1))
    a('s_mov_b32 s%d, 0x%x' % (d + 2, size))
    a('s_mov_b32 s%d, 0x00020000' % (d + 3))


def kdesc(name, vgpr, sgpr=96):
    acc = (vgpr + 3) // 4 * 4
    return '''.amdhsa_kernel %s
  .amdhsa_next_free_vgpr %d
  .amdhsa_next_free_sgpr %d
  .amdhsa_accum_offset %d
  .amdhsa_group_segment_fixed_size 0
  .amdhsa_kernarg_size 80
  .amdhsa_user_sgpr_count 2
  .amdhsa_user_sgpr_kernarg_segment_ptr 1
  .amdhsa_system_sgpr_workgroup_id_x 1
.end_amdhsa_kernel
''' % (name, vgpr, sgpr, acc)


def entry(a, name):
    a.raw('.p2align 8')
    a.raw('.globl %s' % name)
    a.raw('.type %s,@function' % name)
    a.label(name)


STAMP = False
STAMP_OFF = 0x4000000
_stamp_n = [0]
STAMP_REGS = list(range(72, 94))


def stamp(a):
    if not STAMP:
        return
    n = _stamp_n[0]
    a('s_memtime s[94:95]')
    a('s_waitcnt lgkmcnt(0)')
    a('s_mov_b32 s%d, s94' % STAMP_REGS[n])
    _stamp_n[0] += 1


def stamp_rt(a):
    if not STAMP:
        return
    n = _stamp_n[0]
    a('s_memrealtime s[94:95]')
    a('s_waitcnt lgkmcnt(0)')
    a('s_mov_b32 s%d, s94' % STAMP_REGS[n])
    _stamp_n[0] += 1


def stamp_flush(a, kid):
    if not STAMP:
        return
    a('s_getreg_b32 s%d, hwreg(HW_REG_XCC_ID)' % STAMP_REGS[_stamp_n[0]])
    n = _stamp_n[0] + 1
    _stamp_n[0] = 0
    a('s_mov_b64 exec, 1')
    a('s_add_u32 s68, s%d, 0x%x' % (P_WS, STAMP_OFF + kid * 0x100000))
    a('s_addc_u32 s69, s%d, 0' % (P_WS + 1))
    a('s_mov_b32 s70, 0x100000')
    a('s_mov_b32 s71, 0x00020000')
    a('s_lshl_b32 s94, s2, 4')
    a('s_add_u32 s94, s94, s26')
    a('s_lshl_b32 s94, s94, 7')
    a('v_mov_b32 v1, 0')
    for i in range(n):
        a('v_mov_b32 v2, s%d' % STAMP_REGS[i])
        a('buffer_store_dword v2, v1, s[68:71], s94 offen offset:%d' % (4 * i))
        a('s_nop 1')


def bf16r(a, v, tmp):
    a('v_cvt_pk_bf16_f32 %s, %s, %s' % (vr(tmp), vr(v), vr(v)))
    a('v_lshlrev_b32 %s, 16, %s' % (vr(v), vr(tmp)))


def magic(dv, maxv):
    for sh in range(4, 24):
        mul = (1 << sh) // dv + 1
        if all((x * mul) >> sh == x // dv for x in range(maxv + 1)):
            return mul, sh
    raise ValueError


def sdiv(a, dq, dr, src, dv, maxv):
    mul, sh = magic(dv, maxv)
    a('s_mul_i32 s%d, s%d, %d' % (dq, src, mul))
    a('s_lshr_b32 s%d, s%d, %d' % (dq, dq, sh))
    a('s_mul_i32 s%d, s%d, %d' % (dr, dq, dv))
    a('s_sub_u32 s%d, s%d, s%d' % (dr, src, dr))


NPREP = 460
CODEPF = int(os.environ.get('CODEPF', 1))


def gen_prep(a):
    entry(a, 'prep_kernel')
    a('s_cmp_ge_u32 s2, %d' % NPREP)
    a('s_cbranch_scc1 prep_end')
    load_kernargs(a)
    a('v_and_b32 v1, 63, v0')
    a('v_lshrrev_b32 v2, 6, v0')
    a('v_and_b32 v3, 7, v1')
    a('v_readfirstlane_b32 s24, v2')
    a('v_lshrrev_b32 v4, 3, v1')
    a('s_waitcnt lgkmcnt(0)')
    stamp(a)
    stamp_rt(a)
    if STAMP:
        a('s_mov_b32 s74, s72')
    if CODEPF:
        a('s_cmp_ge_u32 s2, 24')
        a('s_cbranch_scc1 prep_nocpf')
        a('s_getpc_b64 s[56:57]')
        a.label('prep_pc')
        a('s_lshr_b32 s58, s2, 3')
        a('s_mul_i32 s58, s58, 3')
        a('s_add_u32 s58, s58, s24')
        a('s_lshl_b32 s58, s58, 13')
        a('v_lshlrev_b32 v62, 7, v1')
        a('v_add_u32 v62, s58, v62')
        a('v_cmp_gt_u32 vcc, code_end-prep_pc-4, v62')
        a('s_and_saveexec_b64 s[58:59], vcc')
        a('s_cbranch_execz prep_cpf_skip')
        a('global_load_dword v63, v62, s[56:57]')
        a.label('prep_cpf_skip')
        a('s_mov_b64 exec, -1')
        a.label('prep_nocpf')
    a('s_cmp_ge_u32 s2, 332')
    a('s_cbranch_scc1 prep_x')
    a('s_cmp_ge_u32 s2, 308')
    a('s_cbranch_scc1 prep_zero')
    a('s_cmp_ge_u32 s2, 296')
    a('s_cbranch_scc1 prep_spec')
    a('s_cmp_ge_u32 s2, 216')
    a('s_cbranch_scc1 prep_phi')
    a('s_cmp_ge_u32 s2, 162')
    a('s_cbranch_scc1 prep_wo')
    a('s_cmp_ge_u32 s2, 81')
    a('s_cselect_b32 s32, s%d, s%d' % (P_BWQKV, P_AWQKV))
    a('s_cselect_b32 s33, s%d, s%d' % (P_BWQKV + 1, P_AWQKV + 1))
    a('s_cselect_b32 s25, 0x%x, 0' % (WQB - WQA))
    a('s_cselect_b32 s29, 0x%x, 0' % (CSB - CSA))
    a('s_cselect_b32 s26, 81, 0')
    a('s_add_u32 s29, s29, 0x%x' % CSA)
    a('s_mov_b32 s34, %d' % (576 * 3456))
    a('s_mov_b32 s35, 0x00020000')
    srd(a, 36, P_WS, 's25', WQ_SZ)
    srd(a, 52, P_WS, 's29', CS_SZ)
    a('s_sub_u32 s26, s2, s26')
    sdiv(a, 27, 28, 26, 3, 80)
    sdiv(a, 29, 30, 27, 9, 26)
    a('s_mul_i32 s31, s28, 3')
    a('s_add_u32 s31, s31, s24')
    for e in range(8):
        a('s_mov_b32 s%d, %d' % (40 + e, e * 3456))
    a('s_lshl_b32 s30, s30, 6')
    a('v_lshl_add_u32 v5, v3, 3, s30')
    a('s_lshl_b32 s48, s31, 3')
    a('v_add_u32 v6, s48, v4')
    a('v_mul_u32_u24 v7, %d, v6' % (8 * 3456))
    a('v_lshl_add_u32 v7, v5, 1, v7')
    a('s_mul_i32 s48, s29, 1152')
    a('v_add_u32 v7, s48, v7')
    for e in range(8):
        a('buffer_load_dwordx4 v[%d:%d], v7, s[32:35], s%d offen' % (16 + 4 * e, 19 + 4 * e, 40 + e))
    a('v_add_u32 v10, s30, v1')
    a('v_mul_u32_u24 v11, 3641, v10')
    a('v_lshrrev_b32 v11, 16, v11')
    a('v_mul_u32_u24 v12, 18, v11')
    a('v_sub_u32 v12, v10, v12')
    a('v_and_b32 v13, 1, v11')
    a('s_lshl_b32 s48, s29, 11')
    a('s_sub_u32 s48, s48, 2048')
    a('s_cmp_eq_u32 s29, 0')
    a('s_cselect_b32 s48, 92160, s48')
    a('s_mov_b32 s50, 5120')
    a('s_cselect_b32 s50, 2048, s50')
    a('s_lshl_b32 s49, s29, 6')
    a('s_add_u32 s49, s49, %d' % (4096 - 256))
    a('v_cmp_gt_u32 vcc, 16, v12')
    a('v_lshl_add_u32 v14, v13, 5, s49')
    a('v_lshl_add_u32 v13, v13, 10, s48')
    a('v_lshrrev_b32 v11, 1, v11')
    a('v_cndmask_b32 v13, v14, v13, vcc')
    a('v_mov_b32 v14, 5120')
    a('v_mov_b32 v15, s50')
    a('s_mov_b32 s50, 129024')
    a('v_cndmask_b32 v14, v14, v15, vcc')
    a('v_mul_u32_u24 v11, s50, v11')
    a('v_lshl_add_u32 v13, v12, 4, v13')
    a('v_add_u32 v13, v13, v11')
    a('s_lshl_b32 s62, s31, 1')
    a('v_mad_u32_u24 v48, v14, s62, v13')
    a('v_add_u32 v51, v48, v14')
    a('s_mov_b32 s62, 0')
    a('s_mov_b32 s63, 0')
    a('s_mov_b32 s51, 1')
    a('s_branch prep_tr')
    a.label('prep_wo')
    a('s_cmp_ge_u32 s2, 189')
    a('s_cselect_b32 s32, s%d, s%d' % (P_BWO, P_AWO))
    a('s_cselect_b32 s33, s%d, s%d' % (P_BWO + 1, P_AWO + 1))
    a('s_cselect_b32 s25, 0x%x, 0' % (WOB - WOA))
    a('s_cselect_b32 s26, 27, 0')
    a('s_add_u32 s25, s25, 0x%x' % WOA)
    a('s_add_u32 s26, s26, 162')
    a('s_mov_b32 s34, %d' % (576 * 1152))
    a('s_mov_b32 s35, 0x00020000')
    srd(a, 36, P_WS, 's25', WO_SZ)
    srd(a, 52, P_WS, CSA, CS_SZ)
    a('s_sub_u32 s26, s2, s26')
    sdiv(a, 27, 28, 26, 3, 26)
    a('s_mul_i32 s31, s28, 3')
    a('s_add_u32 s31, s31, s24')
    a('s_lshl_b32 s48, s31, 3')
    a('v_add_u32 v6, s48, v4')
    a('s_cmp_eq_u32 s31, 8')
    a('s_cbranch_scc1 prep_b_tail')
    for e, o in enumerate([0, 1, 2, 3, 8, 9, 10, 11]):
        a('s_mov_b32 s%d, %d' % (40 + e, o * 1152))
    a('v_lshrrev_b32 v7, 1, v6')
    a('v_mul_u32_u24 v7, 18, v7')
    a('v_and_b32 v8, 1, v6')
    a('v_lshl_add_u32 v7, v8, 2, v7')
    a('s_branch prep_b_row')
    a.label('prep_b_tail')
    for e, o in enumerate([0, 1, 18, 19, 36, 37, 54, 55]):
        a('s_mov_b32 s%d, %d' % (40 + e, o * 1152))
    a('v_mul_u32_u24 v7, 72, v4')
    a('v_add_u32 v7, 16, v7')
    a.label('prep_b_row')
    a('v_mul_u32_u24 v7, 1152, v7')
    a('v_lshl_add_u32 v7, v3, 4, v7')
    a('s_lshl_b32 s30, s27, 7')
    a('v_add_u32 v7, s30, v7')
    for e in range(8):
        a('buffer_load_dwordx4 v[%d:%d], v7, s[32:35], s%d offen' % (16 + 4 * e, 19 + 4 * e, 40 + e))
    a('s_lshl_b32 s30, s27, 6')
    a('v_add_u32 v8, s30, v1')
    a('v_mul_u32_u24 v9, 911, v8')
    a('v_lshrrev_b32 v9, 16, v9')
    a('v_mul_u32_u24 v10, 72, v9')
    a('v_sub_u32 v8, v8, v10')
    a('s_mov_b32 s30, 92160')
    a('v_mul_u32_u24 v9, s30, v9')
    a('v_lshrrev_b32 v10, 4, v8')
    a('v_lshl_add_u32 v9, v10, 10, v9')
    a('v_and_b32 v8, 15, v8')
    a('v_lshl_add_u32 v48, v8, 4, v9')
    a('v_mov_b32 v51, v48')
    a('s_mul_i32 s62, s31, 10240')
    a('s_add_u32 s63, s62, 5120')
    a('s_mov_b32 s51, 0')
    a.label('prep_tr')
    a('s_mul_i32 s30, s24, 9216')
    a('v_mul_u32_u24 v49, 1152, v4')
    a('v_mul_u32_u24 v50, 144, v3')
    a('v_add3_u32 v49, v49, v50, s30')
    a('v_add_u32 v50, v1, v4')
    a('v_lshlrev_b32 v50, 4, v50')
    a('v_add_u32 v50, s30, v50')
    a('s_mov_b32 s30, 0x05040100')
    a('s_mov_b32 s31, 0x07060302')
    a('s_mov_b32 s26, 0x3f803f80')
    a('s_waitcnt vmcnt(0)')
    stamp(a)
    for c in range(8):
        p, o = c >> 1, c & 1
        ob = 64 + 4 * c
        for q in range(4):
            a('v_perm_b32 v%d, v%d, v%d, s%d' % (ob + q, 16 + 4 * (2 * q + 1) + p, 16 + 4 * (2 * q) + p, 30 + o))
        a('ds_write_b128 v49, v[%d:%d] offset:%d' % (ob, ob + 3, 16 * c))
    a('s_waitcnt lgkmcnt(0)')
    for kg in range(8):
        a('ds_read_b128 v[%d:%d], v50 offset:%d' % (16 + 4 * kg, 19 + 4 * kg, kg * 1152))
    for kg in range(8):
        a('s_waitcnt lgkmcnt(%d)' % (7 - kg))
        a('buffer_store_dwordx4 v[%d:%d], v%d, s[36:39], s%d offen offset:%d' % (16 + 4 * kg, 19 + 4 * kg, 48 if kg < 4 else 51, 62 + (kg >> 2), (kg & 3) * 256))
    a('s_cmp_eq_u32 s51, 0')
    a('s_cbranch_scc1 prep_end')
    for n in range(32):
        a('v_dot2_f32_bf16 v%d, v%d, s26, %s' % (52 + (n & 3), 16 + n, '0' if n < 4 else 'v%d' % (52 + (n & 3))))
    a('v_lshlrev_b32 v10, 2, v0')
    a('s_nop 1')
    a('v_add_f32 v52, v52, v53')
    a('v_add_f32 v54, v54, v55')
    a('v_add_f32 v52, v52, v54')
    a('ds_write_b32 v10, v52 offset:27648')
    a('s_waitcnt lgkmcnt(0)')
    a('s_barrier')
    a('s_cmp_lg_u32 s24, 0')
    a('s_cbranch_scc1 prep_end')
    for i in range(3):
        a('ds_read_b32 v%d, v10 offset:%d' % (16 + i, 27648 + i * 256))
    a('s_mul_i32 s30, s29, 9')
    a('s_sub_u32 s30, s27, s30')
    a('s_lshl_b32 s30, s30, 6')
    a('s_lshl_b32 s48, s29, 9')
    a('s_lshl_b32 s49, s29, 6')
    a('s_add_u32 s49, s49, %d' % (96 * 16 - 256))
    a('s_mov_b32 s50, %d' % (3 * 448 * 4))
    a('v_add_u32 v10, s30, v1')
    a('s_mul_i32 s30, s28, %d' % (448 * 4))
    a('v_mov_b32 v8, s30')
    a('v_mul_u32_u24 v11, 3641, v10')
    a('v_lshrrev_b32 v11, 16, v11')
    a('v_mul_u32_u24 v12, 18, v11')
    a('v_sub_u32 v12, v10, v12')
    a('v_and_b32 v13, 1, v11')
    a('v_cmp_gt_u32 vcc, 16, v12')
    a('v_lshl_add_u32 v14, v13, 5, s49')
    a('v_lshl_add_u32 v13, v13, 8, s48')
    a('v_lshrrev_b32 v11, 1, v11')
    a('v_cndmask_b32 v13, v14, v13, vcc')
    a('v_mul_u32_u24 v11, s50, v11')
    a('v_lshl_add_u32 v13, v12, 4, v13')
    a('v_add3_u32 v13, v13, v11, v8')
    a('v_lshrrev_b32 v13, 2, v13')
    a('s_waitcnt lgkmcnt(0)')
    a('v_add_f32 v16, v16, v17')
    a('v_add_f32 v16, v16, v18')
    a('buffer_store_dword v16, v13, s[52:55], 0 offen')
    a('s_branch prep_end')
    a.label('prep_phi')
    srd(a, 32, P_AWPHI, 0, 32 * 324 * 2)
    srd(a, 36, P_WS, TPHI, TPHI_SZ)
    a('s_sub_u32 s26, s2, 216')
    sdiv(a, 27, 29, 26, 5, 79)
    a('s_mov_b32 s28, s24')
    a('v_and_b32 v2, 3, v1')
    a('v_bfe_u32 v3, v1, 2, 1')
    a('v_bfe_u32 v4, v1, 3, 1')
    a('v_lshrrev_b32 v5, 4, v1')
    a('v_lshlrev_b32 v6, 15, v3')
    a('v_lshl_or_b32 v6, v6, 16, v6')
    a('v_cmp_eq_u32 s[50:51], 0, v4')
    a('s_lshl_b32 s30, s29, 2')
    a('v_add_u32 v7, s30, v2')
    a('v_lshlrev_b32 v8, 2, v5')
    a('s_cmp_eq_u32 s28, 0')
    a('s_cbranch_scc1 prep_phi_d0')
    a('v_mov_b32 v8, 16')
    a.label('prep_phi_d0')
    a('s_lshl_b32 s30, s27, 1')
    a('v_add_u32 v9, s30, v4')
    a('v_mul_u32_u24 v9, 324, v9')
    a('v_mul_u32_u24 v8, 18, v8')
    a('v_add3_u32 v9, v9, v8, v7')
    a('v_lshlrev_b32 v9, 1, v9')
    a('v_mov_b32 v10, 0x7fff0000')
    a('v_cmp_gt_u32 vcc, 18, v7')
    a('s_nop 1')
    a('v_cndmask_b32 v9, v10, v9, vcc')
    a('s_cmp_eq_u32 s28, 0')
    a('s_cbranch_scc1 prep_phi_ld')
    a('s_sub_u32 s30, s28, 1')
    a('v_cmp_eq_u32 vcc, s30, v5')
    a('s_nop 1')
    a('v_cndmask_b32 v9, v10, v9, vcc')
    a.label('prep_phi_ld')
    for i in range(4):
        a('buffer_load_ushort v%d, v9, s[32:35], 0 offen offset:%d' % (16 + i, i * 36))
    a('s_waitcnt vmcnt(0)')
    a('v_lshl_or_b32 v16, v17, 16, v16')
    a('v_lshl_or_b32 v18, v19, 16, v18')
    a('v_xor_b32 v16, v16, v6')
    a('v_xor_b32 v18, v18, v6')
    a('v_cndmask_b32 v20, 0, v16, s[50:51]')
    a('s_cmp_eq_u32 s28, 0')
    a('s_cbranch_scc0 prep_phi_tb')
    a('v_cndmask_b32 v21, 0, v18, s[50:51]')
    a('v_cndmask_b32 v22, v16, 0, s[50:51]')
    a('v_cndmask_b32 v23, v18, 0, s[50:51]')
    a('s_branch prep_phi_st')
    a.label('prep_phi_tb')
    a('v_cndmask_b32 v21, v16, 0, s[50:51]')
    a('v_mov_b32 v22, 0')
    a('v_mov_b32 v23, 0')
    a.label('prep_phi_st')
    a('s_mul_i32 s30, s27, 15')
    a('s_mul_i32 s31, s28, 5')
    a('s_add_u32 s30, s30, s31')
    a('s_add_u32 s30, s30, s29')
    a('s_lshl_b32 s30, s30, 10')
    a('v_lshlrev_b32 v11, 4, v1')
    a('buffer_store_dwordx4 v[20:23], v11, s[36:39], s30 offen')
    a('s_branch prep_end')
    a.label('prep_spec')
    a('s_sub_u32 s26, s2, 296')
    a('s_cmp_ge_u32 s26, 6')
    a('s_cselect_b32 s25, 0x%x, 0' % (WQB - WQA))
    a('s_cselect_b32 s29, 0x%x, 0' % (CSB - CSA))
    a('s_cselect_b32 s27, 6, 0')
    a('s_add_u32 s29, s29, 0x%x' % CSA)
    srd(a, 36, P_WS, 's25', WQ_SZ)
    srd(a, 52, P_WS, 's29', CS_SZ)
    a('s_sub_u32 s26, s26, s27')
    a('s_mul_i32 s26, s26, 192')
    a('v_add_u32 v2, s26, v0')
    a('v_lshrrev_b32 v3, 2, v2')
    a('v_mul_u32_u24 v4, 3641, v3')
    a('v_lshrrev_b32 v4, 16, v4')
    a('v_mul_u32_u24 v6, 18, v4')
    a('v_sub_u32 v6, v3, v6')
    a('s_mov_b32 s28, 129024')
    a('v_mul_u32_u24 v4, s28, v4')
    a('v_mul_u32_u24 v6, 5120, v6')
    a('v_add_u32 v4, v4, v6')
    a('v_and_b32 v5, 3, v2')
    a('v_lshl_add_u32 v4, v5, 8, v4')
    a('v_add_u32 v4, %d, v4' % (4096 + 192))
    for i in range(4):
        a('v_mov_b32 v%d, 0x3f803f80' % (8 + i))
        a('v_mov_b32 v%d, 0' % (12 + i))
    a('buffer_store_dwordx4 v[8:11], v4, s[36:39], 0 offen')
    for i in range(1, 4):
        a('buffer_store_dwordx4 v[12:15], v4, s[36:39], 0 offen offset:%d' % (16 * i))
    a('v_mul_u32_u24 v6, 448, v2')
    a('v_add_u32 v6, 432, v6')
    a('buffer_store_dwordx4 v[12:15], v6, s[52:55], 0 offen')
    a('s_branch prep_end')
    a.label('prep_zero')
    srd(a, 36, P_WS, KV1, 2 * KV_SZ)
    a('s_sub_u32 s27, s2, 308')
    a('s_mul_i32 s27, s27, 9216')
    a('v_lshlrev_b32 v2, 4, v0')
    a('v_add_u32 v2, s27, v2')
    for i in range(4):
        a('v_mov_b32 v%d, 0' % (4 + i))
    for k in range(3):
        a('s_mov_b32 s28, %d' % (k * 3072))
        a('buffer_store_dwordx4 v[4:7], v2, s[36:39], s28 offen')
    srd(a, 36, P_WS, FL, FL_SZ)
    a('s_sub_u32 s27, s2, 308')
    a('s_mul_i32 s27, s27, 3072')
    a('v_lshlrev_b32 v2, 4, v0')
    a('buffer_store_dwordx4 v[4:7], v2, s[36:39], s27 offen')
    a('s_branch prep_end')
    a.label('prep_x')
    srd(a, 32, P_AX, 0, X_SZ)
    srd(a, 36, P_WS, X0, X_SZ)
    a('s_sub_u32 s26, s2, 332')
    a('s_and_b32 s27, s26, 3')
    a('s_lshl_b32 s27, s27, 5')
    a('s_lshr_b32 s26, s26, 2')
    a('s_add_u32 s26, s26, s27')
    a('v_lshrrev_b32 v2, 2, v1')
    a('v_and_b32 v3, 3, v1')
    a('v_mul_u32_u24 v4, 1152, v2')
    a('v_lshl_add_u32 v4, v3, 4, v4')
    a('s_mul_i32 s27, s26, 18432')
    a('s_mul_i32 s28, s24, 384')
    a('s_add_u32 s28, s28, s27')
    for t in range(6):
        a('buffer_load_dwordx4 v[%d:%d], v4, s[32:35], s28 offen offset:%d' % (16 + 4 * t, 19 + 4 * t, t * 64))
    a('v_lshlrev_b32 v5, 4, v2')
    a('v_lshl_add_u32 v5, v3, 8, v5')
    a('s_mul_i32 s28, s24, 6144')
    a('v_add_u32 v5, s28, v5')
    a('v_lshlrev_b32 v6, 4, v1')
    a('v_add_u32 v7, s28, v6')
    a('s_add_u32 s28, s28, s27')
    a('s_add_u32 s29, s28, 3072')
    for t in range(6):
        a('s_waitcnt vmcnt(%d)' % (5 - t))
        a('ds_write_b128 v5, v[%d:%d] offset:%d' % (16 + 4 * t, 19 + 4 * t, t * 1024))
    a('s_waitcnt lgkmcnt(0)')
    for t in range(6):
        a('ds_read_b128 v[%d:%d], v7 offset:%d' % (40 + 4 * t, 43 + 4 * t, t * 1024))
    for t in range(6):
        a('s_waitcnt lgkmcnt(%d)' % (5 - t))
        a('buffer_store_dwordx4 v[%d:%d], v6, s[36:39], s%d offen offset:%d' % (40 + 4 * t, 43 + 4 * t, 28 + t // 3, (t % 3) * 1024))
    a.label('prep_end')
    if STAMP:
        a('s_cmp_ge_u32 s2, %d' % NPREP)
        a('s_cbranch_scc1 prep_end2')
        a('s_mov_b64 exec, -1')
        stamp(a)
        a('s_waitcnt vmcnt(0)')
        stamp(a)
        stamp_rt(a)
        a('s_mov_b32 s26, s24')
        a('s_lshr_b32 s3, s2, 8')
        a('s_lshl_b32 s3, s3, 2')
        a('s_add_u32 s26, s26, s3')
        a('s_and_b32 s2, s2, 255')
        stamp_flush(a, 5)
        a.label('prep_end2')
    a('s_endpgm')
    return [('prep_kernel', 96, 96)]


XF0 = 32
ACC0 = 104
WB0 = 168
LDS_T = 127 * 1024
LDS_PK = 32 * 1024
PK_STRIDE = 224
QDEPTH = int(os.environ.get('QDEPTH', 3))
SPREAD = int(os.environ.get('SPREAD', 1))
LSLOTS = [1, 5, 9, 13]


def XF(a_, t):
    return XF0 + (a_ * 9 + t) * 4


def ACC(a_, u):
    return ACC0 + (a_ * 8 + u) * 4


def p2(r):
    return 'v[%d:%d]' % (r, r + 1)


def softmax18(a, D, sL, tmp):
    m, s_ = tmp, tmp + 2
    a('v_max3_f32 %s, %s, %s, %s' % (vr(m), vr(D), vr(D + 1), vr(D + 2)))
    a('v_max3_f32 %s, %s, %s, %s' % (vr(m + 1), vr(D + 3), vr(D + 4), vr(D + 5)))
    for i in range(6, 18, 4):
        a('v_max3_f32 %s, %s, %s, %s' % (vr(m), vr(m), vr(D + i), vr(D + i + 1)))
        a('v_max3_f32 %s, %s, %s, %s' % (vr(m + 1), vr(m + 1), vr(D + i + 2), vr(D + i + 3)))
    a('v_max_f32 %s, %s, %s' % (vr(m), vr(m), vr(m + 1)))
    a('v_mul_f32 %s, s%d, %s' % (vr(m), sL, vr(m)))
    pf = lambda k: a('v_pk_fma_f32 %s, %s, s[%d:%d], %s op_sel_hi:[1,0,0] neg_lo:[0,0,1] neg_hi:[0,0,1]' % (p2(D + 2 * k), p2(D + 2 * k), sL, sL + 1, p2(m)))
    pf(0)
    pf(1)
    for k in range(9):
        a('v_exp_f32 %s, %s' % (vr(D + 2 * k), vr(D + 2 * k)))
        if k + 2 < 9:
            pf(k + 2)
        elif k == 7:
            a('v_pk_add_f32 %s, %s, %s' % (p2(s_), p2(s_), p2(D + 10)))
        else:
            a('v_pk_add_f32 %s, %s, %s' % (p2(s_), p2(s_), p2(D + 14)))
        a('v_exp_f32 %s, %s' % (vr(D + 2 * k + 1), vr(D + 2 * k + 1)))
        if k == 2:
            a('v_pk_add_f32 %s, %s, %s' % (p2(s_), p2(D), p2(D + 2)))
        elif 3 <= k <= 5:
            a('v_pk_add_f32 %s, %s, %s' % (p2(s_), p2(s_), p2(D + 2 * k - 2)))
        elif k == 7:
            a('v_pk_add_f32 %s, %s, %s' % (p2(s_), p2(s_), p2(D + 12)))
        elif k == 8:
            a('s_nop 0')
    a('v_pk_add_f32 %s, %s, %s' % (p2(s_), p2(s_), p2(D + 16)))
    a('v_add_f32 %s, %s, %s' % (vr(s_), vr(s_), vr(s_ + 1)))
    a('v_rcp_f32 %s, %s' % (vr(s_), vr(s_)))
    a('s_nop 0')
    for k in range(9):
        a('v_pk_mul_f32 %s, %s, %s op_sel_hi:[1,0]' % (p2(D + 2 * k), p2(D + 2 * k), p2(s_)))
    for i in range(9):
        a('v_cvt_pk_bf16_f32 %s, %s, %s' % (vr(D + i), vr(D + 2 * i), vr(D + 2 * i + 1)))


SWS, SOUT = 32, 36
F_KVC, F_OC, F_XC, F_KVF = FL, FL + 4096, FL + 12288, FL + 20480
SPIN_LIMIT = 40000
L0P = int(os.environ.get('L0P', 1))
MID = int(os.environ.get('MID', 5))
PFN = int(os.environ.get('PFN', 4))
LOCAL = int(os.environ.get('LOCAL', 0))
F_OW, F_XW, F_GRP = FL + 24576, FL + 28672, FL + 32768
XD = int(os.environ.get('XD', 3))
OD = int(os.environ.get('OD', 4))
PT = int(os.environ.get('PT', 0))
O_A = int(os.environ.get('O_A', 0))
O_B = int(os.environ.get('O_B', 1))
O_P = int(os.environ.get('O_P', 0))
WQ_PRE = int(os.environ.get('WQ_PRE', 8))
WOMAP = int(os.environ.get('WOMAP', 1))
L_T, L_CS = 0, 16384
L_W = 34816
L_Q = L_W + 92160
L_PK = L_W
L_PHI = L_W
L_KV = 0
L_X2A, L_X2B = 17408, 71680
L_QP = 88064
L_WO = 70 * 1024
L_WX = 0
IM_P = 6144 + 64
I_K0, I_K1, I_V0, I_V1, I_VT = 0, IM_P, 2 * IM_P, 3 * IM_P, 4 * IM_P
I_KT = 5 * IM_P
IM_HEAD = I_KT + 3072
MEGA_LDS = 160 * 1024
_uid = [0]


FINE = int(os.environ.get('FINE', 0))


def mstamp(a, fine=False):
    if not STAMP or (FINE and not fine) or (fine == 2 and not FINE):
        return
    a('s_memtime s[94:95]')
    a('s_waitcnt lgkmcnt(0)')
    a('s_mov_b32 s92, m0')
    a('s_mov_b32 m0, s93')
    a('s_nop 1')
    a('v_writelane_b32 v2, s94, m0')
    a('s_mov_b32 m0, s92')
    a('s_add_u32 s93, s93, 1')


def ws_ld(a, dst, n, voff, soff, imm=0, extra=''):
    a('buffer_load_dword%s %s, %s, s[%d:%d], %s offen offset:%d %s' % ('' if n == 1 else 'x%d' % n, vr(dst, n), voff, SWS, SWS + 3, soff, imm, extra))


def ws_dma(a, soff, imm=0, extra=''):
    a('buffer_load_dwordx4 v5, s[%d:%d], %s offen offset:%d %s lds' % (SWS, SWS + 3, soff, imm, extra))


def ws_st(a, src, n, voff, soff, imm=0, extra='sc1'):
    a('buffer_store_dword%s %s, %s, s[%d:%d], %s offen offset:%d %s' % ('' if n == 1 else 'x%d' % n, vr(src, n), voff, SWS, SWS + 3, soff, imm, extra))


def arrive(a, soff):
    _uid[0] += 1
    l = 'arr%d' % _uid[0]
    a('s_cmp_lg_u32 s26, 0')
    a('s_cbranch_scc1 %s' % l)
    a('v_mov_b32 v29, 0')
    a('v_mov_b32 v30, 1')
    a('s_mov_b64 exec, 1')
    a('buffer_atomic_add v30, v29, s[%d:%d], %s offen sc1' % (SWS, SWS + 3, soff))
    a('s_mov_b64 exec, -1')
    a.label(l)


def warrive(a, soff):
    a('v_mov_b32 v29, 0')
    a('v_mov_b32 v30, 1')
    a('s_mov_b64 exec, 1')
    a('buffer_atomic_add v30, v29, s[%d:%d], %s offen sc1' % (SWS, SWS + 3, soff))
    a('s_mov_b64 exec, -1')


def poll(a, soffs, target, skip_cond=None):
    _uid[0] += 1
    l = 'pl%d' % _uid[0]
    a('s_cmp_lg_u32 s26, 0')
    a('s_cbranch_scc1 %s_e' % l)
    if skip_cond:
        a(skip_cond)
        a('s_cbranch_scc1 %s_e' % l)
    a('v_mov_b32 v29, 0')
    a('s_mov_b64 exec, 1')
    a('s_mov_b32 s90, 0')
    n = len(soffs)
    ld = lambda base: [a('buffer_load_dword v%d, v29, s[%d:%d], %s offen sc1' % (base + q, SWS, SWS + 3, so)) for q, so in enumerate(soffs)]
    if O_P:
        a('s_waitcnt vmcnt(0)')
        ld(27)
        a.label(l)
        ld(0 if n == 1 else 30)
        a('s_waitcnt vmcnt(%d)' % n)
        if n == 2:
            a('v_min_u32 v27, v27, v28')
            a('s_nop 0')
        a('v_readfirstlane_b32 s91, v27')
        a('s_cmp_ge_u32 s91, %d' % target)
        a('s_cbranch_scc1 %s_d' % l)
        ld(27)
        a('s_waitcnt vmcnt(%d)' % n)
        if n == 2:
            a('v_min_u32 v30, v30, v31')
            a('s_nop 0')
        a('v_readfirstlane_b32 s91, v%d' % (0 if n == 1 else 30))
    else:
        a.label(l)
        ld(27)
        a('s_waitcnt vmcnt(0)')
        if n == 2:
            a('v_min_u32 v27, v27, v28')
            a('s_nop 0')
        a('v_readfirstlane_b32 s91, v27')
    a('s_add_u32 s90, s90, 1')
    a('s_cmp_ge_u32 s90, %d' % SPIN_LIMIT)
    a('s_cbranch_scc1 %s_d' % l)
    a('s_cmp_lt_u32 s91, %d' % target)
    a('s_cbranch_scc1 %s' % l)
    a.label('%s_d' % l)
    a('s_mov_b64 exec, -1')
    a.label('%s_e' % l)


def st_mode(a, emit):
    if not LOCAL:
        emit('sc1')
        return
    _uid[0] += 1
    l = 'sm%d' % _uid[0]
    a('s_cmp_eq_u32 s16, 1')
    a('s_cbranch_scc1 %s_l' % l)
    emit('sc1')
    a('s_branch %s_e' % l)
    a.label('%s_l' % l)
    emit('')
    a.label('%s_e' % l)


def arrive2(a, s_cnt, s_word, s_me):
    if not LOCAL:
        arrive(a, s_cnt)
        return
    _uid[0] += 1
    l = 'ar%d' % _uid[0]
    a('s_cmp_lg_u32 s26, 0')
    a('s_cbranch_scc1 %s_e' % l)
    a('v_mov_b32 v30, 1')
    a('s_mov_b64 exec, 1')
    a('s_cmp_eq_u32 s16, 1')
    a('s_cbranch_scc1 %s_l' % l)
    a('v_mov_b32 v29, 0')
    a('buffer_atomic_add v30, v29, s[%d:%d], %s offen sc1' % (SWS, SWS + 3, s_cnt))
    a('s_branch %s_x' % l)
    a.label('%s_l' % l)
    a('s_lshl_b32 s90, %s, 2' % s_me)
    a('v_mov_b32 v29, s90')
    a('buffer_store_dword v30, v29, s[%d:%d], %s offen' % (SWS, SWS + 3, s_word))
    a.label('%s_x' % l)
    a('s_mov_b64 exec, -1')
    a.label('%s_e' % l)


def poll2(a, s_cnt, s_word, skip_cond=None):
    if not LOCAL:
        poll(a, [s_cnt], 16, skip_cond)
        return
    _uid[0] += 1
    l = 'pw%d' % _uid[0]
    a('s_cmp_eq_u32 s16, 1')
    a('s_cbranch_scc1 %s_l' % l)
    poll(a, [s_cnt], 16, skip_cond)
    a('s_branch %s_e' % l)
    a.label('%s_l' % l)
    a('s_cmp_lg_u32 s26, 0')
    a('s_cbranch_scc1 %s_e' % l)
    if skip_cond:
        a(skip_cond)
        a('s_cbranch_scc1 %s_e' % l)
    a('v_lshlrev_b32 v29, 2, v1')
    a('s_mov_b64 exec, 0xffff')
    a('s_mov_b32 s90, 0')
    a.label(l)
    a('buffer_load_dword v27, v29, s[%d:%d], %s offen sc1' % (SWS, SWS + 3, s_word))
    a('s_waitcnt vmcnt(0)')
    a('v_cmp_eq_u32 vcc, 1, v27')
    a('s_add_u32 s90, s90, 1')
    a('s_cmp_ge_u32 s90, %d' % SPIN_LIMIT)
    a('s_cbranch_scc1 %s_d' % l)
    a('s_cmp_lg_u32 vcc_lo, 0xffff')
    a('s_cbranch_scc1 %s' % l)
    a.label('%s_d' % l)
    a('s_mov_b64 exec, -1')
    a.label('%s_e' % l)


def oimg_addr(a, s_rb32, s_head, s_main, s_tail, t1, t2):
    a('s_mul_i32 s%d, s10, 0x%x' % (t1, XS))
    a('s_mul_i32 s%d, s%d, 36864' % (s_tail, s_rb32))
    a('s_add_u32 s%d, s%d, s%d' % (s_tail, s_tail, t1))
    a('s_add_u32 s%d, s%d, 0x%x' % (s_tail, s_tail, OIMG))
    a('s_lshl_b32 s%d, s%d, 10' % (t1, s_head))
    a('s_and_b32 s%d, s%d, 1' % (t2, s_head))
    a('s_lshl_b32 s%d, s%d, 9' % (t2, t2))
    a('s_sub_u32 s%d, s%d, s%d' % (t1, t1, t2))
    a('s_add_u32 s%d, s%d, s%d' % (s_main, s_tail, t1))
    a('s_lshr_b32 s%d, s%d, 4' % (t1, s_head))
    a('s_lshl_b32 s%d, s%d, 11' % (t1, t1))
    a('s_add_u32 s%d, s%d, s%d' % (s_tail, s_tail, t1))
    a('s_bfe_u32 s%d, s%d, 0x20002' % (t1, s_head))
    a('s_lshl_b32 s%d, s%d, 8' % (t1, t1))
    a('s_add_u32 s%d, s%d, s%d' % (s_tail, s_tail, t1))
    a('s_and_b32 s%d, s%d, 3' % (t1, s_head))
    a('s_lshl_b32 s%d, s%d, 2' % (t1, t1))
    a('s_add_u32 s%d, s%d, s%d' % (s_tail, s_tail, t1))
    a('s_add_u32 s%d, s%d, 32768' % (s_tail, s_tail))


def o_store(a, OA, s_main, s_tail, vden, eps):
    a('v_bfe_u32 v26, v1, 4, 1')
    a('v_and_b32 v27, 15, v1')
    a('v_lshlrev_b32 v27, 4, v27')
    a('v_lshl_add_u32 v27, v26, 10, v27')
    a('v_lshrrev_b32 v26, 5, v1')
    a('v_lshl_add_u32 v28, v26, 8, v27')
    if eps:
        a('v_add_f32 v24, 0x%x, %s' % (f32bits(eps), vr(OA + 10)))
        a('v_rcp_f32 v24, v24')
    else:
        a('v_rcp_f32 v24, %s' % vr(OA + 10))
    a('s_nop 0')
    for n in range(0, 10, 2):
        a('v_pk_mul_f32 %s, %s, v[24:25] op_sel_hi:[1,0]' % (p2(OA + n), p2(OA + n)))
    for n in range(5):
        a('v_cvt_pk_bf16_f32 %s, %s, %s' % (vr(OA + n), vr(OA + 2 * n), vr(OA + 2 * n + 1)))

    def emit(fl):
        ws_st(a, OA, 4, 'v28', 's%d' % s_main, 0, fl)
        a('s_mov_b32 exec_hi, 0')
        ws_st(a, OA + 4, 1, 'v27', 's%d' % s_tail, 0, fl)
        a('s_mov_b32 exec_hi, -1')
    st_mode(a, emit)


def wq_dma(a, s_kind, lo, hi):
    a('s_lshl_b32 s31, s26, 10')
    a('s_add_u32 s31, s31, %d' % (lo * 8192))
    a('s_add_u32 m0, s31, %d' % L_W)
    a('s_mul_i32 s56, s25, 129024')
    a('s_add_u32 s31, s31, s56')
    a('s_mul_i32 s56, s%d, 0x%x' % (s_kind, WQB - WQA))
    a('s_add_u32 s31, s31, s56')
    for ii in range(lo, hi):
        if ii == 15:
            a('s_cmp_ge_u32 s26, 6')
            a('s_cselect_b32 s56, 8192, 0')
            a('s_sub_u32 m0, m0, s56')
            a('s_sub_u32 s31, s31, s56')
        ws_dma(a, 's31')
        if ii < hi - 1:
            a('s_add_u32 m0, m0, 8192')
            a('s_add_u32 s31, s31, 8192')


def wo_dma_ops(a):
    def first():
        a('s_lshl_b32 s31, s26, 10')
        a('s_add_u32 m0, s31, %d' % L_WO)
        a('s_mul_i32 s29, s13, 92160')
        a('s_add_u32 s31, s31, s29')
        a('s_mul_i32 s29, s14, 0x%x' % (WOB - WOA))
        a('s_add_u32 s31, s31, s29')
        a('s_add_u32 s31, s31, 0x%x' % WOA)
        ws_dma(a, 's31')

    def nxt():
        a('s_add_u32 m0, m0, 8192')
        a('s_add_u32 s31, s31, 8192')
        ws_dma(a, 's31')

    def last():
        a('s_cmp_lt_u32 s26, 2')
        a('s_cselect_b32 s29, 8192, 0')
        a('s_add_u32 m0, m0, s29')
        a('s_add_u32 s31, s31, s29')
        ws_dma(a, 's31')
    return [first] + [nxt] * 10 + [last]


def wq_pf_ops(a, n):
    per = 64 // n

    def first():
        a('s_lshr_b32 s4, s2, 3')
        a('s_lshl_b32 s4, s4, 3')
        a('s_add_u32 s4, s4, s26')
        a('s_lshl_b32 s4, s4, 13')
        a('s_xor_b32 s5, s14, 1')
        a('s_mul_i32 s5, s5, 0x%x' % (WQB - WQA))
        a('s_add_u32 s4, s4, s5')
        a('v_lshlrev_b32 v7, 7, v1')
        nxt0()

    def nxt0():
        a('s_mov_b64 exec, 0x%x' % ((1 << per) - 1))
        ws_ld(a, 0, 1, 'v7', 's4', 0, 'sc1')
        a('s_mov_b64 exec, -1')

    def nxt():
        a('s_add_u32 s4, s4, %d' % (per * 128))
        nxt0()
    return [first] + [nxt] * (n - 1)


class Sprinkle:
    def __init__(self, a, ops, n):
        self.a, self.ops, self.n, self.c = a, list(ops), n, 0

    def __call__(self, s_):
        self.a(s_)
        self.c += 1
        if self.c % self.n == 0 and self.ops:
            self.ops.pop(0)()

    def flush(self):
        while self.ops:
            self.ops.pop(0)()


OF, WV, CA = 36, 72, 16


def wfrag_reads(a):
    a('s_mul_i32 s31, s28, %d' % (9 * 5120))
    a('s_add_u32 s31, s31, %d' % L_WO)
    a('v_add_u32 v10, s31, v5')
    a('s_lshl_b32 s31, s28, 11')
    a('v_add_u32 v8, s31, v10')
    a('s_xor_b32 s31, s31, 2048')
    a('v_add_u32 v9, s31, v10')
    for t in range(9):
        for q in range(5):
            base, off = [('v8', 0), ('v8', 1024), ('v9', 0), ('v9', 1024), ('v10', 4096)][q]
            a('ds_read_b128 %s, %s offset:%d' % (vr(WV + 20 * t + 4 * q, 4), base, t * 5120 + off))


def gen_mega(a):
    entry(a, 'mega_kernel')
    a('s_cmp_ge_u32 s2, 256')
    a('s_cbranch_scc1 mega_end')
    a('s_load_dwordx2 s[18:19], s[0:1], 56')
    a('s_load_dwordx2 s[22:23], s[0:1], 72')
    a('s_and_b32 s24, s2, 3')
    a('s_lshl_b32 s12, s24, 3')
    a('s_lshl_b32 s24, s24, 2')
    a('s_bfe_u32 s25, s2, 0x20003')
    a('s_add_u32 s24, s24, s25')
    a('s_bfe_u32 s11, s2, 0x10002')
    a('s_lshl_b32 s13, s11, 2')
    a('s_add_u32 s13, s13, s25')
    a('s_lshl_b32 s25, s11, 3')
    a('s_lshr_b32 s26, s2, 5')
    a('s_add_u32 s25, s25, s26')
    a('s_add_u32 s12, s12, s26')
    if WOMAP:
        a('s_and_b32 s12, s2, 7')
        a('s_lshl_b32 s12, s12, 2')
        a('s_lshr_b32 s13, s2, 6')
        a('s_add_u32 s12, s12, s13')
        a('s_bfe_u32 s13, s2, 0x30003')
    a('v_lshrrev_b32 v2, 6, v0')
    a('v_and_b32 v1, 63, v0')
    a('v_readfirstlane_b32 s26, v2')
    a('v_lshlrev_b32 v5, 4, v1')
    a('v_mov_b32 v2, 0')
    a('s_mov_b32 s10, 0')
    a('s_mov_b32 s93, 0')
    a('s_and_b32 s27, s26, 3')
    a('s_lshr_b32 s28, s26, 2')
    a('s_waitcnt lgkmcnt(0)')
    srd(a, SWS, P_WS, 0, WS_USED)
    srd(a, SOUT, P_OUT, 0, X_SZ)
    a('s_mov_b32 s16, 0')
    a('s_mov_b32 s17, 0')
    a('s_and_b32 s9, s2, 7')
    a('s_lshl_b32 s9, s9, 7')
    a('s_add_u32 s9, s9, 0x%x' % F_GRP)
    if LOCAL:
        a('s_getreg_b32 s56, hwreg(HW_REG_XCC_ID)')
        a('s_and_b32 s56, s56, 7')
        a('s_lshl_b32 s56, s56, 2')
        a('s_add_u32 s56, s56, s9')
        arrive(a, 's56')
    if STAMP:
        a('s_memrealtime s[94:95]')
        a('s_memtime s[96:97]')
        a('s_waitcnt lgkmcnt(0)')
        a('v_writelane_b32 v2, s94, 62')
        a('v_writelane_b32 v2, s96, 61')

    def st_ops(stage):
        ops = []
        for r in range(4):
            def op(r=r):
                a('s_add_u32 s4, s26, %d' % (8 * r))
                a('s_min_u32 s4, s4, 29')
                a('s_cmp_ge_u32 s4, 15')
                a('s_cselect_b32 s5, 30, 0')
                a('s_add_u32 s4, s4, s5')
                a('s_add_u32 s4, s4, %d' % (15 * stage))
                a('s_lshl_b32 s4, s4, 10')
                a('s_add_u32 m0, s4, %d' % L_W)
                a('s_add_u32 s4, s4, s6')
                ws_dma(a, 's4')
            ops.append(op)
        return ops

    def q_ops():
        ops = []
        for r in range(5):
            def op(r=r):
                a('s_add_u32 s4, s26, %d' % (90 + 8 * r))
                a('s_min_u32 s4, s4, 125')
                a('s_lshl_b32 s4, s4, 10')
                a('s_add_u32 m0, s4, %d' % L_W)
                a('s_add_u32 s4, s4, s6')
                ws_dma(a, 's4')
            ops.append(op)
        return ops
    if L0P:
        a('s_mul_i32 s6, s25, 129024')
        for op in st_ops(0):
            op()
    else:
        wq_dma(a, 10, 0, 16)
        a('s_waitcnt vmcnt(0)')
        a('s_barrier')
    a.label('L_top')
    mstamp(a, True)
    a('s_and_b32 s14, s10, 1')
    a('s_lshl_b32 s31, s26, 11')
    a('s_add_u32 m0, s31, %d' % L_T)
    a('s_mul_i32 s56, s25, 15360')
    a('s_add_u32 s31, s31, s56')
    a('s_add_u32 s31, s31, 0x%x' % TPHI)
    a('s_cmp_eq_u32 s14, 1')
    a('s_cbranch_scc1 q_noTd')
    ws_dma(a, 's31')
    a('s_cmp_eq_u32 s26, 7')
    a('s_cbranch_scc1 q_noTd')
    ws_dma(a, 's31', 1024)
    a.label('q_noTd')
    a('s_mul_i32 s56, s25, 1344')
    a('s_mul_i32 s57, s14, 0x%x' % (CSB - CSA))
    a('s_add_u32 s56, s56, s57')
    a('s_add_u32 s56, s56, 0x%x' % CSA)
    for p in range(3):
        ws_ld(a, 224 + 4 * p, 4, 'v5', 's56', p * 448)
    a('v_and_b32 v3, 15, v1')
    a('v_lshrrev_b32 v4, 4, v1')
    a('s_lshl_b32 s29, s24, 7')
    a('s_lshl_b32 s30, s27, 5')
    a('s_add_u32 s29, s29, s30')
    a('s_lshl_b32 s30, s28, 4')
    a('s_add_u32 s29, s29, s30')
    a('v_add_u32 v6, s29, v3')
    a('s_lshr_b32 s30, s29, 4')
    a('s_xor_b32 s69, s30, 1')
    a('s_mul_i32 s30, s30, 18432')
    a('s_mul_i32 s69, s69, 18432')
    a('s_mul_i32 s31, s28, 9216')
    a('s_mul_i32 s56, s10, 0x%x' % XS)
    a('s_add_u32 s31, s31, s56')
    a('s_add_u32 s31, s31, 0x%x' % X0)
    a('s_add_u32 s30, s30, s31')
    a('s_add_u32 s69, s69, s31')
    a('s_mul_i32 s56, s28, 46080')
    a('s_add_u32 s56, s56, %d' % L_W)
    a('v_add_u32 v10, s56, v5')
    a('s_mul_i32 s57, s27, 6144')
    a('v_add_u32 v14, s57, v10')
    a('s_xor_b32 s56, s28, 1')
    a('s_mul_i32 s56, s56, 46080')
    a('s_add_u32 s56, s56, s57')
    a('s_add_u32 s56, s56, %d' % L_W)
    a('v_add_u32 v15, s56, v5')
    a('s_mul_i32 s56, s28, 18432')
    a('s_add_u32 s56, s56, %d' % L_Q)
    a('v_add_u32 v7, s56, v5')
    a('v_and_b32 v11, 3, v3')
    a('v_cmp_eq_u32 s[58:59], 1, v11')
    a('v_cmp_eq_u32 s[60:61], 2, v11')
    a('v_cmp_eq_u32 s[62:63], 3, v11')
    a('v_lshrrev_b32 v11, 2, v3')
    a('v_lshl_add_u32 v11, v11, 4, v3')
    a('v_lshlrev_b32 v11, 2, v11')
    a('v_lshlrev_b32 v24, 2, v3')
    a('v_add_u32 v24, 192, v24')
    a('v_lshlrev_b32 v25, 4, v4')
    a('v_add_u32 v25, %d, v25' % L_CS)
    a('v_add_u32 v26, %d, v5' % L_CS)
    a('s_lshl_b32 s56, s10, 4')
    a('s_add_u32 s56, s56, s24')
    a('s_lshl_b32 s56, s56, 7')
    a('s_add_u32 s56, s56, 0x%x' % (F_XC - 2048))
    a('s_waitcnt vmcnt(0)')
    for r in (0, 2):
        a('v_pk_add_f32 %s, %s, %s' % (p2(224 + r), p2(224 + r), p2(228 + r)))
    for r in (0, 2):
        a('v_pk_add_f32 %s, %s, %s' % (p2(224 + r), p2(224 + r), p2(232 + r)))
    a('s_cmp_lg_u32 s26, 1')
    a('s_cbranch_scc1 q_nocs')
    a('s_mov_b64 exec, 0xfffffff')
    a('ds_write_b128 v26, v[224:227]')
    a('s_mov_b64 exec, -1')
    a.label('q_nocs')
    mstamp(a)
    poll(a, ['s56'], 16, 's_cmp_eq_u32 s10, 0')
    a('s_waitcnt lgkmcnt(0)')
    a('s_barrier')
    mstamp(a, True)
    A1 = lambda a_, q: 104 + (a_ * 6 + q) * 4
    W1 = lambda t, q: 152 + 20 * (t & 1) + 4 * q
    wr = [5, 4, 0, 1, 2, 3]

    def pass1(first):
        vm = VM(a)

        def xl(t, which):
            if which == 0:
                if t and t % 4 == 0:
                    a('s_add_u32 s30, s30, 4096')
                    a('s_add_u32 s69, s69, 4096')
                ws_ld(a, XF(0, t), 4, 'v5', 's30', (t & 3) * 1024)
                vm.issue()
            else:
                ws_ld(a, XF(1, t), 4, 'v5', 's69', (t & 3) * 1024)
                vm.issue(t)
        for t in range(XD):
            xl(t, 0)
            xl(t, 1)
        for q in range(5):
            a('ds_read_b128 %s, v10 offset:%d' % (vr(W1(0, q), 4), q * 1024))
        for t in range(9):
            if first and t in (2, 5):
                a('s_waitcnt vmcnt(%d) lgkmcnt(0)' % min(vm.cnt(t), vm.cnt(('st', t // 3 + 1))))
                a('s_barrier')
            else:
                a('s_waitcnt vmcnt(%d) lgkmcnt(0)' % vm.cnt(t))
            if t == 7:
                a('s_barrier')
            if t < 8:
                fill = [(lambda q=q: a('ds_read_b128 %s, v10 offset:%d' % (vr(W1(t + 1, q), 4), (t + 1) * 5120 + q * 1024))) for q in range(5)]
                if t + XD < 9:
                    fill += [lambda: xl(t + XD, 0), None, None, lambda: xl(t + XD, 1)]
                if first and t in (0, 3, 6):
                    ex = st_ops(t // 3 + 1) if t < 6 else q_ops()
                    tag = ('st', t // 3 + 1)
                    fill = [(lambda op=op: (op(), vm.issue(tag))) for op in ex] + fill
                seq = [(a_, q, t) for q in [5, 0, 1, 2, 3, 4] for a_ in (0, 1)]
                if t == 7:
                    seq = [(1, q, 7) for q in wr]
            else:
                seq = [(1, q, 8) for q in wr] + [(0, q, 7) for q in wr] + [(0, q, 8) for q in wr]
                fill = [None] * 8
                for q in wr[:5]:
                    fill += [(lambda q=q: a('ds_write_b128 v14, %s offset:%d' % (vr(A1(1, q), 4), q * 1024))), None]
            for k, (a_, q, tt) in enumerate(seq):
                A_ = vr(XF(a_, tt), 4) if q == 5 else vr(W1(tt, q), 4)
                c = '0' if tt == 0 else vr(A1(a_, q), 4)
                a('v_mfma_f32_16x16x32_bf16 %s, %s, %s, %s' % (vr(A1(a_, q), 4), A_, vr(XF(a_, tt), 4), c))
                if k < len(fill) and fill[k] is not None:
                    fill[k]()
                if k == len(seq) - 1:
                    for f in fill[len(seq):]:
                        if f:
                            f()
        a('ds_write_b128 v14, %s offset:%d' % (vr(A1(1, 3), 4), 3 * 1024))
        if first:
            a('s_waitcnt vmcnt(0)')
    if L0P:
        a('s_cmp_eq_u32 s10, 0')
        a('s_cbranch_scc1 P1_first')
    pass1(False)
    if L0P:
        a('s_branch P1_done')
        a.label('P1_first')
        pass1(True)
        a.label('P1_done')
    mstamp(a, True)
    CSK, CSQ = 192, 248
    a('s_waitcnt lgkmcnt(0)')
    a('s_barrier')
    for q in wr:
        a('ds_read_b128 %s, v15 offset:%d' % (vr(A1(1, q), 4), q * 1024))
    R = lambda q, r: A1(0, q) + r
    a('s_waitcnt lgkmcnt(4)')
    for r in (0, 2):
        a('v_pk_add_f32 %s, %s, %s' % (p2(R(5, r)), p2(R(5, r)), p2(A1(1, 5) + r)))
        a('v_pk_add_f32 %s, %s, %s' % (p2(R(4, r)), p2(R(4, r)), p2(A1(1, 4) + r)))
    a('v_cndmask_b32 v16, %s, %s, s[58:59]' % (vr(R(5, 0)), vr(R(5, 1))))
    a('v_cndmask_b32 v16, v16, %s, s[60:61]' % vr(R(5, 2)))
    a('v_cndmask_b32 v16, v16, %s, s[62:63]' % vr(R(5, 3)))
    a('ds_bpermute_b32 v18, v24, %s' % vr(R(4, 0)))
    a('ds_bpermute_b32 v17, v11, v16')
    for q in range(5):
        a('ds_read_b128 %s, v25 offset:%d' % (vr(CSK + 4 * q, 4), (2 + q) * 64))
    for u in range(2):
        a('ds_read_b128 %s, v25 offset:%d' % (vr(CSQ + 4 * u, 4), u * 64))
    a('s_waitcnt lgkmcnt(9)')
    for q in range(4):
        for r in (0, 2):
            a('v_pk_add_f32 %s, %s, %s' % (p2(R(q, r)), p2(R(q, r)), p2(A1(1, q) + r)))
    a('s_mov_b32 s56, 0x%x' % f32bits(1.0 / 576))
    a('s_waitcnt lgkmcnt(7)')
    TA, TBK, TBQ = 152, 172, 192
    a('v_add_u32 v20, %d, v5' % L_T)
    a('s_cmp_eq_u32 s14, 1')
    a('s_cbranch_scc1 q_noT')
    for m in range(5):
        a('ds_read_b128 %s, v20 offset:%d' % (vr(TA + 4 * m, 4), m * 1024))
    for m in range(5):
        a('ds_read_b128 %s, v20 offset:%d' % (vr(TBK + 4 * m, 4), (10 + m) * 1024))
    a.label('q_noT')
    a('v_mul_f32 v18, s56, v18')
    a('v_mul_f32 v17, s56, v17')
    a('v_fma_f32 v17, -v18, v18, v17')
    a('v_max_f32 v17, 0, v17')
    bf16r(a, 18, 19)
    bf16r(a, 17, 19)
    a('v_add_f32 v17, 0x%x, v17' % f32bits(1e-5))
    bf16r(a, 17, 19)
    a('v_sqrt_f32 v17, v17')
    a('s_nop 0')
    bf16r(a, 17, 19)
    a('v_rcp_f32 v16, v17')
    a('s_waitcnt lgkmcnt(0)')
    mstamp(a)
    PK_, PV_, PT_, PQ_ = 220, 224, 228, 104

    def lnfix(r0, cs, dst):
        for r in (0, 2):
            a('v_pk_fma_f32 %s, %s, v[18:19], %s op_sel_hi:[1,0,1] neg_lo:[0,1,0] neg_hi:[0,1,0]' % (p2(r0 + r), p2(cs + r), p2(r0 + r)))
        for r in (0, 2):
            a('v_pk_mul_f32 %s, %s, v[16:17] op_sel_hi:[1,0]' % (p2(r0 + r), p2(r0 + r)))
        a('v_cvt_pk_bf16_f32 %s, %s, %s' % (vr(dst), vr(r0), vr(r0 + 1)))
        a('v_cvt_pk_bf16_f32 %s, %s, %s' % (vr(dst + 1), vr(r0 + 2), vr(r0 + 3)))
    ln1 = lambda q: lnfix(R(q, 0), CSK + 4 * q, PK_ + 2 * q)
    W2s = list(range(104, 152, 4)) + list(range(172, 192, 4)) + [212]
    A2 = lambda a_, u: 232 + (a_ * 2 + u) * 4

    def pass2(x2base, mid):
        rd = lambda t: [a('ds_read_b128 %s, v7 offset:%d' % (vr(W2s[2 * t + u], 4), t * 2048 + u * 1024)) for u in range(2)]
        for t in range(4):
            rd(t)
        a('s_lshl_b32 s56, s26, 11')
        a('s_add_u32 s56, s56, %d' % x2base)
        a('v_add_u32 v14, s56, v5')
        a('s_xor_b32 s56, s26, 4')
        a('s_lshl_b32 s56, s56, 11')
        a('s_add_u32 s56, s56, %d' % x2base)
        a('v_add_u32 v15, s56, v5')
        for t in range(9):
            if t + 4 < 9:
                rd(t + 4)
            a('s_waitcnt lgkmcnt(%d)' % (2 * min(4, 8 - t)))
            for (a_, u) in ((1, 0), (1, 1), (0, 0), (0, 1)):
                a('v_mfma_f32_16x16x32_bf16 %s, %s, %s, %s' % (vr(A2(a_, u), 4), vr(W2s[2 * t + u], 4), vr(XF(a_, t), 4), '0' if t == 0 else vr(A2(a_, u), 4)))
            if t == MID and mid:
                mid()
        a('s_nop 5')
        for u in range(2):
            a('ds_write_b128 v14, %s offset:%d' % (vr(A2(1, u), 4), u * 1024))
        a('s_waitcnt lgkmcnt(0)')
        a('s_barrier')
        for u in range(2):
            a('ds_read_b128 %s, v15 offset:%d' % (vr(A2(1, u), 4), u * 1024))
        a('s_waitcnt lgkmcnt(0)')
        for r in range(0, 8, 2):
            a('v_pk_add_f32 %s, %s, %s' % (p2(A2(0, 0) + r), p2(A2(0, 0) + r), p2(A2(1, 0) + r)))
        for u in range(2):
            lnfix(A2(0, u), CSQ + 4 * u, PQ_ + 2 * u)
    a('s_mov_b32 s16, 0')
    a('s_cmp_eq_u32 s14, 1')
    a('s_cbranch_scc1 B_epi')
    DK, DQ = 128, 108
    a('s_barrier')
    for q in (0, 1, 4):
        ln1(q)
    a('v_mov_b32 %s, 0' % vr(PT_ + 2))
    a('v_mov_b32 %s, 0' % vr(PT_ + 3))
    a('v_and_b32 v22, 127, v6')
    a('v_mul_u32_u24 v22, %d, v22' % PK_STRIDE)
    a('v_add_u32 v22, %d, v22' % L_PK)
    a('v_lshl_add_u32 v21, v4, 3, v22')
    for m in range(5):
        a('v_mfma_f32_16x16x32_bf16 %s, %s, %s, 0' % (vr(DK + 4 * m, 4), vr(TA + 4 * m, 4), vr(PK_, 4)))
    for m in range(5):
        a('v_mfma_f32_16x16x32_bf16 %s, %s, %s, %s' % (vr(DK + 4 * m, 4), vr(TBK + 4 * m, 4), vr(PT_, 4), vr(DK + 4 * m, 4)))
    ln1(2)
    ln1(3)
    for m in range(5):
        a('ds_read_b128 %s, v20 offset:%d' % (vr(TBQ + 4 * m, 4), (5 + m) * 1024))
    a('ds_write_b64 v21, %s offset:128' % vr(PV_, 2))
    a('ds_write_b64 v21, %s offset:160' % vr(PV_ + 2, 2))
    a('v_mov_b32 v12, %s' % vr(PT_))
    a('v_mov_b32 v13, 0x3f80')
    a('v_mov_b32 v14, %s' % vr(PT_ + 1))
    a('v_mov_b32 v15, 0x3f80')
    a('s_mov_b32 exec_lo, 0')
    a('s_mov_b32 exec_hi, 0xffff')
    a('ds_write_b128 v22, v[12:15] offset:208')
    a('s_mov_b64 exec, -1')
    a('s_mov_b32 s56, 0x%x' % f32bits(LOG2E))
    wops = wo_dma_ops(a)
    sp = Sprinkle(a, wops[:6], 11)
    softmax18(sp, DK, 56, 12)
    sp.flush()
    a('v_lshl_add_u32 v21, v4, 5, v22')
    a('v_lshl_add_u32 v24, v4, 2, v22')
    a('ds_write_b128 v21, %s' % vr(DK, 4))
    a('ds_write_b128 v21, %s offset:16' % vr(DK + 4, 4))
    a('ds_write_b32 v24, %s offset:192' % vr(DK + 8))
    a('s_lshr_b32 s64, s10, 1')
    a('s_mul_i32 s64, s64, %d' % KV_SZ)
    a('s_add_u32 s64, s64, 0x%x' % KV1)
    a('s_mul_i32 s65, s25, %d' % (2 * KV_HEAD))
    a('s_add_u32 s64, s64, s65')
    a('s_lshr_b32 s65, s10, 1')
    a('s_lshl_b32 s65, s65, 4')
    a('s_add_u32 s65, s65, s25')
    a('s_lshl_b32 s65, s65, 7')
    a('s_add_u32 s65, s65, 0x%x' % F_KVC)
    a('s_waitcnt lgkmcnt(0)')
    a('s_barrier')
    mstamp(a)
    a('s_cmp_ge_u32 s26, 6')
    a('s_cbranch_scc1 A_q')
    a('s_cmp_ge_u32 s26, 3')
    a('s_cselect_b32 s57, 1, 0')
    a('s_mul_i32 s58, s57, 3')
    a('s_sub_u32 s58, s26, s58')
    a('s_lshl_b32 s59, s57, 6')
    a('s_lshl_b32 s60, s58, 5')
    a('s_add_u32 s59, s59, s60')
    a('s_lshl_b32 s60, s57, 3')
    a('s_add_u32 s61, s60, 192')
    a('s_cmp_eq_u32 s58, 2')
    a('s_cselect_b32 s59, s61, s59')
    a('s_add_u32 s60, s60, 208')
    a('s_lshl_b32 s61, s57, 5')
    a('s_add_u32 s61, s61, 128')
    a('v_lshrrev_b32 v24, 2, v3')
    a('v_lshl_add_u32 v24, v4, 2, v24')
    a('v_mul_u32_u24 v24, %d, v24' % PK_STRIDE)
    a('v_and_b32 v25, 3, v3')
    a('v_lshl_add_u32 v24, v25, 3, v24')
    a('v_add_u32 v24, %d, v24' % L_PK)
    a('v_add_u32 v25, s59, v24')
    a('v_add_u32 v26, s61, v24')
    a('v_add_u32 v27, s60, v24')
    FB, FA, FT = 104, 128, 172
    for ks in range(4):
        for hf in range(2):
            off = (32 * ks + 16 * hf) * PK_STRIDE
            a('ds_read_b64_tr_b16 %s, v25 offset:%d' % (vr(FB + 4 * ks + 2 * hf, 2), off))
            a('ds_read_b64_tr_b16 %s, v26 offset:%d' % (vr(FA + 4 * ks + 2 * hf, 2), off))
            a('ds_read_b64_tr_b16 %s, v27 offset:%d' % (vr(FT + 4 * ks + 2 * hf, 2), off))
    a('s_mul_i32 s59, s57, %d' % KV_HEAD)
    a('s_mul_i32 s60, s58, 1216')
    a('s_add_u32 s59, s59, s60')
    a('s_add_u32 s59, s59, s64')
    a('v_lshlrev_b32 v28, 2, v1')
    DM, DT = 120, 124
    at = lambda r, off: a('buffer_atomic_add_f32 %s, v28, s[%d:%d], s59 offen offset:%d' % (vr(r), SWS, SWS + 3, off))
    a('s_cmp_eq_u32 s58, 2')
    a('s_cbranch_scc1 A_kvt')
    for ks in range(4):
        a('s_waitcnt lgkmcnt(%d)' % min(14, 6 * (3 - ks)))
        a('v_mfma_f32_16x16x32_bf16 %s, %s, %s, %s' % (vr(DM, 4), vr(FA + 4 * ks, 4), vr(FB + 4 * ks, 4), '0' if ks == 0 else vr(DM, 4)))
        a('v_mfma_f32_16x16x32_bf16 %s, %s, %s, %s' % (vr(DT, 4), vr(FT + 4 * ks, 4), vr(FB + 4 * ks, 4), '0' if ks == 0 else vr(DT, 4)))
    a('s_nop 7')
    for r in range(4):
        at(DM + r, r * 256)
    a('s_mov_b64 exec, 0xffff')
    for r in range(3):
        at(DT + r, 1024 + r * 64)
    a('s_mov_b64 exec, -1')
    a('s_branch A_q')
    a.label('A_kvt')
    for ks in range(4):
        a('s_waitcnt lgkmcnt(%d)' % min(14, 6 * (3 - ks)))
        a('v_mfma_f32_16x16x32_bf16 %s, %s, %s, %s' % (vr(DM, 4), vr(FB + 4 * ks, 4), vr(FA + 4 * ks, 4), '0' if ks == 0 else vr(DM, 4)))
        a('v_mfma_f32_16x16x32_bf16 %s, %s, %s, %s' % (vr(DT, 4), vr(FB + 4 * ks, 4), vr(FT + 4 * ks, 4), '0' if ks == 0 else vr(DT, 4)))
    a('s_mov_b64 exec, 0xffff')
    a('s_nop 7')
    for r in range(4):
        at(DM + r, r * 128)
    a('s_mov_b64 exec, 7')
    for r in range(4):
        at(DT + r, r * 128 + 64)
    a('s_mov_b64 exec, -1')
    a.label('A_q')
    pass2(L_X2A, None)
    mstamp(a)
    a('s_mul_i32 s57, s27, 4608')
    a('s_add_u32 s57, s57, %d' % L_PHI)
    for m in range(5):
        a('v_mfma_f32_16x16x32_bf16 %s, %s, %s, 0' % (vr(DQ + 4 * m, 4), vr(TA + 4 * m, 4), vr(PQ_, 4)))
    for m in range(5):
        a('v_mfma_f32_16x16x32_bf16 %s, %s, %s, %s' % (vr(DQ + 4 * m, 4), vr(TBQ + 4 * m, 4), vr(PT_, 4), vr(DQ + 4 * m, 4)))
    a('v_lshrrev_b32 v24, 1, v4')
    a('v_mul_u32_u24 v24, 2304, v24')
    a('v_add_u32 v24, s57, v24')
    a('v_and_b32 v25, 1, v4')
    a('v_and_b32 v26, 31, v6')
    a('v_lshl_add_u32 v22, v25, 10, v24')
    a('v_lshl_add_u32 v22, v26, 4, v22')
    a('v_lshl_add_u32 v23, v26, 3, v24')
    a('v_lshl_add_u32 v23, v25, 2, v23')
    a('s_mov_b32 s56, 0x%x' % f32bits(LOG2E))
    a('s_waitcnt vmcnt(0)')
    warrive(a, 's65')
    sp = Sprinkle(a, wops[6:], 11)
    softmax18(sp, DQ, 56, 12)
    sp.flush()
    a('ds_write_b128 v22, %s' % vr(DQ, 4))
    a('ds_write_b128 v22, %s offset:512' % vr(DQ + 4, 4))
    a('ds_write_b32 v23, %s offset:2048' % vr(DQ + 8))
    a('s_mov_b32 s56, s65')
    mstamp(a)
    a('s_waitcnt lgkmcnt(0)')
    a('s_barrier')
    mstamp(a)
    PH, ST, OC = 32, 48, 72
    a('s_lshl_b32 s57, s27, 1')
    a('s_add_u32 s57, s57, s28')
    a('s_mul_i32 s57, s57, 2304')
    a('s_add_u32 s57, s57, %d' % L_PHI)
    a('v_add_u32 v20, s57, v5')
    a('v_and_b32 v3, 31, v1')
    a('v_lshlrev_b32 v21, 3, v3')
    a('v_add_u32 v21, s57, v21')
    for r in range(8, 12):
        a('v_mov_b32 v%d, 0' % (PH + r))
    a('ds_read_b128 %s, v20' % vr(PH, 4))
    a('ds_read_b128 %s, v20 offset:1024' % vr(PH + 4, 4))
    a('s_mov_b32 exec_hi, 0')
    a('ds_read_b64 %s, v21 offset:2048' % vr(PH + 8, 2))
    a('s_mov_b32 exec_hi, -1')
    a('s_mul_i32 s58, s26, 3072')
    a('s_add_u32 s58, s58, %d' % L_KV)
    a('v_min_u32 v8, 18, v3')
    a('v_and_b32 v9, 3, v8')
    a('v_lshlrev_b32 v9, 8, v9')
    a('v_lshrrev_b32 v4, 2, v8')
    a('v_lshl_add_u32 v9, v4, 6, v9')
    a('v_lshlrev_b32 v4, 6, v8')
    a('v_cmp_gt_u32 vcc, 16, v8')
    a('v_lshlrev_b32 v8, 2, v8')
    a('v_add_u32 v8, s58, v8')
    a('v_cndmask_b32 v9, v4, v9, vcc')
    a('v_lshrrev_b32 v4, 5, v1')
    a('v_lshl_add_u32 v9, v4, 5, v9')
    a('v_add_u32 v9, s58, v9')
    a('s_lshl_b32 s59, s24, 2')
    a('s_add_u32 s59, s59, s27')
    a('s_lshl_b32 s60, s25, 1')
    a('s_add_u32 s60, s60, s28')
    oimg_addr(a, 59, 60, 66, 67, 61, 62)
    a('s_mul_i32 s57, s28, %d' % KV_HEAD)
    a('s_add_u32 s57, s57, s64')
    a('s_mov_b32 m0, s58')
    a('s_waitcnt vmcnt(0)')
    poll(a, ['s56'], 128)
    a('s_barrier')
    mstamp(a)
    for p in range(3):
        if p == 2:
            a('s_mov_b32 exec_hi, 0xffffff')
        ws_dma(a, 's57', p * 1024, 'sc1')
    a('s_mov_b32 exec_hi, -1')
    a('s_waitcnt vmcnt(0)')
    a('ds_read_b128 %s, v9' % vr(ST, 4))
    a('ds_read_b128 %s, v9 offset:16' % vr(ST + 4, 4))
    a('ds_read_b128 %s, v9 offset:1216' % vr(ST + 8, 4))
    a('ds_read_b128 %s, v9 offset:1232' % vr(ST + 12, 4))
    for ft in range(4):
        a('ds_read_b32 %s, v8 offset:%d' % (vr(ST + 16 + ft), 2432 + ft * 128))
    a('s_waitcnt lgkmcnt(0)')
    for n in range(10):
        a('v_cvt_pk_bf16_f32 %s, %s, %s' % (vr(ST + n), vr(ST + 2 * n), vr(ST + 2 * n + 1)))
    a('v_mov_b32 %s, 0' % vr(ST + 10))
    a('v_mov_b32 %s, 0' % vr(ST + 11))
    a('s_nop 1')
    for q_ in range(3):
        a('v_mfma_f32_32x32x16_bf16 %s, %s, %s, %s' % (vr(OC, 16), vr(ST + 4 * q_, 4), vr(PH + 4 * q_, 4), '0' if q_ == 0 else vr(OC, 16)))
    a('s_nop 6')
    o_store(a, OC, 66, 67, None, 1e-6)
    wfrag_reads(a)
    mstamp(a)
    a('s_waitcnt vmcnt(0)')
    a('s_branch O_pub')
    a.label('B_epi')
    for q in range(5):
        ln1(q)
    a('s_lshr_b32 s64, s10, 1')
    a('s_lshl_b32 s64, s64, 23')
    a('s_add_u32 s64, s64, 0x%x' % REC)
    a('s_lshl_b32 s65, s25, 19')
    a('s_add_u32 s64, s64, s65')
    a('v_lshlrev_b32 v20, 4, v6')
    a('v_and_b32 v21, 1, v4')
    a('v_lshl_add_u32 v22, v21, 18, v20')
    a('v_lshrrev_b32 v23, 1, v4')
    a('v_lshl_add_u32 v22, v23, 15, v22')
    a('v_and_b32 v24, 127, v6')
    a('v_mul_u32_u24 v25, %d, v21' % IM_HEAD)
    a('v_lshl_add_u32 v25, v24, 4, v25')
    a('v_mul_u32_u24 v27, %d, v23' % IM_P)
    a('v_add_u32 v27, v27, v25')
    a('v_mul_u32_u24 v9, 5120, v21')
    a('v_lshl_add_u32 v9, v24, 4, v9')
    a('v_lshl_add_u32 v9, v23, 11, v9')
    a('v_add_u32 v9, %d, v9' % L_QP)
    a('s_add_u32 s56, s64, %d' % R_K0)
    a('s_add_u32 s57, s64, %d' % R_V0)
    for b0 in (PK_, PV_):
        a('v_permlane16_swap_b32 %s, %s' % (vr(b0), vr(b0 + 2)))
        a('v_permlane16_swap_b32 %s, %s' % (vr(b0 + 1), vr(b0 + 3)))
    ws_st(a, PK_, 4, 'v22', 's56')
    ws_st(a, PV_, 4, 'v22', 's57')
    a('v_cmp_eq_u32 vcc, 2, v4')
    a('v_mov_b32 v28, 0x3f80')
    a('v_mov_b32 v12, %s' % vr(PT_))
    a('v_cndmask_b32 v13, 0, v28, vcc')
    a('v_mov_b32 v14, %s' % vr(PT_ + 1))
    a('v_mov_b32 v15, v13')
    a('v_lshlrev_b32 v28, 3, v6')
    a('v_add_u32 v28, %d, v28' % R_KT)
    a('v_add_u32 v20, %d, v20' % R_VT)
    a('v_cndmask_b32 v28, v28, v20, vcc')
    a('v_lshlrev_b32 v20, 3, v24')
    a('v_add_u32 v21, %d, v20' % (L_QP + 4096))
    a('v_add_u32 v20, %d, v20' % (I_KT + 2048))
    a('v_lshlrev_b32 v23, 4, v24')
    a('v_add_u32 v23, %d, v23' % (I_VT + 4096))
    a('v_cndmask_b32 v20, v20, v23, vcc')
    a('v_cmp_eq_u32 vcc, 0, v4')
    a('s_add_u32 s57, s64, %d' % REC_HEAD)
    a('s_mov_b32 exec_lo, 0xffff0000')
    a('s_mov_b32 exec_hi, 0xffff')
    ws_st(a, 12, 2, 'v28', 's64')
    ws_st(a, 14, 2, 'v28', 's57')
    a('s_mov_b64 exec, -1')
    a('v_add_u32 v23, %d, v20' % IM_HEAD)
    a('v_cndmask_b32 v20, v20, v21, vcc')
    a('v_add_u32 v21, 5120, v21')
    a('v_cndmask_b32 v21, v23, v21, vcc')
    a('s_barrier')
    a('ds_write_b128 v27, %s offset:%d' % (vr(PK_, 4), I_K0 + 4096))
    a('ds_write_b128 v27, %s offset:%d' % (vr(PV_, 4), I_V0 + 4096))
    a('s_mov_b32 exec_hi, 0xffff')
    a('ds_write_b64 v20, v[12:13]')
    a('ds_write_b64 v21, v[14:15]')
    a('s_mov_b32 exec_hi, -1')
    a('s_lshr_b32 s48, s10, 1')
    a('s_lshl_b32 s48, s48, 4')
    a('s_add_u32 s48, s48, s25')
    a('s_lshl_b32 s48, s48, 7')
    a('s_add_u32 s48, s48, 0x%x' % F_KVF)
    a('s_lshl_b32 s49, s24, 2')
    a('s_add_u32 s49, s49, s48')
    a('s_sub_u32 s50, s49, 4')
    a('s_sub_u32 s51, s49, 8')
    a('s_max_u32 s51, s51, s48')
    a('s_lshl_b32 s56, s24, 7')
    a('s_sub_u32 s56, s56, 256')
    a('s_lshl_b32 s54, s27, 6')
    a('s_add_u32 s56, s56, s54')
    a('s_lshl_b32 s58, s28, 18')
    a('s_add_u32 s58, s58, s64')
    a('s_lshl_b32 s52, s56, 4')
    a('s_add_u32 s52, s52, s58')
    a('s_lshl_b32 s53, s56, 3')
    a('s_add_u32 s53, s53, s58')
    a('s_add_u32 s53, s53, %d' % R_KT)
    a('s_cmp_lt_i32 s56, 0')
    a('s_cselect_b32 s52, 0x40000000, s52')
    a('s_cselect_b32 s53, 0x40000000, s53')
    a('s_mul_i32 s65, s28, %d' % IM_HEAD)
    a('s_lshl_b32 s54, s27, 10')
    a('s_add_u32 s54, s54, s65')
    a('s_mov_b32 s3, s65')
    a('s_mov_b32 s30, s64')
    mstamp(a)

    def kvf_arrive():
        a('s_waitcnt vmcnt(0)')
        warrive(a, 's49')
    a('s_waitcnt lgkmcnt(0)')
    pass2(L_X2B, kvf_arrive)
    a('s_nop 0')
    a('v_permlane16_swap_b32 %s, %s' % (vr(PQ_), vr(PQ_ + 2)))
    a('v_permlane16_swap_b32 %s, %s' % (vr(PQ_ + 1), vr(PQ_ + 3)))
    a('ds_write_b128 v9, %s' % vr(PQ_, 4))
    mstamp(a)
    Q1, Q2 = 12, 16
    S = lambda t: 64 + 16 * t
    OA = 208
    KB = [224, 232, 240]
    MK, MB = 56, 36
    a('v_and_b32 v3, 31, v1')
    a('v_lshrrev_b32 v4, 5, v1')
    a('s_lshl_b32 s27, s27, 5')
    a('v_add_u32 v9, s27, v3')
    a('v_lshlrev_b32 v10, 4, v9')
    a('v_add_u32 v21, s65, v10')
    a('s_mul_i32 s29, s28, 5120')
    a('s_add_u32 s29, s29, %d' % L_QP)
    a('v_lshl_add_u32 v10, v4, 11, v10')
    a('v_add_u32 v10, s29, v10')
    a('v_lshlrev_b32 v20, 3, v9')
    a('v_add_u32 v8, s29, v20')
    a('v_add_u32 v20, s65, v20')
    for r in range(4):
        a('v_mov_b32 v%d, 0' % (Q2 + r))
    a('v_mul_u32_u24 v9, %d, v4' % IM_P)
    a('v_add_u32 v21, v21, v9')
    a('v_add_u32 v20, %d, v20' % I_KT)
    for b in KB:
        for r in range(6, 8):
            a('v_mov_b32 v%d, 0' % (b + r))
    a('v_bfe_u32 v22, v1, 2, 2')
    a('v_lshl_add_u32 v22, v4, 2, v22')
    a('v_add_u32 v22, s27, v22')
    a('v_lshlrev_b32 v22, 4, v22')
    a('v_bfe_u32 v23, v1, 1, 1')
    a('v_mul_u32_u24 v23, %d, v23' % IM_P)
    a('v_and_b32 v25, 1, v1')
    a('v_lshl_add_u32 v23, v25, 3, v23')
    a('v_and_b32 v25, 16, v1')
    a('v_cmp_eq_u32 vcc, 0, v25')
    a('v_mov_b32 v25, %d' % (I_VT - I_V0))
    a('s_add_u32 s65, s65, %d' % I_V0)
    a('v_cndmask_b32 v23, v25, v23, vcc')
    a('v_add3_u32 v22, v22, v23, s65')
    a('s_lshr_b32 s27, s27, 5')
    a('s_lshl_b32 s40, s24, 2')
    a('s_add_u32 s40, s40, s27')
    a('s_lshl_b32 s41, s25, 1')
    a('s_add_u32 s41, s41, s28')
    oimg_addr(a, 40, 41, 44, 45, 42, 43)
    a('s_sub_u32 s42, 8, s40')
    a('s_max_i32 s42, s42, 0')
    a('v_lshlrev_b32 v11, 2, v4')
    a('v_sub_u32 v11, v3, v11')
    for n in range(16):
        a('v_cmp_gt_i32 s[%d:%d], %d, v11' % (MK + 2 * n, MK + 2 * n + 1, 8 * (n >> 2) + (n & 3)))
    a('v_mov_b32 v26, 0xffff')
    a('v_mov_b32 v27, 0xffff0000')
    for n in range(8):
        a('v_cndmask_b32 v%d, 0, v26, s[%d:%d]' % (MB + n, MK + 4 * n, MK + 4 * n + 1))
        a('v_cndmask_b32 v25, 0, v27, s[%d:%d]' % (MK + 4 * n + 2, MK + 4 * n + 3))
        a('v_or_b32 v%d, v%d, v25' % (MB + n, MB + n))
    a('v_mov_b32 v24, 0xf149f2ca')
    a('s_mov_b32 s46, 0x%x' % f32bits(LOG2E * 18 ** -0.5))
    mstamp(a)
    poll(a, ['s50', 's51'], 8, 's_cmp_eq_u32 s24, 0')
    a('s_waitcnt lgkmcnt(0)')
    a('s_barrier')
    mstamp(a)
    for (pl, lo) in ((R_K0, I_K0), (R_K1, I_K1)):
        a('s_add_u32 m0, s54, %d' % lo)
        a('s_add_u32 s55, s52, %d' % pl)
        ws_dma(a, 's55')
    a('s_lshl_b32 s55, s27, 9')
    a('s_add_u32 s55, s55, s3')
    a('s_add_u32 m0, s55, %d' % I_KT)
    a('s_mov_b32 exec_hi, 0')
    ws_dma(a, 's53')
    a('s_mov_b32 exec_hi, -1')
    for (pl, lo) in ((R_V0, I_V0), (R_V1, I_V1), (R_VT, I_VT)):
        a('s_add_u32 m0, s54, %d' % lo)
        a('s_add_u32 s55, s52, %d' % pl)
        ws_dma(a, 's55')
    a('ds_read_b128 %s, v10' % vr(Q1, 4))
    a('s_mov_b32 exec_hi, 0')
    a('ds_read_b64 %s, v8 offset:4096' % vr(Q2, 2))
    a('s_mov_b32 exec_hi, -1')
    a('s_waitcnt vmcnt(0) lgkmcnt(0)')
    a('s_barrier')
    mstamp(a)

    def kread(t):
        b = KB[t % 3]
        a('ds_read_b128 %s, v21 offset:%d' % (vr(b, 4), t * 512))
        a('ds_read_b64 %s, v20 offset:%d' % (vr(b + 4, 2), t * 256))

    def tfix(t):
        a('s_cmp_le_u32 s42, %d' % t)
        a('s_cbranch_scc1 attn_ok%d' % t)
        for n in range(16):
            a('v_mov_b32 %s, v24' % vr(S(t) + n))
        a.label('attn_ok%d' % t)

    def tmax(t, half):
        if t < 1:
            return
        for n in range(8 * half, 8 * half + 8, 2):
            m = 25 + ((n >> 1) & 1)
            if t == 1 and n < 4:
                a('v_max_f32 v%d, %s, %s' % (m, vr(S(t) + n), vr(S(t) + n + 1)))
            else:
                a('v_max3_f32 v%d, v%d, %s, %s' % (m, m, vr(S(t) + n), vr(S(t) + n + 1)))
    kread(0)
    kread(1)
    for t in range(9):
        if t + 2 < 9:
            kread(t + 2)
            a('s_waitcnt lgkmcnt(4)')
        elif t + 1 < 9:
            a('s_waitcnt lgkmcnt(2)')
        else:
            a('s_waitcnt lgkmcnt(0)')
        b = KB[t % 3]
        a('v_mfma_f32_32x32x16_bf16 %s, %s, %s, 0' % (vr(S(t), 16), vr(b, 4), vr(Q1, 4)))
        if t >= 3:
            tfix(t - 3)
            tmax(t - 3, 0)
        a('v_mfma_f32_32x32x16_bf16 %s, %s, %s, %s' % (vr(S(t), 16), vr(b + 4, 4), vr(Q2, 4), vr(S(t), 16)))
        if t >= 3:
            tmax(t - 3, 1)
    for t in (6, 7):
        tfix(t)
        tmax(t, 0)
        tmax(t, 1)
    VB = [224, 232, 240, 248]
    seq = [1, 2, 3, 4, 5, 6, 7, 0, 8]

    def vread(k):
        t = seq[k]
        b = VB[k % 4]
        for ks in range(2):
            for hf in range(2):
                a('ds_read_b64_tr_b16 %s, v22 offset:%d' % (vr(b + 4 * ks + 2 * hf, 2), (32 * t + 16 * ks + 8 * hf) * 16))
    vread(0)
    vread(1)
    vread(2)
    for n in range(16):
        a('v_cndmask_b32 %s, %s, %s, s[%d:%d]' % (vr(S(0) + n), vr(S(8) + n), vr(S(0) + n), MK + 2 * n, MK + 2 * n + 1))
    for n in range(0, 16, 2):
        m = 25 + ((n >> 1) & 1)
        a('v_max3_f32 v%d, v%d, %s, %s' % (m, m, vr(S(0) + n), vr(S(0) + n + 1)))
    a('v_max_f32 v25, v25, v26')
    a('v_mov_b32 v26, v25')
    a('s_nop 1')
    a('v_permlane32_swap_b32 v25, v26')
    a('s_nop 0')
    a('v_max_f32 v25, v25, v26')
    a('v_mul_f32 v26, s46, v25')
    pf = lambda t, m: a('v_pk_fma_f32 %s, %s, s[46:47], v[26:27] op_sel_hi:[1,0,0] neg_lo:[0,0,1] neg_hi:[0,0,1]' % (p2(S(t) + 2 * m), p2(S(t) + 2 * m)))
    cv = lambda t, m: a('v_cvt_pk_bf16_f32 %s, %s, %s' % (vr(S(t) + m), vr(S(t) + 2 * m), vr(S(t) + 2 * m + 1)))
    for m in range(8):
        pf(seq[0], m)

    def pv(k, half):
        t = seq[k]
        b = VB[k % 4]
        c = '0' if (k == 0 and half == 0) else vr(OA, 16)
        a('v_mfma_f32_32x32x16_bf16 %s, %s, %s, %s' % (vr(OA, 16), vr(b + 4 * half, 4), vr(S(t) + 4 * half, 4), c))

    def split(n):
        a('v_bfi_b32 %s, v%d, 0, %s' % (vr(S(8) + n), MB + n, vr(S(0) + n)))
        a('v_and_b32 %s, v%d, %s' % (vr(S(0) + n), MB + n, vr(S(0) + n)))
    wops = wo_dma_ops(a)
    pfb = wq_pf_ops(a, PFN) if LOCAL else []
    for k in range(8):
        t = seq[k]
        for m in range(8):
            if m in (2, 5) and wops:
                wops.pop(0)()
            if m == 7 and pfb and k < 7:
                for _ in range(-(-PFN // 7)):
                    if pfb:
                        pfb.pop(0)()
            if k == 7 and m == 0 and O_B:
                a('s_waitcnt vmcnt(0)')
                a('s_barrier')
            a('v_exp_f32 %s, %s' % (vr(S(t) + 2 * m), vr(S(t) + 2 * m)))
            if k < 7:
                pf(seq[k + 1], m)
            elif m >= 2:
                split(m - 2)
            if m == 1 and k >= 1:
                pv(k - 1, 1)
                if k + 2 < 9:
                    vread(k + 2)
            if m == 6:
                a('s_waitcnt lgkmcnt(%d)' % (4 * min(8 - k, 2)))
                pv(k, 0)
            a('v_exp_f32 %s, %s' % (vr(S(t) + 2 * m + 1), vr(S(t) + 2 * m + 1)))
            if m >= 1:
                cv(t, m - 1)
        a('s_nop 0')
        cv(t, 7)
    split(6)
    split(7)
    a('s_waitcnt lgkmcnt(0)')
    pv(8, 0)
    pv(7, 1)
    pv(8, 1)
    a('s_mov_b32 s66, s44')
    a('s_mov_b32 s67, s45')
    a('s_nop 4')
    o_store(a, OA, 66, 67, None, 0)
    if O_B:
        wfrag_reads(a)
    mstamp(a)
    a('s_waitcnt vmcnt(0)')
    a.label('O_pub')
    a('s_lshl_b32 s56, s10, 4')
    a('s_add_u32 s57, s56, s24')
    a('s_lshl_b32 s57, s57, 7')
    a('s_lshr_b32 s62, s57, 1')
    a('s_add_u32 s62, s62, 0x%x' % F_OW)
    a('s_add_u32 s57, s57, 0x%x' % F_OC)
    a('s_lshr_b32 s58, s12, 1')
    a('s_add_u32 s58, s58, s56')
    a('s_lshl_b32 s58, s58, 7')
    a('s_lshr_b32 s63, s58, 1')
    a('s_add_u32 s64, s63, 0x%x' % F_XW)
    a('s_add_u32 s63, s63, 0x%x' % F_OW)
    a('s_add_u32 s59, s58, 0x%x' % F_XC)
    a('s_add_u32 s58, s58, 0x%x' % F_OC)
    a('s_waitcnt lgkmcnt(0)')
    a('s_barrier')
    mstamp(a)
    arrive2(a, 's57', 's62', 's25')
    if LOCAL:
        a('s_and_b32 s24, s2, 7')
        a('s_lshl_b32 s24, s24, 1')
        a('s_bfe_u32 s25, s2, 0x10003')
        a('s_add_u32 s24, s24, s25')
        a('s_lshr_b32 s25, s2, 4')
    if PT:
        a('s_mul_i32 s29, s24, %d' % (4 * 36864))
        a('s_mul_i32 s30, s10, 0x%x' % XS)
        a('s_add_u32 s29, s29, s30')
        a('s_add_u32 s29, s29, 0x%x' % OIMG)
        a('v_lshrrev_b32 v3, 4, v1')
        a('v_mul_u32_u24 v3, 36864, v3')
        a('s_cmp_eq_u32 s26, 1')
        a('s_cbranch_scc0 pt_o1')
        a('v_and_b32 v4, 15, v1')
        a('v_lshl_add_u32 v3, v4, 7, v3')
        a('s_lshl_b32 s30, s25, 11')
        a('s_add_u32 s29, s29, s30')
        ws_ld(a, 0, 1, 'v3', 's29')
        a.label('pt_o1')
        a('s_cmp_eq_u32 s26, 2')
        a('s_cbranch_scc0 pt_o2')
        a('v_bfe_u32 v4, v1, 1, 1')
        a('v_lshl_add_u32 v3, v4, 10, v3')
        a('v_and_b32 v4, 1, v1')
        a('v_lshl_add_u32 v3, v4, 7, v3')
        a('s_lshr_b32 s30, s25, 3')
        a('s_lshl_b32 s30, s30, 11')
        a('s_add_u32 s29, s29, s30')
        a('s_bfe_u32 s30, s25, 0x20001')
        a('s_lshl_b32 s30, s30, 8')
        a('s_add_u32 s29, s29, s30')
        a('s_add_u32 s29, s29, 32768')
        a('s_mov_b32 exec_lo, 0x000f000f')
        a('s_mov_b32 exec_hi, 0x000f000f')
        ws_ld(a, 0, 1, 'v3', 's29')
        a('s_mov_b64 exec, -1')
        a.label('pt_o2')
    a('v_and_b32 v3, 15, v1')
    a('v_lshrrev_b32 v4, 4, v1')
    a('s_lshl_b32 s29, s12, 2')
    a('s_add_u32 s29, s29, s27')
    a('v_and_b32 v6, 1, v4')
    a('v_lshrrev_b32 v7, 1, v4')
    a('v_lshl_add_u32 v6, v6, 1, v7')
    a('v_lshlrev_b32 v6, 8, v6')
    a('v_lshl_add_u32 v6, v3, 4, v6')
    a('v_lshlrev_b32 v7, 4, v3')
    a('v_lshl_add_u32 v7, v4, 3, v7')
    a('s_mul_i32 s60, s29, 18432')
    a('s_mul_i32 s61, s13, 2304')
    a('s_add_u32 s60, s60, s61')
    a('s_mul_i32 s61, s10, 0x%x' % XS)
    a('s_add_u32 s60, s60, s61')
    a('s_add_u32 s60, s60, 0x%x' % X0)
    a('s_lshl_b32 s61, s28, 10')
    a('s_add_u32 s61, s61, s60')
    ws_ld(a, 252, 4, 'v6', 's61')
    ws_ld(a, 12, 2, 'v7', 's60', 2048)
    a('s_xor_b32 s15, s14, 1')
    if LOCAL:
        a('s_add_u32 s56, s60, 0x%x' % XS)
        a('s_cmp_eq_u32 s28, 1')
        a('s_cselect_b32 s56, s56, 0x40000000')
        a('v_lshlrev_b32 v11, 7, v1')
        a('s_mov_b64 exec, 0x3ffff')
        ws_ld(a, 0, 1, 'v11', 's56', 0, 'sc1')
        a('s_mov_b64 exec, -1')
        a('s_cmp_lg_u32 s10, 0')
        a('s_cbranch_scc1 cen_e')
        a('v_lshlrev_b32 v29, 2, v1')
        a('s_mov_b64 exec, 0xff')
        a('s_mov_b32 s90, 0')
        a.label('cen')
        a('buffer_load_dword v27, v29, s[%d:%d], s9 offen sc1' % (SWS, SWS + 3))
        a('s_waitcnt vmcnt(0)')
        a('v_cmp_eq_u32 vcc, 32, v27')
        a('s_mov_b32 s91, 0')
        for q in range(8):
            a('v_readlane_b32 s56, v27, %d' % q)
            a('s_add_u32 s91, s91, s56')
        a('s_add_u32 s90, s90, 1')
        a('s_cmp_ge_u32 s90, %d' % SPIN_LIMIT)
        a('s_cbranch_scc1 cen_d')
        a('s_cmp_lt_u32 s91, 32')
        a('s_cbranch_scc1 cen')
        a.label('cen_d')
        a('s_cmp_lg_u32 vcc_lo, 0')
        a('s_cselect_b32 s17, 1, 0')
        a('s_mov_b64 exec, -1')
        a.label('cen_e')

    a('s_lshr_b32 s30, s29, 1')
    a('s_mul_i32 s30, s30, 36864')
    a('s_and_b32 s31, s29, 1')
    a('s_lshl_b32 s31, s31, 10')
    a('s_add_u32 s30, s30, s31')
    a('s_mul_i32 s31, s28, 18432')
    a('s_add_u32 s30, s30, s31')
    a('s_mul_i32 s31, s10, 0x%x' % XS)
    a('s_add_u32 s30, s30, s31')
    a('s_add_u32 s30, s30, 0x%x' % OIMG)
    a('s_mul_i32 s31, s26, 3072')
    a('s_add_u32 s31, s31, %d' % L_WX)
    a('v_add_u32 v14, s31, v5')
    a('s_xor_b32 s31, s26, 4')
    a('s_mul_i32 s31, s31, 3072')
    a('s_add_u32 s31, s31, %d' % L_WX)
    a('v_add_u32 v15, s31, v5')
    if WQ_PRE:
        wq_dma(a, 15, 0, WQ_PRE)
    a('s_waitcnt lgkmcnt(0)')
    mstamp(a)
    poll2(a, 's58', 's63')
    a('s_barrier')
    mstamp(a, True)
    vm = VM(a)

    def ol(t):
        if t and t % 2 == 0:
            a('s_add_u32 s30, s30, 4096')
        ws_ld(a, OF + 4 * t, 4, 'v5', 's30', (t & 1) * 2048)
        vm.issue(t)
    for t in range(OD):
        ol(t)
    for t in range(9):
        if t == 0:
            mstamp(a, 2)
        a('s_waitcnt vmcnt(%d)' % vm.cnt(t))
        if t in (0, 8):
            mstamp(a, 2)
        for k, q in enumerate([2, 3, 4, 0, 1]):
            a('v_mfma_f32_16x16x32_bf16 %s, %s, %s, %s' % (vr(CA + 4 * q, 4), vr(WV + 20 * t + 4 * q, 4), vr(OF + 4 * t, 4), '0' if t == 0 else vr(CA + 4 * q, 4)))
            if k == 0 and t + OD < 9:
                ol(t + OD)
    a('s_nop 0')
    for i in range(4):
        a('v_lshlrev_b32 v%d, 16, v%d' % (40 + 2 * i, 252 + i))
        a('v_and_b32 v%d, 0xffff0000, v%d' % (41 + 2 * i, 252 + i))
    for q in (2, 3, 4):
        a('ds_write_b128 v14, %s offset:%d' % (vr(CA + 4 * q, 4), (q - 2) * 1024))
    for i in range(2):
        a('v_lshlrev_b32 v%d, 16, v%d' % (48 + 2 * i, 12 + i))
        a('v_and_b32 v%d, 0xffff0000, v%d' % (49 + 2 * i, 12 + i))
    a('s_add_u32 s60, s60, 0x%x' % XS)
    a('s_add_u32 s61, s61, 0x%x' % XS)
    a('s_waitcnt lgkmcnt(0)')
    mstamp(a, 2)
    a('s_barrier')
    mstamp(a, 2)
    for q in range(3):
        a('ds_read_b128 %s, v15 offset:%d' % (vr(64 + 4 * q, 4), q * 1024))
    a('s_waitcnt lgkmcnt(1)')
    for r in range(0, 8, 2):
        a('v_pk_add_f32 %s, %s, %s' % (p2(CA + r), p2(CA + r), p2(64 + r)))
    for i in range(4):
        a('v_cvt_pk_bf16_f32 v%d, v%d, v%d' % (80 + i, CA + 2 * i, CA + 2 * i + 1))
    a('s_waitcnt lgkmcnt(0)')
    a('v_pk_add_f32 %s, %s, %s' % (p2(CA + 16), p2(CA + 16), p2(72)))
    a('v_permlane16_swap_b32 v80, v82')
    a('v_permlane16_swap_b32 v81, v83')
    a('v_pk_add_f32 %s, %s, %s' % (p2(CA + 18), p2(CA + 18), p2(74)))
    for i in range(4):
        a('v_lshlrev_b32 v%d, 16, v%d' % (84 + 2 * i, 80 + i))
        a('v_and_b32 v%d, 0xffff0000, v%d' % (85 + 2 * i, 80 + i))
    a('v_cvt_pk_bf16_f32 v92, v%d, v%d' % (CA + 16, CA + 17))
    a('v_cvt_pk_bf16_f32 v93, v%d, v%d' % (CA + 18, CA + 19))
    for i in range(0, 8, 2):
        a('v_pk_add_f32 %s, %s, %s' % (p2(40 + i), p2(40 + i), p2(84 + i)))
    for i in range(2):
        a('v_lshlrev_b32 v%d, 16, v%d' % (94 + 2 * i, 92 + i))
        a('v_and_b32 v%d, 0xffff0000, v%d' % (95 + 2 * i, 92 + i))
    for i in range(4):
        a('v_cvt_pk_bf16_f32 v%d, v%d, v%d' % (24 + i, 40 + 2 * i, 41 + 2 * i))
    a('v_pk_add_f32 v[48:49], v[48:49], v[94:95]')
    a('v_pk_add_f32 v[50:51], v[50:51], v[96:97]')
    a('v_cvt_pk_bf16_f32 v28, v48, v49')
    a('v_cvt_pk_bf16_f32 v29, v50, v51')
    a('s_cmp_eq_u32 s10, 3')
    a('s_cbranch_scc1 W_final')
    a('s_mov_b32 s16, s17')
    a('s_cmp_eq_u32 s28, 0')
    a('s_cselect_b32 s56, -1, 0')

    def emitx(fl):
        _uid[0] += 1
        ws_st(a, 24, 4, 'v6', 's61', 0, fl)
        a('s_cmp_eq_u32 s28, 0')
        a('s_cbranch_scc0 xs%d' % _uid[0])
        a('s_mov_b32 exec_hi, 0')
        ws_st(a, 28, 2, 'v7', 's60', 2048, fl)
        a('s_mov_b32 exec_hi, -1')
        a.label('xs%d' % _uid[0])
    st_mode(a, emitx)
    a.label('W_pub')
    mstamp(a, 2)
    wq_dma(a, 15, WQ_PRE, 16)
    mstamp(a, True)
    a('s_waitcnt vmcnt(%d)' % (16 - WQ_PRE))
    a('s_barrier')
    a('s_and_b32 s65, s12, 1')
    a('s_lshl_b32 s65, s65, 3')
    a('s_add_u32 s65, s65, s13')
    arrive2(a, 's59', 's64', 's65')
    if PT:
        a('s_cmp_eq_u32 s28, 1')
        a('s_cbranch_scc0 pt_x')
        a('v_lshlrev_b32 v3, 7, v1')
        a('s_mov_b64 exec, 0x3ffff')
        ws_ld(a, 0, 1, 'v3', 's60')
        a('s_mov_b64 exec, -1')
        a.label('pt_x')
    a('s_add_u32 s10, s10, 1')
    a('s_branch L_top')
    a.label('W_final')
    a('v_mul_u32_u24 v8, 1152, v3')
    a('v_lshrrev_b32 v9, 8, v6')
    a('v_lshl_add_u32 v9, v9, 4, v8')
    a('v_lshl_add_u32 v8, v4, 3, v8')
    a('s_mul_i32 s60, s29, 18432')
    a('s_mul_i32 s61, s13, 144')
    a('s_add_u32 s60, s60, s61')
    a('s_lshl_b32 s61, s28, 6')
    a('s_add_u32 s61, s61, s60')
    a('buffer_store_dwordx4 v[24:27], v9, s[%d:%d], s61 offen' % (SOUT, SOUT + 3))
    a('s_cmp_eq_u32 s28, 0')
    a('s_cbranch_scc0 W_done')
    a('s_mov_b32 exec_hi, 0')
    a('buffer_store_dwordx2 v[28:29], v8, s[%d:%d], s60 offen offset:128' % (SOUT, SOUT + 3))
    a('s_mov_b32 exec_hi, -1')
    a.label('W_done')
    if STAMP:
        mstamp(a)
        a('s_waitcnt vmcnt(0)')
        mstamp(a)
        a('s_memrealtime s[94:95]')
        a('s_waitcnt lgkmcnt(0)')
        a('v_writelane_b32 v2, s94, 63')
        a('s_lshl_b32 s56, s2, 3')
        a('s_add_u32 s56, s56, s26')
        a('s_lshl_b32 s56, s56, 8')
        a('s_add_u32 s56, s56, 0x%x' % STAMP_OFF)
        a('v_lshlrev_b32 v3, 2, v1')
        ws_st(a, 2, 1, 'v3', 's56', 0, '')
    a.label('mega_end')
    a('s_endpgm')
    return [('mega_kernel', 256, 100)]


def build():
    a = Asm()
    ks = []
    global STAMP
    st = STAMP
    STAMP = False
    ks += gen_prep(a)
    STAMP = st
    ks += gen_mega(a)
    launches = [
        ('prep_kernel', NPREP, 192, 28416),
        ('mega_kernel', 256, 512, MEGA_LDS),
    ]
    out = []
    for (k, g, b, l) in launches:
        out.append('; @launch kernel=%s grid=(%d,1,1) block=(%d,1,1) lds=%d' % (k, g, b, l))
    out.append('.amdgcn_target "amdgcn-amd-amdhsa--gfx950"')
    out.append('.text')
    out += a.L
    out.append('code_end:')
    out.append('    s_endpgm')
    out.append('.section .rodata,"a"')
    for (k, v, s) in ks:
        out.append('.p2align 6')
        out.append(kdesc(k, v, s))
    return '\n'.join(out) + '\n'


if __name__ == '__main__':
    if len(sys.argv) > 2 and sys.argv[2] == 'stamp':
        STAMP = True
    dst = sys.argv[1] if len(sys.argv) > 1 else 'cdna_kernels/%s.s' % NAME
    open(dst, 'w').write(build())
    print('wrote', dst)
```

```python
import sys, struct, os

NAME = 'interleave_layers__linear_kernel_hedgehog__sliding_block__prompt'

WQA = 0x000000
WQB = 0x200000
WQ_SZ = 16 * 18 * 7 * 1024
WOA = 0x400000
WOB = 0x500000
WO_SZ = 8 * 18 * 5 * 1024
CSA = 0x600000
CSB = 0x608000
CS_SZ = 16 * 3 * 448
TPHI = 0x610000
TPHI_SZ = 16 * 15 * 1024
KV1 = 0x660000
KV3 = 0x660000 + 32 * 2944
KV_HEAD = 2944
KV_SZ = 32 * KV_HEAD
X1 = 0x700000
X2 = 0x940000
X3 = 0xB80000
X_SZ = 2048 * 1152
PHIQ = 0xE00000
PHIQ_SZ = 64 * 32 * 2304
REC = 0x1300000
REC_HEAD = 262144
REC_SZ = 32 * REC_HEAD
R_Q0, R_K0, R_K1, R_V0, R_V1, R_VT, R_QT, R_KT = 0, 65536, 98304, 131072, 163840, 196608, 229376, 245760
X0 = 0x2400000
XS = 0x240000
FL = 0x700000
FL_SZ = 0x70000
WS_USED = 0x5000000
OIMG = 0x3000000
OIMG_SZ = 64 * 36864

LOG2E = 1.4426950408889634


def f32bits(x):
    return struct.unpack('<I', struct.pack('<f', x))[0]


class Asm:
    def __init__(self):
        self.L = []

    def __call__(self, s):
        self.L.append('    ' + s)

    def label(self, l):
        self.L.append(l + ':')

    def c(self, s):
        self.L.append('    ; ' + s)

    def raw(self, s):
        self.L.append(s)


class VM:
    def __init__(self, a):
        self.a = a
        self.n = 0
        self.tags = {}

    def issue(self, tag=None):
        self.n += 1
        if tag is not None:
            self.tags[tag] = self.n

    def cnt(self, tag):
        return self.n - self.tags[tag]

    def wait(self, tag):
        self.a('s_waitcnt vmcnt(%d)' % self.cnt(tag))


def vr(b, n=1):
    return 'v%d' % b if n == 1 else 'v[%d:%d]' % (b, b + n - 1)


def sr(b, n=1):
    return 's%d' % b if n == 1 else 's[%d:%d]' % (b, b + n - 1)


P_AX, P_AWQKV, P_AWPHI, P_AWO, P_BX, P_BWQKV, P_BWO, P_OUT, P_DBG, P_WS = 4, 6, 8, 10, 12, 14, 16, 18, 20, 22


def load_kernargs(a):
    a('s_load_dwordx16 s[4:19], s[0:1], 0')
    a('s_load_dwordx4 s[20:23], s[0:1], 64')


def srd(a, d, base, off, size):
    if off == 0:
        a('s_mov_b32 s%d, s%d' % (d, base))
        a('s_mov_b32 s%d, s%d' % (d + 1, base + 1))
    else:
        o = off if isinstance(off, str) else '0x%x' % off
        a('s_add_u32 s%d, s%d, %s' % (d, base, o))
        a('s_addc_u32 s%d, s%d, 0' % (d + 1, base + 1))
    a('s_mov_b32 s%d, 0x%x' % (d + 2, size))
    a('s_mov_b32 s%d, 0x00020000' % (d + 3))


def kdesc(name, vgpr, sgpr=96):
    acc = (vgpr + 3) // 4 * 4
    return '''.amdhsa_kernel %s
  .amdhsa_next_free_vgpr %d
  .amdhsa_next_free_sgpr %d
  .amdhsa_accum_offset %d
  .amdhsa_group_segment_fixed_size 0
  .amdhsa_kernarg_size 80
  .amdhsa_user_sgpr_count 2
  .amdhsa_user_sgpr_kernarg_segment_ptr 1
  .amdhsa_system_sgpr_workgroup_id_x 1
.end_amdhsa_kernel
''' % (name, vgpr, sgpr, acc)


def entry(a, name):
    a.raw('.p2align 8')
    a.raw('.globl %s' % name)
    a.raw('.type %s,@function' % name)
    a.label(name)


STAMP = False
STAMP_OFF = 0x4000000
_stamp_n = [0]
STAMP_REGS = list(range(72, 94))


def stamp(a):
    if not STAMP:
        return
    n = _stamp_n[0]
    a('s_memtime s[94:95]')
    a('s_waitcnt lgkmcnt(0)')
    a('s_mov_b32 s%d, s94' % STAMP_REGS[n])
    _stamp_n[0] += 1


def stamp_rt(a):
    if not STAMP:
        return
    n = _stamp_n[0]
    a('s_memrealtime s[94:95]')
    a('s_waitcnt lgkmcnt(0)')
    a('s_mov_b32 s%d, s94' % STAMP_REGS[n])
    _stamp_n[0] += 1


def stamp_flush(a, kid):
    if not STAMP:
        return
    a('s_getreg_b32 s%d, hwreg(HW_REG_XCC_ID)' % STAMP_REGS[_stamp_n[0]])
    n = _stamp_n[0] + 1
    _stamp_n[0] = 0
    a('s_mov_b64 exec, 1')
    a('s_add_u32 s68, s%d, 0x%x' % (P_WS, STAMP_OFF + kid * 0x100000))
    a('s_addc_u32 s69, s%d, 0' % (P_WS + 1))
    a('s_mov_b32 s70, 0x100000')
    a('s_mov_b32 s71, 0x00020000')
    a('s_lshl_b32 s94, s2, 4')
    a('s_add_u32 s94, s94, s26')
    a('s_lshl_b32 s94, s94, 7')
    a('v_mov_b32 v1, 0')
    for i in range(n):
        a('v_mov_b32 v2, s%d' % STAMP_REGS[i])
        a('buffer_store_dword v2, v1, s[68:71], s94 offen offset:%d' % (4 * i))
        a('s_nop 1')


def bf16r(a, v, tmp):
    a('v_cvt_pk_bf16_f32 %s, %s, %s' % (vr(tmp), vr(v), vr(v)))
    a('v_lshlrev_b32 %s, 16, %s' % (vr(v), vr(tmp)))


def magic(dv, maxv):
    for sh in range(4, 24):
        mul = (1 << sh) // dv + 1
        if all((x * mul) >> sh == x // dv for x in range(maxv + 1)):
            return mul, sh
    raise ValueError


def sdiv(a, dq, dr, src, dv, maxv):
    mul, sh = magic(dv, maxv)
    a('s_mul_i32 s%d, s%d, %d' % (dq, src, mul))
    a('s_lshr_b32 s%d, s%d, %d' % (dq, dq, sh))
    a('s_mul_i32 s%d, s%d, %d' % (dr, dq, dv))
    a('s_sub_u32 s%d, s%d, s%d' % (dr, src, dr))


NPREP = 460
CODEPF = int(os.environ.get('CODEPF', 1))


def gen_prep(a):
    entry(a, 'prep_kernel')
    a('s_cmp_ge_u32 s2, %d' % NPREP)
    a('s_cbranch_scc1 prep_end')
    load_kernargs(a)
    a('v_and_b32 v1, 63, v0')
    a('v_lshrrev_b32 v2, 6, v0')
    a('v_and_b32 v3, 7, v1')
    a('v_readfirstlane_b32 s24, v2')
    a('v_lshrrev_b32 v4, 3, v1')
    a('s_waitcnt lgkmcnt(0)')
    stamp(a)
    stamp_rt(a)
    if STAMP:
        a('s_mov_b32 s74, s72')
    if CODEPF:
        a('s_cmp_ge_u32 s2, 24')
        a('s_cbranch_scc1 prep_nocpf')
        a('s_getpc_b64 s[56:57]')
        a.label('prep_pc')
        a('s_lshr_b32 s58, s2, 3')
        a('s_mul_i32 s58, s58, 3')
        a('s_add_u32 s58, s58, s24')
        a('s_lshl_b32 s58, s58, 13')
        a('v_lshlrev_b32 v62, 7, v1')
        a('v_add_u32 v62, s58, v62')
        a('v_cmp_gt_u32 vcc, code_end-prep_pc-4, v62')
        a('s_and_saveexec_b64 s[58:59], vcc')
        a('s_cbranch_execz prep_cpf_skip')
        a('global_load_dword v63, v62, s[56:57]')
        a.label('prep_cpf_skip')
        a('s_mov_b64 exec, -1')
        a.label('prep_nocpf')
    a('s_cmp_ge_u32 s2, 332')
    a('s_cbranch_scc1 prep_x')
    a('s_cmp_ge_u32 s2, 308')
    a('s_cbranch_scc1 prep_zero')
    a('s_cmp_ge_u32 s2, 296')
    a('s_cbranch_scc1 prep_spec')
    a('s_cmp_ge_u32 s2, 216')
    a('s_cbranch_scc1 prep_phi')
    a('s_cmp_ge_u32 s2, 162')
    a('s_cbranch_scc1 prep_wo')
    a('s_cmp_ge_u32 s2, 81')
    a('s_cselect_b32 s32, s%d, s%d' % (P_BWQKV, P_AWQKV))
    a('s_cselect_b32 s33, s%d, s%d' % (P_BWQKV + 1, P_AWQKV + 1))
    a('s_cselect_b32 s25, 0x%x, 0' % (WQB - WQA))
    a('s_cselect_b32 s29, 0x%x, 0' % (CSB - CSA))
    a('s_cselect_b32 s26, 81, 0')
    a('s_add_u32 s29, s29, 0x%x' % CSA)
    a('s_mov_b32 s34, %d' % (576 * 3456))
    a('s_mov_b32 s35, 0x00020000')
    srd(a, 36, P_WS, 's25', WQ_SZ)
    srd(a, 52, P_WS, 's29', CS_SZ)
    a('s_sub_u32 s26, s2, s26')
    sdiv(a, 27, 28, 26, 3, 80)
    sdiv(a, 29, 30, 27, 9, 26)
    a('s_mul_i32 s31, s28, 3')
    a('s_add_u32 s31, s31, s24')
    for e in range(8):
        a('s_mov_b32 s%d, %d' % (40 + e, e * 3456))
    a('s_lshl_b32 s30, s30, 6')
    a('v_lshl_add_u32 v5, v3, 3, s30')
    a('s_lshl_b32 s48, s31, 3')
    a('v_add_u32 v6, s48, v4')
    a('v_mul_u32_u24 v7, %d, v6' % (8 * 3456))
    a('v_lshl_add_u32 v7, v5, 1, v7')
    a('s_mul_i32 s48, s29, 1152')
    a('v_add_u32 v7, s48, v7')
    for e in range(8):
        a('buffer_load_dwordx4 v[%d:%d], v7, s[32:35], s%d offen' % (16 + 4 * e, 19 + 4 * e, 40 + e))
    a('v_add_u32 v10, s30, v1')
    a('v_mul_u32_u24 v11, 3641, v10')
    a('v_lshrrev_b32 v11, 16, v11')
    a('v_mul_u32_u24 v12, 18, v11')
    a('v_sub_u32 v12, v10, v12')
    a('v_and_b32 v13, 1, v11')
    a('s_lshl_b32 s48, s29, 11')
    a('s_sub_u32 s48, s48, 2048')
    a('s_cmp_eq_u32 s29, 0')
    a('s_cselect_b32 s48, 92160, s48')
    a('s_mov_b32 s50, 5120')
    a('s_cselect_b32 s50, 2048, s50')
    a('s_lshl_b32 s49, s29, 6')
    a('s_add_u32 s49, s49, %d' % (4096 - 256))
    a('v_cmp_gt_u32 vcc, 16, v12')
    a('v_lshl_add_u32 v14, v13, 5, s49')
    a('v_lshl_add_u32 v13, v13, 10, s48')
    a('v_lshrrev_b32 v11, 1, v11')
    a('v_cndmask_b32 v13, v14, v13, vcc')
    a('v_mov_b32 v14, 5120')
    a('v_mov_b32 v15, s50')
    a('s_mov_b32 s50, 129024')
    a('v_cndmask_b32 v14, v14, v15, vcc')
    a('v_mul_u32_u24 v11, s50, v11')
    a('v_lshl_add_u32 v13, v12, 4, v13')
    a('v_add_u32 v13, v13, v11')
    a('s_lshl_b32 s62, s31, 1')
    a('v_mad_u32_u24 v48, v14, s62, v13')
    a('v_add_u32 v51, v48, v14')
    a('s_mov_b32 s62, 0')
    a('s_mov_b32 s63, 0')
    a('s_mov_b32 s51, 1')
    a('s_branch prep_tr')
    a.label('prep_wo')
    a('s_cmp_ge_u32 s2, 189')
    a('s_cselect_b32 s32, s%d, s%d' % (P_BWO, P_AWO))
    a('s_cselect_b32 s33, s%d, s%d' % (P_BWO + 1, P_AWO + 1))
    a('s_cselect_b32 s25, 0x%x, 0' % (WOB - WOA))
    a('s_cselect_b32 s26, 27, 0')
    a('s_add_u32 s25, s25, 0x%x' % WOA)
    a('s_add_u32 s26, s26, 162')
    a('s_mov_b32 s34, %d' % (576 * 1152))
    a('s_mov_b32 s35, 0x00020000')
    srd(a, 36, P_WS, 's25', WO_SZ)
    srd(a, 52, P_WS, CSA, CS_SZ)
    a('s_sub_u32 s26, s2, s26')
    sdiv(a, 27, 28, 26, 3, 26)
    a('s_mul_i32 s31, s28, 3')
    a('s_add_u32 s31, s31, s24')
    a('s_lshl_b32 s48, s31, 3')
    a('v_add_u32 v6, s48, v4')
    a('s_cmp_eq_u32 s31, 8')
    a('s_cbranch_scc1 prep_b_tail')
    for e, o in enumerate([0, 1, 2, 3, 8, 9, 10, 11]):
        a('s_mov_b32 s%d, %d' % (40 + e, o * 1152))
    a('v_lshrrev_b32 v7, 1, v6')
    a('v_mul_u32_u24 v7, 18, v7')
    a('v_and_b32 v8, 1, v6')
    a('v_lshl_add_u32 v7, v8, 2, v7')
    a('s_branch prep_b_row')
    a.label('prep_b_tail')
    for e, o in enumerate([0, 1, 18, 19, 36, 37, 54, 55]):
        a('s_mov_b32 s%d, %d' % (40 + e, o * 1152))
    a('v_mul_u32_u24 v7, 72, v4')
    a('v_add_u32 v7, 16, v7')
    a.label('prep_b_row')
    a('v_mul_u32_u24 v7, 1152, v7')
    a('v_lshl_add_u32 v7, v3, 4, v7')
    a('s_lshl_b32 s30, s27, 7')
    a('v_add_u32 v7, s30, v7')
    for e in range(8):
        a('buffer_load_dwordx4 v[%d:%d], v7, s[32:35], s%d offen' % (16 + 4 * e, 19 + 4 * e, 40 + e))
    a('s_lshl_b32 s30, s27, 6')
    a('v_add_u32 v8, s30, v1')
    a('v_mul_u32_u24 v9, 911, v8')
    a('v_lshrrev_b32 v9, 16, v9')
    a('v_mul_u32_u24 v10, 72, v9')
    a('v_sub_u32 v8, v8, v10')
    a('s_mov_b32 s30, 92160')
    a('v_mul_u32_u24 v9, s30, v9')
    a('v_lshrrev_b32 v10, 4, v8')
    a('v_lshl_add_u32 v9, v10, 10, v9')
    a('v_and_b32 v8, 15, v8')
    a('v_lshl_add_u32 v48, v8, 4, v9')
    a('v_mov_b32 v51, v48')
    a('s_mul_i32 s62, s31, 10240')
    a('s_add_u32 s63, s62, 5120')
    a('s_mov_b32 s51, 0')
    a.label('prep_tr')
    a('s_mul_i32 s30, s24, 9216')
    a('v_mul_u32_u24 v49, 1152, v4')
    a('v_mul_u32_u24 v50, 144, v3')
    a('v_add3_u32 v49, v49, v50, s30')
    a('v_add_u32 v50, v1, v4')
    a('v_lshlrev_b32 v50, 4, v50')
    a('v_add_u32 v50, s30, v50')
    a('s_mov_b32 s30, 0x05040100')
    a('s_mov_b32 s31, 0x07060302')
    a('s_mov_b32 s26, 0x3f803f80')
    a('s_waitcnt vmcnt(0)')
    stamp(a)
    for c in range(8):
        p, o = c >> 1, c & 1
        ob = 64 + 4 * c
        for q in range(4):
            a('v_perm_b32 v%d, v%d, v%d, s%d' % (ob + q, 16 + 4 * (2 * q + 1) + p, 16 + 4 * (2 * q) + p, 30 + o))
        a('ds_write_b128 v49, v[%d:%d] offset:%d' % (ob, ob + 3, 16 * c))
    a('s_waitcnt lgkmcnt(0)')
    for kg in range(8):
        a('ds_read_b128 v[%d:%d], v50 offset:%d' % (16 + 4 * kg, 19 + 4 * kg, kg * 1152))
    for kg in range(8):
        a('s_waitcnt lgkmcnt(%d)' % (7 - kg))
        a('buffer_store_dwordx4 v[%d:%d], v%d, s[36:39], s%d offen offset:%d' % (16 + 4 * kg, 19 + 4 * kg, 48 if kg < 4 else 51, 62 + (kg >> 2), (kg & 3) * 256))
    a('s_cmp_eq_u32 s51, 0')
    a('s_cbranch_scc1 prep_end')
    for n in range(32):
        a('v_dot2_f32_bf16 v%d, v%d, s26, %s' % (52 + (n & 3), 16 + n, '0' if n < 4 else 'v%d' % (52 + (n & 3))))
    a('v_lshlrev_b32 v10, 2, v0')
    a('s_nop 1')
    a('v_add_f32 v52, v52, v53')
    a('v_add_f32 v54, v54, v55')
    a('v_add_f32 v52, v52, v54')
    a('ds_write_b32 v10, v52 offset:27648')
    a('s_waitcnt lgkmcnt(0)')
    a('s_barrier')
    a('s_cmp_lg_u32 s24, 0')
    a('s_cbranch_scc1 prep_end')
    for i in range(3):
        a('ds_read_b32 v%d, v10 offset:%d' % (16 + i, 27648 + i * 256))
    a('s_mul_i32 s30, s29, 9')
    a('s_sub_u32 s30, s27, s30')
    a('s_lshl_b32 s30, s30, 6')
    a('s_lshl_b32 s48, s29, 9')
    a('s_lshl_b32 s49, s29, 6')
    a('s_add_u32 s49, s49, %d' % (96 * 16 - 256))
    a('s_mov_b32 s50, %d' % (3 * 448 * 4))
    a('v_add_u32 v10, s30, v1')
    a('s_mul_i32 s30, s28, %d' % (448 * 4))
    a('v_mov_b32 v8, s30')
    a('v_mul_u32_u24 v11, 3641, v10')
    a('v_lshrrev_b32 v11, 16, v11')
    a('v_mul_u32_u24 v12, 18, v11')
    a('v_sub_u32 v12, v10, v12')
    a('v_and_b32 v13, 1, v11')
    a('v_cmp_gt_u32 vcc, 16, v12')
    a('v_lshl_add_u32 v14, v13, 5, s49')
    a('v_lshl_add_u32 v13, v13, 8, s48')
    a('v_lshrrev_b32 v11, 1, v11')
    a('v_cndmask_b32 v13, v14, v13, vcc')
    a('v_mul_u32_u24 v11, s50, v11')
    a('v_lshl_add_u32 v13, v12, 4, v13')
    a('v_add3_u32 v13, v13, v11, v8')
    a('v_lshrrev_b32 v13, 2, v13')
    a('s_waitcnt lgkmcnt(0)')
    a('v_add_f32 v16, v16, v17')
    a('v_add_f32 v16, v16, v18')
    a('buffer_store_dword v16, v13, s[52:55], 0 offen')
    a('s_branch prep_end')
    a.label('prep_phi')
    srd(a, 32, P_AWPHI, 0, 32 * 324 * 2)
    srd(a, 36, P_WS, TPHI, TPHI_SZ)
    a('s_sub_u32 s26, s2, 216')
    sdiv(a, 27, 29, 26, 5, 79)
    a('s_mov_b32 s28, s24')
    a('v_and_b32 v2, 3, v1')
    a('v_bfe_u32 v3, v1, 2, 1')
    a('v_bfe_u32 v4, v1, 3, 1')
    a('v_lshrrev_b32 v5, 4, v1')
    a('v_lshlrev_b32 v6, 15, v3')
    a('v_lshl_or_b32 v6, v6, 16, v6')
    a('v_cmp_eq_u32 s[50:51], 0, v4')
    a('s_lshl_b32 s30, s29, 2')
    a('v_add_u32 v7, s30, v2')
    a('v_lshlrev_b32 v8, 2, v5')
    a('s_cmp_eq_u32 s28, 0')
    a('s_cbranch_scc1 prep_phi_d0')
    a('v_mov_b32 v8, 16')
    a.label('prep_phi_d0')
    a('s_lshl_b32 s30, s27, 1')
    a('v_add_u32 v9, s30, v4')
    a('v_mul_u32_u24 v9, 324, v9')
    a('v_mul_u32_u24 v8, 18, v8')
    a('v_add3_u32 v9, v9, v8, v7')
    a('v_lshlrev_b32 v9, 1, v9')
    a('v_mov_b32 v10, 0x7fff0000')
    a('v_cmp_gt_u32 vcc, 18, v7')
    a('s_nop 1')
    a('v_cndmask_b32 v9, v10, v9, vcc')
    a('s_cmp_eq_u32 s28, 0')
    a('s_cbranch_scc1 prep_phi_ld')
    a('s_sub_u32 s30, s28, 1')
    a('v_cmp_eq_u32 vcc, s30, v5')
    a('s_nop 1')
    a('v_cndmask_b32 v9, v10, v9, vcc')
    a.label('prep_phi_ld')
    for i in range(4):
        a('buffer_load_ushort v%d, v9, s[32:35], 0 offen offset:%d' % (16 + i, i * 36))
    a('s_waitcnt vmcnt(0)')
    a('v_lshl_or_b32 v16, v17, 16, v16')
    a('v_lshl_or_b32 v18, v19, 16, v18')
    a('v_xor_b32 v16, v16, v6')
    a('v_xor_b32 v18, v18, v6')
    a('v_cndmask_b32 v20, 0, v16, s[50:51]')
    a('s_cmp_eq_u32 s28, 0')
    a('s_cbranch_scc0 prep_phi_tb')
    a('v_cndmask_b32 v21, 0, v18, s[50:51]')
    a('v_cndmask_b32 v22, v16, 0, s[50:51]')
    a('v_cndmask_b32 v23, v18, 0, s[50:51]')
    a('s_branch prep_phi_st')
    a.label('prep_phi_tb')
    a('v_cndmask_b32 v21, v16, 0, s[50:51]')
    a('v_mov_b32 v22, 0')
    a('v_mov_b32 v23, 0')
    a.label('prep_phi_st')
    a('s_mul_i32 s30, s27, 15')
    a('s_mul_i32 s31, s28, 5')
    a('s_add_u32 s30, s30, s31')
    a('s_add_u32 s30, s30, s29')
    a('s_lshl_b32 s30, s30, 10')
    a('v_lshlrev_b32 v11, 4, v1')
    a('buffer_store_dwordx4 v[20:23], v11, s[36:39], s30 offen')
    a('s_branch prep_end')
    a.label('prep_spec')
    a('s_sub_u32 s26, s2, 296')
    a('s_cmp_ge_u32 s26, 6')
    a('s_cselect_b32 s25, 0x%x, 0' % (WQB - WQA))
    a('s_cselect_b32 s29, 0x%x, 0' % (CSB - CSA))
    a('s_cselect_b32 s27, 6, 0')
    a('s_add_u32 s29, s29, 0x%x' % CSA)
    srd(a, 36, P_WS, 's25', WQ_SZ)
    srd(a, 52, P_WS, 's29', CS_SZ)
    a('s_sub_u32 s26, s26, s27')
    a('s_mul_i32 s26, s26, 192')
    a('v_add_u32 v2, s26, v0')
    a('v_lshrrev_b32 v3, 2, v2')
    a('v_mul_u32_u24 v4, 3641, v3')
    a('v_lshrrev_b32 v4, 16, v4')
    a('v_mul_u32_u24 v6, 18, v4')
    a('v_sub_u32 v6, v3, v6')
    a('s_mov_b32 s28, 129024')
    a('v_mul_u32_u24 v4, s28, v4')
    a('v_mul_u32_u24 v6, 5120, v6')
    a('v_add_u32 v4, v4, v6')
    a('v_and_b32 v5, 3, v2')
    a('v_lshl_add_u32 v4, v5, 8, v4')
    a('v_add_u32 v4, %d, v4' % (4096 + 192))
    for i in range(4):
        a('v_mov_b32 v%d, 0x3f803f80' % (8 + i))
        a('v_mov_b32 v%d, 0' % (12 + i))
    a('buffer_store_dwordx4 v[8:11], v4, s[36:39], 0 offen')
    for i in range(1, 4):
        a('buffer_store_dwordx4 v[12:15], v4, s[36:39], 0 offen offset:%d' % (16 * i))
    a('v_mul_u32_u24 v6, 448, v2')
    a('v_add_u32 v6, 432, v6')
    a('buffer_store_dwordx4 v[12:15], v6, s[52:55], 0 offen')
    a('s_branch prep_end')
    a.label('prep_zero')
    srd(a, 36, P_WS, KV1, 2 * KV_SZ)
    a('s_sub_u32 s27, s2, 308')
    a('s_mul_i32 s27, s27, 9216')
    a('v_lshlrev_b32 v2, 4, v0')
    a('v_add_u32 v2, s27, v2')
    for i in range(4):
        a('v_mov_b32 v%d, 0' % (4 + i))
    for k in range(3):
        a('s_mov_b32 s28, %d' % (k * 3072))
        a('buffer_store_dwordx4 v[4:7], v2, s[36:39], s28 offen')
    srd(a, 36, P_WS, FL, FL_SZ)
    a('s_sub_u32 s27, s2, 308')
    a('s_mul_i32 s27, s27, %d' % (7 * 3072))
    a('v_lshlrev_b32 v2, 4, v0')
    for k in range(7):
        a('buffer_store_dwordx4 v[4:7], v2, s[36:39], s27 offen')
        a('s_add_u32 s27, s27, 3072')
    a('s_branch prep_end')
    a.label('prep_x')
    srd(a, 32, P_AX, 0, X_SZ)
    srd(a, 36, P_WS, X0, X_SZ)
    a('s_sub_u32 s26, s2, 332')
    a('s_and_b32 s27, s26, 3')
    a('s_lshl_b32 s27, s27, 5')
    a('s_lshr_b32 s26, s26, 2')
    a('s_add_u32 s26, s26, s27')
    a('v_lshrrev_b32 v2, 2, v1')
    a('v_and_b32 v3, 3, v1')
    a('v_mul_u32_u24 v4, 1152, v2')
    a('v_lshl_add_u32 v4, v3, 4, v4')
    a('s_mul_i32 s27, s26, 18432')
    a('s_mul_i32 s28, s24, 384')
    a('s_add_u32 s28, s28, s27')
    for t in range(6):
        a('buffer_load_dwordx4 v[%d:%d], v4, s[32:35], s28 offen offset:%d' % (16 + 4 * t, 19 + 4 * t, t * 64))
    a('v_lshlrev_b32 v5, 4, v2')
    a('v_lshl_add_u32 v5, v3, 8, v5')
    a('s_mul_i32 s28, s24, 6144')
    a('v_add_u32 v5, s28, v5')
    a('v_lshlrev_b32 v6, 4, v1')
    a('v_add_u32 v7, s28, v6')
    a('s_add_u32 s28, s28, s27')
    a('s_add_u32 s29, s28, 3072')
    for t in range(6):
        a('s_waitcnt vmcnt(%d)' % (5 - t))
        a('ds_write_b128 v5, v[%d:%d] offset:%d' % (16 + 4 * t, 19 + 4 * t, t * 1024))
    a('s_waitcnt lgkmcnt(0)')
    for t in range(6):
        a('ds_read_b128 v[%d:%d], v7 offset:%d' % (40 + 4 * t, 43 + 4 * t, t * 1024))
    for t in range(6):
        a('s_waitcnt lgkmcnt(%d)' % (5 - t))
        a('buffer_store_dwordx4 v[%d:%d], v6, s[36:39], s%d offen offset:%d' % (40 + 4 * t, 43 + 4 * t, 28 + t // 3, (t % 3) * 1024))
    a.label('prep_end')
    if STAMP:
        a('s_cmp_ge_u32 s2, %d' % NPREP)
        a('s_cbranch_scc1 prep_end2')
        a('s_mov_b64 exec, -1')
        stamp(a)
        a('s_waitcnt vmcnt(0)')
        stamp(a)
        stamp_rt(a)
        a('s_mov_b32 s26, s24')
        a('s_lshr_b32 s3, s2, 8')
        a('s_lshl_b32 s3, s3, 2')
        a('s_add_u32 s26, s26, s3')
        a('s_and_b32 s2, s2, 255')
        stamp_flush(a, 5)
        a.label('prep_end2')
    a('s_endpgm')
    return [('prep_kernel', 96, 96)]


XF0 = 32
ACC0 = 104
WB0 = 168
LDS_T = 127 * 1024
LDS_PK = 32 * 1024
PK_STRIDE = 224
QDEPTH = int(os.environ.get('QDEPTH', 3))
SPREAD = int(os.environ.get('SPREAD', 1))
LSLOTS = [1, 5, 9, 13]


def XF(a_, t):
    return XF0 + (a_ * 9 + t) * 4


def ACC(a_, u):
    return ACC0 + (a_ * 8 + u) * 4


def p2(r):
    return 'v[%d:%d]' % (r, r + 1)


def softmax18(a, D, sL, tmp):
    m, s_ = tmp, tmp + 2
    a('v_max3_f32 %s, %s, %s, %s' % (vr(m), vr(D), vr(D + 1), vr(D + 2)))
    a('v_max3_f32 %s, %s, %s, %s' % (vr(m + 1), vr(D + 3), vr(D + 4), vr(D + 5)))
    for i in range(6, 18, 4):
        a('v_max3_f32 %s, %s, %s, %s' % (vr(m), vr(m), vr(D + i), vr(D + i + 1)))
        a('v_max3_f32 %s, %s, %s, %s' % (vr(m + 1), vr(m + 1), vr(D + i + 2), vr(D + i + 3)))
    a('v_max_f32 %s, %s, %s' % (vr(m), vr(m), vr(m + 1)))
    a('v_mul_f32 %s, s%d, %s' % (vr(m), sL, vr(m)))
    pf = lambda k: a('v_pk_fma_f32 %s, %s, s[%d:%d], %s op_sel_hi:[1,0,0] neg_lo:[0,0,1] neg_hi:[0,0,1]' % (p2(D + 2 * k), p2(D + 2 * k), sL, sL + 1, p2(m)))
    pf(0)
    pf(1)
    for k in range(9):
        a('v_exp_f32 %s, %s' % (vr(D + 2 * k), vr(D + 2 * k)))
        if k + 2 < 9:
            pf(k + 2)
        elif k == 7:
            a('v_pk_add_f32 %s, %s, %s' % (p2(s_), p2(s_), p2(D + 10)))
        else:
            a('v_pk_add_f32 %s, %s, %s' % (p2(s_), p2(s_), p2(D + 14)))
        a('v_exp_f32 %s, %s' % (vr(D + 2 * k + 1), vr(D + 2 * k + 1)))
        if k == 2:
            a('v_pk_add_f32 %s, %s, %s' % (p2(s_), p2(D), p2(D + 2)))
        elif 3 <= k <= 5:
            a('v_pk_add_f32 %s, %s, %s' % (p2(s_), p2(s_), p2(D + 2 * k - 2)))
        elif k == 7:
            a('v_pk_add_f32 %s, %s, %s' % (p2(s_), p2(s_), p2(D + 12)))
        elif k == 8:
            a('s_nop 0')
    a('v_pk_add_f32 %s, %s, %s' % (p2(s_), p2(s_), p2(D + 16)))
    a('v_add_f32 %s, %s, %s' % (vr(s_), vr(s_), vr(s_ + 1)))
    a('v_rcp_f32 %s, %s' % (vr(s_), vr(s_)))
    a('s_nop 0')
    for k in range(9):
        a('v_pk_mul_f32 %s, %s, %s op_sel_hi:[1,0]' % (p2(D + 2 * k), p2(D + 2 * k), p2(s_)))
    for i in range(9):
        a('v_cvt_pk_bf16_f32 %s, %s, %s' % (vr(D + i), vr(D + 2 * i), vr(D + 2 * i + 1)))


SWS, SOUT = 32, 36
F_XC, F_OC, F_KVC, F_KVF = FL, FL + 0x20000, FL + 0x40000, FL + 0x50000
SPIN_LIMIT = 40000
HE = int(os.environ.get('HE', 1))
KE = int(os.environ.get('KE', 6))
L0P = int(os.environ.get('L0P', 0))
MID = int(os.environ.get('MID', 5))
PFN = int(os.environ.get('PFN', 4))
LOCAL = int(os.environ.get('LOCAL', 0))
F_OW, F_XW, F_GRP = FL + 24576, FL + 28672, FL + 32768
XD = int(os.environ.get('XD', 3))
OD = int(os.environ.get('OD', 4))
PT = int(os.environ.get('PT', 0))
O_A = int(os.environ.get('O_A', 0))
O_B = int(os.environ.get('O_B', 1))
O_P = int(os.environ.get('O_P', 0))
WQ_PRE = int(os.environ.get('WQ_PRE', 8))
WOMAP = int(os.environ.get('WOMAP', 1))
L_T, L_CS = 0, 16384
L_W = 34816
L_Q = L_W + 92160
L_PK = L_W
L_PHI = L_W
L_KV = 0
L_X2A, L_X2B = 17408, 71680
L_QP = 88064
L_WO = 70 * 1024
L_WX = 0
IM_P = 6144 + 64
I_K0, I_K1, I_V0, I_V1, I_VT = 0, IM_P, 2 * IM_P, 3 * IM_P, 4 * IM_P
I_KT = 5 * IM_P
IM_HEAD = I_KT + 3072
MEGA_LDS = 160 * 1024
_uid = [0]


FINE = int(os.environ.get('FINE', 0))


def mstamp(a, fine=False):
    if not STAMP or (FINE and not fine) or (fine == 2 and not FINE):
        return
    a('s_memtime s[94:95]')
    a('s_waitcnt lgkmcnt(0)')
    a('s_mov_b32 s92, m0')
    a('s_mov_b32 m0, s93')
    a('s_nop 1')
    a('v_writelane_b32 v2, s94, m0')
    a('s_mov_b32 m0, s92')
    a('s_add_u32 s93, s93, 1')


def ws_ld(a, dst, n, voff, soff, imm=0, extra=''):
    a('buffer_load_dword%s %s, %s, s[%d:%d], %s offen offset:%d %s' % ('' if n == 1 else 'x%d' % n, vr(dst, n), voff, SWS, SWS + 3, soff, imm, extra))


def ws_dma(a, soff, imm=0, extra=''):
    a('buffer_load_dwordx4 v5, s[%d:%d], %s offen offset:%d %s lds' % (SWS, SWS + 3, soff, imm, extra))


def ws_st(a, src, n, voff, soff, imm=0, extra='sc1'):
    a('buffer_store_dword%s %s, %s, s[%d:%d], %s offen offset:%d %s' % ('' if n == 1 else 'x%d' % n, vr(src, n), voff, SWS, SWS + 3, soff, imm, extra))


def _radd(a, soff, n):
    a('v_lshlrev_b32 v29, 7, v1')
    a('v_mov_b32 v30, 1')
    a('s_mov_b64 exec, 0x%x' % ((1 << n) - 1))
    a('buffer_atomic_add v30, v29, s[%d:%d], %s offen sc1' % (SWS, SWS + 3, soff))
    a('s_mov_b64 exec, -1')


def arrive(a, soff, n=16):
    _uid[0] += 1
    l = 'arr%d' % _uid[0]
    a('s_cmp_lg_u32 s26, 0')
    a('s_cbranch_scc1 %s' % l)
    _radd(a, soff, n)
    a.label(l)


def warrive(a, soff, n=16):
    _radd(a, soff, n)


def poll(a, soffs, target, skip_cond=None):
    _uid[0] += 1
    l = 'pl%d' % _uid[0]
    a('s_cmp_lg_u32 s26, 0')
    a('s_cbranch_scc1 %s_e' % l)
    if skip_cond:
        a(skip_cond)
        a('s_cbranch_scc1 %s_e' % l)
    a('v_mov_b32 v29, 0')
    a('s_mov_b64 exec, 1')
    a('s_mov_b32 s90, 0')
    n = len(soffs)
    ld = lambda base: [a('buffer_load_dword v%d, v29, s[%d:%d], %s offen sc1' % (base + q, SWS, SWS + 3, so)) for q, so in enumerate(soffs)]
    if O_P:
        a('s_waitcnt vmcnt(0)')
        ld(27)
        a.label(l)
        ld(0 if n == 1 else 30)
        a('s_waitcnt vmcnt(%d)' % n)
        if n == 2:
            a('v_min_u32 v27, v27, v28')
            a('s_nop 0')
        a('v_readfirstlane_b32 s91, v27')
        a('s_cmp_ge_u32 s91, %s' % target)
        a('s_cbranch_scc1 %s_d' % l)
        ld(27)
        a('s_waitcnt vmcnt(%d)' % n)
        if n == 2:
            a('v_min_u32 v30, v30, v31')
            a('s_nop 0')
        a('v_readfirstlane_b32 s91, v%d' % (0 if n == 1 else 30))
    else:
        a.label(l)
        ld(27)
        a('s_waitcnt vmcnt(0)')
        if n == 2:
            a('v_min_u32 v27, v27, v28')
            a('s_nop 0')
        a('v_readfirstlane_b32 s91, v27')
    a('s_add_u32 s90, s90, 1')
    a('s_cmp_ge_u32 s90, %d' % SPIN_LIMIT)
    a('s_cbranch_scc1 %s_d' % l)
    a('s_cmp_lt_u32 s91, %s' % target)
    a('s_cbranch_scc1 %s' % l)
    a.label('%s_d' % l)
    a('s_mov_b64 exec, -1')
    a.label('%s_e' % l)


def st_mode(a, emit):
    if not LOCAL:
        emit('sc1')
        return
    _uid[0] += 1
    l = 'sm%d' % _uid[0]
    a('s_cmp_eq_u32 s16, 1')
    a('s_cbranch_scc1 %s_l' % l)
    emit('sc1')
    a('s_branch %s_e' % l)
    a.label('%s_l' % l)
    emit('')
    a.label('%s_e' % l)


def arrive2(a, s_cnt, s_word, s_me):
    if not LOCAL:
        arrive(a, s_cnt)
        return
    _uid[0] += 1
    l = 'ar%d' % _uid[0]
    a('s_cmp_lg_u32 s26, 0')
    a('s_cbranch_scc1 %s_e' % l)
    a('v_mov_b32 v30, 1')
    a('s_mov_b64 exec, 1')
    a('s_cmp_eq_u32 s16, 1')
    a('s_cbranch_scc1 %s_l' % l)
    a('v_mov_b32 v29, 0')
    a('buffer_atomic_add v30, v29, s[%d:%d], %s offen sc1' % (SWS, SWS + 3, s_cnt))
    a('s_branch %s_x' % l)
    a.label('%s_l' % l)
    a('s_lshl_b32 s90, %s, 2' % s_me)
    a('v_mov_b32 v29, s90')
    a('buffer_store_dword v30, v29, s[%d:%d], %s offen' % (SWS, SWS + 3, s_word))
    a.label('%s_x' % l)
    a('s_mov_b64 exec, -1')
    a.label('%s_e' % l)


def poll2(a, s_cnt, s_word, skip_cond=None):
    if not LOCAL:
        poll(a, [s_cnt], 16, skip_cond)
        return
    _uid[0] += 1
    l = 'pw%d' % _uid[0]
    a('s_cmp_eq_u32 s16, 1')
    a('s_cbranch_scc1 %s_l' % l)
    poll(a, [s_cnt], 16, skip_cond)
    a('s_branch %s_e' % l)
    a.label('%s_l' % l)
    a('s_cmp_lg_u32 s26, 0')
    a('s_cbranch_scc1 %s_e' % l)
    if skip_cond:
        a(skip_cond)
        a('s_cbranch_scc1 %s_e' % l)
    a('v_lshlrev_b32 v29, 2, v1')
    a('s_mov_b64 exec, 0xffff')
    a('s_mov_b32 s90, 0')
    a.label(l)
    a('buffer_load_dword v27, v29, s[%d:%d], %s offen sc1' % (SWS, SWS + 3, s_word))
    a('s_waitcnt vmcnt(0)')
    a('v_cmp_eq_u32 vcc, 1, v27')
    a('s_add_u32 s90, s90, 1')
    a('s_cmp_ge_u32 s90, %d' % SPIN_LIMIT)
    a('s_cbranch_scc1 %s_d' % l)
    a('s_cmp_lg_u32 vcc_lo, 0xffff')
    a('s_cbranch_scc1 %s' % l)
    a.label('%s_d' % l)
    a('s_mov_b64 exec, -1')
    a.label('%s_e' % l)


def oimg_addr(a, s_rb32, s_head, s_main, s_tail, t1, t2):
    a('s_mul_i32 s%d, s10, 0x%x' % (t1, XS))
    a('s_mul_i32 s%d, s%d, 36864' % (s_tail, s_rb32))
    a('s_add_u32 s%d, s%d, s%d' % (s_tail, s_tail, t1))
    a('s_add_u32 s%d, s%d, 0x%x' % (s_tail, s_tail, OIMG))
    a('s_lshl_b32 s%d, s%d, 10' % (t1, s_head))
    a('s_and_b32 s%d, s%d, 1' % (t2, s_head))
    a('s_lshl_b32 s%d, s%d, 9' % (t2, t2))
    a('s_sub_u32 s%d, s%d, s%d' % (t1, t1, t2))
    a('s_add_u32 s%d, s%d, s%d' % (s_main, s_tail, t1))
    a('s_lshr_b32 s%d, s%d, 4' % (t1, s_head))
    a('s_lshl_b32 s%d, s%d, 11' % (t1, t1))
    a('s_add_u32 s%d, s%d, s%d' % (s_tail, s_tail, t1))
    a('s_bfe_u32 s%d, s%d, 0x20002' % (t1, s_head))
    a('s_lshl_b32 s%d, s%d, 8' % (t1, t1))
    a('s_add_u32 s%d, s%d, s%d' % (s_tail, s_tail, t1))
    a('s_and_b32 s%d, s%d, 3' % (t1, s_head))
    a('s_lshl_b32 s%d, s%d, 2' % (t1, t1))
    a('s_add_u32 s%d, s%d, s%d' % (s_tail, s_tail, t1))
    a('s_add_u32 s%d, s%d, 32768' % (s_tail, s_tail))


def o_store(a, OA, s_main, s_tail, vden, eps):
    a('v_bfe_u32 v26, v1, 4, 1')
    a('v_and_b32 v27, 15, v1')
    a('v_lshlrev_b32 v27, 4, v27')
    a('v_lshl_add_u32 v27, v26, 10, v27')
    a('v_lshrrev_b32 v26, 5, v1')
    a('v_lshl_add_u32 v28, v26, 8, v27')
    if eps:
        a('v_add_f32 v24, 0x%x, %s' % (f32bits(eps), vr(OA + 10)))
        a('v_rcp_f32 v24, v24')
    else:
        a('v_rcp_f32 v24, %s' % vr(OA + 10))
    a('s_nop 0')
    for n in range(0, 10, 2):
        a('v_pk_mul_f32 %s, %s, v[24:25] op_sel_hi:[1,0]' % (p2(OA + n), p2(OA + n)))
    for n in range(5):
        a('v_cvt_pk_bf16_f32 %s, %s, %s' % (vr(OA + n), vr(OA + 2 * n), vr(OA + 2 * n + 1)))

    def emit(fl):
        ws_st(a, OA, 4, 'v28', 's%d' % s_main, 0, fl)
        a('s_mov_b32 exec_hi, 0')
        ws_st(a, OA + 4, 1, 'v27', 's%d' % s_tail, 0, fl)
        a('s_mov_b32 exec_hi, -1')
    st_mode(a, emit)


def wq_dma(a, s_kind, lo, hi):
    a('s_lshl_b32 s31, s26, 10')
    a('s_add_u32 s31, s31, %d' % (lo * 8192))
    a('s_add_u32 m0, s31, %d' % L_W)
    a('s_mul_i32 s56, s25, 129024')
    a('s_add_u32 s31, s31, s56')
    a('s_mul_i32 s56, s%d, 0x%x' % (s_kind, WQB - WQA))
    a('s_add_u32 s31, s31, s56')
    for ii in range(lo, hi):
        if ii == 15:
            a('s_cmp_ge_u32 s26, 6')
            a('s_cselect_b32 s56, 8192, 0')
            a('s_sub_u32 m0, m0, s56')
            a('s_sub_u32 s31, s31, s56')
        ws_dma(a, 's31')
        if ii < hi - 1:
            a('s_add_u32 m0, m0, 8192')
            a('s_add_u32 s31, s31, 8192')


def wo_dma_ops(a):
    def first():
        a('s_lshl_b32 s31, s26, 10')
        a('s_add_u32 m0, s31, %d' % L_WO)
        a('s_mul_i32 s29, s13, 92160')
        a('s_add_u32 s31, s31, s29')
        a('s_mul_i32 s29, s14, 0x%x' % (WOB - WOA))
        a('s_add_u32 s31, s31, s29')
        a('s_add_u32 s31, s31, 0x%x' % WOA)
        ws_dma(a, 's31')

    def nxt():
        a('s_add_u32 m0, m0, 8192')
        a('s_add_u32 s31, s31, 8192')
        ws_dma(a, 's31')

    def last():
        a('s_cmp_lt_u32 s26, 2')
        a('s_cselect_b32 s29, 8192, 0')
        a('s_add_u32 m0, m0, s29')
        a('s_add_u32 s31, s31, s29')
        ws_dma(a, 's31')
    return [first] + [nxt] * 10 + [last]


def wq_pf_ops(a, n):
    per = 64 // n

    def first():
        a('s_lshr_b32 s4, s2, 3')
        a('s_lshl_b32 s4, s4, 3')
        a('s_add_u32 s4, s4, s26')
        a('s_lshl_b32 s4, s4, 13')
        a('s_xor_b32 s5, s14, 1')
        a('s_mul_i32 s5, s5, 0x%x' % (WQB - WQA))
        a('s_add_u32 s4, s4, s5')
        a('v_lshlrev_b32 v7, 7, v1')
        nxt0()

    def nxt0():
        a('s_mov_b64 exec, 0x%x' % ((1 << per) - 1))
        ws_ld(a, 0, 1, 'v7', 's4', 0, 'sc1')
        a('s_mov_b64 exec, -1')

    def nxt():
        a('s_add_u32 s4, s4, %d' % (per * 128))
        nxt0()
    return [first] + [nxt] * (n - 1)


class Sprinkle:
    def __init__(self, a, ops, n):
        self.a, self.ops, self.n, self.c = a, list(ops), n, 0

    def __call__(self, s_):
        self.a(s_)
        self.c += 1
        if self.c % self.n == 0 and self.ops:
            self.ops.pop(0)()

    def flush(self):
        while self.ops:
            self.ops.pop(0)()


OF, WV, CA = 36, 72, 16


def wfrag_reads(a):
    a('s_mul_i32 s31, s28, %d' % (9 * 5120))
    a('s_add_u32 s31, s31, %d' % L_WO)
    a('v_add_u32 v10, s31, v5')
    a('s_lshl_b32 s31, s28, 11')
    a('v_add_u32 v8, s31, v10')
    a('s_xor_b32 s31, s31, 2048')
    a('v_add_u32 v9, s31, v10')
    for t in range(9):
        for q in range(5):
            base, off = [('v8', 0), ('v8', 1024), ('v9', 0), ('v9', 1024), ('v10', 4096)][q]
            a('ds_read_b128 %s, %s offset:%d' % (vr(WV + 20 * t + 4 * q, 4), base, t * 5120 + off))


def gen_mega(a):
    entry(a, 'mega_kernel')
    a('s_cmp_ge_u32 s2, 256')
    a('s_cbranch_scc1 mega_end')
    a('s_load_dwordx2 s[18:19], s[0:1], 56')
    a('s_load_dwordx2 s[22:23], s[0:1], 72')
    a('s_and_b32 s24, s2, 3')
    a('s_lshl_b32 s12, s24, 3')
    a('s_lshl_b32 s24, s24, 2')
    a('s_bfe_u32 s25, s2, 0x20003')
    a('s_add_u32 s24, s24, s25')
    a('s_bfe_u32 s11, s2, 0x10002')
    a('s_lshl_b32 s13, s11, 2')
    a('s_add_u32 s13, s13, s25')
    a('s_lshl_b32 s25, s11, 3')
    a('s_lshr_b32 s26, s2, 5')
    a('s_add_u32 s25, s25, s26')
    a('s_add_u32 s12, s12, s26')
    if WOMAP:
        a('s_and_b32 s12, s2, 7')
        a('s_lshl_b32 s12, s12, 2')
        a('s_lshr_b32 s13, s2, 6')
        a('s_add_u32 s12, s12, s13')
        a('s_bfe_u32 s13, s2, 0x30003')
    a('v_lshrrev_b32 v2, 6, v0')
    a('v_and_b32 v1, 63, v0')
    a('v_readfirstlane_b32 s26, v2')
    a('v_lshlrev_b32 v5, 4, v1')
    a('v_mov_b32 v2, 0')
    a('s_mov_b32 s10, 0')
    a('s_mov_b32 s93, 0')
    a('s_and_b32 s27, s26, 3')
    a('s_lshr_b32 s28, s26, 2')
    a('s_waitcnt lgkmcnt(0)')
    srd(a, SWS, P_WS, 0, WS_USED)
    srd(a, SOUT, P_OUT, 0, X_SZ)
    a('s_mov_b32 s16, 0')
    a('s_mov_b32 s17, 0')
    a('s_and_b32 s9, s2, 7')
    a('s_lshl_b32 s9, s9, 7')
    a('s_add_u32 s9, s9, 0x%x' % F_GRP)
    if LOCAL:
        a('s_getreg_b32 s56, hwreg(HW_REG_XCC_ID)')
        a('s_and_b32 s56, s56, 7')
        a('s_lshl_b32 s56, s56, 2')
        a('s_add_u32 s56, s56, s9')
        arrive(a, 's56')
    if STAMP:
        a('s_memrealtime s[94:95]')
        a('s_memtime s[96:97]')
        a('s_waitcnt lgkmcnt(0)')
        a('v_writelane_b32 v2, s94, 62')
        a('v_writelane_b32 v2, s96, 61')

    def st_ops(stage):
        ops = []
        for r in range(4):
            def op(r=r):
                a('s_add_u32 s4, s26, %d' % (8 * r))
                a('s_min_u32 s4, s4, 29')
                a('s_cmp_ge_u32 s4, 15')
                a('s_cselect_b32 s5, 30, 0')
                a('s_add_u32 s4, s4, s5')
                a('s_add_u32 s4, s4, %d' % (15 * stage))
                a('s_lshl_b32 s4, s4, 10')
                a('s_add_u32 m0, s4, %d' % L_W)
                a('s_add_u32 s4, s4, s6')
                ws_dma(a, 's4')
            ops.append(op)
        return ops

    def q_ops():
        ops = []
        for r in range(5):
            def op(r=r):
                a('s_add_u32 s4, s26, %d' % (90 + 8 * r))
                a('s_min_u32 s4, s4, 125')
                a('s_lshl_b32 s4, s4, 10')
                a('s_add_u32 m0, s4, %d' % L_W)
                a('s_add_u32 s4, s4, s6')
                ws_dma(a, 's4')
            ops.append(op)
        return ops
    if L0P:
        a('s_mul_i32 s6, s25, 129024')
        for op in st_ops(0):
            op()
    else:
        wq_dma(a, 10, 0, 16)
        a('s_waitcnt vmcnt(0)')
        a('s_barrier')
    a.label('L_top')
    mstamp(a, True)
    a('s_and_b32 s14, s10, 1')
    a('s_lshl_b32 s31, s26, 11')
    a('s_add_u32 m0, s31, %d' % L_T)
    a('s_mul_i32 s56, s25, 15360')
    a('s_add_u32 s31, s31, s56')
    a('s_add_u32 s31, s31, 0x%x' % TPHI)
    a('s_cmp_eq_u32 s14, 1')
    a('s_cbranch_scc1 q_noTd')
    ws_dma(a, 's31')
    a('s_cmp_eq_u32 s26, 7')
    a('s_cbranch_scc1 q_noTd')
    ws_dma(a, 's31', 1024)
    a.label('q_noTd')
    a('s_mul_i32 s56, s25, 1344')
    a('s_mul_i32 s57, s14, 0x%x' % (CSB - CSA))
    a('s_add_u32 s56, s56, s57')
    a('s_add_u32 s56, s56, 0x%x' % CSA)
    for p in range(3):
        ws_ld(a, 224 + 4 * p, 4, 'v5', 's56', p * 448)
    a('v_and_b32 v3, 15, v1')
    a('v_lshrrev_b32 v4, 4, v1')
    a('s_lshl_b32 s29, s24, 7')
    a('s_lshl_b32 s30, s27, 5')
    a('s_add_u32 s29, s29, s30')
    a('s_lshl_b32 s30, s28, 4')
    a('s_add_u32 s29, s29, s30')
    a('v_add_u32 v6, s29, v3')
    a('s_lshr_b32 s30, s29, 4')
    a('s_xor_b32 s69, s30, 1')
    a('s_mul_i32 s30, s30, 18432')
    a('s_mul_i32 s69, s69, 18432')
    a('s_mul_i32 s31, s28, 9216')
    a('s_mul_i32 s56, s10, 0x%x' % XS)
    a('s_add_u32 s31, s31, s56')
    a('s_add_u32 s31, s31, 0x%x' % X0)
    a('s_add_u32 s30, s30, s31')
    a('s_add_u32 s69, s69, s31')
    a('s_mul_i32 s56, s28, 46080')
    a('s_add_u32 s56, s56, %d' % L_W)
    a('v_add_u32 v10, s56, v5')
    a('s_mul_i32 s57, s27, 6144')
    a('v_add_u32 v14, s57, v10')
    a('s_xor_b32 s56, s28, 1')
    a('s_mul_i32 s56, s56, 46080')
    a('s_add_u32 s56, s56, s57')
    a('s_add_u32 s56, s56, %d' % L_W)
    a('v_add_u32 v15, s56, v5')
    a('s_mul_i32 s56, s28, 18432')
    a('s_add_u32 s56, s56, %d' % L_Q)
    a('v_add_u32 v7, s56, v5')
    a('v_and_b32 v11, 3, v3')
    a('v_cmp_eq_u32 s[58:59], 1, v11')
    a('v_cmp_eq_u32 s[60:61], 2, v11')
    a('v_cmp_eq_u32 s[62:63], 3, v11')
    a('v_lshrrev_b32 v11, 2, v3')
    a('v_lshl_add_u32 v11, v11, 4, v3')
    a('v_lshlrev_b32 v11, 2, v11')
    a('v_lshlrev_b32 v24, 2, v3')
    a('v_add_u32 v24, 192, v24')
    a('v_lshlrev_b32 v25, 4, v4')
    a('v_add_u32 v25, %d, v25' % L_CS)
    a('v_add_u32 v26, %d, v5' % L_CS)
    a('s_lshl_b32 s56, s10, 4')
    a('s_add_u32 s56, s56, s24')
    a('s_lshl_b32 s56, s56, 4')
    a('s_add_u32 s56, s56, s25')
    a('s_lshl_b32 s56, s56, 7')
    a('s_add_u32 s56, s56, 0x%x' % (F_XC - 32768))
    a('s_waitcnt vmcnt(0)')
    for r in (0, 2):
        a('v_pk_add_f32 %s, %s, %s' % (p2(224 + r), p2(224 + r), p2(228 + r)))
    for r in (0, 2):
        a('v_pk_add_f32 %s, %s, %s' % (p2(224 + r), p2(224 + r), p2(232 + r)))
    a('s_cmp_lg_u32 s26, 1')
    a('s_cbranch_scc1 q_nocs')
    a('s_mov_b64 exec, 0xfffffff')
    a('ds_write_b128 v26, v[224:227]')
    a('v_mov_b32 v27, 33792')
    a('v_mov_b32 v28, 0')
    a('s_mov_b64 exec, 1')
    a('ds_write_b32 v27, v28')
    a('s_mov_b64 exec, -1')
    a.label('q_nocs')
    mstamp(a)
    poll(a, ['s56'], 16, 's_cmp_eq_u32 s10, 0')
    a('s_waitcnt lgkmcnt(0)')
    a('s_barrier')
    mstamp(a, True)
    A1 = lambda a_, q: 104 + (a_ * 6 + q) * 4
    W1 = lambda t, q: 152 + 20 * (t & 1) + 4 * q
    wr = [5, 4, 0, 1, 2, 3]

    def pass1(first):
        vm = VM(a)

        def xl(t, which):
            if which == 0:
                if t and t % 4 == 0:
                    a('s_add_u32 s30, s30, 4096')
                    a('s_add_u32 s69, s69, 4096')
                ws_ld(a, XF(0, t), 4, 'v5', 's30', (t & 3) * 1024)
                vm.issue()
            else:
                ws_ld(a, XF(1, t), 4, 'v5', 's69', (t & 3) * 1024)
                vm.issue(t)
        for t in range(XD):
            xl(t, 0)
            xl(t, 1)
        for q in range(5):
            a('ds_read_b128 %s, v10 offset:%d' % (vr(W1(0, q), 4), q * 1024))
        for t in range(9):
            if first and t in (2, 5):
                a('s_waitcnt vmcnt(%d) lgkmcnt(0)' % min(vm.cnt(t), vm.cnt(('st', t // 3 + 1))))
                a('s_barrier')
            else:
                a('s_waitcnt vmcnt(%d) lgkmcnt(0)' % vm.cnt(t))
            if t == 7:
                a('s_barrier')
            if t < 8:
                fill = [(lambda q=q: a('ds_read_b128 %s, v10 offset:%d' % (vr(W1(t + 1, q), 4), (t + 1) * 5120 + q * 1024))) for q in range(5)]
                if t + XD < 9:
                    fill += [lambda: xl(t + XD, 0), None, None, lambda: xl(t + XD, 1)]
                if first and t in (0, 3, 6):
                    ex = st_ops(t // 3 + 1) if t < 6 else q_ops()
                    tag = ('st', t // 3 + 1)
                    fill = [(lambda op=op: (op(), vm.issue(tag))) for op in ex] + fill
                seq = [(a_, q, t) for q in [5, 0, 1, 2, 3, 4] for a_ in (0, 1)]
                if t == 7:
                    seq = [(1, q, 7) for q in wr]
            else:
                seq = [(1, q, 8) for q in wr] + [(0, q, 7) for q in wr] + [(0, q, 8) for q in wr]
                fill = [None] * 8
                for q in wr[:5]:
                    fill += [(lambda q=q: a('ds_write_b128 v14, %s offset:%d' % (vr(A1(1, q), 4), q * 1024))), None]
            for k, (a_, q, tt) in enumerate(seq):
                A_ = vr(XF(a_, tt), 4) if q == 5 else vr(W1(tt, q), 4)
                c = '0' if tt == 0 else vr(A1(a_, q), 4)
                a('v_mfma_f32_16x16x32_bf16 %s, %s, %s, %s' % (vr(A1(a_, q), 4), A_, vr(XF(a_, tt), 4), c))
                if k < len(fill) and fill[k] is not None:
                    fill[k]()
                if k == len(seq) - 1:
                    for f in fill[len(seq):]:
                        if f:
                            f()
        a('ds_write_b128 v14, %s offset:%d' % (vr(A1(1, 3), 4), 3 * 1024))
        if first:
            a('s_waitcnt vmcnt(0)')
    if L0P:
        a('s_cmp_eq_u32 s10, 0')
        a('s_cbranch_scc1 P1_first')
    pass1(False)
    if L0P:
        a('s_branch P1_done')
        a.label('P1_first')
        pass1(True)
        a.label('P1_done')
    mstamp(a, True)
    CSK, CSQ = 192, 248
    a('s_waitcnt lgkmcnt(0)')
    a('s_barrier')
    for q in wr:
        a('ds_read_b128 %s, v15 offset:%d' % (vr(A1(1, q), 4), q * 1024))
    R = lambda q, r: A1(0, q) + r
    a('s_waitcnt lgkmcnt(4)')
    for r in (0, 2):
        a('v_pk_add_f32 %s, %s, %s' % (p2(R(5, r)), p2(R(5, r)), p2(A1(1, 5) + r)))
        a('v_pk_add_f32 %s, %s, %s' % (p2(R(4, r)), p2(R(4, r)), p2(A1(1, 4) + r)))
    a('v_cndmask_b32 v16, %s, %s, s[58:59]' % (vr(R(5, 0)), vr(R(5, 1))))
    a('v_cndmask_b32 v16, v16, %s, s[60:61]' % vr(R(5, 2)))
    a('v_cndmask_b32 v16, v16, %s, s[62:63]' % vr(R(5, 3)))
    a('ds_bpermute_b32 v18, v24, %s' % vr(R(4, 0)))
    a('ds_bpermute_b32 v17, v11, v16')
    for q in range(5):
        a('ds_read_b128 %s, v25 offset:%d' % (vr(CSK + 4 * q, 4), (2 + q) * 64))
    for u in range(2):
        a('ds_read_b128 %s, v25 offset:%d' % (vr(CSQ + 4 * u, 4), u * 64))
    a('s_waitcnt lgkmcnt(9)')
    for q in range(4):
        for r in (0, 2):
            a('v_pk_add_f32 %s, %s, %s' % (p2(R(q, r)), p2(R(q, r)), p2(A1(1, q) + r)))
    a('s_mov_b32 s56, 0x%x' % f32bits(1.0 / 576))
    a('s_waitcnt lgkmcnt(7)')
    TA, TBK, TBQ = 152, 172, 192
    a('v_add_u32 v20, %d, v5' % L_T)
    a('s_cmp_eq_u32 s14, 1')
    a('s_cbranch_scc1 q_noT')
    for m in range(5):
        a('ds_read_b128 %s, v20 offset:%d' % (vr(TA + 4 * m, 4), m * 1024))
    for m in range(5):
        a('ds_read_b128 %s, v20 offset:%d' % (vr(TBK + 4 * m, 4), (10 + m) * 1024))
    a.label('q_noT')
    a('v_mul_f32 v18, s56, v18')
    a('v_mul_f32 v17, s56, v17')
    a('v_fma_f32 v17, -v18, v18, v17')
    a('v_max_f32 v17, 0, v17')
    bf16r(a, 18, 19)
    bf16r(a, 17, 19)
    a('v_add_f32 v17, 0x%x, v17' % f32bits(1e-5))
    bf16r(a, 17, 19)
    a('v_sqrt_f32 v17, v17')
    a('s_nop 0')
    bf16r(a, 17, 19)
    a('v_rcp_f32 v16, v17')
    a('s_waitcnt lgkmcnt(0)')
    mstamp(a)
    PK_, PV_, PT_, PQ_ = 220, 224, 228, 104

    def lnfix(r0, cs, dst):
        for r in (0, 2):
            a('v_pk_fma_f32 %s, %s, v[18:19], %s op_sel_hi:[1,0,1] neg_lo:[0,1,0] neg_hi:[0,1,0]' % (p2(r0 + r), p2(cs + r), p2(r0 + r)))
        for r in (0, 2):
            a('v_pk_mul_f32 %s, %s, v[16:17] op_sel_hi:[1,0]' % (p2(r0 + r), p2(r0 + r)))
        a('v_cvt_pk_bf16_f32 %s, %s, %s' % (vr(dst), vr(r0), vr(r0 + 1)))
        a('v_cvt_pk_bf16_f32 %s, %s, %s' % (vr(dst + 1), vr(r0 + 2), vr(r0 + 3)))
    ln1 = lambda q: lnfix(R(q, 0), CSK + 4 * q, PK_ + 2 * q)
    W2s = list(range(104, 152, 4)) + list(range(172, 192, 4)) + [212]
    A2 = lambda a_, u: 232 + (a_ * 2 + u) * 4

    def pass2(x2base, mid):
        rd = lambda t: [a('ds_read_b128 %s, v7 offset:%d' % (vr(W2s[2 * t + u], 4), t * 2048 + u * 1024)) for u in range(2)]
        for t in range(4):
            rd(t)
        a('s_lshl_b32 s56, s26, 11')
        a('s_add_u32 s56, s56, %d' % x2base)
        a('v_add_u32 v14, s56, v5')
        a('s_xor_b32 s56, s26, 4')
        a('s_lshl_b32 s56, s56, 11')
        a('s_add_u32 s56, s56, %d' % x2base)
        a('v_add_u32 v15, s56, v5')
        for t in range(9):
            if t + 4 < 9:
                rd(t + 4)
            a('s_waitcnt lgkmcnt(%d)' % (2 * min(4, 8 - t)))
            for (a_, u) in ((1, 0), (1, 1), (0, 0), (0, 1)):
                a('v_mfma_f32_16x16x32_bf16 %s, %s, %s, %s' % (vr(A2(a_, u), 4), vr(W2s[2 * t + u], 4), vr(XF(a_, t), 4), '0' if t == 0 else vr(A2(a_, u), 4)))
            if t == MID and mid:
                mid()
        a('s_nop 5')
        for u in range(2):
            a('ds_write_b128 v14, %s offset:%d' % (vr(A2(1, u), 4), u * 1024))
        a('s_waitcnt lgkmcnt(0)')
        a('s_barrier')
        for u in range(2):
            a('ds_read_b128 %s, v15 offset:%d' % (vr(A2(1, u), 4), u * 1024))
        a('s_waitcnt lgkmcnt(0)')
        for r in range(0, 8, 2):
            a('v_pk_add_f32 %s, %s, %s' % (p2(A2(0, 0) + r), p2(A2(0, 0) + r), p2(A2(1, 0) + r)))
        for u in range(2):
            lnfix(A2(0, u), CSQ + 4 * u, PQ_ + 2 * u)
    a('s_mov_b32 s16, 0')
    a('s_cmp_eq_u32 s14, 1')
    a('s_cbranch_scc1 B_epi')
    DK, DQ = 128, 108
    a('s_barrier')
    for q in (0, 1, 4):
        ln1(q)
    a('v_mov_b32 %s, 0' % vr(PT_ + 2))
    a('v_mov_b32 %s, 0' % vr(PT_ + 3))
    a('v_and_b32 v22, 127, v6')
    a('v_mul_u32_u24 v22, %d, v22' % PK_STRIDE)
    a('v_add_u32 v22, %d, v22' % L_PK)
    a('v_lshl_add_u32 v21, v4, 3, v22')
    for m in range(5):
        a('v_mfma_f32_16x16x32_bf16 %s, %s, %s, 0' % (vr(DK + 4 * m, 4), vr(TA + 4 * m, 4), vr(PK_, 4)))
    for m in range(5):
        a('v_mfma_f32_16x16x32_bf16 %s, %s, %s, %s' % (vr(DK + 4 * m, 4), vr(TBK + 4 * m, 4), vr(PT_, 4), vr(DK + 4 * m, 4)))
    ln1(2)
    ln1(3)
    for m in range(5):
        a('ds_read_b128 %s, v20 offset:%d' % (vr(TBQ + 4 * m, 4), (5 + m) * 1024))
    a('ds_write_b64 v21, %s offset:128' % vr(PV_, 2))
    a('ds_write_b64 v21, %s offset:160' % vr(PV_ + 2, 2))
    a('v_mov_b32 v12, %s' % vr(PT_))
    a('v_mov_b32 v13, 0x3f80')
    a('v_mov_b32 v14, %s' % vr(PT_ + 1))
    a('v_mov_b32 v15, 0x3f80')
    a('s_mov_b32 exec_lo, 0')
    a('s_mov_b32 exec_hi, 0xffff')
    a('ds_write_b128 v22, v[12:15] offset:208')
    a('s_mov_b64 exec, -1')
    a('s_mov_b32 s56, 0x%x' % f32bits(LOG2E))
    wops = wo_dma_ops(a)
    sp = Sprinkle(a, wops[:KE], 11)
    softmax18(sp, DK, 56, 12)
    sp.flush()
    a('v_lshl_add_u32 v21, v4, 5, v22')
    a('v_lshl_add_u32 v24, v4, 2, v22')
    a('ds_write_b128 v21, %s' % vr(DK, 4))
    a('ds_write_b128 v21, %s offset:16' % vr(DK + 4, 4))
    a('ds_write_b32 v24, %s offset:192' % vr(DK + 8))
    a('s_lshr_b32 s64, s10, 1')
    a('s_mul_i32 s64, s64, %d' % KV_SZ)
    a('s_add_u32 s64, s64, 0x%x' % KV1)
    a('s_mul_i32 s65, s25, %d' % (2 * KV_HEAD))
    a('s_add_u32 s64, s64, s65')
    a('s_lshr_b32 s65, s10, 1')
    a('s_lshl_b32 s65, s65, 4')
    a('s_add_u32 s65, s65, s25')
    a('s_lshl_b32 s65, s65, 11')
    a('s_add_u32 s65, s65, 0x%x' % F_KVC)
    a('s_waitcnt lgkmcnt(0)')
    a('s_barrier')
    mstamp(a)
    a('s_cmp_ge_u32 s26, 6')
    a('s_cbranch_scc1 A_q')
    a('s_cmp_ge_u32 s26, 3')
    a('s_cselect_b32 s57, 1, 0')
    a('s_mul_i32 s58, s57, 3')
    a('s_sub_u32 s58, s26, s58')
    a('s_lshl_b32 s59, s57, 6')
    a('s_lshl_b32 s60, s58, 5')
    a('s_add_u32 s59, s59, s60')
    a('s_lshl_b32 s60, s57, 3')
    a('s_add_u32 s61, s60, 192')
    a('s_cmp_eq_u32 s58, 2')
    a('s_cselect_b32 s59, s61, s59')
    a('s_add_u32 s60, s60, 208')
    a('s_lshl_b32 s61, s57, 5')
    a('s_add_u32 s61, s61, 128')
    a('v_lshrrev_b32 v24, 2, v3')
    a('v_lshl_add_u32 v24, v4, 2, v24')
    a('v_mul_u32_u24 v24, %d, v24' % PK_STRIDE)
    a('v_and_b32 v25, 3, v3')
    a('v_lshl_add_u32 v24, v25, 3, v24')
    a('v_add_u32 v24, %d, v24' % L_PK)
    a('v_add_u32 v25, s59, v24')
    a('v_add_u32 v26, s61, v24')
    a('v_add_u32 v27, s60, v24')
    FB, FA, FT = 104, 128, 172
    for ks in range(4):
        for hf in range(2):
            off = (32 * ks + 16 * hf) * PK_STRIDE
            a('ds_read_b64_tr_b16 %s, v25 offset:%d' % (vr(FB + 4 * ks + 2 * hf, 2), off))
            a('ds_read_b64_tr_b16 %s, v26 offset:%d' % (vr(FA + 4 * ks + 2 * hf, 2), off))
            a('ds_read_b64_tr_b16 %s, v27 offset:%d' % (vr(FT + 4 * ks + 2 * hf, 2), off))
    a('s_mul_i32 s59, s57, %d' % KV_HEAD)
    a('s_mul_i32 s60, s58, 1216')
    a('s_add_u32 s59, s59, s60')
    a('s_add_u32 s59, s59, s64')
    a('v_lshlrev_b32 v28, 2, v1')
    DM, DT = 120, 124
    at = lambda r, off: a('buffer_atomic_add_f32 %s, v28, s[%d:%d], s59 offen offset:%d' % (vr(r), SWS, SWS + 3, off))
    a('s_cmp_eq_u32 s58, 2')
    a('s_cbranch_scc1 A_kvt')
    for ks in range(4):
        a('s_waitcnt lgkmcnt(%d)' % min(14, 6 * (3 - ks)))
        a('v_mfma_f32_16x16x32_bf16 %s, %s, %s, %s' % (vr(DM, 4), vr(FA + 4 * ks, 4), vr(FB + 4 * ks, 4), '0' if ks == 0 else vr(DM, 4)))
        a('v_mfma_f32_16x16x32_bf16 %s, %s, %s, %s' % (vr(DT, 4), vr(FT + 4 * ks, 4), vr(FB + 4 * ks, 4), '0' if ks == 0 else vr(DT, 4)))
    a('s_nop 7')
    for r in range(4):
        at(DM + r, r * 256)
    a('s_mov_b64 exec, 0xffff')
    for r in range(3):
        at(DT + r, 1024 + r * 64)
    a('s_mov_b64 exec, -1')
    a('s_branch A_q')
    a.label('A_kvt')
    for ks in range(4):
        a('s_waitcnt lgkmcnt(%d)' % min(14, 6 * (3 - ks)))
        a('v_mfma_f32_16x16x32_bf16 %s, %s, %s, %s' % (vr(DM, 4), vr(FB + 4 * ks, 4), vr(FA + 4 * ks, 4), '0' if ks == 0 else vr(DM, 4)))
        a('v_mfma_f32_16x16x32_bf16 %s, %s, %s, %s' % (vr(DT, 4), vr(FB + 4 * ks, 4), vr(FT + 4 * ks, 4), '0' if ks == 0 else vr(DT, 4)))
    a('s_mov_b64 exec, 0xffff')
    a('s_nop 7')
    for r in range(4):
        at(DM + r, r * 128)
    a('s_mov_b64 exec, 7')
    for r in range(4):
        at(DT + r, r * 128 + 64)
    a('s_mov_b64 exec, -1')
    a.label('A_q')
    pass2(L_X2A, None)
    mstamp(a)
    a('s_mul_i32 s57, s27, 4608')
    a('s_add_u32 s57, s57, %d' % L_PHI)
    for m in range(5):
        a('v_mfma_f32_16x16x32_bf16 %s, %s, %s, 0' % (vr(DQ + 4 * m, 4), vr(TA + 4 * m, 4), vr(PQ_, 4)))
    for m in range(5):
        a('v_mfma_f32_16x16x32_bf16 %s, %s, %s, %s' % (vr(DQ + 4 * m, 4), vr(TBQ + 4 * m, 4), vr(PT_, 4), vr(DQ + 4 * m, 4)))
    a('v_lshrrev_b32 v24, 1, v4')
    a('v_mul_u32_u24 v24, 2304, v24')
    a('v_add_u32 v24, s57, v24')
    a('v_and_b32 v25, 1, v4')
    a('v_and_b32 v26, 31, v6')
    a('v_lshl_add_u32 v22, v25, 10, v24')
    a('v_lshl_add_u32 v22, v26, 4, v22')
    a('v_lshl_add_u32 v23, v26, 3, v24')
    a('v_lshl_add_u32 v23, v25, 2, v23')
    a('s_mov_b32 s56, 0x%x' % f32bits(LOG2E))
    a('v_mov_b32 v27, 33792')
    a('v_mov_b32 v30, 1')
    a('s_waitcnt vmcnt(0)')
    a('s_mov_b64 exec, 1')
    a('ds_add_rtn_u32 v28, v27, v30')
    a('s_waitcnt lgkmcnt(0)')
    a('v_readfirstlane_b32 s57, v28')
    a('s_mov_b64 exec, -1')
    a('s_cmp_lg_u32 s57, 7')
    a('s_cbranch_scc1 A_noarr')
    warrive(a, 's65')
    a.label('A_noarr')
    sp = Sprinkle(a, wops[KE:], 66 // (12 - KE))
    softmax18(sp, DQ, 56, 12)
    sp.flush()
    a('ds_write_b128 v22, %s' % vr(DQ, 4))
    a('ds_write_b128 v22, %s offset:512' % vr(DQ + 4, 4))
    a('ds_write_b32 v23, %s offset:2048' % vr(DQ + 8))
    a('s_lshl_b32 s56, s24, 7')
    a('s_add_u32 s56, s56, s65')
    mstamp(a)
    a('s_waitcnt lgkmcnt(0)')
    a('s_barrier')
    mstamp(a)
    PH, ST, OC = 32, 48, 72
    a('s_lshl_b32 s57, s27, 1')
    a('s_add_u32 s57, s57, s28')
    a('s_mul_i32 s57, s57, 2304')
    a('s_add_u32 s57, s57, %d' % L_PHI)
    a('v_add_u32 v20, s57, v5')
    a('v_and_b32 v3, 31, v1')
    a('v_lshlrev_b32 v21, 3, v3')
    a('v_add_u32 v21, s57, v21')
    for r in range(8, 12):
        a('v_mov_b32 v%d, 0' % (PH + r))
    a('ds_read_b128 %s, v20' % vr(PH, 4))
    a('ds_read_b128 %s, v20 offset:1024' % vr(PH + 4, 4))
    a('s_mov_b32 exec_hi, 0')
    a('ds_read_b64 %s, v21 offset:2048' % vr(PH + 8, 2))
    a('s_mov_b32 exec_hi, -1')
    a('s_mul_i32 s58, s26, 3072')
    a('s_add_u32 s58, s58, %d' % L_KV)
    a('v_min_u32 v8, 18, v3')
    a('v_and_b32 v9, 3, v8')
    a('v_lshlrev_b32 v9, 8, v9')
    a('v_lshrrev_b32 v4, 2, v8')
    a('v_lshl_add_u32 v9, v4, 6, v9')
    a('v_lshlrev_b32 v4, 6, v8')
    a('v_cmp_gt_u32 vcc, 16, v8')
    a('v_lshlrev_b32 v8, 2, v8')
    a('v_add_u32 v8, s58, v8')
    a('v_cndmask_b32 v9, v4, v9, vcc')
    a('v_lshrrev_b32 v4, 5, v1')
    a('v_lshl_add_u32 v9, v4, 5, v9')
    a('v_add_u32 v9, s58, v9')
    a('s_lshl_b32 s59, s24, 2')
    a('s_add_u32 s59, s59, s27')
    a('s_lshl_b32 s60, s25, 1')
    a('s_add_u32 s60, s60, s28')
    oimg_addr(a, 59, 60, 66, 67, 61, 62)
    a('s_mul_i32 s57, s28, %d' % KV_HEAD)
    a('s_add_u32 s57, s57, s64')
    a('s_mov_b32 m0, s58')
    a('s_waitcnt vmcnt(0)')
    poll(a, ['s56'], 16)
    a('s_barrier')
    mstamp(a)
    for p in range(3):
        if p == 2:
            a('s_mov_b32 exec_hi, 0xffffff')
        ws_dma(a, 's57', p * 1024, 'sc1')
    a('s_mov_b32 exec_hi, -1')
    a('s_waitcnt vmcnt(0)')
    a('ds_read_b128 %s, v9' % vr(ST, 4))
    a('ds_read_b128 %s, v9 offset:16' % vr(ST + 4, 4))
    a('ds_read_b128 %s, v9 offset:1216' % vr(ST + 8, 4))
    a('ds_read_b128 %s, v9 offset:1232' % vr(ST + 12, 4))
    for ft in range(4):
        a('ds_read_b32 %s, v8 offset:%d' % (vr(ST + 16 + ft), 2432 + ft * 128))
    a('s_waitcnt lgkmcnt(0)')
    for n in range(10):
        a('v_cvt_pk_bf16_f32 %s, %s, %s' % (vr(ST + n), vr(ST + 2 * n), vr(ST + 2 * n + 1)))
    a('v_mov_b32 %s, 0' % vr(ST + 10))
    a('v_mov_b32 %s, 0' % vr(ST + 11))
    a('s_nop 1')
    for q_ in range(3):
        a('v_mfma_f32_32x32x16_bf16 %s, %s, %s, %s' % (vr(OC, 16), vr(ST + 4 * q_, 4), vr(PH + 4 * q_, 4), '0' if q_ == 0 else vr(OC, 16)))
    a('s_nop 6')
    o_store(a, OC, 66, 67, None, 1e-6)
    wfrag_reads(a)
    mstamp(a)
    a('s_waitcnt vmcnt(0)')
    a('s_branch O_pub')
    a.label('B_epi')
    for q in range(5):
        ln1(q)
    a('s_lshr_b32 s64, s10, 1')
    a('s_lshl_b32 s64, s64, 23')
    a('s_add_u32 s64, s64, 0x%x' % REC)
    a('s_lshl_b32 s65, s25, 19')
    a('s_add_u32 s64, s64, s65')
    a('v_lshlrev_b32 v20, 4, v6')
    a('v_and_b32 v21, 1, v4')
    a('v_lshl_add_u32 v22, v21, 18, v20')
    a('v_lshrrev_b32 v23, 1, v4')
    a('v_lshl_add_u32 v22, v23, 15, v22')
    a('v_and_b32 v24, 127, v6')
    a('v_mul_u32_u24 v25, %d, v21' % IM_HEAD)
    a('v_lshl_add_u32 v25, v24, 4, v25')
    a('v_mul_u32_u24 v27, %d, v23' % IM_P)
    a('v_add_u32 v27, v27, v25')
    a('v_mul_u32_u24 v9, 5120, v21')
    a('v_lshl_add_u32 v9, v24, 4, v9')
    a('v_lshl_add_u32 v9, v23, 11, v9')
    a('v_add_u32 v9, %d, v9' % L_QP)
    a('s_add_u32 s56, s64, %d' % R_K0)
    a('s_add_u32 s57, s64, %d' % R_V0)
    for b0 in (PK_, PV_):
        a('v_permlane16_swap_b32 %s, %s' % (vr(b0), vr(b0 + 2)))
        a('v_permlane16_swap_b32 %s, %s' % (vr(b0 + 1), vr(b0 + 3)))
    ws_st(a, PK_, 4, 'v22', 's56')
    ws_st(a, PV_, 4, 'v22', 's57')
    a('v_cmp_eq_u32 vcc, 2, v4')
    a('v_mov_b32 v28, 0x3f80')
    a('v_mov_b32 v12, %s' % vr(PT_))
    a('v_cndmask_b32 v13, 0, v28, vcc')
    a('v_mov_b32 v14, %s' % vr(PT_ + 1))
    a('v_mov_b32 v15, v13')
    a('v_lshlrev_b32 v28, 3, v6')
    a('v_add_u32 v28, %d, v28' % R_KT)
    a('v_add_u32 v20, %d, v20' % R_VT)
    a('v_cndmask_b32 v28, v28, v20, vcc')
    a('v_lshlrev_b32 v20, 3, v24')
    a('v_add_u32 v21, %d, v20' % (L_QP + 4096))
    a('v_add_u32 v20, %d, v20' % (I_KT + 2048))
    a('v_lshlrev_b32 v23, 4, v24')
    a('v_add_u32 v23, %d, v23' % (I_VT + 4096))
    a('v_cndmask_b32 v20, v20, v23, vcc')
    a('v_cmp_eq_u32 vcc, 0, v4')
    a('s_add_u32 s57, s64, %d' % REC_HEAD)
    a('s_mov_b32 exec_lo, 0xffff0000')
    a('s_mov_b32 exec_hi, 0xffff')
    ws_st(a, 12, 2, 'v28', 's64')
    ws_st(a, 14, 2, 'v28', 's57')
    a('s_mov_b64 exec, -1')
    a('v_add_u32 v23, %d, v20' % IM_HEAD)
    a('v_cndmask_b32 v20, v20, v21, vcc')
    a('v_add_u32 v21, 5120, v21')
    a('v_cndmask_b32 v21, v23, v21, vcc')
    a('s_barrier')
    a('ds_write_b128 v27, %s offset:%d' % (vr(PK_, 4), I_K0 + 4096))
    a('ds_write_b128 v27, %s offset:%d' % (vr(PV_, 4), I_V0 + 4096))
    a('s_mov_b32 exec_hi, 0xffff')
    a('ds_write_b64 v20, v[12:13]')
    a('ds_write_b64 v21, v[14:15]')
    a('s_mov_b32 exec_hi, -1')
    a('s_lshr_b32 s48, s10, 1')
    a('s_lshl_b32 s48, s48, 4')
    a('s_add_u32 s48, s48, s25')
    a('s_lshl_b32 s48, s48, 12')
    a('s_add_u32 s48, s48, 0x%x' % F_KVF)
    a('s_lshl_b32 s50, s24, 7')
    a('s_add_u32 s50, s50, s48')
    a('s_add_u32 s49, s50, 128')
    a('s_cmp_eq_u32 s24, 1')
    a('s_cselect_b32 s51, 8, 16')
    a('s_lshl_b32 s56, s24, 7')
    a('s_sub_u32 s56, s56, 256')
    a('s_lshl_b32 s54, s27, 6')
    a('s_add_u32 s56, s56, s54')
    a('s_lshl_b32 s58, s28, 18')
    a('s_add_u32 s58, s58, s64')
    a('s_lshl_b32 s52, s56, 4')
    a('s_add_u32 s52, s52, s58')
    a('s_lshl_b32 s53, s56, 3')
    a('s_add_u32 s53, s53, s58')
    a('s_add_u32 s53, s53, %d' % R_KT)
    a('s_cmp_lt_i32 s56, 0')
    a('s_cselect_b32 s52, 0x40000000, s52')
    a('s_cselect_b32 s53, 0x40000000, s53')
    a('s_mul_i32 s65, s28, %d' % IM_HEAD)
    a('s_lshl_b32 s54, s27, 10')
    a('s_add_u32 s54, s54, s65')
    a('s_mov_b32 s3, s65')
    a('s_mov_b32 s30, s64')
    mstamp(a)

    def kvf_arrive():
        a('s_waitcnt vmcnt(0)')
        warrive(a, 's49', 2)
    a('s_waitcnt lgkmcnt(0)')
    pass2(L_X2B, kvf_arrive)
    a('s_nop 0')
    a('v_permlane16_swap_b32 %s, %s' % (vr(PQ_), vr(PQ_ + 2)))
    a('v_permlane16_swap_b32 %s, %s' % (vr(PQ_ + 1), vr(PQ_ + 3)))
    a('ds_write_b128 v9, %s' % vr(PQ_, 4))
    mstamp(a)
    if not HE:
        Q1, Q2 = 12, 16
        S = lambda t: 64 + 16 * t
        OA = 208
        KB = [224, 232, 240]
        MK, MB = 56, 36
        a('v_and_b32 v3, 31, v1')
        a('v_lshrrev_b32 v4, 5, v1')
        a('s_lshl_b32 s27, s27, 5')
        a('v_add_u32 v9, s27, v3')
        a('v_lshlrev_b32 v10, 4, v9')
        a('v_add_u32 v21, s65, v10')
        a('s_mul_i32 s29, s28, 5120')
        a('s_add_u32 s29, s29, %d' % L_QP)
        a('v_lshl_add_u32 v10, v4, 11, v10')
        a('v_add_u32 v10, s29, v10')
        a('v_lshlrev_b32 v20, 3, v9')
        a('v_add_u32 v8, s29, v20')
        a('v_add_u32 v20, s65, v20')
        for r in range(4):
            a('v_mov_b32 v%d, 0' % (Q2 + r))
        a('v_mul_u32_u24 v9, %d, v4' % IM_P)
        a('v_add_u32 v21, v21, v9')
        a('v_add_u32 v20, %d, v20' % I_KT)
        for b in KB:
            for r in range(6, 8):
                a('v_mov_b32 v%d, 0' % (b + r))
        a('v_bfe_u32 v22, v1, 2, 2')
        a('v_lshl_add_u32 v22, v4, 2, v22')
        a('v_add_u32 v22, s27, v22')
        a('v_lshlrev_b32 v22, 4, v22')
        a('v_bfe_u32 v23, v1, 1, 1')
        a('v_mul_u32_u24 v23, %d, v23' % IM_P)
        a('v_and_b32 v25, 1, v1')
        a('v_lshl_add_u32 v23, v25, 3, v23')
        a('v_and_b32 v25, 16, v1')
        a('v_cmp_eq_u32 vcc, 0, v25')
        a('v_mov_b32 v25, %d' % (I_VT - I_V0))
        a('s_add_u32 s65, s65, %d' % I_V0)
        a('v_cndmask_b32 v23, v25, v23, vcc')
        a('v_add3_u32 v22, v22, v23, s65')
        a('s_lshr_b32 s27, s27, 5')
        a('s_lshl_b32 s40, s24, 2')
        a('s_add_u32 s40, s40, s27')
        a('s_lshl_b32 s41, s25, 1')
        a('s_add_u32 s41, s41, s28')
        oimg_addr(a, 40, 41, 44, 45, 42, 43)
        a('s_sub_u32 s42, 8, s40')
        a('s_max_i32 s42, s42, 0')
        a('v_lshlrev_b32 v11, 2, v4')
        a('v_sub_u32 v11, v3, v11')
        for n in range(16):
            a('v_cmp_gt_i32 s[%d:%d], %d, v11' % (MK + 2 * n, MK + 2 * n + 1, 8 * (n >> 2) + (n & 3)))
        a('v_mov_b32 v26, 0xffff')
        a('v_mov_b32 v27, 0xffff0000')
        for n in range(8):
            a('v_cndmask_b32 v%d, 0, v26, s[%d:%d]' % (MB + n, MK + 4 * n, MK + 4 * n + 1))
            a('v_cndmask_b32 v25, 0, v27, s[%d:%d]' % (MK + 4 * n + 2, MK + 4 * n + 3))
            a('v_or_b32 v%d, v%d, v25' % (MB + n, MB + n))
        a('v_mov_b32 v24, 0xf149f2ca')
        a('s_mov_b32 s46, 0x%x' % f32bits(LOG2E * 18 ** -0.5))
    mstamp(a)
    poll(a, ['s50'], 's51', 's_cmp_eq_u32 s24, 0')
    a('s_waitcnt lgkmcnt(0)')
    a('s_barrier')
    mstamp(a)
    for (pl, lo) in ((R_K0, I_K0), (R_K1, I_K1)):
        a('s_add_u32 m0, s54, %d' % lo)
        a('s_add_u32 s55, s52, %d' % pl)
        ws_dma(a, 's55')
    a('s_lshl_b32 s55, s27, 9')
    a('s_add_u32 s55, s55, s3')
    a('s_add_u32 m0, s55, %d' % I_KT)
    a('s_mov_b32 exec_hi, 0')
    ws_dma(a, 's53')
    a('s_mov_b32 exec_hi, -1')
    for (pl, lo) in ((R_V0, I_V0), (R_V1, I_V1), (R_VT, I_VT)):
        a('s_add_u32 m0, s54, %d' % lo)
        a('s_add_u32 s55, s52, %d' % pl)
        ws_dma(a, 's55')
    if HE:
        Q1, Q2 = 12, 16
        S = lambda t: 64 + 16 * t
        OA = 208
        KB = [224, 232, 240]
        MK, MB = 56, 36
        a('v_and_b32 v3, 31, v1')
        a('v_lshrrev_b32 v4, 5, v1')
        a('s_lshl_b32 s27, s27, 5')
        a('v_add_u32 v9, s27, v3')
        a('v_lshlrev_b32 v10, 4, v9')
        a('v_add_u32 v21, s65, v10')
        a('s_mul_i32 s29, s28, 5120')
        a('s_add_u32 s29, s29, %d' % L_QP)
        a('v_lshl_add_u32 v10, v4, 11, v10')
        a('v_add_u32 v10, s29, v10')
        a('v_lshlrev_b32 v20, 3, v9')
        a('v_add_u32 v8, s29, v20')
        a('v_add_u32 v20, s65, v20')
        for r in range(4):
            a('v_mov_b32 v%d, 0' % (Q2 + r))
        a('v_mul_u32_u24 v9, %d, v4' % IM_P)
        a('v_add_u32 v21, v21, v9')
        a('v_add_u32 v20, %d, v20' % I_KT)
        for b in KB:
            for r in range(6, 8):
                a('v_mov_b32 v%d, 0' % (b + r))
        a('v_bfe_u32 v22, v1, 2, 2')
        a('v_lshl_add_u32 v22, v4, 2, v22')
        a('v_add_u32 v22, s27, v22')
        a('v_lshlrev_b32 v22, 4, v22')
        a('v_bfe_u32 v23, v1, 1, 1')
        a('v_mul_u32_u24 v23, %d, v23' % IM_P)
        a('v_and_b32 v25, 1, v1')
        a('v_lshl_add_u32 v23, v25, 3, v23')
        a('v_and_b32 v25, 16, v1')
        a('v_cmp_eq_u32 vcc, 0, v25')
        a('v_mov_b32 v25, %d' % (I_VT - I_V0))
        a('s_add_u32 s65, s65, %d' % I_V0)
        a('v_cndmask_b32 v23, v25, v23, vcc')
        a('v_add3_u32 v22, v22, v23, s65')
        a('s_lshr_b32 s27, s27, 5')
        a('s_lshl_b32 s40, s24, 2')
        a('s_add_u32 s40, s40, s27')
        a('s_lshl_b32 s41, s25, 1')
        a('s_add_u32 s41, s41, s28')
        oimg_addr(a, 40, 41, 44, 45, 42, 43)
        a('s_sub_u32 s42, 8, s40')
        a('s_max_i32 s42, s42, 0')
        a('v_lshlrev_b32 v11, 2, v4')
        a('v_sub_u32 v11, v3, v11')
        for n in range(16):
            a('v_cmp_gt_i32 s[%d:%d], %d, v11' % (MK + 2 * n, MK + 2 * n + 1, 8 * (n >> 2) + (n & 3)))
        a('v_mov_b32 v26, 0xffff')
        a('v_mov_b32 v27, 0xffff0000')
        for n in range(8):
            a('v_cndmask_b32 v%d, 0, v26, s[%d:%d]' % (MB + n, MK + 4 * n, MK + 4 * n + 1))
            a('v_cndmask_b32 v25, 0, v27, s[%d:%d]' % (MK + 4 * n + 2, MK + 4 * n + 3))
            a('v_or_b32 v%d, v%d, v25' % (MB + n, MB + n))
        a('v_mov_b32 v24, 0xf149f2ca')
        a('s_mov_b32 s46, 0x%x' % f32bits(LOG2E * 18 ** -0.5))
    a('ds_read_b128 %s, v10' % vr(Q1, 4))
    a('s_mov_b32 exec_hi, 0')
    a('ds_read_b64 %s, v8 offset:4096' % vr(Q2, 2))
    a('s_mov_b32 exec_hi, -1')
    a('s_waitcnt vmcnt(0) lgkmcnt(0)')
    a('s_barrier')
    mstamp(a)

    def kread(t):
        b = KB[t % 3]
        a('ds_read_b128 %s, v21 offset:%d' % (vr(b, 4), t * 512))
        a('ds_read_b64 %s, v20 offset:%d' % (vr(b + 4, 2), t * 256))

    def tfix(t):
        a('s_cmp_le_u32 s42, %d' % t)
        a('s_cbranch_scc1 attn_ok%d' % t)
        for n in range(16):
            a('v_mov_b32 %s, v24' % vr(S(t) + n))
        a.label('attn_ok%d' % t)

    def tmax(t, half):
        if t < 1:
            return
        for n in range(8 * half, 8 * half + 8, 2):
            m = 25 + ((n >> 1) & 1)
            if t == 1 and n < 4:
                a('v_max_f32 v%d, %s, %s' % (m, vr(S(t) + n), vr(S(t) + n + 1)))
            else:
                a('v_max3_f32 v%d, v%d, %s, %s' % (m, m, vr(S(t) + n), vr(S(t) + n + 1)))
    kread(0)
    kread(1)
    for t in range(9):
        if t + 2 < 9:
            kread(t + 2)
            a('s_waitcnt lgkmcnt(4)')
        elif t + 1 < 9:
            a('s_waitcnt lgkmcnt(2)')
        else:
            a('s_waitcnt lgkmcnt(0)')
        b = KB[t % 3]
        a('v_mfma_f32_32x32x16_bf16 %s, %s, %s, 0' % (vr(S(t), 16), vr(b, 4), vr(Q1, 4)))
        if t >= 3:
            tfix(t - 3)
            tmax(t - 3, 0)
        a('v_mfma_f32_32x32x16_bf16 %s, %s, %s, %s' % (vr(S(t), 16), vr(b + 4, 4), vr(Q2, 4), vr(S(t), 16)))
        if t >= 3:
            tmax(t - 3, 1)
    for t in (6, 7):
        tfix(t)
        tmax(t, 0)
        tmax(t, 1)
    VB = [224, 232, 240, 248]
    seq = [1, 2, 3, 4, 5, 6, 7, 0, 8]

    def vread(k):
        t = seq[k]
        b = VB[k % 4]
        for ks in range(2):
            for hf in range(2):
                a('ds_read_b64_tr_b16 %s, v22 offset:%d' % (vr(b + 4 * ks + 2 * hf, 2), (32 * t + 16 * ks + 8 * hf) * 16))
    vread(0)
    vread(1)
    vread(2)
    for n in range(16):
        a('v_cndmask_b32 %s, %s, %s, s[%d:%d]' % (vr(S(0) + n), vr(S(8) + n), vr(S(0) + n), MK + 2 * n, MK + 2 * n + 1))
    for n in range(0, 16, 2):
        m = 25 + ((n >> 1) & 1)
        a('v_max3_f32 v%d, v%d, %s, %s' % (m, m, vr(S(0) + n), vr(S(0) + n + 1)))
    a('v_max_f32 v25, v25, v26')
    a('v_mov_b32 v26, v25')
    a('s_nop 1')
    a('v_permlane32_swap_b32 v25, v26')
    a('s_nop 0')
    a('v_max_f32 v25, v25, v26')
    a('v_mul_f32 v26, s46, v25')
    pf = lambda t, m: a('v_pk_fma_f32 %s, %s, s[46:47], v[26:27] op_sel_hi:[1,0,0] neg_lo:[0,0,1] neg_hi:[0,0,1]' % (p2(S(t) + 2 * m), p2(S(t) + 2 * m)))
    cv = lambda t, m: a('v_cvt_pk_bf16_f32 %s, %s, %s' % (vr(S(t) + m), vr(S(t) + 2 * m), vr(S(t) + 2 * m + 1)))
    for m in range(8):
        pf(seq[0], m)

    def pv(k, half):
        t = seq[k]
        b = VB[k % 4]
        c = '0' if (k == 0 and half == 0) else vr(OA, 16)
        a('v_mfma_f32_32x32x16_bf16 %s, %s, %s, %s' % (vr(OA, 16), vr(b + 4 * half, 4), vr(S(t) + 4 * half, 4), c))

    def split(n):
        a('v_bfi_b32 %s, v%d, 0, %s' % (vr(S(8) + n), MB + n, vr(S(0) + n)))
        a('v_and_b32 %s, v%d, %s' % (vr(S(0) + n), MB + n, vr(S(0) + n)))
    wops = wo_dma_ops(a)
    pfb = wq_pf_ops(a, PFN) if LOCAL else []
    for k in range(8):
        t = seq[k]
        for m in range(8):
            if m in (2, 5) and wops:
                wops.pop(0)()
            if m == 7 and pfb and k < 7:
                for _ in range(-(-PFN // 7)):
                    if pfb:
                        pfb.pop(0)()
            if k == 7 and m == 0 and O_B:
                a('s_waitcnt vmcnt(0)')
                a('s_barrier')
            a('v_exp_f32 %s, %s' % (vr(S(t) + 2 * m), vr(S(t) + 2 * m)))
            if k < 7:
                pf(seq[k + 1], m)
            elif m >= 2:
                split(m - 2)
            if m == 1 and k >= 1:
                pv(k - 1, 1)
                if k + 2 < 9:
                    vread(k + 2)
            if m == 6:
                a('s_waitcnt lgkmcnt(%d)' % (4 * min(8 - k, 2)))
                pv(k, 0)
            a('v_exp_f32 %s, %s' % (vr(S(t) + 2 * m + 1), vr(S(t) + 2 * m + 1)))
            if m >= 1:
                cv(t, m - 1)
        a('s_nop 0')
        cv(t, 7)
    split(6)
    split(7)
    a('s_waitcnt lgkmcnt(0)')
    pv(8, 0)
    pv(7, 1)
    pv(8, 1)
    a('s_mov_b32 s66, s44')
    a('s_mov_b32 s67, s45')
    a('s_nop 4')
    o_store(a, OA, 66, 67, None, 0)
    if O_B:
        wfrag_reads(a)
    mstamp(a)
    a('s_waitcnt vmcnt(0)')
    a.label('O_pub')
    a('s_lshl_b32 s56, s10, 4')
    a('s_add_u32 s57, s56, s24')
    a('s_lshl_b32 s57, s57, 11')
    a('s_add_u32 s57, s57, 0x%x' % F_OC)
    a('s_lshr_b32 s58, s12, 1')
    a('s_add_u32 s58, s58, s56')
    a('s_lshl_b32 s58, s58, 11')
    a('s_add_u32 s59, s58, 0x%x' % F_XC)
    a('s_and_b32 s56, s12, 1')
    a('s_lshl_b32 s56, s56, 3')
    a('s_add_u32 s56, s56, s13')
    a('s_lshl_b32 s56, s56, 7')
    a('s_add_u32 s58, s58, s56')
    a('s_add_u32 s58, s58, 0x%x' % F_OC)
    a('s_waitcnt lgkmcnt(0)')
    a('s_barrier')
    mstamp(a)
    arrive2(a, 's57', 's62', 's25')
    if LOCAL:
        a('s_and_b32 s24, s2, 7')
        a('s_lshl_b32 s24, s24, 1')
        a('s_bfe_u32 s25, s2, 0x10003')
        a('s_add_u32 s24, s24, s25')
        a('s_lshr_b32 s25, s2, 4')
    if PT:
        a('s_mul_i32 s29, s24, %d' % (4 * 36864))
        a('s_mul_i32 s30, s10, 0x%x' % XS)
        a('s_add_u32 s29, s29, s30')
        a('s_add_u32 s29, s29, 0x%x' % OIMG)
        a('v_lshrrev_b32 v3, 4, v1')
        a('v_mul_u32_u24 v3, 36864, v3')
        a('s_cmp_eq_u32 s26, 1')
        a('s_cbranch_scc0 pt_o1')
        a('v_and_b32 v4, 15, v1')
        a('v_lshl_add_u32 v3, v4, 7, v3')
        a('s_lshl_b32 s30, s25, 11')
        a('s_add_u32 s29, s29, s30')
        ws_ld(a, 0, 1, 'v3', 's29')
        a.label('pt_o1')
        a('s_cmp_eq_u32 s26, 2')
        a('s_cbranch_scc0 pt_o2')
        a('v_bfe_u32 v4, v1, 1, 1')
        a('v_lshl_add_u32 v3, v4, 10, v3')
        a('v_and_b32 v4, 1, v1')
        a('v_lshl_add_u32 v3, v4, 7, v3')
        a('s_lshr_b32 s30, s25, 3')
        a('s_lshl_b32 s30, s30, 11')
        a('s_add_u32 s29, s29, s30')
        a('s_bfe_u32 s30, s25, 0x20001')
        a('s_lshl_b32 s30, s30, 8')
        a('s_add_u32 s29, s29, s30')
        a('s_add_u32 s29, s29, 32768')
        a('s_mov_b32 exec_lo, 0x000f000f')
        a('s_mov_b32 exec_hi, 0x000f000f')
        ws_ld(a, 0, 1, 'v3', 's29')
        a('s_mov_b64 exec, -1')
        a.label('pt_o2')
    a('v_and_b32 v3, 15, v1')
    a('v_lshrrev_b32 v4, 4, v1')
    a('s_lshl_b32 s29, s12, 2')
    a('s_add_u32 s29, s29, s27')
    a('v_and_b32 v6, 1, v4')
    a('v_lshrrev_b32 v7, 1, v4')
    a('v_lshl_add_u32 v6, v6, 1, v7')
    a('v_lshlrev_b32 v6, 8, v6')
    a('v_lshl_add_u32 v6, v3, 4, v6')
    a('v_lshlrev_b32 v7, 4, v3')
    a('v_lshl_add_u32 v7, v4, 3, v7')
    a('s_mul_i32 s60, s29, 18432')
    a('s_mul_i32 s61, s13, 2304')
    a('s_add_u32 s60, s60, s61')
    a('s_mul_i32 s61, s10, 0x%x' % XS)
    a('s_add_u32 s60, s60, s61')
    a('s_add_u32 s60, s60, 0x%x' % X0)
    a('s_lshl_b32 s61, s28, 10')
    a('s_add_u32 s61, s61, s60')
    ws_ld(a, 252, 4, 'v6', 's61')
    ws_ld(a, 12, 2, 'v7', 's60', 2048)
    a('s_xor_b32 s15, s14, 1')
    if LOCAL:
        a('s_add_u32 s56, s60, 0x%x' % XS)
        a('s_cmp_eq_u32 s28, 1')
        a('s_cselect_b32 s56, s56, 0x40000000')
        a('v_lshlrev_b32 v11, 7, v1')
        a('s_mov_b64 exec, 0x3ffff')
        ws_ld(a, 0, 1, 'v11', 's56', 0, 'sc1')
        a('s_mov_b64 exec, -1')
        a('s_cmp_lg_u32 s10, 0')
        a('s_cbranch_scc1 cen_e')
        a('v_lshlrev_b32 v29, 2, v1')
        a('s_mov_b64 exec, 0xff')
        a('s_mov_b32 s90, 0')
        a.label('cen')
        a('buffer_load_dword v27, v29, s[%d:%d], s9 offen sc1' % (SWS, SWS + 3))
        a('s_waitcnt vmcnt(0)')
        a('v_cmp_eq_u32 vcc, 32, v27')
        a('s_mov_b32 s91, 0')
        for q in range(8):
            a('v_readlane_b32 s56, v27, %d' % q)
            a('s_add_u32 s91, s91, s56')
        a('s_add_u32 s90, s90, 1')
        a('s_cmp_ge_u32 s90, %d' % SPIN_LIMIT)
        a('s_cbranch_scc1 cen_d')
        a('s_cmp_lt_u32 s91, 32')
        a('s_cbranch_scc1 cen')
        a.label('cen_d')
        a('s_cmp_lg_u32 vcc_lo, 0')
        a('s_cselect_b32 s17, 1, 0')
        a('s_mov_b64 exec, -1')
        a.label('cen_e')

    a('s_lshr_b32 s30, s29, 1')
    a('s_mul_i32 s30, s30, 36864')
    a('s_and_b32 s31, s29, 1')
    a('s_lshl_b32 s31, s31, 10')
    a('s_add_u32 s30, s30, s31')
    a('s_mul_i32 s31, s28, 18432')
    a('s_add_u32 s30, s30, s31')
    a('s_mul_i32 s31, s10, 0x%x' % XS)
    a('s_add_u32 s30, s30, s31')
    a('s_add_u32 s30, s30, 0x%x' % OIMG)
    a('s_mul_i32 s31, s26, 3072')
    a('s_add_u32 s31, s31, %d' % L_WX)
    a('v_add_u32 v14, s31, v5')
    a('s_xor_b32 s31, s26, 4')
    a('s_mul_i32 s31, s31, 3072')
    a('s_add_u32 s31, s31, %d' % L_WX)
    a('v_add_u32 v15, s31, v5')
    if WQ_PRE:
        wq_dma(a, 15, 0, WQ_PRE)
    a('s_waitcnt lgkmcnt(0)')
    mstamp(a)
    poll2(a, 's58', 's63')
    a('s_barrier')
    mstamp(a, True)
    vm = VM(a)

    def ol(t):
        if t and t % 2 == 0:
            a('s_add_u32 s30, s30, 4096')
        ws_ld(a, OF + 4 * t, 4, 'v5', 's30', (t & 1) * 2048)
        vm.issue(t)
    for t in range(OD):
        ol(t)
    for t in range(9):
        if t == 0:
            mstamp(a, 2)
        a('s_waitcnt vmcnt(%d)' % vm.cnt(t))
        if t in (0, 8):
            mstamp(a, 2)
        for k, q in enumerate([2, 3, 4, 0, 1]):
            a('v_mfma_f32_16x16x32_bf16 %s, %s, %s, %s' % (vr(CA + 4 * q, 4), vr(WV + 20 * t + 4 * q, 4), vr(OF + 4 * t, 4), '0' if t == 0 else vr(CA + 4 * q, 4)))
            if k == 0 and t + OD < 9:
                ol(t + OD)
    a('s_nop 0')
    for i in range(4):
        a('v_lshlrev_b32 v%d, 16, v%d' % (40 + 2 * i, 252 + i))
        a('v_and_b32 v%d, 0xffff0000, v%d' % (41 + 2 * i, 252 + i))
    for q in (2, 3, 4):
        a('ds_write_b128 v14, %s offset:%d' % (vr(CA + 4 * q, 4), (q - 2) * 1024))
    for i in range(2):
        a('v_lshlrev_b32 v%d, 16, v%d' % (48 + 2 * i, 12 + i))
        a('v_and_b32 v%d, 0xffff0000, v%d' % (49 + 2 * i, 12 + i))
    a('s_add_u32 s60, s60, 0x%x' % XS)
    a('s_add_u32 s61, s61, 0x%x' % XS)
    a('s_waitcnt lgkmcnt(0)')
    mstamp(a, 2)
    a('s_barrier')
    mstamp(a, 2)
    for q in range(3):
        a('ds_read_b128 %s, v15 offset:%d' % (vr(64 + 4 * q, 4), q * 1024))
    a('s_waitcnt lgkmcnt(1)')
    for r in range(0, 8, 2):
        a('v_pk_add_f32 %s, %s, %s' % (p2(CA + r), p2(CA + r), p2(64 + r)))
    for i in range(4):
        a('v_cvt_pk_bf16_f32 v%d, v%d, v%d' % (80 + i, CA + 2 * i, CA + 2 * i + 1))
    a('s_waitcnt lgkmcnt(0)')
    a('v_pk_add_f32 %s, %s, %s' % (p2(CA + 16), p2(CA + 16), p2(72)))
    a('v_permlane16_swap_b32 v80, v82')
    a('v_permlane16_swap_b32 v81, v83')
    a('v_pk_add_f32 %s, %s, %s' % (p2(CA + 18), p2(CA + 18), p2(74)))
    for i in range(4):
        a('v_lshlrev_b32 v%d, 16, v%d' % (84 + 2 * i, 80 + i))
        a('v_and_b32 v%d, 0xffff0000, v%d' % (85 + 2 * i, 80 + i))
    a('v_cvt_pk_bf16_f32 v92, v%d, v%d' % (CA + 16, CA + 17))
    a('v_cvt_pk_bf16_f32 v93, v%d, v%d' % (CA + 18, CA + 19))
    for i in range(0, 8, 2):
        a('v_pk_add_f32 %s, %s, %s' % (p2(40 + i), p2(40 + i), p2(84 + i)))
    for i in range(2):
        a('v_lshlrev_b32 v%d, 16, v%d' % (94 + 2 * i, 92 + i))
        a('v_and_b32 v%d, 0xffff0000, v%d' % (95 + 2 * i, 92 + i))
    for i in range(4):
        a('v_cvt_pk_bf16_f32 v%d, v%d, v%d' % (24 + i, 40 + 2 * i, 41 + 2 * i))
    a('v_pk_add_f32 v[48:49], v[48:49], v[94:95]')
    a('v_pk_add_f32 v[50:51], v[50:51], v[96:97]')
    a('v_cvt_pk_bf16_f32 v28, v48, v49')
    a('v_cvt_pk_bf16_f32 v29, v50, v51')
    a('s_cmp_eq_u32 s10, 3')
    a('s_cbranch_scc1 W_final')
    a('s_mov_b32 s16, s17')
    a('s_cmp_eq_u32 s28, 0')
    a('s_cselect_b32 s56, -1, 0')

    def emitx(fl):
        _uid[0] += 1
        ws_st(a, 24, 4, 'v6', 's61', 0, fl)
        a('s_cmp_eq_u32 s28, 0')
        a('s_cbranch_scc0 xs%d' % _uid[0])
        a('s_mov_b32 exec_hi, 0')
        ws_st(a, 28, 2, 'v7', 's60', 2048, fl)
        a('s_mov_b32 exec_hi, -1')
        a.label('xs%d' % _uid[0])
    st_mode(a, emitx)
    a.label('W_pub')
    mstamp(a, 2)
    wq_dma(a, 15, WQ_PRE, 16)
    mstamp(a, True)
    a('s_waitcnt vmcnt(%d)' % (16 - WQ_PRE))
    a('s_barrier')
    a('s_and_b32 s65, s12, 1')
    a('s_lshl_b32 s65, s65, 3')
    a('s_add_u32 s65, s65, s13')
    arrive2(a, 's59', 's64', 's65')
    if PT:
        a('s_cmp_eq_u32 s28, 1')
        a('s_cbranch_scc0 pt_x')
        a('v_lshlrev_b32 v3, 7, v1')
        a('s_mov_b64 exec, 0x3ffff')
        ws_ld(a, 0, 1, 'v3', 's60')
        a('s_mov_b64 exec, -1')
        a.label('pt_x')
    a('s_add_u32 s10, s10, 1')
    a('s_branch L_top')
    a.label('W_final')
    a('v_mul_u32_u24 v8, 1152, v3')
    a('v_lshrrev_b32 v9, 8, v6')
    a('v_lshl_add_u32 v9, v9, 4, v8')
    a('v_lshl_add_u32 v8, v4, 3, v8')
    a('s_mul_i32 s60, s29, 18432')
    a('s_mul_i32 s61, s13, 144')
    a('s_add_u32 s60, s60, s61')
    a('s_lshl_b32 s61, s28, 6')
    a('s_add_u32 s61, s61, s60')
    a('buffer_store_dwordx4 v[24:27], v9, s[%d:%d], s61 offen' % (SOUT, SOUT + 3))
    a('s_cmp_eq_u32 s28, 0')
    a('s_cbranch_scc0 W_done')
    a('s_mov_b32 exec_hi, 0')
    a('buffer_store_dwordx2 v[28:29], v8, s[%d:%d], s60 offen offset:128' % (SOUT, SOUT + 3))
    a('s_mov_b32 exec_hi, -1')
    a.label('W_done')
    if STAMP:
        mstamp(a)
        a('s_waitcnt vmcnt(0)')
        mstamp(a)
        a('s_memrealtime s[94:95]')
        a('s_waitcnt lgkmcnt(0)')
        a('v_writelane_b32 v2, s94, 63')
        a('s_lshl_b32 s56, s2, 3')
        a('s_add_u32 s56, s56, s26')
        a('s_lshl_b32 s56, s56, 8')
        a('s_add_u32 s56, s56, 0x%x' % STAMP_OFF)
        a('v_lshlrev_b32 v3, 2, v1')
        ws_st(a, 2, 1, 'v3', 's56', 0, '')
    a.label('mega_end')
    a('s_endpgm')
    return [('mega_kernel', 256, 100)]


def build():
    a = Asm()
    ks = []
    global STAMP
    st = STAMP
    STAMP = False
    ks += gen_prep(a)
    STAMP = st
    ks += gen_mega(a)
    launches = [
        ('prep_kernel', NPREP, 192, 28416),
        ('mega_kernel', 256, 512, MEGA_LDS),
    ]
    out = []
    for (k, g, b, l) in launches:
        out.append('; @launch kernel=%s grid=(%d,1,1) block=(%d,1,1) lds=%d' % (k, g, b, l))
    out.append('.amdgcn_target "amdgcn-amd-amdhsa--gfx950"')
    out.append('.text')
    out += a.L
    out.append('code_end:')
    out.append('    s_endpgm')
    out.append('.section .rodata,"a"')
    for (k, v, s) in ks:
        out.append('.p2align 6')
        out.append(kdesc(k, v, s))
    return '\n'.join(out) + '\n'


if __name__ == '__main__':
    if len(sys.argv) > 2 and sys.argv[2] == 'stamp':
        STAMP = True
    dst = sys.argv[1] if len(sys.argv) > 1 else 'cdna_kernels/%s.s' % NAME
    open(dst, 'w').write(build())
    print('wrote', dst)
```

```python
import sys, struct, os

NAME = 'interleave_layers__linear_kernel_hedgehog__sliding_block__prompt'

WQA = 0x000000
WQB = 0x200000
WQ_SZ = 16 * 18 * 7 * 1024
WOA = 0x400000
WOB = 0x500000
WO_SZ = 8 * 18 * 5 * 1024
CSA = 0x600000
CSB = 0x608000
CS_SZ = 16 * 3 * 448
TPHI = 0x610000
TPHI_SZ = 16 * 15 * 1024
KV1 = 0x660000
KV3 = 0x660000 + 32 * 2944
KV_HEAD = 2944
KV_SZ = 32 * KV_HEAD
X1 = 0x700000
X2 = 0x940000
X3 = 0xB80000
X_SZ = 2048 * 1152
PHIQ = 0xE00000
PHIQ_SZ = 64 * 32 * 2304
REC = 0x1300000
REC_HEAD = 262144
REC_SZ = 32 * REC_HEAD
R_Q0, R_K0, R_K1, R_V0, R_V1, R_VT, R_QT, R_KT = 0, 65536, 98304, 131072, 163840, 196608, 229376, 245760
X0 = 0x2400000
XS = 0x240000
FL = 0x700000
FL_SZ = 0x70000
WS_USED = 0x5000000
OIMG = 0x3000000
OIMG_SZ = 64 * 36864

LOG2E = 1.4426950408889634


def f32bits(x):
    return struct.unpack('<I', struct.pack('<f', x))[0]


class Asm:
    def __init__(self):
        self.L = []

    def __call__(self, s):
        self.L.append('    ' + s)

    def label(self, l):
        self.L.append(l + ':')

    def c(self, s):
        self.L.append('    ; ' + s)

    def raw(self, s):
        self.L.append(s)


class VM:
    def __init__(self, a):
        self.a = a
        self.n = 0
        self.tags = {}

    def issue(self, tag=None):
        self.n += 1
        if tag is not None:
            self.tags[tag] = self.n

    def cnt(self, tag):
        return self.n - self.tags[tag]

    def wait(self, tag):
        self.a('s_waitcnt vmcnt(%d)' % self.cnt(tag))


def vr(b, n=1):
    return 'v%d' % b if n == 1 else 'v[%d:%d]' % (b, b + n - 1)


def sr(b, n=1):
    return 's%d' % b if n == 1 else 's[%d:%d]' % (b, b + n - 1)


P_AX, P_AWQKV, P_AWPHI, P_AWO, P_BX, P_BWQKV, P_BWO, P_OUT, P_DBG, P_WS = 4, 6, 8, 10, 12, 14, 16, 18, 20, 22


def load_kernargs(a):
    a('s_load_dwordx16 s[4:19], s[0:1], 0')
    a('s_load_dwordx4 s[20:23], s[0:1], 64')


def srd(a, d, base, off, size):
    if off == 0:
        a('s_mov_b32 s%d, s%d' % (d, base))
        a('s_mov_b32 s%d, s%d' % (d + 1, base + 1))
    else:
        o = off if isinstance(off, str) else '0x%x' % off
        a('s_add_u32 s%d, s%d, %s' % (d, base, o))
        a('s_addc_u32 s%d, s%d, 0' % (d + 1, base + 1))
    a('s_mov_b32 s%d, 0x%x' % (d + 2, size))
    a('s_mov_b32 s%d, 0x00020000' % (d + 3))


def kdesc(name, vgpr, sgpr=96):
    acc = (vgpr + 3) // 4 * 4
    return '''.amdhsa_kernel %s
  .amdhsa_next_free_vgpr %d
  .amdhsa_next_free_sgpr %d
  .amdhsa_accum_offset %d
  .amdhsa_group_segment_fixed_size 0
  .amdhsa_kernarg_size 80
  .amdhsa_user_sgpr_count 2
  .amdhsa_user_sgpr_kernarg_segment_ptr 1
  .amdhsa_system_sgpr_workgroup_id_x 1
.end_amdhsa_kernel
''' % (name, vgpr, sgpr, acc)


def entry(a, name):
    a.raw('.p2align 8')
    a.raw('.globl %s' % name)
    a.raw('.type %s,@function' % name)
    a.label(name)


STAMP = False
STAMP_OFF = 0x4000000
_stamp_n = [0]
STAMP_REGS = list(range(72, 94))


def stamp(a):
    if not STAMP:
        return
    n = _stamp_n[0]
    a('s_memtime s[94:95]')
    a('s_waitcnt lgkmcnt(0)')
    a('s_mov_b32 s%d, s94' % STAMP_REGS[n])
    _stamp_n[0] += 1


def stamp_rt(a):
    if not STAMP:
        return
    n = _stamp_n[0]
    a('s_memrealtime s[94:95]')
    a('s_waitcnt lgkmcnt(0)')
    a('s_mov_b32 s%d, s94' % STAMP_REGS[n])
    _stamp_n[0] += 1


def stamp_flush(a, kid):
    if not STAMP:
        return
    a('s_getreg_b32 s%d, hwreg(HW_REG_XCC_ID)' % STAMP_REGS[_stamp_n[0]])
    n = _stamp_n[0] + 1
    _stamp_n[0] = 0
    a('s_mov_b64 exec, 1')
    a('s_add_u32 s68, s%d, 0x%x' % (P_WS, STAMP_OFF + kid * 0x100000))
    a('s_addc_u32 s69, s%d, 0' % (P_WS + 1))
    a('s_mov_b32 s70, 0x100000')
    a('s_mov_b32 s71, 0x00020000')
    a('s_lshl_b32 s94, s2, 4')
    a('s_add_u32 s94, s94, s26')
    a('s_lshl_b32 s94, s94, 7')
    a('v_mov_b32 v1, 0')
    for i in range(n):
        a('v_mov_b32 v2, s%d' % STAMP_REGS[i])
        a('buffer_store_dword v2, v1, s[68:71], s94 offen offset:%d' % (4 * i))
        a('s_nop 1')


def bf16r(a, v, tmp):
    a('v_cvt_pk_bf16_f32 %s, %s, %s' % (vr(tmp), vr(v), vr(v)))
    a('v_lshlrev_b32 %s, 16, %s' % (vr(v), vr(tmp)))


def magic(dv, maxv):
    for sh in range(4, 24):
        mul = (1 << sh) // dv + 1
        if all((x * mul) >> sh == x // dv for x in range(maxv + 1)):
            return mul, sh
    raise ValueError


def sdiv(a, dq, dr, src, dv, maxv):
    mul, sh = magic(dv, maxv)
    a('s_mul_i32 s%d, s%d, %d' % (dq, src, mul))
    a('s_lshr_b32 s%d, s%d, %d' % (dq, dq, sh))
    a('s_mul_i32 s%d, s%d, %d' % (dr, dq, dv))
    a('s_sub_u32 s%d, s%d, s%d' % (dr, src, dr))


NPREP = 460
CODEPF = int(os.environ.get('CODEPF', 1))


def gen_prep(a):
    entry(a, 'prep_kernel')
    a('s_cmp_ge_u32 s2, %d' % NPREP)
    a('s_cbranch_scc1 prep_end')
    load_kernargs(a)
    a('v_and_b32 v1, 63, v0')
    a('v_lshrrev_b32 v2, 6, v0')
    a('v_and_b32 v3, 7, v1')
    a('v_readfirstlane_b32 s24, v2')
    a('v_lshrrev_b32 v4, 3, v1')
    a('s_waitcnt lgkmcnt(0)')
    stamp(a)
    stamp_rt(a)
    if STAMP:
        a('s_mov_b32 s74, s72')
    if CODEPF:
        a('s_cmp_ge_u32 s2, 24')
        a('s_cbranch_scc1 prep_nocpf')
        a('s_getpc_b64 s[56:57]')
        a.label('prep_pc')
        a('s_lshr_b32 s58, s2, 3')
        a('s_mul_i32 s58, s58, 3')
        a('s_add_u32 s58, s58, s24')
        a('s_lshl_b32 s58, s58, 13')
        a('v_lshlrev_b32 v62, 7, v1')
        a('v_add_u32 v62, s58, v62')
        a('v_cmp_gt_u32 vcc, code_end-prep_pc-4, v62')
        a('s_and_saveexec_b64 s[58:59], vcc')
        a('s_cbranch_execz prep_cpf_skip')
        a('global_load_dword v63, v62, s[56:57]')
        a.label('prep_cpf_skip')
        a('s_mov_b64 exec, -1')
        a.label('prep_nocpf')
    a('s_cmp_ge_u32 s2, 332')
    a('s_cbranch_scc1 prep_x')
    a('s_cmp_ge_u32 s2, 308')
    a('s_cbranch_scc1 prep_zero')
    a('s_cmp_ge_u32 s2, 296')
    a('s_cbranch_scc1 prep_spec')
    a('s_cmp_ge_u32 s2, 216')
    a('s_cbranch_scc1 prep_phi')
    a('s_cmp_ge_u32 s2, 162')
    a('s_cbranch_scc1 prep_wo')
    a('s_cmp_ge_u32 s2, 81')
    a('s_cselect_b32 s32, s%d, s%d' % (P_BWQKV, P_AWQKV))
    a('s_cselect_b32 s33, s%d, s%d' % (P_BWQKV + 1, P_AWQKV + 1))
    a('s_cselect_b32 s25, 0x%x, 0' % (WQB - WQA))
    a('s_cselect_b32 s29, 0x%x, 0' % (CSB - CSA))
    a('s_cselect_b32 s26, 81, 0')
    a('s_add_u32 s29, s29, 0x%x' % CSA)
    a('s_mov_b32 s34, %d' % (576 * 3456))
    a('s_mov_b32 s35, 0x00020000')
    srd(a, 36, P_WS, 's25', WQ_SZ)
    srd(a, 52, P_WS, 's29', CS_SZ)
    a('s_sub_u32 s26, s2, s26')
    sdiv(a, 27, 28, 26, 3, 80)
    sdiv(a, 29, 30, 27, 9, 26)
    a('s_mul_i32 s31, s28, 3')
    a('s_add_u32 s31, s31, s24')
    for e in range(8):
        a('s_mov_b32 s%d, %d' % (40 + e, e * 3456))
    a('s_lshl_b32 s30, s30, 6')
    a('v_lshl_add_u32 v5, v3, 3, s30')
    a('s_lshl_b32 s48, s31, 3')
    a('v_add_u32 v6, s48, v4')
    a('v_mul_u32_u24 v7, %d, v6' % (8 * 3456))
    a('v_lshl_add_u32 v7, v5, 1, v7')
    a('s_mul_i32 s48, s29, 1152')
    a('v_add_u32 v7, s48, v7')
    for e in range(8):
        a('buffer_load_dwordx4 v[%d:%d], v7, s[32:35], s%d offen' % (16 + 4 * e, 19 + 4 * e, 40 + e))
    a('v_add_u32 v10, s30, v1')
    a('v_mul_u32_u24 v11, 3641, v10')
    a('v_lshrrev_b32 v11, 16, v11')
    a('v_mul_u32_u24 v12, 18, v11')
    a('v_sub_u32 v12, v10, v12')
    a('v_and_b32 v13, 1, v11')
    a('s_lshl_b32 s48, s29, 11')
    a('s_sub_u32 s48, s48, 2048')
    a('s_cmp_eq_u32 s29, 0')
    a('s_cselect_b32 s48, 92160, s48')
    a('s_mov_b32 s50, 5120')
    a('s_cselect_b32 s50, 2048, s50')
    a('s_lshl_b32 s49, s29, 6')
    a('s_add_u32 s49, s49, %d' % (4096 - 256))
    a('v_cmp_gt_u32 vcc, 16, v12')
    a('v_lshl_add_u32 v14, v13, 5, s49')
    a('v_lshl_add_u32 v13, v13, 10, s48')
    a('v_lshrrev_b32 v11, 1, v11')
    a('v_cndmask_b32 v13, v14, v13, vcc')
    a('v_mov_b32 v14, 5120')
    a('v_mov_b32 v15, s50')
    a('s_mov_b32 s50, 129024')
    a('v_cndmask_b32 v14, v14, v15, vcc')
    a('v_mul_u32_u24 v11, s50, v11')
    a('v_lshl_add_u32 v13, v12, 4, v13')
    a('v_add_u32 v13, v13, v11')
    a('s_lshl_b32 s62, s31, 1')
    a('v_mad_u32_u24 v48, v14, s62, v13')
    a('v_add_u32 v51, v48, v14')
    a('s_mov_b32 s62, 0')
    a('s_mov_b32 s63, 0')
    a('s_mov_b32 s51, 1')
    a('s_branch prep_tr')
    a.label('prep_wo')
    a('s_cmp_ge_u32 s2, 189')
    a('s_cselect_b32 s32, s%d, s%d' % (P_BWO, P_AWO))
    a('s_cselect_b32 s33, s%d, s%d' % (P_BWO + 1, P_AWO + 1))
    a('s_cselect_b32 s25, 0x%x, 0' % (WOB - WOA))
    a('s_cselect_b32 s26, 27, 0')
    a('s_add_u32 s25, s25, 0x%x' % WOA)
    a('s_add_u32 s26, s26, 162')
    a('s_mov_b32 s34, %d' % (576 * 1152))
    a('s_mov_b32 s35, 0x00020000')
    srd(a, 36, P_WS, 's25', WO_SZ)
    srd(a, 52, P_WS, CSA, CS_SZ)
    a('s_sub_u32 s26, s2, s26')
    sdiv(a, 27, 28, 26, 3, 26)
    a('s_mul_i32 s31, s28, 3')
    a('s_add_u32 s31, s31, s24')
    a('s_lshl_b32 s48, s31, 3')
    a('v_add_u32 v6, s48, v4')
    a('s_cmp_eq_u32 s31, 8')
    a('s_cbranch_scc1 prep_b_tail')
    for e, o in enumerate([0, 1, 2, 3, 8, 9, 10, 11]):
        a('s_mov_b32 s%d, %d' % (40 + e, o * 1152))
    a('v_lshrrev_b32 v7, 1, v6')
    a('v_mul_u32_u24 v7, 18, v7')
    a('v_and_b32 v8, 1, v6')
    a('v_lshl_add_u32 v7, v8, 2, v7')
    a('s_branch prep_b_row')
    a.label('prep_b_tail')
    for e, o in enumerate([0, 1, 18, 19, 36, 37, 54, 55]):
        a('s_mov_b32 s%d, %d' % (40 + e, o * 1152))
    a('v_mul_u32_u24 v7, 72, v4')
    a('v_add_u32 v7, 16, v7')
    a.label('prep_b_row')
    a('v_mul_u32_u24 v7, 1152, v7')
    a('v_lshl_add_u32 v7, v3, 4, v7')
    a('s_lshl_b32 s30, s27, 7')
    a('v_add_u32 v7, s30, v7')
    for e in range(8):
        a('buffer_load_dwordx4 v[%d:%d], v7, s[32:35], s%d offen' % (16 + 4 * e, 19 + 4 * e, 40 + e))
    a('s_lshl_b32 s30, s27, 6')
    a('v_add_u32 v8, s30, v1')
    a('v_mul_u32_u24 v9, 911, v8')
    a('v_lshrrev_b32 v9, 16, v9')
    a('v_mul_u32_u24 v10, 72, v9')
    a('v_sub_u32 v8, v8, v10')
    a('s_mov_b32 s30, 92160')
    a('v_mul_u32_u24 v9, s30, v9')
    a('v_lshrrev_b32 v10, 4, v8')
    a('v_lshl_add_u32 v9, v10, 10, v9')
    a('v_and_b32 v8, 15, v8')
    a('v_lshl_add_u32 v48, v8, 4, v9')
    a('v_mov_b32 v51, v48')
    a('s_mul_i32 s62, s31, 10240')
    a('s_add_u32 s63, s62, 5120')
    a('s_mov_b32 s51, 0')
    a.label('prep_tr')
    a('s_mul_i32 s30, s24, 9216')
    a('v_mul_u32_u24 v49, 1152, v4')
    a('v_mul_u32_u24 v50, 144, v3')
    a('v_add3_u32 v49, v49, v50, s30')
    a('v_add_u32 v50, v1, v4')
    a('v_lshlrev_b32 v50, 4, v50')
    a('v_add_u32 v50, s30, v50')
    a('s_mov_b32 s30, 0x05040100')
    a('s_mov_b32 s31, 0x07060302')
    a('s_mov_b32 s26, 0x3f803f80')
    a('s_waitcnt vmcnt(0)')
    stamp(a)
    for c in range(8):
        p, o = c >> 1, c & 1
        ob = 64 + 4 * c
        for q in range(4):
            a('v_perm_b32 v%d, v%d, v%d, s%d' % (ob + q, 16 + 4 * (2 * q + 1) + p, 16 + 4 * (2 * q) + p, 30 + o))
        a('ds_write_b128 v49, v[%d:%d] offset:%d' % (ob, ob + 3, 16 * c))
    a('s_waitcnt lgkmcnt(0)')
    for kg in range(8):
        a('ds_read_b128 v[%d:%d], v50 offset:%d' % (16 + 4 * kg, 19 + 4 * kg, kg * 1152))
    for kg in range(8):
        a('s_waitcnt lgkmcnt(%d)' % (7 - kg))
        a('buffer_store_dwordx4 v[%d:%d], v%d, s[36:39], s%d offen offset:%d' % (16 + 4 * kg, 19 + 4 * kg, 48 if kg < 4 else 51, 62 + (kg >> 2), (kg & 3) * 256))
    a('s_cmp_eq_u32 s51, 0')
    a('s_cbranch_scc1 prep_end')
    for n in range(32):
        a('v_dot2_f32_bf16 v%d, v%d, s26, %s' % (52 + (n & 3), 16 + n, '0' if n < 4 else 'v%d' % (52 + (n & 3))))
    a('v_lshlrev_b32 v10, 2, v0')
    a('s_nop 1')
    a('v_add_f32 v52, v52, v53')
    a('v_add_f32 v54, v54, v55')
    a('v_add_f32 v52, v52, v54')
    a('ds_write_b32 v10, v52 offset:27648')
    a('s_waitcnt lgkmcnt(0)')
    a('s_barrier')
    a('s_cmp_lg_u32 s24, 0')
    a('s_cbranch_scc1 prep_end')
    for i in range(3):
        a('ds_read_b32 v%d, v10 offset:%d' % (16 + i, 27648 + i * 256))
    a('s_mul_i32 s30, s29, 9')
    a('s_sub_u32 s30, s27, s30')
    a('s_lshl_b32 s30, s30, 6')
    a('s_lshl_b32 s48, s29, 9')
    a('s_lshl_b32 s49, s29, 6')
    a('s_add_u32 s49, s49, %d' % (96 * 16 - 256))
    a('s_mov_b32 s50, %d' % (3 * 448 * 4))
    a('v_add_u32 v10, s30, v1')
    a('s_mul_i32 s30, s28, %d' % (448 * 4))
    a('v_mov_b32 v8, s30')
    a('v_mul_u32_u24 v11, 3641, v10')
    a('v_lshrrev_b32 v11, 16, v11')
    a('v_mul_u32_u24 v12, 18, v11')
    a('v_sub_u32 v12, v10, v12')
    a('v_and_b32 v13, 1, v11')
    a('v_cmp_gt_u32 vcc, 16, v12')
    a('v_lshl_add_u32 v14, v13, 5, s49')
    a('v_lshl_add_u32 v13, v13, 8, s48')
    a('v_lshrrev_b32 v11, 1, v11')
    a('v_cndmask_b32 v13, v14, v13, vcc')
    a('v_mul_u32_u24 v11, s50, v11')
    a('v_lshl_add_u32 v13, v12, 4, v13')
    a('v_add3_u32 v13, v13, v11, v8')
    a('v_lshrrev_b32 v13, 2, v13')
    a('s_waitcnt lgkmcnt(0)')
    a('v_add_f32 v16, v16, v17')
    a('v_add_f32 v16, v16, v18')
    a('buffer_store_dword v16, v13, s[52:55], 0 offen')
    a('s_branch prep_end')
    a.label('prep_phi')
    srd(a, 32, P_AWPHI, 0, 32 * 324 * 2)
    srd(a, 36, P_WS, TPHI, TPHI_SZ)
    a('s_sub_u32 s26, s2, 216')
    sdiv(a, 27, 29, 26, 5, 79)
    a('s_mov_b32 s28, s24')
    a('v_and_b32 v2, 3, v1')
    a('v_bfe_u32 v3, v1, 2, 1')
    a('v_bfe_u32 v4, v1, 3, 1')
    a('v_lshrrev_b32 v5, 4, v1')
    a('v_lshlrev_b32 v6, 15, v3')
    a('v_lshl_or_b32 v6, v6, 16, v6')
    a('v_cmp_eq_u32 s[50:51], 0, v4')
    a('s_lshl_b32 s30, s29, 2')
    a('v_add_u32 v7, s30, v2')
    a('v_lshlrev_b32 v8, 2, v5')
    a('s_cmp_eq_u32 s28, 0')
    a('s_cbranch_scc1 prep_phi_d0')
    a('v_mov_b32 v8, 16')
    a.label('prep_phi_d0')
    a('s_lshl_b32 s30, s27, 1')
    a('v_add_u32 v9, s30, v4')
    a('v_mul_u32_u24 v9, 324, v9')
    a('v_mul_u32_u24 v8, 18, v8')
    a('v_add3_u32 v9, v9, v8, v7')
    a('v_lshlrev_b32 v9, 1, v9')
    a('v_mov_b32 v10, 0x7fff0000')
    a('v_cmp_gt_u32 vcc, 18, v7')
    a('s_nop 1')
    a('v_cndmask_b32 v9, v10, v9, vcc')
    a('s_cmp_eq_u32 s28, 0')
    a('s_cbranch_scc1 prep_phi_ld')
    a('s_sub_u32 s30, s28, 1')
    a('v_cmp_eq_u32 vcc, s30, v5')
    a('s_nop 1')
    a('v_cndmask_b32 v9, v10, v9, vcc')
    a.label('prep_phi_ld')
    for i in range(4):
        a('buffer_load_ushort v%d, v9, s[32:35], 0 offen offset:%d' % (16 + i, i * 36))
    a('s_waitcnt vmcnt(0)')
    a('v_lshl_or_b32 v16, v17, 16, v16')
    a('v_lshl_or_b32 v18, v19, 16, v18')
    a('v_xor_b32 v16, v16, v6')
    a('v_xor_b32 v18, v18, v6')
    a('v_cndmask_b32 v20, 0, v16, s[50:51]')
    a('s_cmp_eq_u32 s28, 0')
    a('s_cbranch_scc0 prep_phi_tb')
    a('v_cndmask_b32 v21, 0, v18, s[50:51]')
    a('v_cndmask_b32 v22, v16, 0, s[50:51]')
    a('v_cndmask_b32 v23, v18, 0, s[50:51]')
    a('s_branch prep_phi_st')
    a.label('prep_phi_tb')
    a('v_cndmask_b32 v21, v16, 0, s[50:51]')
    a('v_mov_b32 v22, 0')
    a('v_mov_b32 v23, 0')
    a.label('prep_phi_st')
    a('s_mul_i32 s30, s27, 15')
    a('s_mul_i32 s31, s28, 5')
    a('s_add_u32 s30, s30, s31')
    a('s_add_u32 s30, s30, s29')
    a('s_lshl_b32 s30, s30, 10')
    a('v_lshlrev_b32 v11, 4, v1')
    a('buffer_store_dwordx4 v[20:23], v11, s[36:39], s30 offen')
    a('s_branch prep_end')
    a.label('prep_spec')
    a('s_sub_u32 s26, s2, 296')
    a('s_cmp_ge_u32 s26, 6')
    a('s_cselect_b32 s25, 0x%x, 0' % (WQB - WQA))
    a('s_cselect_b32 s29, 0x%x, 0' % (CSB - CSA))
    a('s_cselect_b32 s27, 6, 0')
    a('s_add_u32 s29, s29, 0x%x' % CSA)
    srd(a, 36, P_WS, 's25', WQ_SZ)
    srd(a, 52, P_WS, 's29', CS_SZ)
    a('s_sub_u32 s26, s26, s27')
    a('s_mul_i32 s26, s26, 192')
    a('v_add_u32 v2, s26, v0')
    a('v_lshrrev_b32 v3, 2, v2')
    a('v_mul_u32_u24 v4, 3641, v3')
    a('v_lshrrev_b32 v4, 16, v4')
    a('v_mul_u32_u24 v6, 18, v4')
    a('v_sub_u32 v6, v3, v6')
    a('s_mov_b32 s28, 129024')
    a('v_mul_u32_u24 v4, s28, v4')
    a('v_mul_u32_u24 v6, 5120, v6')
    a('v_add_u32 v4, v4, v6')
    a('v_and_b32 v5, 3, v2')
    a('v_lshl_add_u32 v4, v5, 8, v4')
    a('v_add_u32 v4, %d, v4' % (4096 + 192))
    for i in range(4):
        a('v_mov_b32 v%d, 0x3f803f80' % (8 + i))
        a('v_mov_b32 v%d, 0' % (12 + i))
    a('buffer_store_dwordx4 v[8:11], v4, s[36:39], 0 offen')
    for i in range(1, 4):
        a('buffer_store_dwordx4 v[12:15], v4, s[36:39], 0 offen offset:%d' % (16 * i))
    a('v_mul_u32_u24 v6, 448, v2')
    a('v_add_u32 v6, 432, v6')
    a('buffer_store_dwordx4 v[12:15], v6, s[52:55], 0 offen')
    a('s_branch prep_end')
    a.label('prep_zero')
    srd(a, 36, P_WS, KV1, 2 * KV_SZ)
    a('s_sub_u32 s27, s2, 308')
    a('s_mul_i32 s27, s27, 9216')
    a('v_lshlrev_b32 v2, 4, v0')
    a('v_add_u32 v2, s27, v2')
    for i in range(4):
        a('v_mov_b32 v%d, 0' % (4 + i))
    for k in range(3):
        a('s_mov_b32 s28, %d' % (k * 3072))
        a('buffer_store_dwordx4 v[4:7], v2, s[36:39], s28 offen')
    srd(a, 36, P_WS, FL, FL_SZ)
    a('s_sub_u32 s27, s2, 308')
    a('s_mul_i32 s27, s27, %d' % (7 * 3072))
    a('v_lshlrev_b32 v2, 4, v0')
    for k in range(7):
        a('buffer_store_dwordx4 v[4:7], v2, s[36:39], s27 offen')
        a('s_add_u32 s27, s27, 3072')
    a('s_branch prep_end')
    a.label('prep_x')
    srd(a, 32, P_AX, 0, X_SZ)
    srd(a, 36, P_WS, X0, X_SZ)
    a('s_sub_u32 s26, s2, 332')
    a('s_and_b32 s27, s26, 3')
    a('s_lshl_b32 s27, s27, 5')
    a('s_lshr_b32 s26, s26, 2')
    a('s_add_u32 s26, s26, s27')
    a('v_lshrrev_b32 v2, 2, v1')
    a('v_and_b32 v3, 3, v1')
    a('v_mul_u32_u24 v4, 1152, v2')
    a('v_lshl_add_u32 v4, v3, 4, v4')
    a('s_mul_i32 s27, s26, 18432')
    a('s_mul_i32 s28, s24, 384')
    a('s_add_u32 s28, s28, s27')
    for t in range(6):
        a('buffer_load_dwordx4 v[%d:%d], v4, s[32:35], s28 offen offset:%d' % (16 + 4 * t, 19 + 4 * t, t * 64))
    a('v_lshlrev_b32 v5, 4, v2')
    a('v_lshl_add_u32 v5, v3, 8, v5')
    a('s_mul_i32 s28, s24, 6144')
    a('v_add_u32 v5, s28, v5')
    a('v_lshlrev_b32 v6, 4, v1')
    a('v_add_u32 v7, s28, v6')
    a('s_add_u32 s28, s28, s27')
    a('s_add_u32 s29, s28, 3072')
    for t in range(6):
        a('s_waitcnt vmcnt(%d)' % (5 - t))
        a('ds_write_b128 v5, v[%d:%d] offset:%d' % (16 + 4 * t, 19 + 4 * t, t * 1024))
    a('s_waitcnt lgkmcnt(0)')
    for t in range(6):
        a('ds_read_b128 v[%d:%d], v7 offset:%d' % (40 + 4 * t, 43 + 4 * t, t * 1024))
    for t in range(6):
        a('s_waitcnt lgkmcnt(%d)' % (5 - t))
        a('buffer_store_dwordx4 v[%d:%d], v6, s[36:39], s%d offen offset:%d' % (40 + 4 * t, 43 + 4 * t, 28 + t // 3, (t % 3) * 1024))
    a.label('prep_end')
    if STAMP:
        a('s_cmp_ge_u32 s2, %d' % NPREP)
        a('s_cbranch_scc1 prep_end2')
        a('s_mov_b64 exec, -1')
        stamp(a)
        a('s_waitcnt vmcnt(0)')
        stamp(a)
        stamp_rt(a)
        a('s_mov_b32 s26, s24')
        a('s_lshr_b32 s3, s2, 8')
        a('s_lshl_b32 s3, s3, 2')
        a('s_add_u32 s26, s26, s3')
        a('s_and_b32 s2, s2, 255')
        stamp_flush(a, 5)
        a.label('prep_end2')
    a('s_endpgm')
    return [('prep_kernel', 96, 96)]


XF0 = 32
ACC0 = 104
WB0 = 168
LDS_T = 127 * 1024
LDS_PK = 32 * 1024
PK_STRIDE = 224
QDEPTH = int(os.environ.get('QDEPTH', 3))
SPREAD = int(os.environ.get('SPREAD', 1))
LSLOTS = [1, 5, 9, 13]


def XF(a_, t):
    return XF0 + (a_ * 9 + t) * 4


def ACC(a_, u):
    return ACC0 + (a_ * 8 + u) * 4


def p2(r):
    return 'v[%d:%d]' % (r, r + 1)


def softmax18(a, D, sL, tmp):
    m, s_ = tmp, tmp + 2
    a('v_max3_f32 %s, %s, %s, %s' % (vr(m), vr(D), vr(D + 1), vr(D + 2)))
    a('v_max3_f32 %s, %s, %s, %s' % (vr(m + 1), vr(D + 3), vr(D + 4), vr(D + 5)))
    for i in range(6, 18, 4):
        a('v_max3_f32 %s, %s, %s, %s' % (vr(m), vr(m), vr(D + i), vr(D + i + 1)))
        a('v_max3_f32 %s, %s, %s, %s' % (vr(m + 1), vr(m + 1), vr(D + i + 2), vr(D + i + 3)))
    a('v_max_f32 %s, %s, %s' % (vr(m), vr(m), vr(m + 1)))
    a('v_mul_f32 %s, s%d, %s' % (vr(m), sL, vr(m)))
    pf = lambda k: a('v_pk_fma_f32 %s, %s, s[%d:%d], %s op_sel_hi:[1,0,0] neg_lo:[0,0,1] neg_hi:[0,0,1]' % (p2(D + 2 * k), p2(D + 2 * k), sL, sL + 1, p2(m)))
    pf(0)
    pf(1)
    for k in range(9):
        a('v_exp_f32 %s, %s' % (vr(D + 2 * k), vr(D + 2 * k)))
        if k + 2 < 9:
            pf(k + 2)
        elif k == 7:
            a('v_pk_add_f32 %s, %s, %s' % (p2(s_), p2(s_), p2(D + 10)))
        else:
            a('v_pk_add_f32 %s, %s, %s' % (p2(s_), p2(s_), p2(D + 14)))
        a('v_exp_f32 %s, %s' % (vr(D + 2 * k + 1), vr(D + 2 * k + 1)))
        if k == 2:
            a('v_pk_add_f32 %s, %s, %s' % (p2(s_), p2(D), p2(D + 2)))
        elif 3 <= k <= 5:
            a('v_pk_add_f32 %s, %s, %s' % (p2(s_), p2(s_), p2(D + 2 * k - 2)))
        elif k == 7:
            a('v_pk_add_f32 %s, %s, %s' % (p2(s_), p2(s_), p2(D + 12)))
        elif k == 8:
            a('s_nop 0')
    a('v_pk_add_f32 %s, %s, %s' % (p2(s_), p2(s_), p2(D + 16)))
    a('v_add_f32 %s, %s, %s' % (vr(s_), vr(s_), vr(s_ + 1)))
    a('v_rcp_f32 %s, %s' % (vr(s_), vr(s_)))
    a('s_nop 0')
    for k in range(9):
        a('v_pk_mul_f32 %s, %s, %s op_sel_hi:[1,0]' % (p2(D + 2 * k), p2(D + 2 * k), p2(s_)))
    for i in range(9):
        a('v_cvt_pk_bf16_f32 %s, %s, %s' % (vr(D + i), vr(D + 2 * i), vr(D + 2 * i + 1)))


SWS, SOUT = 32, 36
F_XC, F_OC, F_KVC, F_KVF = FL, FL + 0x20000, FL + 0x40000, FL + 0x50000
SPIN_LIMIT = 40000
WL = int(os.environ.get('WL', 0))
HE = int(os.environ.get('HE', 1))
KE = int(os.environ.get('KE', 6))
L0P = int(os.environ.get('L0P', 0))
MID = int(os.environ.get('MID', 5))
PFN = int(os.environ.get('PFN', 4))
LOCAL = int(os.environ.get('LOCAL', 0))
F_OW, F_XW, F_GRP = FL + 24576, FL + 28672, FL + 32768
XD = int(os.environ.get('XD', 3))
OD = int(os.environ.get('OD', 4))
PT = int(os.environ.get('PT', 0))
O_A = int(os.environ.get('O_A', 0))
O_B = int(os.environ.get('O_B', 1))
O_P = int(os.environ.get('O_P', 0))
WQ_PRE = int(os.environ.get('WQ_PRE', 8))
WOMAP = int(os.environ.get('WOMAP', 1))
L_T, L_CS = 0, 16384
L_W = 34816
L_Q = L_W + 92160
L_PK = L_W
L_PHI = L_W
L_KV = 0
L_X2A, L_X2B = 17408, 71680
L_QP = 88064
L_WO = 70 * 1024
L_WX = 0
IM_P = 6144 + 64
I_K0, I_K1, I_V0, I_V1, I_VT = 0, IM_P, 2 * IM_P, 3 * IM_P, 4 * IM_P
I_KT = 5 * IM_P
IM_HEAD = I_KT + 3072
MEGA_LDS = 160 * 1024
_uid = [0]


FINE = int(os.environ.get('FINE', 0))


def mstamp(a, fine=False):
    if not STAMP or (FINE and not fine) or (fine == 2 and not FINE):
        return
    a('s_memtime s[94:95]')
    a('s_waitcnt lgkmcnt(0)')
    a('s_mov_b32 s92, m0')
    a('s_mov_b32 m0, s93')
    a('s_nop 1')
    a('v_writelane_b32 v2, s94, m0')
    a('s_mov_b32 m0, s92')
    a('s_add_u32 s93, s93, 1')


def ws_ld(a, dst, n, voff, soff, imm=0, extra=''):
    a('buffer_load_dword%s %s, %s, s[%d:%d], %s offen offset:%d %s' % ('' if n == 1 else 'x%d' % n, vr(dst, n), voff, SWS, SWS + 3, soff, imm, extra))


def ws_dma(a, soff, imm=0, extra=''):
    a('buffer_load_dwordx4 v5, s[%d:%d], %s offen offset:%d %s lds' % (SWS, SWS + 3, soff, imm, extra))


def ws_st(a, src, n, voff, soff, imm=0, extra='sc1'):
    a('buffer_store_dword%s %s, %s, s[%d:%d], %s offen offset:%d %s' % ('' if n == 1 else 'x%d' % n, vr(src, n), voff, SWS, SWS + 3, soff, imm, extra))


def _radd(a, soff, n):
    a('v_lshlrev_b32 v29, 7, v1')
    a('v_mov_b32 v30, 1')
    a('s_mov_b64 exec, 0x%x' % ((1 << n) - 1))
    a('buffer_atomic_add v30, v29, s[%d:%d], %s offen sc1' % (SWS, SWS + 3, soff))
    a('s_mov_b64 exec, -1')


def arrive(a, soff, n=16):
    _uid[0] += 1
    l = 'arr%d' % _uid[0]
    a('s_cmp_lg_u32 s26, 0')
    a('s_cbranch_scc1 %s' % l)
    _radd(a, soff, n)
    a.label(l)


def warrive(a, soff, n=16):
    _radd(a, soff, n)


def poll(a, soffs, target, skip_cond=None):
    _uid[0] += 1
    l = 'pl%d' % _uid[0]
    a('s_cmp_lg_u32 s26, 0')
    a('s_cbranch_scc1 %s_e' % l)
    if skip_cond:
        a(skip_cond)
        a('s_cbranch_scc1 %s_e' % l)
    a('v_mov_b32 v29, 0')
    a('s_mov_b64 exec, 1')
    a('s_mov_b32 s90, 0')
    n = len(soffs)
    ld = lambda base: [a('buffer_load_dword v%d, v29, s[%d:%d], %s offen sc1' % (base + q, SWS, SWS + 3, so)) for q, so in enumerate(soffs)]
    if O_P:
        a('s_waitcnt vmcnt(0)')
        ld(27)
        a.label(l)
        ld(0 if n == 1 else 30)
        a('s_waitcnt vmcnt(%d)' % n)
        if n == 2:
            a('v_min_u32 v27, v27, v28')
            a('s_nop 0')
        a('v_readfirstlane_b32 s91, v27')
        a('s_cmp_ge_u32 s91, %s' % target)
        a('s_cbranch_scc1 %s_d' % l)
        ld(27)
        a('s_waitcnt vmcnt(%d)' % n)
        if n == 2:
            a('v_min_u32 v30, v30, v31')
            a('s_nop 0')
        a('v_readfirstlane_b32 s91, v%d' % (0 if n == 1 else 30))
    else:
        a.label(l)
        ld(27)
        a('s_waitcnt vmcnt(0)')
        if n == 2:
            a('v_min_u32 v27, v27, v28')
            a('s_nop 0')
        a('v_readfirstlane_b32 s91, v27')
    a('s_add_u32 s90, s90, 1')
    a('s_cmp_ge_u32 s90, %d' % SPIN_LIMIT)
    a('s_cbranch_scc1 %s_d' % l)
    a('s_cmp_lt_u32 s91, %s' % target)
    a('s_cbranch_scc1 %s' % l)
    a.label('%s_d' % l)
    a('s_mov_b64 exec, -1')
    a.label('%s_e' % l)


def st_mode(a, emit):
    if not LOCAL:
        emit('sc1')
        return
    _uid[0] += 1
    l = 'sm%d' % _uid[0]
    a('s_cmp_eq_u32 s16, 1')
    a('s_cbranch_scc1 %s_l' % l)
    emit('sc1')
    a('s_branch %s_e' % l)
    a.label('%s_l' % l)
    emit('')
    a.label('%s_e' % l)


def arrive2(a, s_cnt, s_word, s_me):
    if not LOCAL:
        arrive(a, s_cnt)
        return
    _uid[0] += 1
    l = 'ar%d' % _uid[0]
    a('s_cmp_lg_u32 s26, 0')
    a('s_cbranch_scc1 %s_e' % l)
    a('v_mov_b32 v30, 1')
    a('s_mov_b64 exec, 1')
    a('s_cmp_eq_u32 s16, 1')
    a('s_cbranch_scc1 %s_l' % l)
    a('v_mov_b32 v29, 0')
    a('buffer_atomic_add v30, v29, s[%d:%d], %s offen sc1' % (SWS, SWS + 3, s_cnt))
    a('s_branch %s_x' % l)
    a.label('%s_l' % l)
    a('s_lshl_b32 s90, %s, 2' % s_me)
    a('v_mov_b32 v29, s90')
    a('buffer_store_dword v30, v29, s[%d:%d], %s offen' % (SWS, SWS + 3, s_word))
    a.label('%s_x' % l)
    a('s_mov_b64 exec, -1')
    a.label('%s_e' % l)


def poll2(a, s_cnt, s_word, skip_cond=None):
    if not LOCAL:
        poll(a, [s_cnt], 16, skip_cond)
        return
    _uid[0] += 1
    l = 'pw%d' % _uid[0]
    a('s_cmp_eq_u32 s16, 1')
    a('s_cbranch_scc1 %s_l' % l)
    poll(a, [s_cnt], 16, skip_cond)
    a('s_branch %s_e' % l)
    a.label('%s_l' % l)
    a('s_cmp_lg_u32 s26, 0')
    a('s_cbranch_scc1 %s_e' % l)
    if skip_cond:
        a(skip_cond)
        a('s_cbranch_scc1 %s_e' % l)
    a('v_lshlrev_b32 v29, 2, v1')
    a('s_mov_b64 exec, 0xffff')
    a('s_mov_b32 s90, 0')
    a.label(l)
    a('buffer_load_dword v27, v29, s[%d:%d], %s offen sc1' % (SWS, SWS + 3, s_word))
    a('s_waitcnt vmcnt(0)')
    a('v_cmp_eq_u32 vcc, 1, v27')
    a('s_add_u32 s90, s90, 1')
    a('s_cmp_ge_u32 s90, %d' % SPIN_LIMIT)
    a('s_cbranch_scc1 %s_d' % l)
    a('s_cmp_lg_u32 vcc_lo, 0xffff')
    a('s_cbranch_scc1 %s' % l)
    a.label('%s_d' % l)
    a('s_mov_b64 exec, -1')
    a.label('%s_e' % l)


def oimg_addr(a, s_rb32, s_head, s_main, s_tail, t1, t2):
    a('s_mul_i32 s%d, s10, 0x%x' % (t1, XS))
    a('s_mul_i32 s%d, s%d, 36864' % (s_tail, s_rb32))
    a('s_add_u32 s%d, s%d, s%d' % (s_tail, s_tail, t1))
    a('s_add_u32 s%d, s%d, 0x%x' % (s_tail, s_tail, OIMG))
    a('s_lshl_b32 s%d, s%d, 10' % (t1, s_head))
    a('s_and_b32 s%d, s%d, 1' % (t2, s_head))
    a('s_lshl_b32 s%d, s%d, 9' % (t2, t2))
    a('s_sub_u32 s%d, s%d, s%d' % (t1, t1, t2))
    a('s_add_u32 s%d, s%d, s%d' % (s_main, s_tail, t1))
    a('s_lshl_b32 s%d, s%d, 7' % (t1, s_head))
    a('s_add_u32 s%d, s%d, s%d' % (s_tail, s_tail, t1))
    a('s_add_u32 s%d, s%d, 32768' % (s_tail, s_tail))


def o_store(a, OA, s_main, s_tail, vden, eps):
    a('v_bfe_u32 v26, v1, 4, 1')
    a('v_and_b32 v27, 15, v1')
    a('v_lshlrev_b32 v27, 4, v27')
    a('v_lshl_add_u32 v27, v26, 10, v27')
    a('v_lshrrev_b32 v26, 5, v1')
    a('v_lshl_add_u32 v28, v26, 8, v27')
    a('v_lshlrev_b32 v27, 2, v1')
    if eps:
        a('v_add_f32 v24, 0x%x, %s' % (f32bits(eps), vr(OA + 10)))
        a('v_rcp_f32 v24, v24')
    else:
        a('v_rcp_f32 v24, %s' % vr(OA + 10))
    a('s_nop 0')
    for n in range(0, 10, 2):
        a('v_pk_mul_f32 %s, %s, v[24:25] op_sel_hi:[1,0]' % (p2(OA + n), p2(OA + n)))
    for n in range(5):
        a('v_cvt_pk_bf16_f32 %s, %s, %s' % (vr(OA + n), vr(OA + 2 * n), vr(OA + 2 * n + 1)))

    def emit(fl):
        ws_st(a, OA, 4, 'v28', 's%d' % s_main, 0, fl)
        a('s_mov_b32 exec_hi, 0')
        ws_st(a, OA + 4, 1, 'v27', 's%d' % s_tail, 0, fl)
        a('s_mov_b32 exec_hi, -1')
    st_mode(a, emit)


def wq_dma(a, s_kind, lo, hi):
    a('s_lshl_b32 s31, s26, 10')
    a('s_add_u32 s31, s31, %d' % (lo * 8192))
    a('s_add_u32 m0, s31, %d' % L_W)
    a('s_mul_i32 s56, s25, 129024')
    a('s_add_u32 s31, s31, s56')
    a('s_mul_i32 s56, s%d, 0x%x' % (s_kind, WQB - WQA))
    a('s_add_u32 s31, s31, s56')
    for ii in range(lo, hi):
        if ii == 15:
            a('s_cmp_ge_u32 s26, 6')
            a('s_cselect_b32 s56, 8192, 0')
            a('s_sub_u32 m0, m0, s56')
            a('s_sub_u32 s31, s31, s56')
        ws_dma(a, 's31')
        if ii < hi - 1:
            a('s_add_u32 m0, m0, 8192')
            a('s_add_u32 s31, s31, 8192')


def wo_dma_ops(a):
    def first():
        a('s_lshl_b32 s31, s26, 10')
        a('s_add_u32 m0, s31, %d' % L_WO)
        a('s_mul_i32 s29, s13, 92160')
        a('s_add_u32 s31, s31, s29')
        a('s_mul_i32 s29, s14, 0x%x' % (WOB - WOA))
        a('s_add_u32 s31, s31, s29')
        a('s_add_u32 s31, s31, 0x%x' % WOA)
        ws_dma(a, 's31')

    def nxt():
        a('s_add_u32 m0, m0, 8192')
        a('s_add_u32 s31, s31, 8192')
        ws_dma(a, 's31')

    def last():
        a('s_cmp_lt_u32 s26, 2')
        a('s_cselect_b32 s29, 8192, 0')
        a('s_add_u32 m0, m0, s29')
        a('s_add_u32 s31, s31, s29')
        ws_dma(a, 's31')
    return [first] + [nxt] * 10 + [last]


def wq_pf_ops(a, n):
    per = 64 // n

    def first():
        a('s_lshr_b32 s4, s2, 3')
        a('s_lshl_b32 s4, s4, 3')
        a('s_add_u32 s4, s4, s26')
        a('s_lshl_b32 s4, s4, 13')
        a('s_xor_b32 s5, s14, 1')
        a('s_mul_i32 s5, s5, 0x%x' % (WQB - WQA))
        a('s_add_u32 s4, s4, s5')
        a('v_lshlrev_b32 v7, 7, v1')
        nxt0()

    def nxt0():
        a('s_mov_b64 exec, 0x%x' % ((1 << per) - 1))
        ws_ld(a, 0, 1, 'v7', 's4', 0, 'sc1')
        a('s_mov_b64 exec, -1')

    def nxt():
        a('s_add_u32 s4, s4, %d' % (per * 128))
        nxt0()
    return [first] + [nxt] * (n - 1)


class Sprinkle:
    def __init__(self, a, ops, n):
        self.a, self.ops, self.n, self.c = a, list(ops), n, 0

    def __call__(self, s_):
        self.a(s_)
        self.c += 1
        if self.c % self.n == 0 and self.ops:
            self.ops.pop(0)()

    def flush(self):
        while self.ops:
            self.ops.pop(0)()


OF, WV, CA = 36, 72, 16


def wfrag_reads(a):
    a('s_mul_i32 s31, s28, %d' % (8 * 5120))
    a('s_add_u32 s31, s31, %d' % L_WO)
    a('v_add_u32 v10, s31, v5')
    a('s_lshl_b32 s31, s28, 11')
    a('v_add_u32 v8, s31, v10')
    a('s_xor_b32 s31, s31, 2048')
    a('v_add_u32 v9, s31, v10')
    for t in range(9):
        if t == 8:
            a('s_mul_i32 s31, s28, %d' % (-7 * 5120))
            a('s_add_u32 s31, s31, %d' % (16 * 5120))
            for r in (8, 9, 10):
                a('v_add_u32 v%d, s31, v%d' % (r, r))
        for q in range(5):
            base, off = [('v8', 0), ('v8', 1024), ('v9', 0), ('v9', 1024), ('v10', 4096)][q]
            a('ds_read_b128 %s, %s offset:%d' % (vr(WV + 20 * t + 4 * q, 4), base, (t * 5120 if t < 8 else 0) + off))


def gen_mega(a):
    entry(a, 'mega_kernel')
    a('s_cmp_ge_u32 s2, 256')
    a('s_cbranch_scc1 mega_end')
    a('s_load_dwordx2 s[18:19], s[0:1], 56')
    a('s_load_dwordx2 s[22:23], s[0:1], 72')
    a('s_and_b32 s24, s2, 3')
    a('s_lshl_b32 s12, s24, 3')
    a('s_lshl_b32 s24, s24, 2')
    a('s_bfe_u32 s25, s2, 0x20003')
    a('s_add_u32 s24, s24, s25')
    a('s_bfe_u32 s11, s2, 0x10002')
    a('s_lshl_b32 s13, s11, 2')
    a('s_add_u32 s13, s13, s25')
    a('s_lshl_b32 s25, s11, 3')
    a('s_lshr_b32 s26, s2, 5')
    a('s_add_u32 s25, s25, s26')
    a('s_add_u32 s12, s12, s26')
    if WOMAP:
        a('s_and_b32 s12, s2, 7')
        a('s_lshl_b32 s12, s12, 2')
        a('s_lshr_b32 s13, s2, 6')
        a('s_add_u32 s12, s12, s13')
        a('s_bfe_u32 s13, s2, 0x30003')
    a('v_lshrrev_b32 v2, 6, v0')
    a('v_and_b32 v1, 63, v0')
    a('v_readfirstlane_b32 s26, v2')
    a('v_lshlrev_b32 v5, 4, v1')
    a('v_mov_b32 v2, 0')
    a('s_mov_b32 s10, 0')
    a('s_mov_b32 s93, 0')
    a('s_and_b32 s27, s26, 3')
    a('s_lshr_b32 s28, s26, 2')
    a('s_waitcnt lgkmcnt(0)')
    srd(a, SWS, P_WS, 0, WS_USED)
    srd(a, SOUT, P_OUT, 0, X_SZ)
    a('s_mov_b32 s16, 0')
    a('s_mov_b32 s17, 0')
    a('s_and_b32 s9, s2, 7')
    a('s_lshl_b32 s9, s9, 7')
    a('s_add_u32 s9, s9, 0x%x' % F_GRP)
    if LOCAL:
        a('s_getreg_b32 s56, hwreg(HW_REG_XCC_ID)')
        a('s_and_b32 s56, s56, 7')
        a('s_lshl_b32 s56, s56, 2')
        a('s_add_u32 s56, s56, s9')
        arrive(a, 's56')
    if STAMP:
        a('s_memrealtime s[94:95]')
        a('s_memtime s[96:97]')
        a('s_waitcnt lgkmcnt(0)')
        a('v_writelane_b32 v2, s94, 62')
        a('v_writelane_b32 v2, s96, 61')

    def st_ops(stage):
        ops = []
        for r in range(4):
            def op(r=r):
                a('s_add_u32 s4, s26, %d' % (8 * r))
                a('s_min_u32 s4, s4, 29')
                a('s_cmp_ge_u32 s4, 15')
                a('s_cselect_b32 s5, 30, 0')
                a('s_add_u32 s4, s4, s5')
                a('s_add_u32 s4, s4, %d' % (15 * stage))
                a('s_lshl_b32 s4, s4, 10')
                a('s_add_u32 m0, s4, %d' % L_W)
                a('s_add_u32 s4, s4, s6')
                ws_dma(a, 's4')
            ops.append(op)
        return ops

    def q_ops():
        ops = []
        for r in range(5):
            def op(r=r):
                a('s_add_u32 s4, s26, %d' % (90 + 8 * r))
                a('s_min_u32 s4, s4, 125')
                a('s_lshl_b32 s4, s4, 10')
                a('s_add_u32 m0, s4, %d' % L_W)
                a('s_add_u32 s4, s4, s6')
                ws_dma(a, 's4')
            ops.append(op)
        return ops
    if L0P:
        a('s_mul_i32 s6, s25, 129024')
        for op in st_ops(0):
            op()
    else:
        wq_dma(a, 10, 0, 16)
        a('s_waitcnt vmcnt(0)')
        a('s_barrier')
    a.label('L_top')
    mstamp(a, True)
    a('s_and_b32 s14, s10, 1')
    a('s_lshl_b32 s31, s26, 11')
    a('s_add_u32 m0, s31, %d' % L_T)
    a('s_mul_i32 s56, s25, 15360')
    a('s_add_u32 s31, s31, s56')
    a('s_add_u32 s31, s31, 0x%x' % TPHI)
    a('s_cmp_eq_u32 s14, 1')
    a('s_cbranch_scc1 q_noTd')
    ws_dma(a, 's31')
    a('s_cmp_eq_u32 s26, 7')
    a('s_cbranch_scc1 q_noTd')
    ws_dma(a, 's31', 1024)
    a.label('q_noTd')
    a('s_mul_i32 s56, s25, 1344')
    a('s_mul_i32 s57, s14, 0x%x' % (CSB - CSA))
    a('s_add_u32 s56, s56, s57')
    a('s_add_u32 s56, s56, 0x%x' % CSA)
    for p in range(3):
        ws_ld(a, 224 + 4 * p, 4, 'v5', 's56', p * 448)
    a('v_and_b32 v3, 15, v1')
    a('v_lshrrev_b32 v4, 4, v1')
    a('s_lshl_b32 s29, s24, 7')
    a('s_lshl_b32 s30, s27, 5')
    a('s_add_u32 s29, s29, s30')
    a('s_lshl_b32 s30, s28, 4')
    a('s_add_u32 s29, s29, s30')
    a('v_add_u32 v6, s29, v3')
    a('s_lshr_b32 s30, s29, 4')
    a('s_xor_b32 s69, s30, 1')
    a('s_mul_i32 s30, s30, 18432')
    a('s_mul_i32 s69, s69, 18432')
    a('s_mul_i32 s31, s28, 9216')
    a('s_mul_i32 s56, s10, 0x%x' % XS)
    a('s_add_u32 s31, s31, s56')
    a('s_add_u32 s31, s31, 0x%x' % X0)
    a('s_add_u32 s30, s30, s31')
    a('s_add_u32 s69, s69, s31')
    a('s_mul_i32 s56, s28, 46080')
    a('s_add_u32 s56, s56, %d' % L_W)
    a('v_add_u32 v10, s56, v5')
    a('s_mul_i32 s57, s27, 6144')
    a('v_add_u32 v14, s57, v10')
    a('s_xor_b32 s56, s28, 1')
    a('s_mul_i32 s56, s56, 46080')
    a('s_add_u32 s56, s56, s57')
    a('s_add_u32 s56, s56, %d' % L_W)
    a('v_add_u32 v15, s56, v5')
    a('s_mul_i32 s56, s28, 18432')
    a('s_add_u32 s56, s56, %d' % L_Q)
    a('v_add_u32 v7, s56, v5')
    a('v_and_b32 v11, 3, v3')
    a('v_cmp_eq_u32 s[58:59], 1, v11')
    a('v_cmp_eq_u32 s[60:61], 2, v11')
    a('v_cmp_eq_u32 s[62:63], 3, v11')
    a('v_lshrrev_b32 v11, 2, v3')
    a('v_lshl_add_u32 v11, v11, 4, v3')
    a('v_lshlrev_b32 v11, 2, v11')
    a('v_lshlrev_b32 v24, 2, v3')
    a('v_add_u32 v24, 192, v24')
    a('v_lshlrev_b32 v25, 4, v4')
    a('v_add_u32 v25, %d, v25' % L_CS)
    a('v_add_u32 v26, %d, v5' % L_CS)
    a('s_lshl_b32 s56, s10, 4')
    a('s_add_u32 s56, s56, s24')
    a('s_lshl_b32 s56, s56, 4')
    a('s_add_u32 s56, s56, s25')
    a('s_lshl_b32 s56, s56, 7')
    a('s_add_u32 s56, s56, 0x%x' % (F_XC - 32768))
    a('s_waitcnt vmcnt(0)')
    for r in (0, 2):
        a('v_pk_add_f32 %s, %s, %s' % (p2(224 + r), p2(224 + r), p2(228 + r)))
    for r in (0, 2):
        a('v_pk_add_f32 %s, %s, %s' % (p2(224 + r), p2(224 + r), p2(232 + r)))
    a('s_cmp_lg_u32 s26, 1')
    a('s_cbranch_scc1 q_nocs')
    a('s_mov_b64 exec, 0xfffffff')
    a('ds_write_b128 v26, v[224:227]')
    a('v_mov_b32 v27, 33792')
    a('v_mov_b32 v28, 0')
    a('s_mov_b64 exec, 1')
    a('ds_write_b32 v27, v28')
    a('s_mov_b64 exec, -1')
    a.label('q_nocs')
    mstamp(a)
    poll(a, ['s56'], 16, 's_cmp_eq_u32 s10, 0')
    a('s_waitcnt lgkmcnt(0)')
    a('s_barrier')
    mstamp(a, True)
    A1 = lambda a_, q: 104 + (a_ * 6 + q) * 4
    W1 = lambda t, q: 152 + 20 * (t & 1) + 4 * q
    wr = [5, 4, 0, 1, 2, 3]

    def pass1(first):
        vm = VM(a)

        def xl(t, which):
            if which == 0:
                if t and t % 4 == 0:
                    a('s_add_u32 s30, s30, 4096')
                    a('s_add_u32 s69, s69, 4096')
                ws_ld(a, XF(0, t), 4, 'v5', 's30', (t & 3) * 1024)
                vm.issue()
            else:
                ws_ld(a, XF(1, t), 4, 'v5', 's69', (t & 3) * 1024)
                vm.issue(t)
        for t in range(XD):
            xl(t, 0)
            xl(t, 1)
        for q in range(5):
            a('ds_read_b128 %s, v10 offset:%d' % (vr(W1(0, q), 4), q * 1024))
        for t in range(9):
            if first and t in (2, 5):
                a('s_waitcnt vmcnt(%d) lgkmcnt(0)' % min(vm.cnt(t), vm.cnt(('st', t // 3 + 1))))
                a('s_barrier')
            else:
                a('s_waitcnt vmcnt(%d) lgkmcnt(0)' % vm.cnt(t))
            if t == 7:
                a('s_barrier')
            if t < 8:
                fill = [(lambda q=q: a('ds_read_b128 %s, v10 offset:%d' % (vr(W1(t + 1, q), 4), (t + 1) * 5120 + q * 1024))) for q in range(5)]
                if t + XD < 9:
                    fill += [lambda: xl(t + XD, 0), None, None, lambda: xl(t + XD, 1)]
                if first and t in (0, 3, 6):
                    ex = st_ops(t // 3 + 1) if t < 6 else q_ops()
                    tag = ('st', t // 3 + 1)
                    fill = [(lambda op=op: (op(), vm.issue(tag))) for op in ex] + fill
                seq = [(a_, q, t) for q in [5, 0, 1, 2, 3, 4] for a_ in (0, 1)]
                if t == 7:
                    seq = [(1, q, 7) for q in wr]
            else:
                seq = [(1, q, 8) for q in wr] + [(0, q, 7) for q in wr] + [(0, q, 8) for q in wr]
                fill = [None] * 8
                for q in wr[:5]:
                    fill += [(lambda q=q: a('ds_write_b128 v14, %s offset:%d' % (vr(A1(1, q), 4), q * 1024))), None]
            for k, (a_, q, tt) in enumerate(seq):
                A_ = vr(XF(a_, tt), 4) if q == 5 else vr(W1(tt, q), 4)
                c = '0' if tt == 0 else vr(A1(a_, q), 4)
                a('v_mfma_f32_16x16x32_bf16 %s, %s, %s, %s' % (vr(A1(a_, q), 4), A_, vr(XF(a_, tt), 4), c))
                if k < len(fill) and fill[k] is not None:
                    fill[k]()
                if k == len(seq) - 1:
                    for f in fill[len(seq):]:
                        if f:
                            f()
        a('ds_write_b128 v14, %s offset:%d' % (vr(A1(1, 3), 4), 3 * 1024))
        if first:
            a('s_waitcnt vmcnt(0)')
    if L0P:
        a('s_cmp_eq_u32 s10, 0')
        a('s_cbranch_scc1 P1_first')
    pass1(False)
    if L0P:
        a('s_branch P1_done')
        a.label('P1_first')
        pass1(True)
        a.label('P1_done')
    mstamp(a, True)
    CSK, CSQ = 192, 248
    a('s_waitcnt lgkmcnt(0)')
    a('s_barrier')
    for q in wr:
        a('ds_read_b128 %s, v15 offset:%d' % (vr(A1(1, q), 4), q * 1024))
    R = lambda q, r: A1(0, q) + r
    a('s_waitcnt lgkmcnt(4)')
    for r in (0, 2):
        a('v_pk_add_f32 %s, %s, %s' % (p2(R(5, r)), p2(R(5, r)), p2(A1(1, 5) + r)))
        a('v_pk_add_f32 %s, %s, %s' % (p2(R(4, r)), p2(R(4, r)), p2(A1(1, 4) + r)))
    a('v_cndmask_b32 v16, %s, %s, s[58:59]' % (vr(R(5, 0)), vr(R(5, 1))))
    a('v_cndmask_b32 v16, v16, %s, s[60:61]' % vr(R(5, 2)))
    a('v_cndmask_b32 v16, v16, %s, s[62:63]' % vr(R(5, 3)))
    a('ds_bpermute_b32 v18, v24, %s' % vr(R(4, 0)))
    a('ds_bpermute_b32 v17, v11, v16')
    for q in range(5):
        a('ds_read_b128 %s, v25 offset:%d' % (vr(CSK + 4 * q, 4), (2 + q) * 64))
    for u in range(2):
        a('ds_read_b128 %s, v25 offset:%d' % (vr(CSQ + 4 * u, 4), u * 64))
    a('s_waitcnt lgkmcnt(9)')
    for q in range(4):
        for r in (0, 2):
            a('v_pk_add_f32 %s, %s, %s' % (p2(R(q, r)), p2(R(q, r)), p2(A1(1, q) + r)))
    a('s_mov_b32 s56, 0x%x' % f32bits(1.0 / 576))
    a('s_waitcnt lgkmcnt(7)')
    TA, TBK, TBQ = 152, 172, 192
    a('v_add_u32 v20, %d, v5' % L_T)
    a('s_cmp_eq_u32 s14, 1')
    a('s_cbranch_scc1 q_noT')
    for m in range(5):
        a('ds_read_b128 %s, v20 offset:%d' % (vr(TA + 4 * m, 4), m * 1024))
    for m in range(5):
        a('ds_read_b128 %s, v20 offset:%d' % (vr(TBK + 4 * m, 4), (10 + m) * 1024))
    a.label('q_noT')
    a('v_mul_f32 v18, s56, v18')
    a('v_mul_f32 v17, s56, v17')
    a('v_fma_f32 v17, -v18, v18, v17')
    a('v_max_f32 v17, 0, v17')
    bf16r(a, 18, 19)
    bf16r(a, 17, 19)
    a('v_add_f32 v17, 0x%x, v17' % f32bits(1e-5))
    bf16r(a, 17, 19)
    a('v_sqrt_f32 v17, v17')
    a('s_nop 0')
    bf16r(a, 17, 19)
    a('v_rcp_f32 v16, v17')
    a('s_waitcnt lgkmcnt(0)')
    mstamp(a)
    PK_, PV_, PT_, PQ_ = 220, 224, 228, 104

    def lnfix(r0, cs, dst):
        for r in (0, 2):
            a('v_pk_fma_f32 %s, %s, v[18:19], %s op_sel_hi:[1,0,1] neg_lo:[0,1,0] neg_hi:[0,1,0]' % (p2(r0 + r), p2(cs + r), p2(r0 + r)))
        for r in (0, 2):
            a('v_pk_mul_f32 %s, %s, v[16:17] op_sel_hi:[1,0]' % (p2(r0 + r), p2(r0 + r)))
        a('v_cvt_pk_bf16_f32 %s, %s, %s' % (vr(dst), vr(r0), vr(r0 + 1)))
        a('v_cvt_pk_bf16_f32 %s, %s, %s' % (vr(dst + 1), vr(r0 + 2), vr(r0 + 3)))
    ln1 = lambda q: lnfix(R(q, 0), CSK + 4 * q, PK_ + 2 * q)
    W2s = list(range(104, 152, 4)) + list(range(172, 192, 4)) + [212]
    A2 = lambda a_, u: 232 + (a_ * 2 + u) * 4

    def pass2(x2base, mid):
        rd = lambda t: [a('ds_read_b128 %s, v7 offset:%d' % (vr(W2s[2 * t + u], 4), t * 2048 + u * 1024)) for u in range(2)]
        for t in range(4):
            rd(t)
        a('s_lshl_b32 s56, s26, 11')
        a('s_add_u32 s56, s56, %d' % x2base)
        a('v_add_u32 v14, s56, v5')
        a('s_xor_b32 s56, s26, 4')
        a('s_lshl_b32 s56, s56, 11')
        a('s_add_u32 s56, s56, %d' % x2base)
        a('v_add_u32 v15, s56, v5')
        for t in range(9):
            if t + 4 < 9:
                rd(t + 4)
            a('s_waitcnt lgkmcnt(%d)' % (2 * min(4, 8 - t)))
            for (a_, u) in ((1, 0), (1, 1), (0, 0), (0, 1)):
                a('v_mfma_f32_16x16x32_bf16 %s, %s, %s, %s' % (vr(A2(a_, u), 4), vr(W2s[2 * t + u], 4), vr(XF(a_, t), 4), '0' if t == 0 else vr(A2(a_, u), 4)))
            if t == MID and mid:
                mid()
        a('s_nop 5')
        for u in range(2):
            a('ds_write_b128 v14, %s offset:%d' % (vr(A2(1, u), 4), u * 1024))
        a('s_waitcnt lgkmcnt(0)')
        a('s_barrier')
        for u in range(2):
            a('ds_read_b128 %s, v15 offset:%d' % (vr(A2(1, u), 4), u * 1024))
        a('s_waitcnt lgkmcnt(0)')
        for r in range(0, 8, 2):
            a('v_pk_add_f32 %s, %s, %s' % (p2(A2(0, 0) + r), p2(A2(0, 0) + r), p2(A2(1, 0) + r)))
        for u in range(2):
            lnfix(A2(0, u), CSQ + 4 * u, PQ_ + 2 * u)
    a('s_mov_b32 s16, 0')
    a('s_cmp_eq_u32 s14, 1')
    a('s_cbranch_scc1 B_epi')
    DK, DQ = 128, 108
    a('s_barrier')
    for q in (0, 1, 4):
        ln1(q)
    a('v_mov_b32 %s, 0' % vr(PT_ + 2))
    a('v_mov_b32 %s, 0' % vr(PT_ + 3))
    a('v_and_b32 v22, 127, v6')
    a('v_mul_u32_u24 v22, %d, v22' % PK_STRIDE)
    a('v_add_u32 v22, %d, v22' % L_PK)
    a('v_lshl_add_u32 v21, v4, 3, v22')
    for m in range(5):
        a('v_mfma_f32_16x16x32_bf16 %s, %s, %s, 0' % (vr(DK + 4 * m, 4), vr(TA + 4 * m, 4), vr(PK_, 4)))
    for m in range(5):
        a('v_mfma_f32_16x16x32_bf16 %s, %s, %s, %s' % (vr(DK + 4 * m, 4), vr(TBK + 4 * m, 4), vr(PT_, 4), vr(DK + 4 * m, 4)))
    ln1(2)
    ln1(3)
    for m in range(5):
        a('ds_read_b128 %s, v20 offset:%d' % (vr(TBQ + 4 * m, 4), (5 + m) * 1024))
    a('ds_write_b64 v21, %s offset:128' % vr(PV_, 2))
    a('ds_write_b64 v21, %s offset:160' % vr(PV_ + 2, 2))
    a('v_mov_b32 v12, %s' % vr(PT_))
    a('v_mov_b32 v13, 0x3f80')
    a('v_mov_b32 v14, %s' % vr(PT_ + 1))
    a('v_mov_b32 v15, 0x3f80')
    a('s_mov_b32 exec_lo, 0')
    a('s_mov_b32 exec_hi, 0xffff')
    a('ds_write_b128 v22, v[12:15] offset:208')
    a('s_mov_b64 exec, -1')
    a('s_mov_b32 s56, 0x%x' % f32bits(LOG2E))
    wops = wo_dma_ops(a)
    sp = Sprinkle(a, wops[:KE], 11)
    softmax18(sp, DK, 56, 12)
    sp.flush()
    a('v_lshl_add_u32 v21, v4, 5, v22')
    a('v_lshl_add_u32 v24, v4, 2, v22')
    a('ds_write_b128 v21, %s' % vr(DK, 4))
    a('ds_write_b128 v21, %s offset:16' % vr(DK + 4, 4))
    a('ds_write_b32 v24, %s offset:192' % vr(DK + 8))
    a('s_lshr_b32 s64, s10, 1')
    a('s_mul_i32 s64, s64, %d' % KV_SZ)
    a('s_add_u32 s64, s64, 0x%x' % KV1)
    a('s_mul_i32 s65, s25, %d' % (2 * KV_HEAD))
    a('s_add_u32 s64, s64, s65')
    a('s_lshr_b32 s65, s10, 1')
    a('s_lshl_b32 s65, s65, 4')
    a('s_add_u32 s65, s65, s25')
    a('s_lshl_b32 s65, s65, 11')
    a('s_add_u32 s65, s65, 0x%x' % F_KVC)
    a('s_waitcnt lgkmcnt(0)')
    a('s_barrier')
    mstamp(a)
    a('s_cmp_ge_u32 s26, 6')
    a('s_cbranch_scc1 A_q')
    a('s_cmp_ge_u32 s26, 3')
    a('s_cselect_b32 s57, 1, 0')
    a('s_mul_i32 s58, s57, 3')
    a('s_sub_u32 s58, s26, s58')
    a('s_lshl_b32 s59, s57, 6')
    a('s_lshl_b32 s60, s58, 5')
    a('s_add_u32 s59, s59, s60')
    a('s_lshl_b32 s60, s57, 3')
    a('s_add_u32 s61, s60, 192')
    a('s_cmp_eq_u32 s58, 2')
    a('s_cselect_b32 s59, s61, s59')
    a('s_add_u32 s60, s60, 208')
    a('s_lshl_b32 s61, s57, 5')
    a('s_add_u32 s61, s61, 128')
    a('v_lshrrev_b32 v24, 2, v3')
    a('v_lshl_add_u32 v24, v4, 2, v24')
    a('v_mul_u32_u24 v24, %d, v24' % PK_STRIDE)
    a('v_and_b32 v25, 3, v3')
    a('v_lshl_add_u32 v24, v25, 3, v24')
    a('v_add_u32 v24, %d, v24' % L_PK)
    a('v_add_u32 v25, s59, v24')
    a('v_add_u32 v26, s61, v24')
    a('v_add_u32 v27, s60, v24')
    FB, FA, FT = 104, 128, 172
    for ks in range(4):
        for hf in range(2):
            off = (32 * ks + 16 * hf) * PK_STRIDE
            a('ds_read_b64_tr_b16 %s, v25 offset:%d' % (vr(FB + 4 * ks + 2 * hf, 2), off))
            a('ds_read_b64_tr_b16 %s, v26 offset:%d' % (vr(FA + 4 * ks + 2 * hf, 2), off))
            a('ds_read_b64_tr_b16 %s, v27 offset:%d' % (vr(FT + 4 * ks + 2 * hf, 2), off))
    a('s_mul_i32 s59, s57, %d' % KV_HEAD)
    a('s_mul_i32 s60, s58, 1216')
    a('s_add_u32 s59, s59, s60')
    a('s_add_u32 s59, s59, s64')
    a('v_lshlrev_b32 v28, 2, v1')
    DM, DT = 120, 124
    at = lambda r, off: a('buffer_atomic_add_f32 %s, v28, s[%d:%d], s59 offen offset:%d' % (vr(r), SWS, SWS + 3, off))
    a('s_cmp_eq_u32 s58, 2')
    a('s_cbranch_scc1 A_kvt')
    for ks in range(4):
        a('s_waitcnt lgkmcnt(%d)' % min(14, 6 * (3 - ks)))
        a('v_mfma_f32_16x16x32_bf16 %s, %s, %s, %s' % (vr(DM, 4), vr(FA + 4 * ks, 4), vr(FB + 4 * ks, 4), '0' if ks == 0 else vr(DM, 4)))
        a('v_mfma_f32_16x16x32_bf16 %s, %s, %s, %s' % (vr(DT, 4), vr(FT + 4 * ks, 4), vr(FB + 4 * ks, 4), '0' if ks == 0 else vr(DT, 4)))
    a('s_nop 7')
    for r in range(4):
        at(DM + r, r * 256)
    a('s_mov_b64 exec, 0xffff')
    for r in range(3):
        at(DT + r, 1024 + r * 64)
    a('s_mov_b64 exec, -1')
    a('s_branch A_q')
    a.label('A_kvt')
    for ks in range(4):
        a('s_waitcnt lgkmcnt(%d)' % min(14, 6 * (3 - ks)))
        a('v_mfma_f32_16x16x32_bf16 %s, %s, %s, %s' % (vr(DM, 4), vr(FB + 4 * ks, 4), vr(FA + 4 * ks, 4), '0' if ks == 0 else vr(DM, 4)))
        a('v_mfma_f32_16x16x32_bf16 %s, %s, %s, %s' % (vr(DT, 4), vr(FB + 4 * ks, 4), vr(FT + 4 * ks, 4), '0' if ks == 0 else vr(DT, 4)))
    a('s_mov_b64 exec, 0xffff')
    a('s_nop 7')
    for r in range(4):
        at(DM + r, r * 128)
    a('s_mov_b64 exec, 7')
    for r in range(4):
        at(DT + r, r * 128 + 64)
    a('s_mov_b64 exec, -1')
    a.label('A_q')
    pass2(L_X2A, None)
    mstamp(a)
    a('s_mul_i32 s57, s27, 4608')
    a('s_add_u32 s57, s57, %d' % L_PHI)
    for m in range(5):
        a('v_mfma_f32_16x16x32_bf16 %s, %s, %s, 0' % (vr(DQ + 4 * m, 4), vr(TA + 4 * m, 4), vr(PQ_, 4)))
    for m in range(5):
        a('v_mfma_f32_16x16x32_bf16 %s, %s, %s, %s' % (vr(DQ + 4 * m, 4), vr(TBQ + 4 * m, 4), vr(PT_, 4), vr(DQ + 4 * m, 4)))
    a('v_lshrrev_b32 v24, 1, v4')
    a('v_mul_u32_u24 v24, 2304, v24')
    a('v_add_u32 v24, s57, v24')
    a('v_and_b32 v25, 1, v4')
    a('v_and_b32 v26, 31, v6')
    a('v_lshl_add_u32 v22, v25, 10, v24')
    a('v_lshl_add_u32 v22, v26, 4, v22')
    a('v_lshl_add_u32 v23, v26, 3, v24')
    a('v_lshl_add_u32 v23, v25, 2, v23')
    a('s_mov_b32 s56, 0x%x' % f32bits(LOG2E))
    a('v_mov_b32 v27, 33792')
    a('v_mov_b32 v30, 1')
    a('s_waitcnt vmcnt(0)')
    a('s_mov_b64 exec, 1')
    a('ds_add_rtn_u32 v28, v27, v30')
    a('s_waitcnt lgkmcnt(0)')
    a('v_readfirstlane_b32 s57, v28')
    a('s_mov_b64 exec, -1')
    a('s_cmp_lg_u32 s57, 7')
    a('s_cbranch_scc1 A_noarr')
    warrive(a, 's65')
    a.label('A_noarr')
    sp = Sprinkle(a, wops[KE:], 66 // (12 - KE))
    softmax18(sp, DQ, 56, 12)
    sp.flush()
    a('ds_write_b128 v22, %s' % vr(DQ, 4))
    a('ds_write_b128 v22, %s offset:512' % vr(DQ + 4, 4))
    a('ds_write_b32 v23, %s offset:2048' % vr(DQ + 8))
    a('s_lshl_b32 s56, s24, 7')
    a('s_add_u32 s56, s56, s65')
    mstamp(a)
    a('s_waitcnt lgkmcnt(0)')
    a('s_barrier')
    mstamp(a)
    PH, ST, OC = 32, 48, 72
    a('s_lshl_b32 s57, s27, 1')
    a('s_add_u32 s57, s57, s28')
    a('s_mul_i32 s57, s57, 2304')
    a('s_add_u32 s57, s57, %d' % L_PHI)
    a('v_add_u32 v20, s57, v5')
    a('v_and_b32 v3, 31, v1')
    a('v_lshlrev_b32 v21, 3, v3')
    a('v_add_u32 v21, s57, v21')
    for r in range(8, 12):
        a('v_mov_b32 v%d, 0' % (PH + r))
    a('ds_read_b128 %s, v20' % vr(PH, 4))
    a('ds_read_b128 %s, v20 offset:1024' % vr(PH + 4, 4))
    a('s_mov_b32 exec_hi, 0')
    a('ds_read_b64 %s, v21 offset:2048' % vr(PH + 8, 2))
    a('s_mov_b32 exec_hi, -1')
    a('s_mul_i32 s58, s26, 3072')
    a('s_add_u32 s58, s58, %d' % L_KV)
    a('v_min_u32 v8, 18, v3')
    a('v_and_b32 v9, 3, v8')
    a('v_lshlrev_b32 v9, 8, v9')
    a('v_lshrrev_b32 v4, 2, v8')
    a('v_lshl_add_u32 v9, v4, 6, v9')
    a('v_lshlrev_b32 v4, 6, v8')
    a('v_cmp_gt_u32 vcc, 16, v8')
    a('v_lshlrev_b32 v8, 2, v8')
    a('v_add_u32 v8, s58, v8')
    a('v_cndmask_b32 v9, v4, v9, vcc')
    a('v_lshrrev_b32 v4, 5, v1')
    a('v_lshl_add_u32 v9, v4, 5, v9')
    a('v_add_u32 v9, s58, v9')
    a('s_lshl_b32 s59, s24, 2')
    a('s_add_u32 s59, s59, s27')
    a('s_lshl_b32 s60, s25, 1')
    a('s_add_u32 s60, s60, s28')
    oimg_addr(a, 59, 60, 66, 67, 61, 62)
    a('s_mul_i32 s57, s28, %d' % KV_HEAD)
    a('s_add_u32 s57, s57, s64')
    a('s_mov_b32 m0, s58')
    a('s_waitcnt vmcnt(0)')
    poll(a, ['s56'], 16)
    a('s_barrier')
    mstamp(a)
    for p in range(3):
        if p == 2:
            a('s_mov_b32 exec_hi, 0xffffff')
        ws_dma(a, 's57', p * 1024, 'sc1')
    a('s_mov_b32 exec_hi, -1')
    a('s_waitcnt vmcnt(0)')
    a('ds_read_b128 %s, v9' % vr(ST, 4))
    a('ds_read_b128 %s, v9 offset:16' % vr(ST + 4, 4))
    a('ds_read_b128 %s, v9 offset:1216' % vr(ST + 8, 4))
    a('ds_read_b128 %s, v9 offset:1232' % vr(ST + 12, 4))
    for ft in range(4):
        a('ds_read_b32 %s, v8 offset:%d' % (vr(ST + 16 + ft), 2432 + ft * 128))
    a('s_waitcnt lgkmcnt(0)')
    for n in range(10):
        a('v_cvt_pk_bf16_f32 %s, %s, %s' % (vr(ST + n), vr(ST + 2 * n), vr(ST + 2 * n + 1)))
    a('v_mov_b32 %s, 0' % vr(ST + 10))
    a('v_mov_b32 %s, 0' % vr(ST + 11))
    a('s_nop 1')
    for q_ in range(3):
        a('v_mfma_f32_32x32x16_bf16 %s, %s, %s, %s' % (vr(OC, 16), vr(ST + 4 * q_, 4), vr(PH + 4 * q_, 4), '0' if q_ == 0 else vr(OC, 16)))
    a('s_nop 6')
    o_store(a, OC, 66, 67, None, 1e-6)
    if not WL:
        wfrag_reads(a)
    mstamp(a)
    a('s_waitcnt vmcnt(0)')
    a('s_branch O_pub')
    a.label('B_epi')
    for q in range(5):
        ln1(q)
    a('s_lshr_b32 s64, s10, 1')
    a('s_lshl_b32 s64, s64, 23')
    a('s_add_u32 s64, s64, 0x%x' % REC)
    a('s_lshl_b32 s65, s25, 19')
    a('s_add_u32 s64, s64, s65')
    a('v_lshlrev_b32 v20, 4, v6')
    a('v_and_b32 v21, 1, v4')
    a('v_lshl_add_u32 v22, v21, 18, v20')
    a('v_lshrrev_b32 v23, 1, v4')
    a('v_lshl_add_u32 v22, v23, 15, v22')
    a('v_and_b32 v24, 127, v6')
    a('v_mul_u32_u24 v25, %d, v21' % IM_HEAD)
    a('v_lshl_add_u32 v25, v24, 4, v25')
    a('v_mul_u32_u24 v27, %d, v23' % IM_P)
    a('v_add_u32 v27, v27, v25')
    a('v_mul_u32_u24 v9, 5120, v21')
    a('v_lshl_add_u32 v9, v24, 4, v9')
    a('v_lshl_add_u32 v9, v23, 11, v9')
    a('v_add_u32 v9, %d, v9' % L_QP)
    a('s_add_u32 s56, s64, %d' % R_K0)
    a('s_add_u32 s57, s64, %d' % R_V0)
    for b0 in (PK_, PV_):
        a('v_permlane16_swap_b32 %s, %s' % (vr(b0), vr(b0 + 2)))
        a('v_permlane16_swap_b32 %s, %s' % (vr(b0 + 1), vr(b0 + 3)))
    ws_st(a, PK_, 4, 'v22', 's56')
    ws_st(a, PV_, 4, 'v22', 's57')
    a('v_cmp_eq_u32 vcc, 2, v4')
    a('v_mov_b32 v28, 0x3f80')
    a('v_mov_b32 v12, %s' % vr(PT_))
    a('v_cndmask_b32 v13, 0, v28, vcc')
    a('v_mov_b32 v14, %s' % vr(PT_ + 1))
    a('v_mov_b32 v15, v13')
    a('v_lshlrev_b32 v28, 3, v6')
    a('v_add_u32 v28, %d, v28' % R_KT)
    a('v_add_u32 v20, %d, v20' % R_VT)
    a('v_cndmask_b32 v28, v28, v20, vcc')
    a('v_lshlrev_b32 v20, 3, v24')
    a('v_add_u32 v21, %d, v20' % (L_QP + 4096))
    a('v_add_u32 v20, %d, v20' % (I_KT + 2048))
    a('v_lshlrev_b32 v23, 4, v24')
    a('v_add_u32 v23, %d, v23' % (I_VT + 4096))
    a('v_cndmask_b32 v20, v20, v23, vcc')
    a('v_cmp_eq_u32 vcc, 0, v4')
    a('s_add_u32 s57, s64, %d' % REC_HEAD)
    a('v_mov_b32 v212, v12')
    a('v_mov_b32 v213, v13')
    a('v_mov_b32 v214, 0')
    a('v_mov_b32 v215, 0')
    a('v_mov_b32 v216, v14')
    a('v_mov_b32 v217, v15')
    a('v_mov_b32 v218, 0')
    a('v_mov_b32 v219, 0')
    a('s_mov_b32 exec_lo, 0xffff0000')
    a('s_mov_b32 exec_hi, 0')
    ws_st(a, 12, 2, 'v28', 's64')
    ws_st(a, 14, 2, 'v28', 's57')
    a('s_mov_b32 exec_lo, 0')
    a('s_mov_b32 exec_hi, 0xffff')
    ws_st(a, 212, 4, 'v28', 's64')
    ws_st(a, 216, 4, 'v28', 's57')
    a('s_mov_b64 exec, -1')
    a('v_add_u32 v23, %d, v20' % IM_HEAD)
    a('v_cndmask_b32 v20, v20, v21, vcc')
    a('v_add_u32 v21, 5120, v21')
    a('v_cndmask_b32 v21, v23, v21, vcc')
    a('s_barrier')
    a('ds_write_b128 v27, %s offset:%d' % (vr(PK_, 4), I_K0 + 4096))
    a('ds_write_b128 v27, %s offset:%d' % (vr(PV_, 4), I_V0 + 4096))
    a('s_mov_b32 exec_hi, 0xffff')
    a('ds_write_b64 v20, v[12:13]')
    a('ds_write_b64 v21, v[14:15]')
    a('s_mov_b32 exec_hi, -1')
    a('s_lshr_b32 s48, s10, 1')
    a('s_lshl_b32 s48, s48, 4')
    a('s_add_u32 s48, s48, s25')
    a('s_lshl_b32 s48, s48, 12')
    a('s_add_u32 s48, s48, 0x%x' % F_KVF)
    a('s_lshl_b32 s50, s24, 7')
    a('s_add_u32 s50, s50, s48')
    a('s_add_u32 s49, s50, 128')
    a('s_cmp_eq_u32 s24, 1')
    a('s_cselect_b32 s51, 8, 16')
    a('s_lshl_b32 s56, s24, 7')
    a('s_sub_u32 s56, s56, 256')
    a('s_lshl_b32 s54, s27, 6')
    a('s_add_u32 s56, s56, s54')
    a('s_lshl_b32 s58, s28, 18')
    a('s_add_u32 s58, s58, s64')
    a('s_lshl_b32 s52, s56, 4')
    a('s_add_u32 s52, s52, s58')
    a('s_lshl_b32 s53, s56, 3')
    a('s_add_u32 s53, s53, s58')
    a('s_add_u32 s53, s53, %d' % R_KT)
    a('s_cmp_lt_i32 s56, 0')
    a('s_cselect_b32 s52, 0x40000000, s52')
    a('s_cselect_b32 s53, 0x40000000, s53')
    a('s_mul_i32 s65, s28, %d' % IM_HEAD)
    a('s_lshl_b32 s54, s27, 10')
    a('s_add_u32 s54, s54, s65')
    a('s_mov_b32 s3, s65')
    a('s_mov_b32 s30, s64')
    mstamp(a)

    def kvf_arrive():
        a('s_waitcnt vmcnt(0)')
        warrive(a, 's49', 2)
    a('s_waitcnt lgkmcnt(0)')
    pass2(L_X2B, kvf_arrive)
    a('s_nop 0')
    a('v_permlane16_swap_b32 %s, %s' % (vr(PQ_), vr(PQ_ + 2)))
    a('v_permlane16_swap_b32 %s, %s' % (vr(PQ_ + 1), vr(PQ_ + 3)))
    a('ds_write_b128 v9, %s' % vr(PQ_, 4))
    mstamp(a)
    if not HE:
        Q1, Q2 = 12, 16
        S = lambda t: 64 + 16 * t
        OA = 208
        KB = [224, 232, 240]
        MK, MB = 56, 36
        a('v_and_b32 v3, 31, v1')
        a('v_lshrrev_b32 v4, 5, v1')
        a('s_lshl_b32 s27, s27, 5')
        a('v_add_u32 v9, s27, v3')
        a('v_lshlrev_b32 v10, 4, v9')
        a('v_add_u32 v21, s65, v10')
        a('s_mul_i32 s29, s28, 5120')
        a('s_add_u32 s29, s29, %d' % L_QP)
        a('v_lshl_add_u32 v10, v4, 11, v10')
        a('v_add_u32 v10, s29, v10')
        a('v_lshlrev_b32 v20, 3, v9')
        a('v_add_u32 v8, s29, v20')
        a('v_add_u32 v20, s65, v20')
        for r in range(4):
            a('v_mov_b32 v%d, 0' % (Q2 + r))
        a('v_mul_u32_u24 v9, %d, v4' % IM_P)
        a('v_add_u32 v21, v21, v9')
        a('v_add_u32 v20, %d, v20' % I_KT)
        for b in KB:
            for r in range(6, 8):
                a('v_mov_b32 v%d, 0' % (b + r))
        a('v_bfe_u32 v22, v1, 2, 2')
        a('v_lshl_add_u32 v22, v4, 2, v22')
        a('v_add_u32 v22, s27, v22')
        a('v_lshlrev_b32 v22, 4, v22')
        a('v_bfe_u32 v23, v1, 1, 1')
        a('v_mul_u32_u24 v23, %d, v23' % IM_P)
        a('v_and_b32 v25, 1, v1')
        a('v_lshl_add_u32 v23, v25, 3, v23')
        a('v_and_b32 v25, 16, v1')
        a('v_cmp_eq_u32 vcc, 0, v25')
        a('v_mov_b32 v25, %d' % (I_VT - I_V0))
        a('s_add_u32 s65, s65, %d' % I_V0)
        a('v_cndmask_b32 v23, v25, v23, vcc')
        a('v_add3_u32 v22, v22, v23, s65')
        a('s_lshr_b32 s27, s27, 5')
        a('s_lshl_b32 s40, s24, 2')
        a('s_add_u32 s40, s40, s27')
        a('s_lshl_b32 s41, s25, 1')
        a('s_add_u32 s41, s41, s28')
        oimg_addr(a, 40, 41, 44, 45, 42, 43)
        a('s_sub_u32 s42, 8, s40')
        a('s_max_i32 s42, s42, 0')
        a('v_lshlrev_b32 v11, 2, v4')
        a('v_sub_u32 v11, v3, v11')
        for n in range(16):
            a('v_cmp_gt_i32 s[%d:%d], %d, v11' % (MK + 2 * n, MK + 2 * n + 1, 8 * (n >> 2) + (n & 3)))
        a('v_mov_b32 v26, 0xffff')
        a('v_mov_b32 v27, 0xffff0000')
        for n in range(8):
            a('v_cndmask_b32 v%d, 0, v26, s[%d:%d]' % (MB + n, MK + 4 * n, MK + 4 * n + 1))
            a('v_cndmask_b32 v25, 0, v27, s[%d:%d]' % (MK + 4 * n + 2, MK + 4 * n + 3))
            a('v_or_b32 v%d, v%d, v25' % (MB + n, MB + n))
        a('v_mov_b32 v24, 0xf149f2ca')
        a('s_mov_b32 s46, 0x%x' % f32bits(LOG2E * 18 ** -0.5))
    mstamp(a)
    poll(a, ['s50'], 's51', 's_cmp_eq_u32 s24, 0')
    a('s_waitcnt lgkmcnt(0)')
    a('s_barrier')
    mstamp(a)
    for (pl, lo) in ((R_K0, I_K0), (R_K1, I_K1)):
        a('s_add_u32 m0, s54, %d' % lo)
        a('s_add_u32 s55, s52, %d' % pl)
        ws_dma(a, 's55')
    a('s_lshl_b32 s55, s27, 9')
    a('s_add_u32 s55, s55, s3')
    a('s_add_u32 m0, s55, %d' % I_KT)
    a('s_mov_b32 exec_hi, 0')
    ws_dma(a, 's53')
    a('s_mov_b32 exec_hi, -1')
    for (pl, lo) in ((R_V0, I_V0), (R_V1, I_V1), (R_VT, I_VT)):
        a('s_add_u32 m0, s54, %d' % lo)
        a('s_add_u32 s55, s52, %d' % pl)
        ws_dma(a, 's55')
    if HE:
        Q1, Q2 = 12, 16
        S = lambda t: 64 + 16 * t
        OA = 208
        KB = [224, 232, 240]
        MK, MB = 56, 36
        a('v_and_b32 v3, 31, v1')
        a('v_lshrrev_b32 v4, 5, v1')
        a('s_lshl_b32 s27, s27, 5')
        a('v_add_u32 v9, s27, v3')
        a('v_lshlrev_b32 v10, 4, v9')
        a('v_add_u32 v21, s65, v10')
        a('s_mul_i32 s29, s28, 5120')
        a('s_add_u32 s29, s29, %d' % L_QP)
        a('v_lshl_add_u32 v10, v4, 11, v10')
        a('v_add_u32 v10, s29, v10')
        a('v_lshlrev_b32 v20, 3, v9')
        a('v_add_u32 v8, s29, v20')
        a('v_add_u32 v20, s65, v20')
        for r in range(4):
            a('v_mov_b32 v%d, 0' % (Q2 + r))
        a('v_mul_u32_u24 v9, %d, v4' % IM_P)
        a('v_add_u32 v21, v21, v9')
        a('v_add_u32 v20, %d, v20' % I_KT)
        for b in KB:
            for r in range(6, 8):
                a('v_mov_b32 v%d, 0' % (b + r))
        a('v_bfe_u32 v22, v1, 2, 2')
        a('v_lshl_add_u32 v22, v4, 2, v22')
        a('v_add_u32 v22, s27, v22')
        a('v_lshlrev_b32 v22, 4, v22')
        a('v_bfe_u32 v23, v1, 1, 1')
        a('v_mul_u32_u24 v23, %d, v23' % IM_P)
        a('v_and_b32 v25, 1, v1')
        a('v_lshl_add_u32 v23, v25, 3, v23')
        a('v_and_b32 v25, 16, v1')
        a('v_cmp_eq_u32 vcc, 0, v25')
        a('v_mov_b32 v25, %d' % (I_VT - I_V0))
        a('s_add_u32 s65, s65, %d' % I_V0)
        a('v_cndmask_b32 v23, v25, v23, vcc')
        a('v_add3_u32 v22, v22, v23, s65')
        a('s_lshr_b32 s27, s27, 5')
        a('s_lshl_b32 s40, s24, 2')
        a('s_add_u32 s40, s40, s27')
        a('s_lshl_b32 s41, s25, 1')
        a('s_add_u32 s41, s41, s28')
        oimg_addr(a, 40, 41, 44, 45, 42, 43)
        a('s_sub_u32 s42, 8, s40')
        a('s_max_i32 s42, s42, 0')
        a('v_lshlrev_b32 v11, 2, v4')
        a('v_sub_u32 v11, v3, v11')
        for n in range(16):
            a('v_cmp_gt_i32 s[%d:%d], %d, v11' % (MK + 2 * n, MK + 2 * n + 1, 8 * (n >> 2) + (n & 3)))
        a('v_mov_b32 v26, 0xffff')
        a('v_mov_b32 v27, 0xffff0000')
        for n in range(8):
            a('v_cndmask_b32 v%d, 0, v26, s[%d:%d]' % (MB + n, MK + 4 * n, MK + 4 * n + 1))
            a('v_cndmask_b32 v25, 0, v27, s[%d:%d]' % (MK + 4 * n + 2, MK + 4 * n + 3))
            a('v_or_b32 v%d, v%d, v25' % (MB + n, MB + n))
        a('v_mov_b32 v24, 0xf149f2ca')
        a('s_mov_b32 s46, 0x%x' % f32bits(LOG2E * 18 ** -0.5))
    a('ds_read_b128 %s, v10' % vr(Q1, 4))
    a('s_mov_b32 exec_hi, 0')
    a('ds_read_b64 %s, v8 offset:4096' % vr(Q2, 2))
    a('s_mov_b32 exec_hi, -1')
    a('s_waitcnt vmcnt(0) lgkmcnt(0)')
    a('s_barrier')
    mstamp(a)

    def kread(t):
        b = KB[t % 3]
        a('ds_read_b128 %s, v21 offset:%d' % (vr(b, 4), t * 512))
        a('ds_read_b64 %s, v20 offset:%d' % (vr(b + 4, 2), t * 256))

    def tfix(t):
        a('s_cmp_le_u32 s42, %d' % t)
        a('s_cbranch_scc1 attn_ok%d' % t)
        for n in range(16):
            a('v_mov_b32 %s, v24' % vr(S(t) + n))
        a.label('attn_ok%d' % t)

    def tmax(t, half):
        if t < 1:
            return
        for n in range(8 * half, 8 * half + 8, 2):
            m = 25 + ((n >> 1) & 1)
            if t == 1 and n < 4:
                a('v_max_f32 v%d, %s, %s' % (m, vr(S(t) + n), vr(S(t) + n + 1)))
            else:
                a('v_max3_f32 v%d, v%d, %s, %s' % (m, m, vr(S(t) + n), vr(S(t) + n + 1)))
    kread(0)
    kread(1)
    for t in range(9):
        if t + 2 < 9:
            kread(t + 2)
            a('s_waitcnt lgkmcnt(4)')
        elif t + 1 < 9:
            a('s_waitcnt lgkmcnt(2)')
        else:
            a('s_waitcnt lgkmcnt(0)')
        b = KB[t % 3]
        a('v_mfma_f32_32x32x16_bf16 %s, %s, %s, 0' % (vr(S(t), 16), vr(b, 4), vr(Q1, 4)))
        if t >= 3:
            tfix(t - 3)
            tmax(t - 3, 0)
        a('v_mfma_f32_32x32x16_bf16 %s, %s, %s, %s' % (vr(S(t), 16), vr(b + 4, 4), vr(Q2, 4), vr(S(t), 16)))
        if t >= 3:
            tmax(t - 3, 1)
    for t in (6, 7):
        tfix(t)
        tmax(t, 0)
        tmax(t, 1)
    VB = [224, 232, 240, 248]
    seq = [1, 2, 3, 4, 5, 6, 7, 0, 8]

    def vread(k):
        t = seq[k]
        b = VB[k % 4]
        for ks in range(2):
            for hf in range(2):
                a('ds_read_b64_tr_b16 %s, v22 offset:%d' % (vr(b + 4 * ks + 2 * hf, 2), (32 * t + 16 * ks + 8 * hf) * 16))
    vread(0)
    vread(1)
    vread(2)
    for n in range(16):
        a('v_cndmask_b32 %s, %s, %s, s[%d:%d]' % (vr(S(0) + n), vr(S(8) + n), vr(S(0) + n), MK + 2 * n, MK + 2 * n + 1))
    for n in range(0, 16, 2):
        m = 25 + ((n >> 1) & 1)
        a('v_max3_f32 v%d, v%d, %s, %s' % (m, m, vr(S(0) + n), vr(S(0) + n + 1)))
    a('v_max_f32 v25, v25, v26')
    a('v_mov_b32 v26, v25')
    a('s_nop 1')
    a('v_permlane32_swap_b32 v25, v26')
    a('s_nop 0')
    a('v_max_f32 v25, v25, v26')
    a('v_mul_f32 v26, s46, v25')
    pf = lambda t, m: a('v_pk_fma_f32 %s, %s, s[46:47], v[26:27] op_sel_hi:[1,0,0] neg_lo:[0,0,1] neg_hi:[0,0,1]' % (p2(S(t) + 2 * m), p2(S(t) + 2 * m)))
    cv = lambda t, m: a('v_cvt_pk_bf16_f32 %s, %s, %s' % (vr(S(t) + m), vr(S(t) + 2 * m), vr(S(t) + 2 * m + 1)))
    for m in range(8):
        pf(seq[0], m)

    def pv(k, half):
        t = seq[k]
        b = VB[k % 4]
        c = '0' if (k == 0 and half == 0) else vr(OA, 16)
        a('v_mfma_f32_32x32x16_bf16 %s, %s, %s, %s' % (vr(OA, 16), vr(b + 4 * half, 4), vr(S(t) + 4 * half, 4), c))

    def split(n):
        a('v_bfi_b32 %s, v%d, 0, %s' % (vr(S(8) + n), MB + n, vr(S(0) + n)))
        a('v_and_b32 %s, v%d, %s' % (vr(S(0) + n), MB + n, vr(S(0) + n)))
    wops = wo_dma_ops(a)
    pfb = wq_pf_ops(a, PFN) if LOCAL else []
    for k in range(8):
        t = seq[k]
        for m in range(8):
            if m in (2, 5) and wops:
                wops.pop(0)()
            if m == 7 and pfb and k < 7:
                for _ in range(-(-PFN // 7)):
                    if pfb:
                        pfb.pop(0)()
            if k == 7 and m == 0 and O_B and not WL:
                a('s_waitcnt vmcnt(0)')
                a('s_barrier')
            a('v_exp_f32 %s, %s' % (vr(S(t) + 2 * m), vr(S(t) + 2 * m)))
            if k < 7:
                pf(seq[k + 1], m)
            elif m >= 2:
                split(m - 2)
            if m == 1 and k >= 1:
                pv(k - 1, 1)
                if k + 2 < 9:
                    vread(k + 2)
            if m == 6:
                a('s_waitcnt lgkmcnt(%d)' % (4 * min(8 - k, 2)))
                pv(k, 0)
            a('v_exp_f32 %s, %s' % (vr(S(t) + 2 * m + 1), vr(S(t) + 2 * m + 1)))
            if m >= 1:
                cv(t, m - 1)
        a('s_nop 0')
        cv(t, 7)
    split(6)
    split(7)
    a('s_waitcnt lgkmcnt(0)')
    pv(8, 0)
    pv(7, 1)
    pv(8, 1)
    a('s_mov_b32 s66, s44')
    a('s_mov_b32 s67, s45')
    a('s_nop 4')
    o_store(a, OA, 66, 67, None, 0)
    if O_B and not WL:
        wfrag_reads(a)
    mstamp(a)
    a('s_waitcnt vmcnt(0)')
    a.label('O_pub')
    a('s_lshl_b32 s56, s10, 4')
    a('s_add_u32 s57, s56, s24')
    a('s_lshl_b32 s57, s57, 11')
    a('s_add_u32 s57, s57, 0x%x' % F_OC)
    a('s_lshr_b32 s58, s12, 1')
    a('s_add_u32 s58, s58, s56')
    a('s_lshl_b32 s58, s58, 11')
    a('s_add_u32 s59, s58, 0x%x' % F_XC)
    a('s_and_b32 s56, s12, 1')
    a('s_lshl_b32 s56, s56, 3')
    a('s_add_u32 s56, s56, s13')
    a('s_lshl_b32 s56, s56, 7')
    a('s_add_u32 s58, s58, s56')
    a('s_add_u32 s58, s58, 0x%x' % F_OC)
    a('s_waitcnt lgkmcnt(0)')
    a('s_barrier')
    mstamp(a)
    arrive2(a, 's57', 's62', 's25')
    if WL:
        wfrag_reads(a)
    if LOCAL:
        a('s_and_b32 s24, s2, 7')
        a('s_lshl_b32 s24, s24, 1')
        a('s_bfe_u32 s25, s2, 0x10003')
        a('s_add_u32 s24, s24, s25')
        a('s_lshr_b32 s25, s2, 4')
    if PT:
        a('s_mul_i32 s29, s24, %d' % (4 * 36864))
        a('s_mul_i32 s30, s10, 0x%x' % XS)
        a('s_add_u32 s29, s29, s30')
        a('s_add_u32 s29, s29, 0x%x' % OIMG)
        a('v_lshrrev_b32 v3, 4, v1')
        a('v_mul_u32_u24 v3, 36864, v3')
        a('s_cmp_eq_u32 s26, 1')
        a('s_cbranch_scc0 pt_o1')
        a('v_and_b32 v4, 15, v1')
        a('v_lshl_add_u32 v3, v4, 7, v3')
        a('s_lshl_b32 s30, s25, 11')
        a('s_add_u32 s29, s29, s30')
        ws_ld(a, 0, 1, 'v3', 's29')
        a.label('pt_o1')
        a('s_cmp_eq_u32 s26, 2')
        a('s_cbranch_scc0 pt_o2')
        a('v_bfe_u32 v4, v1, 1, 1')
        a('v_lshl_add_u32 v3, v4, 10, v3')
        a('v_and_b32 v4, 1, v1')
        a('v_lshl_add_u32 v3, v4, 7, v3')
        a('s_lshr_b32 s30, s25, 3')
        a('s_lshl_b32 s30, s30, 11')
        a('s_add_u32 s29, s29, s30')
        a('s_bfe_u32 s30, s25, 0x20001')
        a('s_lshl_b32 s30, s30, 8')
        a('s_add_u32 s29, s29, s30')
        a('s_add_u32 s29, s29, 32768')
        a('s_mov_b32 exec_lo, 0x000f000f')
        a('s_mov_b32 exec_hi, 0x000f000f')
        ws_ld(a, 0, 1, 'v3', 's29')
        a('s_mov_b64 exec, -1')
        a.label('pt_o2')
    a('v_and_b32 v3, 15, v1')
    a('v_lshrrev_b32 v4, 4, v1')
    a('s_lshl_b32 s29, s12, 2')
    a('s_add_u32 s29, s29, s27')
    a('v_and_b32 v6, 1, v4')
    a('v_lshrrev_b32 v7, 1, v4')
    a('v_lshl_add_u32 v6, v6, 1, v7')
    a('v_lshlrev_b32 v6, 8, v6')
    a('v_lshl_add_u32 v6, v3, 4, v6')
    a('v_lshlrev_b32 v7, 4, v3')
    a('v_lshl_add_u32 v7, v4, 3, v7')
    a('s_mul_i32 s60, s29, 18432')
    a('s_mul_i32 s61, s13, 2304')
    a('s_add_u32 s60, s60, s61')
    a('s_mul_i32 s61, s10, 0x%x' % XS)
    a('s_add_u32 s60, s60, s61')
    a('s_add_u32 s60, s60, 0x%x' % X0)
    a('s_lshl_b32 s61, s28, 10')
    a('s_add_u32 s61, s61, s60')
    ws_ld(a, 252, 4, 'v6', 's61')
    ws_ld(a, 12, 2, 'v7', 's60', 2048)
    a('s_xor_b32 s15, s14, 1')
    if LOCAL:
        a('s_add_u32 s56, s60, 0x%x' % XS)
        a('s_cmp_eq_u32 s28, 1')
        a('s_cselect_b32 s56, s56, 0x40000000')
        a('v_lshlrev_b32 v11, 7, v1')
        a('s_mov_b64 exec, 0x3ffff')
        ws_ld(a, 0, 1, 'v11', 's56', 0, 'sc1')
        a('s_mov_b64 exec, -1')
        a('s_cmp_lg_u32 s10, 0')
        a('s_cbranch_scc1 cen_e')
        a('v_lshlrev_b32 v29, 2, v1')
        a('s_mov_b64 exec, 0xff')
        a('s_mov_b32 s90, 0')
        a.label('cen')
        a('buffer_load_dword v27, v29, s[%d:%d], s9 offen sc1' % (SWS, SWS + 3))
        a('s_waitcnt vmcnt(0)')
        a('v_cmp_eq_u32 vcc, 32, v27')
        a('s_mov_b32 s91, 0')
        for q in range(8):
            a('v_readlane_b32 s56, v27, %d' % q)
            a('s_add_u32 s91, s91, s56')
        a('s_add_u32 s90, s90, 1')
        a('s_cmp_ge_u32 s90, %d' % SPIN_LIMIT)
        a('s_cbranch_scc1 cen_d')
        a('s_cmp_lt_u32 s91, 32')
        a('s_cbranch_scc1 cen')
        a.label('cen_d')
        a('s_cmp_lg_u32 vcc_lo, 0')
        a('s_cselect_b32 s17, 1, 0')
        a('s_mov_b64 exec, -1')
        a.label('cen_e')

    a('s_lshr_b32 s30, s29, 1')
    a('s_mul_i32 s30, s30, 36864')
    a('s_mul_i32 s31, s10, 0x%x' % XS)
    a('s_add_u32 s30, s30, s31')
    a('s_add_u32 s30, s30, 0x%x' % OIMG)
    a('s_and_b32 s31, s29, 1')
    a('s_lshl_b32 s62, s31, 6')
    a('s_add_u32 s62, s62, s30')
    a('s_lshl_b32 s31, s31, 10')
    a('s_add_u32 s30, s30, s31')
    a('s_lshl_b32 s31, s28, 11')
    a('s_add_u32 s62, s62, s31')
    a('s_add_u32 s62, s62, 32768')
    a('s_lshl_b32 s31, s28, 14')
    a('s_add_u32 s30, s30, s31')
    a('v_lshlrev_b32 v11, 2, v3')
    a('v_lshl_add_u32 v11, v4, 9, v11')
    a('s_mul_i32 s31, s26, 3072')
    a('s_add_u32 s31, s31, %d' % L_WX)
    a('v_add_u32 v14, s31, v5')
    a('s_xor_b32 s31, s26, 4')
    a('s_mul_i32 s31, s31, 3072')
    a('s_add_u32 s31, s31, %d' % L_WX)
    a('v_add_u32 v15, s31, v5')
    if WQ_PRE:
        wq_dma(a, 15, 0, WQ_PRE)
    a('s_waitcnt lgkmcnt(0)')
    mstamp(a)
    poll2(a, 's58', 's63')
    a('s_barrier')
    mstamp(a, True)
    vm = VM(a)

    def ol(t):
        if t == 8:
            for e2 in range(4):
                ws_ld(a, OF + 32 + e2, 1, 'v11', 's62', e2 * 128)
                vm.issue(t)
            return
        if t and t % 2 == 0:
            a('s_add_u32 s30, s30, 4096')
        ws_ld(a, OF + 4 * t, 4, 'v5', 's30', (t & 1) * 2048)
        vm.issue(t)
    for t in range(OD):
        ol(t)
    for t in range(9):
        if t == 0:
            mstamp(a, 2)
        a('s_waitcnt vmcnt(%d)' % vm.cnt(t))
        if t in (0, 8):
            mstamp(a, 2)
        for k, q in enumerate([2, 3, 4, 0, 1]):
            a('v_mfma_f32_16x16x32_bf16 %s, %s, %s, %s' % (vr(CA + 4 * q, 4), vr(WV + 20 * t + 4 * q, 4), vr(OF + 4 * t, 4), '0' if t == 0 else vr(CA + 4 * q, 4)))
            if k == 0 and t + OD < 9:
                ol(t + OD)
    a('s_nop 0')
    for i in range(4):
        a('v_lshlrev_b32 v%d, 16, v%d' % (40 + 2 * i, 252 + i))
        a('v_and_b32 v%d, 0xffff0000, v%d' % (41 + 2 * i, 252 + i))
    for q in (2, 3, 4):
        a('ds_write_b128 v14, %s offset:%d' % (vr(CA + 4 * q, 4), (q - 2) * 1024))
    for i in range(2):
        a('v_lshlrev_b32 v%d, 16, v%d' % (48 + 2 * i, 12 + i))
        a('v_and_b32 v%d, 0xffff0000, v%d' % (49 + 2 * i, 12 + i))
    a('s_add_u32 s60, s60, 0x%x' % XS)
    a('s_add_u32 s61, s61, 0x%x' % XS)
    a('s_waitcnt lgkmcnt(0)')
    mstamp(a, 2)
    a('s_barrier')
    mstamp(a, 2)
    for q in range(3):
        a('ds_read_b128 %s, v15 offset:%d' % (vr(64 + 4 * q, 4), q * 1024))
    a('s_waitcnt lgkmcnt(1)')
    for r in range(0, 8, 2):
        a('v_pk_add_f32 %s, %s, %s' % (p2(CA + r), p2(CA + r), p2(64 + r)))
    for i in range(4):
        a('v_cvt_pk_bf16_f32 v%d, v%d, v%d' % (80 + i, CA + 2 * i, CA + 2 * i + 1))
    a('s_waitcnt lgkmcnt(0)')
    a('v_pk_add_f32 %s, %s, %s' % (p2(CA + 16), p2(CA + 16), p2(72)))
    a('v_permlane16_swap_b32 v80, v82')
    a('v_permlane16_swap_b32 v81, v83')
    a('v_pk_add_f32 %s, %s, %s' % (p2(CA + 18), p2(CA + 18), p2(74)))
    for i in range(4):
        a('v_lshlrev_b32 v%d, 16, v%d' % (84 + 2 * i, 80 + i))
        a('v_and_b32 v%d, 0xffff0000, v%d' % (85 + 2 * i, 80 + i))
    a('v_cvt_pk_bf16_f32 v92, v%d, v%d' % (CA + 16, CA + 17))
    a('v_cvt_pk_bf16_f32 v93, v%d, v%d' % (CA + 18, CA + 19))
    for i in range(0, 8, 2):
        a('v_pk_add_f32 %s, %s, %s' % (p2(40 + i), p2(40 + i), p2(84 + i)))
    for i in range(2):
        a('v_lshlrev_b32 v%d, 16, v%d' % (94 + 2 * i, 92 + i))
        a('v_and_b32 v%d, 0xffff0000, v%d' % (95 + 2 * i, 92 + i))
    for i in range(4):
        a('v_cvt_pk_bf16_f32 v%d, v%d, v%d' % (24 + i, 40 + 2 * i, 41 + 2 * i))
    a('v_pk_add_f32 v[48:49], v[48:49], v[94:95]')
    a('v_pk_add_f32 v[50:51], v[50:51], v[96:97]')
    a('v_cvt_pk_bf16_f32 v52, v48, v49')
    a('v_cvt_pk_bf16_f32 v53, v50, v51')
    a('v_mov_b32 v54, v52')
    a('v_mov_b32 v55, v53')
    a('v_lshlrev_b32 v7, 4, v3')
    a('s_nop 0')
    a('v_permlane16_swap_b32 v52, v54')
    a('v_permlane16_swap_b32 v53, v55')
    a('s_cmp_eq_u32 s10, 3')
    a('s_cbranch_scc1 W_final')
    a('s_mov_b32 s16, s17')
    a('s_cmp_eq_u32 s28, 0')
    a('s_cselect_b32 s56, -1, 0')

    def emitx(fl):
        _uid[0] += 1
        ws_st(a, 24, 4, 'v6', 's61', 0, fl)
        a('s_cmp_eq_u32 s28, 0')
        a('s_cbranch_scc0 xs%d' % _uid[0])
        a('s_mov_b64 exec, 0xffff')
        ws_st(a, 52, 4, 'v7', 's60', 2048, fl)
        a('s_mov_b64 exec, -1')
        a.label('xs%d' % _uid[0])
    st_mode(a, emitx)
    a.label('W_pub')
    mstamp(a, 2)
    wq_dma(a, 15, WQ_PRE, 16)
    mstamp(a, True)
    a('s_waitcnt vmcnt(%d)' % (16 - WQ_PRE))
    a('s_barrier')
    a('s_and_b32 s65, s12, 1')
    a('s_lshl_b32 s65, s65, 3')
    a('s_add_u32 s65, s65, s13')
    arrive2(a, 's59', 's64', 's65')
    if PT:
        a('s_cmp_eq_u32 s28, 1')
        a('s_cbranch_scc0 pt_x')
        a('v_lshlrev_b32 v3, 7, v1')
        a('s_mov_b64 exec, 0x3ffff')
        ws_ld(a, 0, 1, 'v3', 's60')
        a('s_mov_b64 exec, -1')
        a.label('pt_x')
    a('s_add_u32 s10, s10, 1')
    a('s_branch L_top')
    a.label('W_final')
    a('v_mul_u32_u24 v8, 1152, v3')
    a('v_lshrrev_b32 v9, 8, v6')
    a('v_lshl_add_u32 v9, v9, 4, v8')
    a('s_mul_i32 s60, s29, 18432')
    a('s_mul_i32 s61, s13, 144')
    a('s_add_u32 s60, s60, s61')
    a('s_lshl_b32 s61, s28, 6')
    a('s_add_u32 s61, s61, s60')
    a('buffer_store_dwordx4 v[24:27], v9, s[%d:%d], s61 offen' % (SOUT, SOUT + 3))
    a('s_cmp_eq_u32 s28, 0')
    a('s_cbranch_scc0 W_done')
    a('s_mov_b64 exec, 0xffff')
    a('buffer_store_dwordx4 v[52:55], v8, s[%d:%d], s60 offen offset:128' % (SOUT, SOUT + 3))
    a('s_mov_b64 exec, -1')
    a.label('W_done')
    if STAMP:
        mstamp(a)
        a('s_waitcnt vmcnt(0)')
        mstamp(a)
        a('s_memrealtime s[94:95]')
        a('s_waitcnt lgkmcnt(0)')
        a('v_writelane_b32 v2, s94, 63')
        a('s_lshl_b32 s56, s2, 3')
        a('s_add_u32 s56, s56, s26')
        a('s_lshl_b32 s56, s56, 8')
        a('s_add_u32 s56, s56, 0x%x' % STAMP_OFF)
        a('v_lshlrev_b32 v3, 2, v1')
        ws_st(a, 2, 1, 'v3', 's56', 0, '')
    a.label('mega_end')
    a('s_endpgm')
    return [('mega_kernel', 256, 100)]


def build():
    a = Asm()
    ks = []
    global STAMP
    st = STAMP
    STAMP = False
    ks += gen_prep(a)
    STAMP = st
    ks += gen_mega(a)
    launches = [
        ('prep_kernel', NPREP, 192, 28416),
        ('mega_kernel', 256, 512, MEGA_LDS),
    ]
    out = []
    for (k, g, b, l) in launches:
        out.append('; @launch kernel=%s grid=(%d,1,1) block=(%d,1,1) lds=%d' % (k, g, b, l))
    out.append('.amdgcn_target "amdgcn-amd-amdhsa--gfx950"')
    out.append('.text')
    out += a.L
    out.append('code_end:')
    out.append('    s_endpgm')
    out.append('.section .rodata,"a"')
    for (k, v, s) in ks:
        out.append('.p2align 6')
        out.append(kdesc(k, v, s))
    return '\n'.join(out) + '\n'


if __name__ == '__main__':
    if len(sys.argv) > 2 and sys.argv[2] == 'stamp':
        STAMP = True
    dst = sys.argv[1] if len(sys.argv) > 1 else 'cdna_kernels/%s.s' % NAME
    open(dst, 'w').write(build())
    print('wrote', dst)
```

```python
import sys, struct, os

NAME = 'interleave_layers__linear_kernel_hedgehog__sliding_block__prompt'

WQA = 0x000000
WQB = 0x200000
WQ_SZ = 16 * 18 * 7 * 1024
WOA = 0x400000
WOB = 0x500000
WO_SZ = 8 * 18 * 5 * 1024
CSA = 0x600000
CSB = 0x608000
CS_SZ = 16 * 3 * 448
TPHI = 0x610000
TPHI_SZ = 16 * 15 * 1024
KV1 = 0x660000
KV3 = 0x660000 + 32 * 2944
KV_HEAD = 2944
KV_SZ = 32 * KV_HEAD
X1 = 0x700000
X2 = 0x940000
X3 = 0xB80000
X_SZ = 2048 * 1152
PHIQ = 0xE00000
PHIQ_SZ = 64 * 32 * 2304
REC = 0x1300000
REC_HEAD = 262144
REC_SZ = 32 * REC_HEAD
R_Q0, R_K0, R_K1, R_V0, R_V1, R_VT, R_QT, R_KT = 0, 65536, 98304, 131072, 163840, 196608, 229376, 245760
X0 = 0x2400000
XS = 0x240000
FL = 0x700000
FL_SZ = 0x70000
WS_USED = 0x5000000
OIMG = 0x3000000
OIMG_SZ = 64 * 36864

LOG2E = 1.4426950408889634


def f32bits(x):
    return struct.unpack('<I', struct.pack('<f', x))[0]


class Asm:
    def __init__(self):
        self.L = []

    def __call__(self, s):
        self.L.append('    ' + s)

    def label(self, l):
        self.L.append(l + ':')

    def c(self, s):
        self.L.append('    ; ' + s)

    def raw(self, s):
        self.L.append(s)


class VM:
    def __init__(self, a):
        self.a = a
        self.n = 0
        self.tags = {}

    def issue(self, tag=None):
        self.n += 1
        if tag is not None:
            self.tags[tag] = self.n

    def cnt(self, tag):
        return self.n - self.tags[tag]

    def wait(self, tag):
        self.a('s_waitcnt vmcnt(%d)' % self.cnt(tag))


def vr(b, n=1):
    return 'v%d' % b if n == 1 else 'v[%d:%d]' % (b, b + n - 1)


def sr(b, n=1):
    return 's%d' % b if n == 1 else 's[%d:%d]' % (b, b + n - 1)


P_AX, P_AWQKV, P_AWPHI, P_AWO, P_BX, P_BWQKV, P_BWO, P_OUT, P_DBG, P_WS = 4, 6, 8, 10, 12, 14, 16, 18, 20, 22


def load_kernargs(a):
    a('s_load_dwordx16 s[4:19], s[0:1], 0')
    a('s_load_dwordx4 s[20:23], s[0:1], 64')


def srd(a, d, base, off, size):
    if off == 0:
        a('s_mov_b32 s%d, s%d' % (d, base))
        a('s_mov_b32 s%d, s%d' % (d + 1, base + 1))
    else:
        o = off if isinstance(off, str) else '0x%x' % off
        a('s_add_u32 s%d, s%d, %s' % (d, base, o))
        a('s_addc_u32 s%d, s%d, 0' % (d + 1, base + 1))
    a('s_mov_b32 s%d, 0x%x' % (d + 2, size))
    a('s_mov_b32 s%d, 0x00020000' % (d + 3))


def kdesc(name, vgpr, sgpr=96):
    acc = (vgpr + 3) // 4 * 4
    return '''.amdhsa_kernel %s
  .amdhsa_next_free_vgpr %d
  .amdhsa_next_free_sgpr %d
  .amdhsa_accum_offset %d
  .amdhsa_group_segment_fixed_size 0
  .amdhsa_kernarg_size 80
  .amdhsa_user_sgpr_count 2
  .amdhsa_user_sgpr_kernarg_segment_ptr 1
  .amdhsa_system_sgpr_workgroup_id_x 1
.end_amdhsa_kernel
''' % (name, vgpr, sgpr, acc)


def entry(a, name):
    a.raw('.p2align 8')
    a.raw('.globl %s' % name)
    a.raw('.type %s,@function' % name)
    a.label(name)


STAMP = False
STAMP_OFF = 0x4000000
_stamp_n = [0]
STAMP_REGS = list(range(72, 94))


def stamp(a):
    if not STAMP:
        return
    n = _stamp_n[0]
    a('s_memtime s[94:95]')
    a('s_waitcnt lgkmcnt(0)')
    a('s_mov_b32 s%d, s94' % STAMP_REGS[n])
    _stamp_n[0] += 1


def stamp_rt(a):
    if not STAMP:
        return
    n = _stamp_n[0]
    a('s_memrealtime s[94:95]')
    a('s_waitcnt lgkmcnt(0)')
    a('s_mov_b32 s%d, s94' % STAMP_REGS[n])
    _stamp_n[0] += 1


def stamp_flush(a, kid):
    if not STAMP:
        return
    a('s_getreg_b32 s%d, hwreg(HW_REG_XCC_ID)' % STAMP_REGS[_stamp_n[0]])
    n = _stamp_n[0] + 1
    _stamp_n[0] = 0
    a('s_mov_b64 exec, 1')
    a('s_add_u32 s68, s%d, 0x%x' % (P_WS, STAMP_OFF + kid * 0x100000))
    a('s_addc_u32 s69, s%d, 0' % (P_WS + 1))
    a('s_mov_b32 s70, 0x100000')
    a('s_mov_b32 s71, 0x00020000')
    a('s_lshl_b32 s94, s2, 4')
    a('s_add_u32 s94, s94, s26')
    a('s_lshl_b32 s94, s94, 7')
    a('v_mov_b32 v1, 0')
    for i in range(n):
        a('v_mov_b32 v2, s%d' % STAMP_REGS[i])
        a('buffer_store_dword v2, v1, s[68:71], s94 offen offset:%d' % (4 * i))
        a('s_nop 1')


def bf16r(a, v, tmp):
    a('v_cvt_pk_bf16_f32 %s, %s, %s' % (vr(tmp), vr(v), vr(v)))
    a('v_lshlrev_b32 %s, 16, %s' % (vr(v), vr(tmp)))


def magic(dv, maxv):
    for sh in range(4, 24):
        mul = (1 << sh) // dv + 1
        if all((x * mul) >> sh == x // dv for x in range(maxv + 1)):
            return mul, sh
    raise ValueError


def sdiv(a, dq, dr, src, dv, maxv):
    mul, sh = magic(dv, maxv)
    a('s_mul_i32 s%d, s%d, %d' % (dq, src, mul))
    a('s_lshr_b32 s%d, s%d, %d' % (dq, dq, sh))
    a('s_mul_i32 s%d, s%d, %d' % (dr, dq, dv))
    a('s_sub_u32 s%d, s%d, s%d' % (dr, src, dr))


NPREP = 460
CODEPF = int(os.environ.get('CODEPF', 1))


def gen_prep(a):
    entry(a, 'prep_kernel')
    a('s_cmp_ge_u32 s2, %d' % NPREP)
    a('s_cbranch_scc1 prep_end')
    load_kernargs(a)
    a('v_and_b32 v1, 63, v0')
    a('v_lshrrev_b32 v2, 6, v0')
    a('v_and_b32 v3, 7, v1')
    a('v_readfirstlane_b32 s24, v2')
    a('v_lshrrev_b32 v4, 3, v1')
    a('s_waitcnt lgkmcnt(0)')
    stamp(a)
    stamp_rt(a)
    if STAMP:
        a('s_mov_b32 s74, s72')
    if CODEPF:
        a('s_cmp_ge_u32 s2, 24')
        a('s_cbranch_scc1 prep_nocpf')
        a('s_getpc_b64 s[56:57]')
        a.label('prep_pc')
        a('s_lshr_b32 s58, s2, 3')
        a('s_mul_i32 s58, s58, 3')
        a('s_add_u32 s58, s58, s24')
        a('s_lshl_b32 s58, s58, 13')
        a('v_lshlrev_b32 v62, 7, v1')
        a('v_add_u32 v62, s58, v62')
        a('v_cmp_gt_u32 vcc, code_end-prep_pc-4, v62')
        a('s_and_saveexec_b64 s[58:59], vcc')
        a('s_cbranch_execz prep_cpf_skip')
        a('global_load_dword v63, v62, s[56:57]')
        a.label('prep_cpf_skip')
        a('s_mov_b64 exec, -1')
        a.label('prep_nocpf')
    a('s_cmp_ge_u32 s2, 332')
    a('s_cbranch_scc1 prep_x')
    a('s_cmp_ge_u32 s2, 308')
    a('s_cbranch_scc1 prep_zero')
    a('s_cmp_ge_u32 s2, 296')
    a('s_cbranch_scc1 prep_spec')
    a('s_cmp_ge_u32 s2, 216')
    a('s_cbranch_scc1 prep_phi')
    a('s_cmp_ge_u32 s2, 162')
    a('s_cbranch_scc1 prep_wo')
    a('s_cmp_ge_u32 s2, 81')
    a('s_cselect_b32 s32, s%d, s%d' % (P_BWQKV, P_AWQKV))
    a('s_cselect_b32 s33, s%d, s%d' % (P_BWQKV + 1, P_AWQKV + 1))
    a('s_cselect_b32 s25, 0x%x, 0' % (WQB - WQA))
    a('s_cselect_b32 s29, 0x%x, 0' % (CSB - CSA))
    a('s_cselect_b32 s26, 81, 0')
    a('s_add_u32 s29, s29, 0x%x' % CSA)
    a('s_mov_b32 s34, %d' % (576 * 3456))
    a('s_mov_b32 s35, 0x00020000')
    srd(a, 36, P_WS, 's25', WQ_SZ)
    srd(a, 52, P_WS, 's29', CS_SZ)
    a('s_sub_u32 s26, s2, s26')
    sdiv(a, 27, 28, 26, 3, 80)
    sdiv(a, 29, 30, 27, 9, 26)
    a('s_mul_i32 s31, s28, 3')
    a('s_add_u32 s31, s31, s24')
    for e in range(8):
        a('s_mov_b32 s%d, %d' % (40 + e, e * 3456))
    a('s_lshl_b32 s30, s30, 6')
    a('v_lshl_add_u32 v5, v3, 3, s30')
    a('s_lshl_b32 s48, s31, 3')
    a('v_add_u32 v6, s48, v4')
    a('v_mul_u32_u24 v7, %d, v6' % (8 * 3456))
    a('v_lshl_add_u32 v7, v5, 1, v7')
    a('s_mul_i32 s48, s29, 1152')
    a('v_add_u32 v7, s48, v7')
    for e in range(8):
        a('buffer_load_dwordx4 v[%d:%d], v7, s[32:35], s%d offen' % (16 + 4 * e, 19 + 4 * e, 40 + e))
    a('v_add_u32 v10, s30, v1')
    a('v_mul_u32_u24 v11, 3641, v10')
    a('v_lshrrev_b32 v11, 16, v11')
    a('v_mul_u32_u24 v12, 18, v11')
    a('v_sub_u32 v12, v10, v12')
    a('v_and_b32 v13, 1, v11')
    a('s_lshl_b32 s48, s29, 11')
    a('s_sub_u32 s48, s48, 2048')
    a('s_cmp_eq_u32 s29, 0')
    a('s_cselect_b32 s48, 92160, s48')
    a('s_mov_b32 s50, 5120')
    a('s_cselect_b32 s50, 2048, s50')
    a('s_lshl_b32 s49, s29, 6')
    a('s_add_u32 s49, s49, %d' % (4096 - 256))
    a('v_cmp_gt_u32 vcc, 16, v12')
    a('v_lshl_add_u32 v14, v13, 5, s49')
    a('v_lshl_add_u32 v13, v13, 10, s48')
    a('v_lshrrev_b32 v11, 1, v11')
    a('v_cndmask_b32 v13, v14, v13, vcc')
    a('v_mov_b32 v14, 5120')
    a('v_mov_b32 v15, s50')
    a('s_mov_b32 s50, 129024')
    a('v_cndmask_b32 v14, v14, v15, vcc')
    a('v_mul_u32_u24 v11, s50, v11')
    a('v_lshl_add_u32 v13, v12, 4, v13')
    a('v_add_u32 v13, v13, v11')
    a('s_lshl_b32 s62, s31, 1')
    a('v_mad_u32_u24 v48, v14, s62, v13')
    a('v_add_u32 v51, v48, v14')
    a('s_mov_b32 s62, 0')
    a('s_mov_b32 s63, 0')
    a('s_mov_b32 s51, 1')
    a('s_branch prep_tr')
    a.label('prep_wo')
    a('s_cmp_ge_u32 s2, 189')
    a('s_cselect_b32 s32, s%d, s%d' % (P_BWO, P_AWO))
    a('s_cselect_b32 s33, s%d, s%d' % (P_BWO + 1, P_AWO + 1))
    a('s_cselect_b32 s25, 0x%x, 0' % (WOB - WOA))
    a('s_cselect_b32 s26, 27, 0')
    a('s_add_u32 s25, s25, 0x%x' % WOA)
    a('s_add_u32 s26, s26, 162')
    a('s_mov_b32 s34, %d' % (576 * 1152))
    a('s_mov_b32 s35, 0x00020000')
    srd(a, 36, P_WS, 's25', WO_SZ)
    srd(a, 52, P_WS, CSA, CS_SZ)
    a('s_sub_u32 s26, s2, s26')
    sdiv(a, 27, 28, 26, 3, 26)
    a('s_mul_i32 s31, s28, 3')
    a('s_add_u32 s31, s31, s24')
    a('s_lshl_b32 s48, s31, 3')
    a('v_add_u32 v6, s48, v4')
    a('s_cmp_eq_u32 s31, 8')
    a('s_cbranch_scc1 prep_b_tail')
    for e, o in enumerate([0, 1, 2, 3, 8, 9, 10, 11]):
        a('s_mov_b32 s%d, %d' % (40 + e, o * 1152))
    a('v_lshrrev_b32 v7, 1, v6')
    a('v_mul_u32_u24 v7, 18, v7')
    a('v_and_b32 v8, 1, v6')
    a('v_lshl_add_u32 v7, v8, 2, v7')
    a('s_branch prep_b_row')
    a.label('prep_b_tail')
    for e, o in enumerate([0, 1, 18, 19, 36, 37, 54, 55]):
        a('s_mov_b32 s%d, %d' % (40 + e, o * 1152))
    a('v_mul_u32_u24 v7, 72, v4')
    a('v_add_u32 v7, 16, v7')
    a.label('prep_b_row')
    a('v_mul_u32_u24 v7, 1152, v7')
    a('v_lshl_add_u32 v7, v3, 4, v7')
    a('s_lshl_b32 s30, s27, 7')
    a('v_add_u32 v7, s30, v7')
    for e in range(8):
        a('buffer_load_dwordx4 v[%d:%d], v7, s[32:35], s%d offen' % (16 + 4 * e, 19 + 4 * e, 40 + e))
    a('s_lshl_b32 s30, s27, 6')
    a('v_add_u32 v8, s30, v1')
    a('v_mul_u32_u24 v9, 911, v8')
    a('v_lshrrev_b32 v9, 16, v9')
    a('v_mul_u32_u24 v10, 72, v9')
    a('v_sub_u32 v8, v8, v10')
    a('s_mov_b32 s30, 92160')
    a('v_mul_u32_u24 v9, s30, v9')
    a('v_lshrrev_b32 v10, 4, v8')
    a('v_lshl_add_u32 v9, v10, 10, v9')
    a('v_and_b32 v8, 15, v8')
    a('v_lshl_add_u32 v48, v8, 4, v9')
    a('v_mov_b32 v51, v48')
    a('s_mul_i32 s62, s31, 10240')
    a('s_add_u32 s63, s62, 5120')
    a('s_mov_b32 s51, 0')
    a.label('prep_tr')
    a('s_mul_i32 s30, s24, 9216')
    a('v_mul_u32_u24 v49, 1152, v4')
    a('v_mul_u32_u24 v50, 144, v3')
    a('v_add3_u32 v49, v49, v50, s30')
    a('v_add_u32 v50, v1, v4')
    a('v_lshlrev_b32 v50, 4, v50')
    a('v_add_u32 v50, s30, v50')
    a('s_mov_b32 s30, 0x05040100')
    a('s_mov_b32 s31, 0x07060302')
    a('s_mov_b32 s26, 0x3f803f80')
    a('s_waitcnt vmcnt(0)')
    stamp(a)
    for c in range(8):
        p, o = c >> 1, c & 1
        ob = 64 + 4 * c
        for q in range(4):
            a('v_perm_b32 v%d, v%d, v%d, s%d' % (ob + q, 16 + 4 * (2 * q + 1) + p, 16 + 4 * (2 * q) + p, 30 + o))
        a('ds_write_b128 v49, v[%d:%d] offset:%d' % (ob, ob + 3, 16 * c))
    a('s_waitcnt lgkmcnt(0)')
    for kg in range(8):
        a('ds_read_b128 v[%d:%d], v50 offset:%d' % (16 + 4 * kg, 19 + 4 * kg, kg * 1152))
    for kg in range(8):
        a('s_waitcnt lgkmcnt(%d)' % (7 - kg))
        a('buffer_store_dwordx4 v[%d:%d], v%d, s[36:39], s%d offen offset:%d' % (16 + 4 * kg, 19 + 4 * kg, 48 if kg < 4 else 51, 62 + (kg >> 2), (kg & 3) * 256))
    a('s_cmp_eq_u32 s51, 0')
    a('s_cbranch_scc1 prep_end')
    for n in range(32):
        a('v_dot2_f32_bf16 v%d, v%d, s26, %s' % (52 + (n & 3), 16 + n, '0' if n < 4 else 'v%d' % (52 + (n & 3))))
    a('v_lshlrev_b32 v10, 2, v0')
    a('s_nop 1')
    a('v_add_f32 v52, v52, v53')
    a('v_add_f32 v54, v54, v55')
    a('v_add_f32 v52, v52, v54')
    a('ds_write_b32 v10, v52 offset:27648')
    a('s_waitcnt lgkmcnt(0)')
    a('s_barrier')
    a('s_cmp_lg_u32 s24, 0')
    a('s_cbranch_scc1 prep_end')
    for i in range(3):
        a('ds_read_b32 v%d, v10 offset:%d' % (16 + i, 27648 + i * 256))
    a('s_mul_i32 s30, s29, 9')
    a('s_sub_u32 s30, s27, s30')
    a('s_lshl_b32 s30, s30, 6')
    a('s_lshl_b32 s48, s29, 9')
    a('s_lshl_b32 s49, s29, 6')
    a('s_add_u32 s49, s49, %d' % (96 * 16 - 256))
    a('s_mov_b32 s50, %d' % (3 * 448 * 4))
    a('v_add_u32 v10, s30, v1')
    a('s_mul_i32 s30, s28, %d' % (448 * 4))
    a('v_mov_b32 v8, s30')
    a('v_mul_u32_u24 v11, 3641, v10')
    a('v_lshrrev_b32 v11, 16, v11')
    a('v_mul_u32_u24 v12, 18, v11')
    a('v_sub_u32 v12, v10, v12')
    a('v_and_b32 v13, 1, v11')
    a('v_cmp_gt_u32 vcc, 16, v12')
    a('v_lshl_add_u32 v14, v13, 5, s49')
    a('v_lshl_add_u32 v13, v13, 8, s48')
    a('v_lshrrev_b32 v11, 1, v11')
    a('v_cndmask_b32 v13, v14, v13, vcc')
    a('v_mul_u32_u24 v11, s50, v11')
    a('v_lshl_add_u32 v13, v12, 4, v13')
    a('v_add3_u32 v13, v13, v11, v8')
    a('v_lshrrev_b32 v13, 2, v13')
    a('s_waitcnt lgkmcnt(0)')
    a('v_add_f32 v16, v16, v17')
    a('v_add_f32 v16, v16, v18')
    a('buffer_store_dword v16, v13, s[52:55], 0 offen')
    a('s_branch prep_end')
    a.label('prep_phi')
    srd(a, 32, P_AWPHI, 0, 32 * 324 * 2)
    srd(a, 36, P_WS, TPHI, TPHI_SZ)
    a('s_sub_u32 s26, s2, 216')
    sdiv(a, 27, 29, 26, 5, 79)
    a('s_mov_b32 s28, s24')
    a('v_and_b32 v2, 3, v1')
    a('v_bfe_u32 v3, v1, 2, 1')
    a('v_bfe_u32 v4, v1, 3, 1')
    a('v_lshrrev_b32 v5, 4, v1')
    a('v_lshlrev_b32 v6, 15, v3')
    a('v_lshl_or_b32 v6, v6, 16, v6')
    a('v_cmp_eq_u32 s[50:51], 0, v4')
    a('s_lshl_b32 s30, s29, 2')
    a('v_add_u32 v7, s30, v2')
    a('v_lshlrev_b32 v8, 2, v5')
    a('s_cmp_eq_u32 s28, 0')
    a('s_cbranch_scc1 prep_phi_d0')
    a('v_mov_b32 v8, 16')
    a.label('prep_phi_d0')
    a('s_lshl_b32 s30, s27, 1')
    a('v_add_u32 v9, s30, v4')
    a('v_mul_u32_u24 v9, 324, v9')
    a('v_mul_u32_u24 v8, 18, v8')
    a('v_add3_u32 v9, v9, v8, v7')
    a('v_lshlrev_b32 v9, 1, v9')
    a('v_mov_b32 v10, 0x7fff0000')
    a('v_cmp_gt_u32 vcc, 18, v7')
    a('s_nop 1')
    a('v_cndmask_b32 v9, v10, v9, vcc')
    a('s_cmp_eq_u32 s28, 0')
    a('s_cbranch_scc1 prep_phi_ld')
    a('s_sub_u32 s30, s28, 1')
    a('v_cmp_eq_u32 vcc, s30, v5')
    a('s_nop 1')
    a('v_cndmask_b32 v9, v10, v9, vcc')
    a.label('prep_phi_ld')
    for i in range(4):
        a('buffer_load_ushort v%d, v9, s[32:35], 0 offen offset:%d' % (16 + i, i * 36))
    a('s_waitcnt vmcnt(0)')
    a('v_lshl_or_b32 v16, v17, 16, v16')
    a('v_lshl_or_b32 v18, v19, 16, v18')
    a('v_xor_b32 v16, v16, v6')
    a('v_xor_b32 v18, v18, v6')
    a('v_cndmask_b32 v20, 0, v16, s[50:51]')
    a('s_cmp_eq_u32 s28, 0')
    a('s_cbranch_scc0 prep_phi_tb')
    a('v_cndmask_b32 v21, 0, v18, s[50:51]')
    a('v_cndmask_b32 v22, v16, 0, s[50:51]')
    a('v_cndmask_b32 v23, v18, 0, s[50:51]')
    a('s_branch prep_phi_st')
    a.label('prep_phi_tb')
    a('v_cndmask_b32 v21, v16, 0, s[50:51]')
    a('v_mov_b32 v22, 0')
    a('v_mov_b32 v23, 0')
    a.label('prep_phi_st')
    a('s_mul_i32 s30, s27, 15')
    a('s_mul_i32 s31, s28, 5')
    a('s_add_u32 s30, s30, s31')
    a('s_add_u32 s30, s30, s29')
    a('s_lshl_b32 s30, s30, 10')
    a('v_lshlrev_b32 v11, 4, v1')
    a('buffer_store_dwordx4 v[20:23], v11, s[36:39], s30 offen')
    a('s_branch prep_end')
    a.label('prep_spec')
    a('s_sub_u32 s26, s2, 296')
    a('s_cmp_ge_u32 s26, 6')
    a('s_cselect_b32 s25, 0x%x, 0' % (WQB - WQA))
    a('s_cselect_b32 s29, 0x%x, 0' % (CSB - CSA))
    a('s_cselect_b32 s27, 6, 0')
    a('s_add_u32 s29, s29, 0x%x' % CSA)
    srd(a, 36, P_WS, 's25', WQ_SZ)
    srd(a, 52, P_WS, 's29', CS_SZ)
    a('s_sub_u32 s26, s26, s27')
    a('s_mul_i32 s26, s26, 192')
    a('v_add_u32 v2, s26, v0')
    a('v_lshrrev_b32 v3, 2, v2')
    a('v_mul_u32_u24 v4, 3641, v3')
    a('v_lshrrev_b32 v4, 16, v4')
    a('v_mul_u32_u24 v6, 18, v4')
    a('v_sub_u32 v6, v3, v6')
    a('s_mov_b32 s28, 129024')
    a('v_mul_u32_u24 v4, s28, v4')
    a('v_mul_u32_u24 v6, 5120, v6')
    a('v_add_u32 v4, v4, v6')
    a('v_and_b32 v5, 3, v2')
    a('v_lshl_add_u32 v4, v5, 8, v4')
    a('v_add_u32 v4, %d, v4' % (4096 + 192))
    for i in range(4):
        a('v_mov_b32 v%d, 0x3f803f80' % (8 + i))
        a('v_mov_b32 v%d, 0' % (12 + i))
    a('buffer_store_dwordx4 v[8:11], v4, s[36:39], 0 offen')
    for i in range(1, 4):
        a('buffer_store_dwordx4 v[12:15], v4, s[36:39], 0 offen offset:%d' % (16 * i))
    a('v_mul_u32_u24 v6, 448, v2')
    a('v_add_u32 v6, 432, v6')
    a('buffer_store_dwordx4 v[12:15], v6, s[52:55], 0 offen')
    a('s_branch prep_end')
    a.label('prep_zero')
    srd(a, 36, P_WS, KV1, 2 * KV_SZ)
    a('s_sub_u32 s27, s2, 308')
    a('s_mul_i32 s27, s27, 9216')
    a('v_lshlrev_b32 v2, 4, v0')
    a('v_add_u32 v2, s27, v2')
    for i in range(4):
        a('v_mov_b32 v%d, 0' % (4 + i))
    for k in range(3):
        a('s_mov_b32 s28, %d' % (k * 3072))
        a('buffer_store_dwordx4 v[4:7], v2, s[36:39], s28 offen')
    srd(a, 36, P_WS, FL, FL_SZ)
    a('s_sub_u32 s27, s2, 308')
    a('s_mul_i32 s27, s27, %d' % (7 * 3072))
    a('v_lshlrev_b32 v2, 4, v0')
    for k in range(7):
        a('buffer_store_dwordx4 v[4:7], v2, s[36:39], s27 offen')
        a('s_add_u32 s27, s27, 3072')
    a('s_branch prep_end')
    a.label('prep_x')
    srd(a, 32, P_AX, 0, X_SZ)
    srd(a, 36, P_WS, X0, X_SZ)
    a('s_sub_u32 s26, s2, 332')
    a('s_and_b32 s27, s26, 3')
    a('s_lshl_b32 s27, s27, 5')
    a('s_lshr_b32 s26, s26, 2')
    a('s_add_u32 s26, s26, s27')
    a('v_lshrrev_b32 v2, 2, v1')
    a('v_and_b32 v3, 3, v1')
    a('v_mul_u32_u24 v4, 1152, v2')
    a('v_lshl_add_u32 v4, v3, 4, v4')
    a('s_mul_i32 s27, s26, 18432')
    a('s_mul_i32 s28, s24, 384')
    a('s_add_u32 s28, s28, s27')
    for t in range(6):
        a('buffer_load_dwordx4 v[%d:%d], v4, s[32:35], s28 offen offset:%d' % (16 + 4 * t, 19 + 4 * t, t * 64))
    a('v_lshlrev_b32 v5, 4, v2')
    a('v_lshl_add_u32 v5, v3, 8, v5')
    a('s_mul_i32 s28, s24, 6144')
    a('v_add_u32 v5, s28, v5')
    a('v_lshlrev_b32 v6, 4, v1')
    a('v_add_u32 v7, s28, v6')
    a('s_add_u32 s28, s28, s27')
    a('s_add_u32 s29, s28, 3072')
    for t in range(6):
        a('s_waitcnt vmcnt(%d)' % (5 - t))
        a('ds_write_b128 v5, v[%d:%d] offset:%d' % (16 + 4 * t, 19 + 4 * t, t * 1024))
    a('s_waitcnt lgkmcnt(0)')
    for t in range(6):
        a('ds_read_b128 v[%d:%d], v7 offset:%d' % (40 + 4 * t, 43 + 4 * t, t * 1024))
    for t in range(6):
        a('s_waitcnt lgkmcnt(%d)' % (5 - t))
        a('buffer_store_dwordx4 v[%d:%d], v6, s[36:39], s%d offen offset:%d' % (40 + 4 * t, 43 + 4 * t, 28 + t // 3, (t % 3) * 1024))
    a.label('prep_end')
    if STAMP:
        a('s_cmp_ge_u32 s2, %d' % NPREP)
        a('s_cbranch_scc1 prep_end2')
        a('s_mov_b64 exec, -1')
        stamp(a)
        a('s_waitcnt vmcnt(0)')
        stamp(a)
        stamp_rt(a)
        a('s_mov_b32 s26, s24')
        a('s_lshr_b32 s3, s2, 8')
        a('s_lshl_b32 s3, s3, 2')
        a('s_add_u32 s26, s26, s3')
        a('s_and_b32 s2, s2, 255')
        stamp_flush(a, 5)
        a.label('prep_end2')
    a('s_endpgm')
    return [('prep_kernel', 96, 96)]


XF0 = 32
ACC0 = 104
WB0 = 168
LDS_T = 127 * 1024
LDS_PK = 32 * 1024
PK_STRIDE = 224
QDEPTH = int(os.environ.get('QDEPTH', 3))
SPREAD = int(os.environ.get('SPREAD', 1))
LSLOTS = [1, 5, 9, 13]


def XF(a_, t):
    return XF0 + (a_ * 9 + t) * 4


def ACC(a_, u):
    return ACC0 + (a_ * 8 + u) * 4


def p2(r):
    return 'v[%d:%d]' % (r, r + 1)


def softmax18(a, D, sL, tmp):
    m, s_ = tmp, tmp + 2
    a('v_max3_f32 %s, %s, %s, %s' % (vr(m), vr(D), vr(D + 1), vr(D + 2)))
    a('v_max3_f32 %s, %s, %s, %s' % (vr(m + 1), vr(D + 3), vr(D + 4), vr(D + 5)))
    for i in range(6, 18, 4):
        a('v_max3_f32 %s, %s, %s, %s' % (vr(m), vr(m), vr(D + i), vr(D + i + 1)))
        a('v_max3_f32 %s, %s, %s, %s' % (vr(m + 1), vr(m + 1), vr(D + i + 2), vr(D + i + 3)))
    a('v_max_f32 %s, %s, %s' % (vr(m), vr(m), vr(m + 1)))
    a('v_mul_f32 %s, s%d, %s' % (vr(m), sL, vr(m)))
    pf = lambda k: a('v_pk_fma_f32 %s, %s, s[%d:%d], %s op_sel_hi:[1,0,0] neg_lo:[0,0,1] neg_hi:[0,0,1]' % (p2(D + 2 * k), p2(D + 2 * k), sL, sL + 1, p2(m)))
    pf(0)
    pf(1)
    for k in range(9):
        a('v_exp_f32 %s, %s' % (vr(D + 2 * k), vr(D + 2 * k)))
        if k + 2 < 9:
            pf(k + 2)
        elif k == 7:
            a('v_pk_add_f32 %s, %s, %s' % (p2(s_), p2(s_), p2(D + 10)))
        else:
            a('v_pk_add_f32 %s, %s, %s' % (p2(s_), p2(s_), p2(D + 14)))
        a('v_exp_f32 %s, %s' % (vr(D + 2 * k + 1), vr(D + 2 * k + 1)))
        if k == 2:
            a('v_pk_add_f32 %s, %s, %s' % (p2(s_), p2(D), p2(D + 2)))
        elif 3 <= k <= 5:
            a('v_pk_add_f32 %s, %s, %s' % (p2(s_), p2(s_), p2(D + 2 * k - 2)))
        elif k == 7:
            a('v_pk_add_f32 %s, %s, %s' % (p2(s_), p2(s_), p2(D + 12)))
        elif k == 8:
            a('s_nop 0')
    a('v_pk_add_f32 %s, %s, %s' % (p2(s_), p2(s_), p2(D + 16)))
    a('v_add_f32 %s, %s, %s' % (vr(s_), vr(s_), vr(s_ + 1)))
    a('v_rcp_f32 %s, %s' % (vr(s_), vr(s_)))
    a('s_nop 0')
    for k in range(9):
        a('v_pk_mul_f32 %s, %s, %s op_sel_hi:[1,0]' % (p2(D + 2 * k), p2(D + 2 * k), p2(s_)))
    for i in range(9):
        a('v_cvt_pk_bf16_f32 %s, %s, %s' % (vr(D + i), vr(D + 2 * i), vr(D + 2 * i + 1)))


SWS, SOUT = 32, 36
F_XC, F_OC, F_KVC, F_KVF = FL, FL + 0x20000, FL + 0x40000, FL + 0x50000
SPIN_LIMIT = 200000
WL = int(os.environ.get('WL', 0))
HE = int(os.environ.get('HE', 1))
KE = int(os.environ.get('KE', 6))
L0P = int(os.environ.get('L0P', 0))
MID = int(os.environ.get('MID', 5))
PFN = int(os.environ.get('PFN', 4))
LOCAL = int(os.environ.get('LOCAL', 0))
F_OW, F_XW, F_GRP = FL + 24576, FL + 28672, FL + 32768
XD = int(os.environ.get('XD', 3))
OD = int(os.environ.get('OD', 4))
PT = int(os.environ.get('PT', 0))
O_A = int(os.environ.get('O_A', 0))
O_B = int(os.environ.get('O_B', 1))
O_P = int(os.environ.get('O_P', 0))
WQ_PRE = int(os.environ.get('WQ_PRE', 8))
WOMAP = int(os.environ.get('WOMAP', 1))
L_T, L_CS = 0, 16384
L_W = 34816
L_Q = L_W + 92160
L_PK = L_W
L_PHI = L_W
L_KV = 0
L_X2A, L_X2B = 17408, 71680
L_QP = 88064
L_WO = 70 * 1024
L_WX = 0
IM_P = 6144 + 64
I_K0, I_K1, I_V0, I_V1, I_VT = 0, IM_P, 2 * IM_P, 3 * IM_P, 4 * IM_P
I_KT = 5 * IM_P
IM_HEAD = I_KT + 3072
MEGA_LDS = 160 * 1024
_uid = [0]


FINE = int(os.environ.get('FINE', 0))


def mstamp(a, fine=False):
    if not STAMP or (FINE and not fine) or (fine == 2 and not FINE):
        return
    a('s_memtime s[94:95]')
    a('s_waitcnt lgkmcnt(0)')
    a('s_mov_b32 s92, m0')
    a('s_mov_b32 m0, s93')
    a('s_nop 1')
    a('v_writelane_b32 v2, s94, m0')
    a('s_mov_b32 m0, s92')
    a('s_add_u32 s93, s93, 1')


def ws_ld(a, dst, n, voff, soff, imm=0, extra=''):
    a('buffer_load_dword%s %s, %s, s[%d:%d], %s offen offset:%d %s' % ('' if n == 1 else 'x%d' % n, vr(dst, n), voff, SWS, SWS + 3, soff, imm, extra))


def ws_dma(a, soff, imm=0, extra=''):
    a('buffer_load_dwordx4 v5, s[%d:%d], %s offen offset:%d %s lds' % (SWS, SWS + 3, soff, imm, extra))


def ws_st(a, src, n, voff, soff, imm=0, extra='sc1'):
    a('buffer_store_dword%s %s, %s, s[%d:%d], %s offen offset:%d %s' % ('' if n == 1 else 'x%d' % n, vr(src, n), voff, SWS, SWS + 3, soff, imm, extra))


def _radd(a, soff, n):
    a('v_lshlrev_b32 v29, 7, v1')
    a('v_mov_b32 v30, 1')
    a('s_mov_b64 exec, 0x%x' % ((1 << n) - 1))
    a('buffer_atomic_add v30, v29, s[%d:%d], %s offen sc1' % (SWS, SWS + 3, soff))
    a('s_mov_b64 exec, -1')


def arrive(a, soff, n=16):
    _uid[0] += 1
    l = 'arr%d' % _uid[0]
    a('s_cmp_lg_u32 s26, 0')
    a('s_cbranch_scc1 %s' % l)
    _radd(a, soff, n)
    a.label(l)


def warrive(a, soff, n=16):
    _radd(a, soff, n)


def poll(a, soffs, target, skip_cond=None):
    _uid[0] += 1
    l = 'pl%d' % _uid[0]
    a('s_cmp_lg_u32 s26, 0')
    a('s_cbranch_scc1 %s_e' % l)
    if skip_cond:
        a(skip_cond)
        a('s_cbranch_scc1 %s_e' % l)
    a('v_mov_b32 v29, 0')
    a('s_mov_b64 exec, 1')
    a('s_mov_b32 s90, 0')
    n = len(soffs)
    ld = lambda base: [a('buffer_load_dword v%d, v29, s[%d:%d], %s offen sc1' % (base + q, SWS, SWS + 3, so)) for q, so in enumerate(soffs)]
    if O_P:
        a('s_waitcnt vmcnt(0)')
        ld(27)
        a.label(l)
        ld(0 if n == 1 else 30)
        a('s_waitcnt vmcnt(%d)' % n)
        if n == 2:
            a('v_min_u32 v27, v27, v28')
            a('s_nop 0')
        a('v_readfirstlane_b32 s91, v27')
        a('s_cmp_ge_u32 s91, %s' % target)
        a('s_cbranch_scc1 %s_d' % l)
        ld(27)
        a('s_waitcnt vmcnt(%d)' % n)
        if n == 2:
            a('v_min_u32 v30, v30, v31')
            a('s_nop 0')
        a('v_readfirstlane_b32 s91, v%d' % (0 if n == 1 else 30))
    else:
        a.label(l)
        ld(27)
        a('s_waitcnt vmcnt(0)')
        if n == 2:
            a('v_min_u32 v27, v27, v28')
            a('s_nop 0')
        a('v_readfirstlane_b32 s91, v27')
    a('s_add_u32 s90, s90, 1')
    a('s_cmp_ge_u32 s90, %d' % SPIN_LIMIT)
    a('s_cbranch_scc1 %s_d' % l)
    a('s_cmp_lt_u32 s91, %s' % target)
    a('s_cbranch_scc1 %s' % l)
    a.label('%s_d' % l)
    a('s_mov_b64 exec, -1')
    a.label('%s_e' % l)


def st_mode(a, emit):
    if not LOCAL:
        emit('sc1')
        return
    _uid[0] += 1
    l = 'sm%d' % _uid[0]
    a('s_cmp_eq_u32 s16, 1')
    a('s_cbranch_scc1 %s_l' % l)
    emit('sc1')
    a('s_branch %s_e' % l)
    a.label('%s_l' % l)
    emit('')
    a.label('%s_e' % l)


def arrive2(a, s_cnt, s_word, s_me):
    if not LOCAL:
        arrive(a, s_cnt)
        return
    _uid[0] += 1
    l = 'ar%d' % _uid[0]
    a('s_cmp_lg_u32 s26, 0')
    a('s_cbranch_scc1 %s_e' % l)
    a('v_mov_b32 v30, 1')
    a('s_mov_b64 exec, 1')
    a('s_cmp_eq_u32 s16, 1')
    a('s_cbranch_scc1 %s_l' % l)
    a('v_mov_b32 v29, 0')
    a('buffer_atomic_add v30, v29, s[%d:%d], %s offen sc1' % (SWS, SWS + 3, s_cnt))
    a('s_branch %s_x' % l)
    a.label('%s_l' % l)
    a('s_lshl_b32 s90, %s, 2' % s_me)
    a('v_mov_b32 v29, s90')
    a('buffer_store_dword v30, v29, s[%d:%d], %s offen' % (SWS, SWS + 3, s_word))
    a.label('%s_x' % l)
    a('s_mov_b64 exec, -1')
    a.label('%s_e' % l)


def poll2(a, s_cnt, s_word, skip_cond=None):
    if not LOCAL:
        poll(a, [s_cnt], 16, skip_cond)
        return
    _uid[0] += 1
    l = 'pw%d' % _uid[0]
    a('s_cmp_eq_u32 s16, 1')
    a('s_cbranch_scc1 %s_l' % l)
    poll(a, [s_cnt], 16, skip_cond)
    a('s_branch %s_e' % l)
    a.label('%s_l' % l)
    a('s_cmp_lg_u32 s26, 0')
    a('s_cbranch_scc1 %s_e' % l)
    if skip_cond:
        a(skip_cond)
        a('s_cbranch_scc1 %s_e' % l)
    a('v_lshlrev_b32 v29, 2, v1')
    a('s_mov_b64 exec, 0xffff')
    a('s_mov_b32 s90, 0')
    a.label(l)
    a('buffer_load_dword v27, v29, s[%d:%d], %s offen sc1' % (SWS, SWS + 3, s_word))
    a('s_waitcnt vmcnt(0)')
    a('v_cmp_eq_u32 vcc, 1, v27')
    a('s_add_u32 s90, s90, 1')
    a('s_cmp_ge_u32 s90, %d' % SPIN_LIMIT)
    a('s_cbranch_scc1 %s_d' % l)
    a('s_cmp_lg_u32 vcc_lo, 0xffff')
    a('s_cbranch_scc1 %s' % l)
    a.label('%s_d' % l)
    a('s_mov_b64 exec, -1')
    a.label('%s_e' % l)


def oimg_addr(a, s_rb32, s_head, s_main, s_tail, t1, t2):
    a('s_mul_i32 s%d, s10, 0x%x' % (t1, XS))
    a('s_mul_i32 s%d, s%d, 36864' % (s_tail, s_rb32))
    a('s_add_u32 s%d, s%d, s%d' % (s_tail, s_tail, t1))
    a('s_add_u32 s%d, s%d, 0x%x' % (s_tail, s_tail, OIMG))
    a('s_lshl_b32 s%d, s%d, 10' % (t1, s_head))
    a('s_and_b32 s%d, s%d, 1' % (t2, s_head))
    a('s_lshl_b32 s%d, s%d, 9' % (t2, t2))
    a('s_sub_u32 s%d, s%d, s%d' % (t1, t1, t2))
    a('s_add_u32 s%d, s%d, s%d' % (s_main, s_tail, t1))
    a('s_lshl_b32 s%d, s%d, 7' % (t1, s_head))
    a('s_add_u32 s%d, s%d, s%d' % (s_tail, s_tail, t1))
    a('s_add_u32 s%d, s%d, 32768' % (s_tail, s_tail))


def o_store(a, OA, s_main, s_tail, vden, eps):
    a('v_bfe_u32 v26, v1, 4, 1')
    a('v_and_b32 v27, 15, v1')
    a('v_lshlrev_b32 v27, 4, v27')
    a('v_lshl_add_u32 v27, v26, 10, v27')
    a('v_lshrrev_b32 v26, 5, v1')
    a('v_lshl_add_u32 v28, v26, 8, v27')
    a('v_lshlrev_b32 v27, 2, v1')
    if eps:
        a('v_add_f32 v24, 0x%x, %s' % (f32bits(eps), vr(OA + 10)))
        a('v_rcp_f32 v24, v24')
    else:
        a('v_rcp_f32 v24, %s' % vr(OA + 10))
    a('s_nop 0')
    for n in range(0, 10, 2):
        a('v_pk_mul_f32 %s, %s, v[24:25] op_sel_hi:[1,0]' % (p2(OA + n), p2(OA + n)))
    for n in range(5):
        a('v_cvt_pk_bf16_f32 %s, %s, %s' % (vr(OA + n), vr(OA + 2 * n), vr(OA + 2 * n + 1)))

    def emit(fl):
        ws_st(a, OA, 4, 'v28', 's%d' % s_main, 0, fl)
        a('s_mov_b32 exec_hi, 0')
        ws_st(a, OA + 4, 1, 'v27', 's%d' % s_tail, 0, fl)
        a('s_mov_b32 exec_hi, -1')
    st_mode(a, emit)


def wq_dma(a, s_kind, lo, hi):
    a('s_lshl_b32 s31, s26, 10')
    a('s_add_u32 s31, s31, %d' % (lo * 8192))
    a('s_add_u32 m0, s31, %d' % L_W)
    a('s_mul_i32 s56, s25, 129024')
    a('s_add_u32 s31, s31, s56')
    a('s_mul_i32 s56, s%d, 0x%x' % (s_kind, WQB - WQA))
    a('s_add_u32 s31, s31, s56')
    for ii in range(lo, hi):
        if ii == 15:
            a('s_cmp_ge_u32 s26, 6')
            a('s_cselect_b32 s56, 8192, 0')
            a('s_sub_u32 m0, m0, s56')
            a('s_sub_u32 s31, s31, s56')
        ws_dma(a, 's31')
        if ii < hi - 1:
            a('s_add_u32 m0, m0, 8192')
            a('s_add_u32 s31, s31, 8192')


def wo_dma_ops(a):
    def first():
        a('s_lshl_b32 s31, s26, 10')
        a('s_add_u32 m0, s31, %d' % L_WO)
        a('s_mul_i32 s29, s13, 92160')
        a('s_add_u32 s31, s31, s29')
        a('s_mul_i32 s29, s14, 0x%x' % (WOB - WOA))
        a('s_add_u32 s31, s31, s29')
        a('s_add_u32 s31, s31, 0x%x' % WOA)
        ws_dma(a, 's31')

    def nxt():
        a('s_add_u32 m0, m0, 8192')
        a('s_add_u32 s31, s31, 8192')
        ws_dma(a, 's31')

    def last():
        a('s_cmp_lt_u32 s26, 2')
        a('s_cselect_b32 s29, 8192, 0')
        a('s_add_u32 m0, m0, s29')
        a('s_add_u32 s31, s31, s29')
        ws_dma(a, 's31')
    return [first] + [nxt] * 10 + [last]


def wq_pf_ops(a, n):
    per = 64 // n

    def first():
        a('s_lshr_b32 s4, s2, 3')
        a('s_lshl_b32 s4, s4, 3')
        a('s_add_u32 s4, s4, s26')
        a('s_lshl_b32 s4, s4, 13')
        a('s_xor_b32 s5, s14, 1')
        a('s_mul_i32 s5, s5, 0x%x' % (WQB - WQA))
        a('s_add_u32 s4, s4, s5')
        a('v_lshlrev_b32 v7, 7, v1')
        nxt0()

    def nxt0():
        a('s_mov_b64 exec, 0x%x' % ((1 << per) - 1))
        ws_ld(a, 0, 1, 'v7', 's4', 0, 'sc1')
        a('s_mov_b64 exec, -1')

    def nxt():
        a('s_add_u32 s4, s4, %d' % (per * 128))
        nxt0()
    return [first] + [nxt] * (n - 1)


class Sprinkle:
    def __init__(self, a, ops, n):
        self.a, self.ops, self.n, self.c = a, list(ops), n, 0

    def __call__(self, s_):
        self.a(s_)
        self.c += 1
        if self.c % self.n == 0 and self.ops:
            self.ops.pop(0)()

    def flush(self):
        while self.ops:
            self.ops.pop(0)()


OF, WV, CA = 36, 72, 16


def wfrag_reads(a):
    a('s_mul_i32 s31, s28, %d' % (8 * 5120))
    a('s_add_u32 s31, s31, %d' % L_WO)
    a('v_add_u32 v10, s31, v5')
    a('s_lshl_b32 s31, s28, 11')
    a('v_add_u32 v8, s31, v10')
    a('s_xor_b32 s31, s31, 2048')
    a('v_add_u32 v9, s31, v10')
    for t in range(9):
        if t == 8:
            a('s_mul_i32 s31, s28, %d' % (-7 * 5120))
            a('s_add_u32 s31, s31, %d' % (16 * 5120))
            for r in (8, 9, 10):
                a('v_add_u32 v%d, s31, v%d' % (r, r))
        for q in range(5):
            base, off = [('v8', 0), ('v8', 1024), ('v9', 0), ('v9', 1024), ('v10', 4096)][q]
            a('ds_read_b128 %s, %s offset:%d' % (vr(WV + 20 * t + 4 * q, 4), base, (t * 5120 if t < 8 else 0) + off))


def gen_mega(a):
    entry(a, 'mega_kernel')
    a('s_cmp_ge_u32 s2, 256')
    a('s_cbranch_scc1 mega_end')
    a('s_load_dwordx2 s[18:19], s[0:1], 56')
    a('s_load_dwordx2 s[22:23], s[0:1], 72')
    a('s_and_b32 s24, s2, 3')
    a('s_lshl_b32 s12, s24, 3')
    a('s_lshl_b32 s24, s24, 2')
    a('s_bfe_u32 s25, s2, 0x20003')
    a('s_add_u32 s24, s24, s25')
    a('s_bfe_u32 s11, s2, 0x10002')
    a('s_lshl_b32 s13, s11, 2')
    a('s_add_u32 s13, s13, s25')
    a('s_lshl_b32 s25, s11, 3')
    a('s_lshr_b32 s26, s2, 5')
    a('s_add_u32 s25, s25, s26')
    a('s_add_u32 s12, s12, s26')
    if WOMAP:
        a('s_and_b32 s12, s2, 7')
        a('s_lshl_b32 s12, s12, 2')
        a('s_lshr_b32 s13, s2, 6')
        a('s_add_u32 s12, s12, s13')
        a('s_bfe_u32 s13, s2, 0x30003')
    a('v_lshrrev_b32 v2, 6, v0')
    a('v_and_b32 v1, 63, v0')
    a('v_readfirstlane_b32 s26, v2')
    a('v_lshlrev_b32 v5, 4, v1')
    a('v_mov_b32 v2, 0')
    a('s_mov_b32 s10, 0')
    a('s_mov_b32 s93, 0')
    a('s_and_b32 s27, s26, 3')
    a('s_lshr_b32 s28, s26, 2')
    a('s_waitcnt lgkmcnt(0)')
    srd(a, SWS, P_WS, 0, WS_USED)
    srd(a, SOUT, P_OUT, 0, X_SZ)
    a('s_mov_b32 s16, 0')
    a('s_mov_b32 s17, 0')
    a('s_and_b32 s9, s2, 7')
    a('s_lshl_b32 s9, s9, 7')
    a('s_add_u32 s9, s9, 0x%x' % F_GRP)
    if LOCAL:
        a('s_getreg_b32 s56, hwreg(HW_REG_XCC_ID)')
        a('s_and_b32 s56, s56, 7')
        a('s_lshl_b32 s56, s56, 2')
        a('s_add_u32 s56, s56, s9')
        arrive(a, 's56')
    if STAMP:
        a('s_memrealtime s[94:95]')
        a('s_memtime s[96:97]')
        a('s_waitcnt lgkmcnt(0)')
        a('v_writelane_b32 v2, s94, 62')
        a('v_writelane_b32 v2, s96, 61')

    def st_ops(stage):
        ops = []
        for r in range(4):
            def op(r=r):
                a('s_add_u32 s4, s26, %d' % (8 * r))
                a('s_min_u32 s4, s4, 29')
                a('s_cmp_ge_u32 s4, 15')
                a('s_cselect_b32 s5, 30, 0')
                a('s_add_u32 s4, s4, s5')
                a('s_add_u32 s4, s4, %d' % (15 * stage))
                a('s_lshl_b32 s4, s4, 10')
                a('s_add_u32 m0, s4, %d' % L_W)
                a('s_add_u32 s4, s4, s6')
                ws_dma(a, 's4')
            ops.append(op)
        return ops

    def q_ops():
        ops = []
        for r in range(5):
            def op(r=r):
                a('s_add_u32 s4, s26, %d' % (90 + 8 * r))
                a('s_min_u32 s4, s4, 125')
                a('s_lshl_b32 s4, s4, 10')
                a('s_add_u32 m0, s4, %d' % L_W)
                a('s_add_u32 s4, s4, s6')
                ws_dma(a, 's4')
            ops.append(op)
        return ops
    if L0P:
        a('s_mul_i32 s6, s25, 129024')
        for op in st_ops(0):
            op()
    else:
        wq_dma(a, 10, 0, 16)
        a('s_waitcnt vmcnt(0)')
        a('s_barrier')
    a.label('L_top')
    mstamp(a, True)
    a('s_and_b32 s14, s10, 1')
    a('s_lshl_b32 s31, s26, 11')
    a('s_add_u32 m0, s31, %d' % L_T)
    a('s_mul_i32 s56, s25, 15360')
    a('s_add_u32 s31, s31, s56')
    a('s_add_u32 s31, s31, 0x%x' % TPHI)
    a('s_cmp_eq_u32 s14, 1')
    a('s_cbranch_scc1 q_noTd')
    ws_dma(a, 's31')
    a('s_cmp_eq_u32 s26, 7')
    a('s_cbranch_scc1 q_noTd')
    ws_dma(a, 's31', 1024)
    a.label('q_noTd')
    a('s_mul_i32 s56, s25, 1344')
    a('s_mul_i32 s57, s14, 0x%x' % (CSB - CSA))
    a('s_add_u32 s56, s56, s57')
    a('s_add_u32 s56, s56, 0x%x' % CSA)
    for p in range(3):
        ws_ld(a, 224 + 4 * p, 4, 'v5', 's56', p * 448)
    a('v_and_b32 v3, 15, v1')
    a('v_lshrrev_b32 v4, 4, v1')
    a('s_lshl_b32 s29, s24, 7')
    a('s_lshl_b32 s30, s27, 5')
    a('s_add_u32 s29, s29, s30')
    a('s_lshl_b32 s30, s28, 4')
    a('s_add_u32 s29, s29, s30')
    a('v_add_u32 v6, s29, v3')
    a('s_lshr_b32 s30, s29, 4')
    a('s_xor_b32 s69, s30, 1')
    a('s_mul_i32 s30, s30, 18432')
    a('s_mul_i32 s69, s69, 18432')
    a('s_mul_i32 s31, s28, 9216')
    a('s_mul_i32 s56, s10, 0x%x' % XS)
    a('s_add_u32 s31, s31, s56')
    a('s_add_u32 s31, s31, 0x%x' % X0)
    a('s_add_u32 s30, s30, s31')
    a('s_add_u32 s69, s69, s31')
    a('s_mul_i32 s56, s28, 46080')
    a('s_add_u32 s56, s56, %d' % L_W)
    a('v_add_u32 v10, s56, v5')
    a('s_mul_i32 s57, s27, 6144')
    a('v_add_u32 v14, s57, v10')
    a('s_xor_b32 s56, s28, 1')
    a('s_mul_i32 s56, s56, 46080')
    a('s_add_u32 s56, s56, s57')
    a('s_add_u32 s56, s56, %d' % L_W)
    a('v_add_u32 v15, s56, v5')
    a('s_mul_i32 s56, s28, 18432')
    a('s_add_u32 s56, s56, %d' % L_Q)
    a('v_add_u32 v7, s56, v5')
    a('v_and_b32 v11, 3, v3')
    a('v_cmp_eq_u32 s[58:59], 1, v11')
    a('v_cmp_eq_u32 s[60:61], 2, v11')
    a('v_cmp_eq_u32 s[62:63], 3, v11')
    a('v_lshrrev_b32 v11, 2, v3')
    a('v_lshl_add_u32 v11, v11, 4, v3')
    a('v_lshlrev_b32 v11, 2, v11')
    a('v_lshlrev_b32 v24, 2, v3')
    a('v_add_u32 v24, 192, v24')
    a('v_lshlrev_b32 v25, 4, v4')
    a('v_add_u32 v25, %d, v25' % L_CS)
    a('v_add_u32 v26, %d, v5' % L_CS)
    a('s_lshl_b32 s56, s10, 4')
    a('s_add_u32 s56, s56, s24')
    a('s_lshl_b32 s56, s56, 4')
    a('s_add_u32 s56, s56, s25')
    a('s_lshl_b32 s56, s56, 7')
    a('s_add_u32 s56, s56, 0x%x' % (F_XC - 32768))
    a('s_waitcnt vmcnt(0)')
    for r in (0, 2):
        a('v_pk_add_f32 %s, %s, %s' % (p2(224 + r), p2(224 + r), p2(228 + r)))
    for r in (0, 2):
        a('v_pk_add_f32 %s, %s, %s' % (p2(224 + r), p2(224 + r), p2(232 + r)))
    a('s_cmp_lg_u32 s26, 1')
    a('s_cbranch_scc1 q_nocs')
    a('s_mov_b64 exec, 0xfffffff')
    a('ds_write_b128 v26, v[224:227]')
    a('v_mov_b32 v27, 33792')
    a('v_mov_b32 v28, 0')
    a('s_mov_b64 exec, 1')
    a('ds_write_b32 v27, v28')
    a('s_mov_b64 exec, -1')
    a.label('q_nocs')
    mstamp(a)
    poll(a, ['s56'], 16, 's_cmp_eq_u32 s10, 0')
    a('s_waitcnt lgkmcnt(0)')
    a('s_barrier')
    mstamp(a, True)
    A1 = lambda a_, q: 104 + (a_ * 6 + q) * 4
    W1 = lambda t, q: 152 + 20 * (t & 1) + 4 * q
    wr = [5, 4, 0, 1, 2, 3]

    def pass1(first):
        vm = VM(a)

        def xl(t, which):
            if which == 0:
                if t and t % 4 == 0:
                    a('s_add_u32 s30, s30, 4096')
                    a('s_add_u32 s69, s69, 4096')
                ws_ld(a, XF(0, t), 4, 'v5', 's30', (t & 3) * 1024)
                vm.issue()
            else:
                ws_ld(a, XF(1, t), 4, 'v5', 's69', (t & 3) * 1024)
                vm.issue(t)
        for t in range(XD):
            xl(t, 0)
            xl(t, 1)
        for q in range(5):
            a('ds_read_b128 %s, v10 offset:%d' % (vr(W1(0, q), 4), q * 1024))
        for t in range(9):
            if first and t in (2, 5):
                a('s_waitcnt vmcnt(%d) lgkmcnt(0)' % min(vm.cnt(t), vm.cnt(('st', t // 3 + 1))))
                a('s_barrier')
            else:
                a('s_waitcnt vmcnt(%d) lgkmcnt(0)' % vm.cnt(t))
            if t == 7:
                a('s_barrier')
            if t < 8:
                fill = [(lambda q=q: a('ds_read_b128 %s, v10 offset:%d' % (vr(W1(t + 1, q), 4), (t + 1) * 5120 + q * 1024))) for q in range(5)]
                if t + XD < 9:
                    fill += [lambda: xl(t + XD, 0), None, None, lambda: xl(t + XD, 1)]
                if first and t in (0, 3, 6):
                    ex = st_ops(t // 3 + 1) if t < 6 else q_ops()
                    tag = ('st', t // 3 + 1)
                    fill = [(lambda op=op: (op(), vm.issue(tag))) for op in ex] + fill
                seq = [(a_, q, t) for q in [5, 0, 1, 2, 3, 4] for a_ in (0, 1)]
                if t == 7:
                    seq = [(1, q, 7) for q in wr]
            else:
                seq = [(1, q, 8) for q in wr] + [(0, q, 7) for q in wr] + [(0, q, 8) for q in wr]
                fill = [None] * 8
                for q in wr[:5]:
                    fill += [(lambda q=q: a('ds_write_b128 v14, %s offset:%d' % (vr(A1(1, q), 4), q * 1024))), None]
            for k, (a_, q, tt) in enumerate(seq):
                A_ = vr(XF(a_, tt), 4) if q == 5 else vr(W1(tt, q), 4)
                c = '0' if tt == 0 else vr(A1(a_, q), 4)
                a('v_mfma_f32_16x16x32_bf16 %s, %s, %s, %s' % (vr(A1(a_, q), 4), A_, vr(XF(a_, tt), 4), c))
                if k < len(fill) and fill[k] is not None:
                    fill[k]()
                if k == len(seq) - 1:
                    for f in fill[len(seq):]:
                        if f:
                            f()
        a('ds_write_b128 v14, %s offset:%d' % (vr(A1(1, 3), 4), 3 * 1024))
        if first:
            a('s_waitcnt vmcnt(0)')
    if L0P:
        a('s_cmp_eq_u32 s10, 0')
        a('s_cbranch_scc1 P1_first')
    pass1(False)
    if L0P:
        a('s_branch P1_done')
        a.label('P1_first')
        pass1(True)
        a.label('P1_done')
    mstamp(a, True)
    CSK, CSQ = 192, 248
    a('s_waitcnt lgkmcnt(0)')
    a('s_barrier')
    for q in wr:
        a('ds_read_b128 %s, v15 offset:%d' % (vr(A1(1, q), 4), q * 1024))
    R = lambda q, r: A1(0, q) + r
    a('s_waitcnt lgkmcnt(4)')
    for r in (0, 2):
        a('v_pk_add_f32 %s, %s, %s' % (p2(R(5, r)), p2(R(5, r)), p2(A1(1, 5) + r)))
        a('v_pk_add_f32 %s, %s, %s' % (p2(R(4, r)), p2(R(4, r)), p2(A1(1, 4) + r)))
    a('v_cndmask_b32 v16, %s, %s, s[58:59]' % (vr(R(5, 0)), vr(R(5, 1))))
    a('v_cndmask_b32 v16, v16, %s, s[60:61]' % vr(R(5, 2)))
    a('v_cndmask_b32 v16, v16, %s, s[62:63]' % vr(R(5, 3)))
    a('ds_bpermute_b32 v18, v24, %s' % vr(R(4, 0)))
    a('ds_bpermute_b32 v17, v11, v16')
    for q in range(5):
        a('ds_read_b128 %s, v25 offset:%d' % (vr(CSK + 4 * q, 4), (2 + q) * 64))
    for u in range(2):
        a('ds_read_b128 %s, v25 offset:%d' % (vr(CSQ + 4 * u, 4), u * 64))
    a('s_waitcnt lgkmcnt(9)')
    for q in range(4):
        for r in (0, 2):
            a('v_pk_add_f32 %s, %s, %s' % (p2(R(q, r)), p2(R(q, r)), p2(A1(1, q) + r)))
    a('s_mov_b32 s56, 0x%x' % f32bits(1.0 / 576))
    a('s_waitcnt lgkmcnt(7)')
    TA, TBK, TBQ = 152, 172, 192
    a('v_add_u32 v20, %d, v5' % L_T)
    a('s_cmp_eq_u32 s14, 1')
    a('s_cbranch_scc1 q_noT')
    for m in range(5):
        a('ds_read_b128 %s, v20 offset:%d' % (vr(TA + 4 * m, 4), m * 1024))
    for m in range(5):
        a('ds_read_b128 %s, v20 offset:%d' % (vr(TBK + 4 * m, 4), (10 + m) * 1024))
    a.label('q_noT')
    a('v_mul_f32 v18, s56, v18')
    a('v_mul_f32 v17, s56, v17')
    a('v_fma_f32 v17, -v18, v18, v17')
    a('v_max_f32 v17, 0, v17')
    bf16r(a, 18, 19)
    bf16r(a, 17, 19)
    a('v_add_f32 v17, 0x%x, v17' % f32bits(1e-5))
    bf16r(a, 17, 19)
    a('v_sqrt_f32 v17, v17')
    a('s_nop 0')
    bf16r(a, 17, 19)
    a('v_rcp_f32 v16, v17')
    a('s_waitcnt lgkmcnt(0)')
    mstamp(a)
    PK_, PV_, PT_, PQ_ = 220, 224, 228, 104

    def lnfix(r0, cs, dst):
        for r in (0, 2):
            a('v_pk_fma_f32 %s, %s, v[18:19], %s op_sel_hi:[1,0,1] neg_lo:[0,1,0] neg_hi:[0,1,0]' % (p2(r0 + r), p2(cs + r), p2(r0 + r)))
        for r in (0, 2):
            a('v_pk_mul_f32 %s, %s, v[16:17] op_sel_hi:[1,0]' % (p2(r0 + r), p2(r0 + r)))
        a('v_cvt_pk_bf16_f32 %s, %s, %s' % (vr(dst), vr(r0), vr(r0 + 1)))
        a('v_cvt_pk_bf16_f32 %s, %s, %s' % (vr(dst + 1), vr(r0 + 2), vr(r0 + 3)))
    ln1 = lambda q: lnfix(R(q, 0), CSK + 4 * q, PK_ + 2 * q)
    W2s = list(range(104, 152, 4)) + list(range(172, 192, 4)) + [212]
    A2 = lambda a_, u: 232 + (a_ * 2 + u) * 4

    def pass2(x2base, mid):
        rd = lambda t: [a('ds_read_b128 %s, v7 offset:%d' % (vr(W2s[2 * t + u], 4), t * 2048 + u * 1024)) for u in range(2)]
        for t in range(4):
            rd(t)
        a('s_lshl_b32 s56, s26, 11')
        a('s_add_u32 s56, s56, %d' % x2base)
        a('v_add_u32 v14, s56, v5')
        a('s_xor_b32 s56, s26, 4')
        a('s_lshl_b32 s56, s56, 11')
        a('s_add_u32 s56, s56, %d' % x2base)
        a('v_add_u32 v15, s56, v5')
        for t in range(9):
            if t + 4 < 9:
                rd(t + 4)
            a('s_waitcnt lgkmcnt(%d)' % (2 * min(4, 8 - t)))
            for (a_, u) in ((1, 0), (1, 1), (0, 0), (0, 1)):
                a('v_mfma_f32_16x16x32_bf16 %s, %s, %s, %s' % (vr(A2(a_, u), 4), vr(W2s[2 * t + u], 4), vr(XF(a_, t), 4), '0' if t == 0 else vr(A2(a_, u), 4)))
            if t == MID and mid:
                mid()
        a('s_nop 5')
        for u in range(2):
            a('ds_write_b128 v14, %s offset:%d' % (vr(A2(1, u), 4), u * 1024))
        a('s_waitcnt lgkmcnt(0)')
        a('s_barrier')
        for u in range(2):
            a('ds_read_b128 %s, v15 offset:%d' % (vr(A2(1, u), 4), u * 1024))
        a('s_waitcnt lgkmcnt(0)')
        for r in range(0, 8, 2):
            a('v_pk_add_f32 %s, %s, %s' % (p2(A2(0, 0) + r), p2(A2(0, 0) + r), p2(A2(1, 0) + r)))
        for u in range(2):
            lnfix(A2(0, u), CSQ + 4 * u, PQ_ + 2 * u)
    a('s_mov_b32 s16, 0')
    a('s_cmp_eq_u32 s14, 1')
    a('s_cbranch_scc1 B_epi')
    DK, DQ = 128, 108
    a('s_barrier')
    for q in (0, 1, 4):
        ln1(q)
    a('v_mov_b32 %s, 0' % vr(PT_ + 2))
    a('v_mov_b32 %s, 0' % vr(PT_ + 3))
    a('v_and_b32 v22, 127, v6')
    a('v_mul_u32_u24 v22, %d, v22' % PK_STRIDE)
    a('v_add_u32 v22, %d, v22' % L_PK)
    a('v_lshl_add_u32 v21, v4, 3, v22')
    for m in range(5):
        a('v_mfma_f32_16x16x32_bf16 %s, %s, %s, 0' % (vr(DK + 4 * m, 4), vr(TA + 4 * m, 4), vr(PK_, 4)))
    for m in range(5):
        a('v_mfma_f32_16x16x32_bf16 %s, %s, %s, %s' % (vr(DK + 4 * m, 4), vr(TBK + 4 * m, 4), vr(PT_, 4), vr(DK + 4 * m, 4)))
    ln1(2)
    ln1(3)
    for m in range(5):
        a('ds_read_b128 %s, v20 offset:%d' % (vr(TBQ + 4 * m, 4), (5 + m) * 1024))
    a('ds_write_b64 v21, %s offset:128' % vr(PV_, 2))
    a('ds_write_b64 v21, %s offset:160' % vr(PV_ + 2, 2))
    a('v_mov_b32 v12, %s' % vr(PT_))
    a('v_mov_b32 v13, 0x3f80')
    a('v_mov_b32 v14, %s' % vr(PT_ + 1))
    a('v_mov_b32 v15, 0x3f80')
    a('s_mov_b32 exec_lo, 0')
    a('s_mov_b32 exec_hi, 0xffff')
    a('ds_write_b128 v22, v[12:15] offset:208')
    a('s_mov_b64 exec, -1')
    a('s_mov_b32 s56, 0x%x' % f32bits(LOG2E))
    wops = wo_dma_ops(a)
    sp = Sprinkle(a, wops[:KE], 11)
    softmax18(sp, DK, 56, 12)
    sp.flush()
    a('v_lshl_add_u32 v21, v4, 5, v22')
    a('v_lshl_add_u32 v24, v4, 2, v22')
    a('ds_write_b128 v21, %s' % vr(DK, 4))
    a('ds_write_b128 v21, %s offset:16' % vr(DK + 4, 4))
    a('ds_write_b32 v24, %s offset:192' % vr(DK + 8))
    a('s_lshr_b32 s64, s10, 1')
    a('s_mul_i32 s64, s64, %d' % KV_SZ)
    a('s_add_u32 s64, s64, 0x%x' % KV1)
    a('s_mul_i32 s65, s25, %d' % (2 * KV_HEAD))
    a('s_add_u32 s64, s64, s65')
    a('s_lshr_b32 s65, s10, 1')
    a('s_lshl_b32 s65, s65, 4')
    a('s_add_u32 s65, s65, s25')
    a('s_lshl_b32 s65, s65, 11')
    a('s_add_u32 s65, s65, 0x%x' % F_KVC)
    a('s_waitcnt lgkmcnt(0)')
    a('s_barrier')
    mstamp(a)
    a('s_cmp_ge_u32 s26, 6')
    a('s_cbranch_scc1 A_q')
    a('s_cmp_ge_u32 s26, 3')
    a('s_cselect_b32 s57, 1, 0')
    a('s_mul_i32 s58, s57, 3')
    a('s_sub_u32 s58, s26, s58')
    a('s_lshl_b32 s59, s57, 6')
    a('s_lshl_b32 s60, s58, 5')
    a('s_add_u32 s59, s59, s60')
    a('s_lshl_b32 s60, s57, 3')
    a('s_add_u32 s61, s60, 192')
    a('s_cmp_eq_u32 s58, 2')
    a('s_cselect_b32 s59, s61, s59')
    a('s_add_u32 s60, s60, 208')
    a('s_lshl_b32 s61, s57, 5')
    a('s_add_u32 s61, s61, 128')
    a('v_lshrrev_b32 v24, 2, v3')
    a('v_lshl_add_u32 v24, v4, 2, v24')
    a('v_mul_u32_u24 v24, %d, v24' % PK_STRIDE)
    a('v_and_b32 v25, 3, v3')
    a('v_lshl_add_u32 v24, v25, 3, v24')
    a('v_add_u32 v24, %d, v24' % L_PK)
    a('v_add_u32 v25, s59, v24')
    a('v_add_u32 v26, s61, v24')
    a('v_add_u32 v27, s60, v24')
    FB, FA, FT = 104, 128, 172
    for ks in range(4):
        for hf in range(2):
            off = (32 * ks + 16 * hf) * PK_STRIDE
            a('ds_read_b64_tr_b16 %s, v25 offset:%d' % (vr(FB + 4 * ks + 2 * hf, 2), off))
            a('ds_read_b64_tr_b16 %s, v26 offset:%d' % (vr(FA + 4 * ks + 2 * hf, 2), off))
            a('ds_read_b64_tr_b16 %s, v27 offset:%d' % (vr(FT + 4 * ks + 2 * hf, 2), off))
    a('s_mul_i32 s59, s57, %d' % KV_HEAD)
    a('s_mul_i32 s60, s58, 1216')
    a('s_add_u32 s59, s59, s60')
    a('s_add_u32 s59, s59, s64')
    a('v_lshlrev_b32 v28, 2, v1')
    DM, DT = 120, 124
    at = lambda r, off: a('buffer_atomic_add_f32 %s, v28, s[%d:%d], s59 offen offset:%d' % (vr(r), SWS, SWS + 3, off))
    a('s_cmp_eq_u32 s58, 2')
    a('s_cbranch_scc1 A_kvt')
    for ks in range(4):
        a('s_waitcnt lgkmcnt(%d)' % min(14, 6 * (3 - ks)))
        a('v_mfma_f32_16x16x32_bf16 %s, %s, %s, %s' % (vr(DM, 4), vr(FA + 4 * ks, 4), vr(FB + 4 * ks, 4), '0' if ks == 0 else vr(DM, 4)))
        a('v_mfma_f32_16x16x32_bf16 %s, %s, %s, %s' % (vr(DT, 4), vr(FT + 4 * ks, 4), vr(FB + 4 * ks, 4), '0' if ks == 0 else vr(DT, 4)))
    a('s_nop 7')
    for r in range(4):
        at(DM + r, r * 256)
    a('s_mov_b64 exec, 0xffff')
    for r in range(3):
        at(DT + r, 1024 + r * 64)
    a('s_mov_b64 exec, -1')
    a('s_branch A_q')
    a.label('A_kvt')
    for ks in range(4):
        a('s_waitcnt lgkmcnt(%d)' % min(14, 6 * (3 - ks)))
        a('v_mfma_f32_16x16x32_bf16 %s, %s, %s, %s' % (vr(DM, 4), vr(FB + 4 * ks, 4), vr(FA + 4 * ks, 4), '0' if ks == 0 else vr(DM, 4)))
        a('v_mfma_f32_16x16x32_bf16 %s, %s, %s, %s' % (vr(DT, 4), vr(FB + 4 * ks, 4), vr(FT + 4 * ks, 4), '0' if ks == 0 else vr(DT, 4)))
    a('s_mov_b64 exec, 0xffff')
    a('s_nop 7')
    for r in range(4):
        at(DM + r, r * 128)
    a('s_mov_b64 exec, 7')
    for r in range(4):
        at(DT + r, r * 128 + 64)
    a('s_mov_b64 exec, -1')
    a.label('A_q')
    pass2(L_X2A, None)
    mstamp(a)
    a('s_mul_i32 s57, s27, 4608')
    a('s_add_u32 s57, s57, %d' % L_PHI)
    for m in range(5):
        a('v_mfma_f32_16x16x32_bf16 %s, %s, %s, 0' % (vr(DQ + 4 * m, 4), vr(TA + 4 * m, 4), vr(PQ_, 4)))
    for m in range(5):
        a('v_mfma_f32_16x16x32_bf16 %s, %s, %s, %s' % (vr(DQ + 4 * m, 4), vr(TBQ + 4 * m, 4), vr(PT_, 4), vr(DQ + 4 * m, 4)))
    a('v_lshrrev_b32 v24, 1, v4')
    a('v_mul_u32_u24 v24, 2304, v24')
    a('v_add_u32 v24, s57, v24')
    a('v_and_b32 v25, 1, v4')
    a('v_and_b32 v26, 31, v6')
    a('v_lshl_add_u32 v22, v25, 10, v24')
    a('v_lshl_add_u32 v22, v26, 4, v22')
    a('v_lshl_add_u32 v23, v26, 3, v24')
    a('v_lshl_add_u32 v23, v25, 2, v23')
    a('s_mov_b32 s56, 0x%x' % f32bits(LOG2E))
    a('v_mov_b32 v27, 33792')
    a('v_mov_b32 v30, 1')
    a('s_waitcnt vmcnt(0)')
    a('s_mov_b64 exec, 1')
    a('ds_add_rtn_u32 v28, v27, v30')
    a('s_waitcnt lgkmcnt(0)')
    a('v_readfirstlane_b32 s57, v28')
    a('s_mov_b64 exec, -1')
    a('s_cmp_lg_u32 s57, 7')
    a('s_cbranch_scc1 A_noarr')
    warrive(a, 's65')
    a.label('A_noarr')
    sp = Sprinkle(a, wops[KE:], 66 // (12 - KE))
    softmax18(sp, DQ, 56, 12)
    sp.flush()
    a('ds_write_b128 v22, %s' % vr(DQ, 4))
    a('ds_write_b128 v22, %s offset:512' % vr(DQ + 4, 4))
    a('ds_write_b32 v23, %s offset:2048' % vr(DQ + 8))
    a('s_lshl_b32 s56, s24, 7')
    a('s_add_u32 s56, s56, s65')
    mstamp(a)
    a('s_waitcnt lgkmcnt(0)')
    a('s_barrier')
    mstamp(a)
    PH, ST, OC = 32, 48, 72
    a('s_lshl_b32 s57, s27, 1')
    a('s_add_u32 s57, s57, s28')
    a('s_mul_i32 s57, s57, 2304')
    a('s_add_u32 s57, s57, %d' % L_PHI)
    a('v_add_u32 v20, s57, v5')
    a('v_and_b32 v3, 31, v1')
    a('v_lshlrev_b32 v21, 3, v3')
    a('v_add_u32 v21, s57, v21')
    for r in range(8, 12):
        a('v_mov_b32 v%d, 0' % (PH + r))
    a('ds_read_b128 %s, v20' % vr(PH, 4))
    a('ds_read_b128 %s, v20 offset:1024' % vr(PH + 4, 4))
    a('s_mov_b32 exec_hi, 0')
    a('ds_read_b64 %s, v21 offset:2048' % vr(PH + 8, 2))
    a('s_mov_b32 exec_hi, -1')
    a('s_mul_i32 s58, s26, 3072')
    a('s_add_u32 s58, s58, %d' % L_KV)
    a('v_min_u32 v8, 18, v3')
    a('v_and_b32 v9, 3, v8')
    a('v_lshlrev_b32 v9, 8, v9')
    a('v_lshrrev_b32 v4, 2, v8')
    a('v_lshl_add_u32 v9, v4, 6, v9')
    a('v_lshlrev_b32 v4, 6, v8')
    a('v_cmp_gt_u32 vcc, 16, v8')
    a('v_lshlrev_b32 v8, 2, v8')
    a('v_add_u32 v8, s58, v8')
    a('v_cndmask_b32 v9, v4, v9, vcc')
    a('v_lshrrev_b32 v4, 5, v1')
    a('v_lshl_add_u32 v9, v4, 5, v9')
    a('v_add_u32 v9, s58, v9')
    a('s_lshl_b32 s59, s24, 2')
    a('s_add_u32 s59, s59, s27')
    a('s_lshl_b32 s60, s25, 1')
    a('s_add_u32 s60, s60, s28')
    oimg_addr(a, 59, 60, 66, 67, 61, 62)
    a('s_mul_i32 s57, s28, %d' % KV_HEAD)
    a('s_add_u32 s57, s57, s64')
    a('s_mov_b32 m0, s58')
    a('s_waitcnt vmcnt(0)')
    poll(a, ['s56'], 16)
    a('s_barrier')
    mstamp(a)
    for p in range(3):
        if p == 2:
            a('s_mov_b32 exec_hi, 0xffffff')
        ws_dma(a, 's57', p * 1024, 'sc1')
    a('s_mov_b32 exec_hi, -1')
    a('s_waitcnt vmcnt(0)')
    a('ds_read_b128 %s, v9' % vr(ST, 4))
    a('ds_read_b128 %s, v9 offset:16' % vr(ST + 4, 4))
    a('ds_read_b128 %s, v9 offset:1216' % vr(ST + 8, 4))
    a('ds_read_b128 %s, v9 offset:1232' % vr(ST + 12, 4))
    for ft in range(4):
        a('ds_read_b32 %s, v8 offset:%d' % (vr(ST + 16 + ft), 2432 + ft * 128))
    a('s_waitcnt lgkmcnt(0)')
    for n in range(10):
        a('v_cvt_pk_bf16_f32 %s, %s, %s' % (vr(ST + n), vr(ST + 2 * n), vr(ST + 2 * n + 1)))
    a('v_mov_b32 %s, 0' % vr(ST + 10))
    a('v_mov_b32 %s, 0' % vr(ST + 11))
    a('s_nop 1')
    for q_ in range(3):
        a('v_mfma_f32_32x32x16_bf16 %s, %s, %s, %s' % (vr(OC, 16), vr(ST + 4 * q_, 4), vr(PH + 4 * q_, 4), '0' if q_ == 0 else vr(OC, 16)))
    a('s_nop 6')
    o_store(a, OC, 66, 67, None, 1e-6)
    if not WL:
        wfrag_reads(a)
    mstamp(a)
    a('s_waitcnt vmcnt(0)')
    a('s_branch O_pub')
    a.label('B_epi')
    for q in range(5):
        ln1(q)
    a('s_lshr_b32 s64, s10, 1')
    a('s_lshl_b32 s64, s64, 23')
    a('s_add_u32 s64, s64, 0x%x' % REC)
    a('s_lshl_b32 s65, s25, 19')
    a('s_add_u32 s64, s64, s65')
    a('v_lshlrev_b32 v20, 4, v6')
    a('v_and_b32 v21, 1, v4')
    a('v_lshl_add_u32 v22, v21, 18, v20')
    a('v_lshrrev_b32 v23, 1, v4')
    a('v_lshl_add_u32 v22, v23, 15, v22')
    a('v_and_b32 v24, 127, v6')
    a('v_mul_u32_u24 v25, %d, v21' % IM_HEAD)
    a('v_lshl_add_u32 v25, v24, 4, v25')
    a('v_mul_u32_u24 v27, %d, v23' % IM_P)
    a('v_add_u32 v27, v27, v25')
    a('v_mul_u32_u24 v9, 5120, v21')
    a('v_lshl_add_u32 v9, v24, 4, v9')
    a('v_lshl_add_u32 v9, v23, 11, v9')
    a('v_add_u32 v9, %d, v9' % L_QP)
    a('s_add_u32 s56, s64, %d' % R_K0)
    a('s_add_u32 s57, s64, %d' % R_V0)
    for b0 in (PK_, PV_):
        a('v_permlane16_swap_b32 %s, %s' % (vr(b0), vr(b0 + 2)))
        a('v_permlane16_swap_b32 %s, %s' % (vr(b0 + 1), vr(b0 + 3)))
    ws_st(a, PK_, 4, 'v22', 's56')
    ws_st(a, PV_, 4, 'v22', 's57')
    a('v_cmp_eq_u32 vcc, 2, v4')
    a('v_mov_b32 v28, 0x3f80')
    a('v_mov_b32 v12, %s' % vr(PT_))
    a('v_cndmask_b32 v13, 0, v28, vcc')
    a('v_mov_b32 v14, %s' % vr(PT_ + 1))
    a('v_mov_b32 v15, v13')
    a('v_lshlrev_b32 v28, 3, v6')
    a('v_add_u32 v28, %d, v28' % R_KT)
    a('v_add_u32 v20, %d, v20' % R_VT)
    a('v_cndmask_b32 v28, v28, v20, vcc')
    a('v_lshlrev_b32 v20, 3, v24')
    a('v_add_u32 v21, %d, v20' % (L_QP + 4096))
    a('v_add_u32 v20, %d, v20' % (I_KT + 2048))
    a('v_lshlrev_b32 v23, 4, v24')
    a('v_add_u32 v23, %d, v23' % (I_VT + 4096))
    a('v_cndmask_b32 v20, v20, v23, vcc')
    a('v_cmp_eq_u32 vcc, 0, v4')
    a('s_add_u32 s57, s64, %d' % REC_HEAD)
    a('v_mov_b32 v212, v12')
    a('v_mov_b32 v213, v13')
    a('v_mov_b32 v214, 0')
    a('v_mov_b32 v215, 0')
    a('v_mov_b32 v216, v14')
    a('v_mov_b32 v217, v15')
    a('v_mov_b32 v218, 0')
    a('v_mov_b32 v219, 0')
    a('s_mov_b32 exec_lo, 0xffff0000')
    a('s_mov_b32 exec_hi, 0')
    ws_st(a, 12, 2, 'v28', 's64')
    ws_st(a, 14, 2, 'v28', 's57')
    a('s_mov_b32 exec_lo, 0')
    a('s_mov_b32 exec_hi, 0xffff')
    ws_st(a, 212, 4, 'v28', 's64')
    ws_st(a, 216, 4, 'v28', 's57')
    a('s_mov_b64 exec, -1')
    a('v_add_u32 v23, %d, v20' % IM_HEAD)
    a('v_cndmask_b32 v20, v20, v21, vcc')
    a('v_add_u32 v21, 5120, v21')
    a('v_cndmask_b32 v21, v23, v21, vcc')
    a('s_barrier')
    a('ds_write_b128 v27, %s offset:%d' % (vr(PK_, 4), I_K0 + 4096))
    a('ds_write_b128 v27, %s offset:%d' % (vr(PV_, 4), I_V0 + 4096))
    a('s_mov_b32 exec_hi, 0xffff')
    a('ds_write_b64 v20, v[12:13]')
    a('ds_write_b64 v21, v[14:15]')
    a('s_mov_b32 exec_hi, -1')
    a('s_lshr_b32 s48, s10, 1')
    a('s_lshl_b32 s48, s48, 4')
    a('s_add_u32 s48, s48, s25')
    a('s_lshl_b32 s48, s48, 12')
    a('s_add_u32 s48, s48, 0x%x' % F_KVF)
    a('s_lshl_b32 s50, s24, 7')
    a('s_add_u32 s50, s50, s48')
    a('s_add_u32 s49, s50, 128')
    a('s_cmp_eq_u32 s24, 1')
    a('s_cselect_b32 s51, 8, 16')
    a('s_lshl_b32 s56, s24, 7')
    a('s_sub_u32 s56, s56, 256')
    a('s_lshl_b32 s54, s27, 6')
    a('s_add_u32 s56, s56, s54')
    a('s_lshl_b32 s58, s28, 18')
    a('s_add_u32 s58, s58, s64')
    a('s_lshl_b32 s52, s56, 4')
    a('s_add_u32 s52, s52, s58')
    a('s_lshl_b32 s53, s56, 3')
    a('s_add_u32 s53, s53, s58')
    a('s_add_u32 s53, s53, %d' % R_KT)
    a('s_cmp_lt_i32 s56, 0')
    a('s_cselect_b32 s52, 0x40000000, s52')
    a('s_cselect_b32 s53, 0x40000000, s53')
    a('s_mul_i32 s65, s28, %d' % IM_HEAD)
    a('s_lshl_b32 s54, s27, 10')
    a('s_add_u32 s54, s54, s65')
    a('s_mov_b32 s3, s65')
    a('s_mov_b32 s30, s64')
    mstamp(a)

    def kvf_arrive():
        a('s_waitcnt vmcnt(0)')
        warrive(a, 's49', 2)
    a('s_waitcnt lgkmcnt(0)')
    pass2(L_X2B, kvf_arrive)
    a('s_nop 0')
    a('v_permlane16_swap_b32 %s, %s' % (vr(PQ_), vr(PQ_ + 2)))
    a('v_permlane16_swap_b32 %s, %s' % (vr(PQ_ + 1), vr(PQ_ + 3)))
    a('ds_write_b128 v9, %s' % vr(PQ_, 4))
    mstamp(a)
    if not HE:
        Q1, Q2 = 12, 16
        S = lambda t: 64 + 16 * t
        OA = 208
        KB = [224, 232, 240]
        MK, MB = 56, 36
        a('v_and_b32 v3, 31, v1')
        a('v_lshrrev_b32 v4, 5, v1')
        a('s_lshl_b32 s27, s27, 5')
        a('v_add_u32 v9, s27, v3')
        a('v_lshlrev_b32 v10, 4, v9')
        a('v_add_u32 v21, s65, v10')
        a('s_mul_i32 s29, s28, 5120')
        a('s_add_u32 s29, s29, %d' % L_QP)
        a('v_lshl_add_u32 v10, v4, 11, v10')
        a('v_add_u32 v10, s29, v10')
        a('v_lshlrev_b32 v20, 3, v9')
        a('v_add_u32 v8, s29, v20')
        a('v_add_u32 v20, s65, v20')
        for r in range(4):
            a('v_mov_b32 v%d, 0' % (Q2 + r))
        a('v_mul_u32_u24 v9, %d, v4' % IM_P)
        a('v_add_u32 v21, v21, v9')
        a('v_add_u32 v20, %d, v20' % I_KT)
        for b in KB:
            for r in range(6, 8):
                a('v_mov_b32 v%d, 0' % (b + r))
        a('v_bfe_u32 v22, v1, 2, 2')
        a('v_lshl_add_u32 v22, v4, 2, v22')
        a('v_add_u32 v22, s27, v22')
        a('v_lshlrev_b32 v22, 4, v22')
        a('v_bfe_u32 v23, v1, 1, 1')
        a('v_mul_u32_u24 v23, %d, v23' % IM_P)
        a('v_and_b32 v25, 1, v1')
        a('v_lshl_add_u32 v23, v25, 3, v23')
        a('v_and_b32 v25, 16, v1')
        a('v_cmp_eq_u32 vcc, 0, v25')
        a('v_mov_b32 v25, %d' % (I_VT - I_V0))
        a('s_add_u32 s65, s65, %d' % I_V0)
        a('v_cndmask_b32 v23, v25, v23, vcc')
        a('v_add3_u32 v22, v22, v23, s65')
        a('s_lshr_b32 s27, s27, 5')
        a('s_lshl_b32 s40, s24, 2')
        a('s_add_u32 s40, s40, s27')
        a('s_lshl_b32 s41, s25, 1')
        a('s_add_u32 s41, s41, s28')
        oimg_addr(a, 40, 41, 44, 45, 42, 43)
        a('s_sub_u32 s42, 8, s40')
        a('s_max_i32 s42, s42, 0')
        a('v_lshlrev_b32 v11, 2, v4')
        a('v_sub_u32 v11, v3, v11')
        for n in range(16):
            a('v_cmp_gt_i32 s[%d:%d], %d, v11' % (MK + 2 * n, MK + 2 * n + 1, 8 * (n >> 2) + (n & 3)))
        a('v_mov_b32 v26, 0xffff')
        a('v_mov_b32 v27, 0xffff0000')
        for n in range(8):
            a('v_cndmask_b32 v%d, 0, v26, s[%d:%d]' % (MB + n, MK + 4 * n, MK + 4 * n + 1))
            a('v_cndmask_b32 v25, 0, v27, s[%d:%d]' % (MK + 4 * n + 2, MK + 4 * n + 3))
            a('v_or_b32 v%d, v%d, v25' % (MB + n, MB + n))
        a('v_mov_b32 v24, 0xf149f2ca')
        a('s_mov_b32 s46, 0x%x' % f32bits(LOG2E * 18 ** -0.5))
    mstamp(a)
    poll(a, ['s50'], 's51', 's_cmp_eq_u32 s24, 0')
    a('s_waitcnt lgkmcnt(0)')
    a('s_barrier')
    mstamp(a)
    for (pl, lo) in ((R_K0, I_K0), (R_K1, I_K1)):
        a('s_add_u32 m0, s54, %d' % lo)
        a('s_add_u32 s55, s52, %d' % pl)
        ws_dma(a, 's55')
    a('s_lshl_b32 s55, s27, 9')
    a('s_add_u32 s55, s55, s3')
    a('s_add_u32 m0, s55, %d' % I_KT)
    a('s_mov_b32 exec_hi, 0')
    ws_dma(a, 's53')
    a('s_mov_b32 exec_hi, -1')
    for (pl, lo) in ((R_V0, I_V0), (R_V1, I_V1), (R_VT, I_VT)):
        a('s_add_u32 m0, s54, %d' % lo)
        a('s_add_u32 s55, s52, %d' % pl)
        ws_dma(a, 's55')
    if HE:
        Q1, Q2 = 12, 16
        S = lambda t: 64 + 16 * t
        OA = 208
        KB = [224, 232, 240]
        MK, MB = 56, 36
        a('v_and_b32 v3, 31, v1')
        a('v_lshrrev_b32 v4, 5, v1')
        a('s_lshl_b32 s27, s27, 5')
        a('v_add_u32 v9, s27, v3')
        a('v_lshlrev_b32 v10, 4, v9')
        a('v_add_u32 v21, s65, v10')
        a('s_mul_i32 s29, s28, 5120')
        a('s_add_u32 s29, s29, %d' % L_QP)
        a('v_lshl_add_u32 v10, v4, 11, v10')
        a('v_add_u32 v10, s29, v10')
        a('v_lshlrev_b32 v20, 3, v9')
        a('v_add_u32 v8, s29, v20')
        a('v_add_u32 v20, s65, v20')
        for r in range(4):
            a('v_mov_b32 v%d, 0' % (Q2 + r))
        a('v_mul_u32_u24 v9, %d, v4' % IM_P)
        a('v_add_u32 v21, v21, v9')
        a('v_add_u32 v20, %d, v20' % I_KT)
        for b in KB:
            for r in range(6, 8):
                a('v_mov_b32 v%d, 0' % (b + r))
        a('v_bfe_u32 v22, v1, 2, 2')
        a('v_lshl_add_u32 v22, v4, 2, v22')
        a('v_add_u32 v22, s27, v22')
        a('v_lshlrev_b32 v22, 4, v22')
        a('v_bfe_u32 v23, v1, 1, 1')
        a('v_mul_u32_u24 v23, %d, v23' % IM_P)
        a('v_and_b32 v25, 1, v1')
        a('v_lshl_add_u32 v23, v25, 3, v23')
        a('v_and_b32 v25, 16, v1')
        a('v_cmp_eq_u32 vcc, 0, v25')
        a('v_mov_b32 v25, %d' % (I_VT - I_V0))
        a('s_add_u32 s65, s65, %d' % I_V0)
        a('v_cndmask_b32 v23, v25, v23, vcc')
        a('v_add3_u32 v22, v22, v23, s65')
        a('s_lshr_b32 s27, s27, 5')
        a('s_lshl_b32 s40, s24, 2')
        a('s_add_u32 s40, s40, s27')
        a('s_lshl_b32 s41, s25, 1')
        a('s_add_u32 s41, s41, s28')
        oimg_addr(a, 40, 41, 44, 45, 42, 43)
        a('s_sub_u32 s42, 8, s40')
        a('s_max_i32 s42, s42, 0')
        a('v_lshlrev_b32 v11, 2, v4')
        a('v_sub_u32 v11, v3, v11')
        for n in range(16):
            a('v_cmp_gt_i32 s[%d:%d], %d, v11' % (MK + 2 * n, MK + 2 * n + 1, 8 * (n >> 2) + (n & 3)))
        a('v_mov_b32 v26, 0xffff')
        a('v_mov_b32 v27, 0xffff0000')
        for n in range(8):
            a('v_cndmask_b32 v%d, 0, v26, s[%d:%d]' % (MB + n, MK + 4 * n, MK + 4 * n + 1))
            a('v_cndmask_b32 v25, 0, v27, s[%d:%d]' % (MK + 4 * n + 2, MK + 4 * n + 3))
            a('v_or_b32 v%d, v%d, v25' % (MB + n, MB + n))
        a('v_mov_b32 v24, 0xf149f2ca')
        a('s_mov_b32 s46, 0x%x' % f32bits(LOG2E * 18 ** -0.5))
    a('ds_read_b128 %s, v10' % vr(Q1, 4))
    a('s_mov_b32 exec_hi, 0')
    a('ds_read_b64 %s, v8 offset:4096' % vr(Q2, 2))
    a('s_mov_b32 exec_hi, -1')
    a('s_waitcnt vmcnt(0) lgkmcnt(0)')
    a('s_barrier')
    mstamp(a)

    def kread(t):
        b = KB[t % 3]
        a('ds_read_b128 %s, v21 offset:%d' % (vr(b, 4), t * 512))
        a('ds_read_b64 %s, v20 offset:%d' % (vr(b + 4, 2), t * 256))

    def tfix(t):
        a('s_cmp_le_u32 s42, %d' % t)
        a('s_cbranch_scc1 attn_ok%d' % t)
        for n in range(16):
            a('v_mov_b32 %s, v24' % vr(S(t) + n))
        a.label('attn_ok%d' % t)

    def tmax(t, half):
        if t < 1:
            return
        for n in range(8 * half, 8 * half + 8, 2):
            m = 25 + ((n >> 1) & 1)
            if t == 1 and n < 4:
                a('v_max_f32 v%d, %s, %s' % (m, vr(S(t) + n), vr(S(t) + n + 1)))
            else:
                a('v_max3_f32 v%d, v%d, %s, %s' % (m, m, vr(S(t) + n), vr(S(t) + n + 1)))
    kread(0)
    kread(1)
    for t in range(9):
        if t + 2 < 9:
            kread(t + 2)
            a('s_waitcnt lgkmcnt(4)')
        elif t + 1 < 9:
            a('s_waitcnt lgkmcnt(2)')
        else:
            a('s_waitcnt lgkmcnt(0)')
        b = KB[t % 3]
        a('v_mfma_f32_32x32x16_bf16 %s, %s, %s, 0' % (vr(S(t), 16), vr(b, 4), vr(Q1, 4)))
        if t >= 3:
            tfix(t - 3)
            tmax(t - 3, 0)
        a('v_mfma_f32_32x32x16_bf16 %s, %s, %s, %s' % (vr(S(t), 16), vr(b + 4, 4), vr(Q2, 4), vr(S(t), 16)))
        if t >= 3:
            tmax(t - 3, 1)
    for t in (6, 7):
        tfix(t)
        tmax(t, 0)
        tmax(t, 1)
    VB = [224, 232, 240, 248]
    seq = [1, 2, 3, 4, 5, 6, 7, 0, 8]

    def vread(k):
        t = seq[k]
        b = VB[k % 4]
        for ks in range(2):
            for hf in range(2):
                a('ds_read_b64_tr_b16 %s, v22 offset:%d' % (vr(b + 4 * ks + 2 * hf, 2), (32 * t + 16 * ks + 8 * hf) * 16))
    vread(0)
    vread(1)
    vread(2)
    for n in range(16):
        a('v_cndmask_b32 %s, %s, %s, s[%d:%d]' % (vr(S(0) + n), vr(S(8) + n), vr(S(0) + n), MK + 2 * n, MK + 2 * n + 1))
    for n in range(0, 16, 2):
        m = 25 + ((n >> 1) & 1)
        a('v_max3_f32 v%d, v%d, %s, %s' % (m, m, vr(S(0) + n), vr(S(0) + n + 1)))
    a('v_max_f32 v25, v25, v26')
    a('v_mov_b32 v26, v25')
    a('s_nop 1')
    a('v_permlane32_swap_b32 v25, v26')
    a('s_nop 0')
    a('v_max_f32 v25, v25, v26')
    a('v_mul_f32 v26, s46, v25')
    pf = lambda t, m: a('v_pk_fma_f32 %s, %s, s[46:47], v[26:27] op_sel_hi:[1,0,0] neg_lo:[0,0,1] neg_hi:[0,0,1]' % (p2(S(t) + 2 * m), p2(S(t) + 2 * m)))
    cv = lambda t, m: a('v_cvt_pk_bf16_f32 %s, %s, %s' % (vr(S(t) + m), vr(S(t) + 2 * m), vr(S(t) + 2 * m + 1)))
    for m in range(8):
        pf(seq[0], m)

    def pv(k, half):
        t = seq[k]
        b = VB[k % 4]
        c = '0' if (k == 0 and half == 0) else vr(OA, 16)
        a('v_mfma_f32_32x32x16_bf16 %s, %s, %s, %s' % (vr(OA, 16), vr(b + 4 * half, 4), vr(S(t) + 4 * half, 4), c))

    def split(n):
        a('v_bfi_b32 %s, v%d, 0, %s' % (vr(S(8) + n), MB + n, vr(S(0) + n)))
        a('v_and_b32 %s, v%d, %s' % (vr(S(0) + n), MB + n, vr(S(0) + n)))
    wops = wo_dma_ops(a)
    pfb = wq_pf_ops(a, PFN) if LOCAL else []
    for k in range(8):
        t = seq[k]
        for m in range(8):
            if m in (2, 5) and wops:
                wops.pop(0)()
            if m == 7 and pfb and k < 7:
                for _ in range(-(-PFN // 7)):
                    if pfb:
                        pfb.pop(0)()
            if k == 7 and m == 0 and O_B and not WL:
                a('s_waitcnt vmcnt(0)')
                a('s_barrier')
            a('v_exp_f32 %s, %s' % (vr(S(t) + 2 * m), vr(S(t) + 2 * m)))
            if k < 7:
                pf(seq[k + 1], m)
            elif m >= 2:
                split(m - 2)
            if m == 1 and k >= 1:
                pv(k - 1, 1)
                if k + 2 < 9:
                    vread(k + 2)
            if m == 6:
                a('s_waitcnt lgkmcnt(%d)' % (4 * min(8 - k, 2)))
                pv(k, 0)
            a('v_exp_f32 %s, %s' % (vr(S(t) + 2 * m + 1), vr(S(t) + 2 * m + 1)))
            if m >= 1:
                cv(t, m - 1)
        a('s_nop 0')
        cv(t, 7)
    split(6)
    split(7)
    a('s_waitcnt lgkmcnt(0)')
    pv(8, 0)
    pv(7, 1)
    pv(8, 1)
    a('s_mov_b32 s66, s44')
    a('s_mov_b32 s67, s45')
    a('s_nop 4')
    o_store(a, OA, 66, 67, None, 0)
    if O_B and not WL:
        wfrag_reads(a)
    mstamp(a)
    a('s_waitcnt vmcnt(0)')
    a.label('O_pub')
    a('s_lshl_b32 s56, s10, 4')
    a('s_add_u32 s57, s56, s24')
    a('s_lshl_b32 s57, s57, 11')
    a('s_add_u32 s57, s57, 0x%x' % F_OC)
    a('s_lshr_b32 s58, s12, 1')
    a('s_add_u32 s58, s58, s56')
    a('s_lshl_b32 s58, s58, 11')
    a('s_add_u32 s59, s58, 0x%x' % F_XC)
    a('s_and_b32 s56, s12, 1')
    a('s_lshl_b32 s56, s56, 3')
    a('s_add_u32 s56, s56, s13')
    a('s_lshl_b32 s56, s56, 7')
    a('s_add_u32 s58, s58, s56')
    a('s_add_u32 s58, s58, 0x%x' % F_OC)
    a('s_waitcnt lgkmcnt(0)')
    a('s_barrier')
    mstamp(a)
    arrive2(a, 's57', 's62', 's25')
    if WL:
        wfrag_reads(a)
    if LOCAL:
        a('s_and_b32 s24, s2, 7')
        a('s_lshl_b32 s24, s24, 1')
        a('s_bfe_u32 s25, s2, 0x10003')
        a('s_add_u32 s24, s24, s25')
        a('s_lshr_b32 s25, s2, 4')
    if PT:
        a('s_mul_i32 s29, s24, %d' % (4 * 36864))
        a('s_mul_i32 s30, s10, 0x%x' % XS)
        a('s_add_u32 s29, s29, s30')
        a('s_add_u32 s29, s29, 0x%x' % OIMG)
        a('v_lshrrev_b32 v3, 4, v1')
        a('v_mul_u32_u24 v3, 36864, v3')
        a('s_cmp_eq_u32 s26, 1')
        a('s_cbranch_scc0 pt_o1')
        a('v_and_b32 v4, 15, v1')
        a('v_lshl_add_u32 v3, v4, 7, v3')
        a('s_lshl_b32 s30, s25, 11')
        a('s_add_u32 s29, s29, s30')
        ws_ld(a, 0, 1, 'v3', 's29')
        a.label('pt_o1')
        a('s_cmp_eq_u32 s26, 2')
        a('s_cbranch_scc0 pt_o2')
        a('v_bfe_u32 v4, v1, 1, 1')
        a('v_lshl_add_u32 v3, v4, 10, v3')
        a('v_and_b32 v4, 1, v1')
        a('v_lshl_add_u32 v3, v4, 7, v3')
        a('s_lshr_b32 s30, s25, 3')
        a('s_lshl_b32 s30, s30, 11')
        a('s_add_u32 s29, s29, s30')
        a('s_bfe_u32 s30, s25, 0x20001')
        a('s_lshl_b32 s30, s30, 8')
        a('s_add_u32 s29, s29, s30')
        a('s_add_u32 s29, s29, 32768')
        a('s_mov_b32 exec_lo, 0x000f000f')
        a('s_mov_b32 exec_hi, 0x000f000f')
        ws_ld(a, 0, 1, 'v3', 's29')
        a('s_mov_b64 exec, -1')
        a.label('pt_o2')
    a('v_and_b32 v3, 15, v1')
    a('v_lshrrev_b32 v4, 4, v1')
    a('s_lshl_b32 s29, s12, 2')
    a('s_add_u32 s29, s29, s27')
    a('v_and_b32 v6, 1, v4')
    a('v_lshrrev_b32 v7, 1, v4')
    a('v_lshl_add_u32 v6, v6, 1, v7')
    a('v_lshlrev_b32 v6, 8, v6')
    a('v_lshl_add_u32 v6, v3, 4, v6')
    a('v_lshlrev_b32 v7, 4, v3')
    a('v_lshl_add_u32 v7, v4, 3, v7')
    a('s_mul_i32 s60, s29, 18432')
    a('s_mul_i32 s61, s13, 2304')
    a('s_add_u32 s60, s60, s61')
    a('s_mul_i32 s61, s10, 0x%x' % XS)
    a('s_add_u32 s60, s60, s61')
    a('s_add_u32 s60, s60, 0x%x' % X0)
    a('s_lshl_b32 s61, s28, 10')
    a('s_add_u32 s61, s61, s60')
    ws_ld(a, 252, 4, 'v6', 's61')
    ws_ld(a, 12, 2, 'v7', 's60', 2048)
    a('s_xor_b32 s15, s14, 1')
    if LOCAL:
        a('s_add_u32 s56, s60, 0x%x' % XS)
        a('s_cmp_eq_u32 s28, 1')
        a('s_cselect_b32 s56, s56, 0x40000000')
        a('v_lshlrev_b32 v11, 7, v1')
        a('s_mov_b64 exec, 0x3ffff')
        ws_ld(a, 0, 1, 'v11', 's56', 0, 'sc1')
        a('s_mov_b64 exec, -1')
        a('s_cmp_lg_u32 s10, 0')
        a('s_cbranch_scc1 cen_e')
        a('v_lshlrev_b32 v29, 2, v1')
        a('s_mov_b64 exec, 0xff')
        a('s_mov_b32 s90, 0')
        a.label('cen')
        a('buffer_load_dword v27, v29, s[%d:%d], s9 offen sc1' % (SWS, SWS + 3))
        a('s_waitcnt vmcnt(0)')
        a('v_cmp_eq_u32 vcc, 32, v27')
        a('s_mov_b32 s91, 0')
        for q in range(8):
            a('v_readlane_b32 s56, v27, %d' % q)
            a('s_add_u32 s91, s91, s56')
        a('s_add_u32 s90, s90, 1')
        a('s_cmp_ge_u32 s90, %d' % SPIN_LIMIT)
        a('s_cbranch_scc1 cen_d')
        a('s_cmp_lt_u32 s91, 32')
        a('s_cbranch_scc1 cen')
        a.label('cen_d')
        a('s_cmp_lg_u32 vcc_lo, 0')
        a('s_cselect_b32 s17, 1, 0')
        a('s_mov_b64 exec, -1')
        a.label('cen_e')

    a('s_lshr_b32 s30, s29, 1')
    a('s_mul_i32 s30, s30, 36864')
    a('s_mul_i32 s31, s10, 0x%x' % XS)
    a('s_add_u32 s30, s30, s31')
    a('s_add_u32 s30, s30, 0x%x' % OIMG)
    a('s_and_b32 s31, s29, 1')
    a('s_lshl_b32 s62, s31, 6')
    a('s_add_u32 s62, s62, s30')
    a('s_lshl_b32 s31, s31, 10')
    a('s_add_u32 s30, s30, s31')
    a('s_lshl_b32 s31, s28, 11')
    a('s_add_u32 s62, s62, s31')
    a('s_add_u32 s62, s62, 32768')
    a('s_lshl_b32 s31, s28, 14')
    a('s_add_u32 s30, s30, s31')
    a('v_lshlrev_b32 v11, 2, v3')
    a('v_lshl_add_u32 v11, v4, 9, v11')
    a('s_mul_i32 s31, s26, 3072')
    a('s_add_u32 s31, s31, %d' % L_WX)
    a('v_add_u32 v14, s31, v5')
    a('s_xor_b32 s31, s26, 4')
    a('s_mul_i32 s31, s31, 3072')
    a('s_add_u32 s31, s31, %d' % L_WX)
    a('v_add_u32 v15, s31, v5')
    if WQ_PRE:
        wq_dma(a, 15, 0, WQ_PRE)
    a('s_waitcnt lgkmcnt(0)')
    mstamp(a)
    poll2(a, 's58', 's63')
    a('s_barrier')
    mstamp(a, True)
    vm = VM(a)

    def ol(t):
        if t == 8:
            for e2 in range(4):
                ws_ld(a, OF + 32 + e2, 1, 'v11', 's62', e2 * 128)
                vm.issue(t)
            return
        if t and t % 2 == 0:
            a('s_add_u32 s30, s30, 4096')
        ws_ld(a, OF + 4 * t, 4, 'v5', 's30', (t & 1) * 2048)
        vm.issue(t)
    for t in range(OD):
        ol(t)
    for t in range(9):
        if t == 0:
            mstamp(a, 2)
        a('s_waitcnt vmcnt(%d)' % vm.cnt(t))
        if t in (0, 8):
            mstamp(a, 2)
        for k, q in enumerate([2, 3, 4, 0, 1]):
            a('v_mfma_f32_16x16x32_bf16 %s, %s, %s, %s' % (vr(CA + 4 * q, 4), vr(WV + 20 * t + 4 * q, 4), vr(OF + 4 * t, 4), '0' if t == 0 else vr(CA + 4 * q, 4)))
            if k == 0 and t + OD < 9:
                ol(t + OD)
    a('s_nop 0')
    for i in range(4):
        a('v_lshlrev_b32 v%d, 16, v%d' % (40 + 2 * i, 252 + i))
        a('v_and_b32 v%d, 0xffff0000, v%d' % (41 + 2 * i, 252 + i))
    for q in (2, 3, 4):
        a('ds_write_b128 v14, %s offset:%d' % (vr(CA + 4 * q, 4), (q - 2) * 1024))
    for i in range(2):
        a('v_lshlrev_b32 v%d, 16, v%d' % (48 + 2 * i, 12 + i))
        a('v_and_b32 v%d, 0xffff0000, v%d' % (49 + 2 * i, 12 + i))
    a('s_add_u32 s60, s60, 0x%x' % XS)
    a('s_add_u32 s61, s61, 0x%x' % XS)
    a('s_waitcnt lgkmcnt(0)')
    mstamp(a, 2)
    a('s_barrier')
    mstamp(a, 2)
    for q in range(3):
        a('ds_read_b128 %s, v15 offset:%d' % (vr(64 + 4 * q, 4), q * 1024))
    a('s_waitcnt lgkmcnt(1)')
    for r in range(0, 8, 2):
        a('v_pk_add_f32 %s, %s, %s' % (p2(CA + r), p2(CA + r), p2(64 + r)))
    for i in range(4):
        a('v_cvt_pk_bf16_f32 v%d, v%d, v%d' % (80 + i, CA + 2 * i, CA + 2 * i + 1))
    a('s_waitcnt lgkmcnt(0)')
    a('v_pk_add_f32 %s, %s, %s' % (p2(CA + 16), p2(CA + 16), p2(72)))
    a('v_permlane16_swap_b32 v80, v82')
    a('v_permlane16_swap_b32 v81, v83')
    a('v_pk_add_f32 %s, %s, %s' % (p2(CA + 18), p2(CA + 18), p2(74)))
    for i in range(4):
        a('v_lshlrev_b32 v%d, 16, v%d' % (84 + 2 * i, 80 + i))
        a('v_and_b32 v%d, 0xffff0000, v%d' % (85 + 2 * i, 80 + i))
    a('v_cvt_pk_bf16_f32 v92, v%d, v%d' % (CA + 16, CA + 17))
    a('v_cvt_pk_bf16_f32 v93, v%d, v%d' % (CA + 18, CA + 19))
    for i in range(0, 8, 2):
        a('v_pk_add_f32 %s, %s, %s' % (p2(40 + i), p2(40 + i), p2(84 + i)))
    for i in range(2):
        a('v_lshlrev_b32 v%d, 16, v%d' % (94 + 2 * i, 92 + i))
        a('v_and_b32 v%d, 0xffff0000, v%d' % (95 + 2 * i, 92 + i))
    for i in range(4):
        a('v_cvt_pk_bf16_f32 v%d, v%d, v%d' % (24 + i, 40 + 2 * i, 41 + 2 * i))
    a('v_pk_add_f32 v[48:49], v[48:49], v[94:95]')
    a('v_pk_add_f32 v[50:51], v[50:51], v[96:97]')
    a('v_cvt_pk_bf16_f32 v52, v48, v49')
    a('v_cvt_pk_bf16_f32 v53, v50, v51')
    a('v_mov_b32 v54, v52')
    a('v_mov_b32 v55, v53')
    a('v_lshlrev_b32 v7, 4, v3')
    a('s_nop 0')
    a('v_permlane16_swap_b32 v52, v54')
    a('v_permlane16_swap_b32 v53, v55')
    a('s_cmp_eq_u32 s10, 3')
    a('s_cbranch_scc1 W_final')
    a('s_mov_b32 s16, s17')
    a('s_cmp_eq_u32 s28, 0')
    a('s_cselect_b32 s56, -1, 0')

    def emitx(fl):
        _uid[0] += 1
        ws_st(a, 24, 4, 'v6', 's61', 0, fl)
        a('s_cmp_eq_u32 s28, 0')
        a('s_cbranch_scc0 xs%d' % _uid[0])
        a('s_mov_b64 exec, 0xffff')
        ws_st(a, 52, 4, 'v7', 's60', 2048, fl)
        a('s_mov_b64 exec, -1')
        a.label('xs%d' % _uid[0])
    st_mode(a, emitx)
    a.label('W_pub')
    mstamp(a, 2)
    wq_dma(a, 15, WQ_PRE, 16)
    mstamp(a, True)
    a('s_waitcnt vmcnt(%d)' % (16 - WQ_PRE))
    a('s_barrier')
    a('s_and_b32 s65, s12, 1')
    a('s_lshl_b32 s65, s65, 3')
    a('s_add_u32 s65, s65, s13')
    arrive2(a, 's59', 's64', 's65')
    if PT:
        a('s_cmp_eq_u32 s28, 1')
        a('s_cbranch_scc0 pt_x')
        a('v_lshlrev_b32 v3, 7, v1')
        a('s_mov_b64 exec, 0x3ffff')
        ws_ld(a, 0, 1, 'v3', 's60')
        a('s_mov_b64 exec, -1')
        a.label('pt_x')
    a('s_add_u32 s10, s10, 1')
    a('s_branch L_top')
    a.label('W_final')
    a('v_mul_u32_u24 v8, 1152, v3')
    a('v_lshrrev_b32 v9, 8, v6')
    a('v_lshl_add_u32 v9, v9, 4, v8')
    a('s_mul_i32 s60, s29, 18432')
    a('s_mul_i32 s61, s13, 144')
    a('s_add_u32 s60, s60, s61')
    a('s_lshl_b32 s61, s28, 6')
    a('s_add_u32 s61, s61, s60')
    a('buffer_store_dwordx4 v[24:27], v9, s[%d:%d], s61 offen' % (SOUT, SOUT + 3))
    a('s_cmp_eq_u32 s28, 0')
    a('s_cbranch_scc0 W_done')
    a('s_mov_b64 exec, 0xffff')
    a('buffer_store_dwordx4 v[52:55], v8, s[%d:%d], s60 offen offset:128' % (SOUT, SOUT + 3))
    a('s_mov_b64 exec, -1')
    a.label('W_done')
    if STAMP:
        mstamp(a)
        a('s_waitcnt vmcnt(0)')
        mstamp(a)
        a('s_memrealtime s[94:95]')
        a('s_waitcnt lgkmcnt(0)')
        a('v_writelane_b32 v2, s94, 63')
        a('s_lshl_b32 s56, s2, 3')
        a('s_add_u32 s56, s56, s26')
        a('s_lshl_b32 s56, s56, 8')
        a('s_add_u32 s56, s56, 0x%x' % STAMP_OFF)
        a('v_lshlrev_b32 v3, 2, v1')
        ws_st(a, 2, 1, 'v3', 's56', 0, '')
    a.label('mega_end')
    a('s_endpgm')
    return [('mega_kernel', 256, 100)]


def build():
    a = Asm()
    ks = []
    global STAMP
    st = STAMP
    STAMP = False
    ks += gen_prep(a)
    STAMP = st
    ks += gen_mega(a)
    launches = [
        ('prep_kernel', NPREP, 192, 28416),
        ('mega_kernel', 256, 512, MEGA_LDS),
    ]
    out = []
    for (k, g, b, l) in launches:
        out.append('; @launch kernel=%s grid=(%d,1,1) block=(%d,1,1) lds=%d' % (k, g, b, l))
    out.append('.amdgcn_target "amdgcn-amd-amdhsa--gfx950"')
    out.append('.text')
    out += a.L
    out.append('code_end:')
    out.append('    s_endpgm')
    out.append('.section .rodata,"a"')
    for (k, v, s) in ks:
        out.append('.p2align 6')
        out.append(kdesc(k, v, s))
    return '\n'.join(out) + '\n'


if __name__ == '__main__':
    if len(sys.argv) > 2 and sys.argv[2] == 'stamp':
        STAMP = True
    dst = sys.argv[1] if len(sys.argv) > 1 else 'cdna_kernels/%s.s' % NAME
    open(dst, 'w').write(build())
    print('wrote', dst)
```
